```python
import torch

def _softmax(x, axis=-1):
    return torch.softmax(x, dim=axis)
def _gelu(x):
    return torch.nn.functional.gelu(x, approximate="tanh")
def _silu(x):
    return torch.nn.functional.silu(x)
def _sigmoid(x):
    return torch.sigmoid(x)
def _layernorm(x, axis=-1, eps=1e-5):
    m = x.mean(dim=axis, keepdim=True)
    v = x.var(dim=axis, keepdim=True, unbiased=False)
    return (x - m) / torch.sqrt(v + eps)
def _scatter_add(tgt, idx, src, axis=0):
    return tgt.clone().index_add_(axis, idx, src)
def _segment_sum(src, seg, n):
    out = torch.zeros((n,) + src.shape[1:], dtype=src.dtype)
    return out.index_add_(0, seg, src)
def _pad(x, pw):
    flat = tuple(v for pair in reversed(pw) for v in pair)
    return torch.nn.functional.pad(x, flat)

kernel_name = 'interleave_layers__sliding_block_cached__moe_arch_mod__decode'

def setup_inputs():

    _w = (lambda a: (lambda t: t.to(torch.bfloat16) if t.is_floating_point() else t)(torch.as_tensor(a)))
    def _A_setup():
        B, Sq, D = 4, 1, 640
        Hq, Hkv, Sk, Dh = 32, 32, 4096, 192
        assert Hq % Hkv == 0, (Hq, Hkv)
        return {
            "x": _w((lambda *s: torch.randn(*s, dtype=torch.bfloat16) * 0.05)(B, Sq, D)),
            "k_cache": _w((lambda *s: torch.randn(*s, dtype=torch.bfloat16) * 1.6)(B, Hkv, Sk, Dh)),
            "v_cache": _w((lambda *s: torch.randn(*s, dtype=torch.bfloat16) * 1.6)(B, Hkv, Sk, Dh)),
            "wq": _w((lambda *s: torch.randn(*s, dtype=torch.bfloat16) * 1.6)(D, Hq * Dh) * (D ** -0.5)),
            "wo": _w((lambda *s: torch.randn(*s, dtype=torch.bfloat16) * 1.6)(Hq * Dh, D) * ((Hq * Dh) ** -0.5)),
        }
    _A_in = _A_setup()

    def _B_setup():
        B, S, D, F, C = 4, 1, 640, 1536, 1
        return {
            "x": _w((lambda *s: torch.randn(*s, dtype=torch.bfloat16) * 0.05)(B, S, D)),
            "w_r": _w((lambda *s: torch.randn(*s, dtype=torch.bfloat16) * 0.05)(D)),
            "w_gate": _w((lambda *s: torch.randn(*s, dtype=torch.bfloat16) * 0.05)(D, F)),
            "w_up": _w((lambda *s: torch.randn(*s, dtype=torch.bfloat16) * 0.05)(D, F)),
            "w_down": _w((lambda *s: torch.randn(*s, dtype=torch.bfloat16) * 0.05)(F, D)),
        }
    _B_in = _B_setup()

    return {
        "A_x": _A_in["x"],
        "A_k_cache": _A_in["k_cache"],
        "A_v_cache": _A_in["v_cache"],
        "A_wq": _A_in["wq"],
        "A_wo": _A_in["wo"],
        "B_x": _B_in["x"],
        "B_w_r": _B_in["w_r"],
        "B_w_gate": _B_in["w_gate"],
        "B_w_up": _B_in["w_up"],
        "B_w_down": _B_in["w_down"],
    }

def reference(A_x, A_k_cache, A_v_cache, A_wq, A_wo, B_x, B_w_r, B_w_gate, B_w_up, B_w_down):
    def _A_ref(x, k_cache, v_cache, wq, wo):
        B, Sq, D = x.shape
        Hq, Dh = 32, 192
        Hkv, Sk = k_cache.shape[1], k_cache.shape[2]
        W = min(4096, max(256, Sk // 4))
        rep = Hq // Hkv
        q = (lambda x, *d: x.permute(*d))((x @ wq).reshape(B, Sq, Hq, Dh), 0, 2, 1, 3)
        k = (lambda x, n, axis: torch.repeat_interleave(x, n, dim=axis))(k_cache[:, :, Sk - W:, :], rep, axis=1)
        v = (lambda x, n, axis: torch.repeat_interleave(x, n, dim=axis))(v_cache[:, :, Sk - W:, :], rep, axis=1)
        scores = torch.einsum("bhqd,bhkd->bhqk", q, k) * (Dh ** -0.5)
        p = _softmax(scores, axis=-1)
        o = torch.einsum("bhqk,bhkd->bhqd", p, v)
        return (lambda x, *d: x.permute(*d))(o, 0, 2, 1, 3).reshape(B, Sq, Hq * Dh) @ wo

    def _B_ref(x, w_r, w_gate, w_up, w_down):
        B, S, D = x.shape
        C = 1
        r = x @ w_r
        idx = torch.argsort(-r, axis=-1)[:, :C]
        idx_e = (lambda x, n, axis: torch.repeat_interleave(x, n, dim=axis))(idx.reshape(B, C, 1), D, axis=2)
        x_sel = (lambda x, i, axis: torch.take_along_dim(x, i, dim=axis))(x, idx_e, axis=1)
        g = _silu(x_sel @ w_gate)
        u = x_sel @ w_up
        y = (g * u) @ w_down
        r_sel = _sigmoid((lambda x, i, axis: torch.take_along_dim(x, i, dim=axis))(r, idx, axis=1))
        y = y * r_sel.reshape(B, C, 1)
        b_off = (torch.arange(B) * S).reshape(B, 1)
        flat_idx = (idx + b_off).reshape(B * C)
        zero = (x * 0.0).reshape(B * S, D)
        upd = _scatter_add(zero, flat_idx, y.reshape(B * C, D), axis=0)
        return x + upd.reshape(B, S, D)

    x = A_x
    x = x + _A_ref(_layernorm(x, axis=-1), A_k_cache, A_v_cache, A_wq, A_wo)
    x = x + _B_ref(_layernorm(x, axis=-1), B_w_r, B_w_gate, B_w_up, B_w_down)
    x = x + _A_ref(_layernorm(x, axis=-1), A_k_cache, A_v_cache, A_wq, A_wo)
    x = x + _B_ref(_layernorm(x, axis=-1), B_w_r, B_w_gate, B_w_up, B_w_down)
    return x
```

```python
import re

REG_RE = re.compile(r'(?<![\w.])(-|abs\()?([vas])(\d+|\[(\d+):(\d+)\])(?![\w])')
TRANS = ('v_exp_f32', 'v_log_f32', 'v_rcp_f32', 'v_rsq_f32', 'v_sqrt_f32', 'v_sin_f32', 'v_cos_f32')

def regs_of(tok):
    tok = tok.strip()
    out = []
    if tok in ('vcc',): return [('s', 'vcc')]
    if tok in ('exec',): return [('s', 'exec')]
    if tok in ('m0',): return [('s', 'm0')]
    for m in REG_RE.finditer(tok):
        k = m.group(2)
        if m.group(4) is not None:
            out += [(k, i) for i in range(int(m.group(4)), int(m.group(5)) + 1)]
        else:
            out.append((k, int(m.group(3))))
    return out

class Ins:
    def __init__(self, text):
        self.text = text
        t = text.split(';')[0].strip()
        self.label = None
        self.op = None
        self.w = []; self.r = []
        if t.endswith(':'):
            self.label = t[:-1]; return
        if not t or t.startswith('.'):
            self.op = '.'; return
        p = t.split(None, 1)
        op = self.op = p[0]
        rest = p[1] if len(p) > 1 else ''
        ops = []; depth = 0; cur = ''
        for ch in rest:
            if ch in '[(': depth += 1
            if ch in '])': depth -= 1
            if ch == ',' and depth == 0: ops.append(cur.strip()); cur = ''
            else: cur += ch
        if cur.strip(): ops.append(cur.strip())
        if ops:
            first = ops[-1].split(None, 1)
            self.mods = first[1] if len(first) > 1 else ''
            ops[-1] = first[0]
        else: self.mods = ''
        self.ops = ops
        self.is_mfma = op.startswith('v_mfma') or op.startswith('v_smfmac')
        self.is_valu = op.startswith('v_') and not self.is_mfma
        self.is_dpp = op.endswith('_dpp')
        self.is_perm = op.startswith('v_permlane')
        self.is_trans = op.replace('_e32', '').replace('_e64', '') in TRANS
        self.is_vmem = op.startswith('buffer_') or op.startswith('global_')
        self.is_ds = op.startswith('ds_')
        self.is_salu = op.startswith('s_')
        self.is_lanerd = op.startswith('v_readlane') or op.startswith('v_readfirstlane')
        self.is_ldsdma = self.is_vmem and ' lds' in (' ' + self.mods)
        self.srcC = []; self.srcAB = []; self.stdata = []
        R = [regs_of(o) for o in ops]
        flat = lambda l: [x for y in l for x in y]
        if self.is_mfma:
            self.w = R[0]; self.srcAB = R[1] + R[2]
            if op.startswith('v_smfmac'): self.srcC = R[0]; self.srcAB += R[3]
            else: self.srcC = R[3]
            self.r = self.srcAB + self.srcC
        elif self.is_valu:
            if self.is_perm: self.w = R[0] + R[1]; self.r = R[0] + R[1]
            else:
                self.w = R[0]; self.r = flat(R[1:])
                if op.startswith(('v_fmac', 'v_dot2c', 'v_writelane')) or self.is_dpp: self.r += R[0]
                if op.startswith('v_cmpx'): self.w += [('s', 'exec')]
                if op.startswith(('v_add_co', 'v_sub_co', 'v_addc_co')): self.w += R[1]; self.r = flat(R[2:])
        elif self.is_vmem:
            if self.is_ldsdma: self.r = flat(R) + [('s', 'm0')]
            elif '_load' in op:
                self.w = R[0]; self.r = flat(R[1:])
                if 'd16' in op: self.r += R[0]
            else:
                self.r = flat(R); self.stdata = R[0] if op.startswith('buffer_') else R[1]
        elif self.is_ds:
            if op.startswith('ds_read') or '_rtn_' in op or op.startswith('ds_bperm') or op.startswith('ds_swizzle'):
                self.w = R[0]; self.r = flat(R[1:])
            else: self.r = flat(R)
        elif self.is_salu:
            if op.startswith(('s_cmp', 's_bitcmp', 's_cbranch', 's_branch', 's_waitcnt', 's_barrier', 's_nop', 's_endpgm', 's_sleep', 's_setprio', 's_setpc')):
                self.r = flat(R)
            else:
                self.w = R[0] if R else []; self.r = flat(R[1:])
                if 'saveexec' in op: self.w += [('s', 'exec')]
        self.wide_store = self.is_vmem and ('store_dwordx4' in op or 'store_dwordx3' in op)
        self.states = 1
        if op == 's_nop': self.states = int(ops[0], 0) + 1
        self.passes = 0
        if self.is_mfma:
            if '32x32' in op: self.passes = 8
            elif '4x4' in op: self.passes = 2
            else: self.passes = 4

def need(p, c):
    n = 0
    pw = set(p.w); cr = set(c.r); cw = set(c.w)
    vw = {x for x in pw if x[0] in 'va'}; sw = {x for x in pw if x[0] == 's'}
    if p.is_valu:
        if vw & cr:
            if c.is_mfma: n = max(n, 2)
            if c.is_dpp: n = max(n, 2)
            if c.is_perm: n = max(n, 2)
            if c.is_lanerd: n = max(n, 1)
            if p.is_trans and (c.is_valu or c.is_mfma): n = max(n, 1)
        if sw & cr:
            if c.is_valu: n = max(n, 4 if c.is_lanerd or c.op.startswith('v_writelane') else 2)
            if c.is_vmem: n = max(n, 5)
            if c.is_salu and not c.op.startswith('s_cbranch'): n = max(n, 1)
        if ('s', 'exec') in pw:
            if c.is_dpp: n = max(n, 5)
            if c.is_mfma or c.is_lanerd or c.is_perm: n = max(n, 4)
    if p.is_mfma:
        big = {2: 5, 4: 8, 8: 12}[p.passes]
        if c.is_mfma:
            if vw & set(c.srcAB): n = max(n, big)
            if vw & set(c.srcC):
                if set(c.srcC) == vw and c.op == p.op: n = max(n, 2 if p.passes == 2 else 0)
                else: n = max(n, {2: 4, 4: 6, 8: 10}[p.passes])
            elif vw & cw: n = max(n, big)
        elif (vw & cr) or (vw & cw): n = max(n, big)
        if c.is_valu and (set(p.srcC) & cw): n = max(n, {2: 1, 4: 3, 8: 7}[p.passes])
    if p.op != '.' and p.label is None:
        if p.is_salu and ('s', 'm0') in pw and c.is_ldsdma: n = max(n, 1)
        if p.wide_store and (set(p.stdata) & cw): n = max(n, 2)
    return n

def resolve(lines):
    ins = [Ins(l) for l in lines]
    def maps():
        labels = {x.label: i for i, x in enumerate(ins) if x.label}
        preds = {}
        for i, x in enumerate(ins):
            if x.op and (x.op.startswith('s_cbranch') or x.op == 's_branch'):
                preds.setdefault(labels[x.ops[0]], []).append(i)
        return preds
    def worst_at(i, preds):
        c = ins[i]; worst = 0
        stack = [(i - 1, 0)]; seen = set()
        while stack:
            j, d = stack.pop()
            if j < 0 or d >= 12 or (j, d) in seen: continue
            seen.add((j, d))
            p = ins[j]
            if p.label is not None:
                for b in preds.get(j, []): stack.append((b, d))
                k = j - 1
                while k >= 0 and (ins[k].label is None and ins[k].op == '.'): k -= 1
                if k >= 0 and ins[k].op in ('s_branch', 's_endpgm', 's_setpc_b64'): continue
                stack.append((j - 1, d)); continue
            if p.op == '.': stack.append((j - 1, d)); continue
            worst = max(worst, need(p, c) - d)
            stack.append((j - 1, d + p.states))
        return worst
    nins = 0
    for sweep in range(10):
        changed = False
        preds = maps()
        i = 0
        while i < len(ins):
            c = ins[i]
            if c.label is None and c.op != '.':
                w = worst_at(i, preds)
                if w > 0:
                    ins.insert(i, Ins(f"s_nop {w - 1}")); changed = True; nins += 1
                    preds = maps(); i += 1
            i += 1
        if not changed: break
    return [x.text for x in ins], nins
```

```python
import sys
from asmlib import resolve

NAME = "interleave_layers__sliding_block_cached__moe_arch_mod__decode_kernel"

OSL = 896
RO = [0, 256 * OSL]
RX = [2 * 256 * OSL, 2 * 256 * OSL + 163840]
RY = [RX[1] + 163840, RX[1] + 2 * 163840]
RG = [RY[1] + 163840, RY[1] + 163840 + 524288]
RQ = [RG[1] + 524288, RG[1] + 524288 + 2097152]
RF = RQ[1] + 1048576
RE = RF + 32768
WS_END = RE + 2048
STAMP = WS_END
WS_SIZE = WS_END + 256 * 8 * 128
L_OC = 0
L_ML = L_OC + 12288
L_XA = L_ML + 64; XS = 176
L_HA = L_XA + 6 * XS; HS = 320
L_OA = L_HA + 4 * HS; OS = 832
L_QL = L_OA + 4 * OS
L_FL = L_QL + 384
L_CQ = L_FL + 64
L_WD = L_CQ + 768
L_WG = L_WD + 7680
L_WU = L_WG + 7680
L_WO = L_WU + 7680
L_WQ = L_WO + 30720
L_VP = L_WQ + 30720
LDS_SIZE = L_VP + 8 * 6144
sW, sV, sX, sT, sP, sDRY = 2, 3, 4, 5, 6, 7
SK, SVV, SWS, SWQ, SWO, SWG, SWU, SWD, SX0, SWR, SOUT, SDBG = range(8, 56, 4)
sFAST, sROLE, sTO = 56, 57, 58
sFULL = 60
sA, sB, sC, sD, sE, sF = 62, 63, 88, 89, 90, 91
sM = 92
sLOG2E, sSCALE, sINVN, sEPS = 93, 94, 95, 59
sSIG = 98
sST = 64
R_LT3, R_LT5, R_LT6, R_GE4, R_456, R_7, R_6 = range(7)
vXR, vXN, vSG, vCG, vCU, vCQ = 80, 81, 82, 83, 84, 85
VBASE = 88

def srd(b): return f"s[{b}:{b+3}]"
def vr(a, n=4): return f"v[{a}:{a+n-1}]" if n > 1 else f"v{a}"
def ar(a, n=4): return f"a[{a}:{a+n-1}]"

class G:
    def __init__(self, prof=False, opts=None):
        self.L = []; self.tail = []; self.n = 0; self.prof = prof
        self.o = dict(dry=True, sync_o='none', sync_x='ack', sync_g='none', sync_y='ack', sync_q='none', fast=True, clear='sc1', wdma=True, wflag='nt', bsleep=8, lim=0, lim2=0)
        self.o.update(opts or {})
    def A(self, s):
        for l in s.split('\n'):
            l = l.strip()
            if l: self.L.append(l)
    def lab(self, p):
        self.n += 1; return f"L_{p}_{self.n}"
    def exec_mask(self, m):
        self.A(f"s_and_b32 exec_lo, s{sFULL}, 0x{m & 0xffffffff:x}\ns_and_b32 exec_hi, s{sFULL}, 0x{m >> 32:x}")
    def exec_full(self): self.A(f"s_mov_b64 exec, s[{sFULL}:{sFULL+1}]")
    def barrier(self):
        l = self.lab("nb"); self.A(f"s_cbranch_execz {l}\ns_barrier\n{l}:")
    def role(self, bit):
        l = self.lab("role"); self.A(f"s_bitcmp1_b32 s{sROLE}, {bit}\ns_cbranch_scc0 {l}"); return l
    def end(self, l): self.A(f"{l}:")
    def mem(self, lines):
        l = self.lab("nm"); self.A(f"s_cbranch_execz {l}"); self.A(lines); self.A(f"{l}:")
    def stores(self, lines, intra):
        if intra and self.o['fast']:
            l1 = self.lab("st"); l2 = self.lab("st")
            self.A(f"s_cbranch_execz {l2}\ns_cmp_eq_u32 s{sFAST}, 0\ns_cbranch_scc1 {l1}")
            self.A(lines.format(f="")); self.A(f"{l2}:")
            self.tail.append(f"{l1}:\n" + lines.format(f=" sc1") + f"\ns_branch {l2}")
        else:
            self.mem(lines.format(f=" sc1"))
    def poll(self, loads, regs, tmp):
        lp = self.lab("poll"); lr = self.lab("retry")
        self.A(f"{lp}:"); self.mem(loads)
        self.A("s_waitcnt vmcnt(0)")
        regs = list(regs)
        a, b = tmp, tmp + 1
        if len(regs) <= 3:
            if len(regs) == 2: self.A(f"v_max_u32 v{a}, v{regs[0]}, v{regs[1]}")
            else: self.A(f"v_max3_u32 v{a}, v{regs[0]}, v{regs[1]}, v{regs[2]}")
        else:
            self.A(f"v_max3_u32 v{a}, v{regs[0]}, v{regs[1]}, v{regs[2]}")
            rest = regs[3:]
            if len(rest) >= 3:
                self.A(f"v_max3_u32 v{b}, v{rest[0]}, v{rest[1]}, v{rest[2]}"); rest = rest[3:]
                cur = a
                while len(rest) >= 2:
                    self.A(f"v_max3_u32 v{cur}, v{cur}, v{rest[0]}, v{rest[1]}"); rest = rest[2:]; cur = a + b - cur
                if rest: self.A(f"v_max3_u32 v{a}, v{a}, v{b}, v{rest[0]}")
                else: self.A(f"v_max_u32 v{a}, v{a}, v{b}")
            elif len(rest) == 2: self.A(f"v_max3_u32 v{a}, v{a}, v{rest[0]}, v{rest[1]}")
            else: self.A(f"v_max_u32 v{a}, v{a}, v{rest[0]}")
        self.A(f"v_cmp_eq_u32 vcc, -1, v{a}\ns_cbranch_vccnz {lr}")
        self.tail.append(f"{lr}:\ns_sub_u32 s{sTO}, s{sTO}, 1\ns_cbranch_scc1 L_end\ns_branch {lp}")
    def stamp(self, i, both=True):
        if not self.prof: return
        self.A("s_memrealtime s[96:97]\ns_waitcnt lgkmcnt(0)")
        if both:
            self.A(f"s_cmp_eq_u32 s{sP}, 0\ns_cselect_b32 s{sST+i}, s96, s{sST+i}\ns_cselect_b32 s{sST+12+i}, s{sST+12+i}, s96")
        else:
            self.A(f"s_mov_b32 s{sST+i}, s96")
    def sync(self, kind):
        if kind == 'ack': self.A("s_waitcnt vmcnt(0)"); self.barrier()
        elif kind.startswith('sleep'): self.A(f"s_sleep {int(kind[5:])}")
        elif kind.startswith('acks'): self.A("s_waitcnt vmcnt(0)"); self.barrier(); self.A(f"s_sleep {int(kind[4:])}")
    def rnd(self, d, s): self.A(f"v_cvt_pk_bf16_f32 v{d}, 0, v{s}")
    def treduce(self, r0, r1, r2, r3):
        self.A(f"""v_permlane32_swap_b32 v{r0}, v{r2}
        v_permlane32_swap_b32 v{r1}, v{r3}
        v_add_f32 v{r0}, v{r0}, v{r2}
        v_add_f32 v{r1}, v{r1}, v{r3}
        v_permlane16_swap_b32 v{r0}, v{r1}
        v_add_f32 v{r0}, v{r0}, v{r1}""")
    def red8(self, regs):
        for perm in ("quad_perm:[1,0,3,2]", "quad_perm:[2,3,0,1]", "row_half_mirror"):
            for r in regs: self.A(f"v_add_f32_dpp v{r}, v{r}, v{r} {perm} row_mask:0xf bank_mask:0xf")
    def lnstats(self, sq, sm, m, rs, t):
        self.A(f"""v_mul_f32 v{sm}, s{sINVN}, v{sm}
        v_mul_f32 v{sq}, s{sINVN}, v{sq}
        v_fma_f32 v{t}, -v{sm}, v{sm}, v{sq}
        v_cvt_pk_bf16_f32 v{m}, 0, v{sm}
        v_max_f32 v{t}, 0, v{t}
        v_cvt_pk_bf16_f32 v{t}, 0, v{t}
        v_add_f32 v{t}, s{sEPS}, v{t}
        v_cvt_pk_bf16_f32 v{t}, 0, v{t}
        v_sqrt_f32 v{t}, v{t}
        v_cvt_pk_bf16_f32 v{t}, 0, v{t}
        v_rcp_f32 v{rs}, v{t}""")
    def tr_addr(self, d, rs, t):
        self.A(f"""v_lshrrev_b32 v{t}, 4, v0
        v_bfe_u32 v{d}, v0, 2, 2
        v_lshl_add_u32 v{d+1}, v{t}, 2, v{d}
        v_lshl_add_u32 v{d}, v{t}, 3, v{d}
        v_mul_u32_u24 v{d}, {rs}, v{d}
        v_mul_u32_u24 v{d+1}, {rs}, v{d+1}
        v_and_b32 v{t}, 3, v0
        v_lshl_add_u32 v{d}, v{t}, 3, v{d}
        v_lshl_add_u32 v{d+1}, v{t}, 3, v{d+1}""")
    def wfrag32(self, dst, addr, off, rs):
        self.A(f"ds_read_b64_tr_b16 {vr(dst,2)}, v{addr} offset:{off}\nds_read_b64_tr_b16 {vr(dst+2,2)}, v{addr} offset:{off+4*rs}")

    def prologue(self):
        A = self.A
        A(f"""s_cmp_ge_u32 s2, 256
        s_cbranch_scc1 L_exit
        s_load_dwordx16 s[64:79], s[0:1], 0
        s_load_dwordx8 s[80:87], s[0:1], 64
        s_load_dwordx2 s[88:89], s[0:1], 96
        v_lshrrev_b32 v1, 6, v0
        v_and_b32 v0, 63, v0
        v_readfirstlane_b32 s{sV}, v1
        s_and_b32 s{sX}, s2, 7
        s_lshr_b32 s{sT}, s2, 3
        s_mov_b32 s{sP}, 0
        s_mov_b32 s{sDRY}, 0
        s_mov_b64 s[{sFULL}:{sFULL+1}], -1
        s_mov_b32 s{sTO}, 0x100000
        s_mov_b32 s{sFAST}, 0
        s_mov_b32 s{sLOG2E}, 0x3fb8aa3b
        s_mov_b32 s{sSCALE}, 0x3d93cd3a
        s_mov_b32 s{sINVN}, 0x3acccccd
        s_mov_b32 s{sEPS}, 0x3727c5ac
        s_lshl_b32 s{sSIG}, s{sX}, 5
        s_add_u32 s{sSIG}, s{sSIG}, s{sT}""")
        tab = 0
        for v in range(8):
            bits = (v < 3) << R_LT3 | (v < 5) << R_LT5 | (v < 6) << R_LT6 | (v >= 4) << R_GE4 | (4 <= v <= 6) << R_456 | (v == 7) << R_7 | (v == 6) << R_6
            tab |= bits << (8 * v)
        A(f"""s_mov_b32 s90, 0x{tab & 0xffffffff:x}
        s_mov_b32 s91, 0x{tab >> 32:x}
        s_lshl_b32 s{sA}, s{sV}, 3
        s_lshr_b64 s[90:91], s[90:91], s{sA}
        s_and_b32 s{sROLE}, s90, 0xff""")
        A(f"""s_lshr_b32 s{sA}, s{sT}, 3
        s_lshl_b32 s{sB}, s{sX}, 2
        s_add_u32 s92, s{sA}, s{sB}            ; h
        s_bfe_u32 s{sA}, s{sT}, 0x20001        ; b
        s_lshl_b32 s{sA}, s{sA}, 5
        s_add_u32 s{sA}, s{sA}, s92
        s_lshl_b32 s{sA}, s{sA}, 12
        s_and_b32 s{sB}, s{sT}, 1
        s_lshl_b32 s{sB}, s{sB}, 9
        s_add_u32 s{sA}, s{sA}, s{sB}
        s_lshl_b32 s{sB}, s{sV}, 6
        s_add_u32 s{sA}, s{sA}, s{sB}
        s_add_u32 s{sA}, s{sA}, 3072
        s_mul_i32 s{sA}, s{sA}, 384
        v_mov_b32 v2, 0
        v_mov_b32 v3, 0
        v_mov_b32 v1, {L_FL}
        ds_write_b64 v1, v[2:3]
        s_waitcnt lgkmcnt(0)
        s_barrier""")
        def mk(b, p, off, size):
            if off is None:
                A(f"s_mov_b32 s{b}, s{p}\ns_mov_b32 s{b+1}, s{p+1}\ns_mov_b32 s{b+2}, {size}")
            else:
                A(f"s_add_u32 s{b}, s{p}, s{off}\ns_addc_u32 s{b+1}, s{p+1}, 0")
                if isinstance(size, int): A(f"s_mov_b32 s{b+2}, {size}")
                else: A(f"s_sub_u32 s{b+2}, {size[0]}, s{off}")
            A(f"s_mov_b32 s{b+3}, 0x20000")
        mk(SK, 66, sA, 24576); mk(SVV, 68, sA, 24576)
        mk(SWS, 88, None, WS_SIZE)
        A(f"""s_and_b32 s90, s{sT}, 7               ; ks
        s_mul_i32 s{sA}, s90, {80*12288}
        s_mul_i32 s{sB}, s92, 384
        s_add_u32 s{sA}, s{sA}, s{sB}
        s_and_b32 s{sB}, s{sV}, 3
        s_mul_i32 s{sB}, s{sB}, 96
        s_add_u32 s{sA}, s{sA}, s{sB}""")
        mk(SWQ, 70, sA, (640 * 6144 * 2,))
        A(f"""s_lshr_b32 s{sA}, s{sT}, 4
        s_lshl_b32 s{sB}, s{sX}, 1
        s_add_u32 s91, s{sA}, s{sB}             ; P = 2x + (t>>4)
        s_mul_i32 s{sA}, s91, {384*1280}
        s_and_b32 s{sB}, s{sT}, 15
        s_mul_i32 s{sB}, s{sB}, 80
        s_add_u32 s{sA}, s{sA}, s{sB}""")
        mk(SWO, 72, sA, (6144 * 640 * 2,))
        A(f"""s_mul_i32 s{sA}, s91, {96*1280}
        s_add_u32 s{sA}, s{sA}, s{sB}""")
        mk(SWD, 82, sA, (1536 * 640 * 2,))
        A(f"""s_mul_i32 s{sA}, s90, {80*3072}
        s_mul_i32 s{sB}, s92, 96
        s_add_u32 s{sA}, s{sA}, s{sB}""")
        mk(SWG, 78, sA, (640 * 1536 * 2,)); mk(SWU, 80, sA, (640 * 1536 * 2,))
        A(f"s_mul_i32 s{sA}, s90, 160")
        mk(SX0, 64, sA, (5120,)); mk(SWR, 76, sA, (1280,)); mk(SOUT, 84, sA, (5120,))
        mk(SDBG, 86, None, 256)
        if self.prof:
            for i in range(24): A(f"s_mov_b32 s{sST+i}, 0")
        self.stamp(0, both=False)

    def thr(self, lim):
        if lim: self.A(f"s_waitcnt vmcnt({lim-1})")
    def dma60(self, srdb, vaddr, n, rows, rstride, lds0, i0=0, lim=0):
        for i in range(i0, i0 + n):
            self.thr(lim)
            self.A(f"s_add_u32 m0, s{sB}, {lds0 + i*960}\ns_mov_b32 s{sA}, {i*rows*rstride}\nbuffer_load_dwordx4 v{vaddr}, {srd(srdb)}, s{sA} offen {self.o['wflag'] if self.o['wflag'] != 'plain' else ''} lds")

    def dma_addr(self, d, cpr, rstride):
        mul = {5: 52, 6: 43}[cpr]
        self.A(f"""v_mul_u32_u24 v{d}, {mul}, v0
        v_lshrrev_b32 v{d}, 8, v{d}
        v_mul_u32_u24 v3, {cpr}, v{d}
        v_sub_u32 v3, v0, v3
        v_mul_u32_u24 v{d}, {rstride}, v{d}
        v_lshl_add_u32 v{d}, v3, 4, v{d}""")

    def kv_loads(self, lim):
        A = self.A
        A(f"""v_bfe_u32 v1, v0, 1, 3
        v_mul_u32_u24 v1, 384, v1
        v_lshrrev_b32 v3, 4, v0
        v_lshl_add_u32 v1, v3, 5, v1
        v_and_b32 v3, 1, v0
        v_lshl_add_u32 v1, v3, 4, v1
        v_lshrrev_b32 v2, 3, v0
        v_mul_u32_u24 v2, 384, v2
        v_and_b32 v3, 7, v0
        v_lshl_add_u32 v2, v3, 4, v2
        s_mul_i32 s{sB}, s{sV}, 6144""")
        for g in range(8):
            A(f"s_mov_b32 s{sA}, {g*3072}")
            for s in range(3):
                self.thr(lim)
                A(f"buffer_load_dwordx4 {ar((g*3+s)*4)}, v1, {srd(SK)}, s{sA} offen offset:{s*128} nt")
        for g in range(8):
            for s in range(3):
                self.thr(lim)
                if g < 2:
                    A(f"s_add_u32 m0, s{sB}, {L_VP + (g*3+s)*1024}\ns_mov_b32 s{sA}, {g*3072+s*128}\nbuffer_load_dwordx4 v2, {srd(SVV)}, s{sA} offen nt lds")
                else:
                    if s == 0: A(f"s_mov_b32 s{sA}, {g*3072}")
                    A(f"buffer_load_dwordx4 {vr(VBASE+((g-2)*3+s)*4)}, v2, {srd(SVV)}, s{sA} offen offset:{s*128} nt")

    def xres_load(self):
        l = self.role(R_LT5)
        self.A(f"""v_lshrrev_b32 v1, 4, v0
        v_mul_u32_u24 v1, 1280, v1
        v_and_b32 v2, 15, v0
        v_lshl_add_u32 v1, v2, 1, v1
        s_lshl_b32 s{sA}, s{sV}, 5
        v_mov_b32 v{vXR}, 0
        buffer_load_short_d16_hi v{vXR}, v1, {srd(SX0)}, s{sA} offen""")
        self.end(l)

    def attn_pre(self):
        self.A(f"""v_lshrrev_b32 v1, 4, v0
        v_and_b32 v2, 1, v0
        v_lshl_add_u32 v86, v1, 1, v2
        v_lshlrev_b32 v86, 4, v86
        v_lshlrev_b32 v2, 4, v2
        v_mov_b32 v3, 0xffff
        v_lshlrev_b32 v3, v2, v3
        v_bfe_u32 v2, v0, 1, 2""")
        for i in range(4):
            self.A(f"v_cmp_eq_u32 vcc, {i}, v2\nv_cndmask_b32 v{76+i}, 0, v3, vcc")

    def q_wpre(self):
        self.tr_addr(46, 96, 1)
        self.A(f"s_and_b32 s{sA}, s{sV}, 3\ns_mul_i32 s{sA}, s{sA}, 7680\ns_add_u32 s{sA}, s{sA}, {L_WQ}\nv_add_u32 v46, s{sA}, v46\nv_add_u32 v47, s{sA}, v47")
        for t in range(3):
            self.wfrag32(16 + 10 * t, 46, t * 32, 96)
            self.wfrag32(20 + 10 * t, 46, t * 32 + 32 * 96, 96)
            self.A(f"ds_read_b64_tr_b16 {vr(24+10*t,2)}, v47 offset:{t*32 + 64*96}")
        self.xa_addr()
        self.A(f"""v_and_b32 v1, 15, v0
        v_mul_u32_u24 v72, 768, v1
        v_lshrrev_b32 v1, 4, v0
        v_lshl_add_u32 v72, v1, 4, v72
        s_and_b32 s{sA}, s{sV}, 3
        s_mul_i32 s{sA}, s{sA}, 192
        s_lshl_b32 s{sB}, s{sSIG}, 12
        s_add_u32 s{sA}, s{sA}, s{sB}
        v_add_u32 v72, s{sA}, v72
        v_lshl_add_u32 v73, v1, 4, s{sB}
        v_add_u32 v73, 3840, v73""")
    def xa_addr(self):
        self.A(f"""v_and_b32 v1, 15, v0
        v_lshrrev_b32 v2, 4, v0
        v_min_u32 v14, 5, v1
        v_mul_u32_u24 v14, {XS}, v14
        v_lshl_add_u32 v15, v2, 3, v14
        v_lshl_add_u32 v14, v2, 4, v14
        v_and_b32 v3, 3, v0
        v_bfe_u32 v1, v0, 2, 2
        v_add_u32 v74, 3, v3
        v_min_u32 v74, 5, v74
        v_cmp_eq_u32 vcc, 0, v3
        v_cndmask_b32 v74, v74, v1, vcc
        v_mul_u32_u24 v74, {XS}, v74
        v_lshl_add_u32 v75, v2, 3, v74
        v_lshl_add_u32 v74, v2, 4, v74""")
    def xfrags(self):
        self.A(f"""ds_read_b128 v[4:7], v14 offset:{L_XA}
        ds_read_b128 v[8:11], v14 offset:{L_XA+64}
        ds_read_b64 v[12:13], v15 offset:{L_XA+128}""")
    def gram_reads(self):
        self.A(f"""ds_read_b128 v[48:51], v74 offset:{L_XA}
        ds_read_b128 v[52:55], v74 offset:{L_XA+64}
        ds_read_b64 v[46:47], v75 offset:{L_XA+128}""")
    def gram_mfma(self):
        self.A(f"""v_mfma_f32_16x16x32_bf16 v[68:71], v[48:51], v[4:7], 0
        v_mfma_f32_16x16x32_bf16 v[68:71], v[52:55], v[8:11], v[68:71]
        v_mfma_f32_16x16x16_bf16 v[68:71], v[46:47], v[12:13], v[68:71]
        v_mov_b32_dpp v71, v70 row_newbcast:4 row_mask:0xf bank_mask:0xf""")
    def q_mfma(self, sreg, intra, tagged=False):
        A = self.A
        self.xfrags()
        l = self.role(R_7); self.gram_reads(); self.end(l)
        A("s_waitcnt lgkmcnt(0)")
        for s in range(3):
            for t in range(3):
                c = "0" if s == 0 else vr(56 + 4 * t)
                if s < 2: A(f"v_mfma_f32_16x16x32_bf16 {vr(56+4*t)}, {vr(16+10*t+4*s)}, {vr(4+4*s)}, {c}")
                else: A(f"v_mfma_f32_16x16x16_bf16 {vr(56+4*t)}, {vr(24+10*t,2)}, v[12:13], {c}")
        if tagged:
            A(f"""v_and_b32 v1, 15, v0
            v_mul_u32_u24 v72, 1536, v1
            v_lshrrev_b32 v1, 4, v0
            v_lshl_add_u32 v72, v1, 4, v72
            s_and_b32 s{sA}, s{sV}, 3
            s_mul_i32 s{sA}, s{sA}, 384
            s_lshl_b32 s{sB}, s{sSIG}, 13
            s_add_u32 s{sA}, s{sA}, s{sB}
            v_add_u32 v72, s{sA}, v72
            v_lshl_add_u32 v73, v1, 4, s{sB}
            v_add_u32 v73, 7680, v73""")
            for t in range(3):
                for i in range(4): A(f"v_mov_b32 v{16+8*t+2*i}, v{56+4*t+i}\nv_mov_b32 v{17+8*t+2*i}, s101")
            self.exec_mask(0x001f001f001f001f)
            for t in range(3):
                for h in range(2): A(f"buffer_store_dwordx4 {vr(16+8*t+4*h)}, v72, {srd(SWS)}, s{sreg} offen offset:{128*t+64*h} sc1")
            self.exec_full()
            l = self.role(R_7)
            self.gram_mfma()
            A("v_mov_b32 v70, v69\nv_mov_b32 v69, s101\nv_mov_b32 v71, s101")
            self.exec_mask(1 | 1 << 17 | 1 << 34 | 1 << 51)
            A(f"buffer_store_dwordx4 v[68:71], v73, {srd(SWS)}, s{sreg} offen sc1")
            self.exec_full()
            self.end(l)
            return
        self.exec_mask(0x001f001f001f001f)
        self.stores("\n".join(f"buffer_store_dwordx4 {vr(56+4*t)}, v72, {srd(SWS)}, s{sreg} offen offset:{64*t}{{f}}" for t in range(3)), intra)
        self.exec_full()
        l = self.role(R_7)
        self.gram_mfma()
        self.exec_mask(1 | 1 << 17 | 1 << 34 | 1 << 51)
        self.stores(f"buffer_store_dwordx4 v[68:71], v73, {srd(SWS)}, s{sreg} offen{{f}}", intra)
        self.exec_full()
        self.end(l)
    def q_gather_addr(self, byw):
        A = self.A
        A(f"""s_and_b32 s{sA}, s{sSIG}, 0xf8
        s_lshl_b32 s{sA}, s{sA}, 12
        s_bfe_u32 s{sB}, s{sT}, 0x20001          ; b
        s_mul_i32 s{sC}, s{sB}, 768""")
        if byw: A(f"s_and_b32 s{sD}, s{sV}, 3\ns_lshl_b32 s{sD}, s{sD}, 8\ns_add_u32 s{sD}, s{sD}, s{sA}")
        else: A(f"s_mov_b32 s{sD}, s{sA}")
        A(f"""v_lshrrev_b32 v1, 4, v0
        v_and_b32 v2, 15, v0
        v_lshlrev_b32 v3, 12, v1
        v_lshl_add_u32 v3, v2, 4, v3
        v_add_u32 v70, s{sD}, v3
        v_add_u32 v71, s{sC}, v70
        v_and_b32 v3, 7, v0
        v_lshlrev_b32 v3, 12, v3
        s_lshl_b32 s{sB}, s{sB}, 4
        s_add_u32 s{sB}, s{sB}, s{sA}
        v_add_u32 v72, s{sB}, v3
        s_add_u32 s{sF}, s{sE}, 16384
        v_lshlrev_b32 v73, 3, v2
        v_lshl_add_u32 v73, v1, 1, v73""")
        if byw: A(f"s_and_b32 s{sA}, s{sV}, 3\ns_lshl_b32 s{sA}, s{sA}, 7\nv_add_u32 v73, s{sA}, v73")
    def q_gather(self):
        A = self.A
        self.q_gather_addr(1)
        A(f"v_lshlrev_b32 v74, 1, v73\nds_read_b32 v16, v74 offset:{L_CQ}")
        loads = f"""buffer_load_dwordx2 v[12:13], v72, {srd(SWS)}, s{sE} offen offset:3840 sc1
        buffer_load_dwordx4 v[4:7], v71, {srd(SWS)}, s{sE} offen sc1
        buffer_load_dwordx4 v[8:11], v71, {srd(SWS)}, s{sF} offen sc1"""
        self.poll(loads, range(4, 14), 24)
        self.red8([12, 13])
        for i in range(4): A(f"v_add_f32 v{4+i}, v{4+i}, v{8+i}")
        self.lnstats(12, 13, 14, 15, 24)
        self.treduce(4, 5, 6, 7)
        A(f"""s_waitcnt lgkmcnt(0)
        v_fma_f32 v4, -v14, v16, v4
        v_mul_f32 v4, v4, v15
        v_cvt_pk_bf16_f32 v4, 0, v4
        ds_write_b16_d16_hi v73, v4 offset:{L_QL}
        s_waitcnt lgkmcnt(0)""")

    def startup(self):
        A = self.A
        L1 = int(self.o['lim']); L2 = int(self.o['lim2'])
        A(f"s_bitcmp1_b32 s{sROLE}, {R_GE4}\ns_cbranch_scc1 L_start_hi")
        self.xres_load()
        self.dma_addr(4, 5, 1280); self.dma_addr(5, 6, 3072)
        if not self.o['wdma']: A("s_branch L_nowdma")
        self.exec_mask((1 << 60) - 1)
        A(f"s_mul_i32 s{sC}, s{sV}, {8*12*1280}\nv_add_u32 v6, s{sC}, v4\ns_mul_i32 s{sB}, s{sV}, {8*960}")
        self.dma60(SWO, 6, 8, 12, 1280, L_WO, lim=L1)
        A(f"s_mul_i32 s{sC}, s{sV}, {2*10*3072}\nv_add_u32 v6, s{sC}, v5\ns_mul_i32 s{sB}, s{sV}, {2*960}")
        self.dma60(SWG, 6, 2, 10, 3072, L_WG, lim=L1); self.dma60(SWU, 6, 2, 10, 3072, L_WU, lim=L1)
        A(f"s_mul_i32 s{sC}, s{sV}, {2*12*1280}\nv_add_u32 v6, s{sC}, v4")
        self.dma60(SWD, 6, 2, 12, 1280, L_WD, lim=L1)
        A("L_nowdma:")
        self.exec_full()
        self.kv_loads(L1)
        self.attn_pre()
        self.stamp(1, both=False)
        A("s_branch L_wait_q")
        A(f"""L_start_hi:
        s_setprio 3
        v_mov_b32 v1, 0
        s_mov_b32 s{sA}, {RE}
        buffer_load_dword v69, v1, {srd(SWS)}, s{sA} offen sc1""")
        self.xres_load()
        self.dma_addr(4, 6, 12288)
        self.exec_mask((1 << 60) - 1)
        A(f"s_and_b32 s{sB}, s{sV}, 3\ns_mul_i32 s{sB}, s{sB}, 7680")
        self.dma60(SWQ, 4, 8, 10, 12288, L_WQ)
        self.exec_full()
        A(f"""v_mul_u32_u24 v5, 26, v0
        v_lshrrev_b32 v5, 8, v5                  ; row = l/10
        v_mul_u32_u24 v6, 10, v5
        v_sub_u32 v6, v0, v6                     ; c = l%10
        v_mul_u32_u24 v7, 1280, v5
        v_lshl_add_u32 v7, v6, 4, v7
        v_lshlrev_b32 v8, 4, v6
        v_mul_u32_u24 v9, {XS}, v5
        v_lshl_add_u32 v9, v6, 4, v9""")
        A("v_mov_b32 v60, 0x3f803f80\nv_mov_b32 v61, 0x3f803f80\nv_mov_b32 v62, 0x3f803f80\nv_mov_b32 v63, 0x3f803f80")
        self.exec_mask((1 << 40) - 1)
        A(f"buffer_load_dwordx4 v[60:63], v7, {srd(SX0)}, 0 offen")
        self.exec_mask(((1 << 60) - 1) ^ ((1 << 50) - 1))
        A(f"buffer_load_dwordx4 v[60:63], v8, {srd(SWR)}, 0 offen")
        self.exec_full()
        A("s_waitcnt vmcnt(0)")
        self.stamp(12, both=False)
        self.exec_mask((1 << 60) - 1)
        A(f"ds_write_b128 v9, v[60:63] offset:{L_XA}")
        self.exec_full()
        self.q_wpre()
        A(f"""v_add_u32 v69, 1, v69
        s_waitcnt lgkmcnt(0)
        v_readfirstlane_b32 s101, v69
        s_mov_b32 s{sE}, {RQ[0]}""")
        self.q_mfma(sE, False, tagged=True)
        self.stamp(14, both=False)
        CF = ' ' + self.o['clear'] if self.o['clear'] not in ('plain','none') else ''
        l = self.role(R_6)
        A("v_mov_b32 v64, -1\nv_mov_b32 v65, -1\nv_mov_b32 v66, -1\nv_mov_b32 v67, -1\nv_lshlrev_b32 v10, 4, v0")
        if self.o['clear'] == 'none': A('s_branch L_noclear')
        A(f"s_mul_i32 s{sA}, s{sSIG}, {OSL}")
        self.exec_mask((1 << 56) - 1)
        for p in range(2): A(f"s_add_u32 s{sB}, s{sA}, {RO[p]}\nbuffer_store_dwordx4 v[64:67], v10, {srd(SWS)}, s{sB} offen{CF}")
        A(f"s_mul_i32 s{sA}, s{sSIG}, 640")
        self.exec_mask((1 << 40) - 1)
        for r in RX + RY: A(f"s_add_u32 s{sB}, s{sA}, {r}\nbuffer_store_dwordx4 v[64:67], v10, {srd(SWS)}, s{sB} offen{CF}")
        self.exec_full()
        A(f"s_lshl_b32 s{sA}, s{sSIG}, 12\ns_add_u32 s{sA}, s{sA}, {RQ[1]}")
        for i in range(4): A(f"buffer_store_dwordx4 v[64:67], v10, {srd(SWS)}, s{sA} offen offset:{1024*i}{CF}")
        A(f"s_lshl_b32 s{sA}, s{sSIG}, 11")
        for p in range(2):
            A(f"s_add_u32 s{sB}, s{sA}, {RG[p]}")
            for i in range(2): A(f"buffer_store_dwordx4 v[64:67], v10, {srd(SWS)}, s{sB} offen offset:{1024*i}{CF}")
        A(f"""L_noclear:
        s_getreg_b32 s99, hwreg(HW_REG_XCC_ID, 0, 4)
        v_mov_b32 v4, {L_FL}
        v_mov_b32 v6, s101
        v_mov_b32 v7, s99
        v_mov_b32 v8, s101
        v_mov_b32 v9, s99
        s_lshl_b32 s{sA}, s{sSIG}, 7
        s_add_u32 s{sA}, s{sA}, {RF}
        s_waitcnt vmcnt(0)
        s_mov_b64 exec, 0xff
        buffer_store_dwordx4 v[6:9], v10, {srd(SWS)}, s{sA} offen sc1
        s_mov_b64 exec, -1""")
        self.end(l)
        self.stamp(1, both=False)
        if self.o['dry']:
            l = self.lab("nodry")
            A(f"""s_cmp_eq_u32 s{sV}, 7
            s_cbranch_scc0 {l}
            s_mov_b32 s{sDRY}, 1
            s_mov_b32 s100, s{sROLE}
            s_mov_b32 s{sROLE}, 0xff
            s_mov_b64 s[{sFULL}:{sFULL+1}], 0
            s_mov_b64 exec, 0
            s_branch L_attn
            L_dry_ret:
            s_mov_b32 s{sDRY}, 0
            s_mov_b32 s{sP}, 0
            s_mov_b32 s{sROLE}, s100
            s_mov_b64 s[{sFULL}:{sFULL+1}], -1
            s_mov_b64 exec, -1
            {l}:""")
        l = self.role(R_7)
        lp = self.lab("tq"); lr = self.lab("tqr")
        self.stamp(13, both=False)
        A(f"""s_and_b32 s{sA}, s{sSIG}, 0xf8
        s_lshl_b32 s{sA}, s{sA}, 13
        s_add_u32 s{sE}, s{sA}, {RQ[0]}
        s_add_u32 s{sF}, s{sE}, 32768
        s_bfe_u32 s{sB}, s{sT}, 0x20001          ; b
        s_mul_i32 s{sC}, s{sB}, 1536
        v_lshrrev_b32 v1, 4, v0
        v_and_b32 v2, 15, v0
        v_lshlrev_b32 v70, 13, v1
        v_bfe_u32 v3, v0, 2, 2
        v_lshl_add_u32 v70, v3, 7, v70
        v_and_b32 v3, 3, v0
        v_lshl_add_u32 v70, v3, 4, v70
        v_add_u32 v71, s{sC}, v70
        v_add_u32 v70, 6144, v70
        v_and_b32 v3, 7, v0
        v_lshlrev_b32 v72, 13, v3
        s_lshl_b32 s{sB}, s{sB}, 4
        v_add_u32 v72, s{sB}, v72
        v_add_u32 v72, 7680, v72
        v_lshlrev_b32 v73, 3, v2
        v_lshl_add_u32 v73, v1, 1, v73
        v_lshlrev_b32 v74, 1, v73
        {lp}:""")
        R0 = [4, 36, 88]
        for sg in range(3):
            r = R0[sg]
            for j, (va, so) in enumerate(((71, sE), (71, sF), (70, sE), (70, sF))):
                A(f"""buffer_load_dwordx4 {vr(r+8*j)}, v{va}, {srd(SWS)}, s{so} offen offset:{512*sg} sc1
                buffer_load_dwordx4 {vr(r+8*j+4)}, v{va}, {srd(SWS)}, s{so} offen offset:{512*sg+64} sc1""")
        A(f"""buffer_load_dwordx4 v[120:123], v72, {srd(SWS)}, s{sE} offen sc1
        s_waitcnt vmcnt(0)
        v_xor_b32 v1, s101, v121
        v_xor_b32 v2, s101, v123
        v_or_b32 v1, v1, v2""")
        for sg in range(3):
            for j in range(8):
                r = R0[sg] + 4 * j
                A(f"v_xor_b32 v2, s101, v{r+1}\nv_xor_b32 v3, s101, v{r+3}\nv_or3_b32 v1, v1, v2, v3")
        A(f"v_cmp_ne_u32 vcc, 0, v1\ns_cbranch_vccnz {lr}")
        self.tail.append(f"{lr}:\ns_sub_u32 s{sTO}, s{sTO}, 1\ns_cbranch_scc1 L_end\ns_branch {lp}")
        self.red8([120, 122])
        self.lnstats(120, 122, 124, 125, 126)
        for sg in range(3):
            r = R0[sg]
            for i in range(4): A(f"v_add_f32 v{r+2*i}, v{r+2*i}, v{r+8+2*i}\nv_add_f32 v{r+16+2*i}, v{r+16+2*i}, v{r+24+2*i}")
            self.treduce(r, r + 2, r + 4, r + 6); self.treduce(r + 16, r + 18, r + 20, r + 22)
            A(f"""ds_write_b32 v74, v{r+16} offset:{L_CQ + 256*sg}
            v_fma_f32 v{r}, -v124, v{r+16}, v{r}
            v_mul_f32 v{r}, v{r}, v125
            v_cvt_pk_bf16_f32 v{r}, 0, v{r}
            ds_write_b16_d16_hi v73, v{r} offset:{L_QL + 128*sg}""")
        A(f"""v_mov_b32 v4, 1
        v_mov_b32 v5, {L_FL}
        v_mov_b32 v6, s101
        ds_write_b32 v5, v6 offset:8
        s_waitcnt lgkmcnt(0)
        ds_write_b32 v5, v4""")
        self.end(l)
        self.stamp(2, both=False)
        A("s_setprio 0")
        self.kv_loads(L2)
        self.attn_pre()
        lw2 = self.lab("wq")
        A(f"""L_wait_q:
        v_mov_b32 v5, {L_FL}
        ds_read_b32 v4, v5
        s_waitcnt lgkmcnt(0)
        v_cmp_eq_u32 vcc, 0, v4
        s_cbranch_vccnz {lw2}""")
        self.tail.append(f"{lw2}:\ns_sleep 4\ns_sub_u32 s{sTO}, s{sTO}, 1\ns_cbranch_scc1 L_end\ns_branch L_wait_q")

    def attention(self):
        A = self.A
        A("L_attn:")
        for s in range(3): A(f"ds_read_b128 {vr(4+4*s)}, v86 offset:{L_QL + 128*s}")
        A(f"""s_mul_i32 s{sA}, s{sV}, 6144
        s_add_u32 s{sA}, s{sA}, {L_VP}
        v_lshl_add_u32 v87, v0, 4, s{sA}
        s_waitcnt vmcnt(24) lgkmcnt(0)""")
        self.stamp(3)
        def extract(g):
            d = 16 + 4 * g
            return [f"v_add_f32_dpp v{d}, v{d+1}, v{d} quad_perm:[1,0,3,2] row_mask:0xf bank_mask:0x3",
                    f"v_add_f32_dpp v{d}, v{d+3}, v{d+2} quad_perm:[1,0,3,2] row_mask:0xf bank_mask:0xc",
                    f"v_cvt_pk_bf16_f32 v{d}, 0, v{d}",
                    f"v_mul_f32 v{d}, s{sSCALE}, v{d}",
                    f"v_cvt_pk_bf16_f32 v{d}, 0, v{d}",
                    f"v_mul_f32 v{d}, s{sLOG2E}, v{d}",
                    f"v_mov_b32_dpp v{16+g}, v{d} quad_perm:[0,0,2,2] row_mask:0xf bank_mask:0xf"]
        pend = []
        for g in range(8):
            if g >= 3: pend += extract(g - 3)
            for s in range(3):
                c = "0" if s == 0 else vr(16 + 4 * g)
                A(f"v_mfma_f32_16x16x32_bf16 {vr(16+4*g)}, {ar((g*3+s)*4)}, {vr(4+4*s)}, {c}")
                for _ in range(2):
                    if pend: A(pend.pop(0))
        A("s_waitcnt vmcnt(18)")
        for i in range(6): A(f"ds_read_b128 {vr(48+4*i)}, v87 offset:{1024*i}")
        for x in pend: A(x)
        e = [extract(g) for g in (5, 6, 7)]
        for k in range(7):
            for j in range(3): A(e[j][k])
        A(f"""v_max3_f32 v24, v16, v17, v18
        v_max3_f32 v25, v19, v20, v21
        v_max3_f32 v24, v24, v22, v23
        v_max_f32 v24, v24, v25
        v_max_f32_dpp v24, v24, v24 row_ror:8 row_mask:0xf bank_mask:0xf
        v_max_f32_dpp v24, v24, v24 row_bcast:15 row_mask:0xa bank_mask:0xf
        v_max_f32_dpp v24, v24, v24 row_bcast:31 row_mask:0xc bank_mask:0xf
        v_readlane_b32 s{sM}, v24, 63""")
        for g in range(8): A(f"v_subrev_f32 v{16+g}, s{sM}, v{16+g}")
        for g in range(8): A(f"v_exp_f32 v{16+g}, v{16+g}")
        lsum = ["v_add_f32 v40, v16, v17", "v_add_f32 v41, v18, v19", "v_add_f32 v42, v20, v21", "v_add_f32 v43, v22, v23",
                "v_add_f32 v40, v40, v41", "v_add_f32 v42, v42, v43", "v_add_f32 v41, v40, v42",
                "v_add_f32_dpp v41, v41, v41 row_ror:8 row_mask:0xf bank_mask:0xf",
                "v_add_f32_dpp v41, v41, v41 row_bcast:15 row_mask:0xa bank_mask:0xf",
                "v_add_f32_dpp v41, v41, v41 row_bcast:31 row_mask:0xc bank_mask:0xf"]
        def abuild(g):
            b = 24 + 4 * (g % 3)
            return [f"v_cvt_pk_bf16_f32 v{36+(g&1)}, v{16+g}, v{16+g}"] + [f"v_and_b32 v{b+i}, v{36+(g&1)}, v{76+i}" for i in range(4)]
        for x in abuild(0): A(x)
        A("s_waitcnt lgkmcnt(0)")
        for g in range(8):
            nxt = abuild(g + 1) if g < 7 else []
            if g >= 2: A(f"s_waitcnt vmcnt({18 - 3*(g-1)})")
            b = 24 + 4 * (g % 3)
            for s in range(3):
                c = "0" if g == 0 else vr(4 + 4 * s)
                vv = vr(48 + (3 * g + s) * 4) if g < 2 else vr(VBASE + ((g - 2) * 3 + s) * 4)
                A(f"v_mfma_f32_16x16x32_bf16 {vr(4+4*s)}, {vr(b)}, {vv}, {c}")
                for _ in range(2):
                    if nxt: A(nxt.pop(0))
                    elif lsum and g < 7: A(lsum.pop(0))
            if g == 0:
                A(f"""v_and_b32 v1, 7, v0
                v_lshlrev_b32 v1, 5, v1
                v_bfe_u32 v2, v0, 4, 1
                v_lshl_add_u32 v1, v2, 4, v1
                v_lshrrev_b32 v2, 5, v0
                v_mul_u32_u24 v2, 768, v2
                s_mul_i32 s{sA}, s{sV}, 1536
                v_add3_u32 v38, v1, v2, s{sA}
                s_lshl_b32 s{sA}, s{sV}, 2
                v_mov_b32 v39, s{sA}
                v_mov_b32 v44, s{sM}""")
        for x in lsum: A(x)
        self.exec_mask(1 << 63)
        A(f"ds_write_b32 v39, v44 offset:{L_ML}\nds_write_b32 v39, v41 offset:{L_ML+32}")
        self.exec_mask(0xFF00FF0000FF00FF)
        for s in range(3): A(f"ds_write_b128 v38, {vr(4+4*s)} offset:{L_OC + 256*s}")
        self.exec_full()
        A(f"""v_lshrrev_b32 v1, 4, v0
        v_and_b32 v2, 15, v0
        v_mul_u32_u24 v40, 3072, v1
        v_lshl_add_u32 v40, v2, 4, v40
        s_and_b32 s{sA}, s{sV}, 3
        s_lshl_b32 s{sA}, s{sA}, 8
        v_add_u32 v40, s{sA}, v40
        v_lshlrev_b32 v41, 3, v1
        v_mov_b32 v42, 0
        s_mul_i32 s{sB}, s{sSIG}, {OSL}
        s_add_u32 s{sA}, s{sA}, s{sB}
        v_lshlrev_b32 v43, 4, v2
        v_lshl_add_u32 v43, v1, 2, v43
        v_add_u32 v43, s{sA}, v43
        v_mov_b32 v45, s{sB}
        v_and_b32 v46, 7, v0
        v_lshlrev_b32 v46, 2, v46
        s_mul_i32 s{sE}, s{sP}, {RO[1]-RO[0]}
        s_waitcnt lgkmcnt(0)""")
        l = self.lab("nochk"); lp = self.lab("chk"); lr = self.lab("chkr")
        A(f"""s_or_b32 s{sA}, s{sP}, s{sV}
        s_cmp_eq_u32 s{sA}, 0
        s_cbranch_scc0 {l}
        v_mov_b32 v1, {L_FL}
        ds_read_b32 v2, v1 offset:8
        v_lshlrev_b32 v3, 9, v0
        s_getreg_b32 s99, hwreg(HW_REG_XCC_ID, 0, 4)
        s_mov_b32 s{sA}, {RF}
        {lp}:
        buffer_load_dwordx2 v[4:5], v3, {srd(SWS)}, s{sA} offen sc1
        buffer_load_dwordx2 v[6:7], v3, {srd(SWS)}, s{sA} offen offset:128 sc1
        buffer_load_dwordx2 v[8:9], v3, {srd(SWS)}, s{sA} offen offset:256 sc1
        buffer_load_dwordx2 v[10:11], v3, {srd(SWS)}, s{sA} offen offset:384 sc1
        s_waitcnt vmcnt(0) lgkmcnt(0)
        v_xor_b32 v4, v4, v2
        v_xor_b32 v6, v6, v2
        v_xor_b32 v8, v8, v2
        v_xor_b32 v10, v10, v2
        v_or3_b32 v4, v4, v6, v8
        v_or_b32 v4, v4, v10
        v_cmp_ne_u32 vcc, 0, v4
        s_cbranch_vccnz {lr}
        v_xor_b32 v5, s99, v5
        v_xor_b32 v7, s99, v7
        v_xor_b32 v9, s99, v9
        v_xor_b32 v11, s99, v11
        v_or3_b32 v5, v5, v7, v9
        v_or_b32 v5, v5, v11
        v_cmp_eq_u32 vcc, 0, v5
        s_lshl_b32 s{sB}, s{sX}, 3
        s_lshr_b64 s[90:91], vcc, s{sB}
        s_and_b32 s90, s90, 0xff
        s_cmp_eq_u32 s90, 0xff
        s_cselect_b32 s{sA}, 1, 0
        v_mov_b32 v4, s{sA}
        ds_write_b32 v1, v4 offset:12
        s_cmp_eq_u32 s2, 0
        s_cbranch_scc0 L_noepoch
        v_mov_b32 v3, 0
        s_mov_b32 s{sA}, {RE}
        s_mov_b64 exec, 1
        buffer_store_dword v2, v3, {srd(SWS)}, s{sA} offen sc1
        s_mov_b64 exec, -1
        L_noepoch:
        s_mov_b32 s{sE}, 0
        s_waitcnt lgkmcnt(0)
        {l}:""")
        self.tail.append(f"{lr}:\ns_sleep {self.o['bsleep']}\ns_sub_u32 s{sTO}, s{sTO}, 1\ns_cbranch_scc1 L_end\ns_branch {lp}")
        self.stamp(4)
        self.barrier()
        l = self.lab("nofr")
        A(f"""s_cmp_eq_u32 s{sP}, 0
        s_cbranch_scc0 {l}
        v_mov_b32 v1, {L_FL}
        ds_read_b32 v2, v1 offset:12
        s_waitcnt lgkmcnt(0)
        v_readfirstlane_b32 s{sFAST}, v2
        {l}:""")
        l = self.role(R_456)
        A(f"""ds_read_b128 v[4:7], v42 offset:{L_ML}
        ds_read_b128 v[8:11], v42 offset:{L_ML+16}
        ds_read_b64 v[12:13], v41 offset:{L_ML}
        ds_read_b128 v[16:19], v40 offset:{L_OC}
        ds_read_b128 v[20:23], v40 offset:{L_OC+768}
        ds_read_b128 v[24:27], v40 offset:{L_OC+1536}
        ds_read_b128 v[28:31], v40 offset:{L_OC+2304}
        s_waitcnt lgkmcnt(4)
        v_max3_f32 v4, v4, v5, v6
        v_max3_f32 v8, v8, v9, v10
        v_max3_f32 v4, v4, v7, v11
        v_max_f32 v4, v4, v8
        v_sub_f32 v12, v12, v4
        v_sub_f32 v13, v13, v4
        v_exp_f32 v12, v12
        v_exp_f32 v13, v13
        s_waitcnt lgkmcnt(0)""")
        for i in range(4): A(f"v_add_f32 v{16+i}, v{16+i}, v{20+i}\nv_add_f32 v{24+i}, v{24+i}, v{28+i}")
        for i in range(4): A(f"v_mul_f32 v{16+i}, v12, v{16+i}")
        for i in range(4): A(f"v_fmac_f32 v{16+i}, v13, v{24+i}")
        self.treduce(16, 17, 18, 19)
        self.stores(f"buffer_store_dword v16, v43, {srd(SWS)}, s{sE} offen{{f}}", True)
        self.end(l)
        l = self.role(R_7)
        A(f"""ds_read_b32 v4, v46 offset:{L_ML}
        ds_read_b32 v5, v46 offset:{L_ML+32}
        s_waitcnt lgkmcnt(1)
        v_max_f32_dpp v6, v4, v4 quad_perm:[1,0,3,2] row_mask:0xf bank_mask:0xf
        v_max_f32_dpp v6, v6, v6 quad_perm:[2,3,0,1] row_mask:0xf bank_mask:0xf
        v_max_f32_dpp v6, v6, v6 row_half_mirror row_mask:0xf bank_mask:0xf
        v_sub_f32 v4, v4, v6
        v_exp_f32 v4, v4
        s_waitcnt lgkmcnt(0)
        v_mul_f32 v7, v4, v5""")
        self.red8([7])
        self.exec_mask(1)
        self.stores(f"buffer_store_dwordx2 v[6:7], v45, {srd(SWS)}, s{sE} offen offset:768{{f}}", True)
        self.exec_full()
        self.end(l)

    def pub_addr(self, d):
        self.A(f"""s_mul_i32 s{sA}, s{sSIG}, 640
        s_lshl_b32 s{sB}, s{sV}, 8
        s_add_u32 s{sA}, s{sA}, s{sB}
        v_lshl_add_u32 v{d}, v0, 4, s{sA}
        s_cmp_eq_u32 s{sV}, 2
        s_cselect_b32 s{sC}, 8, 16
        s_bfm_b32 s{sC}, s{sC}, 0
        s_and_b32 s{sC}, s{sC}, s{sFULL}""")

    def wo_stage(self):
        A = self.A
        l = self.role(R_LT3)
        self.tr_addr(72, 80, 1)
        A(f"s_lshl_b32 s{sA}, s{sV}, 5\ns_add_u32 s{sA}, s{sA}, {L_WO}\nv_add_u32 v72, s{sA}, v72")
        for s in range(12): self.wfrag32(4 + 4 * s, 72, s * 32 * 80, 80)
        self.end(l)
        self.sync(self.o['sync_o'])
        l = self.role(R_LT6)
        A(f"""s_cmp_ge_u32 s{sV}, 3
        s_cselect_b32 s{sA}, 1, 0              ; hh
        s_mul_i32 s{sB}, s{sA}, 3
        s_sub_u32 s{sB}, s{sV}, s{sB}          ; seg
        s_and_b32 s{sC}, s{sSIG}, 0xf0
        s_lshl_b32 s{sD}, s{sA}, 3
        s_add_u32 s{sC}, s{sC}, s{sD}
        s_mul_i32 s{sC}, s{sC}, {OSL}
        v_lshrrev_b32 v1, 4, v0
        v_and_b32 v2, 15, v0
        v_mul_u32_u24 v72, {2*OSL}, v1
        v_add_u32 v72, s{sC}, v72
        s_lshl_b32 s{sD}, s{sB}, 8
        v_lshl_add_u32 v73, v2, 4, v72
        v_add_u32 v73, s{sD}, v73
        s_mul_i32 s{sA}, s{sA}, 384
        s_lshl_b32 s{sB}, s{sB}, 7
        s_add_u32 s{sA}, s{sA}, s{sB}
        v_mul_u32_u24 v74, {OS}, v1
        v_lshl_add_u32 v74, v2, 3, v74
        v_add_u32 v74, s{sA}, v74""")
        self.poll(f"""buffer_load_dwordx2 v[52:53], v72, {srd(SWS)}, s{sE} offen offset:768 sc1
        buffer_load_dwordx2 v[54:55], v72, {srd(SWS)}, s{sE} offen offset:{768+OSL} sc1
        buffer_load_dwordx4 v[56:59], v73, {srd(SWS)}, s{sE} offen sc1
        buffer_load_dwordx4 v[60:63], v73, {srd(SWS)}, s{sE} offen offset:{OSL} sc1""", range(52, 64), 64)
        self.stamp(5)
        A(f"""v_max_f32 v64, v52, v54
        v_sub_f32 v52, v52, v64
        v_sub_f32 v54, v54, v64
        v_exp_f32 v52, v52
        v_exp_f32 v54, v54
        v_mul_f32 v53, v52, v53
        v_fmac_f32 v53, v54, v55
        v_rcp_f32 v53, v53
        v_mul_f32 v52, v52, v53
        v_mul_f32 v54, v54, v53""")
        for i in range(4): A(f"v_mul_f32 v{56+i}, v52, v{56+i}")
        for i in range(4): A(f"v_fmac_f32 v{56+i}, v54, v{60+i}")
        A(f"""v_cvt_pk_bf16_f32 v56, v56, v57
        v_cvt_pk_bf16_f32 v57, v58, v59
        ds_write_b64 v74, v[56:57] offset:{L_OA}""")
        self.end(l)
        A(f"""v_and_b32 v1, 3, v0
        v_lshrrev_b32 v2, 4, v0
        v_mul_u32_u24 v1, {OS}, v1
        v_lshl_add_u32 v86, v2, 4, v1""")
        self.pub_addr(87)
        A(f"s_mul_i32 s{sE}, s{sP}, {RX[1]-RX[0]}\ns_add_u32 s{sE}, s{sE}, {RX[0]}\ns_waitcnt lgkmcnt(0)")
        self.barrier()
        l = self.role(R_LT3)
        for s in range(6): A(f"ds_read_b128 {vr(52+4*s)}, v86 offset:{L_OA + 64*s}")
        for s in range(12):
            A(f"s_waitcnt lgkmcnt({5 if s < 7 else 11 - s})")
            c = "0" if s == 0 else "v[76:79]"
            A(f"v_mfma_f32_16x16x32_bf16 v[76:79], {vr(52+4*(s%6))}, {vr(4+4*s)}, {c}")
            if s < 6: A(f"ds_read_b128 {vr(52+4*s)}, v86 offset:{L_OA + 64*(s+6)}")
        A(f"s_mov_b32 exec_lo, s{sC}\ns_mov_b32 exec_hi, 0")
        self.stores(f"buffer_store_dwordx4 v[76:79], v87, {srd(SWS)}, s{sE} offen{{f}}", False)
        self.exec_full()
        self.end(l)
        self.stamp(6)

    def x_gather_pre(self):
        self.A(f"""s_and_b32 s{sA}, s{sT}, 7
        s_mul_i32 s{sA}, s{sA}, 1280
        s_lshl_b32 s{sB}, s{sV}, 8
        s_add_u32 s{sA}, s{sA}, s{sB}
        v_lshrrev_b32 v1, 4, v0
        v_and_b32 v2, 15, v0
        v_mul_u32_u24 v76, 10240, v1
        v_lshl_add_u32 v76, v2, 4, v76
        v_add_u32 v76, s{sA}, v76
        s_add_u32 s{sB}, s{sE}, 40960
        s_add_u32 s{sC}, s{sE}, 81920
        s_add_u32 s{sD}, s{sE}, 122880
        v_mul_u32_u24 v77, {XS}, v1
        v_lshl_add_u32 v77, v2, 1, v77
        s_lshl_b32 s{sA}, s{sV}, 5
        v_add_u32 v77, s{sA}, v77""")
    def x_gather(self):
        self.poll("\n".join(f"buffer_load_dwordx4 {vr(56+4*i)}, v76, {srd(SWS)}, s{r} offen sc1" for i, r in enumerate((sE, sB, sC, sD))), range(56, 72), 78)
        for i in range(4): self.A(f"v_add_f32 v{56+i}, v{56+i}, v{60+i}\nv_add_f32 v{64+i}, v{64+i}, v{68+i}")
        for i in range(4): self.A(f"v_add_f32 v{56+i}, v{56+i}, v{64+i}")
        self.treduce(56, 57, 58, 59)
        self.rnd(56, 56)

    def gu_stage(self):
        A = self.A
        self.tr_addr(46, 96, 1)
        A(f"""s_cmp_ge_u32 s{sV}, 3
        s_cselect_b32 s{sA}, {L_WU - L_WG - 96}, 0
        s_lshl_b32 s{sB}, s{sV}, 5
        s_add_u32 s{sA}, s{sA}, s{sB}
        v_add_u32 v46, s{sA}, v46
        v_add_u32 v47, s{sA}, v47""")
        l = self.role(R_LT6)
        self.wfrag32(16, 46, L_WG, 96); self.wfrag32(20, 46, L_WG + 32 * 96, 96)
        A(f"ds_read_b64_tr_b16 v[24:25], v47 offset:{L_WG + 64*96}")
        self.end(l)
        self.xa_addr()
        A(f"""s_lshl_b32 s{sA}, s{sSIG}, 11
        s_lshl_b32 s{sB}, s{sV}, 8
        s_add_u32 s{sB}, s{sB}, s{sA}
        v_lshl_add_u32 v72, v0, 4, s{sB}
        s_lshl_b32 s{sB}, s{sV}, 6
        s_add_u32 s{sB}, s{sB}, s{sA}
        v_lshl_add_u32 v26, v0, 2, s{sB}
        v_lshrrev_b32 v1, 4, v0
        v_lshl_add_u32 v73, v1, 4, s{sA}""")
        self.x_gather_pre()
        self.sync(self.o['sync_x'])
        l = self.role(R_LT5)
        self.x_gather()
        self.stamp(7)
        A(f"""v_add_f32 v{vXR}, v{vXR}, v56
        v_cvt_pk_bf16_f32 v{vXR}, 0, v{vXR}
        ds_write_b16_d16_hi v77, v{vXR} offset:{L_XA}""")
        self.end(l)
        A(f"s_mul_i32 s{sE}, s{sP}, {RG[1]-RG[0]}\ns_add_u32 s{sE}, s{sE}, {RG[0]}\ns_waitcnt lgkmcnt(0)")
        self.barrier()
        self.xfrags()
        l = self.role(R_LT6)
        A(f"""s_waitcnt lgkmcnt(2)
        v_mfma_f32_16x16x32_bf16 v[56:59], v[4:7], v[16:19], 0
        s_waitcnt lgkmcnt(1)
        v_mfma_f32_16x16x32_bf16 v[56:59], v[8:11], v[20:23], v[56:59]
        s_waitcnt lgkmcnt(0)
        v_mfma_f32_16x16x16_bf16 v[56:59], v[12:13], v[24:25], v[56:59]""")
        self.exec_mask(0xffff)
        self.stores(f"buffer_store_dwordx4 v[56:59], v72, {srd(SWS)}, s{sE} offen{{f}}", True)
        self.exec_mask(0xffff0000)
        self.stores(f"buffer_store_dword v56, v26, {srd(SWS)}, s{sE} offen offset:{1536-64}{{f}}", True)
        self.exec_full()
        self.end(l)
        l = self.role(R_6)
        self.gram_reads(); A("s_waitcnt lgkmcnt(0)"); self.gram_mfma()
        self.exec_mask(1 | 1 << 17 | 1 << 34 | 1 << 51)
        self.stores(f"buffer_store_dwordx4 v[68:71], v73, {srd(SWS)}, s{sE} offen offset:1920{{f}}", True)
        self.exec_full()
        self.end(l)
        self.stamp(8)

    def down_stage(self):
        A = self.A
        l = self.role(R_LT3)
        self.tr_addr(72, 80, 1)
        A(f"s_lshl_b32 s{sA}, s{sV}, 5\nv_add_u32 v72, s{sA}, v72")
        for s in range(3): self.wfrag32(4 + 4 * s, 72, L_WD + s * 32 * 80, 80)
        self.end(l)
        self.sync(self.o['sync_g'])
        l = self.role(R_LT6)
        A(f"""s_cmp_ge_u32 s{sV}, 3
        s_cselect_b32 s{sA}, 1, 0              ; i/3
        s_mul_i32 s{sB}, s{sA}, 3
        s_sub_u32 s{sB}, s{sV}, s{sB}          ; i%3
        s_and_b32 s{sC}, s{sSIG}, 0xf0
        s_lshl_b32 s{sA}, s{sA}, 3
        s_add_u32 s{sC}, s{sC}, s{sA}
        s_lshl_b32 s{sC}, s{sC}, 11
        v_lshrrev_b32 v1, 4, v0
        v_and_b32 v2, 15, v0
        v_lshl_add_u32 v3, v1, 11, s{sC}
        s_lshl_b32 s{sA}, s{sB}, 8
        v_lshl_add_u32 v72, v2, 4, v3
        v_add_u32 v72, s{sA}, v72
        s_lshl_b32 s{sA}, s{sB}, 6
        v_lshl_add_u32 v73, v2, 2, v3
        v_add_u32 v73, s{sA}, v73
        v_and_b32 v3, 7, v0
        v_lshl_add_u32 v74, v3, 11, s{sC}
        v_lshl_add_u32 v74, v1, 4, v74
        s_add_u32 s{sF}, s{sE}, 8192
        v_mul_u32_u24 v75, {HS}, v1
        v_lshl_add_u32 v75, v2, 1, v75
        s_lshl_b32 s{sA}, s{sV}, 5
        v_add_u32 v75, s{sA}, v75""")
        self.poll(f"""buffer_load_dwordx4 v[32:35], v74, {srd(SWS)}, s{sE} offen offset:1920 sc1
        buffer_load_dwordx4 v[16:19], v72, {srd(SWS)}, s{sE} offen sc1
        buffer_load_dwordx4 v[20:23], v72, {srd(SWS)}, s{sF} offen sc1
        buffer_load_dwordx4 v[24:27], v72, {srd(SWS)}, s{sE} offen offset:768 sc1
        buffer_load_dwordx4 v[28:31], v72, {srd(SWS)}, s{sF} offen offset:768 sc1
        buffer_load_dword v36, v73, {srd(SWS)}, s{sE} offen offset:1536 sc1
        buffer_load_dword v37, v73, {srd(SWS)}, s{sF} offen offset:1536 sc1
        buffer_load_dword v38, v73, {srd(SWS)}, s{sE} offen offset:1728 sc1
        buffer_load_dword v39, v73, {srd(SWS)}, s{sF} offen offset:1728 sc1""", range(16, 40), 40)
        self.stamp(9)
        self.red8([32, 33, 34, 35])
        A("v_add_f32 v36, v36, v37\nv_add_f32 v38, v38, v39")
        for i in range(4): A(f"v_add_f32 v{16+i}, v{16+i}, v{20+i}\nv_add_f32 v{24+i}, v{24+i}, v{28+i}")
        A(f"""v_permlane32_swap_b32 v36, v38
        v_add_f32 v36, v36, v38
        v_mov_b32 v38, v36
        v_permlane16_swap_b32 v36, v38
        v_add_f32 v{vCG}, v36, v38
        v_mov_b32 v{vCU}, v{vCG}
        v_permlane32_swap_b32 v{vCG}, v{vCU}""")
        self.lnstats(32, 33, 40, 41, 42)
        self.treduce(16, 17, 18, 19); self.treduce(24, 25, 26, 27)
        A(f"""v_fma_f32 v16, -v40, v{vCG}, v16
        v_fma_f32 v24, -v40, v{vCU}, v24
        v_mul_f32 v16, v16, v41
        v_mul_f32 v24, v24, v41
        v_cvt_pk_bf16_f32 v16, 0, v16
        v_cvt_pk_bf16_f32 v24, 0, v24
        v_mul_f32 v17, s{sLOG2E}, v16
        v_exp_f32 v17, -v17
        v_add_f32 v17, 1.0, v17
        v_rcp_f32 v17, v17
        v_mul_f32 v16, v16, v17
        v_cvt_pk_bf16_f32 v16, 0, v16
        v_mul_f32 v16, v16, v24
        v_cvt_pk_bf16_f32 v16, 0, v16
        ds_write_b16_d16_hi v75, v16 offset:{L_HA}""")
        self.end(l)
        A(f"""v_and_b32 v1, 3, v0
        v_lshrrev_b32 v2, 4, v0
        v_mul_u32_u24 v1, {HS}, v1
        v_lshl_add_u32 v86, v2, 4, v1""")
        self.pub_addr(87)
        A(f"s_mul_i32 s{sE}, s{sP}, {RY[1]-RY[0]}\ns_add_u32 s{sE}, s{sE}, {RY[0]}\ns_waitcnt lgkmcnt(0)")
        self.barrier()
        l = self.role(R_LT3)
        for s in range(3): A(f"ds_read_b128 {vr(52+4*s)}, v86 offset:{L_HA + 64*s}")
        for s in range(3):
            c = "0" if s == 0 else "v[76:79]"
            A(f"s_waitcnt lgkmcnt({2-s})\nv_mfma_f32_16x16x32_bf16 v[76:79], {vr(52+4*s)}, {vr(4+4*s)}, {c}")
        A(f"s_mov_b32 exec_lo, s{sC}\ns_mov_b32 exec_hi, 0")
        self.stores(f"buffer_store_dwordx4 v[76:79], v87, {srd(SWS)}, s{sE} offen{{f}}", False)
        self.exec_full()
        self.end(l)
        self.stamp(10)
        A(f"""v_fma_f32 v34, -v40, v35, v34
        v_mul_f32 v34, v34, v41
        v_cvt_pk_bf16_f32 v34, 0, v34
        v_mul_f32 v34, s{sLOG2E}, v34
        v_exp_f32 v34, -v34
        v_sub_f32 v{vXN}, v{vXR}, v40
        v_add_f32 v34, 1.0, v34
        v_rcp_f32 v34, v34
        v_cvt_pk_bf16_f32 v{vXN}, 0, v{vXN}
        v_cvt_pk_bf16_f32 v{vSG}, 0, v34
        v_mul_f32 v{vXN}, v{vXN}, v41
        v_cvt_pk_bf16_f32 v{vXN}, 0, v{vXN}""")

    def y_finish(self):
        self.A(f"""v_mul_f32 v56, v56, v{vSG}
        v_cvt_pk_bf16_f32 v56, 0, v56
        v_add_f32 v56, v{vXN}, v56
        v_cvt_pk_bf16_f32 v56, 0, v56
        v_add_f32 v{vXR}, v{vXR}, v56
        v_cvt_pk_bf16_f32 v{vXR}, 0, v{vXR}""")

    def q_stage_and_final(self):
        A = self.A
        A(f"s_cmp_eq_u32 s{sP}, 1\ns_cbranch_scc1 L_final")
        l = self.role(R_GE4); self.q_wpre(); self.end(l)
        self.x_gather_pre()
        self.sync(self.o['sync_y'])
        l = self.role(R_LT5)
        self.x_gather()
        self.stamp(11)
        self.y_finish()
        A(f"ds_write_b16_d16_hi v77, v{vXR} offset:{L_XA}")
        self.end(l)
        A(f"s_mov_b32 s{sE}, {RQ[1]}\ns_waitcnt lgkmcnt(0)")
        self.barrier()
        l = self.role(R_GE4); self.q_mfma(sE, True); self.end(l)
        self.attn_pre()
        self.sync(self.o['sync_q'])
        l = self.role(R_456); self.q_gather(); self.end(l)
        A(f"s_mov_b32 s{sP}, 1")
        if self.o['dry']: A(f"s_cmp_eq_u32 s{sDRY}, 1\ns_cbranch_scc1 L_final_body")
        self.barrier()
        A("s_branch L_attn")
        A(f"""L_final:
        s_cmp_eq_u32 s{sT}, s{sX}
        s_cbranch_scc0 L_done
        L_final_body:""")
        self.x_gather_pre()
        self.sync(self.o['sync_y'])
        l = self.role(R_LT5)
        A(f"""v_lshrrev_b32 v1, 4, v0
        v_mul_u32_u24 v1, 1280, v1
        v_and_b32 v2, 15, v0
        v_lshl_add_u32 v77, v2, 1, v1
        s_lshl_b32 s{sF}, s{sV}, 5""")
        self.x_gather()
        self.y_finish()
        self.mem(f"buffer_store_short_d16_hi v{vXR}, v77, {srd(SOUT)}, s{sF} offen")
        self.end(l)
        if self.o['dry']: A(f"s_cmp_eq_u32 s{sDRY}, 1\ns_cbranch_scc1 L_dry_ret")
        A("L_done:")
        self.stamp(11)
        A("L_end:")
        if self.prof:
            A(f"""s_mov_b64 exec, -1
            s_lshl_b32 s{sA}, s2, 3
            s_add_u32 s{sA}, s{sA}, s{sV}
            s_lshl_b32 s{sA}, s{sA}, 7
            s_add_u32 s{sA}, s{sA}, {STAMP}
            v_mov_b32 v1, 0""")
            for i in range(24): A(f"v_mov_b32 v{4+i}, s{sST+i}")
            A(f"v_mov_b32 v28, s{sFAST}\nv_mov_b32 v29, s{sTO}\nv_mov_b32 v30, 0\nv_mov_b32 v31, 0\ns_mov_b64 exec, 1")
            for i in range(7): A(f"buffer_store_dwordx4 {vr(4+4*i)}, v1, {srd(SWS)}, s{sA} offen offset:{16*i}")
        A("L_exit:\ns_endpgm")

    def build(self):
        self.prologue(); self.startup(); self.attention(); self.wo_stage(); self.gu_stage(); self.down_stage(); self.q_stage_and_final()
        for t in self.tail: self.A(t)
        body, nn = resolve(self.L)
        hdr = open('interleave_layers__sliding_block_cached__moe_arch_mod__decode.s.ref').read().split('\n')
        hl = [l for l in hdr if l.startswith(';') and '@launch' not in l and not l.startswith(';   ;')]
        hl = hl[:hl.index([l for l in hl if 'Override launch' in l][0])]
        out = hl + [f"; @launch grid=(256,1,1) block=(512,1,1) lds={LDS_SIZE}",
                    '.amdgcn_target "amdgcn-amd-amdhsa--gfx950"', ".text", f".globl {NAME}", ".p2align 8", f".type {NAME},@function", f"{NAME}:"]
        out += [("" if l.endswith(':') else "    ") + l for l in body]
        out += ['.section .rodata,"a"', ".p2align 6", f".amdhsa_kernel {NAME}",
                "  .amdhsa_next_free_vgpr 256", "  .amdhsa_next_free_sgpr 102", "  .amdhsa_accum_offset 160",
                "  .amdhsa_group_segment_fixed_size 0", "  .amdhsa_kernarg_size 104", "  .amdhsa_user_sgpr_count 2",
                "  .amdhsa_user_sgpr_kernarg_segment_ptr 1", "  .amdhsa_system_sgpr_workgroup_id_x 1",
                "  .amdhsa_float_denorm_mode_32 3", ".end_amdhsa_kernel"]
        return "\n".join(out) + "\n", nn

if __name__ == "__main__":
    path = sys.argv[1]
    opts = {}; prof = False
    for a in sys.argv[2:]:
        if a == 'prof': prof = True
        else:
            k, v = a.split('=')
            opts[k] = {'True': True, 'False': False}.get(v, v)
    s, nn = G(prof, opts).build()
    open(path, 'w').write(s)
    print("wrote", path, len(s.split('\n')), "lines, nops inserted:", nn)
```

```python
import sys
from asmlib import resolve

NAME = "interleave_layers__sliding_block_cached__moe_arch_mod__decode_kernel"

OSL = 896
RO = [0, 256 * OSL]
RX = [2 * 256 * OSL, 2 * 256 * OSL + 163840]
RY = [RX[1] + 163840, RX[1] + 2 * 163840]
RG = [RY[1] + 163840, RY[1] + 163840 + 524288]
RQ = [RG[1] + 524288, RG[1] + 524288 + 2097152]
RF = RQ[1] + 1048576
RE = RF + 32768
WS_END = RE + 2048
STAMP = WS_END
WS_SIZE = WS_END + 256 * 8 * 128
L_OC = 0
L_ML = L_OC + 12288
L_XA = L_ML + 64; XS = 176
L_HA = L_XA + 6 * XS; HS = 320
L_OA = L_HA + 4 * HS; OS = 832
L_QL = L_OA + 4 * OS
L_FL = L_QL + 384
L_CQ = L_FL + 64
L_WD = L_CQ + 768
L_WG = L_WD + 7680
L_WU = L_WG + 7680
L_WO = L_WU + 7680
L_WQ = L_WO + 30720
L_VP = L_WQ + 30720
LDS_SIZE = L_VP + 8 * 6144
sW, sV, sX, sT, sP, sDRY = 2, 3, 4, 5, 6, 7
SK, SVV, SWS, SWQ, SWO, SWG, SWU, SWD, SX0, SWR, SOUT, SDBG = range(8, 56, 4)
sFAST, sROLE, sTO = 56, 57, 58
sFULL = 60
sA, sB, sC, sD, sE, sF = 62, 63, 88, 89, 90, 91
sM = 92
sLOG2E, sSCALE, sINVN, sEPS = 93, 94, 95, 59
sSIG = 98
sST = 64
R_LT3, R_LT5, R_LT6, R_GE4, R_456, R_7, R_6 = range(7)
vXR, vXN, vSG, vCG, vCU, vCQ = 80, 81, 82, 83, 84, 85
VBASE = 88

def srd(b): return f"s[{b}:{b+3}]"
def vr(a, n=4): return f"v[{a}:{a+n-1}]" if n > 1 else f"v{a}"
def ar(a, n=4): return f"a[{a}:{a+n-1}]"

class G:
    def __init__(self, prof=False, opts=None):
        self.L = []; self.tail = []; self.n = 0; self.prof = prof
        self.o = dict(dry=True, sync_o='none', sync_x='ack', sync_g='none', sync_y='ack', sync_q='none', fast=True, clear='sc1', wdma=True, wflag='nt', bsleep=8, lim=0, lim2=0, extra=False, kvflag='nt')
        self.o.update(opts or {})
    def A(self, s):
        for l in s.split('\n'):
            l = l.strip()
            if l: self.L.append(l)
    def lab(self, p):
        self.n += 1; return f"L_{p}_{self.n}"
    def exec_mask(self, m):
        self.A(f"s_and_b32 exec_lo, s{sFULL}, 0x{m & 0xffffffff:x}\ns_and_b32 exec_hi, s{sFULL}, 0x{m >> 32:x}")
    def exec_full(self): self.A(f"s_mov_b64 exec, s[{sFULL}:{sFULL+1}]")
    def barrier(self):
        l = self.lab("nb"); self.A(f"s_cbranch_execz {l}\ns_barrier\n{l}:")
    def role(self, bit):
        l = self.lab("role"); self.A(f"s_bitcmp1_b32 s{sROLE}, {bit}\ns_cbranch_scc0 {l}"); return l
    def end(self, l): self.A(f"{l}:")
    def mem(self, lines):
        l = self.lab("nm"); self.A(f"s_cbranch_execz {l}"); self.A(lines); self.A(f"{l}:")
    def stores(self, lines, intra):
        if intra and self.o['fast']:
            l1 = self.lab("st"); l2 = self.lab("st")
            self.A(f"s_cbranch_execz {l2}\ns_cmp_eq_u32 s{sFAST}, 0\ns_cbranch_scc1 {l1}")
            self.A(lines.format(f="")); self.A(f"{l2}:")
            self.tail.append(f"{l1}:\n" + lines.format(f=" sc1") + f"\ns_branch {l2}")
        else:
            self.mem(lines.format(f=" sc1"))
    def poll(self, loads, regs, tmp):
        lp = self.lab("poll"); lr = self.lab("retry")
        self.A(f"{lp}:"); self.mem(loads)
        self.A("s_waitcnt vmcnt(0)")
        regs = list(regs)
        a, b = tmp, tmp + 1
        if len(regs) <= 3:
            if len(regs) == 2: self.A(f"v_max_u32 v{a}, v{regs[0]}, v{regs[1]}")
            else: self.A(f"v_max3_u32 v{a}, v{regs[0]}, v{regs[1]}, v{regs[2]}")
        else:
            self.A(f"v_max3_u32 v{a}, v{regs[0]}, v{regs[1]}, v{regs[2]}")
            rest = regs[3:]
            if len(rest) >= 3:
                self.A(f"v_max3_u32 v{b}, v{rest[0]}, v{rest[1]}, v{rest[2]}"); rest = rest[3:]
                cur = a
                while len(rest) >= 2:
                    self.A(f"v_max3_u32 v{cur}, v{cur}, v{rest[0]}, v{rest[1]}"); rest = rest[2:]; cur = a + b - cur
                if rest: self.A(f"v_max3_u32 v{a}, v{a}, v{b}, v{rest[0]}")
                else: self.A(f"v_max_u32 v{a}, v{a}, v{b}")
            elif len(rest) == 2: self.A(f"v_max3_u32 v{a}, v{a}, v{rest[0]}, v{rest[1]}")
            else: self.A(f"v_max_u32 v{a}, v{a}, v{rest[0]}")
        self.A(f"v_cmp_eq_u32 vcc, -1, v{a}\ns_cbranch_vccnz {lr}")
        self.tail.append(f"{lr}:\ns_sub_u32 s{sTO}, s{sTO}, 1\ns_cbranch_scc1 L_end\ns_branch {lp}")
    def stamp(self, i, both=True):
        if not self.prof: return
        self.A("s_memrealtime s[96:97]\ns_waitcnt lgkmcnt(0)")
        if both:
            self.A(f"s_cmp_eq_u32 s{sP}, 0\ns_cselect_b32 s{sST+i}, s96, s{sST+i}\ns_cselect_b32 s{sST+12+i}, s{sST+12+i}, s96")
        else:
            self.A(f"s_mov_b32 s{sST+i}, s96")
    def sync(self, kind):
        if kind == 'ack': self.A("s_waitcnt vmcnt(0)"); self.barrier()
        elif kind.startswith('sleep'): self.A(f"s_sleep {int(kind[5:])}")
        elif kind.startswith('acks'): self.A("s_waitcnt vmcnt(0)"); self.barrier(); self.A(f"s_sleep {int(kind[4:])}")
    def rnd(self, d, s): self.A(f"v_cvt_pk_bf16_f32 v{d}, 0, v{s}")
    def treduce(self, r0, r1, r2, r3):
        self.A(f"""v_permlane32_swap_b32 v{r0}, v{r2}
        v_permlane32_swap_b32 v{r1}, v{r3}
        v_add_f32 v{r0}, v{r0}, v{r2}
        v_add_f32 v{r1}, v{r1}, v{r3}
        v_permlane16_swap_b32 v{r0}, v{r1}
        v_add_f32 v{r0}, v{r0}, v{r1}""")
    def red8(self, regs):
        for perm in ("quad_perm:[1,0,3,2]", "quad_perm:[2,3,0,1]", "row_half_mirror"):
            for r in regs: self.A(f"v_add_f32_dpp v{r}, v{r}, v{r} {perm} row_mask:0xf bank_mask:0xf")
    def lnstats(self, sq, sm, m, rs, t):
        self.A(f"""v_mul_f32 v{sm}, s{sINVN}, v{sm}
        v_mul_f32 v{sq}, s{sINVN}, v{sq}
        v_fma_f32 v{t}, -v{sm}, v{sm}, v{sq}
        v_cvt_pk_bf16_f32 v{m}, 0, v{sm}
        v_max_f32 v{t}, 0, v{t}
        v_cvt_pk_bf16_f32 v{t}, 0, v{t}
        v_add_f32 v{t}, s{sEPS}, v{t}
        v_cvt_pk_bf16_f32 v{t}, 0, v{t}
        v_sqrt_f32 v{t}, v{t}
        v_cvt_pk_bf16_f32 v{t}, 0, v{t}
        v_rcp_f32 v{rs}, v{t}""")
    def tr_addr(self, d, rs, t):
        self.A(f"""v_lshrrev_b32 v{t}, 4, v0
        v_bfe_u32 v{d}, v0, 2, 2
        v_lshl_add_u32 v{d+1}, v{t}, 2, v{d}
        v_lshl_add_u32 v{d}, v{t}, 3, v{d}
        v_mul_u32_u24 v{d}, {rs}, v{d}
        v_mul_u32_u24 v{d+1}, {rs}, v{d+1}
        v_and_b32 v{t}, 3, v0
        v_lshl_add_u32 v{d}, v{t}, 3, v{d}
        v_lshl_add_u32 v{d+1}, v{t}, 3, v{d+1}""")
    def wfrag32(self, dst, addr, off, rs):
        self.A(f"ds_read_b64_tr_b16 {vr(dst,2)}, v{addr} offset:{off}\nds_read_b64_tr_b16 {vr(dst+2,2)}, v{addr} offset:{off+4*rs}")

    def prologue(self):
        A = self.A
        A(f"""s_cmp_ge_u32 s2, 256
        s_cbranch_scc1 L_exit
        s_load_dwordx16 s[64:79], s[0:1], 0
        s_load_dwordx8 s[80:87], s[0:1], 64
        s_load_dwordx2 s[88:89], s[0:1], 96
        v_lshrrev_b32 v1, 6, v0
        v_and_b32 v0, 63, v0
        v_readfirstlane_b32 s{sV}, v1
        s_and_b32 s{sX}, s2, 7
        s_lshr_b32 s{sT}, s2, 3
        s_mov_b32 s{sP}, 0
        s_mov_b32 s{sDRY}, 0
        s_mov_b64 s[{sFULL}:{sFULL+1}], -1
        s_mov_b32 s{sTO}, 0x100000
        s_mov_b32 s{sFAST}, 0
        s_mov_b32 s{sLOG2E}, 0x3fb8aa3b
        s_mov_b32 s{sSCALE}, 0x3d93cd3a
        s_mov_b32 s{sINVN}, 0x3acccccd
        s_mov_b32 s{sEPS}, 0x3727c5ac
        s_lshl_b32 s{sSIG}, s{sX}, 5
        s_add_u32 s{sSIG}, s{sSIG}, s{sT}""")
        tab = 0
        for v in range(8):
            bits = (v < 3) << R_LT3 | (v < 5) << R_LT5 | (v < 6) << R_LT6 | (v >= 4) << R_GE4 | (4 <= v <= 6) << R_456 | (v == 7) << R_7 | (v == 6) << R_6
            tab |= bits << (8 * v)
        A(f"""s_mov_b32 s90, 0x{tab & 0xffffffff:x}
        s_mov_b32 s91, 0x{tab >> 32:x}
        s_lshl_b32 s{sA}, s{sV}, 3
        s_lshr_b64 s[90:91], s[90:91], s{sA}
        s_and_b32 s{sROLE}, s90, 0xff""")
        A(f"""s_lshr_b32 s{sA}, s{sT}, 3
        s_lshl_b32 s{sB}, s{sX}, 2
        s_add_u32 s92, s{sA}, s{sB}            ; h
        s_bfe_u32 s{sA}, s{sT}, 0x20001        ; b
        s_lshl_b32 s{sA}, s{sA}, 5
        s_add_u32 s{sA}, s{sA}, s92
        s_lshl_b32 s{sA}, s{sA}, 12
        s_and_b32 s{sB}, s{sT}, 1
        s_lshl_b32 s{sB}, s{sB}, 9
        s_add_u32 s{sA}, s{sA}, s{sB}
        s_lshl_b32 s{sB}, s{sV}, 6
        s_add_u32 s{sA}, s{sA}, s{sB}
        s_add_u32 s{sA}, s{sA}, 3072
        s_mul_i32 s{sA}, s{sA}, 384
        v_mov_b32 v2, 0
        v_mov_b32 v3, 0
        v_mov_b32 v1, {L_FL}
        ds_write_b64 v1, v[2:3]
        s_waitcnt lgkmcnt(0)
        s_barrier""")
        def mk(b, p, off, size):
            if off is None:
                A(f"s_mov_b32 s{b}, s{p}\ns_mov_b32 s{b+1}, s{p+1}\ns_mov_b32 s{b+2}, {size}")
            else:
                A(f"s_add_u32 s{b}, s{p}, s{off}\ns_addc_u32 s{b+1}, s{p+1}, 0")
                if isinstance(size, int): A(f"s_mov_b32 s{b+2}, {size}")
                else: A(f"s_sub_u32 s{b+2}, {size[0]}, s{off}")
            A(f"s_mov_b32 s{b+3}, 0x20000")
        mk(SK, 66, sA, 24576); mk(SVV, 68, sA, 24576)
        mk(SWS, 88, None, WS_SIZE)
        A(f"""s_and_b32 s90, s{sT}, 7               ; ks
        s_mul_i32 s{sA}, s90, {80*12288}
        s_mul_i32 s{sB}, s92, 384
        s_add_u32 s{sA}, s{sA}, s{sB}
        s_and_b32 s{sB}, s{sV}, 3
        s_mul_i32 s{sB}, s{sB}, 96
        s_add_u32 s{sA}, s{sA}, s{sB}""")
        mk(SWQ, 70, sA, (640 * 6144 * 2,))
        A(f"""s_lshr_b32 s{sA}, s{sT}, 4
        s_lshl_b32 s{sB}, s{sX}, 1
        s_add_u32 s91, s{sA}, s{sB}             ; P = 2x + (t>>4)
        s_mul_i32 s{sA}, s91, {384*1280}
        s_and_b32 s{sB}, s{sT}, 15
        s_mul_i32 s{sB}, s{sB}, 80
        s_add_u32 s{sA}, s{sA}, s{sB}""")
        mk(SWO, 72, sA, (6144 * 640 * 2,))
        A(f"""s_mul_i32 s{sA}, s91, {96*1280}
        s_add_u32 s{sA}, s{sA}, s{sB}""")
        mk(SWD, 82, sA, (1536 * 640 * 2,))
        A(f"""s_mul_i32 s{sA}, s90, {80*3072}
        s_mul_i32 s{sB}, s92, 96
        s_add_u32 s{sA}, s{sA}, s{sB}""")
        mk(SWG, 78, sA, (640 * 1536 * 2,)); mk(SWU, 80, sA, (640 * 1536 * 2,))
        A(f"s_mul_i32 s{sA}, s90, 160")
        mk(SX0, 64, sA, (5120,)); mk(SWR, 76, sA, (1280,)); mk(SOUT, 84, sA, (5120,))
        mk(SDBG, 86, None, 256)
        if self.prof:
            for i in range(24): A(f"s_mov_b32 s{sST+i}, 0")
        self.stamp(0, both=False)

    def thr(self, lim):
        if lim: self.A(f"s_waitcnt vmcnt({lim-1})")
    def dma60(self, srdb, vaddr, n, rows, rstride, lds0, i0=0, lim=0):
        for i in range(i0, i0 + n):
            self.thr(lim)
            self.A(f"s_add_u32 m0, s{sB}, {lds0 + i*960}\ns_mov_b32 s{sA}, {i*rows*rstride}\nbuffer_load_dwordx4 v{vaddr}, {srd(srdb)}, s{sA} offen {self.o['wflag'] if self.o['wflag'] != 'plain' else ''} lds")

    def dma_addr(self, d, cpr, rstride):
        mul = {5: 52, 6: 43}[cpr]
        self.A(f"""v_mul_u32_u24 v{d}, {mul}, v0
        v_lshrrev_b32 v{d}, 8, v{d}
        v_mul_u32_u24 v3, {cpr}, v{d}
        v_sub_u32 v3, v0, v3
        v_mul_u32_u24 v{d}, {rstride}, v{d}
        v_lshl_add_u32 v{d}, v3, 4, v{d}""")

    def kv_loads(self, lim):
        A = self.A
        KF = self.o['kvflag'].replace('plain', '').replace('_', ' ')
        A(f"""v_bfe_u32 v1, v0, 1, 3
        v_mul_u32_u24 v1, 384, v1
        v_lshrrev_b32 v3, 4, v0
        v_lshl_add_u32 v1, v3, 5, v1
        v_and_b32 v3, 1, v0
        v_lshl_add_u32 v1, v3, 4, v1
        v_lshrrev_b32 v2, 3, v0
        v_mul_u32_u24 v2, 384, v2
        v_and_b32 v3, 7, v0
        v_lshl_add_u32 v2, v3, 4, v2
        s_mul_i32 s{sB}, s{sV}, 6144""")
        if self.o['extra']:
            A(f"s_sub_u32 s{SK}, s{SK}, {1024*384}\ns_subb_u32 s{SK+1}, s{SK+1}, 0")
            for g in range(8):
                A(f"s_mov_b32 s{sA}, {g*3072}")
                for s in range(3):
                    A(f"buffer_load_dwordx4 {ar((g*3+s)*4)}, v1, {srd(SK)}, s{sA} offen offset:{s*128} {KF}")
            A(f"s_add_u32 s{SK}, s{SK}, {1024*384}\ns_addc_u32 s{SK+1}, s{SK+1}, 0")
        for g in range(8):
            A(f"s_mov_b32 s{sA}, {g*3072}")
            for s in range(3):
                self.thr(lim)
                A(f"buffer_load_dwordx4 {ar((g*3+s)*4)}, v1, {srd(SK)}, s{sA} offen offset:{s*128} {KF}")
        for g in range(8):
            for s in range(3):
                self.thr(lim)
                if g < 2:
                    A(f"s_add_u32 m0, s{sB}, {L_VP + (g*3+s)*1024}\ns_mov_b32 s{sA}, {g*3072+s*128}\nbuffer_load_dwordx4 v2, {srd(SVV)}, s{sA} offen {KF} lds")
                else:
                    if s == 0: A(f"s_mov_b32 s{sA}, {g*3072}")
                    A(f"buffer_load_dwordx4 {vr(VBASE+((g-2)*3+s)*4)}, v2, {srd(SVV)}, s{sA} offen offset:{s*128} {KF}")

    def xres_load(self):
        l = self.role(R_LT5)
        self.A(f"""v_lshrrev_b32 v1, 4, v0
        v_mul_u32_u24 v1, 1280, v1
        v_and_b32 v2, 15, v0
        v_lshl_add_u32 v1, v2, 1, v1
        s_lshl_b32 s{sA}, s{sV}, 5
        v_mov_b32 v{vXR}, 0
        buffer_load_short_d16_hi v{vXR}, v1, {srd(SX0)}, s{sA} offen""")
        self.end(l)

    def attn_pre(self):
        self.A(f"""v_lshrrev_b32 v1, 4, v0
        v_and_b32 v2, 1, v0
        v_lshl_add_u32 v86, v1, 1, v2
        v_lshlrev_b32 v86, 4, v86
        v_lshlrev_b32 v2, 4, v2
        v_mov_b32 v3, 0xffff
        v_lshlrev_b32 v3, v2, v3
        v_bfe_u32 v2, v0, 1, 2""")
        for i in range(4):
            self.A(f"v_cmp_eq_u32 vcc, {i}, v2\nv_cndmask_b32 v{76+i}, 0, v3, vcc")

    def q_wpre(self):
        self.tr_addr(46, 96, 1)
        self.A(f"s_and_b32 s{sA}, s{sV}, 3\ns_mul_i32 s{sA}, s{sA}, 7680\ns_add_u32 s{sA}, s{sA}, {L_WQ}\nv_add_u32 v46, s{sA}, v46\nv_add_u32 v47, s{sA}, v47")
        for t in range(3):
            self.wfrag32(16 + 10 * t, 46, t * 32, 96)
            self.wfrag32(20 + 10 * t, 46, t * 32 + 32 * 96, 96)
            self.A(f"ds_read_b64_tr_b16 {vr(24+10*t,2)}, v47 offset:{t*32 + 64*96}")
        self.xa_addr()
        self.A(f"""v_and_b32 v1, 15, v0
        v_mul_u32_u24 v72, 768, v1
        v_lshrrev_b32 v1, 4, v0
        v_lshl_add_u32 v72, v1, 4, v72
        s_and_b32 s{sA}, s{sV}, 3
        s_mul_i32 s{sA}, s{sA}, 192
        s_lshl_b32 s{sB}, s{sSIG}, 12
        s_add_u32 s{sA}, s{sA}, s{sB}
        v_add_u32 v72, s{sA}, v72
        v_lshl_add_u32 v73, v1, 4, s{sB}
        v_add_u32 v73, 3840, v73""")
    def xa_addr(self):
        self.A(f"""v_and_b32 v1, 15, v0
        v_lshrrev_b32 v2, 4, v0
        v_min_u32 v14, 5, v1
        v_mul_u32_u24 v14, {XS}, v14
        v_lshl_add_u32 v15, v2, 3, v14
        v_lshl_add_u32 v14, v2, 4, v14
        v_and_b32 v3, 3, v0
        v_bfe_u32 v1, v0, 2, 2
        v_add_u32 v74, 3, v3
        v_min_u32 v74, 5, v74
        v_cmp_eq_u32 vcc, 0, v3
        v_cndmask_b32 v74, v74, v1, vcc
        v_mul_u32_u24 v74, {XS}, v74
        v_lshl_add_u32 v75, v2, 3, v74
        v_lshl_add_u32 v74, v2, 4, v74""")
    def xfrags(self):
        self.A(f"""ds_read_b128 v[4:7], v14 offset:{L_XA}
        ds_read_b128 v[8:11], v14 offset:{L_XA+64}
        ds_read_b64 v[12:13], v15 offset:{L_XA+128}""")
    def gram_reads(self):
        self.A(f"""ds_read_b128 v[48:51], v74 offset:{L_XA}
        ds_read_b128 v[52:55], v74 offset:{L_XA+64}
        ds_read_b64 v[46:47], v75 offset:{L_XA+128}""")
    def gram_mfma(self):
        self.A(f"""v_mfma_f32_16x16x32_bf16 v[68:71], v[48:51], v[4:7], 0
        v_mfma_f32_16x16x32_bf16 v[68:71], v[52:55], v[8:11], v[68:71]
        v_mfma_f32_16x16x16_bf16 v[68:71], v[46:47], v[12:13], v[68:71]
        v_mov_b32_dpp v71, v70 row_newbcast:4 row_mask:0xf bank_mask:0xf""")
    def q_mfma(self, sreg, intra, tagged=False):
        A = self.A
        self.xfrags()
        l = self.role(R_7); self.gram_reads(); self.end(l)
        A("s_waitcnt lgkmcnt(0)")
        for s in range(3):
            for t in range(3):
                c = "0" if s == 0 else vr(56 + 4 * t)
                if s < 2: A(f"v_mfma_f32_16x16x32_bf16 {vr(56+4*t)}, {vr(16+10*t+4*s)}, {vr(4+4*s)}, {c}")
                else: A(f"v_mfma_f32_16x16x16_bf16 {vr(56+4*t)}, {vr(24+10*t,2)}, v[12:13], {c}")
        if tagged:
            A(f"""v_and_b32 v1, 15, v0
            v_mul_u32_u24 v72, 1536, v1
            v_lshrrev_b32 v1, 4, v0
            v_lshl_add_u32 v72, v1, 4, v72
            s_and_b32 s{sA}, s{sV}, 3
            s_mul_i32 s{sA}, s{sA}, 384
            s_lshl_b32 s{sB}, s{sSIG}, 13
            s_add_u32 s{sA}, s{sA}, s{sB}
            v_add_u32 v72, s{sA}, v72
            v_lshl_add_u32 v73, v1, 4, s{sB}
            v_add_u32 v73, 7680, v73""")
            for t in range(3):
                for i in range(4): A(f"v_mov_b32 v{16+8*t+2*i}, v{56+4*t+i}\nv_mov_b32 v{17+8*t+2*i}, s101")
            self.exec_mask(0x001f001f001f001f)
            for t in range(3):
                for h in range(2): A(f"buffer_store_dwordx4 {vr(16+8*t+4*h)}, v72, {srd(SWS)}, s{sreg} offen offset:{128*t+64*h} sc1")
            self.exec_full()
            l = self.role(R_7)
            self.gram_mfma()
            A("v_mov_b32 v70, v69\nv_mov_b32 v69, s101\nv_mov_b32 v71, s101")
            self.exec_mask(1 | 1 << 17 | 1 << 34 | 1 << 51)
            A(f"buffer_store_dwordx4 v[68:71], v73, {srd(SWS)}, s{sreg} offen sc1")
            self.exec_full()
            self.end(l)
            return
        self.exec_mask(0x001f001f001f001f)
        self.stores("\n".join(f"buffer_store_dwordx4 {vr(56+4*t)}, v72, {srd(SWS)}, s{sreg} offen offset:{64*t}{{f}}" for t in range(3)), intra)
        self.exec_full()
        l = self.role(R_7)
        self.gram_mfma()
        self.exec_mask(1 | 1 << 17 | 1 << 34 | 1 << 51)
        self.stores(f"buffer_store_dwordx4 v[68:71], v73, {srd(SWS)}, s{sreg} offen{{f}}", intra)
        self.exec_full()
        self.end(l)
    def q_gather_addr(self, byw):
        A = self.A
        A(f"""s_and_b32 s{sA}, s{sSIG}, 0xf8
        s_lshl_b32 s{sA}, s{sA}, 12
        s_bfe_u32 s{sB}, s{sT}, 0x20001          ; b
        s_mul_i32 s{sC}, s{sB}, 768""")
        if byw: A(f"s_and_b32 s{sD}, s{sV}, 3\ns_lshl_b32 s{sD}, s{sD}, 8\ns_add_u32 s{sD}, s{sD}, s{sA}")
        else: A(f"s_mov_b32 s{sD}, s{sA}")
        A(f"""v_lshrrev_b32 v1, 4, v0
        v_and_b32 v2, 15, v0
        v_lshlrev_b32 v3, 12, v1
        v_lshl_add_u32 v3, v2, 4, v3
        v_add_u32 v70, s{sD}, v3
        v_add_u32 v71, s{sC}, v70
        v_and_b32 v3, 7, v0
        v_lshlrev_b32 v3, 12, v3
        s_lshl_b32 s{sB}, s{sB}, 4
        s_add_u32 s{sB}, s{sB}, s{sA}
        v_add_u32 v72, s{sB}, v3
        s_add_u32 s{sF}, s{sE}, 16384
        v_lshlrev_b32 v73, 3, v2
        v_lshl_add_u32 v73, v1, 1, v73""")
        if byw: A(f"s_and_b32 s{sA}, s{sV}, 3\ns_lshl_b32 s{sA}, s{sA}, 7\nv_add_u32 v73, s{sA}, v73")
    def q_gather(self):
        A = self.A
        self.q_gather_addr(1)
        A(f"v_lshlrev_b32 v74, 1, v73\nds_read_b32 v16, v74 offset:{L_CQ}")
        loads = f"""buffer_load_dwordx2 v[12:13], v72, {srd(SWS)}, s{sE} offen offset:3840 sc1
        buffer_load_dwordx4 v[4:7], v71, {srd(SWS)}, s{sE} offen sc1
        buffer_load_dwordx4 v[8:11], v71, {srd(SWS)}, s{sF} offen sc1"""
        self.poll(loads, range(4, 14), 24)
        self.red8([12, 13])
        for i in range(4): A(f"v_add_f32 v{4+i}, v{4+i}, v{8+i}")
        self.lnstats(12, 13, 14, 15, 24)
        self.treduce(4, 5, 6, 7)
        A(f"""s_waitcnt lgkmcnt(0)
        v_fma_f32 v4, -v14, v16, v4
        v_mul_f32 v4, v4, v15
        v_cvt_pk_bf16_f32 v4, 0, v4
        ds_write_b16_d16_hi v73, v4 offset:{L_QL}
        s_waitcnt lgkmcnt(0)""")

    def startup(self):
        A = self.A
        L1 = int(self.o['lim']); L2 = int(self.o['lim2'])
        A(f"s_bitcmp1_b32 s{sROLE}, {R_GE4}\ns_cbranch_scc1 L_start_hi")
        self.xres_load()
        self.dma_addr(4, 5, 1280); self.dma_addr(5, 6, 3072)
        if not self.o['wdma']: A("s_branch L_nowdma")
        self.exec_mask((1 << 60) - 1)
        A(f"s_mul_i32 s{sC}, s{sV}, {8*12*1280}\nv_add_u32 v6, s{sC}, v4\ns_mul_i32 s{sB}, s{sV}, {8*960}")
        self.dma60(SWO, 6, 8, 12, 1280, L_WO, lim=L1)
        A(f"s_mul_i32 s{sC}, s{sV}, {2*10*3072}\nv_add_u32 v6, s{sC}, v5\ns_mul_i32 s{sB}, s{sV}, {2*960}")
        self.dma60(SWG, 6, 2, 10, 3072, L_WG, lim=L1); self.dma60(SWU, 6, 2, 10, 3072, L_WU, lim=L1)
        A(f"s_mul_i32 s{sC}, s{sV}, {2*12*1280}\nv_add_u32 v6, s{sC}, v4")
        self.dma60(SWD, 6, 2, 12, 1280, L_WD, lim=L1)
        A("L_nowdma:")
        self.exec_full()
        self.kv_loads(L1)
        self.attn_pre()
        self.stamp(1, both=False)
        A("s_branch L_wait_q")
        A(f"""L_start_hi:
        s_setprio 3
        v_mov_b32 v1, 0
        s_mov_b32 s{sA}, {RE}
        buffer_load_dword v69, v1, {srd(SWS)}, s{sA} offen sc1""")
        self.xres_load()
        self.dma_addr(4, 6, 12288)
        self.exec_mask((1 << 60) - 1)
        A(f"s_and_b32 s{sB}, s{sV}, 3\ns_mul_i32 s{sB}, s{sB}, 7680")
        self.dma60(SWQ, 4, 8, 10, 12288, L_WQ)
        self.exec_full()
        A(f"""v_mul_u32_u24 v5, 26, v0
        v_lshrrev_b32 v5, 8, v5                  ; row = l/10
        v_mul_u32_u24 v6, 10, v5
        v_sub_u32 v6, v0, v6                     ; c = l%10
        v_mul_u32_u24 v7, 1280, v5
        v_lshl_add_u32 v7, v6, 4, v7
        v_lshlrev_b32 v8, 4, v6
        v_mul_u32_u24 v9, {XS}, v5
        v_lshl_add_u32 v9, v6, 4, v9""")
        A("v_mov_b32 v60, 0x3f803f80\nv_mov_b32 v61, 0x3f803f80\nv_mov_b32 v62, 0x3f803f80\nv_mov_b32 v63, 0x3f803f80")
        self.exec_mask((1 << 40) - 1)
        A(f"buffer_load_dwordx4 v[60:63], v7, {srd(SX0)}, 0 offen")
        self.exec_mask(((1 << 60) - 1) ^ ((1 << 50) - 1))
        A(f"buffer_load_dwordx4 v[60:63], v8, {srd(SWR)}, 0 offen")
        self.exec_full()
        A("s_waitcnt vmcnt(0)")
        self.stamp(12, both=False)
        self.exec_mask((1 << 60) - 1)
        A(f"ds_write_b128 v9, v[60:63] offset:{L_XA}")
        self.exec_full()
        self.q_wpre()
        A(f"""v_add_u32 v69, 1, v69
        s_waitcnt lgkmcnt(0)
        v_readfirstlane_b32 s101, v69
        s_mov_b32 s{sE}, {RQ[0]}""")
        self.q_mfma(sE, False, tagged=True)
        self.stamp(14, both=False)
        CF = ' ' + self.o['clear'] if self.o['clear'] not in ('plain','none') else ''
        l = self.role(R_6)
        A("v_mov_b32 v64, -1\nv_mov_b32 v65, -1\nv_mov_b32 v66, -1\nv_mov_b32 v67, -1\nv_lshlrev_b32 v10, 4, v0")
        if self.o['clear'] == 'none': A('s_branch L_noclear')
        A(f"s_mul_i32 s{sA}, s{sSIG}, {OSL}")
        self.exec_mask((1 << 56) - 1)
        for p in range(2): A(f"s_add_u32 s{sB}, s{sA}, {RO[p]}\nbuffer_store_dwordx4 v[64:67], v10, {srd(SWS)}, s{sB} offen{CF}")
        A(f"s_mul_i32 s{sA}, s{sSIG}, 640")
        self.exec_mask((1 << 40) - 1)
        for r in RX + RY: A(f"s_add_u32 s{sB}, s{sA}, {r}\nbuffer_store_dwordx4 v[64:67], v10, {srd(SWS)}, s{sB} offen{CF}")
        self.exec_full()
        A(f"s_lshl_b32 s{sA}, s{sSIG}, 12\ns_add_u32 s{sA}, s{sA}, {RQ[1]}")
        for i in range(4): A(f"buffer_store_dwordx4 v[64:67], v10, {srd(SWS)}, s{sA} offen offset:{1024*i}{CF}")
        A(f"s_lshl_b32 s{sA}, s{sSIG}, 11")
        for p in range(2):
            A(f"s_add_u32 s{sB}, s{sA}, {RG[p]}")
            for i in range(2): A(f"buffer_store_dwordx4 v[64:67], v10, {srd(SWS)}, s{sB} offen offset:{1024*i}{CF}")
        A(f"""L_noclear:
        s_getreg_b32 s99, hwreg(HW_REG_XCC_ID, 0, 4)
        v_mov_b32 v4, {L_FL}
        v_mov_b32 v6, s101
        v_mov_b32 v7, s99
        v_mov_b32 v8, s101
        v_mov_b32 v9, s99
        s_lshl_b32 s{sA}, s{sSIG}, 7
        s_add_u32 s{sA}, s{sA}, {RF}
        s_waitcnt vmcnt(0)
        s_mov_b64 exec, 0xff
        buffer_store_dwordx4 v[6:9], v10, {srd(SWS)}, s{sA} offen sc1
        s_mov_b64 exec, -1""")
        self.end(l)
        self.stamp(1, both=False)
        if self.o['dry']:
            l = self.lab("nodry")
            A(f"""s_cmp_eq_u32 s{sV}, 7
            s_cbranch_scc0 {l}
            s_mov_b32 s{sDRY}, 1
            s_mov_b32 s100, s{sROLE}
            s_mov_b32 s{sROLE}, 0xff
            s_mov_b64 s[{sFULL}:{sFULL+1}], 0
            s_mov_b64 exec, 0
            s_branch L_attn
            L_dry_ret:
            s_mov_b32 s{sDRY}, 0
            s_mov_b32 s{sP}, 0
            s_mov_b32 s{sROLE}, s100
            s_mov_b64 s[{sFULL}:{sFULL+1}], -1
            s_mov_b64 exec, -1
            {l}:""")
        l = self.role(R_7)
        lp = self.lab("tq"); lr = self.lab("tqr")
        self.stamp(13, both=False)
        A(f"""s_and_b32 s{sA}, s{sSIG}, 0xf8
        s_lshl_b32 s{sA}, s{sA}, 13
        s_add_u32 s{sE}, s{sA}, {RQ[0]}
        s_add_u32 s{sF}, s{sE}, 32768
        s_bfe_u32 s{sB}, s{sT}, 0x20001          ; b
        s_mul_i32 s{sC}, s{sB}, 1536
        v_lshrrev_b32 v1, 4, v0
        v_and_b32 v2, 15, v0
        v_lshlrev_b32 v70, 13, v1
        v_bfe_u32 v3, v0, 2, 2
        v_lshl_add_u32 v70, v3, 7, v70
        v_and_b32 v3, 3, v0
        v_lshl_add_u32 v70, v3, 4, v70
        v_add_u32 v71, s{sC}, v70
        v_add_u32 v70, 6144, v70
        v_and_b32 v3, 7, v0
        v_lshlrev_b32 v72, 13, v3
        s_lshl_b32 s{sB}, s{sB}, 4
        v_add_u32 v72, s{sB}, v72
        v_add_u32 v72, 7680, v72
        v_lshlrev_b32 v73, 3, v2
        v_lshl_add_u32 v73, v1, 1, v73
        v_lshlrev_b32 v74, 1, v73
        {lp}:""")
        R0 = [4, 36, 88]
        for sg in range(3):
            r = R0[sg]
            for j, (va, so) in enumerate(((71, sE), (71, sF), (70, sE), (70, sF))):
                A(f"""buffer_load_dwordx4 {vr(r+8*j)}, v{va}, {srd(SWS)}, s{so} offen offset:{512*sg} sc1
                buffer_load_dwordx4 {vr(r+8*j+4)}, v{va}, {srd(SWS)}, s{so} offen offset:{512*sg+64} sc1""")
        A(f"""buffer_load_dwordx4 v[120:123], v72, {srd(SWS)}, s{sE} offen sc1
        s_waitcnt vmcnt(0)
        v_xor_b32 v1, s101, v121
        v_xor_b32 v2, s101, v123
        v_or_b32 v1, v1, v2""")
        for sg in range(3):
            for j in range(8):
                r = R0[sg] + 4 * j
                A(f"v_xor_b32 v2, s101, v{r+1}\nv_xor_b32 v3, s101, v{r+3}\nv_or3_b32 v1, v1, v2, v3")
        A(f"v_cmp_ne_u32 vcc, 0, v1\ns_cbranch_vccnz {lr}")
        self.tail.append(f"{lr}:\ns_sub_u32 s{sTO}, s{sTO}, 1\ns_cbranch_scc1 L_end\ns_branch {lp}")
        self.red8([120, 122])
        self.lnstats(120, 122, 124, 125, 126)
        for sg in range(3):
            r = R0[sg]
            for i in range(4): A(f"v_add_f32 v{r+2*i}, v{r+2*i}, v{r+8+2*i}\nv_add_f32 v{r+16+2*i}, v{r+16+2*i}, v{r+24+2*i}")
            self.treduce(r, r + 2, r + 4, r + 6); self.treduce(r + 16, r + 18, r + 20, r + 22)
            A(f"""ds_write_b32 v74, v{r+16} offset:{L_CQ + 256*sg}
            v_fma_f32 v{r}, -v124, v{r+16}, v{r}
            v_mul_f32 v{r}, v{r}, v125
            v_cvt_pk_bf16_f32 v{r}, 0, v{r}
            ds_write_b16_d16_hi v73, v{r} offset:{L_QL + 128*sg}""")
        A(f"""v_mov_b32 v4, 1
        v_mov_b32 v5, {L_FL}
        v_mov_b32 v6, s101
        ds_write_b32 v5, v6 offset:8
        s_waitcnt lgkmcnt(0)
        ds_write_b32 v5, v4""")
        self.end(l)
        self.stamp(2, both=False)
        A("s_setprio 0")
        self.kv_loads(L2)
        self.attn_pre()
        lw2 = self.lab("wq")
        A(f"""L_wait_q:
        v_mov_b32 v5, {L_FL}
        ds_read_b32 v4, v5
        s_waitcnt lgkmcnt(0)
        v_cmp_eq_u32 vcc, 0, v4
        s_cbranch_vccnz {lw2}""")
        self.tail.append(f"{lw2}:\ns_sleep 4\ns_sub_u32 s{sTO}, s{sTO}, 1\ns_cbranch_scc1 L_end\ns_branch L_wait_q")

    def attention(self):
        A = self.A
        A("L_attn:")
        for s in range(3): A(f"ds_read_b128 {vr(4+4*s)}, v86 offset:{L_QL + 128*s}")
        A(f"""s_mul_i32 s{sA}, s{sV}, 6144
        s_add_u32 s{sA}, s{sA}, {L_VP}
        v_lshl_add_u32 v87, v0, 4, s{sA}
        s_waitcnt vmcnt(24) lgkmcnt(0)""")
        self.stamp(3)
        def extract(g):
            d = 16 + 4 * g
            return [f"v_add_f32_dpp v{d}, v{d+1}, v{d} quad_perm:[1,0,3,2] row_mask:0xf bank_mask:0x3",
                    f"v_add_f32_dpp v{d}, v{d+3}, v{d+2} quad_perm:[1,0,3,2] row_mask:0xf bank_mask:0xc",
                    f"v_cvt_pk_bf16_f32 v{d}, 0, v{d}",
                    f"v_mul_f32 v{d}, s{sSCALE}, v{d}",
                    f"v_cvt_pk_bf16_f32 v{d}, 0, v{d}",
                    f"v_mul_f32 v{d}, s{sLOG2E}, v{d}",
                    f"v_mov_b32_dpp v{16+g}, v{d} quad_perm:[0,0,2,2] row_mask:0xf bank_mask:0xf"]
        pend = []
        for g in range(8):
            if g >= 3: pend += extract(g - 3)
            for s in range(3):
                c = "0" if s == 0 else vr(16 + 4 * g)
                A(f"v_mfma_f32_16x16x32_bf16 {vr(16+4*g)}, {ar((g*3+s)*4)}, {vr(4+4*s)}, {c}")
                for _ in range(2):
                    if pend: A(pend.pop(0))
        A("s_waitcnt vmcnt(18)")
        for i in range(6): A(f"ds_read_b128 {vr(48+4*i)}, v87 offset:{1024*i}")
        for x in pend: A(x)
        e = [extract(g) for g in (5, 6, 7)]
        for k in range(7):
            for j in range(3): A(e[j][k])
        A(f"""v_max3_f32 v24, v16, v17, v18
        v_max3_f32 v25, v19, v20, v21
        v_max3_f32 v24, v24, v22, v23
        v_max_f32 v24, v24, v25
        v_max_f32_dpp v24, v24, v24 row_ror:8 row_mask:0xf bank_mask:0xf
        v_max_f32_dpp v24, v24, v24 row_bcast:15 row_mask:0xa bank_mask:0xf
        v_max_f32_dpp v24, v24, v24 row_bcast:31 row_mask:0xc bank_mask:0xf
        v_readlane_b32 s{sM}, v24, 63""")
        for g in range(8): A(f"v_subrev_f32 v{16+g}, s{sM}, v{16+g}")
        for g in range(8): A(f"v_exp_f32 v{16+g}, v{16+g}")
        lsum = ["v_add_f32 v40, v16, v17", "v_add_f32 v41, v18, v19", "v_add_f32 v42, v20, v21", "v_add_f32 v43, v22, v23",
                "v_add_f32 v40, v40, v41", "v_add_f32 v42, v42, v43", "v_add_f32 v41, v40, v42",
                "v_add_f32_dpp v41, v41, v41 row_ror:8 row_mask:0xf bank_mask:0xf",
                "v_add_f32_dpp v41, v41, v41 row_bcast:15 row_mask:0xa bank_mask:0xf",
                "v_add_f32_dpp v41, v41, v41 row_bcast:31 row_mask:0xc bank_mask:0xf"]
        def abuild(g):
            b = 24 + 4 * (g % 3)
            return [f"v_cvt_pk_bf16_f32 v{36+(g&1)}, v{16+g}, v{16+g}"] + [f"v_and_b32 v{b+i}, v{36+(g&1)}, v{76+i}" for i in range(4)]
        for x in abuild(0): A(x)
        A("s_waitcnt lgkmcnt(0)")
        for g in range(8):
            nxt = abuild(g + 1) if g < 7 else []
            if g >= 2: A(f"s_waitcnt vmcnt({18 - 3*(g-1)})")
            b = 24 + 4 * (g % 3)
            for s in range(3):
                c = "0" if g == 0 else vr(4 + 4 * s)
                vv = vr(48 + (3 * g + s) * 4) if g < 2 else vr(VBASE + ((g - 2) * 3 + s) * 4)
                A(f"v_mfma_f32_16x16x32_bf16 {vr(4+4*s)}, {vr(b)}, {vv}, {c}")
                for _ in range(2):
                    if nxt: A(nxt.pop(0))
                    elif lsum and g < 7: A(lsum.pop(0))
            if g == 0:
                A(f"""v_and_b32 v1, 7, v0
                v_lshlrev_b32 v1, 5, v1
                v_bfe_u32 v2, v0, 4, 1
                v_lshl_add_u32 v1, v2, 4, v1
                v_lshrrev_b32 v2, 5, v0
                v_mul_u32_u24 v2, 768, v2
                s_mul_i32 s{sA}, s{sV}, 1536
                v_add3_u32 v38, v1, v2, s{sA}
                s_lshl_b32 s{sA}, s{sV}, 2
                v_mov_b32 v39, s{sA}
                v_mov_b32 v44, s{sM}""")
        for x in lsum: A(x)
        self.exec_mask(1 << 63)
        A(f"ds_write_b32 v39, v44 offset:{L_ML}\nds_write_b32 v39, v41 offset:{L_ML+32}")
        self.exec_mask(0xFF00FF0000FF00FF)
        for s in range(3): A(f"ds_write_b128 v38, {vr(4+4*s)} offset:{L_OC + 256*s}")
        self.exec_full()
        A(f"""v_lshrrev_b32 v1, 4, v0
        v_and_b32 v2, 15, v0
        v_mul_u32_u24 v40, 3072, v1
        v_lshl_add_u32 v40, v2, 4, v40
        s_and_b32 s{sA}, s{sV}, 3
        s_lshl_b32 s{sA}, s{sA}, 8
        v_add_u32 v40, s{sA}, v40
        v_lshlrev_b32 v41, 3, v1
        v_mov_b32 v42, 0
        s_mul_i32 s{sB}, s{sSIG}, {OSL}
        s_add_u32 s{sA}, s{sA}, s{sB}
        v_lshlrev_b32 v43, 4, v2
        v_lshl_add_u32 v43, v1, 2, v43
        v_add_u32 v43, s{sA}, v43
        v_mov_b32 v45, s{sB}
        v_and_b32 v46, 7, v0
        v_lshlrev_b32 v46, 2, v46
        s_mul_i32 s{sE}, s{sP}, {RO[1]-RO[0]}
        s_waitcnt lgkmcnt(0)""")
        l = self.lab("nochk"); lp = self.lab("chk"); lr = self.lab("chkr")
        A(f"""s_or_b32 s{sA}, s{sP}, s{sV}
        s_cmp_eq_u32 s{sA}, 0
        s_cbranch_scc0 {l}
        v_mov_b32 v1, {L_FL}
        ds_read_b32 v2, v1 offset:8
        v_lshlrev_b32 v3, 9, v0
        s_getreg_b32 s99, hwreg(HW_REG_XCC_ID, 0, 4)
        s_mov_b32 s{sA}, {RF}
        {lp}:
        buffer_load_dwordx2 v[4:5], v3, {srd(SWS)}, s{sA} offen sc1
        buffer_load_dwordx2 v[6:7], v3, {srd(SWS)}, s{sA} offen offset:128 sc1
        buffer_load_dwordx2 v[8:9], v3, {srd(SWS)}, s{sA} offen offset:256 sc1
        buffer_load_dwordx2 v[10:11], v3, {srd(SWS)}, s{sA} offen offset:384 sc1
        s_waitcnt vmcnt(0) lgkmcnt(0)
        v_xor_b32 v4, v4, v2
        v_xor_b32 v6, v6, v2
        v_xor_b32 v8, v8, v2
        v_xor_b32 v10, v10, v2
        v_or3_b32 v4, v4, v6, v8
        v_or_b32 v4, v4, v10
        v_cmp_ne_u32 vcc, 0, v4
        s_cbranch_vccnz {lr}
        v_xor_b32 v5, s99, v5
        v_xor_b32 v7, s99, v7
        v_xor_b32 v9, s99, v9
        v_xor_b32 v11, s99, v11
        v_or3_b32 v5, v5, v7, v9
        v_or_b32 v5, v5, v11
        v_cmp_eq_u32 vcc, 0, v5
        s_lshl_b32 s{sB}, s{sX}, 3
        s_lshr_b64 s[90:91], vcc, s{sB}
        s_and_b32 s90, s90, 0xff
        s_cmp_eq_u32 s90, 0xff
        s_cselect_b32 s{sA}, 1, 0
        v_mov_b32 v4, s{sA}
        ds_write_b32 v1, v4 offset:12
        s_cmp_eq_u32 s2, 0
        s_cbranch_scc0 L_noepoch
        v_mov_b32 v3, 0
        s_mov_b32 s{sA}, {RE}
        s_mov_b64 exec, 1
        buffer_store_dword v2, v3, {srd(SWS)}, s{sA} offen sc1
        s_mov_b64 exec, -1
        L_noepoch:
        s_mov_b32 s{sE}, 0
        s_waitcnt lgkmcnt(0)
        {l}:""")
        self.tail.append(f"{lr}:\ns_sleep {self.o['bsleep']}\ns_sub_u32 s{sTO}, s{sTO}, 1\ns_cbranch_scc1 L_end\ns_branch {lp}")
        self.stamp(4)
        self.barrier()
        l = self.lab("nofr")
        A(f"""s_cmp_eq_u32 s{sP}, 0
        s_cbranch_scc0 {l}
        v_mov_b32 v1, {L_FL}
        ds_read_b32 v2, v1 offset:12
        s_waitcnt lgkmcnt(0)
        v_readfirstlane_b32 s{sFAST}, v2
        {l}:""")
        l = self.role(R_456)
        A(f"""ds_read_b128 v[4:7], v42 offset:{L_ML}
        ds_read_b128 v[8:11], v42 offset:{L_ML+16}
        ds_read_b64 v[12:13], v41 offset:{L_ML}
        ds_read_b128 v[16:19], v40 offset:{L_OC}
        ds_read_b128 v[20:23], v40 offset:{L_OC+768}
        ds_read_b128 v[24:27], v40 offset:{L_OC+1536}
        ds_read_b128 v[28:31], v40 offset:{L_OC+2304}
        s_waitcnt lgkmcnt(4)
        v_max3_f32 v4, v4, v5, v6
        v_max3_f32 v8, v8, v9, v10
        v_max3_f32 v4, v4, v7, v11
        v_max_f32 v4, v4, v8
        v_sub_f32 v12, v12, v4
        v_sub_f32 v13, v13, v4
        v_exp_f32 v12, v12
        v_exp_f32 v13, v13
        s_waitcnt lgkmcnt(0)""")
        for i in range(4): A(f"v_add_f32 v{16+i}, v{16+i}, v{20+i}\nv_add_f32 v{24+i}, v{24+i}, v{28+i}")
        for i in range(4): A(f"v_mul_f32 v{16+i}, v12, v{16+i}")
        for i in range(4): A(f"v_fmac_f32 v{16+i}, v13, v{24+i}")
        self.treduce(16, 17, 18, 19)
        self.stores(f"buffer_store_dword v16, v43, {srd(SWS)}, s{sE} offen{{f}}", True)
        self.end(l)
        l = self.role(R_7)
        A(f"""ds_read_b32 v4, v46 offset:{L_ML}
        ds_read_b32 v5, v46 offset:{L_ML+32}
        s_waitcnt lgkmcnt(1)
        v_max_f32_dpp v6, v4, v4 quad_perm:[1,0,3,2] row_mask:0xf bank_mask:0xf
        v_max_f32_dpp v6, v6, v6 quad_perm:[2,3,0,1] row_mask:0xf bank_mask:0xf
        v_max_f32_dpp v6, v6, v6 row_half_mirror row_mask:0xf bank_mask:0xf
        v_sub_f32 v4, v4, v6
        v_exp_f32 v4, v4
        s_waitcnt lgkmcnt(0)
        v_mul_f32 v7, v4, v5""")
        self.red8([7])
        self.exec_mask(1)
        self.stores(f"buffer_store_dwordx2 v[6:7], v45, {srd(SWS)}, s{sE} offen offset:768{{f}}", True)
        self.exec_full()
        self.end(l)

    def pub_addr(self, d):
        self.A(f"""s_mul_i32 s{sA}, s{sSIG}, 640
        s_lshl_b32 s{sB}, s{sV}, 8
        s_add_u32 s{sA}, s{sA}, s{sB}
        v_lshl_add_u32 v{d}, v0, 4, s{sA}
        s_cmp_eq_u32 s{sV}, 2
        s_cselect_b32 s{sC}, 8, 16
        s_bfm_b32 s{sC}, s{sC}, 0
        s_and_b32 s{sC}, s{sC}, s{sFULL}""")

    def wo_stage(self):
        A = self.A
        l = self.role(R_LT3)
        self.tr_addr(72, 80, 1)
        A(f"s_lshl_b32 s{sA}, s{sV}, 5\ns_add_u32 s{sA}, s{sA}, {L_WO}\nv_add_u32 v72, s{sA}, v72")
        for s in range(12): self.wfrag32(4 + 4 * s, 72, s * 32 * 80, 80)
        self.end(l)
        self.sync(self.o['sync_o'])
        l = self.role(R_LT6)
        A(f"""s_cmp_ge_u32 s{sV}, 3
        s_cselect_b32 s{sA}, 1, 0              ; hh
        s_mul_i32 s{sB}, s{sA}, 3
        s_sub_u32 s{sB}, s{sV}, s{sB}          ; seg
        s_and_b32 s{sC}, s{sSIG}, 0xf0
        s_lshl_b32 s{sD}, s{sA}, 3
        s_add_u32 s{sC}, s{sC}, s{sD}
        s_mul_i32 s{sC}, s{sC}, {OSL}
        v_lshrrev_b32 v1, 4, v0
        v_and_b32 v2, 15, v0
        v_mul_u32_u24 v72, {2*OSL}, v1
        v_add_u32 v72, s{sC}, v72
        s_lshl_b32 s{sD}, s{sB}, 8
        v_lshl_add_u32 v73, v2, 4, v72
        v_add_u32 v73, s{sD}, v73
        s_mul_i32 s{sA}, s{sA}, 384
        s_lshl_b32 s{sB}, s{sB}, 7
        s_add_u32 s{sA}, s{sA}, s{sB}
        v_mul_u32_u24 v74, {OS}, v1
        v_lshl_add_u32 v74, v2, 3, v74
        v_add_u32 v74, s{sA}, v74""")
        self.poll(f"""buffer_load_dwordx2 v[52:53], v72, {srd(SWS)}, s{sE} offen offset:768 sc1
        buffer_load_dwordx2 v[54:55], v72, {srd(SWS)}, s{sE} offen offset:{768+OSL} sc1
        buffer_load_dwordx4 v[56:59], v73, {srd(SWS)}, s{sE} offen sc1
        buffer_load_dwordx4 v[60:63], v73, {srd(SWS)}, s{sE} offen offset:{OSL} sc1""", range(52, 64), 64)
        self.stamp(5)
        A(f"""v_max_f32 v64, v52, v54
        v_sub_f32 v52, v52, v64
        v_sub_f32 v54, v54, v64
        v_exp_f32 v52, v52
        v_exp_f32 v54, v54
        v_mul_f32 v53, v52, v53
        v_fmac_f32 v53, v54, v55
        v_rcp_f32 v53, v53
        v_mul_f32 v52, v52, v53
        v_mul_f32 v54, v54, v53""")
        for i in range(4): A(f"v_mul_f32 v{56+i}, v52, v{56+i}")
        for i in range(4): A(f"v_fmac_f32 v{56+i}, v54, v{60+i}")
        A(f"""v_cvt_pk_bf16_f32 v56, v56, v57
        v_cvt_pk_bf16_f32 v57, v58, v59
        ds_write_b64 v74, v[56:57] offset:{L_OA}""")
        self.end(l)
        A(f"""v_and_b32 v1, 3, v0
        v_lshrrev_b32 v2, 4, v0
        v_mul_u32_u24 v1, {OS}, v1
        v_lshl_add_u32 v86, v2, 4, v1""")
        self.pub_addr(87)
        A(f"s_mul_i32 s{sE}, s{sP}, {RX[1]-RX[0]}\ns_add_u32 s{sE}, s{sE}, {RX[0]}\ns_waitcnt lgkmcnt(0)")
        self.barrier()
        l = self.role(R_LT3)
        for s in range(6): A(f"ds_read_b128 {vr(52+4*s)}, v86 offset:{L_OA + 64*s}")
        for s in range(12):
            A(f"s_waitcnt lgkmcnt({5 if s < 7 else 11 - s})")
            c = "0" if s == 0 else "v[76:79]"
            A(f"v_mfma_f32_16x16x32_bf16 v[76:79], {vr(52+4*(s%6))}, {vr(4+4*s)}, {c}")
            if s < 6: A(f"ds_read_b128 {vr(52+4*s)}, v86 offset:{L_OA + 64*(s+6)}")
        A(f"s_mov_b32 exec_lo, s{sC}\ns_mov_b32 exec_hi, 0")
        self.stores(f"buffer_store_dwordx4 v[76:79], v87, {srd(SWS)}, s{sE} offen{{f}}", False)
        self.exec_full()
        self.end(l)
        self.stamp(6)

    def x_gather_pre(self):
        self.A(f"""s_and_b32 s{sA}, s{sT}, 7
        s_mul_i32 s{sA}, s{sA}, 1280
        s_lshl_b32 s{sB}, s{sV}, 8
        s_add_u32 s{sA}, s{sA}, s{sB}
        v_lshrrev_b32 v1, 4, v0
        v_and_b32 v2, 15, v0
        v_mul_u32_u24 v76, 10240, v1
        v_lshl_add_u32 v76, v2, 4, v76
        v_add_u32 v76, s{sA}, v76
        s_add_u32 s{sB}, s{sE}, 40960
        s_add_u32 s{sC}, s{sE}, 81920
        s_add_u32 s{sD}, s{sE}, 122880
        v_mul_u32_u24 v77, {XS}, v1
        v_lshl_add_u32 v77, v2, 1, v77
        s_lshl_b32 s{sA}, s{sV}, 5
        v_add_u32 v77, s{sA}, v77""")
    def x_gather(self):
        self.poll("\n".join(f"buffer_load_dwordx4 {vr(56+4*i)}, v76, {srd(SWS)}, s{r} offen sc1" for i, r in enumerate((sE, sB, sC, sD))), range(56, 72), 78)
        for i in range(4): self.A(f"v_add_f32 v{56+i}, v{56+i}, v{60+i}\nv_add_f32 v{64+i}, v{64+i}, v{68+i}")
        for i in range(4): self.A(f"v_add_f32 v{56+i}, v{56+i}, v{64+i}")
        self.treduce(56, 57, 58, 59)
        self.rnd(56, 56)

    def gu_stage(self):
        A = self.A
        self.tr_addr(46, 96, 1)
        A(f"""s_cmp_ge_u32 s{sV}, 3
        s_cselect_b32 s{sA}, {L_WU - L_WG - 96}, 0
        s_lshl_b32 s{sB}, s{sV}, 5
        s_add_u32 s{sA}, s{sA}, s{sB}
        v_add_u32 v46, s{sA}, v46
        v_add_u32 v47, s{sA}, v47""")
        l = self.role(R_LT6)
        self.wfrag32(16, 46, L_WG, 96); self.wfrag32(20, 46, L_WG + 32 * 96, 96)
        A(f"ds_read_b64_tr_b16 v[24:25], v47 offset:{L_WG + 64*96}")
        self.end(l)
        self.xa_addr()
        A(f"""s_lshl_b32 s{sA}, s{sSIG}, 11
        s_lshl_b32 s{sB}, s{sV}, 8
        s_add_u32 s{sB}, s{sB}, s{sA}
        v_lshl_add_u32 v72, v0, 4, s{sB}
        s_lshl_b32 s{sB}, s{sV}, 6
        s_add_u32 s{sB}, s{sB}, s{sA}
        v_lshl_add_u32 v26, v0, 2, s{sB}
        v_lshrrev_b32 v1, 4, v0
        v_lshl_add_u32 v73, v1, 4, s{sA}""")
        self.x_gather_pre()
        self.sync(self.o['sync_x'])
        l = self.role(R_LT5)
        self.x_gather()
        self.stamp(7)
        A(f"""v_add_f32 v{vXR}, v{vXR}, v56
        v_cvt_pk_bf16_f32 v{vXR}, 0, v{vXR}
        ds_write_b16_d16_hi v77, v{vXR} offset:{L_XA}""")
        self.end(l)
        A(f"s_mul_i32 s{sE}, s{sP}, {RG[1]-RG[0]}\ns_add_u32 s{sE}, s{sE}, {RG[0]}\ns_waitcnt lgkmcnt(0)")
        self.barrier()
        self.xfrags()
        l = self.role(R_LT6)
        A(f"""s_waitcnt lgkmcnt(2)
        v_mfma_f32_16x16x32_bf16 v[56:59], v[4:7], v[16:19], 0
        s_waitcnt lgkmcnt(1)
        v_mfma_f32_16x16x32_bf16 v[56:59], v[8:11], v[20:23], v[56:59]
        s_waitcnt lgkmcnt(0)
        v_mfma_f32_16x16x16_bf16 v[56:59], v[12:13], v[24:25], v[56:59]""")
        self.exec_mask(0xffff)
        self.stores(f"buffer_store_dwordx4 v[56:59], v72, {srd(SWS)}, s{sE} offen{{f}}", True)
        self.exec_mask(0xffff0000)
        self.stores(f"buffer_store_dword v56, v26, {srd(SWS)}, s{sE} offen offset:{1536-64}{{f}}", True)
        self.exec_full()
        self.end(l)
        l = self.role(R_6)
        self.gram_reads(); A("s_waitcnt lgkmcnt(0)"); self.gram_mfma()
        self.exec_mask(1 | 1 << 17 | 1 << 34 | 1 << 51)
        self.stores(f"buffer_store_dwordx4 v[68:71], v73, {srd(SWS)}, s{sE} offen offset:1920{{f}}", True)
        self.exec_full()
        self.end(l)
        self.stamp(8)

    def down_stage(self):
        A = self.A
        l = self.role(R_LT3)
        self.tr_addr(72, 80, 1)
        A(f"s_lshl_b32 s{sA}, s{sV}, 5\nv_add_u32 v72, s{sA}, v72")
        for s in range(3): self.wfrag32(4 + 4 * s, 72, L_WD + s * 32 * 80, 80)
        self.end(l)
        self.sync(self.o['sync_g'])
        l = self.role(R_LT6)
        A(f"""s_cmp_ge_u32 s{sV}, 3
        s_cselect_b32 s{sA}, 1, 0              ; i/3
        s_mul_i32 s{sB}, s{sA}, 3
        s_sub_u32 s{sB}, s{sV}, s{sB}          ; i%3
        s_and_b32 s{sC}, s{sSIG}, 0xf0
        s_lshl_b32 s{sA}, s{sA}, 3
        s_add_u32 s{sC}, s{sC}, s{sA}
        s_lshl_b32 s{sC}, s{sC}, 11
        v_lshrrev_b32 v1, 4, v0
        v_and_b32 v2, 15, v0
        v_lshl_add_u32 v3, v1, 11, s{sC}
        s_lshl_b32 s{sA}, s{sB}, 8
        v_lshl_add_u32 v72, v2, 4, v3
        v_add_u32 v72, s{sA}, v72
        s_lshl_b32 s{sA}, s{sB}, 6
        v_lshl_add_u32 v73, v2, 2, v3
        v_add_u32 v73, s{sA}, v73
        v_and_b32 v3, 7, v0
        v_lshl_add_u32 v74, v3, 11, s{sC}
        v_lshl_add_u32 v74, v1, 4, v74
        s_add_u32 s{sF}, s{sE}, 8192
        v_mul_u32_u24 v75, {HS}, v1
        v_lshl_add_u32 v75, v2, 1, v75
        s_lshl_b32 s{sA}, s{sV}, 5
        v_add_u32 v75, s{sA}, v75""")
        self.poll(f"""buffer_load_dwordx4 v[32:35], v74, {srd(SWS)}, s{sE} offen offset:1920 sc1
        buffer_load_dwordx4 v[16:19], v72, {srd(SWS)}, s{sE} offen sc1
        buffer_load_dwordx4 v[20:23], v72, {srd(SWS)}, s{sF} offen sc1
        buffer_load_dwordx4 v[24:27], v72, {srd(SWS)}, s{sE} offen offset:768 sc1
        buffer_load_dwordx4 v[28:31], v72, {srd(SWS)}, s{sF} offen offset:768 sc1
        buffer_load_dword v36, v73, {srd(SWS)}, s{sE} offen offset:1536 sc1
        buffer_load_dword v37, v73, {srd(SWS)}, s{sF} offen offset:1536 sc1
        buffer_load_dword v38, v73, {srd(SWS)}, s{sE} offen offset:1728 sc1
        buffer_load_dword v39, v73, {srd(SWS)}, s{sF} offen offset:1728 sc1""", range(16, 40), 40)
        self.stamp(9)
        self.red8([32, 33, 34, 35])
        A("v_add_f32 v36, v36, v37\nv_add_f32 v38, v38, v39")
        for i in range(4): A(f"v_add_f32 v{16+i}, v{16+i}, v{20+i}\nv_add_f32 v{24+i}, v{24+i}, v{28+i}")
        A(f"""v_permlane32_swap_b32 v36, v38
        v_add_f32 v36, v36, v38
        v_mov_b32 v38, v36
        v_permlane16_swap_b32 v36, v38
        v_add_f32 v{vCG}, v36, v38
        v_mov_b32 v{vCU}, v{vCG}
        v_permlane32_swap_b32 v{vCG}, v{vCU}""")
        self.lnstats(32, 33, 40, 41, 42)
        self.treduce(16, 17, 18, 19); self.treduce(24, 25, 26, 27)
        A(f"""v_fma_f32 v16, -v40, v{vCG}, v16
        v_fma_f32 v24, -v40, v{vCU}, v24
        v_mul_f32 v16, v16, v41
        v_mul_f32 v24, v24, v41
        v_cvt_pk_bf16_f32 v16, 0, v16
        v_cvt_pk_bf16_f32 v24, 0, v24
        v_mul_f32 v17, s{sLOG2E}, v16
        v_exp_f32 v17, -v17
        v_add_f32 v17, 1.0, v17
        v_rcp_f32 v17, v17
        v_mul_f32 v16, v16, v17
        v_cvt_pk_bf16_f32 v16, 0, v16
        v_mul_f32 v16, v16, v24
        v_cvt_pk_bf16_f32 v16, 0, v16
        ds_write_b16_d16_hi v75, v16 offset:{L_HA}""")
        self.end(l)
        A(f"""v_and_b32 v1, 3, v0
        v_lshrrev_b32 v2, 4, v0
        v_mul_u32_u24 v1, {HS}, v1
        v_lshl_add_u32 v86, v2, 4, v1""")
        self.pub_addr(87)
        A(f"s_mul_i32 s{sE}, s{sP}, {RY[1]-RY[0]}\ns_add_u32 s{sE}, s{sE}, {RY[0]}\ns_waitcnt lgkmcnt(0)")
        self.barrier()
        l = self.role(R_LT3)
        for s in range(3): A(f"ds_read_b128 {vr(52+4*s)}, v86 offset:{L_HA + 64*s}")
        for s in range(3):
            c = "0" if s == 0 else "v[76:79]"
            A(f"s_waitcnt lgkmcnt({2-s})\nv_mfma_f32_16x16x32_bf16 v[76:79], {vr(52+4*s)}, {vr(4+4*s)}, {c}")
        A(f"s_mov_b32 exec_lo, s{sC}\ns_mov_b32 exec_hi, 0")
        self.stores(f"buffer_store_dwordx4 v[76:79], v87, {srd(SWS)}, s{sE} offen{{f}}", False)
        self.exec_full()
        self.end(l)
        self.stamp(10)
        A(f"""v_fma_f32 v34, -v40, v35, v34
        v_mul_f32 v34, v34, v41
        v_cvt_pk_bf16_f32 v34, 0, v34
        v_mul_f32 v34, s{sLOG2E}, v34
        v_exp_f32 v34, -v34
        v_sub_f32 v{vXN}, v{vXR}, v40
        v_add_f32 v34, 1.0, v34
        v_rcp_f32 v34, v34
        v_cvt_pk_bf16_f32 v{vXN}, 0, v{vXN}
        v_cvt_pk_bf16_f32 v{vSG}, 0, v34
        v_mul_f32 v{vXN}, v{vXN}, v41
        v_cvt_pk_bf16_f32 v{vXN}, 0, v{vXN}""")

    def y_finish(self):
        self.A(f"""v_mul_f32 v56, v56, v{vSG}
        v_cvt_pk_bf16_f32 v56, 0, v56
        v_add_f32 v56, v{vXN}, v56
        v_cvt_pk_bf16_f32 v56, 0, v56
        v_add_f32 v{vXR}, v{vXR}, v56
        v_cvt_pk_bf16_f32 v{vXR}, 0, v{vXR}""")

    def q_stage_and_final(self):
        A = self.A
        A(f"s_cmp_eq_u32 s{sP}, 1\ns_cbranch_scc1 L_final")
        l = self.role(R_GE4); self.q_wpre(); self.end(l)
        self.x_gather_pre()
        self.sync(self.o['sync_y'])
        l = self.role(R_LT5)
        self.x_gather()
        self.stamp(11)
        self.y_finish()
        A(f"ds_write_b16_d16_hi v77, v{vXR} offset:{L_XA}")
        self.end(l)
        A(f"s_mov_b32 s{sE}, {RQ[1]}\ns_waitcnt lgkmcnt(0)")
        self.barrier()
        l = self.role(R_GE4); self.q_mfma(sE, True); self.end(l)
        self.attn_pre()
        self.sync(self.o['sync_q'])
        l = self.role(R_456); self.q_gather(); self.end(l)
        A(f"s_mov_b32 s{sP}, 1")
        if self.o['dry']: A(f"s_cmp_eq_u32 s{sDRY}, 1\ns_cbranch_scc1 L_final_body")
        self.barrier()
        A("s_branch L_attn")
        A(f"""L_final:
        s_cmp_eq_u32 s{sT}, s{sX}
        s_cbranch_scc0 L_done
        L_final_body:""")
        self.x_gather_pre()
        self.sync(self.o['sync_y'])
        l = self.role(R_LT5)
        A(f"""v_lshrrev_b32 v1, 4, v0
        v_mul_u32_u24 v1, 1280, v1
        v_and_b32 v2, 15, v0
        v_lshl_add_u32 v77, v2, 1, v1
        s_lshl_b32 s{sF}, s{sV}, 5""")
        self.x_gather()
        self.y_finish()
        self.mem(f"buffer_store_short_d16_hi v{vXR}, v77, {srd(SOUT)}, s{sF} offen")
        self.end(l)
        if self.o['dry']: A(f"s_cmp_eq_u32 s{sDRY}, 1\ns_cbranch_scc1 L_dry_ret")
        A("L_done:")
        self.stamp(11)
        A("L_end:")
        if self.prof:
            A(f"""s_mov_b64 exec, -1
            s_lshl_b32 s{sA}, s2, 3
            s_add_u32 s{sA}, s{sA}, s{sV}
            s_lshl_b32 s{sA}, s{sA}, 7
            s_add_u32 s{sA}, s{sA}, {STAMP}
            v_mov_b32 v1, 0""")
            for i in range(24): A(f"v_mov_b32 v{4+i}, s{sST+i}")
            A(f"v_mov_b32 v28, s{sFAST}\nv_mov_b32 v29, s{sTO}\nv_mov_b32 v30, 0\nv_mov_b32 v31, 0\ns_mov_b64 exec, 1")
            for i in range(7): A(f"buffer_store_dwordx4 {vr(4+4*i)}, v1, {srd(SWS)}, s{sA} offen offset:{16*i}")
        A("L_exit:\ns_endpgm")

    def build(self):
        self.prologue(); self.startup(); self.attention(); self.wo_stage(); self.gu_stage(); self.down_stage(); self.q_stage_and_final()
        for t in self.tail: self.A(t)
        body, nn = resolve(self.L)
        hdr = open('interleave_layers__sliding_block_cached__moe_arch_mod__decode.s.ref').read().split('\n')
        hl = [l for l in hdr if l.startswith(';') and '@launch' not in l and not l.startswith(';   ;')]
        hl = hl[:hl.index([l for l in hl if 'Override launch' in l][0])]
        out = hl + [f"; @launch grid=(256,1,1) block=(512,1,1) lds={LDS_SIZE}",
                    '.amdgcn_target "amdgcn-amd-amdhsa--gfx950"', ".text", f".globl {NAME}", ".p2align 8", f".type {NAME},@function", f"{NAME}:"]
        out += [("" if l.endswith(':') else "    ") + l for l in body]
        out += ['.section .rodata,"a"', ".p2align 6", f".amdhsa_kernel {NAME}",
                "  .amdhsa_next_free_vgpr 256", "  .amdhsa_next_free_sgpr 102", "  .amdhsa_accum_offset 160",
                "  .amdhsa_group_segment_fixed_size 0", "  .amdhsa_kernarg_size 104", "  .amdhsa_user_sgpr_count 2",
                "  .amdhsa_user_sgpr_kernarg_segment_ptr 1", "  .amdhsa_system_sgpr_workgroup_id_x 1",
                "  .amdhsa_float_denorm_mode_32 3", ".end_amdhsa_kernel"]
        return "\n".join(out) + "\n", nn

if __name__ == "__main__":
    path = sys.argv[1]
    opts = {}; prof = False
    for a in sys.argv[2:]:
        if a == 'prof': prof = True
        else:
            k, v = a.split('=')
            opts[k] = {'True': True, 'False': False}.get(v, v)
    s, nn = G(prof, opts).build()
    open(path, 'w').write(s)
    print("wrote", path, len(s.split('\n')), "lines, nops inserted:", nn)
```

```python
import sys
from asmlib import resolve

NAME = "interleave_layers__sliding_block_cached__moe_arch_mod__decode_kernel"

OSL = 896
RO = [0, 256 * OSL]
RX = [2 * 256 * OSL, 2 * 256 * OSL + 163840]
RY = [RX[1] + 163840, RX[1] + 2 * 163840]
RG = [RY[1] + 163840, RY[1] + 163840 + 524288]
RQ = [RG[1] + 524288, RG[1] + 524288 + 2097152]
RF = RQ[1] + 1048576
RE = RF + 32768
WS_END = RE + 2048
STAMP = WS_END
WS_SIZE = WS_END + 256 * 8 * 128
L_OC = 0
L_ML = L_OC + 12288
L_XA = L_ML + 64; XS = 176
L_HA = L_XA + 6 * XS; HS = 320
L_OA = L_HA + 4 * HS; OS = 832
L_QL = L_OA + 4 * OS
L_FL = L_QL + 384
L_CQ = L_FL + 64
L_WD = L_CQ + 768
L_WG = L_WD + 7680
L_WU = L_WG + 7680
L_WO = L_WU + 7680
L_WQ = L_WO + 30720
L_VP = L_WQ + 30720
LDS_SIZE = L_VP + 8 * 6144
sW, sV, sX, sT, sP, sDRY = 2, 3, 4, 5, 6, 7
SK, SVV, SWS, SWQ, SWO, SWG, SWU, SWD, SX0, SWR, SOUT, SDBG = range(8, 56, 4)
sFAST, sROLE, sTO = 56, 57, 58
sFULL = 60
sA, sB, sC, sD, sE, sF = 62, 63, 88, 89, 90, 91
sM = 92
sLOG2E, sSCALE, sINVN, sEPS = 93, 94, 95, 59
sSIG = 98
sST = 64
R_LT3, R_LT5, R_LT6, R_GE4, R_456, R_7, R_6 = range(7)
vXR, vXN, vSG, vCG, vCU, vCQ = 80, 81, 82, 83, 84, 85
VBASE = 88

def srd(b): return f"s[{b}:{b+3}]"
def vr(a, n=4): return f"v[{a}:{a+n-1}]" if n > 1 else f"v{a}"
def ar(a, n=4): return f"a[{a}:{a+n-1}]"

class G:
    def __init__(self, prof=False, opts=None):
        self.L = []; self.tail = []; self.n = 0; self.prof = prof
        self.o = dict(dry=True, sync_o='none', sync_x='ack', sync_g='none', sync_y='ack', sync_q='none', fast=True, clear='sc1', wdma=True, wflag='nt', bsleep=8, lim=0, lim2=0, extra=False, pad=0, kvflag='nt')
        self.o.update(opts or {})
    def A(self, s):
        for l in s.split('\n'):
            l = l.strip()
            if l: self.L.append(l)
    def lab(self, p):
        self.n += 1; return f"L_{p}_{self.n}"
    def exec_mask(self, m):
        self.A(f"s_and_b32 exec_lo, s{sFULL}, 0x{m & 0xffffffff:x}\ns_and_b32 exec_hi, s{sFULL}, 0x{m >> 32:x}")
    def exec_full(self): self.A(f"s_mov_b64 exec, s[{sFULL}:{sFULL+1}]")
    def barrier(self):
        l = self.lab("nb"); self.A(f"s_cbranch_execz {l}\ns_barrier\n{l}:")
    def role(self, bit):
        l = self.lab("role"); self.A(f"s_bitcmp1_b32 s{sROLE}, {bit}\ns_cbranch_scc0 {l}"); return l
    def end(self, l): self.A(f"{l}:")
    def mem(self, lines):
        l = self.lab("nm"); self.A(f"s_cbranch_execz {l}"); self.A(lines); self.A(f"{l}:")
    def stores(self, lines, intra):
        if intra and self.o['fast']:
            l1 = self.lab("st"); l2 = self.lab("st")
            self.A(f"s_cbranch_execz {l2}\ns_cmp_eq_u32 s{sFAST}, 0\ns_cbranch_scc1 {l1}")
            self.A(lines.format(f="")); self.A(f"{l2}:")
            self.tail.append(f"{l1}:\n" + lines.format(f=" sc1") + f"\ns_branch {l2}")
        else:
            self.mem(lines.format(f=" sc1"))
    def poll(self, loads, regs, tmp):
        lp = self.lab("poll"); lr = self.lab("retry")
        self.A(f"{lp}:"); self.mem(loads)
        self.A("s_waitcnt vmcnt(0)")
        regs = list(regs)
        a, b = tmp, tmp + 1
        if len(regs) <= 3:
            if len(regs) == 2: self.A(f"v_max_u32 v{a}, v{regs[0]}, v{regs[1]}")
            else: self.A(f"v_max3_u32 v{a}, v{regs[0]}, v{regs[1]}, v{regs[2]}")
        else:
            self.A(f"v_max3_u32 v{a}, v{regs[0]}, v{regs[1]}, v{regs[2]}")
            rest = regs[3:]
            if len(rest) >= 3:
                self.A(f"v_max3_u32 v{b}, v{rest[0]}, v{rest[1]}, v{rest[2]}"); rest = rest[3:]
                cur = a
                while len(rest) >= 2:
                    self.A(f"v_max3_u32 v{cur}, v{cur}, v{rest[0]}, v{rest[1]}"); rest = rest[2:]; cur = a + b - cur
                if rest: self.A(f"v_max3_u32 v{a}, v{a}, v{b}, v{rest[0]}")
                else: self.A(f"v_max_u32 v{a}, v{a}, v{b}")
            elif len(rest) == 2: self.A(f"v_max3_u32 v{a}, v{a}, v{rest[0]}, v{rest[1]}")
            else: self.A(f"v_max_u32 v{a}, v{a}, v{rest[0]}")
        self.A(f"v_cmp_eq_u32 vcc, -1, v{a}\ns_cbranch_vccnz {lr}")
        self.tail.append(f"{lr}:\ns_sub_u32 s{sTO}, s{sTO}, 1\ns_cbranch_scc1 L_end\ns_branch {lp}")
    def stamp(self, i, both=True):
        if not self.prof: return
        self.A("s_memrealtime s[96:97]\ns_waitcnt lgkmcnt(0)")
        if both:
            self.A(f"s_cmp_eq_u32 s{sP}, 0\ns_cselect_b32 s{sST+i}, s96, s{sST+i}\ns_cselect_b32 s{sST+12+i}, s{sST+12+i}, s96")
        else:
            self.A(f"s_mov_b32 s{sST+i}, s96")
    def sync(self, kind):
        if kind == 'ack': self.A("s_waitcnt vmcnt(0)"); self.barrier()
        elif kind.startswith('sleep'): self.A(f"s_sleep {int(kind[5:])}")
        elif kind.startswith('acks'): self.A("s_waitcnt vmcnt(0)"); self.barrier(); self.A(f"s_sleep {int(kind[4:])}")
    def rnd(self, d, s): self.A(f"v_cvt_pk_bf16_f32 v{d}, 0, v{s}")
    def treduce(self, r0, r1, r2, r3):
        self.A(f"""v_permlane32_swap_b32 v{r0}, v{r2}
        v_permlane32_swap_b32 v{r1}, v{r3}
        v_add_f32 v{r0}, v{r0}, v{r2}
        v_add_f32 v{r1}, v{r1}, v{r3}
        v_permlane16_swap_b32 v{r0}, v{r1}
        v_add_f32 v{r0}, v{r0}, v{r1}""")
    def red8(self, regs):
        for perm in ("quad_perm:[1,0,3,2]", "quad_perm:[2,3,0,1]", "row_half_mirror"):
            for r in regs: self.A(f"v_add_f32_dpp v{r}, v{r}, v{r} {perm} row_mask:0xf bank_mask:0xf")
    def lnstats(self, sq, sm, m, rs, t):
        self.A(f"""v_mul_f32 v{sm}, s{sINVN}, v{sm}
        v_mul_f32 v{sq}, s{sINVN}, v{sq}
        v_fma_f32 v{t}, -v{sm}, v{sm}, v{sq}
        v_cvt_pk_bf16_f32 v{m}, 0, v{sm}
        v_max_f32 v{t}, 0, v{t}
        v_cvt_pk_bf16_f32 v{t}, 0, v{t}
        v_add_f32 v{t}, s{sEPS}, v{t}
        v_cvt_pk_bf16_f32 v{t}, 0, v{t}
        v_sqrt_f32 v{t}, v{t}
        v_cvt_pk_bf16_f32 v{t}, 0, v{t}
        v_rcp_f32 v{rs}, v{t}""")
    def tr_addr(self, d, rs, t):
        self.A(f"""v_lshrrev_b32 v{t}, 4, v0
        v_bfe_u32 v{d}, v0, 2, 2
        v_lshl_add_u32 v{d+1}, v{t}, 2, v{d}
        v_lshl_add_u32 v{d}, v{t}, 3, v{d}
        v_mul_u32_u24 v{d}, {rs}, v{d}
        v_mul_u32_u24 v{d+1}, {rs}, v{d+1}
        v_and_b32 v{t}, 3, v0
        v_lshl_add_u32 v{d}, v{t}, 3, v{d}
        v_lshl_add_u32 v{d+1}, v{t}, 3, v{d+1}""")
    def wfrag32(self, dst, addr, off, rs):
        self.A(f"ds_read_b64_tr_b16 {vr(dst,2)}, v{addr} offset:{off}\nds_read_b64_tr_b16 {vr(dst+2,2)}, v{addr} offset:{off+4*rs}")

    def prologue(self):
        A = self.A
        A(f"""s_cmp_ge_u32 s2, 256
        s_cbranch_scc1 L_exit""")
        if int(self.o['pad']): A("s_memrealtime s[96:97]")
        A(f"""s_load_dwordx16 s[64:79], s[0:1], 0
        s_load_dwordx8 s[80:87], s[0:1], 64
        s_load_dwordx2 s[88:89], s[0:1], 96
        v_lshrrev_b32 v1, 6, v0
        v_and_b32 v0, 63, v0
        v_readfirstlane_b32 s{sV}, v1
        s_and_b32 s{sX}, s2, 7
        s_lshr_b32 s{sT}, s2, 3
        s_mov_b32 s{sP}, 0
        s_mov_b32 s{sDRY}, 0
        s_mov_b64 s[{sFULL}:{sFULL+1}], -1
        s_mov_b32 s{sTO}, 0x100000
        s_mov_b32 s{sFAST}, 0
        s_mov_b32 s{sLOG2E}, 0x3fb8aa3b
        s_mov_b32 s{sSCALE}, 0x3d93cd3a
        s_mov_b32 s{sINVN}, 0x3acccccd
        s_mov_b32 s{sEPS}, 0x3727c5ac
        s_lshl_b32 s{sSIG}, s{sX}, 5
        s_add_u32 s{sSIG}, s{sSIG}, s{sT}""")
        tab = 0
        for v in range(8):
            bits = (v < 3) << R_LT3 | (v < 5) << R_LT5 | (v < 6) << R_LT6 | (v >= 4) << R_GE4 | (4 <= v <= 6) << R_456 | (v == 7) << R_7 | (v == 6) << R_6
            tab |= bits << (8 * v)
        A(f"""s_mov_b32 s90, 0x{tab & 0xffffffff:x}
        s_mov_b32 s91, 0x{tab >> 32:x}
        s_lshl_b32 s{sA}, s{sV}, 3
        s_lshr_b64 s[90:91], s[90:91], s{sA}
        s_and_b32 s{sROLE}, s90, 0xff""")
        A(f"""s_lshr_b32 s{sA}, s{sT}, 3
        s_lshl_b32 s{sB}, s{sX}, 2
        s_add_u32 s92, s{sA}, s{sB}            ; h
        s_bfe_u32 s{sA}, s{sT}, 0x20001        ; b
        s_lshl_b32 s{sA}, s{sA}, 5
        s_add_u32 s{sA}, s{sA}, s92
        s_lshl_b32 s{sA}, s{sA}, 12
        s_and_b32 s{sB}, s{sT}, 1
        s_lshl_b32 s{sB}, s{sB}, 9
        s_add_u32 s{sA}, s{sA}, s{sB}
        s_lshl_b32 s{sB}, s{sV}, 6
        s_add_u32 s{sA}, s{sA}, s{sB}
        s_add_u32 s{sA}, s{sA}, 3072
        s_mul_i32 s{sA}, s{sA}, 384
        v_mov_b32 v2, 0
        v_mov_b32 v3, 0
        v_mov_b32 v1, {L_FL}
        ds_write_b64 v1, v[2:3]
        s_waitcnt lgkmcnt(0)
        s_barrier""")
        def mk(b, p, off, size):
            if off is None:
                A(f"s_mov_b32 s{b}, s{p}\ns_mov_b32 s{b+1}, s{p+1}\ns_mov_b32 s{b+2}, {size}")
            else:
                A(f"s_add_u32 s{b}, s{p}, s{off}\ns_addc_u32 s{b+1}, s{p+1}, 0")
                if isinstance(size, int): A(f"s_mov_b32 s{b+2}, {size}")
                else: A(f"s_sub_u32 s{b+2}, {size[0]}, s{off}")
            A(f"s_mov_b32 s{b+3}, 0x20000")
        mk(SK, 66, sA, 24576); mk(SVV, 68, sA, 24576)
        mk(SWS, 88, None, WS_SIZE)
        A(f"""s_and_b32 s90, s{sT}, 7               ; ks
        s_mul_i32 s{sA}, s90, {80*12288}
        s_mul_i32 s{sB}, s92, 384
        s_add_u32 s{sA}, s{sA}, s{sB}
        s_and_b32 s{sB}, s{sV}, 3
        s_mul_i32 s{sB}, s{sB}, 96
        s_add_u32 s{sA}, s{sA}, s{sB}""")
        mk(SWQ, 70, sA, (640 * 6144 * 2,))
        A(f"""s_lshr_b32 s{sA}, s{sT}, 4
        s_lshl_b32 s{sB}, s{sX}, 1
        s_add_u32 s91, s{sA}, s{sB}             ; P = 2x + (t>>4)
        s_mul_i32 s{sA}, s91, {384*1280}
        s_and_b32 s{sB}, s{sT}, 15
        s_mul_i32 s{sB}, s{sB}, 80
        s_add_u32 s{sA}, s{sA}, s{sB}""")
        mk(SWO, 72, sA, (6144 * 640 * 2,))
        A(f"""s_mul_i32 s{sA}, s91, {96*1280}
        s_add_u32 s{sA}, s{sA}, s{sB}""")
        mk(SWD, 82, sA, (1536 * 640 * 2,))
        A(f"""s_mul_i32 s{sA}, s90, {80*3072}
        s_mul_i32 s{sB}, s92, 96
        s_add_u32 s{sA}, s{sA}, s{sB}""")
        mk(SWG, 78, sA, (640 * 1536 * 2,)); mk(SWU, 80, sA, (640 * 1536 * 2,))
        A(f"s_mul_i32 s{sA}, s90, 160")
        mk(SX0, 64, sA, (5120,)); mk(SWR, 76, sA, (1280,)); mk(SOUT, 84, sA, (5120,))
        mk(SDBG, 86, None, 256)
        if self.prof:
            for i in range(24): A(f"s_mov_b32 s{sST+i}, 0")
        self.stamp(0, both=False)

    def thr(self, lim):
        if lim: self.A(f"s_waitcnt vmcnt({lim-1})")
    def dma60(self, srdb, vaddr, n, rows, rstride, lds0, i0=0, lim=0):
        for i in range(i0, i0 + n):
            self.thr(lim)
            self.A(f"s_add_u32 m0, s{sB}, {lds0 + i*960}\ns_mov_b32 s{sA}, {i*rows*rstride}\nbuffer_load_dwordx4 v{vaddr}, {srd(srdb)}, s{sA} offen {self.o['wflag'] if self.o['wflag'] != 'plain' else ''} lds")

    def dma_addr(self, d, cpr, rstride):
        mul = {5: 52, 6: 43}[cpr]
        self.A(f"""v_mul_u32_u24 v{d}, {mul}, v0
        v_lshrrev_b32 v{d}, 8, v{d}
        v_mul_u32_u24 v3, {cpr}, v{d}
        v_sub_u32 v3, v0, v3
        v_mul_u32_u24 v{d}, {rstride}, v{d}
        v_lshl_add_u32 v{d}, v3, 4, v{d}""")

    def kv_loads(self, lim):
        A = self.A
        KF = self.o['kvflag'].replace('plain', '').replace('_', ' ')
        A(f"""v_bfe_u32 v1, v0, 1, 3
        v_mul_u32_u24 v1, 384, v1
        v_lshrrev_b32 v3, 4, v0
        v_lshl_add_u32 v1, v3, 5, v1
        v_and_b32 v3, 1, v0
        v_lshl_add_u32 v1, v3, 4, v1
        v_lshrrev_b32 v2, 3, v0
        v_mul_u32_u24 v2, 384, v2
        v_and_b32 v3, 7, v0
        v_lshl_add_u32 v2, v3, 4, v2
        s_mul_i32 s{sB}, s{sV}, 6144""")
        if self.o['extra']:
            A(f"s_sub_u32 s{SK}, s{SK}, {1024*384}\ns_subb_u32 s{SK+1}, s{SK+1}, 0")
            for g in range(8):
                A(f"s_mov_b32 s{sA}, {g*3072}")
                for s in range(3):
                    A(f"buffer_load_dwordx4 {ar((g*3+s)*4)}, v1, {srd(SK)}, s{sA} offen offset:{s*128} {KF}")
            A(f"s_add_u32 s{SK}, s{SK}, {1024*384}\ns_addc_u32 s{SK+1}, s{SK+1}, 0")
        for g in range(8):
            A(f"s_mov_b32 s{sA}, {g*3072}")
            for s in range(3):
                self.thr(lim)
                A(f"buffer_load_dwordx4 {ar((g*3+s)*4)}, v1, {srd(SK)}, s{sA} offen offset:{s*128} {KF}")
        for g in range(8):
            for s in range(3):
                self.thr(lim)
                if g < 2:
                    A(f"s_add_u32 m0, s{sB}, {L_VP + (g*3+s)*1024}\ns_mov_b32 s{sA}, {g*3072+s*128}\nbuffer_load_dwordx4 v2, {srd(SVV)}, s{sA} offen {KF} lds")
                else:
                    if s == 0: A(f"s_mov_b32 s{sA}, {g*3072}")
                    A(f"buffer_load_dwordx4 {vr(VBASE+((g-2)*3+s)*4)}, v2, {srd(SVV)}, s{sA} offen offset:{s*128} {KF}")

    def xres_load(self):
        l = self.role(R_LT5)
        self.A(f"""v_lshrrev_b32 v1, 4, v0
        v_mul_u32_u24 v1, 1280, v1
        v_and_b32 v2, 15, v0
        v_lshl_add_u32 v1, v2, 1, v1
        s_lshl_b32 s{sA}, s{sV}, 5
        v_mov_b32 v{vXR}, 0
        buffer_load_short_d16_hi v{vXR}, v1, {srd(SX0)}, s{sA} offen""")
        self.end(l)

    def attn_pre(self):
        self.A(f"""v_lshrrev_b32 v1, 4, v0
        v_and_b32 v2, 1, v0
        v_lshl_add_u32 v86, v1, 1, v2
        v_lshlrev_b32 v86, 4, v86
        v_lshlrev_b32 v2, 4, v2
        v_mov_b32 v3, 0xffff
        v_lshlrev_b32 v3, v2, v3
        v_bfe_u32 v2, v0, 1, 2""")
        for i in range(4):
            self.A(f"v_cmp_eq_u32 vcc, {i}, v2\nv_cndmask_b32 v{76+i}, 0, v3, vcc")

    def q_wpre(self):
        self.tr_addr(46, 96, 1)
        self.A(f"s_and_b32 s{sA}, s{sV}, 3\ns_mul_i32 s{sA}, s{sA}, 7680\ns_add_u32 s{sA}, s{sA}, {L_WQ}\nv_add_u32 v46, s{sA}, v46\nv_add_u32 v47, s{sA}, v47")
        for t in range(3):
            self.wfrag32(16 + 10 * t, 46, t * 32, 96)
            self.wfrag32(20 + 10 * t, 46, t * 32 + 32 * 96, 96)
            self.A(f"ds_read_b64_tr_b16 {vr(24+10*t,2)}, v47 offset:{t*32 + 64*96}")
        self.xa_addr()
        self.A(f"""v_and_b32 v1, 15, v0
        v_mul_u32_u24 v72, 768, v1
        v_lshrrev_b32 v1, 4, v0
        v_lshl_add_u32 v72, v1, 4, v72
        s_and_b32 s{sA}, s{sV}, 3
        s_mul_i32 s{sA}, s{sA}, 192
        s_lshl_b32 s{sB}, s{sSIG}, 12
        s_add_u32 s{sA}, s{sA}, s{sB}
        v_add_u32 v72, s{sA}, v72
        v_lshl_add_u32 v73, v1, 4, s{sB}
        v_add_u32 v73, 3840, v73""")
    def xa_addr(self):
        self.A(f"""v_and_b32 v1, 15, v0
        v_lshrrev_b32 v2, 4, v0
        v_min_u32 v14, 5, v1
        v_mul_u32_u24 v14, {XS}, v14
        v_lshl_add_u32 v15, v2, 3, v14
        v_lshl_add_u32 v14, v2, 4, v14
        v_and_b32 v3, 3, v0
        v_bfe_u32 v1, v0, 2, 2
        v_add_u32 v74, 3, v3
        v_min_u32 v74, 5, v74
        v_cmp_eq_u32 vcc, 0, v3
        v_cndmask_b32 v74, v74, v1, vcc
        v_mul_u32_u24 v74, {XS}, v74
        v_lshl_add_u32 v75, v2, 3, v74
        v_lshl_add_u32 v74, v2, 4, v74""")
    def xfrags(self):
        self.A(f"""ds_read_b128 v[4:7], v14 offset:{L_XA}
        ds_read_b128 v[8:11], v14 offset:{L_XA+64}
        ds_read_b64 v[12:13], v15 offset:{L_XA+128}""")
    def gram_reads(self):
        self.A(f"""ds_read_b128 v[48:51], v74 offset:{L_XA}
        ds_read_b128 v[52:55], v74 offset:{L_XA+64}
        ds_read_b64 v[46:47], v75 offset:{L_XA+128}""")
    def gram_mfma(self):
        self.A(f"""v_mfma_f32_16x16x32_bf16 v[68:71], v[48:51], v[4:7], 0
        v_mfma_f32_16x16x32_bf16 v[68:71], v[52:55], v[8:11], v[68:71]
        v_mfma_f32_16x16x16_bf16 v[68:71], v[46:47], v[12:13], v[68:71]
        v_mov_b32_dpp v71, v70 row_newbcast:4 row_mask:0xf bank_mask:0xf""")
    def q_mfma(self, sreg, intra, tagged=False):
        A = self.A
        self.xfrags()
        l = self.role(R_7); self.gram_reads(); self.end(l)
        A("s_waitcnt lgkmcnt(0)")
        for s in range(3):
            for t in range(3):
                c = "0" if s == 0 else vr(56 + 4 * t)
                if s < 2: A(f"v_mfma_f32_16x16x32_bf16 {vr(56+4*t)}, {vr(16+10*t+4*s)}, {vr(4+4*s)}, {c}")
                else: A(f"v_mfma_f32_16x16x16_bf16 {vr(56+4*t)}, {vr(24+10*t,2)}, v[12:13], {c}")
        if tagged:
            A(f"""v_and_b32 v1, 15, v0
            v_mul_u32_u24 v72, 1536, v1
            v_lshrrev_b32 v1, 4, v0
            v_lshl_add_u32 v72, v1, 4, v72
            s_and_b32 s{sA}, s{sV}, 3
            s_mul_i32 s{sA}, s{sA}, 384
            s_lshl_b32 s{sB}, s{sSIG}, 13
            s_add_u32 s{sA}, s{sA}, s{sB}
            v_add_u32 v72, s{sA}, v72
            v_lshl_add_u32 v73, v1, 4, s{sB}
            v_add_u32 v73, 7680, v73""")
            for t in range(3):
                for i in range(4): A(f"v_mov_b32 v{16+8*t+2*i}, v{56+4*t+i}\nv_mov_b32 v{17+8*t+2*i}, s101")
            self.exec_mask(0x001f001f001f001f)
            for t in range(3):
                for h in range(2): A(f"buffer_store_dwordx4 {vr(16+8*t+4*h)}, v72, {srd(SWS)}, s{sreg} offen offset:{128*t+64*h} sc1")
            self.exec_full()
            l = self.role(R_7)
            self.gram_mfma()
            A("v_mov_b32 v70, v69\nv_mov_b32 v69, s101\nv_mov_b32 v71, s101")
            self.exec_mask(1 | 1 << 17 | 1 << 34 | 1 << 51)
            A(f"buffer_store_dwordx4 v[68:71], v73, {srd(SWS)}, s{sreg} offen sc1")
            self.exec_full()
            self.end(l)
            return
        self.exec_mask(0x001f001f001f001f)
        self.stores("\n".join(f"buffer_store_dwordx4 {vr(56+4*t)}, v72, {srd(SWS)}, s{sreg} offen offset:{64*t}{{f}}" for t in range(3)), intra)
        self.exec_full()
        l = self.role(R_7)
        self.gram_mfma()
        self.exec_mask(1 | 1 << 17 | 1 << 34 | 1 << 51)
        self.stores(f"buffer_store_dwordx4 v[68:71], v73, {srd(SWS)}, s{sreg} offen{{f}}", intra)
        self.exec_full()
        self.end(l)
    def q_gather_addr(self, byw):
        A = self.A
        A(f"""s_and_b32 s{sA}, s{sSIG}, 0xf8
        s_lshl_b32 s{sA}, s{sA}, 12
        s_bfe_u32 s{sB}, s{sT}, 0x20001          ; b
        s_mul_i32 s{sC}, s{sB}, 768""")
        if byw: A(f"s_and_b32 s{sD}, s{sV}, 3\ns_lshl_b32 s{sD}, s{sD}, 8\ns_add_u32 s{sD}, s{sD}, s{sA}")
        else: A(f"s_mov_b32 s{sD}, s{sA}")
        A(f"""v_lshrrev_b32 v1, 4, v0
        v_and_b32 v2, 15, v0
        v_lshlrev_b32 v3, 12, v1
        v_lshl_add_u32 v3, v2, 4, v3
        v_add_u32 v70, s{sD}, v3
        v_add_u32 v71, s{sC}, v70
        v_and_b32 v3, 7, v0
        v_lshlrev_b32 v3, 12, v3
        s_lshl_b32 s{sB}, s{sB}, 4
        s_add_u32 s{sB}, s{sB}, s{sA}
        v_add_u32 v72, s{sB}, v3
        s_add_u32 s{sF}, s{sE}, 16384
        v_lshlrev_b32 v73, 3, v2
        v_lshl_add_u32 v73, v1, 1, v73""")
        if byw: A(f"s_and_b32 s{sA}, s{sV}, 3\ns_lshl_b32 s{sA}, s{sA}, 7\nv_add_u32 v73, s{sA}, v73")
    def q_gather(self):
        A = self.A
        self.q_gather_addr(1)
        A(f"v_lshlrev_b32 v74, 1, v73\nds_read_b32 v16, v74 offset:{L_CQ}")
        loads = f"""buffer_load_dwordx2 v[12:13], v72, {srd(SWS)}, s{sE} offen offset:3840 sc1
        buffer_load_dwordx4 v[4:7], v71, {srd(SWS)}, s{sE} offen sc1
        buffer_load_dwordx4 v[8:11], v71, {srd(SWS)}, s{sF} offen sc1"""
        self.poll(loads, range(4, 14), 24)
        self.red8([12, 13])
        for i in range(4): A(f"v_add_f32 v{4+i}, v{4+i}, v{8+i}")
        self.lnstats(12, 13, 14, 15, 24)
        self.treduce(4, 5, 6, 7)
        A(f"""s_waitcnt lgkmcnt(0)
        v_fma_f32 v4, -v14, v16, v4
        v_mul_f32 v4, v4, v15
        v_cvt_pk_bf16_f32 v4, 0, v4
        ds_write_b16_d16_hi v73, v4 offset:{L_QL}
        s_waitcnt lgkmcnt(0)""")

    def startup(self):
        A = self.A
        L1 = int(self.o['lim']); L2 = int(self.o['lim2'])
        A(f"s_bitcmp1_b32 s{sROLE}, {R_GE4}\ns_cbranch_scc1 L_start_hi")
        self.xres_load()
        self.dma_addr(4, 5, 1280); self.dma_addr(5, 6, 3072)
        if not self.o['wdma']: A("s_branch L_nowdma")
        self.exec_mask((1 << 60) - 1)
        A(f"s_mul_i32 s{sC}, s{sV}, {8*12*1280}\nv_add_u32 v6, s{sC}, v4\ns_mul_i32 s{sB}, s{sV}, {8*960}")
        self.dma60(SWO, 6, 8, 12, 1280, L_WO, lim=L1)
        A(f"s_mul_i32 s{sC}, s{sV}, {2*10*3072}\nv_add_u32 v6, s{sC}, v5\ns_mul_i32 s{sB}, s{sV}, {2*960}")
        self.dma60(SWG, 6, 2, 10, 3072, L_WG, lim=L1); self.dma60(SWU, 6, 2, 10, 3072, L_WU, lim=L1)
        A(f"s_mul_i32 s{sC}, s{sV}, {2*12*1280}\nv_add_u32 v6, s{sC}, v4")
        self.dma60(SWD, 6, 2, 12, 1280, L_WD, lim=L1)
        A("L_nowdma:")
        self.exec_full()
        self.kv_loads(L1)
        self.attn_pre()
        self.stamp(1, both=False)
        A("s_branch L_wait_q")
        A(f"""L_start_hi:
        s_setprio 3
        v_mov_b32 v1, 0
        s_mov_b32 s{sA}, {RE}
        buffer_load_dword v69, v1, {srd(SWS)}, s{sA} offen sc1""")
        self.xres_load()
        self.dma_addr(4, 6, 12288)
        self.exec_mask((1 << 60) - 1)
        A(f"s_and_b32 s{sB}, s{sV}, 3\ns_mul_i32 s{sB}, s{sB}, 7680")
        self.dma60(SWQ, 4, 8, 10, 12288, L_WQ)
        self.exec_full()
        A(f"""v_mul_u32_u24 v5, 26, v0
        v_lshrrev_b32 v5, 8, v5                  ; row = l/10
        v_mul_u32_u24 v6, 10, v5
        v_sub_u32 v6, v0, v6                     ; c = l%10
        v_mul_u32_u24 v7, 1280, v5
        v_lshl_add_u32 v7, v6, 4, v7
        v_lshlrev_b32 v8, 4, v6
        v_mul_u32_u24 v9, {XS}, v5
        v_lshl_add_u32 v9, v6, 4, v9""")
        A("v_mov_b32 v60, 0x3f803f80\nv_mov_b32 v61, 0x3f803f80\nv_mov_b32 v62, 0x3f803f80\nv_mov_b32 v63, 0x3f803f80")
        self.exec_mask((1 << 40) - 1)
        A(f"buffer_load_dwordx4 v[60:63], v7, {srd(SX0)}, 0 offen")
        self.exec_mask(((1 << 60) - 1) ^ ((1 << 50) - 1))
        A(f"buffer_load_dwordx4 v[60:63], v8, {srd(SWR)}, 0 offen")
        self.exec_full()
        A("s_waitcnt vmcnt(0)")
        self.stamp(12, both=False)
        self.exec_mask((1 << 60) - 1)
        A(f"ds_write_b128 v9, v[60:63] offset:{L_XA}")
        self.exec_full()
        self.q_wpre()
        A(f"""v_add_u32 v69, 1, v69
        s_waitcnt lgkmcnt(0)
        v_readfirstlane_b32 s101, v69
        s_mov_b32 s{sE}, {RQ[0]}""")
        self.q_mfma(sE, False, tagged=True)
        self.stamp(14, both=False)
        CF = ' ' + self.o['clear'] if self.o['clear'] not in ('plain','none') else ''
        l = self.role(R_6)
        A("v_mov_b32 v64, -1\nv_mov_b32 v65, -1\nv_mov_b32 v66, -1\nv_mov_b32 v67, -1\nv_lshlrev_b32 v10, 4, v0")
        if self.o['clear'] == 'none': A('s_branch L_noclear')
        A(f"s_mul_i32 s{sA}, s{sSIG}, {OSL}")
        self.exec_mask((1 << 56) - 1)
        for p in range(2): A(f"s_add_u32 s{sB}, s{sA}, {RO[p]}\nbuffer_store_dwordx4 v[64:67], v10, {srd(SWS)}, s{sB} offen{CF}")
        A(f"s_mul_i32 s{sA}, s{sSIG}, 640")
        self.exec_mask((1 << 40) - 1)
        for r in RX + RY: A(f"s_add_u32 s{sB}, s{sA}, {r}\nbuffer_store_dwordx4 v[64:67], v10, {srd(SWS)}, s{sB} offen{CF}")
        self.exec_full()
        A(f"s_lshl_b32 s{sA}, s{sSIG}, 12\ns_add_u32 s{sA}, s{sA}, {RQ[1]}")
        for i in range(4): A(f"buffer_store_dwordx4 v[64:67], v10, {srd(SWS)}, s{sA} offen offset:{1024*i}{CF}")
        A(f"s_lshl_b32 s{sA}, s{sSIG}, 11")
        for p in range(2):
            A(f"s_add_u32 s{sB}, s{sA}, {RG[p]}")
            for i in range(2): A(f"buffer_store_dwordx4 v[64:67], v10, {srd(SWS)}, s{sB} offen offset:{1024*i}{CF}")
        A(f"""L_noclear:
        s_getreg_b32 s99, hwreg(HW_REG_XCC_ID, 0, 4)
        v_mov_b32 v4, {L_FL}
        v_mov_b32 v6, s101
        v_mov_b32 v7, s99
        v_mov_b32 v8, s101
        v_mov_b32 v9, s99
        s_lshl_b32 s{sA}, s{sSIG}, 7
        s_add_u32 s{sA}, s{sA}, {RF}
        s_waitcnt vmcnt(0)
        s_mov_b64 exec, 0xff
        buffer_store_dwordx4 v[6:9], v10, {srd(SWS)}, s{sA} offen sc1
        s_mov_b64 exec, -1""")
        self.end(l)
        self.stamp(1, both=False)
        if self.o['dry']:
            l = self.lab("nodry")
            A(f"""s_cmp_eq_u32 s{sV}, 7
            s_cbranch_scc0 {l}
            s_mov_b32 s{sDRY}, 1
            s_mov_b32 s100, s{sROLE}
            s_mov_b32 s{sROLE}, 0xff
            s_mov_b64 s[{sFULL}:{sFULL+1}], 0
            s_mov_b64 exec, 0
            s_branch L_attn
            L_dry_ret:
            s_mov_b32 s{sDRY}, 0
            s_mov_b32 s{sP}, 0
            s_mov_b32 s{sROLE}, s100
            s_mov_b64 s[{sFULL}:{sFULL+1}], -1
            s_mov_b64 exec, -1
            {l}:""")
        l = self.role(R_7)
        lp = self.lab("tq"); lr = self.lab("tqr")
        self.stamp(13, both=False)
        A(f"""s_and_b32 s{sA}, s{sSIG}, 0xf8
        s_lshl_b32 s{sA}, s{sA}, 13
        s_add_u32 s{sE}, s{sA}, {RQ[0]}
        s_add_u32 s{sF}, s{sE}, 32768
        s_bfe_u32 s{sB}, s{sT}, 0x20001          ; b
        s_mul_i32 s{sC}, s{sB}, 1536
        v_lshrrev_b32 v1, 4, v0
        v_and_b32 v2, 15, v0
        v_lshlrev_b32 v70, 13, v1
        v_bfe_u32 v3, v0, 2, 2
        v_lshl_add_u32 v70, v3, 7, v70
        v_and_b32 v3, 3, v0
        v_lshl_add_u32 v70, v3, 4, v70
        v_add_u32 v71, s{sC}, v70
        v_add_u32 v70, 6144, v70
        v_and_b32 v3, 7, v0
        v_lshlrev_b32 v72, 13, v3
        s_lshl_b32 s{sB}, s{sB}, 4
        v_add_u32 v72, s{sB}, v72
        v_add_u32 v72, 7680, v72
        v_lshlrev_b32 v73, 3, v2
        v_lshl_add_u32 v73, v1, 1, v73
        v_lshlrev_b32 v74, 1, v73
        {lp}:""")
        R0 = [4, 36, 88]
        for sg in range(3):
            r = R0[sg]
            for j, (va, so) in enumerate(((71, sE), (71, sF), (70, sE), (70, sF))):
                A(f"""buffer_load_dwordx4 {vr(r+8*j)}, v{va}, {srd(SWS)}, s{so} offen offset:{512*sg} sc1
                buffer_load_dwordx4 {vr(r+8*j+4)}, v{va}, {srd(SWS)}, s{so} offen offset:{512*sg+64} sc1""")
        A(f"""buffer_load_dwordx4 v[120:123], v72, {srd(SWS)}, s{sE} offen sc1
        s_waitcnt vmcnt(0)
        v_xor_b32 v1, s101, v121
        v_xor_b32 v2, s101, v123
        v_or_b32 v1, v1, v2""")
        for sg in range(3):
            for j in range(8):
                r = R0[sg] + 4 * j
                A(f"v_xor_b32 v2, s101, v{r+1}\nv_xor_b32 v3, s101, v{r+3}\nv_or3_b32 v1, v1, v2, v3")
        A(f"v_cmp_ne_u32 vcc, 0, v1\ns_cbranch_vccnz {lr}")
        self.tail.append(f"{lr}:\ns_sub_u32 s{sTO}, s{sTO}, 1\ns_cbranch_scc1 L_end\ns_branch {lp}")
        self.red8([120, 122])
        self.lnstats(120, 122, 124, 125, 126)
        for sg in range(3):
            r = R0[sg]
            for i in range(4): A(f"v_add_f32 v{r+2*i}, v{r+2*i}, v{r+8+2*i}\nv_add_f32 v{r+16+2*i}, v{r+16+2*i}, v{r+24+2*i}")
            self.treduce(r, r + 2, r + 4, r + 6); self.treduce(r + 16, r + 18, r + 20, r + 22)
            A(f"""ds_write_b32 v74, v{r+16} offset:{L_CQ + 256*sg}
            v_fma_f32 v{r}, -v124, v{r+16}, v{r}
            v_mul_f32 v{r}, v{r}, v125
            v_cvt_pk_bf16_f32 v{r}, 0, v{r}
            ds_write_b16_d16_hi v73, v{r} offset:{L_QL + 128*sg}""")
        A(f"""v_mov_b32 v4, 1
        v_mov_b32 v5, {L_FL}
        v_mov_b32 v6, s101
        ds_write_b32 v5, v6 offset:8
        s_waitcnt lgkmcnt(0)
        ds_write_b32 v5, v4""")
        self.end(l)
        self.stamp(2, both=False)
        A("s_setprio 0")
        self.kv_loads(L2)
        self.attn_pre()
        lw2 = self.lab("wq")
        A(f"""L_wait_q:
        v_mov_b32 v5, {L_FL}
        ds_read_b32 v4, v5
        s_waitcnt lgkmcnt(0)
        v_cmp_eq_u32 vcc, 0, v4
        s_cbranch_vccnz {lw2}""")
        self.tail.append(f"{lw2}:\ns_sleep 4\ns_sub_u32 s{sTO}, s{sTO}, 1\ns_cbranch_scc1 L_end\ns_branch L_wait_q")

    def attention(self):
        A = self.A
        A("L_attn:")
        for s in range(3): A(f"ds_read_b128 {vr(4+4*s)}, v86 offset:{L_QL + 128*s}")
        A(f"""s_mul_i32 s{sA}, s{sV}, 6144
        s_add_u32 s{sA}, s{sA}, {L_VP}
        v_lshl_add_u32 v87, v0, 4, s{sA}
        s_waitcnt vmcnt(24) lgkmcnt(0)""")
        self.stamp(3)
        def extract(g):
            d = 16 + 4 * g
            return [f"v_add_f32_dpp v{d}, v{d+1}, v{d} quad_perm:[1,0,3,2] row_mask:0xf bank_mask:0x3",
                    f"v_add_f32_dpp v{d}, v{d+3}, v{d+2} quad_perm:[1,0,3,2] row_mask:0xf bank_mask:0xc",
                    f"v_cvt_pk_bf16_f32 v{d}, 0, v{d}",
                    f"v_mul_f32 v{d}, s{sSCALE}, v{d}",
                    f"v_cvt_pk_bf16_f32 v{d}, 0, v{d}",
                    f"v_mul_f32 v{d}, s{sLOG2E}, v{d}",
                    f"v_mov_b32_dpp v{16+g}, v{d} quad_perm:[0,0,2,2] row_mask:0xf bank_mask:0xf"]
        pend = []
        for g in range(8):
            if g >= 3: pend += extract(g - 3)
            for s in range(3):
                c = "0" if s == 0 else vr(16 + 4 * g)
                A(f"v_mfma_f32_16x16x32_bf16 {vr(16+4*g)}, {ar((g*3+s)*4)}, {vr(4+4*s)}, {c}")
                for _ in range(2):
                    if pend: A(pend.pop(0))
        A("s_waitcnt vmcnt(18)")
        for i in range(6): A(f"ds_read_b128 {vr(48+4*i)}, v87 offset:{1024*i}")
        for x in pend: A(x)
        e = [extract(g) for g in (5, 6, 7)]
        for k in range(7):
            for j in range(3): A(e[j][k])
        A(f"""v_max3_f32 v24, v16, v17, v18
        v_max3_f32 v25, v19, v20, v21
        v_max3_f32 v24, v24, v22, v23
        v_max_f32 v24, v24, v25
        v_max_f32_dpp v24, v24, v24 row_ror:8 row_mask:0xf bank_mask:0xf
        v_max_f32_dpp v24, v24, v24 row_bcast:15 row_mask:0xa bank_mask:0xf
        v_max_f32_dpp v24, v24, v24 row_bcast:31 row_mask:0xc bank_mask:0xf
        v_readlane_b32 s{sM}, v24, 63""")
        for g in range(8): A(f"v_subrev_f32 v{16+g}, s{sM}, v{16+g}")
        for g in range(8): A(f"v_exp_f32 v{16+g}, v{16+g}")
        lsum = ["v_add_f32 v40, v16, v17", "v_add_f32 v41, v18, v19", "v_add_f32 v42, v20, v21", "v_add_f32 v43, v22, v23",
                "v_add_f32 v40, v40, v41", "v_add_f32 v42, v42, v43", "v_add_f32 v41, v40, v42",
                "v_add_f32_dpp v41, v41, v41 row_ror:8 row_mask:0xf bank_mask:0xf",
                "v_add_f32_dpp v41, v41, v41 row_bcast:15 row_mask:0xa bank_mask:0xf",
                "v_add_f32_dpp v41, v41, v41 row_bcast:31 row_mask:0xc bank_mask:0xf"]
        def abuild(g):
            b = 24 + 4 * (g % 3)
            return [f"v_cvt_pk_bf16_f32 v{36+(g&1)}, v{16+g}, v{16+g}"] + [f"v_and_b32 v{b+i}, v{36+(g&1)}, v{76+i}" for i in range(4)]
        for x in abuild(0): A(x)
        A("s_waitcnt lgkmcnt(0)")
        for g in range(8):
            nxt = abuild(g + 1) if g < 7 else []
            if g >= 2: A(f"s_waitcnt vmcnt({18 - 3*(g-1)})")
            b = 24 + 4 * (g % 3)
            for s in range(3):
                c = "0" if g == 0 else vr(4 + 4 * s)
                vv = vr(48 + (3 * g + s) * 4) if g < 2 else vr(VBASE + ((g - 2) * 3 + s) * 4)
                A(f"v_mfma_f32_16x16x32_bf16 {vr(4+4*s)}, {vr(b)}, {vv}, {c}")
                for _ in range(2):
                    if nxt: A(nxt.pop(0))
                    elif lsum and g < 7: A(lsum.pop(0))
            if g == 0:
                A(f"""v_and_b32 v1, 7, v0
                v_lshlrev_b32 v1, 5, v1
                v_bfe_u32 v2, v0, 4, 1
                v_lshl_add_u32 v1, v2, 4, v1
                v_lshrrev_b32 v2, 5, v0
                v_mul_u32_u24 v2, 768, v2
                s_mul_i32 s{sA}, s{sV}, 1536
                v_add3_u32 v38, v1, v2, s{sA}
                s_lshl_b32 s{sA}, s{sV}, 2
                v_mov_b32 v39, s{sA}
                v_mov_b32 v44, s{sM}""")
        for x in lsum: A(x)
        self.exec_mask(1 << 63)
        A(f"ds_write_b32 v39, v44 offset:{L_ML}\nds_write_b32 v39, v41 offset:{L_ML+32}")
        self.exec_mask(0xFF00FF0000FF00FF)
        for s in range(3): A(f"ds_write_b128 v38, {vr(4+4*s)} offset:{L_OC + 256*s}")
        self.exec_full()
        A(f"""v_lshrrev_b32 v1, 4, v0
        v_and_b32 v2, 15, v0
        v_mul_u32_u24 v40, 3072, v1
        v_lshl_add_u32 v40, v2, 4, v40
        s_and_b32 s{sA}, s{sV}, 3
        s_lshl_b32 s{sA}, s{sA}, 8
        v_add_u32 v40, s{sA}, v40
        v_lshlrev_b32 v41, 3, v1
        v_mov_b32 v42, 0
        s_mul_i32 s{sB}, s{sSIG}, {OSL}
        s_add_u32 s{sA}, s{sA}, s{sB}
        v_lshlrev_b32 v43, 4, v2
        v_lshl_add_u32 v43, v1, 2, v43
        v_add_u32 v43, s{sA}, v43
        v_mov_b32 v45, s{sB}
        v_and_b32 v46, 7, v0
        v_lshlrev_b32 v46, 2, v46
        s_mul_i32 s{sE}, s{sP}, {RO[1]-RO[0]}
        s_waitcnt lgkmcnt(0)""")
        l = self.lab("nochk"); lp = self.lab("chk"); lr = self.lab("chkr")
        A(f"""s_or_b32 s{sA}, s{sP}, s{sV}
        s_cmp_eq_u32 s{sA}, 0
        s_cbranch_scc0 {l}
        v_mov_b32 v1, {L_FL}
        ds_read_b32 v2, v1 offset:8
        v_lshlrev_b32 v3, 9, v0
        s_getreg_b32 s99, hwreg(HW_REG_XCC_ID, 0, 4)
        s_mov_b32 s{sA}, {RF}
        {lp}:
        buffer_load_dwordx2 v[4:5], v3, {srd(SWS)}, s{sA} offen sc1
        buffer_load_dwordx2 v[6:7], v3, {srd(SWS)}, s{sA} offen offset:128 sc1
        buffer_load_dwordx2 v[8:9], v3, {srd(SWS)}, s{sA} offen offset:256 sc1
        buffer_load_dwordx2 v[10:11], v3, {srd(SWS)}, s{sA} offen offset:384 sc1
        s_waitcnt vmcnt(0) lgkmcnt(0)
        v_xor_b32 v4, v4, v2
        v_xor_b32 v6, v6, v2
        v_xor_b32 v8, v8, v2
        v_xor_b32 v10, v10, v2
        v_or3_b32 v4, v4, v6, v8
        v_or_b32 v4, v4, v10
        v_cmp_ne_u32 vcc, 0, v4
        s_cbranch_vccnz {lr}
        v_xor_b32 v5, s99, v5
        v_xor_b32 v7, s99, v7
        v_xor_b32 v9, s99, v9
        v_xor_b32 v11, s99, v11
        v_or3_b32 v5, v5, v7, v9
        v_or_b32 v5, v5, v11
        v_cmp_eq_u32 vcc, 0, v5
        s_lshl_b32 s{sB}, s{sX}, 3
        s_lshr_b64 s[90:91], vcc, s{sB}
        s_and_b32 s90, s90, 0xff
        s_cmp_eq_u32 s90, 0xff
        s_cselect_b32 s{sA}, 1, 0
        v_mov_b32 v4, s{sA}
        ds_write_b32 v1, v4 offset:12
        s_cmp_eq_u32 s2, 0
        s_cbranch_scc0 L_noepoch
        v_mov_b32 v3, 0
        s_mov_b32 s{sA}, {RE}
        s_mov_b64 exec, 1
        buffer_store_dword v2, v3, {srd(SWS)}, s{sA} offen sc1
        s_mov_b64 exec, -1
        L_noepoch:
        s_mov_b32 s{sE}, 0
        s_waitcnt lgkmcnt(0)
        {l}:""")
        self.tail.append(f"{lr}:\ns_sleep {self.o['bsleep']}\ns_sub_u32 s{sTO}, s{sTO}, 1\ns_cbranch_scc1 L_end\ns_branch {lp}")
        self.stamp(4)
        self.barrier()
        l = self.lab("nofr")
        A(f"""s_cmp_eq_u32 s{sP}, 0
        s_cbranch_scc0 {l}
        v_mov_b32 v1, {L_FL}
        ds_read_b32 v2, v1 offset:12
        s_waitcnt lgkmcnt(0)
        v_readfirstlane_b32 s{sFAST}, v2
        {l}:""")
        l = self.role(R_456)
        A(f"""ds_read_b128 v[4:7], v42 offset:{L_ML}
        ds_read_b128 v[8:11], v42 offset:{L_ML+16}
        ds_read_b64 v[12:13], v41 offset:{L_ML}
        ds_read_b128 v[16:19], v40 offset:{L_OC}
        ds_read_b128 v[20:23], v40 offset:{L_OC+768}
        ds_read_b128 v[24:27], v40 offset:{L_OC+1536}
        ds_read_b128 v[28:31], v40 offset:{L_OC+2304}
        s_waitcnt lgkmcnt(4)
        v_max3_f32 v4, v4, v5, v6
        v_max3_f32 v8, v8, v9, v10
        v_max3_f32 v4, v4, v7, v11
        v_max_f32 v4, v4, v8
        v_sub_f32 v12, v12, v4
        v_sub_f32 v13, v13, v4
        v_exp_f32 v12, v12
        v_exp_f32 v13, v13
        s_waitcnt lgkmcnt(0)""")
        for i in range(4): A(f"v_add_f32 v{16+i}, v{16+i}, v{20+i}\nv_add_f32 v{24+i}, v{24+i}, v{28+i}")
        for i in range(4): A(f"v_mul_f32 v{16+i}, v12, v{16+i}")
        for i in range(4): A(f"v_fmac_f32 v{16+i}, v13, v{24+i}")
        self.treduce(16, 17, 18, 19)
        self.stores(f"buffer_store_dword v16, v43, {srd(SWS)}, s{sE} offen{{f}}", True)
        self.end(l)
        l = self.role(R_7)
        A(f"""ds_read_b32 v4, v46 offset:{L_ML}
        ds_read_b32 v5, v46 offset:{L_ML+32}
        s_waitcnt lgkmcnt(1)
        v_max_f32_dpp v6, v4, v4 quad_perm:[1,0,3,2] row_mask:0xf bank_mask:0xf
        v_max_f32_dpp v6, v6, v6 quad_perm:[2,3,0,1] row_mask:0xf bank_mask:0xf
        v_max_f32_dpp v6, v6, v6 row_half_mirror row_mask:0xf bank_mask:0xf
        v_sub_f32 v4, v4, v6
        v_exp_f32 v4, v4
        s_waitcnt lgkmcnt(0)
        v_mul_f32 v7, v4, v5""")
        self.red8([7])
        self.exec_mask(1)
        self.stores(f"buffer_store_dwordx2 v[6:7], v45, {srd(SWS)}, s{sE} offen offset:768{{f}}", True)
        self.exec_full()
        self.end(l)

    def pub_addr(self, d):
        self.A(f"""s_mul_i32 s{sA}, s{sSIG}, 640
        s_lshl_b32 s{sB}, s{sV}, 8
        s_add_u32 s{sA}, s{sA}, s{sB}
        v_lshl_add_u32 v{d}, v0, 4, s{sA}
        s_cmp_eq_u32 s{sV}, 2
        s_cselect_b32 s{sC}, 8, 16
        s_bfm_b32 s{sC}, s{sC}, 0
        s_and_b32 s{sC}, s{sC}, s{sFULL}""")

    def wo_stage(self):
        A = self.A
        l = self.role(R_LT3)
        self.tr_addr(72, 80, 1)
        A(f"s_lshl_b32 s{sA}, s{sV}, 5\ns_add_u32 s{sA}, s{sA}, {L_WO}\nv_add_u32 v72, s{sA}, v72")
        for s in range(12): self.wfrag32(4 + 4 * s, 72, s * 32 * 80, 80)
        self.end(l)
        self.sync(self.o['sync_o'])
        l = self.role(R_LT6)
        A(f"""s_cmp_ge_u32 s{sV}, 3
        s_cselect_b32 s{sA}, 1, 0              ; hh
        s_mul_i32 s{sB}, s{sA}, 3
        s_sub_u32 s{sB}, s{sV}, s{sB}          ; seg
        s_and_b32 s{sC}, s{sSIG}, 0xf0
        s_lshl_b32 s{sD}, s{sA}, 3
        s_add_u32 s{sC}, s{sC}, s{sD}
        s_mul_i32 s{sC}, s{sC}, {OSL}
        v_lshrrev_b32 v1, 4, v0
        v_and_b32 v2, 15, v0
        v_mul_u32_u24 v72, {2*OSL}, v1
        v_add_u32 v72, s{sC}, v72
        s_lshl_b32 s{sD}, s{sB}, 8
        v_lshl_add_u32 v73, v2, 4, v72
        v_add_u32 v73, s{sD}, v73
        s_mul_i32 s{sA}, s{sA}, 384
        s_lshl_b32 s{sB}, s{sB}, 7
        s_add_u32 s{sA}, s{sA}, s{sB}
        v_mul_u32_u24 v74, {OS}, v1
        v_lshl_add_u32 v74, v2, 3, v74
        v_add_u32 v74, s{sA}, v74""")
        self.poll(f"""buffer_load_dwordx2 v[52:53], v72, {srd(SWS)}, s{sE} offen offset:768 sc1
        buffer_load_dwordx2 v[54:55], v72, {srd(SWS)}, s{sE} offen offset:{768+OSL} sc1
        buffer_load_dwordx4 v[56:59], v73, {srd(SWS)}, s{sE} offen sc1
        buffer_load_dwordx4 v[60:63], v73, {srd(SWS)}, s{sE} offen offset:{OSL} sc1""", range(52, 64), 64)
        self.stamp(5)
        A(f"""v_max_f32 v64, v52, v54
        v_sub_f32 v52, v52, v64
        v_sub_f32 v54, v54, v64
        v_exp_f32 v52, v52
        v_exp_f32 v54, v54
        v_mul_f32 v53, v52, v53
        v_fmac_f32 v53, v54, v55
        v_rcp_f32 v53, v53
        v_mul_f32 v52, v52, v53
        v_mul_f32 v54, v54, v53""")
        for i in range(4): A(f"v_mul_f32 v{56+i}, v52, v{56+i}")
        for i in range(4): A(f"v_fmac_f32 v{56+i}, v54, v{60+i}")
        A(f"""v_cvt_pk_bf16_f32 v56, v56, v57
        v_cvt_pk_bf16_f32 v57, v58, v59
        ds_write_b64 v74, v[56:57] offset:{L_OA}""")
        self.end(l)
        A(f"""v_and_b32 v1, 3, v0
        v_lshrrev_b32 v2, 4, v0
        v_mul_u32_u24 v1, {OS}, v1
        v_lshl_add_u32 v86, v2, 4, v1""")
        self.pub_addr(87)
        A(f"s_mul_i32 s{sE}, s{sP}, {RX[1]-RX[0]}\ns_add_u32 s{sE}, s{sE}, {RX[0]}\ns_waitcnt lgkmcnt(0)")
        self.barrier()
        l = self.role(R_LT3)
        for s in range(6): A(f"ds_read_b128 {vr(52+4*s)}, v86 offset:{L_OA + 64*s}")
        for s in range(12):
            A(f"s_waitcnt lgkmcnt({5 if s < 7 else 11 - s})")
            c = "0" if s == 0 else "v[76:79]"
            A(f"v_mfma_f32_16x16x32_bf16 v[76:79], {vr(52+4*(s%6))}, {vr(4+4*s)}, {c}")
            if s < 6: A(f"ds_read_b128 {vr(52+4*s)}, v86 offset:{L_OA + 64*(s+6)}")
        A(f"s_mov_b32 exec_lo, s{sC}\ns_mov_b32 exec_hi, 0")
        self.stores(f"buffer_store_dwordx4 v[76:79], v87, {srd(SWS)}, s{sE} offen{{f}}", False)
        self.exec_full()
        self.end(l)
        self.stamp(6)

    def x_gather_pre(self):
        self.A(f"""s_and_b32 s{sA}, s{sT}, 7
        s_mul_i32 s{sA}, s{sA}, 1280
        s_lshl_b32 s{sB}, s{sV}, 8
        s_add_u32 s{sA}, s{sA}, s{sB}
        v_lshrrev_b32 v1, 4, v0
        v_and_b32 v2, 15, v0
        v_mul_u32_u24 v76, 10240, v1
        v_lshl_add_u32 v76, v2, 4, v76
        v_add_u32 v76, s{sA}, v76
        s_add_u32 s{sB}, s{sE}, 40960
        s_add_u32 s{sC}, s{sE}, 81920
        s_add_u32 s{sD}, s{sE}, 122880
        v_mul_u32_u24 v77, {XS}, v1
        v_lshl_add_u32 v77, v2, 1, v77
        s_lshl_b32 s{sA}, s{sV}, 5
        v_add_u32 v77, s{sA}, v77""")
    def x_gather(self):
        self.poll("\n".join(f"buffer_load_dwordx4 {vr(56+4*i)}, v76, {srd(SWS)}, s{r} offen sc1" for i, r in enumerate((sE, sB, sC, sD))), range(56, 72), 78)
        for i in range(4): self.A(f"v_add_f32 v{56+i}, v{56+i}, v{60+i}\nv_add_f32 v{64+i}, v{64+i}, v{68+i}")
        for i in range(4): self.A(f"v_add_f32 v{56+i}, v{56+i}, v{64+i}")
        self.treduce(56, 57, 58, 59)
        self.rnd(56, 56)

    def gu_stage(self):
        A = self.A
        self.tr_addr(46, 96, 1)
        A(f"""s_cmp_ge_u32 s{sV}, 3
        s_cselect_b32 s{sA}, {L_WU - L_WG - 96}, 0
        s_lshl_b32 s{sB}, s{sV}, 5
        s_add_u32 s{sA}, s{sA}, s{sB}
        v_add_u32 v46, s{sA}, v46
        v_add_u32 v47, s{sA}, v47""")
        l = self.role(R_LT6)
        self.wfrag32(16, 46, L_WG, 96); self.wfrag32(20, 46, L_WG + 32 * 96, 96)
        A(f"ds_read_b64_tr_b16 v[24:25], v47 offset:{L_WG + 64*96}")
        self.end(l)
        self.xa_addr()
        A(f"""s_lshl_b32 s{sA}, s{sSIG}, 11
        s_lshl_b32 s{sB}, s{sV}, 8
        s_add_u32 s{sB}, s{sB}, s{sA}
        v_lshl_add_u32 v72, v0, 4, s{sB}
        s_lshl_b32 s{sB}, s{sV}, 6
        s_add_u32 s{sB}, s{sB}, s{sA}
        v_lshl_add_u32 v26, v0, 2, s{sB}
        v_lshrrev_b32 v1, 4, v0
        v_lshl_add_u32 v73, v1, 4, s{sA}""")
        self.x_gather_pre()
        self.sync(self.o['sync_x'])
        l = self.role(R_LT5)
        self.x_gather()
        self.stamp(7)
        A(f"""v_add_f32 v{vXR}, v{vXR}, v56
        v_cvt_pk_bf16_f32 v{vXR}, 0, v{vXR}
        ds_write_b16_d16_hi v77, v{vXR} offset:{L_XA}""")
        self.end(l)
        A(f"s_mul_i32 s{sE}, s{sP}, {RG[1]-RG[0]}\ns_add_u32 s{sE}, s{sE}, {RG[0]}\ns_waitcnt lgkmcnt(0)")
        self.barrier()
        self.xfrags()
        l = self.role(R_LT6)
        A(f"""s_waitcnt lgkmcnt(2)
        v_mfma_f32_16x16x32_bf16 v[56:59], v[4:7], v[16:19], 0
        s_waitcnt lgkmcnt(1)
        v_mfma_f32_16x16x32_bf16 v[56:59], v[8:11], v[20:23], v[56:59]
        s_waitcnt lgkmcnt(0)
        v_mfma_f32_16x16x16_bf16 v[56:59], v[12:13], v[24:25], v[56:59]""")
        self.exec_mask(0xffff)
        self.stores(f"buffer_store_dwordx4 v[56:59], v72, {srd(SWS)}, s{sE} offen{{f}}", True)
        self.exec_mask(0xffff0000)
        self.stores(f"buffer_store_dword v56, v26, {srd(SWS)}, s{sE} offen offset:{1536-64}{{f}}", True)
        self.exec_full()
        self.end(l)
        l = self.role(R_6)
        self.gram_reads(); A("s_waitcnt lgkmcnt(0)"); self.gram_mfma()
        self.exec_mask(1 | 1 << 17 | 1 << 34 | 1 << 51)
        self.stores(f"buffer_store_dwordx4 v[68:71], v73, {srd(SWS)}, s{sE} offen offset:1920{{f}}", True)
        self.exec_full()
        self.end(l)
        self.stamp(8)

    def down_stage(self):
        A = self.A
        l = self.role(R_LT3)
        self.tr_addr(72, 80, 1)
        A(f"s_lshl_b32 s{sA}, s{sV}, 5\nv_add_u32 v72, s{sA}, v72")
        for s in range(3): self.wfrag32(4 + 4 * s, 72, L_WD + s * 32 * 80, 80)
        self.end(l)
        self.sync(self.o['sync_g'])
        l = self.role(R_LT6)
        A(f"""s_cmp_ge_u32 s{sV}, 3
        s_cselect_b32 s{sA}, 1, 0              ; i/3
        s_mul_i32 s{sB}, s{sA}, 3
        s_sub_u32 s{sB}, s{sV}, s{sB}          ; i%3
        s_and_b32 s{sC}, s{sSIG}, 0xf0
        s_lshl_b32 s{sA}, s{sA}, 3
        s_add_u32 s{sC}, s{sC}, s{sA}
        s_lshl_b32 s{sC}, s{sC}, 11
        v_lshrrev_b32 v1, 4, v0
        v_and_b32 v2, 15, v0
        v_lshl_add_u32 v3, v1, 11, s{sC}
        s_lshl_b32 s{sA}, s{sB}, 8
        v_lshl_add_u32 v72, v2, 4, v3
        v_add_u32 v72, s{sA}, v72
        s_lshl_b32 s{sA}, s{sB}, 6
        v_lshl_add_u32 v73, v2, 2, v3
        v_add_u32 v73, s{sA}, v73
        v_and_b32 v3, 7, v0
        v_lshl_add_u32 v74, v3, 11, s{sC}
        v_lshl_add_u32 v74, v1, 4, v74
        s_add_u32 s{sF}, s{sE}, 8192
        v_mul_u32_u24 v75, {HS}, v1
        v_lshl_add_u32 v75, v2, 1, v75
        s_lshl_b32 s{sA}, s{sV}, 5
        v_add_u32 v75, s{sA}, v75""")
        self.poll(f"""buffer_load_dwordx4 v[32:35], v74, {srd(SWS)}, s{sE} offen offset:1920 sc1
        buffer_load_dwordx4 v[16:19], v72, {srd(SWS)}, s{sE} offen sc1
        buffer_load_dwordx4 v[20:23], v72, {srd(SWS)}, s{sF} offen sc1
        buffer_load_dwordx4 v[24:27], v72, {srd(SWS)}, s{sE} offen offset:768 sc1
        buffer_load_dwordx4 v[28:31], v72, {srd(SWS)}, s{sF} offen offset:768 sc1
        buffer_load_dword v36, v73, {srd(SWS)}, s{sE} offen offset:1536 sc1
        buffer_load_dword v37, v73, {srd(SWS)}, s{sF} offen offset:1536 sc1
        buffer_load_dword v38, v73, {srd(SWS)}, s{sE} offen offset:1728 sc1
        buffer_load_dword v39, v73, {srd(SWS)}, s{sF} offen offset:1728 sc1""", range(16, 40), 40)
        self.stamp(9)
        self.red8([32, 33, 34, 35])
        A("v_add_f32 v36, v36, v37\nv_add_f32 v38, v38, v39")
        for i in range(4): A(f"v_add_f32 v{16+i}, v{16+i}, v{20+i}\nv_add_f32 v{24+i}, v{24+i}, v{28+i}")
        A(f"""v_permlane32_swap_b32 v36, v38
        v_add_f32 v36, v36, v38
        v_mov_b32 v38, v36
        v_permlane16_swap_b32 v36, v38
        v_add_f32 v{vCG}, v36, v38
        v_mov_b32 v{vCU}, v{vCG}
        v_permlane32_swap_b32 v{vCG}, v{vCU}""")
        self.lnstats(32, 33, 40, 41, 42)
        self.treduce(16, 17, 18, 19); self.treduce(24, 25, 26, 27)
        A(f"""v_fma_f32 v16, -v40, v{vCG}, v16
        v_fma_f32 v24, -v40, v{vCU}, v24
        v_mul_f32 v16, v16, v41
        v_mul_f32 v24, v24, v41
        v_cvt_pk_bf16_f32 v16, 0, v16
        v_cvt_pk_bf16_f32 v24, 0, v24
        v_mul_f32 v17, s{sLOG2E}, v16
        v_exp_f32 v17, -v17
        v_add_f32 v17, 1.0, v17
        v_rcp_f32 v17, v17
        v_mul_f32 v16, v16, v17
        v_cvt_pk_bf16_f32 v16, 0, v16
        v_mul_f32 v16, v16, v24
        v_cvt_pk_bf16_f32 v16, 0, v16
        ds_write_b16_d16_hi v75, v16 offset:{L_HA}""")
        self.end(l)
        A(f"""v_and_b32 v1, 3, v0
        v_lshrrev_b32 v2, 4, v0
        v_mul_u32_u24 v1, {HS}, v1
        v_lshl_add_u32 v86, v2, 4, v1""")
        self.pub_addr(87)
        A(f"s_mul_i32 s{sE}, s{sP}, {RY[1]-RY[0]}\ns_add_u32 s{sE}, s{sE}, {RY[0]}\ns_waitcnt lgkmcnt(0)")
        self.barrier()
        l = self.role(R_LT3)
        for s in range(3): A(f"ds_read_b128 {vr(52+4*s)}, v86 offset:{L_HA + 64*s}")
        for s in range(3):
            c = "0" if s == 0 else "v[76:79]"
            A(f"s_waitcnt lgkmcnt({2-s})\nv_mfma_f32_16x16x32_bf16 v[76:79], {vr(52+4*s)}, {vr(4+4*s)}, {c}")
        A(f"s_mov_b32 exec_lo, s{sC}\ns_mov_b32 exec_hi, 0")
        self.stores(f"buffer_store_dwordx4 v[76:79], v87, {srd(SWS)}, s{sE} offen{{f}}", False)
        self.exec_full()
        self.end(l)
        self.stamp(10)
        A(f"""v_fma_f32 v34, -v40, v35, v34
        v_mul_f32 v34, v34, v41
        v_cvt_pk_bf16_f32 v34, 0, v34
        v_mul_f32 v34, s{sLOG2E}, v34
        v_exp_f32 v34, -v34
        v_sub_f32 v{vXN}, v{vXR}, v40
        v_add_f32 v34, 1.0, v34
        v_rcp_f32 v34, v34
        v_cvt_pk_bf16_f32 v{vXN}, 0, v{vXN}
        v_cvt_pk_bf16_f32 v{vSG}, 0, v34
        v_mul_f32 v{vXN}, v{vXN}, v41
        v_cvt_pk_bf16_f32 v{vXN}, 0, v{vXN}""")

    def y_finish(self):
        self.A(f"""v_mul_f32 v56, v56, v{vSG}
        v_cvt_pk_bf16_f32 v56, 0, v56
        v_add_f32 v56, v{vXN}, v56
        v_cvt_pk_bf16_f32 v56, 0, v56
        v_add_f32 v{vXR}, v{vXR}, v56
        v_cvt_pk_bf16_f32 v{vXR}, 0, v{vXR}""")

    def q_stage_and_final(self):
        A = self.A
        A(f"s_cmp_eq_u32 s{sP}, 1\ns_cbranch_scc1 L_final")
        l = self.role(R_GE4); self.q_wpre(); self.end(l)
        self.x_gather_pre()
        self.sync(self.o['sync_y'])
        l = self.role(R_LT5)
        self.x_gather()
        self.stamp(11)
        self.y_finish()
        A(f"ds_write_b16_d16_hi v77, v{vXR} offset:{L_XA}")
        self.end(l)
        A(f"s_mov_b32 s{sE}, {RQ[1]}\ns_waitcnt lgkmcnt(0)")
        self.barrier()
        l = self.role(R_GE4); self.q_mfma(sE, True); self.end(l)
        self.attn_pre()
        self.sync(self.o['sync_q'])
        l = self.role(R_456); self.q_gather(); self.end(l)
        A(f"s_mov_b32 s{sP}, 1")
        if self.o['dry']: A(f"s_cmp_eq_u32 s{sDRY}, 1\ns_cbranch_scc1 L_final_body")
        self.barrier()
        A("s_branch L_attn")
        A(f"""L_final:
        s_cmp_eq_u32 s{sT}, s{sX}
        s_cbranch_scc0 L_done
        L_final_body:""")
        self.x_gather_pre()
        self.sync(self.o['sync_y'])
        l = self.role(R_LT5)
        A(f"""v_lshrrev_b32 v1, 4, v0
        v_mul_u32_u24 v1, 1280, v1
        v_and_b32 v2, 15, v0
        v_lshl_add_u32 v77, v2, 1, v1
        s_lshl_b32 s{sF}, s{sV}, 5""")
        self.x_gather()
        self.y_finish()
        self.mem(f"buffer_store_short_d16_hi v{vXR}, v77, {srd(SOUT)}, s{sF} offen")
        self.end(l)
        if self.o['dry']: A(f"s_cmp_eq_u32 s{sDRY}, 1\ns_cbranch_scc1 L_dry_ret")
        A("L_done:")
        if int(self.o['pad']):
            A(f"""L_pad:
            s_memrealtime s[90:91]
            s_waitcnt lgkmcnt(0)
            s_sub_u32 s90, s90, s96
            s_cmp_lt_u32 s90, {int(self.o['pad'])*100}
            s_cbranch_scc1 L_pad""")
        self.stamp(11)
        A("L_end:")
        if self.prof:
            A(f"""s_mov_b64 exec, -1
            s_lshl_b32 s{sA}, s2, 3
            s_add_u32 s{sA}, s{sA}, s{sV}
            s_lshl_b32 s{sA}, s{sA}, 7
            s_add_u32 s{sA}, s{sA}, {STAMP}
            v_mov_b32 v1, 0""")
            for i in range(24): A(f"v_mov_b32 v{4+i}, s{sST+i}")
            A(f"v_mov_b32 v28, s{sFAST}\nv_mov_b32 v29, s{sTO}\nv_mov_b32 v30, 0\nv_mov_b32 v31, 0\ns_mov_b64 exec, 1")
            for i in range(7): A(f"buffer_store_dwordx4 {vr(4+4*i)}, v1, {srd(SWS)}, s{sA} offen offset:{16*i}")
        A("L_exit:\ns_endpgm")

    def build(self):
        self.prologue(); self.startup(); self.attention(); self.wo_stage(); self.gu_stage(); self.down_stage(); self.q_stage_and_final()
        for t in self.tail: self.A(t)
        body, nn = resolve(self.L)
        hdr = open('interleave_layers__sliding_block_cached__moe_arch_mod__decode.s.ref').read().split('\n')
        hl = [l for l in hdr if l.startswith(';') and '@launch' not in l and not l.startswith(';   ;')]
        hl = hl[:hl.index([l for l in hl if 'Override launch' in l][0])]
        out = hl + [f"; @launch grid=(256,1,1) block=(512,1,1) lds={LDS_SIZE}",
                    '.amdgcn_target "amdgcn-amd-amdhsa--gfx950"', ".text", f".globl {NAME}", ".p2align 8", f".type {NAME},@function", f"{NAME}:"]
        out += [("" if l.endswith(':') else "    ") + l for l in body]
        out += ['.section .rodata,"a"', ".p2align 6", f".amdhsa_kernel {NAME}",
                "  .amdhsa_next_free_vgpr 256", "  .amdhsa_next_free_sgpr 102", "  .amdhsa_accum_offset 160",
                "  .amdhsa_group_segment_fixed_size 0", "  .amdhsa_kernarg_size 104", "  .amdhsa_user_sgpr_count 2",
                "  .amdhsa_user_sgpr_kernarg_segment_ptr 1", "  .amdhsa_system_sgpr_workgroup_id_x 1",
                "  .amdhsa_float_denorm_mode_32 3", ".end_amdhsa_kernel"]
        return "\n".join(out) + "\n", nn

if __name__ == "__main__":
    path = sys.argv[1]
    opts = {}; prof = False
    for a in sys.argv[2:]:
        if a == 'prof': prof = True
        else:
            k, v = a.split('=')
            opts[k] = {'True': True, 'False': False}.get(v, v)
    s, nn = G(prof, opts).build()
    open(path, 'w').write(s)
    print("wrote", path, len(s.split('\n')), "lines, nops inserted:", nn)
```

```python
import sys
from asmlib import resolve

NAME = "interleave_layers__sliding_block_cached__moe_arch_mod__decode_kernel"

OSL = 896
RO = [0, 256 * OSL]
RX = [2 * 256 * OSL, 2 * 256 * OSL + 163840]
RY = [RX[1] + 163840, RX[1] + 2 * 163840]
RG = [RY[1] + 163840, RY[1] + 163840 + 524288]
RQ = [RG[1] + 524288, RG[1] + 524288 + 2097152]
RF = RQ[1] + 1048576
RE = RF + 32768
WS_END = RE + 2048
STAMP = WS_END
WS_SIZE = WS_END + 256 * 8 * 128
L_OC = 0
L_ML = L_OC + 12288
L_XA = L_ML + 64; XS = 176
L_HA = L_XA + 6 * XS; HS = 320
L_OA = L_HA + 4 * HS; OS = 832
L_QL = L_OA + 4 * OS
L_FL = L_QL + 384
L_CQ = L_FL + 64
L_WD = L_CQ + 768
L_WG = L_WD + 7680
L_WU = L_WG + 7680
L_WO = L_WU + 7680
L_WQ = L_WO + 30720
L_VP = L_WQ + 30720
LDS_SIZE = L_VP + 8 * 6144
sW, sV, sX, sT, sP, sDRY = 2, 3, 4, 5, 6, 7
SK, SVV, SWS, SWQ, SWO, SWG, SWU, SWD, SX0, SWR, SOUT, SDBG = range(8, 56, 4)
sFAST, sROLE, sTO = 56, 57, 58
sFULL = 60
sA, sB, sC, sD, sE, sF = 62, 63, 88, 89, 90, 91
sM = 92
sLOG2E, sSCALE, sINVN, sEPS = 93, 94, 95, 59
sSIG = 98
sST = 64
R_LT3, R_LT5, R_LT6, R_GE4, R_456, R_7, R_6 = range(7)
vXR, vXN, vSG, vCG, vCU, vCQ = 80, 81, 82, 83, 84, 85
VBASE = 88

def srd(b): return f"s[{b}:{b+3}]"
def vr(a, n=4): return f"v[{a}:{a+n-1}]" if n > 1 else f"v{a}"
def ar(a, n=4): return f"a[{a}:{a+n-1}]"

class G:
    def __init__(self, prof=False, opts=None):
        self.L = []; self.tail = []; self.n = 0; self.prof = prof
        self.o = dict(dry=True, sync_o='none', sync_x='ack', sync_g='none', sync_y='ack', sync_q='none', fast=True, clear='sc1', wdma=True, wflag='nt', bsleep=8, lim=0, lim2=0, extra=False, probe=-1, probep=0, pad=0, kvflag='nt')
        self.o.update(opts or {})
    def A(self, s):
        for l in s.split('\n'):
            l = l.strip()
            if l: self.L.append(l)
    def lab(self, p):
        self.n += 1; return f"L_{p}_{self.n}"
    def exec_mask(self, m):
        self.A(f"s_and_b32 exec_lo, s{sFULL}, 0x{m & 0xffffffff:x}\ns_and_b32 exec_hi, s{sFULL}, 0x{m >> 32:x}")
    def exec_full(self): self.A(f"s_mov_b64 exec, s[{sFULL}:{sFULL+1}]")
    def barrier(self):
        l = self.lab("nb"); self.A(f"s_cbranch_execz {l}\ns_barrier\n{l}:")
    def role(self, bit):
        l = self.lab("role"); self.A(f"s_bitcmp1_b32 s{sROLE}, {bit}\ns_cbranch_scc0 {l}"); return l
    def end(self, l): self.A(f"{l}:")
    def mem(self, lines):
        l = self.lab("nm"); self.A(f"s_cbranch_execz {l}"); self.A(lines); self.A(f"{l}:")
    def stores(self, lines, intra):
        if intra and self.o['fast']:
            l1 = self.lab("st"); l2 = self.lab("st")
            self.A(f"s_cbranch_execz {l2}\ns_cmp_eq_u32 s{sFAST}, 0\ns_cbranch_scc1 {l1}")
            self.A(lines.format(f="")); self.A(f"{l2}:")
            self.tail.append(f"{l1}:\n" + lines.format(f=" sc1") + f"\ns_branch {l2}")
        else:
            self.mem(lines.format(f=" sc1"))
    def poll(self, loads, regs, tmp):
        lp = self.lab("poll"); lr = self.lab("retry")
        self.A(f"{lp}:"); self.mem(loads)
        self.A("s_waitcnt vmcnt(0)")
        regs = list(regs)
        a, b = tmp, tmp + 1
        if len(regs) <= 3:
            if len(regs) == 2: self.A(f"v_max_u32 v{a}, v{regs[0]}, v{regs[1]}")
            else: self.A(f"v_max3_u32 v{a}, v{regs[0]}, v{regs[1]}, v{regs[2]}")
        else:
            self.A(f"v_max3_u32 v{a}, v{regs[0]}, v{regs[1]}, v{regs[2]}")
            rest = regs[3:]
            if len(rest) >= 3:
                self.A(f"v_max3_u32 v{b}, v{rest[0]}, v{rest[1]}, v{rest[2]}"); rest = rest[3:]
                cur = a
                while len(rest) >= 2:
                    self.A(f"v_max3_u32 v{cur}, v{cur}, v{rest[0]}, v{rest[1]}"); rest = rest[2:]; cur = a + b - cur
                if rest: self.A(f"v_max3_u32 v{a}, v{a}, v{b}, v{rest[0]}")
                else: self.A(f"v_max_u32 v{a}, v{a}, v{b}")
            elif len(rest) == 2: self.A(f"v_max3_u32 v{a}, v{a}, v{rest[0]}, v{rest[1]}")
            else: self.A(f"v_max_u32 v{a}, v{a}, v{rest[0]}")
        self.A(f"v_cmp_eq_u32 vcc, -1, v{a}\ns_cbranch_vccnz {lr}")
        self.tail.append(f"{lr}:\ns_sub_u32 s{sTO}, s{sTO}, 1\ns_cbranch_scc1 L_end\ns_branch {lp}")
    def stamp(self, i, both=True):
        if int(self.o['probe']) == i:
            l = self.lab("probe")
            self.A(f"s_cmp_eq_u32 s{sP}, {self.o['probep']}\ns_cbranch_scc0 {l}\ns_cbranch_execz {l}\ns_memrealtime s[96:97]\ns_waitcnt lgkmcnt(0)\n{l}:")
        if not self.prof: return
        self.A("s_memrealtime s[96:97]\ns_waitcnt lgkmcnt(0)")
        if both:
            self.A(f"s_cmp_eq_u32 s{sP}, 0\ns_cselect_b32 s{sST+i}, s96, s{sST+i}\ns_cselect_b32 s{sST+12+i}, s{sST+12+i}, s96")
        else:
            self.A(f"s_mov_b32 s{sST+i}, s96")
    def sync(self, kind):
        if kind == 'ack': self.A("s_waitcnt vmcnt(0)"); self.barrier()
        elif kind.startswith('sleep'): self.A(f"s_sleep {int(kind[5:])}")
        elif kind.startswith('acks'): self.A("s_waitcnt vmcnt(0)"); self.barrier(); self.A(f"s_sleep {int(kind[4:])}")
    def rnd(self, d, s): self.A(f"v_cvt_pk_bf16_f32 v{d}, 0, v{s}")
    def treduce(self, r0, r1, r2, r3):
        self.A(f"""v_permlane32_swap_b32 v{r0}, v{r2}
        v_permlane32_swap_b32 v{r1}, v{r3}
        v_add_f32 v{r0}, v{r0}, v{r2}
        v_add_f32 v{r1}, v{r1}, v{r3}
        v_permlane16_swap_b32 v{r0}, v{r1}
        v_add_f32 v{r0}, v{r0}, v{r1}""")
    def red8(self, regs):
        for perm in ("quad_perm:[1,0,3,2]", "quad_perm:[2,3,0,1]", "row_half_mirror"):
            for r in regs: self.A(f"v_add_f32_dpp v{r}, v{r}, v{r} {perm} row_mask:0xf bank_mask:0xf")
    def lnstats(self, sq, sm, m, rs, t):
        self.A(f"""v_mul_f32 v{sm}, s{sINVN}, v{sm}
        v_mul_f32 v{sq}, s{sINVN}, v{sq}
        v_fma_f32 v{t}, -v{sm}, v{sm}, v{sq}
        v_cvt_pk_bf16_f32 v{m}, 0, v{sm}
        v_max_f32 v{t}, 0, v{t}
        v_cvt_pk_bf16_f32 v{t}, 0, v{t}
        v_add_f32 v{t}, s{sEPS}, v{t}
        v_cvt_pk_bf16_f32 v{t}, 0, v{t}
        v_sqrt_f32 v{t}, v{t}
        v_cvt_pk_bf16_f32 v{t}, 0, v{t}
        v_rcp_f32 v{rs}, v{t}""")
    def tr_addr(self, d, rs, t):
        self.A(f"""v_lshrrev_b32 v{t}, 4, v0
        v_bfe_u32 v{d}, v0, 2, 2
        v_lshl_add_u32 v{d+1}, v{t}, 2, v{d}
        v_lshl_add_u32 v{d}, v{t}, 3, v{d}
        v_mul_u32_u24 v{d}, {rs}, v{d}
        v_mul_u32_u24 v{d+1}, {rs}, v{d+1}
        v_and_b32 v{t}, 3, v0
        v_lshl_add_u32 v{d}, v{t}, 3, v{d}
        v_lshl_add_u32 v{d+1}, v{t}, 3, v{d+1}""")
    def wfrag32(self, dst, addr, off, rs):
        self.A(f"ds_read_b64_tr_b16 {vr(dst,2)}, v{addr} offset:{off}\nds_read_b64_tr_b16 {vr(dst+2,2)}, v{addr} offset:{off+4*rs}")

    def prologue(self):
        A = self.A
        A(f"""s_cmp_ge_u32 s2, 256
        s_cbranch_scc1 L_exit""")
        if int(self.o['pad']): A("s_memrealtime s[96:97]")
        A(f"""s_load_dwordx16 s[64:79], s[0:1], 0
        s_load_dwordx8 s[80:87], s[0:1], 64
        s_load_dwordx2 s[88:89], s[0:1], 96
        v_lshrrev_b32 v1, 6, v0
        v_and_b32 v0, 63, v0
        v_readfirstlane_b32 s{sV}, v1
        s_and_b32 s{sX}, s2, 7
        s_lshr_b32 s{sT}, s2, 3
        s_mov_b32 s{sP}, 0
        s_mov_b32 s{sDRY}, 0
        s_mov_b64 s[{sFULL}:{sFULL+1}], -1
        s_mov_b32 s{sTO}, 0x100000
        s_mov_b32 s{sFAST}, 0
        s_mov_b32 s{sLOG2E}, 0x3fb8aa3b
        s_mov_b32 s{sSCALE}, 0x3d93cd3a
        s_mov_b32 s{sINVN}, 0x3acccccd
        s_mov_b32 s{sEPS}, 0x3727c5ac
        s_lshl_b32 s{sSIG}, s{sX}, 5
        s_add_u32 s{sSIG}, s{sSIG}, s{sT}""")
        tab = 0
        for v in range(8):
            bits = (v < 3) << R_LT3 | (v < 5) << R_LT5 | (v < 6) << R_LT6 | (v >= 4) << R_GE4 | (4 <= v <= 6) << R_456 | (v == 7) << R_7 | (v == 6) << R_6
            tab |= bits << (8 * v)
        A(f"""s_mov_b32 s90, 0x{tab & 0xffffffff:x}
        s_mov_b32 s91, 0x{tab >> 32:x}
        s_lshl_b32 s{sA}, s{sV}, 3
        s_lshr_b64 s[90:91], s[90:91], s{sA}
        s_and_b32 s{sROLE}, s90, 0xff""")
        A(f"""s_lshr_b32 s{sA}, s{sT}, 3
        s_lshl_b32 s{sB}, s{sX}, 2
        s_add_u32 s92, s{sA}, s{sB}            ; h
        s_bfe_u32 s{sA}, s{sT}, 0x20001        ; b
        s_lshl_b32 s{sA}, s{sA}, 5
        s_add_u32 s{sA}, s{sA}, s92
        s_lshl_b32 s{sA}, s{sA}, 12
        s_and_b32 s{sB}, s{sT}, 1
        s_lshl_b32 s{sB}, s{sB}, 9
        s_add_u32 s{sA}, s{sA}, s{sB}
        s_lshl_b32 s{sB}, s{sV}, 6
        s_add_u32 s{sA}, s{sA}, s{sB}
        s_add_u32 s{sA}, s{sA}, 3072
        s_mul_i32 s{sA}, s{sA}, 384
        v_mov_b32 v2, 0
        v_mov_b32 v3, 0
        v_mov_b32 v1, {L_FL}
        ds_write_b64 v1, v[2:3]
        s_waitcnt lgkmcnt(0)
        s_barrier""")
        def mk(b, p, off, size):
            if off is None:
                A(f"s_mov_b32 s{b}, s{p}\ns_mov_b32 s{b+1}, s{p+1}\ns_mov_b32 s{b+2}, {size}")
            else:
                A(f"s_add_u32 s{b}, s{p}, s{off}\ns_addc_u32 s{b+1}, s{p+1}, 0")
                if isinstance(size, int): A(f"s_mov_b32 s{b+2}, {size}")
                else: A(f"s_sub_u32 s{b+2}, {size[0]}, s{off}")
            A(f"s_mov_b32 s{b+3}, 0x20000")
        mk(SK, 66, sA, 24576); mk(SVV, 68, sA, 24576)
        mk(SWS, 88, None, WS_SIZE)
        A(f"""s_and_b32 s90, s{sT}, 7               ; ks
        s_mul_i32 s{sA}, s90, {80*12288}
        s_mul_i32 s{sB}, s92, 384
        s_add_u32 s{sA}, s{sA}, s{sB}
        s_and_b32 s{sB}, s{sV}, 3
        s_mul_i32 s{sB}, s{sB}, 96
        s_add_u32 s{sA}, s{sA}, s{sB}""")
        mk(SWQ, 70, sA, (640 * 6144 * 2,))
        A(f"""s_lshr_b32 s{sA}, s{sT}, 4
        s_lshl_b32 s{sB}, s{sX}, 1
        s_add_u32 s91, s{sA}, s{sB}             ; P = 2x + (t>>4)
        s_mul_i32 s{sA}, s91, {384*1280}
        s_and_b32 s{sB}, s{sT}, 15
        s_mul_i32 s{sB}, s{sB}, 80
        s_add_u32 s{sA}, s{sA}, s{sB}""")
        mk(SWO, 72, sA, (6144 * 640 * 2,))
        A(f"""s_mul_i32 s{sA}, s91, {96*1280}
        s_add_u32 s{sA}, s{sA}, s{sB}""")
        mk(SWD, 82, sA, (1536 * 640 * 2,))
        A(f"""s_mul_i32 s{sA}, s90, {80*3072}
        s_mul_i32 s{sB}, s92, 96
        s_add_u32 s{sA}, s{sA}, s{sB}""")
        mk(SWG, 78, sA, (640 * 1536 * 2,)); mk(SWU, 80, sA, (640 * 1536 * 2,))
        A(f"s_mul_i32 s{sA}, s90, 160")
        mk(SX0, 64, sA, (5120,)); mk(SWR, 76, sA, (1280,)); mk(SOUT, 84, sA, (5120,))
        mk(SDBG, 86, None, 256)
        if self.prof:
            for i in range(24): A(f"s_mov_b32 s{sST+i}, 0")
        self.stamp(0, both=False)

    def thr(self, lim):
        if lim: self.A(f"s_waitcnt vmcnt({lim-1})")
    def dma60(self, srdb, vaddr, n, rows, rstride, lds0, i0=0, lim=0):
        for i in range(i0, i0 + n):
            self.thr(lim)
            self.A(f"s_add_u32 m0, s{sB}, {lds0 + i*960}\ns_mov_b32 s{sA}, {i*rows*rstride}\nbuffer_load_dwordx4 v{vaddr}, {srd(srdb)}, s{sA} offen {self.o['wflag'] if self.o['wflag'] != 'plain' else ''} lds")

    def dma_addr(self, d, cpr, rstride):
        mul = {5: 52, 6: 43}[cpr]
        self.A(f"""v_mul_u32_u24 v{d}, {mul}, v0
        v_lshrrev_b32 v{d}, 8, v{d}
        v_mul_u32_u24 v3, {cpr}, v{d}
        v_sub_u32 v3, v0, v3
        v_mul_u32_u24 v{d}, {rstride}, v{d}
        v_lshl_add_u32 v{d}, v3, 4, v{d}""")

    def kv_loads(self, lim):
        A = self.A
        KF = self.o['kvflag'].replace('plain', '').replace('_', ' ')
        A(f"""v_bfe_u32 v1, v0, 1, 3
        v_mul_u32_u24 v1, 384, v1
        v_lshrrev_b32 v3, 4, v0
        v_lshl_add_u32 v1, v3, 5, v1
        v_and_b32 v3, 1, v0
        v_lshl_add_u32 v1, v3, 4, v1
        v_lshrrev_b32 v2, 3, v0
        v_mul_u32_u24 v2, 384, v2
        v_and_b32 v3, 7, v0
        v_lshl_add_u32 v2, v3, 4, v2
        s_mul_i32 s{sB}, s{sV}, 6144""")
        if self.o['extra']:
            A(f"s_sub_u32 s{SK}, s{SK}, {1024*384}\ns_subb_u32 s{SK+1}, s{SK+1}, 0")
            for g in range(8):
                A(f"s_mov_b32 s{sA}, {g*3072}")
                for s in range(3):
                    A(f"buffer_load_dwordx4 {ar((g*3+s)*4)}, v1, {srd(SK)}, s{sA} offen offset:{s*128} {KF}")
            A(f"s_add_u32 s{SK}, s{SK}, {1024*384}\ns_addc_u32 s{SK+1}, s{SK+1}, 0")
        for g in range(8):
            A(f"s_mov_b32 s{sA}, {g*3072}")
            for s in range(3):
                self.thr(lim)
                A(f"buffer_load_dwordx4 {ar((g*3+s)*4)}, v1, {srd(SK)}, s{sA} offen offset:{s*128} {KF}")
        for g in range(8):
            for s in range(3):
                self.thr(lim)
                if g < 2:
                    A(f"s_add_u32 m0, s{sB}, {L_VP + (g*3+s)*1024}\ns_mov_b32 s{sA}, {g*3072+s*128}\nbuffer_load_dwordx4 v2, {srd(SVV)}, s{sA} offen {KF} lds")
                else:
                    if s == 0: A(f"s_mov_b32 s{sA}, {g*3072}")
                    A(f"buffer_load_dwordx4 {vr(VBASE+((g-2)*3+s)*4)}, v2, {srd(SVV)}, s{sA} offen offset:{s*128} {KF}")

    def xres_load(self):
        l = self.role(R_LT5)
        self.A(f"""v_lshrrev_b32 v1, 4, v0
        v_mul_u32_u24 v1, 1280, v1
        v_and_b32 v2, 15, v0
        v_lshl_add_u32 v1, v2, 1, v1
        s_lshl_b32 s{sA}, s{sV}, 5
        v_mov_b32 v{vXR}, 0
        buffer_load_short_d16_hi v{vXR}, v1, {srd(SX0)}, s{sA} offen""")
        self.end(l)

    def attn_pre(self):
        self.A(f"""v_lshrrev_b32 v1, 4, v0
        v_and_b32 v2, 1, v0
        v_lshl_add_u32 v86, v1, 1, v2
        v_lshlrev_b32 v86, 4, v86
        v_lshlrev_b32 v2, 4, v2
        v_mov_b32 v3, 0xffff
        v_lshlrev_b32 v3, v2, v3
        v_bfe_u32 v2, v0, 1, 2""")
        for i in range(4):
            self.A(f"v_cmp_eq_u32 vcc, {i}, v2\nv_cndmask_b32 v{76+i}, 0, v3, vcc")

    def q_wpre(self):
        self.tr_addr(46, 96, 1)
        self.A(f"s_and_b32 s{sA}, s{sV}, 3\ns_mul_i32 s{sA}, s{sA}, 7680\ns_add_u32 s{sA}, s{sA}, {L_WQ}\nv_add_u32 v46, s{sA}, v46\nv_add_u32 v47, s{sA}, v47")
        for t in range(3):
            self.wfrag32(16 + 10 * t, 46, t * 32, 96)
            self.wfrag32(20 + 10 * t, 46, t * 32 + 32 * 96, 96)
            self.A(f"ds_read_b64_tr_b16 {vr(24+10*t,2)}, v47 offset:{t*32 + 64*96}")
        self.xa_addr()
        self.A(f"""v_and_b32 v1, 15, v0
        v_mul_u32_u24 v72, 768, v1
        v_lshrrev_b32 v1, 4, v0
        v_lshl_add_u32 v72, v1, 4, v72
        s_and_b32 s{sA}, s{sV}, 3
        s_mul_i32 s{sA}, s{sA}, 192
        s_lshl_b32 s{sB}, s{sSIG}, 12
        s_add_u32 s{sA}, s{sA}, s{sB}
        v_add_u32 v72, s{sA}, v72
        v_lshl_add_u32 v73, v1, 4, s{sB}
        v_add_u32 v73, 3840, v73""")
    def xa_addr(self):
        self.A(f"""v_and_b32 v1, 15, v0
        v_lshrrev_b32 v2, 4, v0
        v_min_u32 v14, 5, v1
        v_mul_u32_u24 v14, {XS}, v14
        v_lshl_add_u32 v15, v2, 3, v14
        v_lshl_add_u32 v14, v2, 4, v14
        v_and_b32 v3, 3, v0
        v_bfe_u32 v1, v0, 2, 2
        v_add_u32 v74, 3, v3
        v_min_u32 v74, 5, v74
        v_cmp_eq_u32 vcc, 0, v3
        v_cndmask_b32 v74, v74, v1, vcc
        v_mul_u32_u24 v74, {XS}, v74
        v_lshl_add_u32 v75, v2, 3, v74
        v_lshl_add_u32 v74, v2, 4, v74""")
    def xfrags(self):
        self.A(f"""ds_read_b128 v[4:7], v14 offset:{L_XA}
        ds_read_b128 v[8:11], v14 offset:{L_XA+64}
        ds_read_b64 v[12:13], v15 offset:{L_XA+128}""")
    def gram_reads(self):
        self.A(f"""ds_read_b128 v[48:51], v74 offset:{L_XA}
        ds_read_b128 v[52:55], v74 offset:{L_XA+64}
        ds_read_b64 v[46:47], v75 offset:{L_XA+128}""")
    def gram_mfma(self):
        self.A(f"""v_mfma_f32_16x16x32_bf16 v[68:71], v[48:51], v[4:7], 0
        v_mfma_f32_16x16x32_bf16 v[68:71], v[52:55], v[8:11], v[68:71]
        v_mfma_f32_16x16x16_bf16 v[68:71], v[46:47], v[12:13], v[68:71]
        v_mov_b32_dpp v71, v70 row_newbcast:4 row_mask:0xf bank_mask:0xf""")
    def q_mfma(self, sreg, intra, tagged=False):
        A = self.A
        self.xfrags()
        l = self.role(R_7); self.gram_reads(); self.end(l)
        A("s_waitcnt lgkmcnt(0)")
        for s in range(3):
            for t in range(3):
                c = "0" if s == 0 else vr(56 + 4 * t)
                if s < 2: A(f"v_mfma_f32_16x16x32_bf16 {vr(56+4*t)}, {vr(16+10*t+4*s)}, {vr(4+4*s)}, {c}")
                else: A(f"v_mfma_f32_16x16x16_bf16 {vr(56+4*t)}, {vr(24+10*t,2)}, v[12:13], {c}")
        if tagged:
            A(f"""v_and_b32 v1, 15, v0
            v_mul_u32_u24 v72, 1536, v1
            v_lshrrev_b32 v1, 4, v0
            v_lshl_add_u32 v72, v1, 4, v72
            s_and_b32 s{sA}, s{sV}, 3
            s_mul_i32 s{sA}, s{sA}, 384
            s_lshl_b32 s{sB}, s{sSIG}, 13
            s_add_u32 s{sA}, s{sA}, s{sB}
            v_add_u32 v72, s{sA}, v72
            v_lshl_add_u32 v73, v1, 4, s{sB}
            v_add_u32 v73, 7680, v73""")
            for t in range(3):
                for i in range(4): A(f"v_mov_b32 v{16+8*t+2*i}, v{56+4*t+i}\nv_mov_b32 v{17+8*t+2*i}, s101")
            self.exec_mask(0x001f001f001f001f)
            for t in range(3):
                for h in range(2): A(f"buffer_store_dwordx4 {vr(16+8*t+4*h)}, v72, {srd(SWS)}, s{sreg} offen offset:{128*t+64*h} sc1")
            self.exec_full()
            l = self.role(R_7)
            self.gram_mfma()
            A("v_mov_b32 v70, v69\nv_mov_b32 v69, s101\nv_mov_b32 v71, s101")
            self.exec_mask(1 | 1 << 17 | 1 << 34 | 1 << 51)
            A(f"buffer_store_dwordx4 v[68:71], v73, {srd(SWS)}, s{sreg} offen sc1")
            self.exec_full()
            self.end(l)
            return
        self.exec_mask(0x001f001f001f001f)
        self.stores("\n".join(f"buffer_store_dwordx4 {vr(56+4*t)}, v72, {srd(SWS)}, s{sreg} offen offset:{64*t}{{f}}" for t in range(3)), intra)
        self.exec_full()
        l = self.role(R_7)
        self.gram_mfma()
        self.exec_mask(1 | 1 << 17 | 1 << 34 | 1 << 51)
        self.stores(f"buffer_store_dwordx4 v[68:71], v73, {srd(SWS)}, s{sreg} offen{{f}}", intra)
        self.exec_full()
        self.end(l)
    def q_gather_addr(self, byw):
        A = self.A
        A(f"""s_and_b32 s{sA}, s{sSIG}, 0xf8
        s_lshl_b32 s{sA}, s{sA}, 12
        s_bfe_u32 s{sB}, s{sT}, 0x20001          ; b
        s_mul_i32 s{sC}, s{sB}, 768""")
        if byw: A(f"s_and_b32 s{sD}, s{sV}, 3\ns_lshl_b32 s{sD}, s{sD}, 8\ns_add_u32 s{sD}, s{sD}, s{sA}")
        else: A(f"s_mov_b32 s{sD}, s{sA}")
        A(f"""v_lshrrev_b32 v1, 4, v0
        v_and_b32 v2, 15, v0
        v_lshlrev_b32 v3, 12, v1
        v_lshl_add_u32 v3, v2, 4, v3
        v_add_u32 v70, s{sD}, v3
        v_add_u32 v71, s{sC}, v70
        v_and_b32 v3, 7, v0
        v_lshlrev_b32 v3, 12, v3
        s_lshl_b32 s{sB}, s{sB}, 4
        s_add_u32 s{sB}, s{sB}, s{sA}
        v_add_u32 v72, s{sB}, v3
        s_add_u32 s{sF}, s{sE}, 16384
        v_lshlrev_b32 v73, 3, v2
        v_lshl_add_u32 v73, v1, 1, v73""")
        if byw: A(f"s_and_b32 s{sA}, s{sV}, 3\ns_lshl_b32 s{sA}, s{sA}, 7\nv_add_u32 v73, s{sA}, v73")
    def q_gather(self):
        A = self.A
        self.q_gather_addr(1)
        A(f"v_lshlrev_b32 v74, 1, v73\nds_read_b32 v16, v74 offset:{L_CQ}")
        loads = f"""buffer_load_dwordx2 v[12:13], v72, {srd(SWS)}, s{sE} offen offset:3840 sc1
        buffer_load_dwordx4 v[4:7], v71, {srd(SWS)}, s{sE} offen sc1
        buffer_load_dwordx4 v[8:11], v71, {srd(SWS)}, s{sF} offen sc1"""
        self.poll(loads, range(4, 14), 24)
        self.red8([12, 13])
        for i in range(4): A(f"v_add_f32 v{4+i}, v{4+i}, v{8+i}")
        self.lnstats(12, 13, 14, 15, 24)
        self.treduce(4, 5, 6, 7)
        A(f"""s_waitcnt lgkmcnt(0)
        v_fma_f32 v4, -v14, v16, v4
        v_mul_f32 v4, v4, v15
        v_cvt_pk_bf16_f32 v4, 0, v4
        ds_write_b16_d16_hi v73, v4 offset:{L_QL}
        s_waitcnt lgkmcnt(0)""")

    def startup(self):
        A = self.A
        L1 = int(self.o['lim']); L2 = int(self.o['lim2'])
        A(f"s_bitcmp1_b32 s{sROLE}, {R_GE4}\ns_cbranch_scc1 L_start_hi")
        self.xres_load()
        self.dma_addr(4, 5, 1280); self.dma_addr(5, 6, 3072)
        if not self.o['wdma']: A("s_branch L_nowdma")
        self.exec_mask((1 << 60) - 1)
        A(f"s_mul_i32 s{sC}, s{sV}, {8*12*1280}\nv_add_u32 v6, s{sC}, v4\ns_mul_i32 s{sB}, s{sV}, {8*960}")
        self.dma60(SWO, 6, 8, 12, 1280, L_WO, lim=L1)
        A(f"s_mul_i32 s{sC}, s{sV}, {2*10*3072}\nv_add_u32 v6, s{sC}, v5\ns_mul_i32 s{sB}, s{sV}, {2*960}")
        self.dma60(SWG, 6, 2, 10, 3072, L_WG, lim=L1); self.dma60(SWU, 6, 2, 10, 3072, L_WU, lim=L1)
        A(f"s_mul_i32 s{sC}, s{sV}, {2*12*1280}\nv_add_u32 v6, s{sC}, v4")
        self.dma60(SWD, 6, 2, 12, 1280, L_WD, lim=L1)
        A("L_nowdma:")
        self.exec_full()
        self.kv_loads(L1)
        self.attn_pre()
        self.stamp(1, both=False)
        A("s_branch L_wait_q")
        A(f"""L_start_hi:
        s_setprio 3
        v_mov_b32 v1, 0
        s_mov_b32 s{sA}, {RE}
        buffer_load_dword v69, v1, {srd(SWS)}, s{sA} offen sc1""")
        self.xres_load()
        self.dma_addr(4, 6, 12288)
        self.exec_mask((1 << 60) - 1)
        A(f"s_and_b32 s{sB}, s{sV}, 3\ns_mul_i32 s{sB}, s{sB}, 7680")
        self.dma60(SWQ, 4, 8, 10, 12288, L_WQ)
        self.exec_full()
        A(f"""v_mul_u32_u24 v5, 26, v0
        v_lshrrev_b32 v5, 8, v5                  ; row = l/10
        v_mul_u32_u24 v6, 10, v5
        v_sub_u32 v6, v0, v6                     ; c = l%10
        v_mul_u32_u24 v7, 1280, v5
        v_lshl_add_u32 v7, v6, 4, v7
        v_lshlrev_b32 v8, 4, v6
        v_mul_u32_u24 v9, {XS}, v5
        v_lshl_add_u32 v9, v6, 4, v9""")
        A("v_mov_b32 v60, 0x3f803f80\nv_mov_b32 v61, 0x3f803f80\nv_mov_b32 v62, 0x3f803f80\nv_mov_b32 v63, 0x3f803f80")
        self.exec_mask((1 << 40) - 1)
        A(f"buffer_load_dwordx4 v[60:63], v7, {srd(SX0)}, 0 offen")
        self.exec_mask(((1 << 60) - 1) ^ ((1 << 50) - 1))
        A(f"buffer_load_dwordx4 v[60:63], v8, {srd(SWR)}, 0 offen")
        self.exec_full()
        A("s_waitcnt vmcnt(0)")
        self.stamp(12, both=False)
        self.exec_mask((1 << 60) - 1)
        A(f"ds_write_b128 v9, v[60:63] offset:{L_XA}")
        self.exec_full()
        self.q_wpre()
        A(f"""v_add_u32 v69, 1, v69
        s_waitcnt lgkmcnt(0)
        v_readfirstlane_b32 s101, v69
        s_mov_b32 s{sE}, {RQ[0]}""")
        self.q_mfma(sE, False, tagged=True)
        self.stamp(14, both=False)
        CF = ' ' + self.o['clear'] if self.o['clear'] not in ('plain','none') else ''
        l = self.role(R_6)
        A("v_mov_b32 v64, -1\nv_mov_b32 v65, -1\nv_mov_b32 v66, -1\nv_mov_b32 v67, -1\nv_lshlrev_b32 v10, 4, v0")
        if self.o['clear'] == 'none': A('s_branch L_noclear')
        A(f"s_mul_i32 s{sA}, s{sSIG}, {OSL}")
        self.exec_mask((1 << 56) - 1)
        for p in range(2): A(f"s_add_u32 s{sB}, s{sA}, {RO[p]}\nbuffer_store_dwordx4 v[64:67], v10, {srd(SWS)}, s{sB} offen{CF}")
        A(f"s_mul_i32 s{sA}, s{sSIG}, 640")
        self.exec_mask((1 << 40) - 1)
        for r in RX + RY: A(f"s_add_u32 s{sB}, s{sA}, {r}\nbuffer_store_dwordx4 v[64:67], v10, {srd(SWS)}, s{sB} offen{CF}")
        self.exec_full()
        A(f"s_lshl_b32 s{sA}, s{sSIG}, 12\ns_add_u32 s{sA}, s{sA}, {RQ[1]}")
        for i in range(4): A(f"buffer_store_dwordx4 v[64:67], v10, {srd(SWS)}, s{sA} offen offset:{1024*i}{CF}")
        A(f"s_lshl_b32 s{sA}, s{sSIG}, 11")
        for p in range(2):
            A(f"s_add_u32 s{sB}, s{sA}, {RG[p]}")
            for i in range(2): A(f"buffer_store_dwordx4 v[64:67], v10, {srd(SWS)}, s{sB} offen offset:{1024*i}{CF}")
        A(f"""L_noclear:
        s_getreg_b32 s99, hwreg(HW_REG_XCC_ID, 0, 4)
        v_mov_b32 v4, {L_FL}
        v_mov_b32 v6, s101
        v_mov_b32 v7, s99
        v_mov_b32 v8, s101
        v_mov_b32 v9, s99
        s_lshl_b32 s{sA}, s{sSIG}, 7
        s_add_u32 s{sA}, s{sA}, {RF}
        s_waitcnt vmcnt(0)
        s_mov_b64 exec, 0xff
        buffer_store_dwordx4 v[6:9], v10, {srd(SWS)}, s{sA} offen sc1
        s_mov_b64 exec, -1""")
        self.end(l)
        self.stamp(1, both=False)
        if self.o['dry']:
            l = self.lab("nodry")
            A(f"""s_cmp_eq_u32 s{sV}, 7
            s_cbranch_scc0 {l}
            s_mov_b32 s{sDRY}, 1
            s_mov_b32 s100, s{sROLE}
            s_mov_b32 s{sROLE}, 0xff
            s_mov_b64 s[{sFULL}:{sFULL+1}], 0
            s_mov_b64 exec, 0
            s_branch L_attn
            L_dry_ret:
            s_mov_b32 s{sDRY}, 0
            s_mov_b32 s{sP}, 0
            s_mov_b32 s{sROLE}, s100
            s_mov_b64 s[{sFULL}:{sFULL+1}], -1
            s_mov_b64 exec, -1
            {l}:""")
        l = self.role(R_7)
        lp = self.lab("tq"); lr = self.lab("tqr")
        self.stamp(13, both=False)
        A(f"""s_and_b32 s{sA}, s{sSIG}, 0xf8
        s_lshl_b32 s{sA}, s{sA}, 13
        s_add_u32 s{sE}, s{sA}, {RQ[0]}
        s_add_u32 s{sF}, s{sE}, 32768
        s_bfe_u32 s{sB}, s{sT}, 0x20001          ; b
        s_mul_i32 s{sC}, s{sB}, 1536
        v_lshrrev_b32 v1, 4, v0
        v_and_b32 v2, 15, v0
        v_lshlrev_b32 v70, 13, v1
        v_bfe_u32 v3, v0, 2, 2
        v_lshl_add_u32 v70, v3, 7, v70
        v_and_b32 v3, 3, v0
        v_lshl_add_u32 v70, v3, 4, v70
        v_add_u32 v71, s{sC}, v70
        v_add_u32 v70, 6144, v70
        v_and_b32 v3, 7, v0
        v_lshlrev_b32 v72, 13, v3
        s_lshl_b32 s{sB}, s{sB}, 4
        v_add_u32 v72, s{sB}, v72
        v_add_u32 v72, 7680, v72
        v_lshlrev_b32 v73, 3, v2
        v_lshl_add_u32 v73, v1, 1, v73
        v_lshlrev_b32 v74, 1, v73
        {lp}:""")
        R0 = [4, 36, 88]
        for sg in range(3):
            r = R0[sg]
            for j, (va, so) in enumerate(((71, sE), (71, sF), (70, sE), (70, sF))):
                A(f"""buffer_load_dwordx4 {vr(r+8*j)}, v{va}, {srd(SWS)}, s{so} offen offset:{512*sg} sc1
                buffer_load_dwordx4 {vr(r+8*j+4)}, v{va}, {srd(SWS)}, s{so} offen offset:{512*sg+64} sc1""")
        A(f"""buffer_load_dwordx4 v[120:123], v72, {srd(SWS)}, s{sE} offen sc1
        s_waitcnt vmcnt(0)
        v_xor_b32 v1, s101, v121
        v_xor_b32 v2, s101, v123
        v_or_b32 v1, v1, v2""")
        for sg in range(3):
            for j in range(8):
                r = R0[sg] + 4 * j
                A(f"v_xor_b32 v2, s101, v{r+1}\nv_xor_b32 v3, s101, v{r+3}\nv_or3_b32 v1, v1, v2, v3")
        A(f"v_cmp_ne_u32 vcc, 0, v1\ns_cbranch_vccnz {lr}")
        self.tail.append(f"{lr}:\ns_sub_u32 s{sTO}, s{sTO}, 1\ns_cbranch_scc1 L_end\ns_branch {lp}")
        self.red8([120, 122])
        self.lnstats(120, 122, 124, 125, 126)
        for sg in range(3):
            r = R0[sg]
            for i in range(4): A(f"v_add_f32 v{r+2*i}, v{r+2*i}, v{r+8+2*i}\nv_add_f32 v{r+16+2*i}, v{r+16+2*i}, v{r+24+2*i}")
            self.treduce(r, r + 2, r + 4, r + 6); self.treduce(r + 16, r + 18, r + 20, r + 22)
            A(f"""ds_write_b32 v74, v{r+16} offset:{L_CQ + 256*sg}
            v_fma_f32 v{r}, -v124, v{r+16}, v{r}
            v_mul_f32 v{r}, v{r}, v125
            v_cvt_pk_bf16_f32 v{r}, 0, v{r}
            ds_write_b16_d16_hi v73, v{r} offset:{L_QL + 128*sg}""")
        A(f"""v_mov_b32 v4, 1
        v_mov_b32 v5, {L_FL}
        v_mov_b32 v6, s101
        ds_write_b32 v5, v6 offset:8
        s_waitcnt lgkmcnt(0)
        ds_write_b32 v5, v4""")
        self.end(l)
        self.stamp(2, both=False)
        A("s_setprio 0")
        self.kv_loads(L2)
        self.attn_pre()
        lw2 = self.lab("wq")
        A(f"""L_wait_q:
        v_mov_b32 v5, {L_FL}
        ds_read_b32 v4, v5
        s_waitcnt lgkmcnt(0)
        v_cmp_eq_u32 vcc, 0, v4
        s_cbranch_vccnz {lw2}""")
        self.tail.append(f"{lw2}:\ns_sleep 4\ns_sub_u32 s{sTO}, s{sTO}, 1\ns_cbranch_scc1 L_end\ns_branch L_wait_q")

    def attention(self):
        A = self.A
        A("L_attn:")
        for s in range(3): A(f"ds_read_b128 {vr(4+4*s)}, v86 offset:{L_QL + 128*s}")
        A(f"""s_mul_i32 s{sA}, s{sV}, 6144
        s_add_u32 s{sA}, s{sA}, {L_VP}
        v_lshl_add_u32 v87, v0, 4, s{sA}
        s_waitcnt vmcnt(24) lgkmcnt(0)""")
        self.stamp(3)
        def extract(g):
            d = 16 + 4 * g
            return [f"v_add_f32_dpp v{d}, v{d+1}, v{d} quad_perm:[1,0,3,2] row_mask:0xf bank_mask:0x3",
                    f"v_add_f32_dpp v{d}, v{d+3}, v{d+2} quad_perm:[1,0,3,2] row_mask:0xf bank_mask:0xc",
                    f"v_cvt_pk_bf16_f32 v{d}, 0, v{d}",
                    f"v_mul_f32 v{d}, s{sSCALE}, v{d}",
                    f"v_cvt_pk_bf16_f32 v{d}, 0, v{d}",
                    f"v_mul_f32 v{d}, s{sLOG2E}, v{d}",
                    f"v_mov_b32_dpp v{16+g}, v{d} quad_perm:[0,0,2,2] row_mask:0xf bank_mask:0xf"]
        pend = []
        for g in range(8):
            if g >= 3: pend += extract(g - 3)
            for s in range(3):
                c = "0" if s == 0 else vr(16 + 4 * g)
                A(f"v_mfma_f32_16x16x32_bf16 {vr(16+4*g)}, {ar((g*3+s)*4)}, {vr(4+4*s)}, {c}")
                for _ in range(2):
                    if pend: A(pend.pop(0))
        A("s_waitcnt vmcnt(18)")
        for i in range(6): A(f"ds_read_b128 {vr(48+4*i)}, v87 offset:{1024*i}")
        for x in pend: A(x)
        e = [extract(g) for g in (5, 6, 7)]
        for k in range(7):
            for j in range(3): A(e[j][k])
        A(f"""v_max3_f32 v24, v16, v17, v18
        v_max3_f32 v25, v19, v20, v21
        v_max3_f32 v24, v24, v22, v23
        v_max_f32 v24, v24, v25
        v_max_f32_dpp v24, v24, v24 row_ror:8 row_mask:0xf bank_mask:0xf
        v_max_f32_dpp v24, v24, v24 row_bcast:15 row_mask:0xa bank_mask:0xf
        v_max_f32_dpp v24, v24, v24 row_bcast:31 row_mask:0xc bank_mask:0xf
        v_readlane_b32 s{sM}, v24, 63""")
        for g in range(8): A(f"v_subrev_f32 v{16+g}, s{sM}, v{16+g}")
        for g in range(8): A(f"v_exp_f32 v{16+g}, v{16+g}")
        lsum = ["v_add_f32 v40, v16, v17", "v_add_f32 v41, v18, v19", "v_add_f32 v42, v20, v21", "v_add_f32 v43, v22, v23",
                "v_add_f32 v40, v40, v41", "v_add_f32 v42, v42, v43", "v_add_f32 v41, v40, v42",
                "v_add_f32_dpp v41, v41, v41 row_ror:8 row_mask:0xf bank_mask:0xf",
                "v_add_f32_dpp v41, v41, v41 row_bcast:15 row_mask:0xa bank_mask:0xf",
                "v_add_f32_dpp v41, v41, v41 row_bcast:31 row_mask:0xc bank_mask:0xf"]
        def abuild(g):
            b = 24 + 4 * (g % 3)
            return [f"v_cvt_pk_bf16_f32 v{36+(g&1)}, v{16+g}, v{16+g}"] + [f"v_and_b32 v{b+i}, v{36+(g&1)}, v{76+i}" for i in range(4)]
        for x in abuild(0): A(x)
        A("s_waitcnt lgkmcnt(0)")
        for g in range(8):
            nxt = abuild(g + 1) if g < 7 else []
            if g >= 2: A(f"s_waitcnt vmcnt({18 - 3*(g-1)})")
            b = 24 + 4 * (g % 3)
            for s in range(3):
                c = "0" if g == 0 else vr(4 + 4 * s)
                vv = vr(48 + (3 * g + s) * 4) if g < 2 else vr(VBASE + ((g - 2) * 3 + s) * 4)
                A(f"v_mfma_f32_16x16x32_bf16 {vr(4+4*s)}, {vr(b)}, {vv}, {c}")
                for _ in range(2):
                    if nxt: A(nxt.pop(0))
                    elif lsum and g < 7: A(lsum.pop(0))
            if g == 0:
                A(f"""v_and_b32 v1, 7, v0
                v_lshlrev_b32 v1, 5, v1
                v_bfe_u32 v2, v0, 4, 1
                v_lshl_add_u32 v1, v2, 4, v1
                v_lshrrev_b32 v2, 5, v0
                v_mul_u32_u24 v2, 768, v2
                s_mul_i32 s{sA}, s{sV}, 1536
                v_add3_u32 v38, v1, v2, s{sA}
                s_lshl_b32 s{sA}, s{sV}, 2
                v_mov_b32 v39, s{sA}
                v_mov_b32 v44, s{sM}""")
        for x in lsum: A(x)
        self.exec_mask(1 << 63)
        A(f"ds_write_b32 v39, v44 offset:{L_ML}\nds_write_b32 v39, v41 offset:{L_ML+32}")
        self.exec_mask(0xFF00FF0000FF00FF)
        for s in range(3): A(f"ds_write_b128 v38, {vr(4+4*s)} offset:{L_OC + 256*s}")
        self.exec_full()
        A(f"""v_lshrrev_b32 v1, 4, v0
        v_and_b32 v2, 15, v0
        v_mul_u32_u24 v40, 3072, v1
        v_lshl_add_u32 v40, v2, 4, v40
        s_and_b32 s{sA}, s{sV}, 3
        s_lshl_b32 s{sA}, s{sA}, 8
        v_add_u32 v40, s{sA}, v40
        v_lshlrev_b32 v41, 3, v1
        v_mov_b32 v42, 0
        s_mul_i32 s{sB}, s{sSIG}, {OSL}
        s_add_u32 s{sA}, s{sA}, s{sB}
        v_lshlrev_b32 v43, 4, v2
        v_lshl_add_u32 v43, v1, 2, v43
        v_add_u32 v43, s{sA}, v43
        v_mov_b32 v45, s{sB}
        v_and_b32 v46, 7, v0
        v_lshlrev_b32 v46, 2, v46
        s_mul_i32 s{sE}, s{sP}, {RO[1]-RO[0]}
        s_waitcnt lgkmcnt(0)""")
        l = self.lab("nochk"); lp = self.lab("chk"); lr = self.lab("chkr")
        A(f"""s_or_b32 s{sA}, s{sP}, s{sV}
        s_cmp_eq_u32 s{sA}, 0
        s_cbranch_scc0 {l}
        v_mov_b32 v1, {L_FL}
        ds_read_b32 v2, v1 offset:8
        v_lshlrev_b32 v3, 9, v0
        s_getreg_b32 s99, hwreg(HW_REG_XCC_ID, 0, 4)
        s_mov_b32 s{sA}, {RF}
        {lp}:
        buffer_load_dwordx2 v[4:5], v3, {srd(SWS)}, s{sA} offen sc1
        buffer_load_dwordx2 v[6:7], v3, {srd(SWS)}, s{sA} offen offset:128 sc1
        buffer_load_dwordx2 v[8:9], v3, {srd(SWS)}, s{sA} offen offset:256 sc1
        buffer_load_dwordx2 v[10:11], v3, {srd(SWS)}, s{sA} offen offset:384 sc1
        s_waitcnt vmcnt(0) lgkmcnt(0)
        v_xor_b32 v4, v4, v2
        v_xor_b32 v6, v6, v2
        v_xor_b32 v8, v8, v2
        v_xor_b32 v10, v10, v2
        v_or3_b32 v4, v4, v6, v8
        v_or_b32 v4, v4, v10
        v_cmp_ne_u32 vcc, 0, v4
        s_cbranch_vccnz {lr}
        v_xor_b32 v5, s99, v5
        v_xor_b32 v7, s99, v7
        v_xor_b32 v9, s99, v9
        v_xor_b32 v11, s99, v11
        v_or3_b32 v5, v5, v7, v9
        v_or_b32 v5, v5, v11
        v_cmp_eq_u32 vcc, 0, v5
        s_lshl_b32 s{sB}, s{sX}, 3
        s_lshr_b64 s[90:91], vcc, s{sB}
        s_and_b32 s90, s90, 0xff
        s_cmp_eq_u32 s90, 0xff
        s_cselect_b32 s{sA}, 1, 0
        v_mov_b32 v4, s{sA}
        ds_write_b32 v1, v4 offset:12
        s_cmp_eq_u32 s2, 0
        s_cbranch_scc0 L_noepoch
        v_mov_b32 v3, 0
        s_mov_b32 s{sA}, {RE}
        s_mov_b64 exec, 1
        buffer_store_dword v2, v3, {srd(SWS)}, s{sA} offen sc1
        s_mov_b64 exec, -1
        L_noepoch:
        s_mov_b32 s{sE}, 0
        s_waitcnt lgkmcnt(0)
        {l}:""")
        self.tail.append(f"{lr}:\ns_sleep {self.o['bsleep']}\ns_sub_u32 s{sTO}, s{sTO}, 1\ns_cbranch_scc1 L_end\ns_branch {lp}")
        self.stamp(4)
        self.barrier()
        l = self.lab("nofr")
        A(f"""s_cmp_eq_u32 s{sP}, 0
        s_cbranch_scc0 {l}
        v_mov_b32 v1, {L_FL}
        ds_read_b32 v2, v1 offset:12
        s_waitcnt lgkmcnt(0)
        v_readfirstlane_b32 s{sFAST}, v2
        {l}:""")
        l = self.role(R_456)
        A(f"""ds_read_b128 v[4:7], v42 offset:{L_ML}
        ds_read_b128 v[8:11], v42 offset:{L_ML+16}
        ds_read_b64 v[12:13], v41 offset:{L_ML}
        ds_read_b128 v[16:19], v40 offset:{L_OC}
        ds_read_b128 v[20:23], v40 offset:{L_OC+768}
        ds_read_b128 v[24:27], v40 offset:{L_OC+1536}
        ds_read_b128 v[28:31], v40 offset:{L_OC+2304}
        s_waitcnt lgkmcnt(4)
        v_max3_f32 v4, v4, v5, v6
        v_max3_f32 v8, v8, v9, v10
        v_max3_f32 v4, v4, v7, v11
        v_max_f32 v4, v4, v8
        v_sub_f32 v12, v12, v4
        v_sub_f32 v13, v13, v4
        v_exp_f32 v12, v12
        v_exp_f32 v13, v13
        s_waitcnt lgkmcnt(0)""")
        for i in range(4): A(f"v_add_f32 v{16+i}, v{16+i}, v{20+i}\nv_add_f32 v{24+i}, v{24+i}, v{28+i}")
        for i in range(4): A(f"v_mul_f32 v{16+i}, v12, v{16+i}")
        for i in range(4): A(f"v_fmac_f32 v{16+i}, v13, v{24+i}")
        self.treduce(16, 17, 18, 19)
        self.stores(f"buffer_store_dword v16, v43, {srd(SWS)}, s{sE} offen{{f}}", True)
        self.end(l)
        l = self.role(R_7)
        A(f"""ds_read_b32 v4, v46 offset:{L_ML}
        ds_read_b32 v5, v46 offset:{L_ML+32}
        s_waitcnt lgkmcnt(1)
        v_max_f32_dpp v6, v4, v4 quad_perm:[1,0,3,2] row_mask:0xf bank_mask:0xf
        v_max_f32_dpp v6, v6, v6 quad_perm:[2,3,0,1] row_mask:0xf bank_mask:0xf
        v_max_f32_dpp v6, v6, v6 row_half_mirror row_mask:0xf bank_mask:0xf
        v_sub_f32 v4, v4, v6
        v_exp_f32 v4, v4
        s_waitcnt lgkmcnt(0)
        v_mul_f32 v7, v4, v5""")
        self.red8([7])
        self.exec_mask(1)
        self.stores(f"buffer_store_dwordx2 v[6:7], v45, {srd(SWS)}, s{sE} offen offset:768{{f}}", True)
        self.exec_full()
        self.end(l)

    def pub_addr(self, d):
        self.A(f"""s_mul_i32 s{sA}, s{sSIG}, 640
        s_lshl_b32 s{sB}, s{sV}, 8
        s_add_u32 s{sA}, s{sA}, s{sB}
        v_lshl_add_u32 v{d}, v0, 4, s{sA}
        s_cmp_eq_u32 s{sV}, 2
        s_cselect_b32 s{sC}, 8, 16
        s_bfm_b32 s{sC}, s{sC}, 0
        s_and_b32 s{sC}, s{sC}, s{sFULL}""")

    def wo_stage(self):
        A = self.A
        l = self.role(R_LT3)
        self.tr_addr(72, 80, 1)
        A(f"s_lshl_b32 s{sA}, s{sV}, 5\ns_add_u32 s{sA}, s{sA}, {L_WO}\nv_add_u32 v72, s{sA}, v72")
        for s in range(12): self.wfrag32(4 + 4 * s, 72, s * 32 * 80, 80)
        self.end(l)
        self.sync(self.o['sync_o'])
        l = self.role(R_LT6)
        A(f"""s_cmp_ge_u32 s{sV}, 3
        s_cselect_b32 s{sA}, 1, 0              ; hh
        s_mul_i32 s{sB}, s{sA}, 3
        s_sub_u32 s{sB}, s{sV}, s{sB}          ; seg
        s_and_b32 s{sC}, s{sSIG}, 0xf0
        s_lshl_b32 s{sD}, s{sA}, 3
        s_add_u32 s{sC}, s{sC}, s{sD}
        s_mul_i32 s{sC}, s{sC}, {OSL}
        v_lshrrev_b32 v1, 4, v0
        v_and_b32 v2, 15, v0
        v_mul_u32_u24 v72, {2*OSL}, v1
        v_add_u32 v72, s{sC}, v72
        s_lshl_b32 s{sD}, s{sB}, 8
        v_lshl_add_u32 v73, v2, 4, v72
        v_add_u32 v73, s{sD}, v73
        s_mul_i32 s{sA}, s{sA}, 384
        s_lshl_b32 s{sB}, s{sB}, 7
        s_add_u32 s{sA}, s{sA}, s{sB}
        v_mul_u32_u24 v74, {OS}, v1
        v_lshl_add_u32 v74, v2, 3, v74
        v_add_u32 v74, s{sA}, v74""")
        self.poll(f"""buffer_load_dwordx2 v[52:53], v72, {srd(SWS)}, s{sE} offen offset:768 sc1
        buffer_load_dwordx2 v[54:55], v72, {srd(SWS)}, s{sE} offen offset:{768+OSL} sc1
        buffer_load_dwordx4 v[56:59], v73, {srd(SWS)}, s{sE} offen sc1
        buffer_load_dwordx4 v[60:63], v73, {srd(SWS)}, s{sE} offen offset:{OSL} sc1""", range(52, 64), 64)
        self.stamp(5)
        A(f"""v_max_f32 v64, v52, v54
        v_sub_f32 v52, v52, v64
        v_sub_f32 v54, v54, v64
        v_exp_f32 v52, v52
        v_exp_f32 v54, v54
        v_mul_f32 v53, v52, v53
        v_fmac_f32 v53, v54, v55
        v_rcp_f32 v53, v53
        v_mul_f32 v52, v52, v53
        v_mul_f32 v54, v54, v53""")
        for i in range(4): A(f"v_mul_f32 v{56+i}, v52, v{56+i}")
        for i in range(4): A(f"v_fmac_f32 v{56+i}, v54, v{60+i}")
        A(f"""v_cvt_pk_bf16_f32 v56, v56, v57
        v_cvt_pk_bf16_f32 v57, v58, v59
        ds_write_b64 v74, v[56:57] offset:{L_OA}""")
        self.end(l)
        A(f"""v_and_b32 v1, 3, v0
        v_lshrrev_b32 v2, 4, v0
        v_mul_u32_u24 v1, {OS}, v1
        v_lshl_add_u32 v86, v2, 4, v1""")
        self.pub_addr(87)
        A(f"s_mul_i32 s{sE}, s{sP}, {RX[1]-RX[0]}\ns_add_u32 s{sE}, s{sE}, {RX[0]}\ns_waitcnt lgkmcnt(0)")
        self.barrier()
        l = self.role(R_LT3)
        for s in range(6): A(f"ds_read_b128 {vr(52+4*s)}, v86 offset:{L_OA + 64*s}")
        for s in range(12):
            A(f"s_waitcnt lgkmcnt({5 if s < 7 else 11 - s})")
            c = "0" if s == 0 else "v[76:79]"
            A(f"v_mfma_f32_16x16x32_bf16 v[76:79], {vr(52+4*(s%6))}, {vr(4+4*s)}, {c}")
            if s < 6: A(f"ds_read_b128 {vr(52+4*s)}, v86 offset:{L_OA + 64*(s+6)}")
        A(f"s_mov_b32 exec_lo, s{sC}\ns_mov_b32 exec_hi, 0")
        self.stores(f"buffer_store_dwordx4 v[76:79], v87, {srd(SWS)}, s{sE} offen{{f}}", False)
        self.exec_full()
        self.end(l)
        self.stamp(6)

    def x_gather_pre(self):
        self.A(f"""s_and_b32 s{sA}, s{sT}, 7
        s_mul_i32 s{sA}, s{sA}, 1280
        s_lshl_b32 s{sB}, s{sV}, 8
        s_add_u32 s{sA}, s{sA}, s{sB}
        v_lshrrev_b32 v1, 4, v0
        v_and_b32 v2, 15, v0
        v_mul_u32_u24 v76, 10240, v1
        v_lshl_add_u32 v76, v2, 4, v76
        v_add_u32 v76, s{sA}, v76
        s_add_u32 s{sB}, s{sE}, 40960
        s_add_u32 s{sC}, s{sE}, 81920
        s_add_u32 s{sD}, s{sE}, 122880
        v_mul_u32_u24 v77, {XS}, v1
        v_lshl_add_u32 v77, v2, 1, v77
        s_lshl_b32 s{sA}, s{sV}, 5
        v_add_u32 v77, s{sA}, v77""")
    def x_gather(self):
        self.poll("\n".join(f"buffer_load_dwordx4 {vr(56+4*i)}, v76, {srd(SWS)}, s{r} offen sc1" for i, r in enumerate((sE, sB, sC, sD))), range(56, 72), 78)
        for i in range(4): self.A(f"v_add_f32 v{56+i}, v{56+i}, v{60+i}\nv_add_f32 v{64+i}, v{64+i}, v{68+i}")
        for i in range(4): self.A(f"v_add_f32 v{56+i}, v{56+i}, v{64+i}")
        self.treduce(56, 57, 58, 59)
        self.rnd(56, 56)

    def gu_stage(self):
        A = self.A
        self.tr_addr(46, 96, 1)
        A(f"""s_cmp_ge_u32 s{sV}, 3
        s_cselect_b32 s{sA}, {L_WU - L_WG - 96}, 0
        s_lshl_b32 s{sB}, s{sV}, 5
        s_add_u32 s{sA}, s{sA}, s{sB}
        v_add_u32 v46, s{sA}, v46
        v_add_u32 v47, s{sA}, v47""")
        l = self.role(R_LT6)
        self.wfrag32(16, 46, L_WG, 96); self.wfrag32(20, 46, L_WG + 32 * 96, 96)
        A(f"ds_read_b64_tr_b16 v[24:25], v47 offset:{L_WG + 64*96}")
        self.end(l)
        self.xa_addr()
        A(f"""s_lshl_b32 s{sA}, s{sSIG}, 11
        s_lshl_b32 s{sB}, s{sV}, 8
        s_add_u32 s{sB}, s{sB}, s{sA}
        v_lshl_add_u32 v72, v0, 4, s{sB}
        s_lshl_b32 s{sB}, s{sV}, 6
        s_add_u32 s{sB}, s{sB}, s{sA}
        v_lshl_add_u32 v26, v0, 2, s{sB}
        v_lshrrev_b32 v1, 4, v0
        v_lshl_add_u32 v73, v1, 4, s{sA}""")
        self.x_gather_pre()
        self.sync(self.o['sync_x'])
        l = self.role(R_LT5)
        self.x_gather()
        self.stamp(7)
        A(f"""v_add_f32 v{vXR}, v{vXR}, v56
        v_cvt_pk_bf16_f32 v{vXR}, 0, v{vXR}
        ds_write_b16_d16_hi v77, v{vXR} offset:{L_XA}""")
        self.end(l)
        A(f"s_mul_i32 s{sE}, s{sP}, {RG[1]-RG[0]}\ns_add_u32 s{sE}, s{sE}, {RG[0]}\ns_waitcnt lgkmcnt(0)")
        self.barrier()
        self.xfrags()
        l = self.role(R_LT6)
        A(f"""s_waitcnt lgkmcnt(2)
        v_mfma_f32_16x16x32_bf16 v[56:59], v[4:7], v[16:19], 0
        s_waitcnt lgkmcnt(1)
        v_mfma_f32_16x16x32_bf16 v[56:59], v[8:11], v[20:23], v[56:59]
        s_waitcnt lgkmcnt(0)
        v_mfma_f32_16x16x16_bf16 v[56:59], v[12:13], v[24:25], v[56:59]""")
        self.exec_mask(0xffff)
        self.stores(f"buffer_store_dwordx4 v[56:59], v72, {srd(SWS)}, s{sE} offen{{f}}", True)
        self.exec_mask(0xffff0000)
        self.stores(f"buffer_store_dword v56, v26, {srd(SWS)}, s{sE} offen offset:{1536-64}{{f}}", True)
        self.exec_full()
        self.end(l)
        l = self.role(R_6)
        self.gram_reads(); A("s_waitcnt lgkmcnt(0)"); self.gram_mfma()
        self.exec_mask(1 | 1 << 17 | 1 << 34 | 1 << 51)
        self.stores(f"buffer_store_dwordx4 v[68:71], v73, {srd(SWS)}, s{sE} offen offset:1920{{f}}", True)
        self.exec_full()
        self.end(l)
        self.stamp(8)

    def down_stage(self):
        A = self.A
        l = self.role(R_LT3)
        self.tr_addr(72, 80, 1)
        A(f"s_lshl_b32 s{sA}, s{sV}, 5\nv_add_u32 v72, s{sA}, v72")
        for s in range(3): self.wfrag32(4 + 4 * s, 72, L_WD + s * 32 * 80, 80)
        self.end(l)
        self.sync(self.o['sync_g'])
        l = self.role(R_LT6)
        A(f"""s_cmp_ge_u32 s{sV}, 3
        s_cselect_b32 s{sA}, 1, 0              ; i/3
        s_mul_i32 s{sB}, s{sA}, 3
        s_sub_u32 s{sB}, s{sV}, s{sB}          ; i%3
        s_and_b32 s{sC}, s{sSIG}, 0xf0
        s_lshl_b32 s{sA}, s{sA}, 3
        s_add_u32 s{sC}, s{sC}, s{sA}
        s_lshl_b32 s{sC}, s{sC}, 11
        v_lshrrev_b32 v1, 4, v0
        v_and_b32 v2, 15, v0
        v_lshl_add_u32 v3, v1, 11, s{sC}
        s_lshl_b32 s{sA}, s{sB}, 8
        v_lshl_add_u32 v72, v2, 4, v3
        v_add_u32 v72, s{sA}, v72
        s_lshl_b32 s{sA}, s{sB}, 6
        v_lshl_add_u32 v73, v2, 2, v3
        v_add_u32 v73, s{sA}, v73
        v_and_b32 v3, 7, v0
        v_lshl_add_u32 v74, v3, 11, s{sC}
        v_lshl_add_u32 v74, v1, 4, v74
        s_add_u32 s{sF}, s{sE}, 8192
        v_mul_u32_u24 v75, {HS}, v1
        v_lshl_add_u32 v75, v2, 1, v75
        s_lshl_b32 s{sA}, s{sV}, 5
        v_add_u32 v75, s{sA}, v75""")
        self.poll(f"""buffer_load_dwordx4 v[32:35], v74, {srd(SWS)}, s{sE} offen offset:1920 sc1
        buffer_load_dwordx4 v[16:19], v72, {srd(SWS)}, s{sE} offen sc1
        buffer_load_dwordx4 v[20:23], v72, {srd(SWS)}, s{sF} offen sc1
        buffer_load_dwordx4 v[24:27], v72, {srd(SWS)}, s{sE} offen offset:768 sc1
        buffer_load_dwordx4 v[28:31], v72, {srd(SWS)}, s{sF} offen offset:768 sc1
        buffer_load_dword v36, v73, {srd(SWS)}, s{sE} offen offset:1536 sc1
        buffer_load_dword v37, v73, {srd(SWS)}, s{sF} offen offset:1536 sc1
        buffer_load_dword v38, v73, {srd(SWS)}, s{sE} offen offset:1728 sc1
        buffer_load_dword v39, v73, {srd(SWS)}, s{sF} offen offset:1728 sc1""", range(16, 40), 40)
        self.stamp(9)
        self.red8([32, 33, 34, 35])
        A("v_add_f32 v36, v36, v37\nv_add_f32 v38, v38, v39")
        for i in range(4): A(f"v_add_f32 v{16+i}, v{16+i}, v{20+i}\nv_add_f32 v{24+i}, v{24+i}, v{28+i}")
        A(f"""v_permlane32_swap_b32 v36, v38
        v_add_f32 v36, v36, v38
        v_mov_b32 v38, v36
        v_permlane16_swap_b32 v36, v38
        v_add_f32 v{vCG}, v36, v38
        v_mov_b32 v{vCU}, v{vCG}
        v_permlane32_swap_b32 v{vCG}, v{vCU}""")
        self.lnstats(32, 33, 40, 41, 42)
        self.treduce(16, 17, 18, 19); self.treduce(24, 25, 26, 27)
        A(f"""v_fma_f32 v16, -v40, v{vCG}, v16
        v_fma_f32 v24, -v40, v{vCU}, v24
        v_mul_f32 v16, v16, v41
        v_mul_f32 v24, v24, v41
        v_cvt_pk_bf16_f32 v16, 0, v16
        v_cvt_pk_bf16_f32 v24, 0, v24
        v_mul_f32 v17, s{sLOG2E}, v16
        v_exp_f32 v17, -v17
        v_add_f32 v17, 1.0, v17
        v_rcp_f32 v17, v17
        v_mul_f32 v16, v16, v17
        v_cvt_pk_bf16_f32 v16, 0, v16
        v_mul_f32 v16, v16, v24
        v_cvt_pk_bf16_f32 v16, 0, v16
        ds_write_b16_d16_hi v75, v16 offset:{L_HA}""")
        self.end(l)
        A(f"""v_and_b32 v1, 3, v0
        v_lshrrev_b32 v2, 4, v0
        v_mul_u32_u24 v1, {HS}, v1
        v_lshl_add_u32 v86, v2, 4, v1""")
        self.pub_addr(87)
        A(f"s_mul_i32 s{sE}, s{sP}, {RY[1]-RY[0]}\ns_add_u32 s{sE}, s{sE}, {RY[0]}\ns_waitcnt lgkmcnt(0)")
        self.barrier()
        l = self.role(R_LT3)
        for s in range(3): A(f"ds_read_b128 {vr(52+4*s)}, v86 offset:{L_HA + 64*s}")
        for s in range(3):
            c = "0" if s == 0 else "v[76:79]"
            A(f"s_waitcnt lgkmcnt({2-s})\nv_mfma_f32_16x16x32_bf16 v[76:79], {vr(52+4*s)}, {vr(4+4*s)}, {c}")
        A(f"s_mov_b32 exec_lo, s{sC}\ns_mov_b32 exec_hi, 0")
        self.stores(f"buffer_store_dwordx4 v[76:79], v87, {srd(SWS)}, s{sE} offen{{f}}", False)
        self.exec_full()
        self.end(l)
        self.stamp(10)
        A(f"""v_fma_f32 v34, -v40, v35, v34
        v_mul_f32 v34, v34, v41
        v_cvt_pk_bf16_f32 v34, 0, v34
        v_mul_f32 v34, s{sLOG2E}, v34
        v_exp_f32 v34, -v34
        v_sub_f32 v{vXN}, v{vXR}, v40
        v_add_f32 v34, 1.0, v34
        v_rcp_f32 v34, v34
        v_cvt_pk_bf16_f32 v{vXN}, 0, v{vXN}
        v_cvt_pk_bf16_f32 v{vSG}, 0, v34
        v_mul_f32 v{vXN}, v{vXN}, v41
        v_cvt_pk_bf16_f32 v{vXN}, 0, v{vXN}""")

    def y_finish(self):
        self.A(f"""v_mul_f32 v56, v56, v{vSG}
        v_cvt_pk_bf16_f32 v56, 0, v56
        v_add_f32 v56, v{vXN}, v56
        v_cvt_pk_bf16_f32 v56, 0, v56
        v_add_f32 v{vXR}, v{vXR}, v56
        v_cvt_pk_bf16_f32 v{vXR}, 0, v{vXR}""")

    def q_stage_and_final(self):
        A = self.A
        A(f"s_cmp_eq_u32 s{sP}, 1\ns_cbranch_scc1 L_final")
        l = self.role(R_GE4); self.q_wpre(); self.end(l)
        self.x_gather_pre()
        self.sync(self.o['sync_y'])
        l = self.role(R_LT5)
        self.x_gather()
        self.stamp(11)
        self.y_finish()
        A(f"ds_write_b16_d16_hi v77, v{vXR} offset:{L_XA}")
        self.end(l)
        A(f"s_mov_b32 s{sE}, {RQ[1]}\ns_waitcnt lgkmcnt(0)")
        self.barrier()
        l = self.role(R_GE4); self.q_mfma(sE, True); self.end(l)
        self.attn_pre()
        self.sync(self.o['sync_q'])
        l = self.role(R_456); self.q_gather(); self.end(l)
        A(f"s_mov_b32 s{sP}, 1")
        if self.o['dry']: A(f"s_cmp_eq_u32 s{sDRY}, 1\ns_cbranch_scc1 L_final_body")
        self.barrier()
        A("s_branch L_attn")
        A(f"""L_final:
        s_cmp_eq_u32 s{sT}, s{sX}
        s_cbranch_scc0 L_done
        L_final_body:""")
        self.x_gather_pre()
        self.sync(self.o['sync_y'])
        l = self.role(R_LT5)
        A(f"""v_lshrrev_b32 v1, 4, v0
        v_mul_u32_u24 v1, 1280, v1
        v_and_b32 v2, 15, v0
        v_lshl_add_u32 v77, v2, 1, v1
        s_lshl_b32 s{sF}, s{sV}, 5""")
        self.x_gather()
        self.y_finish()
        self.mem(f"buffer_store_short_d16_hi v{vXR}, v77, {srd(SOUT)}, s{sF} offen")
        self.end(l)
        if self.o['dry']: A(f"s_cmp_eq_u32 s{sDRY}, 1\ns_cbranch_scc1 L_dry_ret")
        A("L_done:")
        if int(self.o['pad']):
            A(f"""L_pad:
            s_memrealtime s[90:91]
            s_waitcnt lgkmcnt(0)
            s_sub_u32 s90, s90, s96
            s_cmp_lt_u32 s90, {int(self.o['pad'])*100}
            s_cbranch_scc1 L_pad""")
        if self.prof: self.stamp(11)
        A("L_end:")
        if self.prof:
            A(f"""s_mov_b64 exec, -1
            s_lshl_b32 s{sA}, s2, 3
            s_add_u32 s{sA}, s{sA}, s{sV}
            s_lshl_b32 s{sA}, s{sA}, 7
            s_add_u32 s{sA}, s{sA}, {STAMP}
            v_mov_b32 v1, 0""")
            for i in range(24): A(f"v_mov_b32 v{4+i}, s{sST+i}")
            A(f"v_mov_b32 v28, s{sFAST}\nv_mov_b32 v29, s{sTO}\nv_mov_b32 v30, 0\nv_mov_b32 v31, 0\ns_mov_b64 exec, 1")
            for i in range(7): A(f"buffer_store_dwordx4 {vr(4+4*i)}, v1, {srd(SWS)}, s{sA} offen offset:{16*i}")
        A("L_exit:\ns_endpgm")

    def build(self):
        self.prologue(); self.startup(); self.attention(); self.wo_stage(); self.gu_stage(); self.down_stage(); self.q_stage_and_final()
        for t in self.tail: self.A(t)
        body, nn = resolve(self.L)
        hdr = open('interleave_layers__sliding_block_cached__moe_arch_mod__decode.s.ref').read().split('\n')
        hl = [l for l in hdr if l.startswith(';') and '@launch' not in l and not l.startswith(';   ;')]
        hl = hl[:hl.index([l for l in hl if 'Override launch' in l][0])]
        out = hl + [f"; @launch grid=(256,1,1) block=(512,1,1) lds={LDS_SIZE}",
                    '.amdgcn_target "amdgcn-amd-amdhsa--gfx950"', ".text", f".globl {NAME}", ".p2align 8", f".type {NAME},@function", f"{NAME}:"]
        out += [("" if l.endswith(':') else "    ") + l for l in body]
        out += ['.section .rodata,"a"', ".p2align 6", f".amdhsa_kernel {NAME}",
                "  .amdhsa_next_free_vgpr 256", "  .amdhsa_next_free_sgpr 102", "  .amdhsa_accum_offset 160",
                "  .amdhsa_group_segment_fixed_size 0", "  .amdhsa_kernarg_size 104", "  .amdhsa_user_sgpr_count 2",
                "  .amdhsa_user_sgpr_kernarg_segment_ptr 1", "  .amdhsa_system_sgpr_workgroup_id_x 1",
                "  .amdhsa_float_denorm_mode_32 3", ".end_amdhsa_kernel"]
        return "\n".join(out) + "\n", nn

if __name__ == "__main__":
    path = sys.argv[1]
    opts = {}; prof = False
    for a in sys.argv[2:]:
        if a == 'prof': prof = True
        else:
            k, v = a.split('=')
            opts[k] = {'True': True, 'False': False}.get(v, v)
    s, nn = G(prof, opts).build()
    open(path, 'w').write(s)
    print("wrote", path, len(s.split('\n')), "lines, nops inserted:", nn)
```

```python
import re

REG_RE = re.compile(r'(?<![\w.])(-|abs\()?([vas])(\d+|\[(\d+):(\d+)\])(?![\w])')
TRANS = ('v_exp_f32', 'v_log_f32', 'v_rcp_f32', 'v_rsq_f32', 'v_sqrt_f32', 'v_sin_f32', 'v_cos_f32')

def regs_of(tok):
    tok = tok.strip()
    out = []
    if tok in ('vcc',): return [('s', 'vcc')]
    if tok in ('exec',): return [('s', 'exec')]
    if tok in ('m0',): return [('s', 'm0')]
    for m in REG_RE.finditer(tok):
        k = m.group(2)
        if m.group(4) is not None:
            out += [(k, i) for i in range(int(m.group(4)), int(m.group(5)) + 1)]
        else:
            out.append((k, int(m.group(3))))
    return out

class Ins:
    def __init__(self, text):
        self.text = text
        t = text.split(';')[0].strip()
        self.label = None
        self.op = None
        self.w = []; self.r = []
        if t.endswith(':'):
            self.label = t[:-1]; return
        if not t or t.startswith('.'):
            self.op = '.'; return
        p = t.split(None, 1)
        op = self.op = p[0]
        rest = p[1] if len(p) > 1 else ''
        ops = []; depth = 0; cur = ''
        for ch in rest:
            if ch in '[(': depth += 1
            if ch in '])': depth -= 1
            if ch == ',' and depth == 0: ops.append(cur.strip()); cur = ''
            else: cur += ch
        if cur.strip(): ops.append(cur.strip())
        if ops:
            first = ops[-1].split(None, 1)
            self.mods = first[1] if len(first) > 1 else ''
            ops[-1] = first[0]
        else: self.mods = ''
        self.ops = ops
        self.is_mfma = op.startswith('v_mfma') or op.startswith('v_smfmac')
        self.is_valu = op.startswith('v_') and not self.is_mfma
        self.is_dpp = op.endswith('_dpp')
        self.is_perm = op.startswith('v_permlane')
        self.is_dot = op.startswith('v_dot')
        self.is_trans = op.replace('_e32', '').replace('_e64', '') in TRANS
        self.is_vmem = op.startswith('buffer_') or op.startswith('global_')
        self.is_ds = op.startswith('ds_')
        self.is_salu = op.startswith('s_')
        self.is_lanerd = op.startswith('v_readlane') or op.startswith('v_readfirstlane')
        self.is_ldsdma = self.is_vmem and ' lds' in (' ' + self.mods)
        self.srcC = []; self.srcAB = []; self.stdata = []
        R = [regs_of(o) for o in ops]
        flat = lambda l: [x for y in l for x in y]
        if self.is_mfma:
            self.w = R[0]; self.srcAB = R[1] + R[2]
            if op.startswith('v_smfmac'): self.srcC = R[0]; self.srcAB += R[3]
            else: self.srcC = R[3]
            self.r = self.srcAB + self.srcC
        elif self.is_valu:
            if self.is_perm: self.w = R[0] + R[1]; self.r = R[0] + R[1]
            else:
                self.w = R[0]; self.r = flat(R[1:])
                if op.startswith(('v_fmac', 'v_dot2c', 'v_writelane')) or self.is_dpp: self.r += R[0]
                if op.startswith('v_cmpx'): self.w += [('s', 'exec')]
                if op.startswith(('v_add_co', 'v_sub_co', 'v_addc_co')): self.w += R[1]; self.r = flat(R[2:])
        elif self.is_vmem:
            if self.is_ldsdma: self.r = flat(R) + [('s', 'm0')]
            elif '_load' in op:
                self.w = R[0]; self.r = flat(R[1:])
                if 'd16' in op: self.r += R[0]
            else:
                self.r = flat(R); self.stdata = R[0] if op.startswith('buffer_') else R[1]
        elif self.is_ds:
            if op.startswith('ds_read') or '_rtn_' in op or op.startswith('ds_bperm') or op.startswith('ds_swizzle'):
                self.w = R[0]; self.r = flat(R[1:]) + (R[0] if 'd16' in op else [])
            else: self.r = flat(R)
        elif self.is_salu:
            if op.startswith(('s_cmp', 's_bitcmp', 's_cbranch', 's_branch', 's_waitcnt', 's_barrier', 's_nop', 's_endpgm', 's_sleep', 's_setprio', 's_setpc')):
                self.r = flat(R)
            else:
                self.w = R[0] if R else []; self.r = flat(R[1:])
                if 'saveexec' in op: self.w += [('s', 'exec')]
        self.wide_store = self.is_vmem and ('store_dwordx4' in op or 'store_dwordx3' in op)
        self.states = 1
        if op == 's_nop': self.states = int(ops[0], 0) + 1
        self.passes = 0
        if self.is_mfma:
            if '32x32' in op: self.passes = 8
            elif '4x4' in op: self.passes = 2
            else: self.passes = 4

def need(p, c):
    n = 0
    pw = set(p.w); cr = set(c.r); cw = set(c.w)
    vw = {x for x in pw if x[0] in 'va'}; sw = {x for x in pw if x[0] == 's'}
    if p.is_valu:
        if p.is_dot and ((vw & cr) or (vw & cw)):
            same_c = c.op == p.op and len(c.ops) == 4 and not (vw & set(regs_of(c.ops[1]) + regs_of(c.ops[2])))
            if not same_c: n = max(n, 3)
        if vw & cr:
            if c.is_mfma: n = max(n, 2)
            if c.is_dpp: n = max(n, 2)
            if c.is_perm: n = max(n, 2)
            if c.is_lanerd: n = max(n, 1)
            if p.is_trans and (c.is_valu or c.is_mfma): n = max(n, 1)
        if sw & cr:
            if c.is_valu: n = max(n, 4 if c.is_lanerd or c.op.startswith('v_writelane') else 2)
            if c.is_vmem: n = max(n, 5)
            if c.is_salu and not c.op.startswith('s_cbranch'): n = max(n, 1)
        if ('s', 'exec') in pw:
            if c.is_dpp: n = max(n, 5)
            if c.is_mfma or c.is_lanerd or c.is_perm: n = max(n, 4)
    if p.is_mfma:
        big = {2: 5, 4: 8, 8: 12}[p.passes]
        if c.is_mfma:
            if vw & set(c.srcAB): n = max(n, big)
            if vw & set(c.srcC):
                if set(c.srcC) == vw and c.op == p.op: n = max(n, 2 if p.passes == 2 else 0)
                else: n = max(n, {2: 4, 4: 6, 8: 10}[p.passes])
            elif vw & cw: n = max(n, big)
        elif (vw & cr) or (vw & cw): n = max(n, big)
        if c.is_valu and (set(p.srcC) & cw): n = max(n, {2: 1, 4: 3, 8: 7}[p.passes])
    if p.op != '.' and p.label is None:
        if p.is_salu and ('s', 'm0') in pw and c.is_ldsdma: n = max(n, 1)
        if p.wide_store and (set(p.stdata) & cw): n = max(n, 2)
    return n

def resolve(lines):
    ins = [Ins(l) for l in lines]
    def maps():
        labels = {x.label: i for i, x in enumerate(ins) if x.label}
        preds = {}
        for i, x in enumerate(ins):
            if x.op and (x.op.startswith('s_cbranch') or x.op == 's_branch'):
                preds.setdefault(labels[x.ops[0]], []).append(i)
        return preds
    def worst_at(i, preds):
        c = ins[i]; worst = 0
        stack = [(i - 1, 0)]; seen = set()
        while stack:
            j, d = stack.pop()
            if j < 0 or d >= 12 or (j, d) in seen: continue
            seen.add((j, d))
            p = ins[j]
            if p.label is not None:
                for b in preds.get(j, []): stack.append((b, d))
                k = j - 1
                while k >= 0 and (ins[k].label is None and ins[k].op == '.'): k -= 1
                if k >= 0 and ins[k].op in ('s_branch', 's_endpgm', 's_setpc_b64'): continue
                stack.append((j - 1, d)); continue
            if p.op == '.': stack.append((j - 1, d)); continue
            worst = max(worst, need(p, c) - d)
            stack.append((j - 1, d + p.states))
        return worst
    nins = 0
    for sweep in range(10):
        changed = False
        preds = maps()
        i = 0
        while i < len(ins):
            c = ins[i]
            if c.label is None and c.op != '.':
                w = worst_at(i, preds)
                if w > 0:
                    ins.insert(i, Ins(f"s_nop {w - 1}")); changed = True; nins += 1
                    preds = maps(); i += 1
            i += 1
        if not changed: break
    return [x.text for x in ins], nins
```

```python
import sys
from asmlib import resolve

NAME = "interleave_layers__sliding_block_cached__moe_arch_mod__decode_kernel"

OSL, GSL, QSL, Q0SL, XSZ = 896, 2688, 5248, 8192, 245760
RO = [0, 256 * OSL]
RX = [2 * 256 * OSL, 2 * 256 * OSL + XSZ]
RY = [RX[1] + XSZ, RX[1] + 2 * XSZ]
RG = [RY[1] + XSZ, RY[1] + XSZ + 256 * GSL]
RQ = [RG[1] + 256 * GSL, RG[1] + 256 * GSL + 256 * Q0SL]
RF = RQ[1] + 256 * QSL
RE = RF + 32768
WS_END = RE + 2048
STAMP = WS_END
WS_SIZE = WS_END + 256 * 8 * 128
OOB = 0x7ff00000
L_OC = 0
L_ML = L_OC + 12288
L_XA = L_ML + 64; XS = 144
L_HA = L_XA + 6 * XS; HS = 192
L_OA = L_HA + 4 * HS; OS = 576
L_QL = L_OA + 4 * OS
L_FL = L_QL + 400
L_CQ = L_FL + 16
L_CS = L_CQ + 768
L_X0 = L_CS + 1024
L_WD = (L_X0 + 5120 + 127) // 128 * 128
L_WG = L_WD + 8192
L_WU = L_WG + 8192
L_WO = L_WU + 8192
L_WQ = L_WO + 32768
L_VP = L_WQ + 32768
LDS_SIZE = L_VP + 8 * 6144
assert LDS_SIZE <= 163840
sW, sV, sX, sT, sP, sDRY = 2, 3, 4, 5, 6, 7
SK, SVV, SWS, SWQ, SWO, SWG, SWU, SWD, SX0, SWR, SOUT = range(8, 52, 4)
sAI, sRI, sSIG, sSLOT = 52, 53, 54, 55
sFAST, sROLE, sTO, sEPS = 56, 57, 58, 59
sFULL = 60
sA, sB, sC, sD, sE, sF = 62, 63, 88, 89, 90, 91
sM = 92
sLOG2E, sSCALE, sINVN = 93, 94, 95
sG, sXCC, sSAVE, sTAG = 98, 99, 100, 101
sST = 64
R_LT4, R_GE4, R_456, R_7, R_6 = range(5)
vXR, vXN, vSG, vC = 80, 81, 82, 83
VBASE = 88
ODD = 0xAAAAAAAAAAAAAAAA

def srd(b): return f"s[{b}:{b+3}]"
def vr(a, n=4): return f"v[{a}:{a+n-1}]" if n > 1 else f"v{a}"
def ar(a, n=4): return f"a[{a}:{a+n-1}]"
DPP = "row_mask:0xf bank_mask:0xf"

class G:
    def __init__(self, prof=False, opts=None):
        self.L = []; self.tail = []; self.n = 0; self.prof = prof
        self.o = dict(dry=True, sync_o='none', sync_x='ack', sync_g='none', sync_y='ack', sync_q='none', sync_f='ack', fast=True,
                      clear='sc1', wflag='plain', bsleep=8, pad=0, probe=-1, probep=0, kvflag='nt', defer=False, cwo='10,10,12,0', cgud='4,2,2,0', csplit=True, q0st='sc1', q0ld='sc1')
        self.o.update(opts or {})
    def A(self, s):
        for l in s.split('\n'):
            l = l.strip()
            if l: self.L.append(l)
    def lab(self, p):
        self.n += 1; return f"L_{p}_{self.n}"
    def exec_mask(self, m):
        self.A(f"s_and_b32 exec_lo, s{sFULL}, 0x{m & 0xffffffff:x}\ns_and_b32 exec_hi, s{sFULL}, 0x{m >> 32:x}")
    def exec_full(self): self.A(f"s_mov_b64 exec, s[{sFULL}:{sFULL+1}]")
    def barrier(self):
        l = self.lab("nb"); self.A(f"s_cbranch_execz {l}\ns_barrier\n{l}:")
    def role(self, bit):
        l = self.lab("role"); self.A(f"s_bitcmp1_b32 s{sROLE}, {bit}\ns_cbranch_scc0 {l}"); return l
    def pass0(self):
        l = self.lab("p0"); self.A(f"s_cmp_eq_u32 s{sP}, 0\ns_cbranch_scc0 {l}"); return l
    def end(self, l): self.A(f"{l}:")
    def mem(self, lines):
        l = self.lab("nm"); self.A(f"s_cbranch_execz {l}"); self.A(lines); self.A(f"{l}:")
    def capture(self, fn):
        save = self.L; self.L = []; fn(); out = self.L; self.L = save; return out
    def stores(self, lines, intra):
        if intra and self.o['fast']:
            l1 = self.lab("st"); l2 = self.lab("st")
            self.A(f"s_cbranch_execz {l2}\ns_cmp_eq_u32 s{sFAST}, 0\ns_cbranch_scc1 {l1}")
            self.A(lines.format(f="")); self.A(f"{l2}:")
            self.tail.append(f"{l1}:\n" + lines.format(f=" sc1") + f"\ns_branch {l2}")
        else:
            self.mem(lines.format(f=" sc1"))
    def poll(self, loads, regs, reduce, chk, idle=False):
        A = self.A
        lp = self.lab("poll"); ls = self.lab("slow"); lo = self.lab("ok"); l2 = self.lab("slow")
        A(f"s_movk_i32 s{sG}, 0x100\n{lp}:")
        if idle:
            l = self.lab("idl"); A(f"s_cmp_lt_u32 s{sT}, 30\ns_cbranch_scc1 {l}\ns_sleep 4\n{l}:")
        A(f"s_sub_u32 s{sG}, s{sG}, 1\ns_cbranch_scc1 {ls}")
        if self.prof: A(f"s_sub_u32 s{sTO}, s{sTO}, 1")
        l = self.lab("nm"); A(f"s_cbranch_execz {l}"); loads(); A(f"{l}:")
        A("s_waitcnt vmcnt(0)")
        reduce()
        A(f"v_cmp_u_f32 vcc, v{chk[0]}, v{chk[1]}\ns_cbranch_vccnz {lp}\n{lo}:")
        def slow():
            A(f"{l2}:\ns_sub_u32 s{sTO}, s{sTO}, 1\ns_cbranch_scc1 L_end\n{ls}:")
            loads(); A("s_waitcnt vmcnt(0)")
            r = list(regs)
            A(f"v_max_u32 v1, v{r[0]}, v{r[1]}"); r = r[2:]
            while r:
                if len(r) >= 2: A(f"v_max3_u32 v1, v1, v{r[0]}, v{r[1]}"); r = r[2:]
                else: A(f"v_max_u32 v1, v1, v{r[0]}"); r = []
            A(f"v_cmp_eq_u32 vcc, -1, v1\ns_cbranch_vccnz {l2}")
            reduce(); A(f"s_branch {lo}")
        self.tail.append("\n".join(self.capture(slow)))
    def stamp(self, i, both=True):
        if int(self.o['probe']) == i:
            l = self.lab("probe")
            self.A(f"s_cmp_eq_u32 s{sP}, {self.o['probep']}\ns_cbranch_scc0 {l}\ns_cbranch_execz {l}\ns_memrealtime s[96:97]\ns_waitcnt lgkmcnt(0)\n{l}:")
        if not self.prof: return
        self.A("s_memrealtime s[96:97]\ns_waitcnt lgkmcnt(0)")
        if both:
            self.A(f"s_cmp_eq_u32 s{sP}, 0\ns_cselect_b32 s{sST+i}, s96, s{sST+i}\ns_cselect_b32 s{sST+12+i}, s{sST+12+i}, s96")
        else:
            self.A(f"s_mov_b32 s{sST+i}, s96")
    def sync(self, kind):
        if kind == 'ack': self.A("s_waitcnt vmcnt(0)"); self.barrier()
        elif kind.startswith('sleep'): self.A(f"s_sleep {int(kind[5:])}")
        elif kind.startswith('acks'): self.A("s_waitcnt vmcnt(0)"); self.barrier(); self.A(f"s_sleep {int(kind[4:])}")
    def treduce(self, r0, r1, r2, r3):
        self.A(f"""v_permlane32_swap_b32 v{r0}, v{r2}
        v_permlane32_swap_b32 v{r1}, v{r3}
        v_add_f32 v{r0}, v{r0}, v{r2}
        v_add_f32 v{r1}, v{r1}, v{r3}
        v_permlane16_swap_b32 v{r0}, v{r1}
        v_add_f32 v{r0}, v{r0}, v{r1}""")
    def red16(self, regs):
        return [f"v_add_f32_dpp v{r}, v{r}, v{r} {perm} {DPP}" for perm in ("quad_perm:[1,0,3,2]", "quad_perm:[2,3,0,1]", "row_half_mirror", "row_mirror") for r in regs]
    def lnstats(self, sq, sm, m, rs, t):
        return f"""v_mul_f32 v{sm}, s{sINVN}, v{sm}
        v_mul_f32 v{sq}, s{sINVN}, v{sq}
        v_fma_f32 v{t}, -v{sm}, v{sm}, v{sq}
        v_cvt_pk_bf16_f32 v{m}, 0, v{sm}
        v_max_f32 v{t}, 0, v{t}
        v_cvt_pk_bf16_f32 v{t}, 0, v{t}
        v_add_f32 v{t}, s{sEPS}, v{t}
        v_cvt_pk_bf16_f32 v{t}, 0, v{t}
        v_sqrt_f32 v{t}, v{t}
        v_cvt_pk_bf16_f32 v{t}, 0, v{t}
        v_rcp_f32 v{rs}, v{t}""".split('\n')
    def mix(self, *streams):
        streams = [list(s) for s in streams]
        while any(streams):
            for s in streams:
                if s: self.A(s.pop(0))
    def tr_addr(self, d, sbase):
        self.A(f"""v_lshrrev_b32 v1, 4, v0
        v_bfe_u32 v2, v0, 2, 2
        v_lshl_add_u32 v{d}, v1, 3, v2
        v_lshlrev_b32 v{d}, 7, v{d}
        v_and_b32 v2, 3, v0
        v_lshl_add_u32 v{d}, v2, 3, v{d}
        v_bfe_u32 v2, v0, 3, 2
        v_lshl_add_u32 v{d}, v2, 5, v{d}
        v_add_u32 v{d}, s{sbase}, v{d}""")
    def wfrags(self, dst, addr, steps, off=0):
        for s in range(steps):
            self.A(f"ds_read_b64_tr_b16 {vr(dst+4*s,2)}, v{addr} offset:{off+s*4096}\nds_read_b64_tr_b16 {vr(dst+4*s+2,2)}, v{addr} offset:{off+s*4096+512}")
    def dma_addr(self, d, rstride):
        self.A(f"""v_lshrrev_b32 v1, 3, v0
        v_mul_u32_u24 v{d}, {rstride}, v1
        v_bfe_u32 v1, v0, 4, 1
        v_bfe_u32 v2, v0, 1, 2
        v_xor_b32 v1, v1, v2
        v_lshl_add_u32 v{d}, v1, 5, v{d}
        v_and_b32 v1, 1, v0
        v_lshl_add_u32 v{d}, v1, 4, v{d}
        v_xor_b32 v{d+1}, 64, v{d}""")
    def dma(self, srdb, vaddr, n, rstride, lds0, ssrc, slds):
        wf = self.o['wflag'].replace('plain', '')
        for i in range(n):
            self.A(f"s_add_u32 m0, s{slds}, {lds0 + i*1024}\ns_add_u32 s{sA}, s{ssrc}, {i*8*rstride}\nbuffer_load_dwordx4 v{vaddr + (i&1)}, {srd(srdb)}, s{sA} offen {wf} lds")

    def mk(self, b, p, off, size):
        A = self.A
        if off is None: A(f"s_mov_b32 s{b}, s{p}\ns_mov_b32 s{b+1}, s{p+1}\ns_mov_b32 s{b+2}, {size}")
        else:
            A(f"s_add_u32 s{b}, s{p}, s{off}\ns_addc_u32 s{b+1}, s{p+1}, 0")
            if isinstance(size, int): A(f"s_mov_b32 s{b+2}, {size}")
            else: A(f"s_sub_u32 s{b+2}, {size[0]}, s{off}")
        A(f"s_mov_b32 s{b+3}, 0x20000")
    def prologue(self):
        A = self.A
        A("s_cmp_ge_u32 s2, 256\ns_cbranch_scc1 L_exit")
        if int(self.o['pad']) or self.prof: A("s_memrealtime s[96:97]")
        A(f"""s_load_dwordx16 s[64:79], s[0:1], 0
        s_load_dwordx8 s[80:87], s[0:1], 64
        s_load_dwordx2 s[88:89], s[0:1], 96
        v_lshrrev_b32 v1, 6, v0
        v_and_b32 v0, 63, v0
        v_readfirstlane_b32 s{sV}, v1
        v_mov_b32 v4, 0
        v_mov_b32 v5, 0
        v_mov_b32 v6, 0
        v_mov_b32 v7, 0
        v_lshlrev_b32 v1, 4, v0
        s_mov_b64 exec, 3
        ds_write_b128 v1, v[4:7] offset:{L_QL+384}
        s_mov_b64 exec, -1
        s_and_b32 s{sX}, s2, 7
        s_lshr_b32 s{sT}, s2, 3
        s_lshr_b32 s{sA}, s{sT}, 3
        s_lshl_b32 s{sB}, s{sX}, 2
        s_add_u32 s92, s{sA}, s{sB}            ; head
        s_bfe_u32 s{sA}, s{sT}, 0x20001        ; batch
        s_lshl_b32 s{sA}, s{sA}, 5
        s_add_u32 s{sA}, s{sA}, s92
        s_lshl_b32 s{sA}, s{sA}, 12
        s_and_b32 s{sB}, s{sT}, 1
        s_lshl_b32 s{sB}, s{sB}, 9
        s_add_u32 s{sA}, s{sA}, s{sB}
        s_lshl_b32 s{sB}, s{sV}, 6
        s_add_u32 s{sA}, s{sA}, s{sB}
        s_add_u32 s{sA}, s{sA}, 3072
        s_mul_i32 s90, s{sA}, 384
        s_mov_b32 s{sP}, 0
        s_mov_b32 s{sDRY}, 0
        s_mov_b64 s[{sFULL}:{sFULL+1}], -1
        s_mov_b32 s{sTO}, 0x100000
        s_mov_b32 s{sFAST}, 0
        s_mov_b32 s{sLOG2E}, 0x3fb8aa3b
        s_mov_b32 s{sSCALE}, 0x3d93cd3a
        s_mov_b32 s{sINVN}, 0x3acccccd
        s_mov_b32 s{sEPS}, 0x3727c5ac
        s_lshl_b32 s{sSIG}, s{sX}, 5
        s_add_u32 s{sSIG}, s{sSIG}, s{sT}
        s_mul_i32 s{sSLOT}, s{sX}, 30
        s_add_u32 s{sSLOT}, s{sSLOT}, s{sT}
        s_mul_i32 s{sRI}, s{sT}, 26
        s_lshr_b32 s{sRI}, s{sRI}, 8
        s_mul_i32 s{sA}, s{sRI}, 10
        s_sub_u32 s{sAI}, s{sT}, s{sA}
        s_min_u32 s{sRI}, s{sRI}, 2""")
        tab = 0
        for v in range(8):
            tab |= ((v < 4) << R_LT4 | (v >= 4) << R_GE4 | (4 <= v <= 6) << R_456 | (v == 7) << R_7 | (v == 6) << R_6) << (8 * v)
        A(f"""s_mov_b32 s{sA}, 0x{tab & 0xffffffff:x}
        s_mov_b32 s{sB}, 0x{tab >> 32:x}
        s_lshl_b32 s91, s{sV}, 3
        s_lshr_b64 s[{sA}:{sB}], s[{sA}:{sB}], s91
        s_and_b32 s{sROLE}, s{sA}, 0xff""")
        self.kv_addr()
        A("s_waitcnt lgkmcnt(0)\ns_barrier")
        A(f"s_add_u32 s{sA}, s88, {RE}\ns_addc_u32 s{sB}, s89, 0\ns_load_dword s{sTAG}, s[{sA}:{sB}], 0")
        self.mk(SK, 66, 90, 24576); self.mk(SVV, 68, 90, 24576)
    def other_srds(self):
        A = self.A; mk = self.mk
        mk(SWS, 88, None, WS_SIZE)
        A(f"""s_mul_i32 s{sA}, s{sAI}, {64*12288}
        s_mul_i32 s{sB}, s{sX}, 3
        s_add_u32 s91, s{sB}, s{sRI}            ; P = 3x + r
        s_lshl_b32 s{sB}, s91, 9
        s_add_u32 s{sA}, s{sA}, s{sB}""")
        mk(SWQ, 70, sA, (640 * 6144 * 2,))
        A(f"s_mul_i32 s{sA}, s91, {256*1280}\ns_lshl_b32 s90, s{sAI}, 7\ns_add_u32 s{sA}, s{sA}, s90")
        mk(SWO, 72, sA, (6144 * 640 * 2,))
        A(f"s_mul_i32 s{sA}, s91, {64*1280}\ns_add_u32 s{sA}, s{sA}, s90")
        mk(SWD, 82, sA, (1536 * 640 * 2,))
        A(f"s_mul_i32 s{sA}, s{sAI}, {64*3072}\ns_lshl_b32 s{sB}, s91, 7\ns_add_u32 s{sA}, s{sA}, s{sB}")
        mk(SWG, 78, sA, (640 * 1536 * 2,)); mk(SWU, 80, sA, (640 * 1536 * 2,))
        mk(SX0, 64, None, 5120); mk(SWR, 76, 90, (1280,)); mk(SOUT, 84, None, 5120)
        A(f"s_waitcnt lgkmcnt(0)\ns_add_u32 s{sTAG}, s{sTAG}, 1")
        if self.prof:
            A(f"s_mov_b32 s{sST}, s96")
            for i in range(1, 24): A(f"s_mov_b32 s{sST+i}, 0")

    def kv_addr(self):
        self.A(f"""v_bfe_u32 v84, v0, 1, 3
        v_mul_u32_u24 v84, 384, v84
        v_lshrrev_b32 v3, 4, v0
        v_lshl_add_u32 v84, v3, 5, v84
        v_and_b32 v3, 1, v0
        v_lshl_add_u32 v84, v3, 4, v84
        v_lshrrev_b32 v85, 5, v0
        v_lshlrev_b32 v85, 3, v85
        v_bfe_u32 v3, v0, 3, 2
        v_add_u32 v85, v85, v3
        v_mul_u32_u24 v85, 384, v85
        v_and_b32 v3, 7, v0
        v_lshl_add_u32 v85, v3, 4, v85""")
    def k_loads(self):
        A = self.A; KF = self.o['kvflag'].replace('plain', '').replace('_', ' ')
        for g in range(8):
            A(f"s_mov_b32 s{sA}, {g*3072}")
            b = 12 * (g & ~1)
            for s, r in enumerate((b + 8 * (g & 1), b + 8 * (g & 1) + 4, b + 16 + 4 * (g & 1))):
                A(f"buffer_load_dwordx4 {ar(r)}, v84, {srd(SK)}, s{sA} offen offset:{s*128} {KF}")
    def v_loads(self):
        A = self.A; KF = self.o['kvflag'].replace('plain', '').replace('_', ' ')
        A(f"s_mul_i32 s{sB}, s{sV}, 6144")
        for S in range(4):
            for f in range(2):
                row = 32 * (S >> 1) + 16 * f + 4 * (S & 1)
                for s in range(3):
                    if S == 0:
                        A(f"s_add_u32 m0, s{sB}, {L_VP + (s*2+f)*1024}\ns_mov_b32 s{sA}, {row*384+s*128}\nbuffer_load_dwordx4 v85, {srd(SVV)}, s{sA} offen {KF} lds")
                    else:
                        if s == 0: A(f"s_mov_b32 s{sA}, {row*384}")
                        A(f"buffer_load_dwordx4 {vr(VBASE+(S-1)*24+s*8+4*f)}, v85, {srd(SVV)}, s{sA} offen offset:{s*128} {KF}")
    def xcol_addr(self, d):
        self.A(f"""v_lshrrev_b32 v1, 4, v0
        v_mul_u32_u24 v{d}, 1280, v1
        v_and_b32 v2, 7, v0
        v_lshl_add_u32 v{d}, v2, 1, v{d}
        s_lshl_b32 s{sA}, s{sAI}, 7
        s_lshl_b32 s{sB}, s{sV}, 4
        s_add_u32 s{sA}, s{sA}, s{sB}
        v_add_u32 v{d}, s{sA}, v{d}""")
    def xres_read(self):
        self.xcol_addr(3)
        self.A(f"v_mov_b32 v{vXR}, 0\nds_read_u16_d16_hi v{vXR}, v3 offset:{L_X0}")
    def lds_spin(self, off, val):
        lw = self.lab("sp"); lr = self.lab("spr")
        self.A(f"""v_mov_b32 v5, {L_FL}
        {lw}:
        ds_read_b32 v4, v5 offset:{off}
        s_waitcnt lgkmcnt(0)
        v_cmp_gt_u32 vcc, {val}, v4
        s_cbranch_vccnz {lr}""")
        self.tail.append(f"{lr}:\ns_sleep 2\ns_sub_u32 s{sTO}, s{sTO}, 1\ns_cbranch_scc1 L_end\ns_branch {lw}")
    def lds_inc(self, off):
        self.A(f"v_mov_b32 v4, {L_FL}\nv_mov_b32 v5, 1\ns_mov_b64 exec, 1\nds_add_u32 v4, v5 offset:{off}\ns_mov_b64 exec, -1")
    def dma_dist(self, cnts, mats):
        A = self.A
        cnts = [int(c) for c in cnts.split(',')]
        pre = [sum(cnts[:i]) for i in range(4)]
        A(f"""s_lshl_b32 s{sA}, s{sV}, 3
        s_mov_b32 s{sB}, 0x{sum(c << (8*i) for i, c in enumerate(cnts)):x}
        s_lshr_b32 s{sD}, s{sB}, s{sA}
        s_and_b32 s{sD}, s{sD}, 0xff
        s_mov_b32 s{sB}, 0x{sum(c << (8*i) for i, c in enumerate(pre)):x}
        s_lshr_b32 s{sF}, s{sB}, s{sA}
        s_and_b32 s{sF}, s{sF}, 0xff
        s_lshl_b32 s{sB}, s{sF}, 10""")
        le = self.lab("dd")
        for i in range(0, max(cnts), 2):
            A(f"s_cmp_gt_u32 s{sD}, {i}\ns_cbranch_scc0 {le}")
            for (sr, va, rs, l0) in mats:
                A(f"s_mul_i32 s{sC}, s{sF}, {8*rs}\ns_add_u32 s{sC}, s{sC}, {i*8*rs}")
                self.dma(sr, va, 2, rs, l0 + i * 1024, sC, sB)
        self.end(le)
    def w_dma_gud(self, u):
        A = self.A
        self.dma_addr(6, 3072); self.dma_addr(8, 1280)
        A(f"s_mul_i32 s{sC}, s{u}, {16*3072}\ns_lshl_b32 s{sB}, s{u}, 11")
        self.dma(SWG, 6, 2, 3072, L_WG, sC, sB); self.dma(SWU, 6, 2, 3072, L_WU, sC, sB)
        A(f"s_mul_i32 s{sC}, s{u}, {16*1280}")
        self.dma(SWD, 8, 2, 1280, L_WD, sC, sB)

    def attn_pre(self):
        A = self.A
        A(f"""v_lshrrev_b32 v1, 4, v0
        v_and_b32 v2, 3, v0
        v_lshlrev_b32 v2, 4, v2
        v_lshl_add_u32 v76, v1, 6, v2            ; base1
        v_and_b32 v3, 0x40, v76
        v_add3_u32 v77, v3, v2, 64
        v_add_u32 v77, 192, v77                  ; base2
        v_bfe_u32 v2, v0, 2, 2
        v_mov_b32 v3, 384""")
        for k in range(4): A(f"v_cmp_eq_u32 vcc, {k}, v2\nv_cndmask_b32 v{72+k}, v3, v76, vcc")
        A(f"""v_lshrrev_b32 v1, 5, v0
        v_cmp_eq_u32 vcc, v1, v2
        v_cndmask_b32 v76, v3, v77, vcc
        v_add_u32 v1, 2, v1
        v_cmp_eq_u32 vcc, v1, v2
        v_cndmask_b32 v77, v3, v77, vcc
        v_and_b32 v1, 1, v0
        v_mul_u32_u24 v78, 0xaaaa, v1
        v_add_u32 v78, 0x4444, v78
        v_and_b32 v1, 3, v0
        v_xor_b32 v2, 1, v1
        v_lshl_add_u32 v79, v2, 2, v1
        v_mul_u32_u24 v79, 0x1111, v79
        v_bfe_u32 v1, v0, 2, 1
        v_mul_u32_u24 v85, 0xffff, v1
        v_sub_u32 v84, 0xffff, v85
        s_mul_i32 s{sA}, s{sV}, 6144
        s_add_u32 s{sA}, s{sA}, {L_VP}
        v_lshl_add_u32 v86, v0, 4, s{sA}
        v_and_b32 v1, 7, v0
        v_lshlrev_b32 v1, 5, v1
        v_bfe_u32 v2, v0, 4, 1
        v_lshl_add_u32 v1, v2, 4, v1
        v_lshrrev_b32 v2, 5, v0
        v_mul_u32_u24 v2, 768, v2
        s_mul_i32 s{sA}, s{sV}, 1536
        v_add3_u32 v87, v1, v2, s{sA}""")
        for r in range(28, 48): A(f"v_mov_b32 v{r}, 0")

    def xa_addr(self):
        self.A(f"""v_and_b32 v1, 15, v0
        v_lshrrev_b32 v2, 4, v0
        v_min_u32 v14, 5, v1
        v_mul_u32_u24 v14, {XS}, v14
        v_lshl_add_u32 v14, v2, 4, v14
        v_and_b32 v3, 3, v0
        v_bfe_u32 v1, v0, 2, 2
        v_add_u32 v15, 3, v3
        v_min_u32 v15, 5, v15
        v_cmp_eq_u32 vcc, 0, v3
        v_cndmask_b32 v15, v15, v1, vcc
        v_mul_u32_u24 v15, {XS}, v15
        v_lshl_add_u32 v15, v2, 4, v15""")
    def xfrags(self): self.A(f"ds_read_b128 v[4:7], v14 offset:{L_XA}\nds_read_b128 v[8:11], v14 offset:{L_XA+64}")
    def gram(self, addr, sreg, off):
        A = self.A
        l = self.role(R_7)
        A(f"""ds_read_b128 v[60:63], v15 offset:{L_XA}
        ds_read_b128 v[64:67], v15 offset:{L_XA+64}
        s_waitcnt lgkmcnt(1)
        v_mfma_f32_16x16x32_bf16 v[68:71], v[60:63], v[4:7], 0
        s_waitcnt lgkmcnt(0)
        v_mfma_f32_16x16x32_bf16 v[68:71], v[64:67], v[8:11], v[68:71]""")
        self.end(l)
        def fin():
            l = self.role(R_7)
            A(f"v_mov_b32_dpp v71, v70 row_newbcast:4 {DPP}")
            self.exec_mask(1 | 1 << 17 | 1 << 34 | 1 << 51)
            self.stores(f"buffer_store_dwordx4 v[68:71], v{addr}, {srd(SWS)}, s{sreg} offen offset:{off}{{f}}", True)
            self.exec_full()
            self.end(l)
        return fin
    def q_lds_addr(self, d):
        self.A(f"""v_bfe_u32 v1, v0, 3, 1
        v_lshlrev_b32 v{d}, 6, v1
        v_bfe_u32 v1, v0, 1, 1
        v_lshl_add_u32 v{d}, v1, 5, v{d}
        v_lshrrev_b32 v1, 5, v0
        v_lshl_add_u32 v{d}, v1, 4, v{d}
        v_bfe_u32 v1, v0, 2, 1
        v_lshl_add_u32 v{d}, v1, 3, v{d}
        v_and_b32 v1, 1, v0
        v_lshl_add_u32 v{d}, v1, 2, v{d}
        v_bfe_u32 v1, v0, 4, 1
        v_lshl_add_u32 v{d}, v1, 1, v{d}""")

    def startup(self):
        A = self.A
        A(f"s_bitcmp1_b32 s{sROLE}, {R_GE4}\ns_cbranch_scc1 L_start_hi")
        self.k_loads()
        self.other_srds()
        l = self.lab("now"); A(f"s_cmp_ge_u32 s{sT}, 30\ns_cbranch_scc1 {l}")
        self.dma_addr(4, 1280)
        self.dma_dist(self.o['cwo'], [(SWO, 4, 1280, L_WO)])
        if not self.o['defer']:
            self.dma_addr(6, 3072)
            self.dma_dist(self.o['cgud'], [(SWG, 6, 3072, L_WG), (SWU, 6, 3072, L_WU), (SWD, 4, 1280, L_WD)])
        self.end(l)
        self.v_loads()
        self.stamp(1, both=False)
        if self.o['dry']:
            l = self.lab("nodry")
            A(f"""s_cmp_eq_u32 s{sV}, 2
            s_cbranch_scc0 {l}
            s_mov_b32 s{sDRY}, 1
            s_mov_b32 s{sSAVE}, s{sT}
            s_mov_b32 s{sT}, 0
            s_mov_b32 s{sROLE}, 0xff
            s_mov_b64 s[{sFULL}:{sFULL+1}], 0
            s_mov_b64 exec, 0
            s_branch L_attn
            L_dry_ret:
            s_mov_b32 s{sDRY}, 0
            s_mov_b32 s{sP}, 0
            s_mov_b32 s{sT}, s{sSAVE}
            s_mov_b32 s{sROLE}, {1 << R_LT4}
            s_mov_b64 s[{sFULL}:{sFULL+1}], -1
            s_mov_b64 exec, -1
            {l}:""")
        l3 = self.lab("nog")
        A(f"s_cmp_eq_u32 s{sV}, 3\ns_cbranch_scc0 {l3}\ns_setprio 3")
        lp = self.lab("tq"); lr = self.lab("tqr")
        self.stamp(13, both=False)
        if self.prof: A(f"s_mov_b32 s{sST+5}, s{sST+13}")
        A(f"""s_bfe_u32 s{sB}, s{sT}, 0x20001          ; b
        s_lshl_b32 s{sC}, s{sB}, 11
        v_lshrrev_b32 v1, 4, v0
        v_mul_u32_u24 v78, {Q0SL}, v1
        v_and_b32 v3, 15, v0
        v_lshl_add_u32 v78, v3, 4, v78
        v_add_u32 v78, s{sC}, v78
        v_lshrrev_b32 v1, 5, v0
        v_lshlrev_b32 v79, 6, v1
        v_bfe_u32 v1, v0, 1, 1
        v_lshl_add_u32 v79, v1, 5, v79
        v_bfe_u32 v1, v0, 2, 1
        v_lshl_add_u32 v79, v1, 4, v79
        v_bfe_u32 v1, v0, 3, 1
        v_lshl_add_u32 v79, v1, 3, v79
        v_and_b32 v1, 1, v0
        v_lshl_add_u32 v79, v1, 2, v79
        v_bfe_u32 v1, v0, 4, 1
        v_lshl_add_u32 v79, v1, 1, v79""")
        QL_ = self.o['q0ld'].replace('plain','').replace('_',' ')
        A(f"{lp}:\nv_mov_b32 v1, 0")
        for sg in range(3):
            A(f"""s_lshr_b32 s{sA}, s{sT}, 3
            s_mul_i32 s{sA}, s{sA}, 3
            s_add_u32 s{sA}, s{sA}, {sg}
            s_lshr_b32 s{sB}, s{sA}, 2
            s_mul_i32 s{sB}, s{sB}, 10
            s_lshl_b32 s{sC}, s{sX}, 5
            s_add_u32 s{sB}, s{sB}, s{sC}
            s_mul_i32 s{sB}, s{sB}, {Q0SL}
            s_and_b32 s{sA}, s{sA}, 3
            s_lshl_b32 s{sA}, s{sA}, 9
            s_add_u32 s{sB}, s{sB}, s{sA}
            s_add_u32 s{sB}, s{sB}, {RQ[0]}""")
            for i in range(3):
                if i == 2: A("s_mov_b32 exec_hi, 0")
                r = 4 + 24 * sg + 8 * i
                A(f"buffer_load_dwordx4 {vr(r)}, v78, {srd(SWS)}, s{sB} offen {QL_}\nbuffer_load_dwordx4 {vr(r+4)}, v78, {srd(SWS)}, s{sB} offen offset:256 {QL_}")
                A(f"s_add_u32 s{sB}, s{sB}, {4*Q0SL}" if i < 2 else "s_mov_b64 exec, -1")
        A("s_waitcnt vmcnt(0)")
        if self.prof:
            lx = self.lab("fx"); A(f"s_cmp_lg_u32 s{sST+5}, s{sST+13}\ns_cbranch_scc1 {lx}"); self.stamp(5, both=False); A(f"s_mov_b32 s{sST+14}, s96\n{lx}:")
        for third in (0, 1):
            if third: A("s_mov_b32 exec_hi, 0")
            for sg in range(3):
                for i in ((2,) if third else (0, 1)):
                    for h in range(2):
                        r = 4 + 24 * sg + 8 * i + 4 * h
                        A(f"v_xor_b32 v2, s{sTAG}, v{r+1}\nv_xor_b32 v3, s{sTAG}, v{r+3}\nv_or3_b32 v1, v1, v2, v3")
        for k in range(3):
            for i in range(4): A(f"v_add_f32 v{4+24*k+2*i}, v{4+24*k+2*i}, v{20+24*k+2*i}")
        A(f"s_mov_b64 exec, -1\nv_cmp_ne_u32 vcc, 0, v1\ns_cbranch_vccnz {lr}")
        self.tail.append(f"{lr}:\ns_sub_u32 s{sTO}, s{sTO}, 1\ns_cbranch_scc1 L_end\ns_branch {lp}")
        for k in range(3):
            r = 4 + 24 * k
            for i in range(4): A(f"v_add_f32 v{r+2*i}, v{r+2*i}, v{r+8+2*i}")
            self.treduce(r, r + 2, r + 4, r + 6)
            A(f"v_cvt_pk_bf16_f32 v{r}, 0, v{r}\nds_write_b16_d16_hi v79, v{r} offset:{L_QL + 128*k}")
        self.lds_spin(4, 8)
        A(f"v_mov_b32 v4, 1\nds_write_b32 v5, v4\ns_setprio 0")
        self.end(l3)
        self.stamp(2, both=False)
        self.attn_pre()
        self.lds_spin(0, 1)
        self.xres_read()
        A("s_branch L_attn")
        A("L_start_hi:\ns_setprio 3")
        self.other_srds()
        l = self.lab("x0"); l2 = self.lab("x0")
        A(f"""v_lshlrev_b32 v10, 4, v0
        s_and_b32 s{sB}, s{sV}, 3
        s_lshl_b32 s{sA}, s{sB}, 10
        s_add_u32 m0, s{sA}, {L_X0}
        s_cmp_eq_u32 s{sV}, 4
        buffer_load_dwordx4 v10, {srd(SX0)}, s{sA} offen lds
        s_cbranch_scc0 {l}
        s_mov_b32 m0, {L_X0 + 4096}
        s_movk_i32 s{sA}, 0x1000
        buffer_load_dwordx4 v10, {srd(SX0)}, s{sA} offen lds
        {l}:
        s_cmp_eq_u32 s{sV}, 5
        s_cbranch_scc0 {l2}
        s_mov_b32 m0, {L_XA + 5*XS}
        s_mov_b64 exec, 0xff
        buffer_load_dwordx4 v10, {srd(SWR)}, 0 offen lds
        s_mov_b64 exec, -1
        {l2}:""")
        lq = self.lab("noq"); lq2 = self.lab("noq")
        A(f"s_cmp_ge_u32 s{sT}, 30\ns_cbranch_scc1 {lq}")
        self.dma_addr(6, 12288)
        A(f"s_and_b32 s{sB}, s{sV}, 3\ns_lshl_b32 s{sC}, s{sB}, 7\ns_lshl_b32 s{sB}, s{sB}, 13")
        self.dma(SWQ, 6, 8, 12288, L_WQ, sC, sB)
        A(f"""v_lshrrev_b32 v1, 4, v0
        v_and_b32 v2, 15, v0
        v_mul_u32_u24 v3, 1280, v1
        v_lshl_add_u32 v10, v2, 4, v3
        v_lshl_add_u32 v11, v2, 3, v3
        s_lshl_b32 s{sA}, s{sAI}, 7
        v_add_u32 v11, s{sA}, v11
        v_mul_u32_u24 v12, {XS}, v1
        v_lshl_add_u32 v12, v2, 3, v12
        v_lshlrev_b32 v13, 3, v2
        s_waitcnt vmcnt(8)""")
        self.lds_inc(4); self.lds_spin(4, 4)
        for i in range(5): A(f"ds_read_b128 {vr(16+4*i)}, v10 offset:{L_X0 + 256*i}")
        A(f"ds_read_b64 v[36:37], v11 offset:{L_X0}")
        A("v_mov_b32 v40, 0x3f803f80\nv_mov_b32 v41, 0x3f803f80\nv_mov_b32 v42, 0\nv_mov_b32 v43, 0\ns_waitcnt lgkmcnt(0)")
        for i in range(20): A(f"v_dot2_f32_bf16 v42, v{16+i}, v{16+i}, v42\nv_dot2_f32_bf16 v43, v{16+i}, v40, v43")
        self.mix(self.red16([42, 43])); self.mix(self.lnstats(42, 43, 44, 45, 46))
        A("v_lshlrev_b32 v16, 16, v36\nv_and_b32 v17, 0xffff0000, v36\nv_lshlrev_b32 v18, 16, v37\nv_and_b32 v19, 0xffff0000, v37")
        for i in range(4): A(f"v_sub_f32 v{16+i}, v{16+i}, v44")
        for i in range(4): A(f"v_cvt_pk_bf16_f32 v{16+i}, 0, v{16+i}")
        for i in range(4): A(f"v_mul_f32 v{16+i}, v{16+i}, v45")
        A(f"""v_cvt_pk_bf16_f32 v16, v16, v17
        v_cvt_pk_bf16_f32 v17, v18, v19
        ds_write_b64 v12, v[16:17] offset:{L_XA}
        ds_write_b64 v13, v[40:41] offset:{L_XA + 4*XS}""")
        A(f"s_and_b32 s{sA}, s{sV}, 3\ns_lshl_b32 s{sA}, s{sA}, 13\ns_add_u32 s{sA}, s{sA}, {L_WQ}")
        self.tr_addr(52, sA)
        for t in range(1, 4): A(f"v_xor_b32 v{52+t}, {32*t}, v52")
        self.xa_addr()
        A(f"""s_and_b32 s{sA}, s{sV}, 3
        s_lshl_b32 s{sB}, s{sA}, 11
        v_and_b32 v1, 15, v0
        v_lshlrev_b32 v72, 9, v1
        v_and_b32 v1, 0x30, v0
        v_add3_u32 v72, v72, v1, s{sB}
        v_lshl_add_u32 v73, v0, 4, s{sB}
        v_lshrrev_b32 v74, 5, v0
        v_lshlrev_b32 v74, 11, v74
        v_and_b32 v2, 31, v0
        v_lshl_add_u32 v74, v2, 4, v74
        s_lshl_b32 s{sB}, s{sA}, 8
        v_add_u32 v75, s{sB}, v1
        s_lshl_b32 s{sA}, s{sA}, 9
        s_mul_i32 s{sE}, s{sSIG}, {Q0SL}
        s_add_u32 s{sE}, s{sE}, s{sA}
        s_add_u32 s{sE}, s{sE}, {RQ[0]}
        s_add_u32 s{sF}, s{sE}, 4096
        s_waitcnt vmcnt(0) lgkmcnt(0)""")
        self.stamp(12, both=False)
        for t in range(4): self.wfrags(16 + 8 * t, 52 + t, 2)
        self.xfrags()
        A("s_waitcnt lgkmcnt(0)")
        for s in range(2):
            for t in range(4):
                A(f"v_mfma_f32_16x16x32_bf16 {vr(48+4*t)}, {vr(16+8*t+4*s)}, {vr(4+4*s)}, {'0' if s == 0 else vr(48+4*t)}")
        for t in range(4):
            for i in range(4): A(f"v_mov_b32 v{16+8*t+2*i}, v{48+4*t+i}\nv_mov_b32 v{17+8*t+2*i}, s{sTAG}")
        self.exec_mask(0x000f000f000f000f)
        for t in range(4):
            for h in range(2): A(f"ds_write_b128 v72, {vr(16+8*t+4*h)} offset:{L_OC + 128*t + 64*h}")
        self.exec_mask(0x0010001000100010)
        for t in range(4): A(f"ds_write_b128 v75, {vr(48+4*t)} offset:{L_CS + 64*t}")
        self.exec_full()
        A(f"""s_waitcnt lgkmcnt(0)
        ds_read_b128 v[16:19], v73 offset:{L_OC}
        ds_read_b128 v[20:23], v73 offset:{L_OC + 1024}
        s_waitcnt lgkmcnt(0)
        buffer_store_dwordx4 v[16:19], v74, {srd(SWS)}, s{sE} offen sc1
        buffer_store_dwordx4 v[20:23], v74, {srd(SWS)}, s{sF} offen sc1
        s_branch {lq2}
        {lq}:
        s_waitcnt vmcnt(0)""")
        self.lds_inc(4); self.lds_spin(4, 4)
        A(f"{lq2}:")
        self.xres_read()
        A("s_waitcnt lgkmcnt(0)")
        self.lds_inc(4)
        self.stamp(14, both=False)
        CF = ' sc1'
        sp = self.o['csplit']
        l = self.role(R_456 if sp else R_6)
        A("v_mov_b32 v64, -1\nv_mov_b32 v65, -1\nv_mov_b32 v66, -1\nv_mov_b32 v67, -1\nv_lshlrev_b32 v10, 4, v0")
        l2 = self.lab("nocl"); lb = self.lab("clb"); lc = self.lab("clc")
        if sp: A(f"s_cmp_eq_u32 s{sV}, 5\ns_cbranch_scc1 {lb}\ns_cmp_eq_u32 s{sV}, 6\ns_cbranch_scc1 {lc}")
        A(f"s_mul_i32 s{sA}, s{sSIG}, {OSL}")
        self.exec_mask((1 << 56) - 1)
        for p in range(2): A(f"s_add_u32 s{sB}, s{sA}, {RO[p]}\nbuffer_store_dwordx4 v[64:67], v10, {srd(SWS)}, s{sB} offen{CF}")
        self.exec_full()
        A(f"s_cmp_ge_u32 s{sT}, 30\ns_cbranch_scc1 {l2}\ns_lshl_b32 s{sA}, s{sSLOT}, 10")
        for r in RX + RY: A(f"s_add_u32 s{sB}, s{sA}, {r}\nbuffer_store_dwordx4 v[64:67], v10, {srd(SWS)}, s{sB} offen{CF}")
        if sp: A(f"s_branch {l2}\n{lb}:")
        A(f"s_mul_i32 s{sA}, s{sSIG}, {GSL}")
        for p in range(2):
            A(f"s_add_u32 s{sB}, s{sA}, {RG[p]}")
            for i in range(2): A(f"buffer_store_dwordx4 v[64:67], v10, {srd(SWS)}, s{sB} offen offset:{1024*i}{CF}")
        self.exec_mask((1 << 40) - 1)
        for p in range(2): A(f"s_add_u32 s{sB}, s{sA}, {RG[p]}\nbuffer_store_dwordx4 v[64:67], v10, {srd(SWS)}, s{sB} offen offset:2048{CF}")
        self.exec_full()
        if sp: A(f"s_branch {l2}\n{lc}:")
        A(f"s_mul_i32 s{sA}, s{sSIG}, {QSL}\ns_add_u32 s{sC}, s{sA}, {RQ[1]}")
        for i in range(4): A(f"buffer_store_dwordx4 v[64:67], v10, {srd(SWS)}, s{sC} offen offset:{1024*i}{CF}")
        A(f"s_add_u32 s{sB}, s{sC}, 4224\nbuffer_store_dwordx4 v[64:67], v10, {srd(SWS)}, s{sB} offen{CF}")
        self.exec_mask(0xff)
        A(f"s_add_u32 s{sC}, s{sC}, 4096\nbuffer_store_dwordx4 v[64:67], v10, {srd(SWS)}, s{sC} offen{CF}")
        A(f"""{l2}:
        s_mov_b64 exec, -1
        s_getreg_b32 s{sXCC}, hwreg(HW_REG_XCC_ID, 0, 4)
        v_mov_b32 v6, s{sTAG}
        v_mov_b32 v7, s{sXCC}
        v_mov_b32 v8, s{sTAG}
        v_mov_b32 v9, s{sXCC}
        v_mov_b32 v4, {L_FL}
        v_mov_b32 v5, 1
        s_lshl_b32 s{sA}, s{sSIG}, 7
        s_add_u32 s{sA}, s{sA}, {RF}
        s_waitcnt vmcnt(0)""")
        l3 = self.lab("nofl")
        if sp: A(f"""s_mov_b64 exec, 1
        ds_add_rtn_u32 v11, v4, v5 offset:8
        s_waitcnt lgkmcnt(0)
        v_cmp_eq_u32 vcc, 2, v11
        s_cbranch_vccz {l3}""")
        A(f"""s_mov_b64 exec, 0xff
        buffer_store_dwordx4 v[6:9], v10, {srd(SWS)}, s{sA} offen sc1
        {l3}:
        s_mov_b64 exec, -1""")
        self.end(l)
        self.stamp(1, both=False)
        A("s_setprio 0")
        self.k_loads(); self.v_loads()
        self.attn_pre()
        self.lds_spin(0, 1)

    def attention(self):
        A = self.A
        A("L_attn:")
        order = [(72, 4), (73, 8), (76, 20), (74, 12), (75, 16), (77, 24)]
        for a, d in order: A(f"ds_read_b128 {vr(d)}, v{a} offset:{L_QL}")
        A("s_waitcnt vmcnt(24)")
        self.stamp(3)
        for n, (a, d) in enumerate(order):
            A(f"s_waitcnt lgkmcnt({5-n})")
            for h in range(2):
                if a < 76: g = 4 * h + (a - 72); b = 12 * (g & ~1) + 8 * (g & 1)
                else: g = 4 * h + 2 * (a - 76); b = 12 * g + 16
                A(f"v_smfmac_f32_16x16x64_bf16 {vr(28+4*h)}, {vr(d)}, {ar(b,8)}, v78")
        A("s_waitcnt vmcnt(18)")
        for i in range(6): A(f"ds_read_b128 {vr(48+4*i)}, v86 offset:{1024*i}")
        A(f"s_mov_b32 s{sA}, 0x{ODD & 0xffffffff:x}\ns_mov_b32 s{sB}, 0x{ODD & 0xffffffff:x}")
        fin = lambda d: [f"v_add_f32 v{d}, v{d}, v{d+1}", f"v_add_f32 v{d+2}, v{d+2}, v{d+3}",
                         f"v_cndmask_b32 v{d}, v{d}, v{d+2}, s[{sA}:{sB}]",
                         f"v_add_f32_dpp v{d}, v{d}, v{d} quad_perm:[1,0,3,2] {DPP}",
                         f"v_cvt_pk_bf16_f32 v{d}, 0, v{d}", f"v_mul_f32 v{d}, s{sSCALE}, v{d}",
                         f"v_cvt_pk_bf16_f32 v{d}, 0, v{d}", f"v_mul_f32 v{d}, s{sLOG2E}, v{d}"]
        self.mix(fin(28), fin(32))
        A(f"""v_max_f32 v29, v28, v32
        v_max_f32_dpp v29, v29, v29 quad_perm:[2,3,0,1] {DPP}
        v_max_f32_dpp v29, v29, v29 row_half_mirror {DPP}
        v_max_f32_dpp v29, v29, v29 row_mirror {DPP}
        v_max_f32_dpp v29, v29, v29 row_bcast:15 row_mask:0xa bank_mask:0xf
        v_max_f32_dpp v29, v29, v29 row_bcast:31 row_mask:0xc bank_mask:0xf
        v_readlane_b32 s{sM}, v29, 63
        v_subrev_f32 v28, s{sM}, v28
        v_subrev_f32 v32, s{sM}, v32
        v_exp_f32 v28, v28
        v_exp_f32 v32, v32
        v_cvt_pk_bf16_f32 v30, v28, v28
        v_cvt_pk_bf16_f32 v31, v32, v32""")
        lsum = ["v_add_f32 v33, v28, v32", f"v_mov_b32 v34, s{sM}", f"s_lshl_b32 s{sA}, s{sV}, 2", f"v_mov_b32 v35, s{sA}"] + \
               [f"v_add_f32_dpp v33, v33, v33 {p}" for p in (f"quad_perm:[2,3,0,1] {DPP}", f"row_half_mirror {DPP}", f"row_mirror {DPP}",
                                                            "row_bcast:15 row_mask:0xa bank_mask:0xf", "row_bcast:31 row_mask:0xc bank_mask:0xf")]
        def abuild(S):
            b = 4 + 4 * (S & 1); P = 30 + (S >> 1); jj = S & 1
            return [f"v_and_b32_dpp v{b+2*x+m}, v{P}, v{84+m} row_newbcast:{8*jj+4*x+2*c} row_mask:0xf bank_mask:{'0x3' if c == 0 else '0xc'}"
                    for c in range(2) for x in range(2) for m in range(2)]
        for x in abuild(0): A(x)
        A("s_waitcnt lgkmcnt(0)")
        for S in range(4):
            nxt = abuild(S + 1) if S < 3 else []
            if S: A(f"s_waitcnt vmcnt({18 - 6*S})")
            for s in range(3):
                vv = vr(48 + 8 * s, 8) if S == 0 else vr(VBASE + (S - 1) * 24 + 8 * s, 8)
                A(f"v_smfmac_f32_16x16x64_bf16 {vr(36+4*s)}, {vr(4+4*(S&1))}, {vv}, v79")
                for _ in range(3):
                    if nxt: A(nxt.pop(0))
                if lsum and S < 3: A(lsum.pop(0))
        for x in lsum: A(x)
        self.exec_mask(1 << 63)
        A(f"ds_write_b32 v35, v34 offset:{L_ML}\nds_write_b32 v35, v33 offset:{L_ML+32}")
        self.exec_mask(0xFF00FF0000FF00FF)
        for s in range(3): A(f"ds_write_b128 v87, {vr(36+4*s)} offset:{L_OC + 256*s}")
        self.exec_full()
        A(f"""v_lshrrev_b32 v1, 4, v0
        v_and_b32 v2, 15, v0
        v_mul_u32_u24 v48, 3072, v1
        v_lshl_add_u32 v48, v2, 4, v48
        s_and_b32 s{sA}, s{sV}, 3
        s_lshl_b32 s{sA}, s{sA}, 8
        v_add_u32 v48, s{sA}, v48
        v_lshlrev_b32 v49, 3, v1
        v_mov_b32 v50, 0
        s_mul_i32 s{sB}, s{sSIG}, {OSL}
        s_add_u32 s{sA}, s{sA}, s{sB}
        v_lshlrev_b32 v51, 4, v2
        v_lshl_add_u32 v51, v1, 2, v51
        v_add_u32 v51, s{sA}, v51
        v_mov_b32 v52, s{sB}
        v_and_b32 v53, 7, v0
        v_lshlrev_b32 v53, 2, v53
        s_mul_i32 s{sE}, s{sP}, {RO[1]-RO[0]}
        s_waitcnt lgkmcnt(0)""")
        l = self.lab("nochk"); lp = self.lab("chk"); lr = self.lab("chkr")
        A(f"""s_or_b32 s{sA}, s{sP}, s{sV}
        s_cmp_eq_u32 s{sA}, 0
        s_cbranch_scc0 {l}
        v_mov_b32 v1, {L_FL}
        v_mov_b32 v2, s{sTAG}
        v_lshlrev_b32 v3, 9, v0
        s_getreg_b32 s{sXCC}, hwreg(HW_REG_XCC_ID, 0, 4)
        s_mov_b32 s{sA}, {RF}
        {lp}:
        buffer_load_dwordx2 v[4:5], v3, {srd(SWS)}, s{sA} offen sc1
        buffer_load_dwordx2 v[6:7], v3, {srd(SWS)}, s{sA} offen offset:128 sc1
        buffer_load_dwordx2 v[8:9], v3, {srd(SWS)}, s{sA} offen offset:256 sc1
        buffer_load_dwordx2 v[10:11], v3, {srd(SWS)}, s{sA} offen offset:384 sc1
        s_waitcnt vmcnt(0) lgkmcnt(0)
        v_xor_b32 v4, v4, v2
        v_xor_b32 v6, v6, v2
        v_xor_b32 v8, v8, v2
        v_xor_b32 v10, v10, v2
        v_or3_b32 v4, v4, v6, v8
        v_or_b32 v4, v4, v10
        v_cmp_ne_u32 vcc, 0, v4
        s_cbranch_vccnz {lr}
        v_xor_b32 v5, s{sXCC}, v5
        v_xor_b32 v7, s{sXCC}, v7
        v_xor_b32 v9, s{sXCC}, v9
        v_xor_b32 v11, s{sXCC}, v11
        v_or3_b32 v5, v5, v7, v9
        v_or_b32 v5, v5, v11
        v_cmp_eq_u32 vcc, 0, v5
        s_lshl_b32 s{sB}, s{sX}, 3
        s_lshr_b64 s[{sA}:{sB}], vcc, s{sB}
        s_and_b32 s{sA}, s{sA}, 0xff
        s_cmp_eq_u32 s{sA}, 0xff
        s_cselect_b32 s{sA}, 1, 0
        v_mov_b32 v4, s{sA}
        ds_write_b32 v1, v4 offset:12
        s_cmp_eq_u32 s2, 0
        s_cbranch_scc0 L_noepoch
        v_mov_b32 v3, 0
        s_mov_b32 s{sA}, {RE}
        s_mov_b64 exec, 1
        buffer_store_dword v2, v3, {srd(SWS)}, s{sA} offen sc1
        s_mov_b64 exec, -1
        L_noepoch:
        s_waitcnt lgkmcnt(0)
        {l}:""")
        self.tail.append(f"{lr}:\ns_sleep {self.o['bsleep']}\ns_sub_u32 s{sTO}, s{sTO}, 1\ns_cbranch_scc1 L_end\ns_branch {lp}")
        self.stamp(4)
        self.barrier()
        A(f"ds_read_b32 v54, v50 offset:{L_FL+12}")
        l = self.role(R_456)
        A(f"""ds_read_b128 v[4:7], v50 offset:{L_ML}
        ds_read_b128 v[8:11], v50 offset:{L_ML+16}
        ds_read_b64 v[12:13], v49 offset:{L_ML}
        ds_read_b128 v[16:19], v48 offset:{L_OC}
        ds_read_b128 v[20:23], v48 offset:{L_OC+768}
        ds_read_b128 v[24:27], v48 offset:{L_OC+1536}
        ds_read_b128 v[28:31], v48 offset:{L_OC+2304}
        s_waitcnt lgkmcnt(4)
        v_readfirstlane_b32 s{sFAST}, v54
        v_max3_f32 v4, v4, v5, v6
        v_max3_f32 v8, v8, v9, v10
        v_max3_f32 v4, v4, v7, v11
        v_max_f32 v4, v4, v8
        v_sub_f32 v12, v12, v4
        v_sub_f32 v13, v13, v4
        v_exp_f32 v12, v12
        v_exp_f32 v13, v13
        s_waitcnt lgkmcnt(0)""")
        for i in range(4): A(f"v_add_f32 v{16+i}, v{16+i}, v{20+i}\nv_add_f32 v{24+i}, v{24+i}, v{28+i}")
        for i in range(4): A(f"v_mul_f32 v{16+i}, v12, v{16+i}")
        for i in range(4): A(f"v_fmac_f32 v{16+i}, v13, v{24+i}")
        self.treduce(16, 17, 18, 19)
        self.stores(f"buffer_store_dword v16, v51, {srd(SWS)}, s{sE} offen{{f}}", True)
        self.end(l)
        l = self.role(R_7)
        A(f"""ds_read_b32 v4, v53 offset:{L_ML}
        ds_read_b32 v5, v53 offset:{L_ML+32}
        s_waitcnt lgkmcnt(1)
        v_readfirstlane_b32 s{sFAST}, v54
        v_max_f32_dpp v6, v4, v4 quad_perm:[1,0,3,2] {DPP}
        v_max_f32_dpp v6, v6, v6 quad_perm:[2,3,0,1] {DPP}
        v_max_f32_dpp v6, v6, v6 row_half_mirror {DPP}
        v_sub_f32 v4, v4, v6
        v_exp_f32 v4, v4
        s_waitcnt lgkmcnt(0)
        v_mul_f32 v7, v4, v5""")
        self.mix(self.red16([7])[:3])
        self.exec_mask(1)
        self.stores(f"buffer_store_dwordx2 v[6:7], v52, {srd(SWS)}, s{sE} offen offset:768{{f}}", True)
        self.exec_full()
        self.end(l)
        A(f"s_cmp_ge_u32 s{sT}, 30\ns_cbranch_scc1 L_idle")
        l = self.role(R_7); l2 = self.pass0()
        A(f"""v_lshlrev_b32 v1, 4, v0
        ds_read_b128 v[4:7], v1 offset:{L_CS}
        s_mul_i32 s{sA}, s{sSIG}, {QSL}
        s_add_u32 s{sA}, s{sA}, {RQ[1] + 4224}
        s_waitcnt lgkmcnt(0)""")
        self.stores(f"buffer_store_dwordx4 v[4:7], v1, {srd(SWS)}, s{sA} offen{{f}}", True)
        self.end(l2); self.end(l)

    def afrag_addr(self, d, stride):
        self.A(f"v_and_b32 v1, 3, v0\nv_lshrrev_b32 v2, 4, v0\nv_mul_u32_u24 v1, {stride}, v1\nv_lshl_add_u32 v{d}, v2, 4, v1")
    def pub_addr(self, d):
        self.A(f"s_lshl_b32 s{sA}, s{sSLOT}, 10\ns_lshl_b32 s{sB}, s{sV}, 8\ns_add_u32 s{sA}, s{sA}, s{sB}\nv_lshl_add_u32 v{d}, v0, 4, s{sA}")

    def wo_stage(self):
        A = self.A
        l = self.role(R_LT4)
        A(f"s_waitcnt lgkmcnt(0)\nv_readfirstlane_b32 s{sFAST}, v54\ns_mov_b32 s{sA}, {L_WO}")
        self.tr_addr(72, sA)
        A(f"s_lshl_b32 s{sA}, s{sV}, 5\nv_xor_b32 v72, s{sA}, v72")
        self.wfrags(4, 72, 8)
        A(f"""s_lshl_b32 s{sA}, s{sRI}, 2
        s_add_u32 s{sA}, s{sA}, s{sV}
        s_mul_i32 s{sB}, s{sA}, 86
        s_lshr_b32 s{sB}, s{sB}, 8
        s_mul_i32 s{sC}, s{sB}, 3
        s_sub_u32 s{sC}, s{sA}, s{sC}
        s_lshl_b32 s{sB}, s{sB}, 3
        s_lshl_b32 s{sA}, s{sX}, 5
        s_add_u32 s{sB}, s{sB}, s{sA}
        s_mul_i32 s{sB}, s{sB}, {OSL}
        v_lshrrev_b32 v1, 4, v0
        v_and_b32 v2, 15, v0
        v_mul_u32_u24 v72, {2*OSL}, v1
        v_add_u32 v72, s{sB}, v72
        s_lshl_b32 s{sC}, s{sC}, 8
        v_lshl_add_u32 v73, v2, 4, v72
        v_add_u32 v73, s{sC}, v73
        s_lshl_b32 s{sA}, s{sV}, 7
        v_mul_u32_u24 v74, {OS}, v1
        v_lshl_add_u32 v74, v2, 3, v74
        v_add_u32 v74, s{sA}, v74""")
        self.afrag_addr(75, OS); self.pub_addr(76)
        self.end(l)
        self.sync(self.o['sync_o'])
        l = self.role(R_LT4)
        def loads(): A(f"""buffer_load_dwordx2 v[52:53], v72, {srd(SWS)}, s{sE} offen offset:768 sc1
        buffer_load_dwordx2 v[54:55], v72, {srd(SWS)}, s{sE} offen offset:{768+OSL} sc1
        buffer_load_dwordx4 v[56:59], v73, {srd(SWS)}, s{sE} offen sc1
        buffer_load_dwordx4 v[60:63], v73, {srd(SWS)}, s{sE} offen offset:{OSL} sc1""")
        def red():
            A("""v_sub_f32 v64, v54, v52
            v_exp_f32 v65, v64
            v_exp_f32 v64, -v64
            v_fma_f32 v65, v65, v55, v53
            v_fma_f32 v64, v64, v53, v55
            v_rcp_f32 v65, v65
            v_rcp_f32 v64, v64""")
            for i in range(4): A(f"v_mul_f32 v{56+i}, v65, v{56+i}")
            for i in range(4): A(f"v_fmac_f32 v{56+i}, v64, v{60+i}")
            A("v_add_f32 v64, v56, v57\nv_add_f32 v65, v58, v59\nv_cvt_pk_bf16_f32 v56, v56, v57\nv_cvt_pk_bf16_f32 v57, v58, v59")
        self.poll(loads, range(52, 64), red, (64, 65))
        A(f"ds_write_b64 v74, v[56:57] offset:{L_OA}")
        self.stamp(5)
        self.end(l)
        A(f"s_mul_i32 s{sE}, s{sP}, {RX[1]-RX[0]}\ns_add_u32 s{sE}, s{sE}, {RX[0]}\ns_waitcnt lgkmcnt(0)")
        self.barrier()
        l = self.role(R_LT4)
        for s in range(8): A(f"ds_read_b128 {vr(36+4*s)}, v75 offset:{L_OA + 64*s}")
        for s in range(8):
            A(f"s_waitcnt lgkmcnt({7-s})\nv_mfma_f32_16x16x32_bf16 v[68:71], {vr(36+4*s)}, {vr(4+4*s)}, {'0' if s == 0 else 'v[68:71]'}")
        self.exec_mask(0xffff)
        self.stores(f"buffer_store_dwordx4 v[68:71], v76, {srd(SWS)}, s{sE} offen{{f}}", False)
        self.exec_full()
        self.end(l)
        if self.o['defer']:
            l = self.role(R_GE4); l2 = self.pass0(); l3 = self.lab("nm")
            A(f"s_cbranch_execz {l3}\ns_and_b32 s{sD}, s{sV}, 3"); self.w_dma_gud(sD)
            self.end(l3); self.end(l2); self.end(l)
        self.stamp(6)

    def x_gather_pre(self):
        self.A(f"""s_lshl_b32 s{sA}, s{sAI}, 10
        s_lshl_b32 s{sB}, s{sV}, 7
        s_add_u32 s{sA}, s{sA}, s{sB}
        v_lshrrev_b32 v1, 3, v0
        v_and_b32 v2, 7, v0
        v_mul_u32_u24 v76, 10240, v1
        v_lshl_add_u32 v76, v2, 4, v76
        v_add_u32 v76, s{sA}, v76
        s_add_u32 s{sC}, s{sE}, 81920
        s_add_u32 s{sD}, s{sE}, 163840
        v_lshrrev_b32 v1, 4, v0
        v_mul_u32_u24 v77, {XS}, v1
        v_lshl_add_u32 v77, v2, 1, v77
        s_lshl_b32 s{sA}, s{sV}, 4
        v_add_u32 v77, s{sA}, v77""")
    def x_gather(self):
        A = self.A
        def loads():
            for i, r in enumerate((sE, sC, sD)): A(f"buffer_load_dwordx4 {vr(48+4*i)}, v76, {srd(SWS)}, s{r} offen sc1")
        def red():
            for i in range(4): A(f"v_add_f32 v{48+i}, v{48+i}, v{52+i}")
            for i in range(4): A(f"v_add_f32 v{48+i}, v{48+i}, v{56+i}")
            self.treduce(48, 49, 50, 51)
            A(f"v_add_f32_dpp v48, v48, v48 row_ror:8 {DPP}\nv_cvt_pk_bf16_f32 v49, 0, v48")
        self.poll(loads, range(48, 60), red, (48, 48))

    def gu_wpre(self):
        self.wfrags(16, 46, 2)
    def gu_stage(self):
        A = self.A
        A(f"s_lshr_b32 s{sA}, s{sV}, 2\ns_lshl_b32 s{sA}, s{sA}, 13\ns_add_u32 s{sA}, s{sA}, {L_WG}")
        self.tr_addr(46, sA)
        A(f"s_and_b32 s{sA}, s{sV}, 3\ns_lshl_b32 s{sA}, s{sA}, 5\nv_xor_b32 v46, s{sA}, v46")
        if self.o['defer']:
            l = self.lab("gw"); A(f"s_cmp_eq_u32 s{sP}, 0\ns_cbranch_scc1 {l}"); self.gu_wpre(); self.end(l)
        else: self.gu_wpre()
        self.xa_addr()
        A(f"""s_mul_i32 s{sA}, s{sSIG}, {GSL}
        s_lshl_b32 s{sB}, s{sV}, 8
        s_add_u32 s{sB}, s{sB}, s{sA}
        v_lshl_add_u32 v72, v0, 4, s{sB}
        s_lshl_b32 s{sB}, s{sV}, 6
        s_add_u32 s{sB}, s{sB}, s{sA}
        v_lshl_add_u32 v74, v0, 2, s{sB}
        v_lshrrev_b32 v1, 4, v0
        v_lshl_add_u32 v73, v1, 4, s{sA}""")
        self.x_gather_pre()
        self.sync(self.o['sync_x'])
        self.x_gather()
        A(f"""v_add_f32 v{vXR}, v{vXR}, v49
        v_cvt_pk_bf16_f32 v{vXR}, 0, v{vXR}
        ds_write_b16_d16_hi v77, v{vXR} offset:{L_XA}""")
        self.stamp(7)
        A(f"s_mul_i32 s{sE}, s{sP}, {RG[1]-RG[0]}\ns_add_u32 s{sE}, s{sE}, {RG[0]}\ns_waitcnt lgkmcnt(0)")
        self.barrier()
        self.xfrags()
        if self.o['defer']:
            l = self.pass0(); self.gu_wpre(); A("s_waitcnt lgkmcnt(0)"); self.end(l)
        fin = self.gram(73, sE, 2560)
        A(f"""s_waitcnt lgkmcnt(1)
        v_mfma_f32_16x16x32_bf16 v[56:59], v[4:7], v[16:19], 0
        s_waitcnt lgkmcnt(0)
        v_mfma_f32_16x16x32_bf16 v[56:59], v[8:11], v[20:23], v[56:59]""")
        fin()
        self.exec_mask(0xffff)
        self.stores(f"buffer_store_dwordx4 v[56:59], v72, {srd(SWS)}, s{sE} offen{{f}}", True)
        l = self.pass0()
        self.exec_mask(0xffff0000)
        self.stores(f"buffer_store_dword v56, v74, {srd(SWS)}, s{sE} offen offset:{2048-64}{{f}}", True)
        self.end(l)
        self.exec_full()
        self.stamp(8)

    def down_stage(self):
        A = self.A
        l = self.role(R_LT4)
        A(f"s_mov_b32 s{sA}, {L_WD}")
        self.tr_addr(72, sA)
        A(f"s_lshl_b32 s{sA}, s{sV}, 5\nv_xor_b32 v72, s{sA}, v72")
        self.wfrags(4, 72, 2)
        self.afrag_addr(78, HS); self.pub_addr(79)
        self.end(l)
        A(f"""s_mul_i32 s{sC}, s{sRI}, 10
        s_lshl_b32 s{sA}, s{sX}, 5
        s_add_u32 s{sC}, s{sC}, s{sA}
        s_mul_i32 s{sC}, s{sC}, {GSL}
        v_lshrrev_b32 v1, 4, v0
        v_mul_u32_u24 v3, {GSL}, v1
        v_add_u32 v3, s{sC}, v3
        v_bfe_u32 v2, v0, 3, 1
        v_lshlrev_b32 v2, 6, v2
        v_and_or_b32 v2, v0, 7, v2
        s_lshl_b32 s{sA}, s{sV}, 3
        v_add_u32 v2, s{sA}, v2
        v_lshl_add_u32 v72, v2, 4, v3
        v_lshl_add_u32 v74, v2, 2, v3
        v_mov_b32 v3, {OOB}
        v_cmp_gt_u32 vcc, 32, v0
        v_cndmask_b32 v73, v3, v72, vcc
        v_cndmask_b32 v75, v3, v74, vcc
        v_and_b32 v2, 15, v0
        v_mul_u32_u24 v76, {GSL}, v2
        v_lshl_add_u32 v76, v1, 4, v76
        v_add_u32 v76, s{sC}, v76
        v_cmp_gt_u32 vcc, 10, v2
        v_cndmask_b32 v76, v3, v76, vcc
        s_add_u32 s{sF}, s{sE}, {4*GSL}
        s_add_u32 s{sD}, s{sE}, {8*GSL}
        v_mul_u32_u24 v77, {HS}, v1
        v_and_b32 v2, 7, v0
        v_lshl_add_u32 v77, v2, 1, v77
        s_lshl_b32 s{sA}, s{sV}, 4
        v_add_u32 v77, s{sA}, v77
        v_mov_b32 v36, 0
        v_mov_b32 v37, 0
        v_mov_b32 v38, 0""")
        self.sync(self.o['sync_g'])
        def loads():
            A(f"""buffer_load_dwordx4 v[32:35], v76, {srd(SWS)}, s{sE} offen offset:2560 sc1
            buffer_load_dwordx4 v[16:19], v72, {srd(SWS)}, s{sE} offen sc1
            buffer_load_dwordx4 v[20:23], v72, {srd(SWS)}, s{sF} offen sc1
            buffer_load_dwordx4 v[24:27], v73, {srd(SWS)}, s{sD} offen sc1""")
            l = self.pass0()
            A(f"""buffer_load_dword v36, v74, {srd(SWS)}, s{sE} offen offset:2048 sc1
            buffer_load_dword v37, v74, {srd(SWS)}, s{sF} offen offset:2048 sc1
            buffer_load_dword v38, v75, {srd(SWS)}, s{sD} offen offset:2048 sc1""")
            self.end(l)
        def red():
            s0 = f"""v_add_f32 v28, v36, v37
            v_add_f32 v28, v28, v38
            v_mov_b32 v29, v28
            v_permlane32_swap_b32 v28, v29
            v_add_f32 v28, v28, v29
            v_mov_b32 v29, v28
            v_permlane16_swap_b32 v28, v29
            v_add_f32 v{vC}, v28, v29""".split('\n')
            s1 = self.red16([32, 33]) + self.lnstats(32, 33, 40, 41, 42)
            s2 = [f"v_add_f32 v{16+i}, v{16+i}, v{20+i}" for i in range(4)] + [f"v_add_f32 v{16+i}, v{16+i}, v{24+i}" for i in range(4)] + self.capture(lambda: self.treduce(16, 17, 18, 19))
            l = self.pass0(); le = self.lab("rv")
            self.mix(s1, s2, s0)
            A(f"s_cbranch_execnz {le}")
            self.end(l)
            self.mix(s1, s2)
            self.end(le)
            A(f"""v_add_f32 v43, v34, v35
            v_add_f32 v43, v43, v32
            v_fma_f32 v16, -v40, v{vC}, v16
            v_mul_f32 v16, v16, v41""")
        self.poll(loads, list(range(16, 28)) + list(range(32, 39)), red, (16, 43))
        A(f"""v_cvt_pk_bf16_f32 v16, 0, v16
        v_mul_f32 v17, s{sLOG2E}, v16
        v_exp_f32 v17, -v17
        v_add_f32 v17, 1.0, v17
        v_rcp_f32 v17, v17
        v_mul_f32 v17, v16, v17
        v_cvt_pk_bf16_f32 v17, 0, v17
        v_mul_f32_dpp v17, v16, v17 row_ror:8 {DPP}
        v_cvt_pk_bf16_f32 v17, 0, v17""")
        self.exec_mask(0x00ff00ff00ff00ff)
        A(f"ds_write_b16_d16_hi v77, v17 offset:{L_HA}")
        self.exec_full()
        self.stamp(9)
        A(f"s_mul_i32 s{sE}, s{sP}, {RY[1]-RY[0]}\ns_add_u32 s{sE}, s{sE}, {RY[0]}\ns_waitcnt lgkmcnt(0)")
        self.barrier()
        l = self.role(R_LT4)
        A(f"""ds_read_b128 v[52:55], v78 offset:{L_HA}
        ds_read_b128 v[56:59], v78 offset:{L_HA+64}
        s_waitcnt lgkmcnt(1)
        v_mfma_f32_16x16x32_bf16 v[68:71], v[52:55], v[4:7], 0
        s_waitcnt lgkmcnt(0)
        v_mfma_f32_16x16x32_bf16 v[68:71], v[56:59], v[8:11], v[68:71]""")
        self.exec_mask(0xffff)
        self.stores(f"buffer_store_dwordx4 v[68:71], v79, {srd(SWS)}, s{sE} offen{{f}}", False)
        self.exec_full()
        self.end(l)
        self.stamp(10)
        self.mix(self.red16([34, 35]))
        A(f"""v_fma_f32 v34, -v40, v35, v34
        v_mul_f32 v34, v34, v41
        v_cvt_pk_bf16_f32 v34, 0, v34
        v_mul_f32 v34, s{sLOG2E}, v34
        v_exp_f32 v34, -v34
        v_sub_f32 v{vXN}, v{vXR}, v40
        v_add_f32 v34, 1.0, v34
        v_rcp_f32 v34, v34
        v_cvt_pk_bf16_f32 v{vXN}, 0, v{vXN}
        v_cvt_pk_bf16_f32 v{vSG}, 0, v34
        v_mul_f32 v{vXN}, v{vXN}, v41
        v_cvt_pk_bf16_f32 v{vXN}, 0, v{vXN}""")

    def y_finish(self):
        self.A(f"""v_mul_f32 v49, v49, v{vSG}
        v_cvt_pk_bf16_f32 v49, 0, v49
        v_add_f32 v49, v{vXN}, v49
        v_cvt_pk_bf16_f32 v49, 0, v49
        v_add_f32 v{vXR}, v{vXR}, v49
        v_cvt_pk_bf16_f32 v{vXR}, 0, v{vXR}""")

    def qg_addr(self):
        self.A(f"""s_lshr_b32 s{sA}, s{sT}, 3
        s_mul_i32 s{sA}, s{sA}, 3
        s_and_b32 s{sB}, s{sV}, 3
        s_add_u32 s{sA}, s{sA}, s{sB}
        s_lshr_b32 s{sB}, s{sA}, 2
        s_mul_i32 s{sB}, s{sB}, 10
        s_lshl_b32 s{sC}, s{sX}, 5
        s_add_u32 s{sB}, s{sB}, s{sC}
        s_mul_i32 s{sB}, s{sB}, {QSL}
        s_add_u32 s{sE}, s{sB}, {RQ[1]}
        s_add_u32 s{sF}, s{sE}, {4*QSL}
        s_add_u32 s{sD}, s{sE}, {8*QSL}
        s_and_b32 s{sA}, s{sA}, 3
        s_lshl_b32 s{sA}, s{sA}, 8
        v_lshrrev_b32 v1, 4, v0
        v_and_b32 v2, 15, v0
        v_mul_u32_u24 v66, {QSL}, v1
        v_lshl_add_u32 v66, v2, 4, v66
        v_add_u32 v66, s{sA}, v66
        v_mov_b32 v3, {OOB}
        v_cmp_gt_u32 vcc, 32, v0
        v_cndmask_b32 v67, v3, v66, vcc
        v_lshlrev_b32 v70, 4, v2
        v_lshl_add_u32 v70, v1, 2, v70
        s_and_b32 s{sA}, s{sV}, 3
        s_lshl_b32 s{sA}, s{sA}, 8
        v_add_u32 v70, s{sA}, v70""")
    def cq_gather(self, idle):
        A = self.A
        l = self.role(R_456)
        A(f"s_mov_b32 s{sM}, s{sE}")
        self.qg_addr()
        A("v_add_u32 v66, 4224, v66\nv_add_u32 v67, 4224, v67")
        def loads(): A(f"""buffer_load_dwordx4 v[4:7], v66, {srd(SWS)}, s{sE} offen sc1
        buffer_load_dwordx4 v[8:11], v66, {srd(SWS)}, s{sF} offen sc1
        buffer_load_dwordx4 v[12:15], v67, {srd(SWS)}, s{sD} offen sc1""")
        def red():
            for i in range(4): A(f"v_add_f32 v{4+i}, v{4+i}, v{8+i}")
            for i in range(4): A(f"v_add_f32 v{4+i}, v{4+i}, v{12+i}")
            self.treduce(4, 5, 6, 7)
        self.poll(loads, range(4, 16), red, (4, 4), idle=idle)
        A(f"ds_write_b32 v70, v4 offset:{L_CQ}\ns_mov_b32 s{sE}, s{sM}\ns_waitcnt lgkmcnt(0)")
        self.end(l)

    def q_stage_and_final(self):
        A = self.A
        A(f"s_cmp_eq_u32 s{sP}, 1\ns_cbranch_scc1 L_final")
        self.cq_gather(False)
        A(f"s_lshr_b32 s{sA}, s{sV}, 1\ns_lshl_b32 s{sA}, s{sA}, 13\ns_add_u32 s{sA}, s{sA}, {L_WQ}")
        self.tr_addr(46, sA)
        A(f"s_and_b32 s{sA}, s{sV}, 1\ns_lshl_b32 s{sA}, s{sA}, 6\nv_xor_b32 v46, s{sA}, v46\nv_xor_b32 v47, 32, v46")
        self.wfrags(16, 46, 2); self.wfrags(24, 47, 2)
        self.xa_addr()
        A(f"""v_and_b32 v1, 15, v0
        v_lshlrev_b32 v72, 10, v1
        v_lshrrev_b32 v1, 4, v0
        v_lshl_add_u32 v72, v1, 4, v72
        s_mul_i32 s{sB}, s{sSIG}, {QSL}
        s_lshl_b32 s{sA}, s{sV}, 7
        s_add_u32 s{sA}, s{sA}, s{sB}
        v_add_u32 v72, s{sA}, v72
        v_lshl_add_u32 v73, v1, 4, s{sB}
        v_add_u32 v73, 4096, v73""")
        self.x_gather_pre()
        self.sync(self.o['sync_y'])
        self.x_gather()
        self.y_finish()
        A(f"ds_write_b16_d16_hi v77, v{vXR} offset:{L_XA}")
        self.stamp(11)
        A(f"s_mov_b32 s{sE}, {RQ[1]}\ns_waitcnt lgkmcnt(0)")
        self.barrier()
        self.xfrags()
        fin = self.gram(73, sE, 0)
        A(f"""s_waitcnt lgkmcnt(1)
        v_mfma_f32_16x16x32_bf16 v[52:55], v[16:19], v[4:7], 0
        v_mfma_f32_16x16x32_bf16 v[56:59], v[24:27], v[4:7], 0
        s_waitcnt lgkmcnt(0)
        v_mfma_f32_16x16x32_bf16 v[52:55], v[20:23], v[8:11], v[52:55]
        v_mfma_f32_16x16x32_bf16 v[56:59], v[28:31], v[8:11], v[56:59]""")
        fin()
        self.exec_mask(0x000f000f000f000f)
        self.stores(f"buffer_store_dwordx4 v[52:55], v72, {srd(SWS)}, s{sE} offen{{f}}\nbuffer_store_dwordx4 v[56:59], v72, {srd(SWS)}, s{sE} offen offset:64{{f}}", True)
        self.exec_full()
        A("L_qwait:")
        self.attn_pre()
        l = self.role(R_456)
        self.qg_addr()
        A(f"""s_bfe_u32 s{sB}, s{sT}, 0x20001          ; b
        s_lshl_b32 s{sC}, s{sB}, 10
        v_add_u32 v66, s{sC}, v66
        v_add_u32 v67, s{sC}, v67
        v_mul_u32_u24 v68, {QSL}, v2
        s_lshl_b32 s{sB}, s{sB}, 4
        s_add_u32 s{sB}, s{sB}, 4096
        v_add_u32 v68, s{sB}, v68
        v_cmp_gt_u32 vcc, 10, v2
        v_cndmask_b32 v68, v3, v68, vcc
        ds_read_b32 v20, v70 offset:{L_CQ}""")
        self.q_lds_addr(69)
        A(f"s_lshr_b32 s{sA}, s{sA}, 1\nv_add_u32 v69, s{sA}, v69\ns_waitcnt lgkmcnt(0)")
        self.end(l)
        self.sync(self.o['sync_q'])
        l = self.role(R_456)
        def loads(): A(f"""buffer_load_dwordx2 v[16:17], v68, {srd(SWS)}, s{sE} offen sc1
        buffer_load_dwordx4 v[4:7], v66, {srd(SWS)}, s{sE} offen sc1
        buffer_load_dwordx4 v[8:11], v66, {srd(SWS)}, s{sF} offen sc1
        buffer_load_dwordx4 v[12:15], v67, {srd(SWS)}, s{sD} offen sc1""")
        def red():
            s1 = self.red16([16, 17]) + self.lnstats(16, 17, 18, 19, 21)
            s2 = [f"v_add_f32 v{4+i}, v{4+i}, v{8+i}" for i in range(4)] + [f"v_add_f32 v{4+i}, v{4+i}, v{12+i}" for i in range(4)] + self.capture(lambda: self.treduce(4, 5, 6, 7))
            self.mix(s1, s2)
            A("v_fma_f32 v4, -v18, v20, v4\nv_mul_f32 v4, v4, v19\nv_cvt_pk_bf16_f32 v5, 0, v4")
        self.poll(loads, range(4, 18), red, (4, 16), idle=True)
        A(f"ds_write_b16_d16_hi v69, v5 offset:{L_QL}\ns_waitcnt lgkmcnt(0)")
        self.end(l)
        A(f"s_mov_b32 s{sP}, 1")
        if self.o['dry']: A(f"s_cmp_eq_u32 s{sDRY}, 1\ns_cbranch_scc1 L_final_body")
        self.barrier()
        A("s_branch L_attn")
        A(f"L_idle:\ns_cmp_eq_u32 s{sP}, 0\ns_cbranch_scc0 L_done")
        self.cq_gather(True)
        A("s_branch L_qwait")
        A(f"""L_final:
        s_and_b32 s{sA}, s{sT}, 7
        s_cmp_eq_u32 s{sA}, s{sX}
        s_cbranch_scc0 L_done
        s_cmp_lt_u32 s{sT}, 10
        s_cbranch_scc0 L_done
        L_final_body:""")
        self.x_gather_pre(); self.xcol_addr(77)
        self.sync(self.o['sync_f'])
        self.x_gather()
        self.y_finish()
        self.exec_mask(0x00ff00ff00ff00ff)
        self.mem(f"buffer_store_short_d16_hi v{vXR}, v77, {srd(SOUT)}, 0 offen")
        self.exec_full()
        if self.o['dry']: A(f"s_cmp_eq_u32 s{sDRY}, 1\ns_cbranch_scc1 L_dry_ret")
        A("L_done:")
        if int(self.o['pad']):
            A(f"""L_pad:
            s_memrealtime s[90:91]
            s_waitcnt lgkmcnt(0)
            s_sub_u32 s90, s90, s96
            s_cmp_lt_u32 s90, {int(self.o['pad'])*100}
            s_cbranch_scc1 L_pad""")
        if self.prof: self.stamp(11)
        A("L_end:")
        if self.prof:
            A(f"""s_mov_b64 exec, -1
            s_lshl_b32 s{sA}, s2, 3
            s_add_u32 s{sA}, s{sA}, s{sV}
            s_lshl_b32 s{sA}, s{sA}, 7
            s_add_u32 s{sA}, s{sA}, {STAMP}
            v_mov_b32 v1, 0""")
            for i in range(24): A(f"v_mov_b32 v{4+i}, s{sST+i}")
            A(f"v_mov_b32 v28, s{sFAST}\nv_mov_b32 v29, s{sTO}\nv_mov_b32 v30, 0\nv_mov_b32 v31, 0\ns_mov_b64 exec, 1")
            for i in range(7): A(f"buffer_store_dwordx4 {vr(4+4*i)}, v1, {srd(SWS)}, s{sA} offen offset:{16*i}")
        A("L_exit:\ns_endpgm")

    def build(self):
        self.prologue(); self.startup(); self.attention(); self.wo_stage(); self.gu_stage(); self.down_stage(); self.q_stage_and_final()
        i = 0
        while i < len(self.tail): self.A(self.tail[i]); i += 1
        body, nn = resolve(self.L)
        hdr = open('interleave_layers__sliding_block_cached__moe_arch_mod__decode.s.ref').read().split('\n')
        hl = [l for l in hdr if l.startswith(';') and '@launch' not in l]
        hl = hl[:hl.index([l for l in hl if 'Override launch' in l][0])]
        out = hl + [f"; @launch grid=(256,1,1) block=(512,1,1) lds={LDS_SIZE}",
                    '.amdgcn_target "amdgcn-amd-amdhsa--gfx950"', ".text", f".globl {NAME}", ".p2align 8", f".type {NAME},@function", f"{NAME}:"]
        out += [("" if l.endswith(':') else "    ") + l for l in body]
        out += ['.section .rodata,"a"', ".p2align 6", f".amdhsa_kernel {NAME}",
                "  .amdhsa_next_free_vgpr 256", "  .amdhsa_next_free_sgpr 102", "  .amdhsa_accum_offset 160",
                "  .amdhsa_group_segment_fixed_size 0", "  .amdhsa_kernarg_size 104", "  .amdhsa_user_sgpr_count 2",
                "  .amdhsa_user_sgpr_kernarg_segment_ptr 1", "  .amdhsa_system_sgpr_workgroup_id_x 1",
                "  .amdhsa_float_denorm_mode_32 3", ".end_amdhsa_kernel"]
        return "\n".join(out) + "\n", nn

if __name__ == "__main__":
    path = sys.argv[1]
    opts = {}; prof = False
    for a in sys.argv[2:]:
        if a == 'prof': prof = True
        else:
            k, v = a.split('=')
            opts[k] = {'True': True, 'False': False}.get(v, v)
    s, nn = G(prof, opts).build()
    open(path, 'w').write(s)
    print("wrote", path, len(s.split('\n')), "lines, nops inserted:", nn)
```

```python
import sys
from asmlib import resolve

NAME = "interleave_layers__sliding_block_cached__moe_arch_mod__decode_kernel"

OSL, GSL, QSL, Q0SL, XSZ = 896, 2688, 5248, 8192, 245760
RO = [0, 256 * OSL]
RX = [2 * 256 * OSL, 2 * 256 * OSL + XSZ]
RY = [RX[1] + XSZ, RX[1] + 2 * XSZ]
RG = [RY[1] + XSZ, RY[1] + XSZ + 256 * GSL]
RQ = [RG[1] + 256 * GSL, RG[1] + 256 * GSL + 256 * Q0SL]
RF = RQ[1] + 256 * QSL
RE = RF + 32768
WS_END = RE + 2048
STAMP = WS_END
WS_SIZE = WS_END + 256 * 8 * 128
OOB = 0x7ff00000
L_OC = 0
L_ML = L_OC + 12288
L_XA = L_ML + 64; XS = 144
L_HA = L_XA + 6 * XS; HS = 192
L_OA = L_HA + 4 * HS; OS = 576
L_QL = L_OA + 4 * OS
L_FL = L_QL + 400
L_CQ = L_FL + 32
L_CS = L_CQ + 768
L_X0 = L_CS + 1024
L_WD = (L_X0 + 5120 + 127) // 128 * 128
L_WG = L_WD + 8192
L_WU = L_WG + 8192
L_WO = L_WU + 8192
L_WQ = L_WO + 32768
L_VP = L_WQ + 32768
LDS_SIZE = L_VP + 8 * 6144
assert LDS_SIZE <= 163840
sW, sV, sX, sT, sP, sDRY = 2, 3, 4, 5, 6, 7
SK, SVV, SWS, SWQ, SWO, SWG, SWU, SWD, SX0, SWR, SOUT = range(8, 52, 4)
sAI, sRI, sSIG, sSLOT = 52, 53, 54, 55
sFAST, sROLE, sTO, sEPS = 56, 57, 58, 59
sFULL = 60
sA, sB, sC, sD, sE, sF = 62, 63, 88, 89, 90, 91
sM = 92
sLOG2E, sSCALE, sINVN = 93, 94, 95
sG, sXCC, sSAVE, sTAG = 98, 99, 100, 101
sST = 64
R_LT4, R_GE4, R_456, R_7, R_6, R_GR = range(6)
sLO, sHI = 44, 45
sK1, sK2, sKG, sKQ = 40, 41, 42, 43
vXR, vXN, vSG, vC = 80, 81, 82, 83
VBASE = 88
ODD = 0xAAAAAAAAAAAAAAAA

def srd(b): return f"s[{b}:{b+3}]"
def vr(a, n=4): return f"v[{a}:{a+n-1}]" if n > 1 else f"v{a}"
def ar(a, n=4): return f"a[{a}:{a+n-1}]"
DPP = "row_mask:0xf bank_mask:0xf"

class G:
    def __init__(self, prof=False, opts=None):
        self.L = []; self.tail = []; self.stubs = []; self.n = 0; self.prof = prof
        self.o = dict(dry=True, sync_o='sleep0', sync_x='acklo4', sync_g='sleep0', sync_y='acklo4', sync_q='sleep0', sync_f='acklo', fast=True,
                      clear='sc1', wflag='plain', bsleep=8, pad=0, probe=-1, probep=0, kvflag='nt', defer=True, cwo='10,10,10,2', cgud='4,2,2,0', csplit=True, prewarm=True, two='oqg', asl=0, pwo=True, t2=False, xbf=False, gbf=False, qbf=False, quick=False, gramw=3, fine='', finep=-1, finei='s_memtime', ldi='sc1', ldx='sc1', stx='sc1', sti='plain', wb=0, q0st='sc1', q0ld='sc1')
        self.o.update(opts or {})
    def A(self, s):
        for l in s.split('\n'):
            l = l.strip()
            if l: self.L.append(l)
    def lab(self, p):
        self.n += 1; return f"L_{p}_{self.n}"
    def exec_mask(self, m):
        self.A(f"s_and_b32 exec_lo, s{sFULL}, 0x{m & 0xffffffff:x}\ns_and_b32 exec_hi, s{sFULL}, 0x{m >> 32:x}")
    def exec_full(self): self.A(f"s_mov_b64 exec, s[{sFULL}:{sFULL+1}]")
    def barrier(self, tag='z'):
        self.fs(tag + 'a')
        l = self.lab("nb"); self.A(f"s_cbranch_execz {l}\ns_barrier\n{l}:")
        self.fs(tag + 'b')
    def role(self, bit):
        l = self.lab("role"); self.A(f"s_bitcmp1_b32 s{sROLE}, {bit}\ns_cbranch_scc0 {l}"); return l
    def pass0(self):
        l = self.lab("p0"); self.A(f"s_cmp_eq_u32 s{sP}, 0\ns_cbranch_scc0 {l}"); return l
    def end(self, l): self.A(f"{l}:")
    def mem(self, lines):
        l = self.lab("nm"); self.A(f"s_cbranch_execz {l}"); self.A(lines); self.A(f"{l}:")
    def capture(self, fn):
        save = self.L; self.L = []; fn(); out = self.L; self.L = save; return out
    def stores(self, lines, intra, tag='z'):
        self.fs(tag + 's')
        if intra and self.o['fast']:
            l1 = self.lab("st"); l2 = self.lab("st")
            self.A(f"s_cbranch_execz {l2}\ns_cmp_eq_u32 s{sFAST}, 0\ns_cbranch_scc1 {l1}")
            self.A(lines.format(f=' ' + self.o['sti'].replace('plain', '').replace('_', ' '))); self.A(f"{l2}:")
            self.tail.append(f"{l1}:\n" + lines.format(f=" sc1") + f"\ns_branch {l2}")
        else:
            self.mem(lines.format(f=' ' + self.o['stx'].replace('_', ' ')))
    def poll(self, loads0, regs, reduce, chk, idle=False, tag='z', shadow=None, wait0=0, pre=None):
        A = self.A
        fl = ' ' + self.o['ldx' if tag in 'xyf' else 'ldi'].replace('_', ' ')
        def loads():
            for x in self.capture(loads0): A(x[:-4] + fl if x.endswith(' sc1') else x)
        lw = self.lab("pw"); lr = self.lab("retry"); ls = self.lab("slow"); lo = self.lab("ok"); l2 = self.lab("slow")
        self.fs(tag + '0')
        if pre and tag not in self.o['two']:
            l0, r0, p0 = loads, reduce, pre
            loads = lambda: (p0[0](), l0()); reduce = lambda: r0(p0[2]); pre = None
        elif pre:
            la = self.lab("pa"); lb = self.lab("pb"); l = self.lab("nm")
            A(f"s_cbranch_execz {l}"); pre[0](); A(f"{l}:\ns_movk_i32 s{sG}, 0x100")
            if shadow: shadow()
            shadow = lambda: self.mix(pre[2])
            A(f"s_waitcnt vmcnt(0)\nv_cmp_u_f32 vcc, v{pre[1][0]}, v{pre[1][1]}\ns_cbranch_vccz {lb}\n{la}:")
            if int(self.o['asl']): A(f"s_sleep {self.o['asl']}")
            pre[0]()
            A(f"s_sub_u32 s{sG}, s{sG}, 1\ns_waitcnt vmcnt(0)\ns_cbranch_scc1 {lb}\nv_cmp_u_f32 vcc, v{pre[1][0]}, v{pre[1][1]}\ns_cbranch_vccnz {la}\n{lb}:")
            self.fs(tag + '3')
            r0 = reduce; reduce = lambda: r0([])
        l = self.lab("nm"); A(f"s_cbranch_execz {l}"); loads(); A(f"{l}:\ns_movk_i32 s{sG}, 0x100")
        if shadow: shadow()
        if wait0:
            l = self.lab("w0"); A(f"s_waitcnt vmcnt({wait0})\ns_branch {l}\n{lw}:\ns_waitcnt vmcnt(0)\n{l}:")
        else: A(f"{lw}:\ns_waitcnt vmcnt(0)")
        self.fs(tag + '1')
        reduce()
        A(f"v_cmp_u_f32 vcc, v{chk[0]}, v{chk[1]}\ns_cbranch_vccnz {lr}\n{lo}:")
        self.fs(tag + '2')
        if self.o['fine'].split(',')[-1] == tag + 'n': A(f"s_sub_u32 s86, 0x101, s{sG}")
        def stub():
            A(f"{lr}:")
            if idle:
                l = self.lab("idl"); A(f"s_cmp_lt_u32 s{sT}, 30\ns_cbranch_scc1 {l}\ns_sleep 4\n{l}:")
            A(f"s_sub_u32 s{sG}, s{sG}, 1\ns_cbranch_scc1 {ls}")
            if self.prof: A(f"s_sub_u32 s{sTO}, s{sTO}, 1")
            l = self.lab("nm"); A(f"s_cbranch_execz {l}"); loads(); A(f"s_branch {lw}\n{l}:")
        self.stubs.append("\n".join(self.capture(stub)))
        def slow():
            A(f"{l2}:\ns_sub_u32 s{sTO}, s{sTO}, 1\ns_cbranch_scc1 L_end\n{ls}:")
            if pre: pre[0]()
            loads(); A("s_waitcnt vmcnt(0)")
            r = list(regs)
            A(f"v_max_u32 v1, v{r[0]}, v{r[1]}"); r = r[2:]
            while r:
                if len(r) >= 2: A(f"v_max3_u32 v1, v1, v{r[0]}, v{r[1]}"); r = r[2:]
                else: A(f"v_max_u32 v1, v1, v{r[0]}"); r = []
            A(f"v_cmp_eq_u32 vcc, -1, v1\ns_cbranch_vccnz {l2}")
            if pre: self.mix(pre[2])
            reduce(); A(f"s_branch {lo}")
        self.tail.append("\n".join(self.capture(slow)))
    def stamp(self, i, both=True):
        if int(self.o['probe']) == i:
            l = self.lab("probe")
            self.A(f"s_cmp_eq_u32 s{sP}, {self.o['probep']}\ns_cbranch_scc0 {l}\ns_cbranch_execz {l}\ns_memrealtime s[96:97]\ns_waitcnt lgkmcnt(0)\n{l}:")
        if not self.prof: return
        self.A("s_memrealtime s[96:97]\ns_waitcnt lgkmcnt(0)")
        if both:
            self.A(f"s_cmp_eq_u32 s{sP}, 0\ns_cselect_b32 s{sST+i}, s96, s{sST+i}\ns_cselect_b32 s{sST+12+i}, s{sST+12+i}, s96")
        else:
            self.A(f"s_mov_b32 s{sST+i}, s96")
    def fs(self, name):
        names = self.o['fine'].split(',') if self.o['fine'] else []
        if name in names:
            i = names.index(name)
            if int(self.o['finep']) >= 0:
                l = self.lab("fs"); self.A(f"s_cmp_eq_u32 s{sP}, {self.o['finep']}\ns_cbranch_scc0 {l}\n{self.o['finei']} s[{64+2*i}:{65+2*i}]\n{l}:")
            else: self.A(f"{self.o['finei']} s[{64+2*i}:{65+2*i}]")
    def sync(self, kind):
        if kind == 'ack': self.A("s_waitcnt vmcnt(0)"); self.barrier()
        elif kind.startswith('acklo'):
            l = self.role(R_LT4); self.A("s_waitcnt vmcnt(0)"); self.end(l); self.barrier()
            if kind[5:] and int(kind[5:]): self.A(f"s_sleep {int(kind[5:])}")
        elif kind.startswith('sleep'):
            if int(kind[5:]): self.A(f"s_sleep {int(kind[5:])}")
        elif kind.startswith('acks'): self.A("s_waitcnt vmcnt(0)"); self.barrier(); self.A(f"s_sleep {int(kind[4:])}")
    def treduce(self, r0, r1, r2, r3):
        self.A(f"""v_permlane32_swap_b32 v{r0}, v{r2}
        v_permlane32_swap_b32 v{r1}, v{r3}
        v_add_f32 v{r0}, v{r0}, v{r2}
        v_add_f32 v{r1}, v{r1}, v{r3}
        v_permlane16_swap_b32 v{r0}, v{r1}
        v_add_f32 v{r0}, v{r0}, v{r1}""")
    def red16(self, regs):
        return [f"v_add_f32_dpp v{r}, v{r}, v{r} {perm} {DPP}" for perm in ("quad_perm:[1,0,3,2]", "quad_perm:[2,3,0,1]", "row_half_mirror", "row_mirror") for r in regs]
    def lnstats(self, sq, sm, m, rs, t):
        return f"""v_mul_f32 v{sm}, s{sINVN}, v{sm}
        v_mul_f32 v{sq}, s{sINVN}, v{sq}
        v_fma_f32 v{t}, -v{sm}, v{sm}, v{sq}
        v_cvt_pk_bf16_f32 v{m}, 0, v{sm}
        v_max_f32 v{t}, 0, v{t}
        v_cvt_pk_bf16_f32 v{t}, 0, v{t}
        v_add_f32 v{t}, s{sEPS}, v{t}
        v_cvt_pk_bf16_f32 v{t}, 0, v{t}
        v_sqrt_f32 v{t}, v{t}
        v_cvt_pk_bf16_f32 v{t}, 0, v{t}
        v_rcp_f32 v{rs}, v{t}""".split('\n')
    def mix(self, *streams):
        streams = [list(s) for s in streams]
        while any(streams):
            for s in streams:
                if s: self.A(s.pop(0))
    def tr_addr(self, d, sbase):
        self.A(f"""v_lshrrev_b32 v1, 4, v0
        v_bfe_u32 v2, v0, 2, 2
        v_lshl_add_u32 v{d}, v1, 3, v2
        v_lshlrev_b32 v{d}, 7, v{d}
        v_and_b32 v2, 3, v0
        v_lshl_add_u32 v{d}, v2, 3, v{d}
        v_bfe_u32 v2, v0, 3, 2
        v_lshl_add_u32 v{d}, v2, 5, v{d}
        v_add_u32 v{d}, s{sbase}, v{d}""")
    def wfrags(self, dst, addr, steps, off=0):
        for s in range(steps):
            self.A(f"ds_read_b64_tr_b16 {vr(dst+4*s,2)}, v{addr} offset:{off+s*4096}\nds_read_b64_tr_b16 {vr(dst+4*s+2,2)}, v{addr} offset:{off+s*4096+512}")
    def dma_addr(self, d, rstride):
        self.A(f"""v_lshrrev_b32 v1, 3, v0
        v_mul_u32_u24 v{d}, {rstride}, v1
        v_bfe_u32 v1, v0, 4, 1
        v_bfe_u32 v2, v0, 1, 2
        v_xor_b32 v1, v1, v2
        v_lshl_add_u32 v{d}, v1, 5, v{d}
        v_and_b32 v1, 1, v0
        v_lshl_add_u32 v{d}, v1, 4, v{d}
        v_xor_b32 v{d+1}, 64, v{d}""")
    def dma(self, srdb, vaddr, n, rstride, lds0, ssrc, slds):
        wf = self.o['wflag'].replace('plain', '')
        for i in range(n):
            self.A(f"s_add_u32 m0, s{slds}, {lds0 + i*1024}\ns_add_u32 s{sA}, s{ssrc}, {i*8*rstride}\nbuffer_load_dwordx4 v{vaddr + (i&1)}, {srd(srdb)}, s{sA} offen {wf} lds")

    def mk(self, b, p, off, size):
        A = self.A
        if off is None: A(f"s_mov_b32 s{b}, s{p}\ns_mov_b32 s{b+1}, s{p+1}\ns_mov_b32 s{b+2}, {size}")
        else:
            A(f"s_add_u32 s{b}, s{p}, s{off}\ns_addc_u32 s{b+1}, s{p+1}, 0")
            if isinstance(size, int): A(f"s_mov_b32 s{b+2}, {size}")
            else: A(f"s_sub_u32 s{b+2}, {size[0]}, s{off}")
        A(f"s_mov_b32 s{b+3}, 0x20000")
    def prologue(self):
        A = self.A
        A("s_cmp_ge_u32 s2, 256\ns_cbranch_scc1 L_exit")
        if int(self.o['pad']) or self.prof or self.o['t2']: A("s_memrealtime s[96:97]")
        A(f"""s_load_dwordx16 s[64:79], s[0:1], 0
        s_load_dwordx8 s[80:87], s[0:1], 64
        s_load_dwordx2 s[88:89], s[0:1], 96
        v_lshrrev_b32 v1, 6, v0
        v_and_b32 v0, 63, v0
        v_readfirstlane_b32 s{sV}, v1
        v_mov_b32 v4, 0
        v_mov_b32 v5, 0
        v_mov_b32 v6, 0
        v_mov_b32 v7, 0
        v_lshlrev_b32 v1, 4, v0
        s_mov_b64 exec, 7
        ds_write_b128 v1, v[4:7] offset:{L_QL+384}
        s_mov_b64 exec, -1
        s_and_b32 s{sX}, s2, 7
        s_lshr_b32 s{sT}, s2, 3
        s_lshr_b32 s{sA}, s{sT}, 3
        s_lshl_b32 s{sB}, s{sX}, 2
        s_add_u32 s92, s{sA}, s{sB}            ; head
        s_bfe_u32 s{sA}, s{sT}, 0x20001        ; batch
        s_lshl_b32 s{sA}, s{sA}, 5
        s_add_u32 s{sA}, s{sA}, s92
        s_lshl_b32 s{sA}, s{sA}, 12
        s_and_b32 s{sB}, s{sT}, 1
        s_lshl_b32 s{sB}, s{sB}, 9
        s_add_u32 s{sA}, s{sA}, s{sB}
        s_lshl_b32 s{sB}, s{sV}, 6
        s_add_u32 s{sA}, s{sA}, s{sB}
        s_add_u32 s{sA}, s{sA}, 3072
        s_mul_i32 s90, s{sA}, 384
        s_mov_b32 s{sP}, 0
        s_mov_b32 s{sDRY}, 0
        s_mov_b64 s[{sFULL}:{sFULL+1}], -1
        s_mov_b32 s{sTO}, 0x100000
        s_mov_b32 s{sFAST}, 0
        s_mov_b32 s{sLOG2E}, 0x3fb8aa3b
        s_mov_b32 s{sSCALE}, 0x3d93cd3a
        s_mov_b32 s{sINVN}, 0x3acccccd
        s_mov_b32 s{sEPS}, 0x3727c5ac
        s_lshl_b32 s{sSIG}, s{sX}, 5
        s_add_u32 s{sSIG}, s{sSIG}, s{sT}
        s_mul_i32 s{sSLOT}, s{sX}, 30
        s_add_u32 s{sSLOT}, s{sSLOT}, s{sT}
        s_mul_i32 s{sRI}, s{sT}, 26
        s_lshr_b32 s{sRI}, s{sRI}, 8
        s_mul_i32 s{sA}, s{sRI}, 10
        s_sub_u32 s{sAI}, s{sT}, s{sA}
        s_min_u32 s{sRI}, s{sRI}, 2""")
        tab = 0
        for v in range(8):
            tab |= ((v < 4) << R_LT4 | (v >= 4) << R_GE4 | (4 <= v <= 6) << R_456 | (v == 7) << R_7 | (v == 6) << R_6 | (v == int(self.o['gramw'])) << R_GR) << (8 * v)
        A(f"""s_mov_b32 s{sA}, 0x{tab & 0xffffffff:x}
        s_mov_b32 s{sB}, 0x{tab >> 32:x}
        s_lshl_b32 s91, s{sV}, 3
        s_lshr_b64 s[{sA}:{sB}], s[{sA}:{sB}], s91
        s_and_b32 s{sROLE}, s{sA}, 0xff""")
        self.kv_addr()
        A("s_waitcnt lgkmcnt(0)\ns_barrier")
        A(f"s_add_u32 s{sA}, s88, {RE}\ns_addc_u32 s{sB}, s89, 0\ns_load_dword s{sTAG}, s[{sA}:{sB}], 0")
        self.mk(SK, 66, 90, 24576); self.mk(SVV, 68, 90, 24576)
    def other_srds(self):
        A = self.A; mk = self.mk
        mk(SWS, 88, None, WS_SIZE)
        A(f"""s_mul_i32 s{sA}, s{sAI}, {64*12288}
        s_mul_i32 s{sB}, s{sX}, 3
        s_add_u32 s91, s{sB}, s{sRI}            ; P = 3x + r
        s_lshl_b32 s{sB}, s91, 9
        s_add_u32 s{sA}, s{sA}, s{sB}""")
        mk(SWQ, 70, sA, (640 * 6144 * 2,))
        A(f"s_mul_i32 s{sA}, s91, {256*1280}\ns_lshl_b32 s90, s{sAI}, 7\ns_add_u32 s{sA}, s{sA}, s90")
        mk(SWO, 72, sA, (6144 * 640 * 2,))
        A(f"s_mul_i32 s{sA}, s91, {64*1280}\ns_add_u32 s{sA}, s{sA}, s90")
        mk(SWD, 82, sA, (1536 * 640 * 2,))
        A(f"s_mul_i32 s{sA}, s{sAI}, {64*3072}\ns_lshl_b32 s{sB}, s91, 7\ns_add_u32 s{sA}, s{sA}, s{sB}")
        mk(SWG, 78, sA, (640 * 1536 * 2,)); mk(SWU, 80, sA, (640 * 1536 * 2,))
        mk(SX0, 64, None, 5120); mk(SWR, 76, 90, (1280,)); mk(SOUT, 84, None, 5120)
        A(f"s_waitcnt lgkmcnt(0)\ns_add_u32 s{sTAG}, s{sTAG}, 1")
        if self.o['fine']:
            for i in range(24): A(f"s_mov_b32 s{sST+i}, 0")
        if self.prof:
            A(f"s_mov_b32 s{sST}, s96")
            for i in range(1, 24): A(f"s_mov_b32 s{sST+i}, 0")

    def kv_addr(self):
        self.A(f"""v_bfe_u32 v84, v0, 1, 3
        v_mul_u32_u24 v84, 384, v84
        v_lshrrev_b32 v3, 4, v0
        v_lshl_add_u32 v84, v3, 5, v84
        v_and_b32 v3, 1, v0
        v_lshl_add_u32 v84, v3, 4, v84
        v_lshrrev_b32 v85, 5, v0
        v_lshlrev_b32 v85, 3, v85
        v_bfe_u32 v3, v0, 3, 2
        v_add_u32 v85, v85, v3
        v_mul_u32_u24 v85, 384, v85
        v_and_b32 v3, 7, v0
        v_lshl_add_u32 v85, v3, 4, v85""")
    def k_loads(self):
        A = self.A; KF = self.o['kvflag'].replace('plain', '').replace('_', ' ')
        for g in range(8):
            A(f"s_mov_b32 s{sA}, {g*3072}")
            b = 12 * (g & ~1)
            for s, r in enumerate((b + 8 * (g & 1), b + 8 * (g & 1) + 4, b + 16 + 4 * (g & 1))):
                A(f"buffer_load_dwordx4 {ar(r)}, v84, {srd(SK)}, s{sA} offen offset:{s*128} {KF}")
    def v_loads(self):
        A = self.A; KF = self.o['kvflag'].replace('plain', '').replace('_', ' ')
        A(f"s_mul_i32 s{sB}, s{sV}, 6144")
        for S in range(4):
            for f in range(2):
                row = 32 * (S >> 1) + 16 * f + 4 * (S & 1)
                for s in range(3):
                    if S == 0:
                        A(f"s_add_u32 m0, s{sB}, {L_VP + (s*2+f)*1024}\ns_mov_b32 s{sA}, {row*384+s*128}\nbuffer_load_dwordx4 v85, {srd(SVV)}, s{sA} offen {KF} lds")
                    else:
                        if s == 0: A(f"s_mov_b32 s{sA}, {row*384}")
                        A(f"buffer_load_dwordx4 {vr(VBASE+(S-1)*24+s*8+4*f)}, v85, {srd(SVV)}, s{sA} offen offset:{s*128} {KF}")
    def xcol_addr(self, d):
        self.A(f"""v_lshrrev_b32 v1, 4, v0
        v_mul_u32_u24 v{d}, 1280, v1
        v_and_b32 v2, 7, v0
        v_lshl_add_u32 v{d}, v2, 1, v{d}
        s_lshl_b32 s{sA}, s{sAI}, 7
        s_lshl_b32 s{sB}, s{sV}, 4
        s_add_u32 s{sA}, s{sA}, s{sB}
        v_add_u32 v{d}, s{sA}, v{d}""")
    def xres_read(self):
        self.xcol_addr(3)
        self.A(f"v_mov_b32 v{vXR}, 0\nds_read_u16_d16_hi v{vXR}, v3 offset:{L_X0}")
    def lds_spin(self, off, val):
        lw = self.lab("sp"); lr = self.lab("spr")
        self.A(f"""v_mov_b32 v5, {L_FL}
        {lw}:
        ds_read_b32 v4, v5 offset:{off}
        s_waitcnt lgkmcnt(0)
        v_cmp_gt_u32 vcc, {val}, v4
        s_cbranch_vccnz {lr}""")
        self.tail.append(f"{lr}:\ns_sleep 2\ns_sub_u32 s{sTO}, s{sTO}, 1\ns_cbranch_scc1 L_end\ns_branch {lw}")
    def lds_inc(self, off):
        self.A(f"v_mov_b32 v4, {L_FL}\nv_mov_b32 v5, 1\ns_mov_b64 exec, 1\nds_add_u32 v4, v5 offset:{off}\ns_mov_b64 exec, -1")
    def dma_dist(self, cnts, mats):
        A = self.A
        cnts = [int(c) for c in cnts.split(',')]
        pre = [sum(cnts[:i]) for i in range(4)]
        A(f"""s_lshl_b32 s{sA}, s{sV}, 3
        s_mov_b32 s{sB}, 0x{sum(c << (8*i) for i, c in enumerate(cnts)):x}
        s_lshr_b32 s{sD}, s{sB}, s{sA}
        s_and_b32 s{sD}, s{sD}, 0xff
        s_mov_b32 s{sB}, 0x{sum(c << (8*i) for i, c in enumerate(pre)):x}
        s_lshr_b32 s{sF}, s{sB}, s{sA}
        s_and_b32 s{sF}, s{sF}, 0xff
        s_lshl_b32 s{sB}, s{sF}, 10""")
        le = self.lab("dd")
        for i in range(0, max(cnts), 2):
            A(f"s_cmp_gt_u32 s{sD}, {i}\ns_cbranch_scc0 {le}")
            for (sr, va, rs, l0) in mats:
                A(f"s_mul_i32 s{sC}, s{sF}, {8*rs}\ns_add_u32 s{sC}, s{sC}, {i*8*rs}")
                self.dma(sr, va, 2, rs, l0 + i * 1024, sC, sB)
        self.end(le)
    def w_dma_gud(self, u):
        A = self.A
        self.dma_addr(6, 3072); self.dma_addr(8, 1280)
        A(f"s_mul_i32 s{sC}, s{u}, {16*3072}\ns_lshl_b32 s{sB}, s{u}, 11")
        self.dma(SWG, 6, 2, 3072, L_WG, sC, sB); self.dma(SWU, 6, 2, 3072, L_WU, sC, sB)
        A(f"s_mul_i32 s{sC}, s{u}, {16*1280}")
        self.dma(SWD, 8, 2, 1280, L_WD, sC, sB)

    def attn_pre(self):
        A = self.A
        A(f"""v_lshrrev_b32 v1, 4, v0
        v_and_b32 v2, 3, v0
        v_lshlrev_b32 v2, 4, v2
        v_lshl_add_u32 v76, v1, 6, v2            ; base1
        v_and_b32 v3, 0x40, v76
        v_add3_u32 v77, v3, v2, 64
        v_add_u32 v77, 192, v77                  ; base2
        v_bfe_u32 v2, v0, 2, 2
        v_mov_b32 v3, 384""")
        for k in range(4): A(f"v_cmp_eq_u32 vcc, {k}, v2\nv_cndmask_b32 v{72+k}, v3, v76, vcc")
        A(f"""v_lshrrev_b32 v1, 5, v0
        v_cmp_eq_u32 vcc, v1, v2
        v_cndmask_b32 v76, v3, v77, vcc
        v_add_u32 v1, 2, v1
        v_cmp_eq_u32 vcc, v1, v2
        v_cndmask_b32 v77, v3, v77, vcc
        v_and_b32 v1, 1, v0
        v_mul_u32_u24 v78, 0xaaaa, v1
        v_add_u32 v78, 0x4444, v78
        v_and_b32 v1, 3, v0
        v_xor_b32 v2, 1, v1
        v_lshl_add_u32 v79, v2, 2, v1
        v_mul_u32_u24 v79, 0x1111, v79
        v_bfe_u32 v1, v0, 2, 1
        v_mul_u32_u24 v85, 0xffff, v1
        v_sub_u32 v84, 0xffff, v85
        s_mul_i32 s{sA}, s{sV}, 6144
        s_add_u32 s{sA}, s{sA}, {L_VP}
        v_lshl_add_u32 v86, v0, 4, s{sA}
        v_and_b32 v1, 7, v0
        v_lshlrev_b32 v1, 5, v1
        v_bfe_u32 v2, v0, 4, 1
        v_lshl_add_u32 v1, v2, 4, v1
        v_lshrrev_b32 v2, 5, v0
        v_mul_u32_u24 v2, 768, v2
        s_mul_i32 s{sA}, s{sV}, 1536
        v_add3_u32 v87, v1, v2, s{sA}""")
    def attn_zero(self):
        for r in range(28, 48): self.A(f"v_mov_b32 v{r}, 0")
    def consts(self):
        h = 2 if self.o['xbf'] else 1
        self.A(f"s_mov_b32 s{sLO}, 0x3f80\ns_mov_b32 s{sHI}, 0x3f800000")
        self.A(f"s_mov_b32 s{sK1}, {81920//h}\ns_mov_b32 s{sK2}, {163840//h}\ns_mov_b32 s{sKG}, {4*GSL}\ns_mov_b32 s{sKQ}, {4*QSL}")

    def xa_addr(self, d=30):
        self.A(f"""v_and_b32 v1, 15, v0
        v_lshrrev_b32 v2, 4, v0
        v_min_u32 v{d}, 5, v1
        v_mul_u32_u24 v{d}, {XS}, v{d}
        v_lshl_add_u32 v{d}, v2, 4, v{d}
        v_and_b32 v3, 3, v0
        v_bfe_u32 v1, v0, 2, 2
        v_add_u32 v{d+1}, 3, v3
        v_min_u32 v{d+1}, 5, v{d+1}
        v_cmp_eq_u32 vcc, 0, v3
        v_cndmask_b32 v{d+1}, v{d+1}, v1, vcc
        v_mul_u32_u24 v{d+1}, {XS}, v{d+1}
        v_lshl_add_u32 v{d+1}, v2, 4, v{d+1}""")
    def xfrags(self, d=30): self.A(f"ds_read_b128 v[4:7], v{d} offset:{L_XA}\nds_read_b128 v[8:11], v{d} offset:{L_XA+64}")
    def mm_with_gram(self, mf0, mf1, store):
        A = self.A
        self.xfrags()
        l = self.role(R_GR); le = self.lab("gr")
        A(f"""ds_read_b128 v[60:63], v31 offset:{L_XA}
        ds_read_b128 v[64:67], v31 offset:{L_XA+64}
        s_waitcnt lgkmcnt(1)
        v_mfma_f32_16x16x32_bf16 v[68:71], v[60:63], v[4:7], 0""")
        A(mf0)
        A("s_waitcnt lgkmcnt(0)\nv_mfma_f32_16x16x32_bf16 v[68:71], v[64:67], v[8:11], v[68:71]")
        A(mf1)
        A(f"v_mov_b32_dpp v71, v70 row_newbcast:4 {DPP}")
        self.exec_mask(1 | 1 << 17 | 1 << 34 | 1 << 51)
        self.stores(f"buffer_store_dwordx4 v[68:71], v33, {srd(SWS)}, 0 offen{{f}}", True)
        self.exec_full()
        store()
        A(f"s_cbranch_execnz {le}")
        self.end(l)
        A("s_waitcnt lgkmcnt(1)"); A(mf0); A("s_waitcnt lgkmcnt(0)"); A(mf1)
        store()
        self.end(le)
    def q_lds_addr(self, d):
        self.A(f"""v_bfe_u32 v1, v0, 3, 1
        v_lshlrev_b32 v{d}, 6, v1
        v_bfe_u32 v1, v0, 1, 1
        v_lshl_add_u32 v{d}, v1, 5, v{d}
        v_lshrrev_b32 v1, 5, v0
        v_lshl_add_u32 v{d}, v1, 4, v{d}
        v_bfe_u32 v1, v0, 2, 1
        v_lshl_add_u32 v{d}, v1, 3, v{d}
        v_and_b32 v1, 1, v0
        v_lshl_add_u32 v{d}, v1, 2, v{d}
        v_bfe_u32 v1, v0, 4, 1
        v_lshl_add_u32 v{d}, v1, 1, v{d}""")

    def startup(self):
        A = self.A
        A(f"s_bitcmp1_b32 s{sROLE}, {R_GE4}\ns_cbranch_scc1 L_start_hi")
        self.k_loads()
        self.other_srds()
        l = self.lab("now"); A(f"s_cmp_ge_u32 s{sT}, 30\ns_cbranch_scc1 {l}")
        self.dma_addr(4, 1280)
        self.dma_dist(self.o['cwo'], [(SWO, 4, 1280, L_WO)])
        if not self.o['defer']:
            self.dma_addr(6, 3072)
            self.dma_dist(self.o['cgud'], [(SWG, 6, 3072, L_WG), (SWU, 6, 3072, L_WU), (SWD, 4, 1280, L_WD)])
        self.end(l)
        self.v_loads()
        self.stamp(1, both=False)
        if self.o['dry']:
            l = self.lab("nodry")
            A(f"""s_cmp_eq_u32 s{sV}, 2
            s_cbranch_scc0 {l}
            s_mov_b32 s{sDRY}, 1
            v_mov_b32 v15, 0
            v_mov_b32 v16, 0
            v_mov_b32 v28, 0
            v_mov_b32 v32, 0
            v_mov_b32 v33, 0
            v_mov_b32 v34, 0
            v_mov_b32 v66, 0
            v_mov_b32 v67, 0
            v_mov_b32 v68, 0
            s_mov_b32 s{sSAVE}, s{sT}
            s_mov_b32 s{sT}, 0
            s_mov_b32 s{sROLE}, 0xff
            s_mov_b64 s[{sFULL}:{sFULL+1}], 0
            s_mov_b64 exec, 0
            s_branch L_attn
            L_dry_ret:
            s_mov_b32 s{sDRY}, 0
            s_mov_b32 s{sP}, 0
            s_mov_b32 s{sT}, s{sSAVE}
            s_mov_b32 s{sROLE}, {(1 << R_LT4) | ((int(self.o['gramw']) == 2) << R_GR)}
            s_mov_b64 s[{sFULL}:{sFULL+1}], -1
            s_mov_b64 exec, -1
            {l}:""")
        l3 = self.lab("nog")
        A(f"s_cmp_eq_u32 s{sV}, 3\ns_cbranch_scc0 {l3}\ns_setprio 3")
        lp = self.lab("tq"); lr = self.lab("tqr")
        self.stamp(13, both=False)
        if self.prof: A(f"s_mov_b32 s{sST+5}, s{sST+13}")
        A(f"""s_bfe_u32 s{sB}, s{sT}, 0x20001          ; b
        s_lshl_b32 s{sC}, s{sB}, 11
        v_lshrrev_b32 v1, 4, v0
        v_mul_u32_u24 v78, {Q0SL}, v1
        v_and_b32 v3, 15, v0
        v_lshl_add_u32 v78, v3, 4, v78
        v_add_u32 v78, s{sC}, v78
        v_lshrrev_b32 v1, 5, v0
        v_lshlrev_b32 v79, 6, v1
        v_bfe_u32 v1, v0, 1, 1
        v_lshl_add_u32 v79, v1, 5, v79
        v_bfe_u32 v1, v0, 2, 1
        v_lshl_add_u32 v79, v1, 4, v79
        v_bfe_u32 v1, v0, 3, 1
        v_lshl_add_u32 v79, v1, 3, v79
        v_and_b32 v1, 1, v0
        v_lshl_add_u32 v79, v1, 2, v79
        v_bfe_u32 v1, v0, 4, 1
        v_lshl_add_u32 v79, v1, 1, v79""")
        QL_ = self.o['q0ld'].replace('plain','').replace('_',' ')
        A(f"{lp}:\nv_mov_b32 v1, 0")
        for sg in range(3):
            A(f"""s_lshr_b32 s{sA}, s{sT}, 3
            s_mul_i32 s{sA}, s{sA}, 3
            s_add_u32 s{sA}, s{sA}, {sg}
            s_lshr_b32 s{sB}, s{sA}, 2
            s_mul_i32 s{sB}, s{sB}, 10
            s_lshl_b32 s{sC}, s{sX}, 5
            s_add_u32 s{sB}, s{sB}, s{sC}
            s_mul_i32 s{sB}, s{sB}, {Q0SL}
            s_and_b32 s{sA}, s{sA}, 3
            s_lshl_b32 s{sA}, s{sA}, 9
            s_add_u32 s{sB}, s{sB}, s{sA}
            s_add_u32 s{sB}, s{sB}, {RQ[0]}""")
            for i in range(3):
                if i == 2: A("s_mov_b32 exec_hi, 0")
                r = 4 + 24 * sg + 8 * i
                A(f"buffer_load_dwordx4 {vr(r)}, v78, {srd(SWS)}, s{sB} offen {QL_}\nbuffer_load_dwordx4 {vr(r+4)}, v78, {srd(SWS)}, s{sB} offen offset:256 {QL_}")
                A(f"s_add_u32 s{sB}, s{sB}, {4*Q0SL}" if i < 2 else "s_mov_b64 exec, -1")
        A("s_waitcnt vmcnt(0)")
        if self.prof:
            lx = self.lab("fx"); A(f"s_cmp_lg_u32 s{sST+5}, s{sST+13}\ns_cbranch_scc1 {lx}"); self.stamp(5, both=False); A(f"s_mov_b32 s{sST+14}, s96\n{lx}:")
        for third in (0, 1):
            if third: A("s_mov_b32 exec_hi, 0")
            for sg in range(3):
                for i in ((2,) if third else (0, 1)):
                    for h in range(2):
                        r = 4 + 24 * sg + 8 * i + 4 * h
                        A(f"v_xor_b32 v2, s{sTAG}, v{r+1}\nv_xor_b32 v3, s{sTAG}, v{r+3}\nv_or3_b32 v1, v1, v2, v3")
        for k in range(3):
            for i in range(4): A(f"v_add_f32 v{4+24*k+2*i}, v{4+24*k+2*i}, v{20+24*k+2*i}")
        A(f"s_mov_b64 exec, -1\nv_cmp_ne_u32 vcc, 0, v1\ns_cbranch_vccnz {lr}")
        self.tail.append(f"{lr}:\ns_sub_u32 s{sTO}, s{sTO}, 1\ns_cbranch_scc1 L_end\ns_branch {lp}")
        for k in range(3):
            r = 4 + 24 * k
            for i in range(4): A(f"v_add_f32 v{r+2*i}, v{r+2*i}, v{r+8+2*i}")
            self.treduce(r, r + 2, r + 4, r + 6)
            A(f"v_cvt_pk_bf16_f32 v{r}, 0, v{r}\nds_write_b16_d16_hi v79, v{r} offset:{L_QL + 128*k}")
        self.lds_spin(4, 8)
        A(f"v_mov_b32 v4, 1\nds_write_b32 v5, v4\ns_setprio 0")
        self.end(l3)
        self.stamp(2, both=False)
        self.attn_pre(); self.attn_zero(); self.consts()
        self.lds_spin(0, 1)
        self.xres_read()
        A("s_branch L_attn")
        A("L_start_hi:\ns_setprio 3")
        self.other_srds()
        l = self.lab("x0"); l2 = self.lab("x0")
        A(f"""v_lshlrev_b32 v10, 4, v0
        s_and_b32 s{sB}, s{sV}, 3
        s_lshl_b32 s{sA}, s{sB}, 10
        s_add_u32 m0, s{sA}, {L_X0}
        s_cmp_eq_u32 s{sV}, 4
        buffer_load_dwordx4 v10, {srd(SX0)}, s{sA} offen lds
        s_cbranch_scc0 {l}
        s_mov_b32 m0, {L_X0 + 4096}
        s_movk_i32 s{sA}, 0x1000
        buffer_load_dwordx4 v10, {srd(SX0)}, s{sA} offen lds
        {l}:
        s_cmp_eq_u32 s{sV}, 5
        s_cbranch_scc0 {l2}
        s_mov_b32 m0, {L_XA + 5*XS}
        s_mov_b64 exec, 0xff
        buffer_load_dwordx4 v10, {srd(SWR)}, 0 offen lds
        s_mov_b64 exec, -1
        {l2}:""")
        lq = self.lab("noq"); lq2 = self.lab("noq")
        A(f"s_cmp_ge_u32 s{sT}, 30\ns_cbranch_scc1 {lq}")
        self.dma_addr(6, 12288)
        A(f"s_and_b32 s{sB}, s{sV}, 3\ns_lshl_b32 s{sC}, s{sB}, 7\ns_lshl_b32 s{sB}, s{sB}, 13")
        self.dma(SWQ, 6, 8, 12288, L_WQ, sC, sB)
        A(f"""v_lshrrev_b32 v1, 4, v0
        v_and_b32 v2, 15, v0
        v_mul_u32_u24 v3, 1280, v1
        v_lshl_add_u32 v10, v2, 4, v3
        v_lshl_add_u32 v11, v2, 3, v3
        s_lshl_b32 s{sA}, s{sAI}, 7
        v_add_u32 v11, s{sA}, v11
        v_mul_u32_u24 v12, {XS}, v1
        v_lshl_add_u32 v12, v2, 3, v12
        v_lshlrev_b32 v13, 3, v2
        s_waitcnt vmcnt(8)""")
        self.lds_inc(4); self.lds_spin(4, 4)
        for i in range(5): A(f"ds_read_b128 {vr(16+4*i)}, v10 offset:{L_X0 + 256*i}")
        A(f"ds_read_b64 v[36:37], v11 offset:{L_X0}")
        A("v_mov_b32 v40, 0x3f803f80\nv_mov_b32 v41, 0x3f803f80\nv_mov_b32 v42, 0\nv_mov_b32 v43, 0\ns_waitcnt lgkmcnt(0)")
        for i in range(20): A(f"v_dot2_f32_bf16 v42, v{16+i}, v{16+i}, v42\nv_dot2_f32_bf16 v43, v{16+i}, v40, v43")
        self.mix(self.red16([42, 43])); self.mix(self.lnstats(42, 43, 44, 45, 46))
        A("v_lshlrev_b32 v16, 16, v36\nv_and_b32 v17, 0xffff0000, v36\nv_lshlrev_b32 v18, 16, v37\nv_and_b32 v19, 0xffff0000, v37")
        for i in range(4): A(f"v_sub_f32 v{16+i}, v{16+i}, v44")
        for i in range(4): A(f"v_cvt_pk_bf16_f32 v{16+i}, 0, v{16+i}")
        for i in range(4): A(f"v_mul_f32 v{16+i}, v{16+i}, v45")
        A(f"""v_cvt_pk_bf16_f32 v16, v16, v17
        v_cvt_pk_bf16_f32 v17, v18, v19
        ds_write_b64 v12, v[16:17] offset:{L_XA}
        ds_write_b64 v13, v[40:41] offset:{L_XA + 4*XS}""")
        A(f"s_and_b32 s{sA}, s{sV}, 3\ns_lshl_b32 s{sA}, s{sA}, 13\ns_add_u32 s{sA}, s{sA}, {L_WQ}")
        self.tr_addr(52, sA)
        for t in range(1, 4): A(f"v_xor_b32 v{52+t}, {32*t}, v52")
        self.xa_addr(14)
        A(f"""s_and_b32 s{sA}, s{sV}, 3
        s_lshl_b32 s{sB}, s{sA}, 11
        v_and_b32 v1, 15, v0
        v_lshlrev_b32 v72, 9, v1
        v_and_b32 v1, 0x30, v0
        v_add3_u32 v72, v72, v1, s{sB}
        v_lshl_add_u32 v73, v0, 4, s{sB}
        v_lshrrev_b32 v74, 5, v0
        v_lshlrev_b32 v74, 11, v74
        v_and_b32 v2, 31, v0
        v_lshl_add_u32 v74, v2, 4, v74
        s_lshl_b32 s{sB}, s{sA}, 8
        v_add_u32 v75, s{sB}, v1
        s_lshl_b32 s{sA}, s{sA}, 9
        s_mul_i32 s{sE}, s{sSIG}, {Q0SL}
        s_add_u32 s{sE}, s{sE}, s{sA}
        s_add_u32 s{sE}, s{sE}, {RQ[0]}
        s_add_u32 s{sF}, s{sE}, 4096
        s_waitcnt vmcnt(0) lgkmcnt(0)""")
        self.stamp(12, both=False)
        for t in range(4): self.wfrags(16 + 8 * t, 52 + t, 2)
        self.xfrags(14)
        A("s_waitcnt lgkmcnt(0)")
        for s in range(2):
            for t in range(4):
                A(f"v_mfma_f32_16x16x32_bf16 {vr(48+4*t)}, {vr(16+8*t+4*s)}, {vr(4+4*s)}, {'0' if s == 0 else vr(48+4*t)}")
        for t in range(4):
            for i in range(4): A(f"v_mov_b32 v{16+8*t+2*i}, v{48+4*t+i}\nv_mov_b32 v{17+8*t+2*i}, s{sTAG}")
        self.exec_mask(0x000f000f000f000f)
        for t in range(4):
            for h in range(2): A(f"ds_write_b128 v72, {vr(16+8*t+4*h)} offset:{L_OC + 128*t + 64*h}")
        self.exec_mask(0x0010001000100010)
        for t in range(4): A(f"ds_write_b128 v75, {vr(48+4*t)} offset:{L_CS + 64*t}")
        self.exec_full()
        A(f"""s_waitcnt lgkmcnt(0)
        ds_read_b128 v[16:19], v73 offset:{L_OC}
        ds_read_b128 v[20:23], v73 offset:{L_OC + 1024}
        s_waitcnt lgkmcnt(0)
        buffer_store_dwordx4 v[16:19], v74, {srd(SWS)}, s{sE} offen sc1
        buffer_store_dwordx4 v[20:23], v74, {srd(SWS)}, s{sF} offen sc1
        s_branch {lq2}
        {lq}:
        s_waitcnt vmcnt(0)""")
        self.lds_inc(4); self.lds_spin(4, 4)
        A(f"{lq2}:")
        self.xres_read()
        A("s_waitcnt lgkmcnt(0)")
        self.lds_inc(4)
        self.stamp(14, both=False)
        CF = ' sc1'
        sp = self.o['csplit']
        l = self.role(R_456 if sp else R_6)
        A("v_mov_b32 v64, -1\nv_mov_b32 v65, -1\nv_mov_b32 v66, -1\nv_mov_b32 v67, -1\nv_lshlrev_b32 v10, 4, v0")
        l2 = self.lab("nocl"); lb = self.lab("clb"); lc = self.lab("clc")
        if sp: A(f"s_cmp_eq_u32 s{sV}, 5\ns_cbranch_scc1 {lb}\ns_cmp_eq_u32 s{sV}, 6\ns_cbranch_scc1 {lc}")
        A(f"s_mul_i32 s{sA}, s{sSIG}, {OSL}")
        self.exec_mask((1 << 56) - 1)
        for p in range(2): A(f"s_add_u32 s{sB}, s{sA}, {RO[p]}\nbuffer_store_dwordx4 v[64:67], v10, {srd(SWS)}, s{sB} offen{CF}")
        self.exec_full()
        A(f"s_cmp_ge_u32 s{sT}, 30\ns_cbranch_scc1 {l2}\ns_lshl_b32 s{sA}, s{sSLOT}, {9 if self.o['xbf'] else 10}")
        if self.o['xbf']: A("s_mov_b32 exec_hi, 0")
        for r in RX + RY: A(f"s_add_u32 s{sB}, s{sA}, {r}\nbuffer_store_dwordx4 v[64:67], v10, {srd(SWS)}, s{sB} offen{CF}")
        self.exec_full()
        if sp: A(f"s_branch {l2}\n{lb}:")
        A(f"s_mul_i32 s{sA}, s{sSIG}, {GSL}")
        for p in range(2):
            A(f"s_add_u32 s{sB}, s{sA}, {RG[p]}")
            for i in range(2): A(f"buffer_store_dwordx4 v[64:67], v10, {srd(SWS)}, s{sB} offen offset:{1024*i}{CF}")
        self.exec_mask((1 << 40) - 1)
        for p in range(2): A(f"s_add_u32 s{sB}, s{sA}, {RG[p]}\nbuffer_store_dwordx4 v[64:67], v10, {srd(SWS)}, s{sB} offen offset:2048{CF}")
        self.exec_full()
        if sp: A(f"s_branch {l2}\n{lc}:")
        A(f"s_mul_i32 s{sA}, s{sSIG}, {QSL}\ns_add_u32 s{sC}, s{sA}, {RQ[1]}")
        for i in range(4): A(f"buffer_store_dwordx4 v[64:67], v10, {srd(SWS)}, s{sC} offen offset:{1024*i}{CF}")
        A(f"s_add_u32 s{sB}, s{sC}, 4224\nbuffer_store_dwordx4 v[64:67], v10, {srd(SWS)}, s{sB} offen{CF}")
        self.exec_mask(0xff)
        A(f"s_add_u32 s{sC}, s{sC}, 4096\nbuffer_store_dwordx4 v[64:67], v10, {srd(SWS)}, s{sC} offen{CF}")
        A(f"""{l2}:
        s_mov_b64 exec, -1
        s_getreg_b32 s{sXCC}, hwreg(HW_REG_XCC_ID, 0, 4)
        v_mov_b32 v6, s{sTAG}
        v_mov_b32 v7, s{sXCC}
        v_mov_b32 v8, s{sTAG}
        v_mov_b32 v9, s{sXCC}
        v_mov_b32 v4, {L_FL}
        v_mov_b32 v5, 1
        s_lshl_b32 s{sA}, s{sSIG}, 7
        s_add_u32 s{sA}, s{sA}, {RF}
        s_waitcnt vmcnt(0)""")
        l3 = self.lab("nofl")
        if sp: A(f"""s_mov_b64 exec, 1
        ds_add_rtn_u32 v11, v4, v5 offset:8
        s_waitcnt lgkmcnt(0)
        v_cmp_eq_u32 vcc, 2, v11
        s_cbranch_vccz {l3}""")
        A(f"""s_mov_b64 exec, 0xff
        buffer_store_dwordx4 v[6:9], v10, {srd(SWS)}, s{sA} offen sc1
        {l3}:
        s_mov_b64 exec, -1""")
        self.end(l)
        self.stamp(1, both=False)
        A("s_setprio 0")
        self.k_loads(); self.v_loads()
        self.attn_pre(); self.attn_zero(); self.consts()
        self.lds_spin(0, 1)

    def region(self, s, R):
        self.A(f"s_mul_i32 s{s}, s{sP}, {R[1]-R[0]}")
        if R[0]: self.A(f"s_add_u32 s{s}, s{s}, {R[0]}")

    def attention(self):
        A = self.A
        A("L_attn:")
        order = [(72, 4), (73, 8), (76, 20), (74, 12), (75, 16), (77, 24)]
        for a, d in order: A(f"ds_read_b128 {vr(d)}, v{a} offset:{L_QL}")
        self.region(sE, RO)
        A(f"""s_mul_i32 s{sB}, s{sSIG}, {OSL}
        s_add_u32 s{sE}, s{sE}, s{sB}
        s_and_b32 s{sC}, s{sV}, 3
        s_lshl_b32 s{sC}, s{sC}, 8
        s_add_u32 s{sD}, s{sC}, s{sE}
        s_mov_b32 s{sA}, 0x{ODD & 0xffffffff:x}
        s_mov_b32 s{sB}, 0x{ODD & 0xffffffff:x}
        s_waitcnt vmcnt(24)""")
        self.stamp(3)
        for n, (a, d) in enumerate(order):
            A(f"s_waitcnt lgkmcnt({5-n})")
            for h in range(2):
                if a < 76: g = 4 * h + (a - 72); b = 12 * (g & ~1) + 8 * (g & 1)
                else: g = 4 * h + 2 * (a - 76); b = 12 * g + 16
                A(f"v_smfmac_f32_16x16x64_bf16 {vr(28+4*h)}, {vr(d)}, {ar(b,8)}, v78")
        A("s_waitcnt vmcnt(18)")
        for i in range(6): A(f"ds_read_b128 {vr(48+4*i)}, v86 offset:{1024*i}")
        fill = [f"v_lshrrev_b32 v1, 4, v0", f"v_and_b32 v2, 15, v0", f"v_mul_u32_u24 v12, 3072, v1", f"v_lshlrev_b32 v13, 3, v1",
                f"v_lshl_add_u32 v12, v2, 4, v12", f"v_lshlrev_b32 v15, 4, v2", f"v_add_u32 v12, s{sC}, v12", f"v_lshl_add_u32 v15, v1, 2, v15",
                f"v_mov_b32 v14, 0", f"v_add_u32 v15, s{sD}, v15", f"v_lshl_add_u32 v16, v0, 4, s{sE}", f"v_and_b32 v17, 7, v0",
                f"v_lshlrev_b32 v17, 2, v17", f"s_lshl_b32 s{sF}, s{sV}, 2", f"v_mov_b32 v35, s{sF}"]
        A(fill.pop(0))
        fin = lambda d: [f"v_add_f32 v{d}, v{d}, v{d+1}", f"v_add_f32 v{d+2}, v{d+2}, v{d+3}",
                         f"v_cndmask_b32 v{d}, v{d}, v{d+2}, s[{sA}:{sB}]",
                         f"v_add_f32_dpp v{d}, v{d}, v{d} quad_perm:[1,0,3,2] {DPP}",
                         f"v_cvt_pk_bf16_f32 v{d}, 0, v{d}", f"v_mul_f32 v{d}, s{sSCALE}, v{d}",
                         f"v_cvt_pk_bf16_f32 v{d}, 0, v{d}", f"v_mul_f32 v{d}, s{sLOG2E}, v{d}"]
        f0, f1 = fin(28), fin(32)
        for k in range(8):
            if k == 3: A(fill.pop(0))
            A(f0[k]); A(f1[k])
        A("v_max_f32 v29, v28, v32")
        for p in (f"quad_perm:[2,3,0,1] {DPP}", f"row_half_mirror {DPP}", f"row_mirror {DPP}", "row_bcast:15 row_mask:0xa bank_mask:0xf", "row_bcast:31 row_mask:0xc bank_mask:0xf"):
            A(fill.pop(0)); A(fill.pop(0)); A(f"v_max_f32_dpp v29, v29, v29 {p}")
        A(fill.pop(0)); A(f"v_readlane_b32 s{sM}, v29, 63")
        A(fill.pop(0)); A(fill.pop(0))
        assert not fill
        A(f"""v_subrev_f32 v28, s{sM}, v28
        v_subrev_f32 v32, s{sM}, v32
        v_exp_f32 v28, v28
        v_exp_f32 v32, v32
        v_cvt_pk_bf16_f32 v30, v28, v28
        v_cvt_pk_bf16_f32 v31, v32, v32
        v_mov_b32 v34, s{sM}""")
        lsum = ["v_add_f32 v33, v28, v32"] + \
               [f"v_add_f32_dpp v33, v33, v33 {p}" for p in (f"quad_perm:[2,3,0,1] {DPP}", f"row_half_mirror {DPP}", f"row_mirror {DPP}",
                                                            "row_bcast:15 row_mask:0xa bank_mask:0xf", "row_bcast:31 row_mask:0xc bank_mask:0xf")]
        def abuild(S):
            b = 4 + 4 * (S & 1); P = 30 + (S >> 1); jj = S & 1
            return [f"v_and_b32_dpp v{b+2*x+m}, v{P}, v{84+m} row_newbcast:{8*jj+4*x+2*c} row_mask:0xf bank_mask:{'0x3' if c == 0 else '0xc'}"
                    for c in range(2) for x in range(2) for m in range(2)]
        for x in abuild(0): A(x)
        A("s_waitcnt lgkmcnt(0)")
        for S in range(4):
            nxt = abuild(S + 1) if S < 3 else []
            if S: A(f"s_waitcnt vmcnt({18 - 6*S})")
            for s in range(3):
                vv = vr(48 + 8 * s, 8) if S == 0 else vr(VBASE + (S - 1) * 24 + 8 * s, 8)
                A(f"v_smfmac_f32_16x16x64_bf16 {vr(36+4*s)}, {vr(4+4*(S&1))}, {vv}, v79")
                for _ in range(3):
                    if nxt: A(nxt.pop(0))
                if lsum and s != 1: A(lsum.pop(0))
        assert not lsum
        self.exec_mask(1 << 63)
        A(f"ds_write_b32 v35, v34 offset:{L_ML}\nds_write_b32 v35, v33 offset:{L_ML+32}")
        self.exec_mask(0xFF00FF0000FF00FF)
        for s in range(3): A(f"ds_write_b128 v87, {vr(36+4*s)} offset:{L_OC + 256*s}")
        self.exec_full()
        l = self.role(R_LT4)
        l2 = self.pass0(); l3 = self.lab("nm")
        A(f"s_cbranch_execz {l3}")
        self.lds_inc(16); self.lds_spin(16, 4)
        self.first_pass_checks()
        self.end(l3); self.end(l2)
        self.wo_pre()
        self.end(l)
        A("s_waitcnt lgkmcnt(0)")
        self.stamp(4)
        if self.o['t2']:
            l = self.pass0(); A("s_memrealtime s[66:67]"); self.end(l)
        self.barrier('A')
        l = self.role(R_GE4)
        A(f"ds_read_b32 v47, v14 offset:{L_FL+12}")
        l2 = self.role(R_456)
        A(f"""ds_read_b128 v[20:23], v14 offset:{L_ML}
        ds_read_b128 v[24:27], v14 offset:{L_ML+16}
        ds_read_b64 v[18:19], v13 offset:{L_ML}
        ds_read_b128 v[48:51], v12 offset:{L_OC}
        ds_read_b128 v[52:55], v12 offset:{L_OC+768}
        ds_read_b128 v[56:59], v12 offset:{L_OC+1536}
        ds_read_b128 v[60:63], v12 offset:{L_OC+2304}
        s_waitcnt lgkmcnt(5)
        v_max3_f32 v20, v20, v21, v22
        v_max3_f32 v24, v24, v25, v26
        v_readfirstlane_b32 s{sFAST}, v47
        v_max3_f32 v20, v20, v23, v27
        v_max_f32 v20, v20, v24
        s_waitcnt lgkmcnt(2)
        v_sub_f32 v18, v18, v20
        v_sub_f32 v19, v19, v20
        v_add_f32 v48, v48, v52
        v_exp_f32 v18, v18
        v_add_f32 v49, v49, v53
        v_exp_f32 v19, v19
        v_add_f32 v50, v50, v54
        v_add_f32 v51, v51, v55
        s_waitcnt lgkmcnt(0)""")
        for i in range(4): A(f"v_add_f32 v{56+i}, v{56+i}, v{60+i}\nv_mul_f32 v{48+i}, v18, v{48+i}")
        for i in (0, 2, 1, 3): A(f"v_fmac_f32 v{48+i}, v19, v{56+i}")
        self.treduce(48, 49, 50, 51)
        self.stores(f"buffer_store_dword v48, v15, {srd(SWS)}, 0 offen{{f}}", True, 'A')
        self.end(l2)
        l2 = self.role(R_7)
        A(f"""ds_read_b32 v4, v17 offset:{L_ML}
        ds_read_b32 v5, v17 offset:{L_ML+32}
        s_waitcnt lgkmcnt(1)
        v_max_f32_dpp v6, v4, v4 quad_perm:[1,0,3,2] {DPP}
        v_readfirstlane_b32 s{sFAST}, v47
        v_max_f32_dpp v6, v6, v6 quad_perm:[2,3,0,1] {DPP}
        v_max_f32_dpp v6, v6, v6 row_half_mirror {DPP}
        v_sub_f32 v4, v4, v6
        v_exp_f32 v4, v4
        s_waitcnt lgkmcnt(0)
        v_mul_f32 v7, v4, v5""")
        self.mix(self.red16([7])[:3])
        self.exec_mask(0xff)
        self.stores(f"buffer_store_dwordx4 v[6:9], v16, {srd(SWS)}, 0 offen offset:768{{f}}", True)
        self.exec_full()
        l3 = self.pass0(); l4 = self.lab("ncs")
        A(f"""s_cmp_ge_u32 s{sT}, 30
        s_cbranch_scc1 {l4}
        v_lshlrev_b32 v1, 4, v0
        ds_read_b128 v[12:15], v1 offset:{L_CS}
        s_mul_i32 s{sA}, s{sSIG}, {QSL}
        s_add_u32 s{sA}, s{sA}, {RQ[1] + 4224}
        s_waitcnt lgkmcnt(0)""")
        self.stores(f"buffer_store_dwordx4 v[12:15], v1, {srd(SWS)}, s{sA} offen{{f}}", True)
        self.end(l4); self.end(l3); self.end(l2); self.end(l)
        A(f"s_cmp_ge_u32 s{sT}, 30\ns_cbranch_scc1 L_idle")

    def first_pass_checks(self):
        A = self.A
        l = self.lab("nochk"); lp = self.lab("chk"); lr = self.lab("chkr")
        A(f"""s_cmp_eq_u32 s{sV}, 0
        s_cbranch_scc0 {l}
        v_mov_b32 v1, {L_FL}
        v_mov_b32 v2, s{sTAG}
        v_lshlrev_b32 v3, 9, v0
        s_getreg_b32 s{sXCC}, hwreg(HW_REG_XCC_ID, 0, 4)
        s_mov_b32 s{sA}, {RF}
        {lp}:
        buffer_load_dwordx2 v[4:5], v3, {srd(SWS)}, s{sA} offen sc1
        buffer_load_dwordx2 v[6:7], v3, {srd(SWS)}, s{sA} offen offset:128 sc1
        buffer_load_dwordx2 v[8:9], v3, {srd(SWS)}, s{sA} offen offset:256 sc1
        buffer_load_dwordx2 v[10:11], v3, {srd(SWS)}, s{sA} offen offset:384 sc1
        s_waitcnt vmcnt(0)
        v_xor_b32 v4, v4, v2
        v_xor_b32 v6, v6, v2
        v_xor_b32 v8, v8, v2
        v_xor_b32 v10, v10, v2
        v_or3_b32 v4, v4, v6, v8
        v_or_b32 v4, v4, v10
        v_cmp_ne_u32 vcc, 0, v4
        s_cbranch_vccnz {lr}
        v_xor_b32 v5, s{sXCC}, v5
        v_xor_b32 v7, s{sXCC}, v7
        v_xor_b32 v9, s{sXCC}, v9
        v_xor_b32 v11, s{sXCC}, v11
        v_or3_b32 v5, v5, v7, v9
        v_or_b32 v5, v5, v11
        v_cmp_eq_u32 vcc, 0, v5
        s_lshl_b32 s{sB}, s{sX}, 3
        s_lshr_b64 s[{sA}:{sB}], vcc, s{sB}
        s_and_b32 s{sA}, s{sA}, 0xff
        s_cmp_eq_u32 s{sA}, 0xff
        s_cselect_b32 s{sA}, 1, 0
        v_mov_b32 v4, s{sA}
        ds_write_b32 v1, v4 offset:12
        s_cmp_eq_u32 s2, 0
        s_cbranch_scc0 {l}
        v_mov_b32 v3, 0
        s_mov_b32 s{sA}, {RE}
        s_mov_b64 exec, 1
        buffer_store_dword v2, v3, {srd(SWS)}, s{sA} offen sc1
        s_mov_b64 exec, -1
        {l}:""")
        self.tail.append(f"{lr}:\ns_sleep {self.o['bsleep']}\ns_sub_u32 s{sTO}, s{sTO}, 1\ns_cbranch_scc1 L_end\ns_branch {lp}")
        if self.o['prewarm'] and self.o['pwo']:
            l = self.lab("npw")
            A(f"""s_cmp_eq_u32 s{sV}, 1
            s_cbranch_scc0 {l}
            v_lshlrev_b32 v1, 4, v0
            s_mov_b32 exec_hi, 0xffffff
            buffer_load_dwordx4 v[60:63], v1, {srd(SWS)}, s{sE} offen sc1
            s_mov_b64 exec, -1
            {l}:""")

    def afrag_addr(self, d, stride):
        self.A(f"v_and_b32 v1, 3, v0\nv_lshrrev_b32 v2, 4, v0\nv_mul_u32_u24 v1, {stride}, v1\nv_lshl_add_u32 v{d}, v2, 4, v1")
    def pub_addr(self, d, R):
        self.region(sC, R)
        self.A(f"s_lshl_b32 s{sA}, s{sSLOT}, 10\ns_lshl_b32 s{sB}, s{sV}, 8\ns_add_u32 s{sA}, s{sA}, s{sB}\ns_add_u32 s{sA}, s{sA}, s{sC}\nv_lshl_add_u32 v{d}, v0, 4, s{sA}") if not self.o['xbf'] else \
        self.A(f"s_lshl_b32 s{sA}, s{sSLOT}, 9\ns_lshl_b32 s{sB}, s{sV}, 7\ns_add_u32 s{sA}, s{sA}, s{sB}\ns_add_u32 s{sA}, s{sA}, s{sC}\nv_lshl_add_u32 v{d}, v0, 3, s{sA}")
    def pub_store(self, addr, tag):
        if self.o['xbf']:
            self.A("v_cvt_pk_bf16_f32 v68, v68, v69\nv_cvt_pk_bf16_f32 v69, v70, v71")
            self.exec_mask(0xffff)
            self.stores(f"buffer_store_dwordx2 v[68:69], v{addr}, {srd(SWS)}, 0 offen{{f}}", False, tag)
        else:
            self.exec_mask(0xffff)
            self.stores(f"buffer_store_dwordx4 v[68:71], v{addr}, {srd(SWS)}, 0 offen{{f}}", False, tag)
        self.exec_full()
    def unpack_sum(self, dst, srcs):
        out = []
        for k, r in enumerate(srcs):
            for i in range(4):
                out.append(f"v_dot2_f32_bf16 v{dst+i}, v{r + (i >> 1)}, s{sLO if i % 2 == 0 else sHI}, {'0' if k == 0 else 'v%d' % (dst+i)}")
        return out

    def wo_pre(self):
        A = self.A
        A(f"s_mov_b32 s{sA}, {L_WO}")
        self.tr_addr(72, sA)
        A(f"s_lshl_b32 s{sA}, s{sV}, 5\nv_xor_b32 v72, s{sA}, v72")
        self.wfrags(4, 72, 8)
        self.region(sD, RO)
        A(f"""s_lshl_b32 s{sA}, s{sRI}, 2
        s_add_u32 s{sA}, s{sA}, s{sV}
        s_mul_i32 s{sB}, s{sA}, 86
        s_lshr_b32 s{sB}, s{sB}, 8
        s_mul_i32 s{sC}, s{sB}, 3
        s_sub_u32 s{sC}, s{sA}, s{sC}
        s_lshl_b32 s{sB}, s{sB}, 3
        s_lshl_b32 s{sA}, s{sX}, 5
        s_add_u32 s{sB}, s{sB}, s{sA}
        s_mul_i32 s{sB}, s{sB}, {OSL}
        s_add_u32 s{sB}, s{sB}, s{sD}
        v_lshrrev_b32 v1, 4, v0
        v_and_b32 v2, 15, v0
        v_mul_u32_u24 v72, {2*OSL}, v1
        v_add_u32 v72, s{sB}, v72
        s_lshl_b32 s{sC}, s{sC}, 8
        v_lshl_add_u32 v73, v2, 4, v72
        v_add_u32 v73, s{sC}, v73
        s_lshl_b32 s{sA}, s{sV}, 7
        v_mul_u32_u24 v74, {OS}, v1
        v_lshl_add_u32 v74, v2, 3, v74
        v_add_u32 v74, s{sA}, v74""")
        self.afrag_addr(75, OS); self.pub_addr(76, RX)

    def wo_stage(self):
        A = self.A
        l = self.role(R_LT4)
        self.sync(self.o['sync_o'])
        def loadsA(): A(f"""buffer_load_dwordx2 v[52:53], v72, {srd(SWS)}, 0 offen offset:768 sc1
        buffer_load_dwordx2 v[54:55], v72, {srd(SWS)}, 0 offen offset:{768+OSL} sc1""")
        def loads(): A(f"""buffer_load_dwordx4 v[56:59], v73, {srd(SWS)}, 0 offen sc1
        buffer_load_dwordx4 v[60:63], v73, {srd(SWS)}, 0 offen offset:{OSL} sc1""")
        def shadow(): A(f"v_mov_b32 v1, 0\nds_read_b32 v47, v1 offset:{L_FL+12}\ns_waitcnt lgkmcnt(0)\nv_readfirstlane_b32 s{sFAST}, v47")
        chain = """v_sub_f32 v66, v54, v52
            v_exp_f32 v67, v66
            v_exp_f32 v66, -v66
            v_fma_f32 v67, v67, v55, v53
            v_fma_f32 v66, v66, v53, v55
            v_rcp_f32 v67, v67
            v_rcp_f32 v66, v66""".split('\n')
        def red(ch):
            self.mix(ch)
            for i in range(4): A(f"v_mul_f32 v{56+i}, v67, v{56+i}")
            for i in range(4): A(f"v_fmac_f32 v{56+i}, v66, v{60+i}")
            A("v_add_f32 v64, v56, v57\nv_add_f32 v65, v58, v59\nv_cvt_pk_bf16_f32 v56, v56, v57\nv_cvt_pk_bf16_f32 v57, v58, v59")
        self.poll(loads, range(52, 64), red, (64, 65), tag='o', shadow=shadow, pre=(loadsA, (53, 55), chain))
        A(f"ds_write_b64 v74, v[56:57] offset:{L_OA}\ns_waitcnt lgkmcnt(0)")
        self.stamp(5)
        self.end(l)
        self.barrier('O')
        l = self.role(R_LT4)
        for s in range(8): A(f"ds_read_b128 {vr(36+4*s)}, v75 offset:{L_OA + 64*s}")
        self.exec_mask(0xffff) if False else None
        for s in range(8):
            A(f"s_waitcnt lgkmcnt({7-s})\nv_mfma_f32_16x16x32_bf16 v[68:71], {vr(36+4*s)}, {vr(4+4*s)}, {'0' if s == 0 else 'v[68:71]'}")
        self.pub_store(76, 'O')
        self.end(l)
        l = self.role(R_GE4); l2 = self.pass0()
        def late():
            if self.o['defer']:
                l3 = self.lab("nm"); A(f"s_cbranch_execz {l3}\ns_and_b32 s{sD}, s{sV}, 3"); self.w_dma_gud(sD); self.end(l3)
        l7 = self.role(R_7)
        if self.o['prewarm']:
            self.mem(f"""v_lshlrev_b32 v1, 4, v0
            s_mul_i32 s{sA}, s{sSIG}, {GSL}
            s_add_u32 s{sA}, s{sA}, {RG[0]}
            buffer_load_dwordx4 v[60:63], v1, {srd(SWS)}, s{sA} offen sc1
            buffer_load_dwordx4 v[60:63], v1, {srd(SWS)}, s{sA} offen offset:1024 sc1
            s_mov_b32 exec_hi, 0xff
            buffer_load_dwordx4 v[60:63], v1, {srd(SWS)}, s{sA} offen offset:2048 sc1
            s_mov_b32 exec_hi, -1""")
        late()
        self.end(l7)
        self.cq_gather(False, late, 6 if self.o['defer'] else 0)
        self.end(l2); self.end(l)
        self.stamp(6)

    def x_gather_pre(self, R):
        self.region(sC, R)
        h = 1 if self.o['xbf'] else 0
        self.A(f"""s_lshl_b32 s{sA}, s{sAI}, {10-h}
        s_lshl_b32 s{sB}, s{sV}, {7-h}
        s_add_u32 s{sA}, s{sA}, s{sB}
        s_add_u32 s{sA}, s{sA}, s{sC}
        v_lshrrev_b32 v1, 3, v0
        v_and_b32 v2, 7, v0
        v_mul_u32_u24 v28, {10240 >> h}, v1
        v_lshl_add_u32 v28, v2, {4-h}, v28
        v_add_u32 v28, s{sA}, v28
        v_lshrrev_b32 v1, 4, v0
        v_mul_u32_u24 v29, {XS}, v1
        v_lshl_add_u32 v29, v2, 1, v29
        s_lshl_b32 s{sA}, s{sV}, 4
        v_add_u32 v29, s{sA}, v29""")
    def x_gather(self, tag, shadow):
        A = self.A
        bf = self.o['xbf']
        def loads():
            for i, r in enumerate(("0", f"s{sK1}", f"s{sK2}")):
                A(f"buffer_load_dwordx2 {vr(52+2*i,2)}, v28, {srd(SWS)}, {r} offen sc1" if bf else f"buffer_load_dwordx4 {vr(48+4*i)}, v28, {srd(SWS)}, {r} offen sc1")
        def red():
            if bf: self.mix(self.unpack_sum(48, [52, 54, 56]))
            else:
                for i in range(4): A(f"v_add_f32 v{48+i}, v{48+i}, v{52+i}")
                for i in (0, 2, 1, 3): A(f"v_add_f32 v{48+i}, v{48+i}, v{56+i}")
            self.treduce(48, 49, 50, 51)
            A(f"v_add_f32_dpp v48, v48, v48 row_ror:8 {DPP}\nv_cvt_pk_bf16_f32 v49, 0, v48")
        self.poll(loads, range(52, 58) if bf else range(48, 60), red, (48, 48), tag=tag, shadow=shadow)

    def gu_stage(self):
        A = self.A
        A(f"s_lshr_b32 s{sA}, s{sV}, 2\ns_lshl_b32 s{sA}, s{sA}, 13\ns_add_u32 s{sA}, s{sA}, {L_WG}")
        self.tr_addr(35, sA)
        A(f"s_and_b32 s{sA}, s{sV}, 3\ns_lshl_b32 s{sA}, s{sA}, 5\nv_xor_b32 v35, s{sA}, v35")
        if self.o['defer']:
            l = self.lab("gw"); A(f"s_cmp_eq_u32 s{sP}, 0\ns_cbranch_scc1 {l}"); self.wfrags(12, 35, 2); self.end(l)
        else: self.wfrags(12, 35, 2)
        self.x_gather_pre(RX)
        self.xa_addr()
        self.region(sC, RG)
        A(f"""s_mul_i32 s{sA}, s{sSIG}, {GSL}
        s_add_u32 s{sA}, s{sA}, s{sC}
        s_lshl_b32 s{sB}, s{sV}, {7 if self.o['gbf'] else 8}
        s_add_u32 s{sB}, s{sB}, s{sA}
        v_lshl_add_u32 v32, v0, {3 if self.o['gbf'] else 4}, s{sB}
        s_lshl_b32 s{sB}, s{sV}, 6
        s_add_u32 s{sB}, s{sB}, s{sA}
        v_lshl_add_u32 v34, v0, 2, s{sB}
        v_lshrrev_b32 v1, 4, v0
        s_add_u32 s{sA}, s{sA}, 2560
        v_lshl_add_u32 v33, v1, 4, s{sA}""")
        self.sync(self.o['sync_x'])
        self.x_gather('x', self.down_pre)
        A(f"""v_add_f32 v{vXR}, v{vXR}, v49
        v_cvt_pk_bf16_f32 v{vXR}, 0, v{vXR}
        ds_write_b16_d16_hi v29, v{vXR} offset:{L_XA}
        s_waitcnt lgkmcnt(0)""")
        self.stamp(7)
        self.barrier('X')
        if self.o['defer']:
            l = self.pass0(); self.wfrags(12, 35, 2); self.end(l)
        def store():
            if self.o['gbf']:
                A("v_cvt_pk_bf16_f32 v52, v48, v49\nv_cvt_pk_bf16_f32 v53, v50, v51")
                self.exec_mask(0xffff)
                self.stores(f"buffer_store_dwordx2 v[52:53], v32, {srd(SWS)}, 0 offen{{f}}", True, 'X')
            else:
                self.exec_mask(0xffff)
                self.stores(f"buffer_store_dwordx4 v[48:51], v32, {srd(SWS)}, 0 offen{{f}}", True, 'X')
        self.mm_with_gram("v_mfma_f32_16x16x32_bf16 v[48:51], v[4:7], v[12:15], 0", "v_mfma_f32_16x16x32_bf16 v[48:51], v[8:11], v[16:19], v[48:51]", store)
        l = self.pass0()
        self.exec_mask(0xffff0000)
        self.stores(f"buffer_store_dword v48, v34, {srd(SWS)}, 0 offen offset:{2048-64}{{f}}", True)
        self.end(l)
        self.exec_full()
        self.stamp(8)

    def down_wpre(self):
        l = self.role(R_LT4); self.wfrags(20, 47, 2); self.end(l)
    def down_pre(self):
        A = self.A
        A(f"s_mov_b32 s{sA}, {L_WD}")
        self.tr_addr(47, sA)
        A(f"s_lshl_b32 s{sA}, s{sV}, 5\nv_xor_b32 v47, s{sA}, v47")
        self.afrag_addr(78, HS); self.pub_addr(79, RY)
        self.region(sD, RG)
        A(f"""s_mul_i32 s{sC}, s{sRI}, 10
        s_lshl_b32 s{sA}, s{sX}, 5
        s_add_u32 s{sC}, s{sC}, s{sA}
        s_mul_i32 s{sC}, s{sC}, {GSL}
        s_add_u32 s{sC}, s{sC}, s{sD}
        v_lshrrev_b32 v1, 4, v0
        v_mul_u32_u24 v3, {GSL}, v1
        v_add_u32 v3, s{sC}, v3
        v_bfe_u32 v2, v0, 3, 1
        v_lshlrev_b32 v2, 6, v2
        v_and_or_b32 v2, v0, 7, v2
        s_lshl_b32 s{sA}, s{sV}, 3
        v_add_u32 v2, s{sA}, v2
        v_lshl_add_u32 v72, v2, {3 if self.o['gbf'] else 4}, v3
        v_lshl_add_u32 v74, v2, 2, v3
        v_add_u32 v73, {8*GSL}, v72
        v_add_u32 v75, {8*GSL}, v74
        v_mov_b32 v3, {OOB}
        v_cmp_gt_u32 vcc, 32, v0
        v_cndmask_b32 v73, v3, v73, vcc
        v_cndmask_b32 v75, v3, v75, vcc
        v_and_b32 v2, 15, v0
        v_mul_u32_u24 v76, {GSL}, v2
        v_lshl_add_u32 v76, v1, 4, v76
        v_add_u32 v76, s{sC}, v76
        v_cmp_gt_u32 vcc, 10, v2
        v_cndmask_b32 v76, v3, v76, vcc
        v_mul_u32_u24 v77, {HS}, v1
        v_and_b32 v2, 7, v0
        v_lshl_add_u32 v77, v2, 1, v77
        s_lshl_b32 s{sA}, s{sV}, 4
        v_add_u32 v77, s{sA}, v77
        v_mov_b32 v44, 0
        v_mov_b32 v45, 0
        v_mov_b32 v46, 0""")

    def down_stage(self):
        A = self.A
        self.sync(self.o['sync_g'])
        gb = self.o['gbf']
        def loadsA(): A(f"buffer_load_dwordx4 v[40:43], v76, {srd(SWS)}, 0 offen offset:2560 sc1")
        def loads():
            if gb: A(f"""buffer_load_dwordx2 v[56:57], v72, {srd(SWS)}, 0 offen sc1
            buffer_load_dwordx2 v[58:59], v72, {srd(SWS)}, s{sKG} offen sc1
            buffer_load_dwordx2 v[60:61], v73, {srd(SWS)}, 0 offen sc1""")
            else: A(f"""buffer_load_dwordx4 v[52:55], v72, {srd(SWS)}, 0 offen sc1
            buffer_load_dwordx4 v[56:59], v72, {srd(SWS)}, s{sKG} offen sc1
            buffer_load_dwordx4 v[60:63], v73, {srd(SWS)}, 0 offen sc1""")
            l = self.pass0()
            A(f"""buffer_load_dword v44, v74, {srd(SWS)}, 0 offen offset:2048 sc1
            buffer_load_dword v45, v74, {srd(SWS)}, s{sKG} offen offset:2048 sc1
            buffer_load_dword v46, v75, {srd(SWS)}, 0 offen offset:2048 sc1""")
            self.end(l)
        def red(s1):
            s0 = f"""v_add_f32 v35, v44, v45
            v_add_f32 v35, v35, v46
            v_mov_b32 v36, v35
            v_permlane32_swap_b32 v35, v36
            v_add_f32 v35, v35, v36
            v_mov_b32 v36, v35
            v_permlane16_swap_b32 v35, v36
            v_add_f32 v{vC}, v35, v36""".split('\n')
            s2 = (self.unpack_sum(52, [56, 58, 60]) if gb else [f"v_add_f32 v{52+i}, v{52+i}, v{56+i}" for i in range(4)] + [f"v_add_f32 v{52+i}, v{52+i}, v{60+i}" for i in (0, 2, 1, 3)]) + \
                 self.capture(lambda: self.treduce(52, 53, 54, 55))
            l = self.pass0(); le = self.lab("rv")
            self.mix(s1, s2, s0)
            A(f"s_cbranch_execnz {le}")
            self.end(l)
            self.mix(s1, s2)
            self.end(le)
            A(f"v_fma_f32 v52, -v37, v{vC}, v52\nv_mul_f32 v52, v52, v38\nv_cvt_pk_bf16_f32 v53, 0, v52")
        self.poll(loads, list(range(56, 62) if gb else range(52, 64)) + list(range(40, 47)), red, (52, 64), tag='g', shadow=self.down_wpre,
                  pre=(loadsA, (40, 43), self.red16([40, 41]) + self.lnstats(40, 41, 37, 38, 39) + ["v_add_f32 v64, v42, v43", "v_add_f32 v64, v64, v40"]))
        A(f"""v_mul_f32 v54, s{sLOG2E}, v53
        v_exp_f32 v54, -v54
        v_add_f32 v54, 1.0, v54
        v_rcp_f32 v54, v54
        v_mul_f32 v54, v53, v54
        v_cvt_pk_bf16_f32 v54, 0, v54
        v_mul_f32_dpp v54, v53, v54 row_ror:8 {DPP}""")
        self.exec_mask(0x00ff00ff00ff00ff)
        A(f"v_cvt_pk_bf16_f32 v54, 0, v54\nds_write_b16_d16_hi v77, v54 offset:{L_HA}")
        self.exec_full()
        A("s_waitcnt lgkmcnt(0)")
        self.stamp(9)
        self.barrier('G')
        l = self.role(R_LT4)
        A(f"""ds_read_b128 v[4:7], v78 offset:{L_HA}
        ds_read_b128 v[8:11], v78 offset:{L_HA+64}
        s_waitcnt lgkmcnt(1)
        v_mfma_f32_16x16x32_bf16 v[68:71], v[4:7], v[20:23], 0
        s_waitcnt lgkmcnt(0)
        v_mfma_f32_16x16x32_bf16 v[68:71], v[8:11], v[24:27], v[68:71]""")
        self.pub_store(79, 'G')
        self.end(l)
        self.stamp(10)
        self.mix(self.red16([42, 43]))
        A(f"""v_fma_f32 v42, -v37, v43, v42
        v_mul_f32 v42, v42, v38
        v_cvt_pk_bf16_f32 v42, 0, v42
        v_mul_f32 v42, s{sLOG2E}, v42
        v_exp_f32 v42, -v42
        v_sub_f32 v{vXN}, v{vXR}, v37
        v_add_f32 v42, 1.0, v42
        v_rcp_f32 v42, v42
        v_cvt_pk_bf16_f32 v{vXN}, 0, v{vXN}
        v_cvt_pk_bf16_f32 v{vSG}, 0, v42
        v_mul_f32 v{vXN}, v{vXN}, v38
        v_cvt_pk_bf16_f32 v{vXN}, 0, v{vXN}""")

    def y_finish(self):
        self.A(f"""v_mul_f32 v49, v49, v{vSG}
        v_cvt_pk_bf16_f32 v49, 0, v49
        v_add_f32 v49, v{vXN}, v49
        v_cvt_pk_bf16_f32 v49, 0, v49
        v_add_f32 v{vXR}, v{vXR}, v49
        v_cvt_pk_bf16_f32 v{vXR}, 0, v{vXR}""")

    def qg_addr(self, extra):
        self.A(f"""s_lshr_b32 s{sA}, s{sT}, 3
        s_mul_i32 s{sA}, s{sA}, 3
        s_and_b32 s{sB}, s{sV}, 3
        s_add_u32 s{sA}, s{sA}, s{sB}
        s_lshr_b32 s{sB}, s{sA}, 2
        s_mul_i32 s{sB}, s{sB}, 10
        s_lshl_b32 s{sC}, s{sX}, 5
        s_add_u32 s{sB}, s{sB}, s{sC}
        s_mul_i32 s{sB}, s{sB}, {QSL}
        s_add_u32 s{sB}, s{sB}, {RQ[1]}
        s_and_b32 s{sA}, s{sA}, 3
        s_lshl_b32 s{sA}, s{sA}, 8
        s_add_u32 s{sA}, s{sA}, s{sB}
        s_add_u32 s{sA}, s{sA}, {extra}
        v_lshrrev_b32 v1, 4, v0
        v_and_b32 v2, 15, v0
        v_mul_u32_u24 v66, {QSL}, v1
        v_lshl_add_u32 v66, v2, 4, v66
        v_add_u32 v66, s{sA}, v66
        v_add_u32 v67, {8*QSL}, v66
        v_mov_b32 v3, {OOB}
        v_cmp_gt_u32 vcc, 32, v0
        v_cndmask_b32 v67, v3, v67, vcc
        v_lshlrev_b32 v70, 4, v2
        v_lshl_add_u32 v70, v1, 2, v70
        s_and_b32 s{sA}, s{sV}, 3
        s_lshl_b32 s{sA}, s{sA}, 8
        v_add_u32 v70, s{sA}, v70""")
    def cq_gather(self, idle, shadow=None, wait0=0):
        A = self.A
        l = self.role(R_456)
        self.qg_addr("4224")
        def loads(): A(f"""buffer_load_dwordx4 v[12:15], v66, {srd(SWS)}, 0 offen sc1
        buffer_load_dwordx4 v[16:19], v66, {srd(SWS)}, s{sKQ} offen sc1
        buffer_load_dwordx4 v[20:23], v67, {srd(SWS)}, 0 offen sc1""")
        def red():
            for i in range(4): A(f"v_add_f32 v{12+i}, v{12+i}, v{16+i}")
            for i in range(4): A(f"v_add_f32 v{12+i}, v{12+i}, v{20+i}")
            self.treduce(12, 13, 14, 15)
        self.poll(loads, range(12, 24), red, (12, 12), idle=idle, shadow=shadow, wait0=wait0)
        A(f"ds_write_b32 v70, v12 offset:{L_CQ}")
        self.end(l)
    def qg_pre(self):
        A = self.A
        l = self.role(R_456)
        A(f"s_bfe_u32 s{sD}, s{sT}, 0x20001\ns_lshl_b32 s{sF}, s{sD}, 10")
        self.qg_addr(f"s{sF}")
        A(f"""v_mul_u32_u24 v68, {QSL}, v2
        s_lshl_b32 s{sD}, s{sD}, 4
        s_add_u32 s{sD}, s{sD}, s{sB}
        s_add_u32 s{sD}, s{sD}, 4096
        v_add_u32 v68, s{sD}, v68
        v_cmp_gt_u32 vcc, 10, v2
        v_cndmask_b32 v68, v3, v68, vcc
        ds_read_b32 v70, v70 offset:{L_CQ}""")
        self.q_lds_addr(69)
        A(f"s_lshr_b32 s{sA}, s{sA}, 1\nv_add_u32 v69, s{sA}, v69")
        self.end(l)
    def prewarm_o1(self):
        self.mem(f"""v_lshlrev_b32 v1, 4, v0
        s_mul_i32 s{sA}, s{sSIG}, {OSL}
        s_add_u32 s{sA}, s{sA}, {RO[1]}
        s_mov_b32 exec_hi, 0xffffff
        buffer_load_dwordx4 v[60:63], v1, {srd(SWS)}, s{sA} offen sc1
        s_mov_b32 exec_hi, -1""")

    def q_stage_and_final(self):
        A = self.A
        A(f"s_cmp_eq_u32 s{sP}, 1\ns_cbranch_scc1 L_final")
        if self.o['prewarm']:
            l = self.role(R_GE4); la = self.lab("pw"); lb = self.lab("pw"); l3 = self.lab("nm")
            A(f"""s_cbranch_execz {l3}
            v_lshlrev_b32 v1, 4, v0
            s_cmp_ge_u32 s{sV}, 6
            s_cbranch_scc1 {la}
            s_and_b32 s{sB}, s{sV}, 1
            s_lshl_b32 s{sB}, s{sB}, 11
            s_mul_i32 s{sA}, s{sSIG}, {QSL}
            s_add_u32 s{sA}, s{sA}, {RQ[1]}
            s_add_u32 s{sB}, s{sA}, s{sB}
            buffer_load_dwordx4 v[60:63], v1, {srd(SWS)}, s{sB} offen sc1
            buffer_load_dwordx4 v[60:63], v1, {srd(SWS)}, s{sB} offen offset:1024 sc1
            s_add_u32 s{sA}, s{sA}, 4096
            s_mov_b64 exec, 0xff
            buffer_load_dwordx4 v[60:63], v1, {srd(SWS)}, s{sA} offen sc1
            s_branch {lb}
            {la}:
            s_mul_i32 s{sA}, s{sSIG}, {GSL}
            s_add_u32 s{sA}, s{sA}, {RG[1]}
            s_cmp_eq_u32 s{sV}, 6
            s_cselect_b32 s{sB}, 0, 0x400
            s_add_u32 s{sB}, s{sB}, s{sA}
            buffer_load_dwordx4 v[60:63], v1, {srd(SWS)}, s{sB} offen sc1
            s_add_u32 s{sA}, s{sA}, 2560
            s_mul_i32 s{sB}, s{sSIG}, {OSL}
            s_add_u32 s{sB}, s{sB}, {RO[1]}
            s_cmp_eq_u32 s{sV}, 6
            s_cselect_b32 s{sA}, s{sA}, s{sB}
            s_cselect_b32 exec_lo, 0xff, -1
            s_cselect_b32 exec_hi, 0, 0xffffff
            buffer_load_dwordx4 v[60:63], v1, {srd(SWS)}, s{sA} offen sc1
            {lb}:
            s_mov_b64 exec, -1""")
            self.end(l3); self.end(l)
        A(f"s_lshr_b32 s{sA}, s{sV}, 1\ns_lshl_b32 s{sA}, s{sA}, 13\ns_add_u32 s{sA}, s{sA}, {L_WQ}")
        self.tr_addr(34, sA)
        A(f"s_and_b32 s{sA}, s{sV}, 1\ns_lshl_b32 s{sA}, s{sA}, 6\nv_xor_b32 v34, s{sA}, v34\nv_xor_b32 v35, 32, v34")
        self.wfrags(12, 34, 2); self.wfrags(20, 35, 2)
        self.x_gather_pre(RY)
        self.xa_addr()
        A(f"""v_and_b32 v1, 15, v0
        v_lshlrev_b32 v32, 10, v1
        v_lshrrev_b32 v1, 4, v0
        v_lshl_add_u32 v32, v1, 4, v32
        s_mul_i32 s{sB}, s{sSIG}, {QSL}
        s_add_u32 s{sB}, s{sB}, {RQ[1]}
        s_lshl_b32 s{sA}, s{sV}, 7
        s_add_u32 s{sA}, s{sA}, s{sB}
        v_add_u32 v32, s{sA}, v32
        s_add_u32 s{sB}, s{sB}, 4096
        v_lshl_add_u32 v33, v1, 4, s{sB}""")
        self.sync(self.o['sync_y'])
        self.x_gather('y', lambda: (self.attn_pre(), self.qg_pre()))
        self.y_finish()
        A(f"ds_write_b16_d16_hi v29, v{vXR} offset:{L_XA}\ns_waitcnt lgkmcnt(0)")
        self.stamp(11)
        self.barrier('Y')
        def store():
            self.exec_mask(0x000f000f000f000f)
            self.stores(f"buffer_store_dwordx4 v[48:51], v32, {srd(SWS)}, 0 offen{{f}}\nbuffer_store_dwordx4 v[52:55], v32, {srd(SWS)}, 0 offen offset:64{{f}}", True, 'Y')
            self.exec_full()
        self.mm_with_gram("v_mfma_f32_16x16x32_bf16 v[48:51], v[12:15], v[4:7], 0\nv_mfma_f32_16x16x32_bf16 v[52:55], v[20:23], v[4:7], 0",
                          "v_mfma_f32_16x16x32_bf16 v[48:51], v[16:19], v[8:11], v[48:51]\nv_mfma_f32_16x16x32_bf16 v[52:55], v[24:27], v[8:11], v[52:55]", store)
        A("L_qwait:")
        l = self.role(R_456)
        self.sync(self.o['sync_q'])
        def loadsA(): A(f"buffer_load_dwordx2 v[16:17], v68, {srd(SWS)}, 0 offen sc1")
        def loads(): A(f"""buffer_load_dwordx4 v[4:7], v66, {srd(SWS)}, 0 offen sc1
        buffer_load_dwordx4 v[8:11], v66, {srd(SWS)}, s{sKQ} offen sc1
        buffer_load_dwordx4 v[12:15], v67, {srd(SWS)}, 0 offen sc1""")
        def red(s1):
            s2 = [f"v_add_f32 v{4+i}, v{4+i}, v{8+i}" for i in range(4)] + [f"v_add_f32 v{4+i}, v{4+i}, v{12+i}" for i in (0, 2, 1, 3)] + self.capture(lambda: self.treduce(4, 5, 6, 7))
            self.mix(s1, s2)
            A("v_fma_f32 v4, -v18, v70, v4\nv_mul_f32 v4, v4, v19\nv_cvt_pk_bf16_f32 v5, 0, v4")
        self.poll(loads, range(4, 18), red, (4, 16), idle=True, tag='q', shadow=self.attn_zero, pre=(loadsA, (16, 17), self.red16([16, 17]) + self.lnstats(16, 17, 18, 19, 21)))
        le = self.lab("qz")
        A(f"ds_write_b16_d16_hi v69, v5 offset:{L_QL}\ns_waitcnt lgkmcnt(0)\ns_cbranch_execnz {le}")
        self.end(l)
        self.attn_zero()
        self.end(le)
        A(f"s_mov_b32 s{sP}, 1")
        if self.o['dry']: A(f"s_cmp_eq_u32 s{sDRY}, 1\ns_cbranch_scc1 L_final_body")
        self.barrier('Q')
        A("s_branch L_attn")
        A(f"L_idle:\ns_cmp_eq_u32 s{sP}, 0\ns_cbranch_scc0 L_done")
        if self.o['prewarm']:
            l = self.role(R_7); self.prewarm_o1(); self.end(l)
        self.cq_gather(True)
        A("s_waitcnt lgkmcnt(0)")
        self.attn_pre(); self.qg_pre()
        A("s_waitcnt lgkmcnt(0)\ns_branch L_qwait")
        A(f"""L_final:
        s_and_b32 s{sA}, s{sT}, 7
        s_cmp_eq_u32 s{sA}, s{sX}
        s_cbranch_scc0 L_done
        s_cmp_lt_u32 s{sT}, 10
        s_cbranch_scc0 L_done
        L_final_body:""")
        self.x_gather_pre(RY); self.xcol_addr(29)
        self.sync(self.o['sync_f'])
        self.x_gather('f', None)
        self.y_finish()
        self.exec_mask(0x00ff00ff00ff00ff)
        self.mem(f"buffer_store_short_d16_hi v{vXR}, v29, {srd(SOUT)}, 0 offen")
        self.exec_full()
        if self.o['dry']: A(f"s_cmp_eq_u32 s{sDRY}, 1\ns_cbranch_scc1 L_stubs")
        A("L_done:")
        if int(self.o['pad']):
            A(f"""L_pad:
            s_memrealtime s[90:91]
            s_waitcnt lgkmcnt(0)
            s_sub_u32 s90, s90, s96
            s_cmp_lt_u32 s90, {int(self.o['pad'])*100}
            s_cbranch_scc1 L_pad""")
        if self.prof: self.stamp(11)
        A("L_end:")
        if self.o['t2']: A("s_waitcnt vmcnt(0)\ns_memrealtime s[68:69]\ns_mov_b32 s64, s96")
        if self.o['fine'] or self.o['t2']: A("s_waitcnt lgkmcnt(0)")
        if self.prof or self.o['fine'] or self.o['t2']:
            A(f"""s_mov_b64 exec, -1
            s_lshl_b32 s{sA}, s2, 3
            s_add_u32 s{sA}, s{sA}, s{sV}
            s_lshl_b32 s{sA}, s{sA}, 7
            s_add_u32 s{sA}, s{sA}, {STAMP}
            v_mov_b32 v1, 0""")
            for i in range(24): A(f"v_mov_b32 v{4+i}, s{sST+i}")
            A(f"v_mov_b32 v28, s{sFAST}\nv_mov_b32 v29, s{sTO}\nv_mov_b32 v30, 0\nv_mov_b32 v31, 0\ns_mov_b64 exec, 1")
            for i in range(7): A(f"buffer_store_dwordx4 {vr(4+4*i)}, v1, {srd(SWS)}, s{sA} offen offset:{16*i}")
        A("L_exit:\ns_endpgm\nL_stubs:")
        for st in self.stubs: A(st)
        A("s_branch L_dry_ret" if self.o['dry'] else "s_endpgm")

    def build(self):
        self.prologue(); self.startup(); self.attention(); self.wo_stage(); self.gu_stage(); self.down_stage(); self.q_stage_and_final()
        i = 0
        while i < len(self.tail): self.A(self.tail[i]); i += 1
        body, nn = resolve(self.L)
        hdr = open('interleave_layers__sliding_block_cached__moe_arch_mod__decode.s.ref').read().split('\n')
        hl = [l for l in hdr if l.startswith(';') and '@launch' not in l]
        hl = hl[:hl.index([l for l in hl if 'Override launch' in l][0])]
        out = hl + [f"; @launch grid=(256,1,1) block=(512,1,1) lds={LDS_SIZE}",
                    '.amdgcn_target "amdgcn-amd-amdhsa--gfx950"', ".text", f".globl {NAME}", ".p2align 8", f".type {NAME},@function", f"{NAME}:"]
        out += [("" if l.endswith(':') else "    ") + l for l in body]
        out += ['.section .rodata,"a"', ".p2align 6", f".amdhsa_kernel {NAME}",
                "  .amdhsa_next_free_vgpr 256", "  .amdhsa_next_free_sgpr 102", "  .amdhsa_accum_offset 160",
                "  .amdhsa_group_segment_fixed_size 0", "  .amdhsa_kernarg_size 104", "  .amdhsa_user_sgpr_count 2",
                "  .amdhsa_user_sgpr_kernarg_segment_ptr 1", "  .amdhsa_system_sgpr_workgroup_id_x 1",
                "  .amdhsa_float_denorm_mode_32 3", ".end_amdhsa_kernel"]
        return "\n".join(out) + "\n", nn

if __name__ == "__main__":
    path = sys.argv[1]
    opts = {}; prof = False
    for a in sys.argv[2:]:
        if a == 'prof': prof = True
        else:
            k, v = a.split('=')
            opts[k] = {'True': True, 'False': False}.get(v, v)
    s, nn = G(prof, opts).build()
    open(path, 'w').write(s)
    print("wrote", path, len(s.split('\n')), "lines, nops inserted:", nn)
```

```python
import sys
from asmlib import resolve

NAME = "interleave_layers__sliding_block_cached__moe_arch_mod__decode_kernel"

OSL, GSL, QSL, Q0SL, XSZ = 896, 2688, 5248, 4096, 245760
RO = [0, 256 * OSL]
RX = [2 * 256 * OSL, 2 * 256 * OSL + XSZ]
RY = [RX[1] + XSZ, RX[1] + 2 * XSZ]
RG = [RY[1] + XSZ, RY[1] + XSZ + 256 * GSL]
RQ = [RG[1] + 256 * GSL, RG[1] + 256 * GSL + 256 * Q0SL]
RF = RQ[1] + 256 * QSL
RE = RF + 32768
WS_END = RE + 2048
STAMP = WS_END
WS_SIZE = WS_END + 256 * 8 * 128
OOB = 0x7ff00000
L_OC = 0
L_ML = L_OC + 12288
L_XA = L_ML + 64; XS = 144
L_HA = L_XA + 6 * XS; HS = 192
L_OA = L_HA + 4 * HS; OS = 576
L_QL = L_OA + 4 * OS
L_FL = L_QL + 400
L_CQ = L_FL + 32
L_CS = L_CQ + 768
L_X0 = L_CS + 1024
L_WD = (L_X0 + 5120 + 127) // 128 * 128
L_WG = L_WD + 8192
L_WU = L_WG + 8192
L_WO = L_WU + 8192
L_WQ = L_WO + 32768
L_VP = L_WQ + 32768
LDS_SIZE = L_VP + 8 * 6144
assert LDS_SIZE <= 163840
sW, sV, sX, sT, sP, sDRY = 2, 3, 4, 5, 6, 7
SK, SVV, SWS, SWQ, SWO, SWG, SWU, SWD, SX0, SWR, SOUT = range(8, 52, 4)
sAI, sRI, sSIG, sSLOT = 52, 53, 54, 55
sFAST, sROLE, sTO, sEPS = 56, 57, 58, 59
sFULL = 60
sA, sB, sC, sD, sE, sF = 62, 63, 88, 89, 90, 91
sM = 92
sLOG2E, sSCALE, sINVN = 93, 94, 95
sG, sXCC, sSAVE, sTAG = 98, 99, 100, 101
sST = 64
R_LT4, R_GE4, R_456, R_7, R_6, R_GR = range(6)
sLO, sHI = 44, 45
sK1, sK2, sKG, sKQ = 40, 41, 42, 43
vXR, vXN, vSG, vC = 80, 81, 82, 83
VBASE = 88
ODD = 0xAAAAAAAAAAAAAAAA

def srd(b): return f"s[{b}:{b+3}]"
def vr(a, n=4): return f"v[{a}:{a+n-1}]" if n > 1 else f"v{a}"
def ar(a, n=4): return f"a[{a}:{a+n-1}]"
DPP = "row_mask:0xf bank_mask:0xf"

class G:
    def __init__(self, prof=False, opts=None):
        self.L = []; self.tail = []; self.stubs = []; self.n = 0; self.prof = prof
        self.o = dict(dry=True, sync_o='sleep0', sync_x='acklo0', sync_g='sleep0', sync_y='acklo0', sync_q='sleep0', sync_f='acklo', fast=True,
                      clear='sc1', wflag='plain', bsleep=8, pad=0, probe=-1, probep=0, kvflag='nt', defer=True, cwo='10,10,10,2', cgud='4,2,2,0', csplit=True, prewarm=True, two='oqg', prio=4, dwo='gud', dx='', noq0=0, al=8, alo=0, clr='all', tq='', asl=0, pwo=True, t2=False, xbf=False, gbf=False, qbf=False, quick=False, gramw=3, fine='', finep=-1, finei='s_memtime', ldi='sc1', ldx='sc1', stx='sc1', sti='plain', wb=0, q0st='sc1', q0ld='sc1')
        self.o.update(opts or {})
        for k in ('dwo', 'dx'): self.o[k] = self.o[k].replace('-', '')
        if not self.o['defer']: self.o['dwo'] = self.o['dx'] = ''
        self.o['defer'] = bool(set(self.o['dwo']) & set('gu'))
    def A(self, s):
        for l in s.split('\n'):
            l = l.strip()
            if l: self.L.append(l)
    def lab(self, p):
        self.n += 1; return f"L_{p}_{self.n}"
    def exec_mask(self, m):
        self.A(f"s_and_b32 exec_lo, s{sFULL}, 0x{m & 0xffffffff:x}\ns_and_b32 exec_hi, s{sFULL}, 0x{m >> 32:x}")
    def exec_full(self): self.A(f"s_mov_b64 exec, s[{sFULL}:{sFULL+1}]")
    def barrier(self, tag='z'):
        self.fs(tag + 'a')
        l = self.lab("nb"); self.A(f"s_cbranch_execz {l}\ns_barrier\n{l}:")
        self.fs(tag + 'b')
    def role(self, bit):
        l = self.lab("role"); self.A(f"s_bitcmp1_b32 s{sROLE}, {bit}\ns_cbranch_scc0 {l}"); return l
    def pass0(self):
        l = self.lab("p0"); self.A(f"s_cmp_eq_u32 s{sP}, 0\ns_cbranch_scc0 {l}"); return l
    def end(self, l): self.A(f"{l}:")
    def mem(self, lines):
        l = self.lab("nm"); self.A(f"s_cbranch_execz {l}"); self.A(lines); self.A(f"{l}:")
    def capture(self, fn):
        save = self.L; self.L = []; fn(); out = self.L; self.L = save; return out
    def stores(self, lines, intra, tag='z'):
        self.fs(tag + 's')
        if intra and self.o['fast']:
            l1 = self.lab("st"); l2 = self.lab("st")
            self.A(f"s_cbranch_execz {l2}\ns_cmp_eq_u32 s{sFAST}, 0\ns_cbranch_scc1 {l1}")
            self.A(lines.format(f=' ' + self.o['sti'].replace('plain', '').replace('_', ' '))); self.A(f"{l2}:")
            self.tail.append(f"{l1}:\n" + lines.format(f=" sc1") + f"\ns_branch {l2}")
        else:
            self.mem(lines.format(f=' ' + self.o['stx'].replace('_', ' ')))
    def poll(self, loads0, regs, reduce, chk, idle=False, tag='z', shadow=None, wait0=0, pre=None):
        A = self.A
        fl = ' ' + self.o['ldx' if tag in 'xyf' else 'ldi'].replace('_', ' ')
        def loads():
            for x in self.capture(loads0): A(x[:-4] + fl if x.endswith(' sc1') else x)
        lw = self.lab("pw"); lr = self.lab("retry"); ls = self.lab("slow"); lo = self.lab("ok"); l2 = self.lab("slow")
        self.fs(tag + '0')
        if pre and tag not in self.o['two']:
            l0, r0, p0 = loads, reduce, pre
            loads = lambda: (p0[0](), l0()); reduce = lambda: r0(p0[2]); pre = None
        elif pre:
            la = self.lab("pa"); lb = self.lab("pb"); l = self.lab("nm")
            A(f"s_cbranch_execz {l}"); pre[0](); A(f"{l}:\ns_movk_i32 s{sG}, 0x100")
            if shadow: shadow()
            shadow = lambda: self.mix(pre[2])
            A(f"s_waitcnt vmcnt(0)\nv_cmp_u_f32 vcc, v{pre[1][0]}, v{pre[1][1]}\ns_cbranch_vccz {lb}\n{la}:")
            if int(self.o['asl']): A(f"s_sleep {self.o['asl']}")
            pre[0]()
            A(f"s_sub_u32 s{sG}, s{sG}, 1\ns_waitcnt vmcnt(0)\ns_cbranch_scc1 {lb}\nv_cmp_u_f32 vcc, v{pre[1][0]}, v{pre[1][1]}\ns_cbranch_vccnz {la}\n{lb}:")
            self.fs(tag + '3')
            r0 = reduce; reduce = lambda: r0([])
        l = self.lab("nm"); A(f"s_cbranch_execz {l}"); loads(); A(f"{l}:\ns_movk_i32 s{sG}, 0x100")
        self.lskip = self.lab("nw")
        lskip = self.lskip
        if shadow: shadow()
        if wait0:
            l = self.lab("w0"); A(f"s_waitcnt vmcnt({wait0})\ns_branch {l}\n{lw}:\ns_waitcnt vmcnt(0)\n{l}:")
        else: A(f"{lw}:\ns_waitcnt vmcnt(0)")
        A(f"{lskip}:")
        self.fs(tag + '1')
        reduce()
        A(f"v_cmp_u_f32 vcc, v{chk[0]}, v{chk[1]}\ns_cbranch_vccnz {lr}\n{lo}:")
        self.fs(tag + '2')
        if self.o['fine'].split(',')[-1] == tag + 'n': A(f"s_sub_u32 s86, 0x101, s{sG}")
        def stub():
            A(f"{lr}:")
            if idle:
                l = self.lab("idl"); A(f"s_cmp_lt_u32 s{sT}, 30\ns_cbranch_scc1 {l}\ns_sleep 4\n{l}:")
            A(f"s_sub_u32 s{sG}, s{sG}, 1\ns_cbranch_scc1 {ls}")
            if self.prof: A(f"s_sub_u32 s{sTO}, s{sTO}, 1")
            l = self.lab("nm"); A(f"s_cbranch_execz {l}"); loads(); A(f"s_branch {lw}\n{l}:")
        self.stubs.append("\n".join(self.capture(stub)))
        def slow():
            A(f"{l2}:\ns_sub_u32 s{sTO}, s{sTO}, 1\ns_cbranch_scc1 L_end\n{ls}:")
            if pre: pre[0]()
            loads(); A("s_waitcnt vmcnt(0)")
            r = list(regs)
            A(f"v_max_u32 v1, v{r[0]}, v{r[1]}"); r = r[2:]
            while r:
                if len(r) >= 2: A(f"v_max3_u32 v1, v1, v{r[0]}, v{r[1]}"); r = r[2:]
                else: A(f"v_max_u32 v1, v1, v{r[0]}"); r = []
            A(f"v_cmp_eq_u32 vcc, -1, v1\ns_cbranch_vccnz {l2}")
            if pre: self.mix(pre[2])
            reduce(); A(f"s_branch {lo}")
        self.tail.append("\n".join(self.capture(slow)))
    def stamp(self, i, both=True):
        if int(self.o['probe']) == i:
            l = self.lab("probe")
            self.A(f"s_cmp_eq_u32 s{sP}, {self.o['probep']}\ns_cbranch_scc0 {l}\ns_cbranch_execz {l}\ns_memrealtime s[96:97]\ns_waitcnt lgkmcnt(0)\n{l}:")
        if not self.prof: return
        self.A("s_memrealtime s[96:97]\ns_waitcnt lgkmcnt(0)")
        if both:
            self.A(f"s_cmp_eq_u32 s{sP}, 0\ns_cselect_b32 s{sST+i}, s96, s{sST+i}\ns_cselect_b32 s{sST+12+i}, s{sST+12+i}, s96")
        else:
            self.A(f"s_mov_b32 s{sST+i}, s96")
    def fs(self, name):
        names = self.o['fine'].split(',') if self.o['fine'] else []
        if name in names:
            i = names.index(name)
            if int(self.o['finep']) >= 0:
                l = self.lab("fs"); self.A(f"s_cmp_eq_u32 s{sP}, {self.o['finep']}\ns_cbranch_scc0 {l}\n{self.o['finei']} s[{64+2*i}:{65+2*i}]\n{l}:")
            else: self.A(f"{self.o['finei']} s[{64+2*i}:{65+2*i}]")
    def sync(self, kind, R=None):
        if kind.startswith('sent'):
            A = self.A; w = int(kind[4:5]); off = int(kind[5:] or 1008)
            l = self.lab("sn"); la = self.lab("sna"); lb = self.lab("snb")
            A(f"s_cmp_eq_u32 s{sV}, {w}\ns_cbranch_scc0 {l}")
            self.region(sC, R)
            A(f"""s_lshl_b32 s{sA}, s{sAI}, 10
            s_add_u32 s{sA}, s{sA}, s{sC}
            v_min_u32 v1, 23, v0
            v_mul_u32_u24 v1, 10240, v1
            s_movk_i32 s{sG}, 0x200
            s_mov_b32 exec_hi, 0
            {la}:
            buffer_load_dword v2, v1, {srd(SWS)}, s{sA} offen offset:{off} sc1
            s_sub_u32 s{sG}, s{sG}, 1
            s_waitcnt vmcnt(0)
            s_cbranch_scc1 {lb}
            v_cmp_eq_u32 vcc, -1, v2
            s_cbranch_vccnz {la}
            {lb}:
            s_mov_b32 exec_hi, -1
            {l}:""")
            self.barrier()
            return
        if kind == 'ack': self.A("s_waitcnt vmcnt(0)"); self.barrier()
        elif kind.startswith('acklo'):
            l = self.role(R_LT4); self.A("s_waitcnt vmcnt(0)"); self.end(l); self.barrier()
            if kind[5:] and int(kind[5:]): self.A(f"s_sleep {int(kind[5:])}")
        elif kind.startswith('sleep'):
            if int(kind[5:]): self.A(f"s_sleep {int(kind[5:])}")
        elif kind.startswith('acks'): self.A("s_waitcnt vmcnt(0)"); self.barrier(); self.A(f"s_sleep {int(kind[4:])}")
    def treduce(self, r0, r1, r2, r3):
        self.A(f"""v_permlane32_swap_b32 v{r0}, v{r2}
        v_permlane32_swap_b32 v{r1}, v{r3}
        v_add_f32 v{r0}, v{r0}, v{r2}
        v_add_f32 v{r1}, v{r1}, v{r3}
        v_permlane16_swap_b32 v{r0}, v{r1}
        v_add_f32 v{r0}, v{r0}, v{r1}""")
    def red16(self, regs):
        return [f"v_add_f32_dpp v{r}, v{r}, v{r} {perm} {DPP}" for perm in ("quad_perm:[1,0,3,2]", "quad_perm:[2,3,0,1]", "row_half_mirror", "row_mirror") for r in regs]
    def lnstats(self, sq, sm, m, rs, t):
        return f"""v_mul_f32 v{sm}, s{sINVN}, v{sm}
        v_mul_f32 v{sq}, s{sINVN}, v{sq}
        v_fma_f32 v{t}, -v{sm}, v{sm}, v{sq}
        v_cvt_pk_bf16_f32 v{m}, 0, v{sm}
        v_max_f32 v{t}, 0, v{t}
        v_cvt_pk_bf16_f32 v{t}, 0, v{t}
        v_add_f32 v{t}, s{sEPS}, v{t}
        v_cvt_pk_bf16_f32 v{t}, 0, v{t}
        v_sqrt_f32 v{t}, v{t}
        v_cvt_pk_bf16_f32 v{t}, 0, v{t}
        v_rcp_f32 v{rs}, v{t}""".split('\n')
    def mix(self, *streams):
        streams = [list(s) for s in streams]
        while any(streams):
            for s in streams:
                if s: self.A(s.pop(0))
    def tr_addr(self, d, sbase):
        self.A(f"""v_lshrrev_b32 v1, 4, v0
        v_bfe_u32 v2, v0, 2, 2
        v_lshl_add_u32 v{d}, v1, 3, v2
        v_lshlrev_b32 v{d}, 7, v{d}
        v_and_b32 v2, 3, v0
        v_lshl_add_u32 v{d}, v2, 3, v{d}
        v_bfe_u32 v2, v0, 3, 2
        v_lshl_add_u32 v{d}, v2, 5, v{d}
        v_add_u32 v{d}, s{sbase}, v{d}""")
    def wfrags(self, dst, addr, steps, off=0):
        for s in range(steps):
            self.A(f"ds_read_b64_tr_b16 {vr(dst+4*s,2)}, v{addr} offset:{off+s*4096}\nds_read_b64_tr_b16 {vr(dst+4*s+2,2)}, v{addr} offset:{off+s*4096+512}")
    def dma_addr(self, d, rstride):
        self.A(f"""v_lshrrev_b32 v1, 3, v0
        v_mul_u32_u24 v{d}, {rstride}, v1
        v_bfe_u32 v1, v0, 4, 1
        v_bfe_u32 v2, v0, 1, 2
        v_xor_b32 v1, v1, v2
        v_lshl_add_u32 v{d}, v1, 5, v{d}
        v_and_b32 v1, 1, v0
        v_lshl_add_u32 v{d}, v1, 4, v{d}
        v_xor_b32 v{d+1}, 64, v{d}""")
    def dma(self, srdb, vaddr, n, rstride, lds0, ssrc, slds):
        wf = self.o['wflag'].replace('plain', '')
        for i in range(n):
            self.A(f"s_add_u32 m0, s{slds}, {lds0 + i*1024}\ns_add_u32 s{sA}, s{ssrc}, {i*8*rstride}\nbuffer_load_dwordx4 v{vaddr + (i&1)}, {srd(srdb)}, s{sA} offen {wf} lds")

    def mk(self, b, p, off, size):
        A = self.A
        if off is None: A(f"s_mov_b32 s{b}, s{p}\ns_mov_b32 s{b+1}, s{p+1}\ns_mov_b32 s{b+2}, {size}")
        else:
            A(f"s_add_u32 s{b}, s{p}, s{off}\ns_addc_u32 s{b+1}, s{p+1}, 0")
            if isinstance(size, int): A(f"s_mov_b32 s{b+2}, {size}")
            else: A(f"s_sub_u32 s{b+2}, {size[0]}, s{off}")
        A(f"s_mov_b32 s{b+3}, 0x20000")
    def prologue(self):
        A = self.A
        A("s_cmp_ge_u32 s2, 256\ns_cbranch_scc1 L_exit")
        if int(self.o['pad']) or self.prof or self.o['t2']: A("s_memrealtime s[96:97]")
        A(f"""s_load_dwordx16 s[64:79], s[0:1], 0
        s_load_dwordx8 s[80:87], s[0:1], 64
        s_load_dwordx2 s[88:89], s[0:1], 96
        v_lshrrev_b32 v1, 6, v0
        v_and_b32 v0, 63, v0
        v_readfirstlane_b32 s{sV}, v1
        v_mov_b32 v4, 0
        v_mov_b32 v5, 0
        v_mov_b32 v6, 0
        v_mov_b32 v7, 0
        v_lshlrev_b32 v1, 4, v0
        s_mov_b64 exec, 7
        ds_write_b128 v1, v[4:7] offset:{L_QL+384}
        s_mov_b64 exec, -1
        s_and_b32 s{sX}, s2, 7
        s_lshr_b32 s{sT}, s2, 3
        s_lshr_b32 s{sA}, s{sT}, 3
        s_lshl_b32 s{sB}, s{sX}, 2
        s_add_u32 s92, s{sA}, s{sB}            ; head
        s_bfe_u32 s{sA}, s{sT}, 0x20001        ; batch
        s_lshl_b32 s{sA}, s{sA}, 5
        s_add_u32 s{sA}, s{sA}, s92
        s_lshl_b32 s{sA}, s{sA}, 12
        s_and_b32 s{sB}, s{sT}, 1
        s_lshl_b32 s{sB}, s{sB}, 9
        s_add_u32 s{sA}, s{sA}, s{sB}
        s_lshl_b32 s{sB}, s{sV}, 6
        s_add_u32 s{sA}, s{sA}, s{sB}
        s_add_u32 s{sA}, s{sA}, 3072
        s_mul_i32 s90, s{sA}, 384
        s_mov_b32 s{sP}, 0
        s_mov_b32 s{sDRY}, 0
        s_mov_b64 s[{sFULL}:{sFULL+1}], -1
        s_mov_b32 s{sTO}, 0x100000
        s_mov_b32 s{sFAST}, 0
        s_mov_b32 s{sLOG2E}, 0x3fb8aa3b
        s_mov_b32 s{sSCALE}, 0x3d93cd3a
        s_mov_b32 s{sINVN}, 0x3acccccd
        s_mov_b32 s{sEPS}, 0x3727c5ac
        s_lshl_b32 s{sSIG}, s{sX}, 5
        s_add_u32 s{sSIG}, s{sSIG}, s{sT}
        s_mul_i32 s{sSLOT}, s{sX}, 30
        s_add_u32 s{sSLOT}, s{sSLOT}, s{sT}
        s_mul_i32 s{sRI}, s{sT}, 26
        s_lshr_b32 s{sRI}, s{sRI}, 8
        s_mul_i32 s{sA}, s{sRI}, 10
        s_sub_u32 s{sAI}, s{sT}, s{sA}
        s_min_u32 s{sRI}, s{sRI}, 2""")
        tab = 0
        for v in range(8):
            tab |= ((v < 4) << R_LT4 | (v >= 4) << R_GE4 | (4 <= v <= 6) << R_456 | (v == 7) << R_7 | (v == 6) << R_6 | (v == int(self.o['gramw'])) << R_GR) << (8 * v)
        A(f"""s_mov_b32 s{sA}, 0x{tab & 0xffffffff:x}
        s_mov_b32 s{sB}, 0x{tab >> 32:x}
        s_lshl_b32 s91, s{sV}, 3
        s_lshr_b64 s[{sA}:{sB}], s[{sA}:{sB}], s91
        s_and_b32 s{sROLE}, s{sA}, 0xff""")
        self.kv_addr()
        A("s_waitcnt lgkmcnt(0)\ns_barrier")
        A(f"s_add_u32 s{sA}, s88, {RE}\ns_addc_u32 s{sB}, s89, 0\ns_load_dword s{sTAG}, s[{sA}:{sB}], 0")
        self.mk(SK, 66, 90, 24576); self.mk(SVV, 68, 90, 24576)
    def other_srds(self):
        A = self.A; mk = self.mk
        mk(SWS, 88, None, WS_SIZE)
        A(f"""s_mul_i32 s{sA}, s{sAI}, {64*12288}
        s_mul_i32 s{sB}, s{sX}, 3
        s_add_u32 s91, s{sB}, s{sRI}            ; P = 3x + r
        s_lshl_b32 s{sB}, s91, 9
        s_add_u32 s{sA}, s{sA}, s{sB}""")
        mk(SWQ, 70, sA, (640 * 6144 * 2,))
        A(f"s_mul_i32 s{sA}, s91, {256*1280}\ns_lshl_b32 s90, s{sAI}, 7\ns_add_u32 s{sA}, s{sA}, s90")
        mk(SWO, 72, sA, (6144 * 640 * 2,))
        A(f"s_mul_i32 s{sA}, s91, {64*1280}\ns_add_u32 s{sA}, s{sA}, s90")
        mk(SWD, 82, sA, (1536 * 640 * 2,))
        A(f"s_mul_i32 s{sA}, s{sAI}, {64*3072}\ns_lshl_b32 s{sB}, s91, 7\ns_add_u32 s{sA}, s{sA}, s{sB}")
        mk(SWG, 78, sA, (640 * 1536 * 2,)); mk(SWU, 80, sA, (640 * 1536 * 2,))
        mk(SX0, 64, None, 5120); mk(SWR, 76, 90, (1280,)); mk(SOUT, 84, None, 5120)
        A(f"s_waitcnt lgkmcnt(0)\ns_add_u32 s{sTAG}, s{sTAG}, 1")
        if self.o['fine']:
            for i in range(24): A(f"s_mov_b32 s{sST+i}, 0")
        if self.prof:
            A(f"s_mov_b32 s{sST}, s96")
            for i in range(1, 24): A(f"s_mov_b32 s{sST+i}, 0")

    def kv_addr(self):
        self.A(f"""v_bfe_u32 v84, v0, 1, 3
        v_mul_u32_u24 v84, 384, v84
        v_lshrrev_b32 v3, 4, v0
        v_lshl_add_u32 v84, v3, 5, v84
        v_and_b32 v3, 1, v0
        v_lshl_add_u32 v84, v3, 4, v84
        v_lshrrev_b32 v85, 5, v0
        v_lshlrev_b32 v85, 3, v85
        v_bfe_u32 v3, v0, 3, 2
        v_add_u32 v85, v85, v3
        v_mul_u32_u24 v85, 384, v85
        v_and_b32 v3, 7, v0
        v_lshl_add_u32 v85, v3, 4, v85""")
    def k_loads(self):
        A = self.A; KF = self.o['kvflag'].replace('plain', '').replace('_', ' ')
        for g in range(8):
            A(f"s_mov_b32 s{sA}, {g*3072}")
            b = 12 * (g & ~1)
            for s, r in enumerate((b + 8 * (g & 1), b + 8 * (g & 1) + 4, b + 16 + 4 * (g & 1))):
                A(f"buffer_load_dwordx4 {ar(r)}, v84, {srd(SK)}, s{sA} offen offset:{s*128} {KF}")
    def v_loads(self):
        A = self.A; KF = self.o['kvflag'].replace('plain', '').replace('_', ' ')
        A(f"s_mul_i32 s{sB}, s{sV}, 6144")
        for S in range(4):
            for f in range(2):
                row = 32 * (S >> 1) + 16 * f + 4 * (S & 1)
                for s in range(3):
                    if S == 0:
                        A(f"s_add_u32 m0, s{sB}, {L_VP + (s*2+f)*1024}\ns_mov_b32 s{sA}, {row*384+s*128}\nbuffer_load_dwordx4 v85, {srd(SVV)}, s{sA} offen {KF} lds")
                    else:
                        if s == 0: A(f"s_mov_b32 s{sA}, {row*384}")
                        A(f"buffer_load_dwordx4 {vr(VBASE+(S-1)*24+s*8+4*f)}, v85, {srd(SVV)}, s{sA} offen offset:{s*128} {KF}")
    def xcol_addr(self, d):
        self.A(f"""v_lshrrev_b32 v1, 4, v0
        v_mul_u32_u24 v{d}, 1280, v1
        v_and_b32 v2, 7, v0
        v_lshl_add_u32 v{d}, v2, 1, v{d}
        s_lshl_b32 s{sA}, s{sAI}, 7
        s_lshl_b32 s{sB}, s{sV}, 4
        s_add_u32 s{sA}, s{sA}, s{sB}
        v_add_u32 v{d}, s{sA}, v{d}""")
    def xres_read(self):
        self.xcol_addr(3)
        self.A(f"v_mov_b32 v{vXR}, 0\nds_read_u16_d16_hi v{vXR}, v3 offset:{L_X0}")
    def lds_spin(self, off, val):
        lw = self.lab("sp"); lr = self.lab("spr")
        self.A(f"""v_mov_b32 v5, {L_FL}
        {lw}:
        ds_read_b32 v4, v5 offset:{off}
        s_waitcnt lgkmcnt(0)
        v_cmp_gt_u32 vcc, {val}, v4
        s_cbranch_vccnz {lr}""")
        self.tail.append(f"{lr}:\ns_sleep 2\ns_sub_u32 s{sTO}, s{sTO}, 1\ns_cbranch_scc1 L_end\ns_branch {lw}")
    def lds_inc(self, off):
        self.A(f"v_mov_b32 v4, {L_FL}\nv_mov_b32 v5, 1\ns_mov_b64 exec, 1\nds_add_u32 v4, v5 offset:{off}\ns_mov_b64 exec, -1")
    def dma_dist(self, cnts, mats):
        A = self.A
        cnts = [int(c) for c in cnts.split(',')]
        pre = [sum(cnts[:i]) for i in range(4)]
        A(f"""s_lshl_b32 s{sA}, s{sV}, 3
        s_mov_b32 s{sB}, 0x{sum(c << (8*i) for i, c in enumerate(cnts)):x}
        s_lshr_b32 s{sD}, s{sB}, s{sA}
        s_and_b32 s{sD}, s{sD}, 0xff
        s_mov_b32 s{sB}, 0x{sum(c << (8*i) for i, c in enumerate(pre)):x}
        s_lshr_b32 s{sF}, s{sB}, s{sA}
        s_and_b32 s{sF}, s{sF}, 0xff
        s_lshl_b32 s{sB}, s{sF}, 10""")
        le = self.lab("dd")
        for i in range(0, max(cnts), 2):
            A(f"s_cmp_gt_u32 s{sD}, {i}\ns_cbranch_scc0 {le}")
            for (sr, va, rs, l0) in mats:
                A(f"s_mul_i32 s{sC}, s{sF}, {8*rs}\ns_add_u32 s{sC}, s{sC}, {i*8*rs}")
                self.dma(sr, va, 2, rs, l0 + i * 1024, sC, sB)
        self.end(le)
    def w_dma_gud(self, u, which='gud'):
        A = self.A
        self.dma_addr(6, 3072); self.dma_addr(8, 1280)
        A(f"s_mul_i32 s{sC}, s{u}, {16*3072}\ns_lshl_b32 s{sB}, s{u}, 11")
        if 'g' in which: self.dma(SWG, 6, 2, 3072, L_WG, sC, sB)
        if 'u' in which: self.dma(SWU, 6, 2, 3072, L_WU, sC, sB)
        A(f"s_mul_i32 s{sC}, s{u}, {16*1280}")
        if 'd' in which: self.dma(SWD, 8, 2, 1280, L_WD, sC, sB)

    def attn_pre(self):
        A = self.A
        A(f"""v_lshrrev_b32 v1, 4, v0
        v_and_b32 v2, 3, v0
        v_lshlrev_b32 v2, 4, v2
        v_lshl_add_u32 v76, v1, 6, v2            ; base1
        v_and_b32 v3, 0x40, v76
        v_add3_u32 v77, v3, v2, 64
        v_add_u32 v77, 192, v77                  ; base2
        v_bfe_u32 v2, v0, 2, 2
        v_mov_b32 v3, 384""")
        for k in range(4): A(f"v_cmp_eq_u32 vcc, {k}, v2\nv_cndmask_b32 v{72+k}, v3, v76, vcc")
        A(f"""v_lshrrev_b32 v1, 5, v0
        v_cmp_eq_u32 vcc, v1, v2
        v_cndmask_b32 v76, v3, v77, vcc
        v_add_u32 v1, 2, v1
        v_cmp_eq_u32 vcc, v1, v2
        v_cndmask_b32 v77, v3, v77, vcc
        v_and_b32 v1, 1, v0
        v_mul_u32_u24 v78, 0xaaaa, v1
        v_add_u32 v78, 0x4444, v78
        v_and_b32 v1, 3, v0
        v_xor_b32 v2, 1, v1
        v_lshl_add_u32 v79, v2, 2, v1
        v_mul_u32_u24 v79, 0x1111, v79
        v_bfe_u32 v1, v0, 2, 1
        v_mul_u32_u24 v85, 0xffff, v1
        v_sub_u32 v84, 0xffff, v85
        s_mul_i32 s{sA}, s{sV}, 6144
        s_add_u32 s{sA}, s{sA}, {L_VP}
        v_lshl_add_u32 v86, v0, 4, s{sA}
        v_and_b32 v1, 7, v0
        v_lshlrev_b32 v1, 5, v1
        v_bfe_u32 v2, v0, 4, 1
        v_lshl_add_u32 v1, v2, 4, v1
        v_lshrrev_b32 v2, 5, v0
        v_mul_u32_u24 v2, 768, v2
        s_mul_i32 s{sA}, s{sV}, 1536
        v_add3_u32 v87, v1, v2, s{sA}""")
    def attn_zero(self, skip=()):
        for r in range(28, 48):
            if r not in skip: self.A(f"v_mov_b32 v{r}, 0")
    def consts(self):
        h = 2 if self.o['xbf'] else 1
        self.A(f"s_mov_b32 s{sLO}, 0x3f80\ns_mov_b32 s{sHI}, 0x3f800000")
        self.A(f"s_mov_b32 s{sK1}, {81920//h}\ns_mov_b32 s{sK2}, {163840//h}\ns_mov_b32 s{sKG}, {4*GSL}\ns_mov_b32 s{sKQ}, {4*QSL}")

    def xa_addr(self, d=30):
        self.A(f"""v_and_b32 v1, 15, v0
        v_lshrrev_b32 v2, 4, v0
        v_min_u32 v{d}, 5, v1
        v_mul_u32_u24 v{d}, {XS}, v{d}
        v_lshl_add_u32 v{d}, v2, 4, v{d}
        v_and_b32 v3, 3, v0
        v_bfe_u32 v1, v0, 2, 2
        v_add_u32 v{d+1}, 3, v3
        v_min_u32 v{d+1}, 5, v{d+1}
        v_cmp_eq_u32 vcc, 0, v3
        v_cndmask_b32 v{d+1}, v{d+1}, v1, vcc
        v_mul_u32_u24 v{d+1}, {XS}, v{d+1}
        v_lshl_add_u32 v{d+1}, v2, 4, v{d+1}""")
    def xfrags(self, d=30): self.A(f"ds_read_b128 v[4:7], v{d} offset:{L_XA}\nds_read_b128 v[8:11], v{d} offset:{L_XA+64}")
    def mm_with_gram(self, mf0, mf1, store):
        A = self.A
        self.xfrags()
        l = self.role(R_GR); le = self.lab("gr")
        A(f"""ds_read_b128 v[60:63], v31 offset:{L_XA}
        ds_read_b128 v[64:67], v31 offset:{L_XA+64}
        s_waitcnt lgkmcnt(1)
        v_mfma_f32_16x16x32_bf16 v[68:71], v[60:63], v[4:7], 0""")
        A(mf0)
        A("s_waitcnt lgkmcnt(0)\nv_mfma_f32_16x16x32_bf16 v[68:71], v[64:67], v[8:11], v[68:71]")
        A(mf1)
        A(f"v_mov_b32_dpp v71, v70 row_newbcast:4 {DPP}")
        self.exec_mask(1 | 1 << 17 | 1 << 34 | 1 << 51)
        self.stores(f"buffer_store_dwordx4 v[68:71], v33, {srd(SWS)}, 0 offen{{f}}", True)
        self.exec_full()
        store()
        A(f"s_cbranch_execnz {le}")
        self.end(l)
        A("s_waitcnt lgkmcnt(1)"); A(mf0); A("s_waitcnt lgkmcnt(0)"); A(mf1)
        store()
        self.end(le)
    def q_lds_addr(self, d):
        self.A(f"""v_bfe_u32 v1, v0, 3, 1
        v_lshlrev_b32 v{d}, 6, v1
        v_bfe_u32 v1, v0, 1, 1
        v_lshl_add_u32 v{d}, v1, 5, v{d}
        v_lshrrev_b32 v1, 5, v0
        v_lshl_add_u32 v{d}, v1, 4, v{d}
        v_bfe_u32 v1, v0, 2, 1
        v_lshl_add_u32 v{d}, v1, 3, v{d}
        v_and_b32 v1, 1, v0
        v_lshl_add_u32 v{d}, v1, 2, v{d}
        v_bfe_u32 v1, v0, 4, 1
        v_lshl_add_u32 v{d}, v1, 1, v{d}""")

    def clr_begin(self):
        self.A("v_mov_b32 v64, -1\nv_mov_b32 v65, -1\nv_mov_b32 v66, -1\nv_mov_b32 v67, -1\nv_lshlrev_b32 v10, 4, v0")
    def clr(self, what, p):
        A = self.A
        st = lambda off=0: A(f"buffer_store_dwordx4 v[64:67], v10, {srd(SWS)}, s{sA} offen offset:{off} sc1")
        if what in 'XY':
            A(f"s_lshl_b32 s{sA}, s{sSLOT}, 10\ns_add_u32 s{sA}, s{sA}, {(RX if what == 'X' else RY)[p]}"); st()
        elif what == 'O':
            A(f"s_mul_i32 s{sA}, s{sSIG}, {OSL}\ns_add_u32 s{sA}, s{sA}, {RO[p]}\ns_mov_b32 exec_hi, 0xffffff"); st(); A("s_mov_b32 exec_hi, -1")
        elif what == 'G':
            A(f"s_mul_i32 s{sA}, s{sSIG}, {GSL}\ns_add_u32 s{sA}, s{sA}, {RG[p]}"); st(); st(1024)
            if p == 0: A("s_mov_b32 exec_hi, 0xff"); st(2048)
            else: A("s_mov_b64 exec, 0xff"); st(2560)
            A("s_mov_b64 exec, -1")
        elif what == 'C':
            A(f"s_mul_i32 s{sA}, s{sSIG}, {QSL}\ns_add_u32 s{sA}, s{sA}, {RQ[1] + 4224}"); st()
        elif what == 'Q':
            A(f"s_mul_i32 s{sA}, s{sSIG}, {QSL}\ns_add_u32 s{sA}, s{sA}, {RQ[1]}")
            for i in range(4): st(1024 * i)
            A(f"s_add_u32 s{sA}, s{sA}, 4096\ns_mov_b64 exec, 0xff"); st(); A("s_mov_b64 exec, -1")

    def startup(self):
        A = self.A
        A(f"s_bitcmp1_b32 s{sROLE}, {R_GE4}\ns_cbranch_scc1 L_start_hi")
        self.k_loads()
        self.other_srds()
        l = self.lab("now"); A(f"s_cmp_ge_u32 s{sT}, 30\ns_cbranch_scc1 {l}")
        self.dma_addr(4, 1280)
        if not int(self.o['noq0']) & 4: self.dma_dist(self.o['cwo'], [(SWO, 4, 1280, L_WO)])
        if True:
            mats = [m for k, m in (('g', (SWG, 6, 3072, L_WG)), ('u', (SWU, 6, 3072, L_WU)), ('d', (SWD, 4, 1280, L_WD))) if k not in self.o['tq'] + self.o['dwo'] + self.o['dx']]
            if mats:
                self.dma_addr(6, 3072)
                self.dma_dist(self.o['cgud'], mats)
        self.end(l)
        self.v_loads()
        self.stamp(1, both=False)
        if self.o['dry']:
            l = self.lab("nodry")
            A(f"""s_cmp_eq_u32 s{sV}, 2
            s_cbranch_scc0 {l}
            s_mov_b32 s{sDRY}, 1
            v_mov_b32 v15, 0
            v_mov_b32 v16, 0
            v_mov_b32 v28, 0
            v_mov_b32 v32, 0
            v_mov_b32 v33, 0
            v_mov_b32 v34, 0
            v_mov_b32 v36, 0
            v_mov_b32 v37, 0
            v_mov_b32 v38, 0
            s_mov_b32 s{sSAVE}, s{sT}
            s_mov_b32 s{sT}, 0
            s_mov_b32 s{sROLE}, 0xff
            s_mov_b64 s[{sFULL}:{sFULL+1}], 0
            s_mov_b64 exec, 0
            s_branch L_attn
            L_dry_ret:
            s_mov_b32 s{sDRY}, 0
            s_mov_b32 s{sP}, 0
            s_mov_b32 s{sT}, s{sSAVE}
            s_mov_b32 s{sROLE}, {(1 << R_LT4) | ((int(self.o['gramw']) == 2) << R_GR)}
            s_mov_b64 s[{sFULL}:{sFULL+1}], -1
            s_mov_b64 exec, -1
            {l}:""")
        l3 = self.lab("nog")
        A(f"s_cmp_eq_u32 s{sV}, 3\ns_cbranch_scc0 {l3}\ns_setprio 3")
        lp = self.lab("tq"); lr = self.lab("tqr")
        self.stamp(13, both=False)
        if self.prof: A(f"s_mov_b32 s{sST+5}, s{sST+13}")
        A(f"""s_bfe_u32 s{sB}, s{sT}, 0x20001          ; b
        s_lshl_b32 s{sC}, s{sB}, 10
        v_lshrrev_b32 v1, 4, v0
        v_lshlrev_b32 v78, 12, v1
        v_and_b32 v3, 15, v0
        v_lshl_add_u32 v78, v3, 4, v78
        v_add_u32 v78, s{sC}, v78
        s_mul_i32 s{sD}, s{sTAG}, 0x01010101
        v_mov_b32 v72, s{sD}
        v_lshrrev_b32 v73, 8, v72
        v_lshrrev_b32 v74, 16, v72
        v_lshrrev_b32 v75, 24, v72""")
        self.q_lds_addr(79)
        if int(self.o['noq0']) & 2: A("s_branch L_noq0")
        A(f"{lp}:\nv_mov_b32 v1, 0")
        for sg in range(3):
            A(f"""s_lshr_b32 s{sA}, s{sT}, 3
            s_mul_i32 s{sA}, s{sA}, 3
            s_add_u32 s{sA}, s{sA}, {sg}
            s_lshr_b32 s{sB}, s{sA}, 2
            s_mul_i32 s{sB}, s{sB}, 10
            s_lshl_b32 s{sC}, s{sX}, 5
            s_add_u32 s{sB}, s{sB}, s{sC}
            s_lshl_b32 s{sB}, s{sB}, 12
            s_and_b32 s{sA}, s{sA}, 3
            s_lshl_b32 s{sA}, s{sA}, 8
            s_add_u32 s{sB}, s{sB}, s{sA}
            s_add_u32 s{sB}, s{sB}, {RQ[0]}""")
            for i in range(3):
                if i == 2: A("s_mov_b32 exec_hi, 0")
                A(f"buffer_load_dwordx4 {vr(4 + 12*sg + 4*i)}, v78, {srd(SWS)}, s{sB} offen sc1")
                A(f"s_add_u32 s{sB}, s{sB}, {4*Q0SL}" if i < 2 else "s_mov_b64 exec, -1")
        A("s_waitcnt vmcnt(0)")
        for third in (0, 1):
            if third: A("s_mov_b32 exec_hi, 0")
            for sg in range(3):
                for i in ((2,) if third else (0, 1)):
                    r = 4 + 12 * sg + 4 * i
                    for h in (0, 2): A(f"v_xor_b32 v2, v{72+h}, v{r+h}\nv_xor_b32 v3, v{73+h}, v{r+h+1}\nv_or3_b32 v1, v1, v2, v3")
                    for k in range(4): A(f"v_and_b32 v{r+k}, 0xffffff00, v{r+k}")
        for k in range(3):
            for i in range(4): A(f"v_add_f32 v{4+12*k+i}, v{4+12*k+i}, v{12+12*k+i}")
        A(f"s_mov_b64 exec, -1\nv_and_b32 v1, 0xff, v1\nv_cmp_ne_u32 vcc, 0, v1\ns_cbranch_vccnz {lr}")
        self.tail.append(f"{lr}:\ns_sub_u32 s{sTO}, s{sTO}, 1\ns_cbranch_scc1 L_end\ns_branch {lp}")
        for k in range(3):
            r = 4 + 12 * k
            for i in range(4): A(f"v_add_f32 v{r+i}, v{r+i}, v{r+4+i}")
            self.treduce(r, r + 1, r + 2, r + 3)
            A(f"v_cvt_pk_bf16_f32 v{r}, 0, v{r}\nds_write_b16_d16_hi v79, v{r} offset:{L_QL + 128*k}")
        A("L_noq0:")
        self.lds_spin(4, 8)
        A(f"v_mov_b32 v4, 1\nds_write_b32 v5, v4\ns_setprio 0")
        self.end(l3)
        self.stamp(2, both=False)
        self.attn_pre(); self.attn_zero(); self.consts()
        self.lds_spin(0, 1)
        self.xres_read()
        A("s_branch L_attn")
        A("L_start_hi:\ns_setprio 3")
        self.other_srds()
        l = self.lab("x0"); l2 = self.lab("x0")
        A(f"""v_lshlrev_b32 v10, 4, v0
        s_and_b32 s{sB}, s{sV}, 3
        s_lshl_b32 s{sA}, s{sB}, 10
        s_add_u32 m0, s{sA}, {L_X0}
        s_cmp_eq_u32 s{sV}, 4
        buffer_load_dwordx4 v10, {srd(SX0)}, s{sA} offen lds
        s_cbranch_scc0 {l}
        s_mov_b32 m0, {L_X0 + 4096}
        s_movk_i32 s{sA}, 0x1000
        buffer_load_dwordx4 v10, {srd(SX0)}, s{sA} offen lds
        {l}:
        s_cmp_eq_u32 s{sV}, 5
        s_cbranch_scc0 {l2}
        s_mov_b32 m0, {L_XA + 5*XS}
        s_mov_b64 exec, 0xff
        buffer_load_dwordx4 v10, {srd(SWR)}, 0 offen lds
        s_mov_b64 exec, -1
        {l2}:""")
        lq = self.lab("noq"); lq2 = self.lab("noq")
        A(f"s_cmp_ge_u32 s{sT}, 30\ns_cbranch_scc1 {lq}")
        self.dma_addr(6, 12288)
        A(f"s_and_b32 s{sB}, s{sV}, 3\ns_lshl_b32 s{sC}, s{sB}, 7\ns_lshl_b32 s{sB}, s{sB}, 13")
        self.dma(SWQ, 6, 8, 12288, L_WQ, sC, sB)
        A(f"""v_lshrrev_b32 v1, 4, v0
        v_and_b32 v2, 15, v0
        v_mul_u32_u24 v3, 1280, v1
        v_lshl_add_u32 v10, v2, 4, v3
        v_lshl_add_u32 v11, v2, 3, v3
        s_lshl_b32 s{sA}, s{sAI}, 7
        v_add_u32 v11, s{sA}, v11
        v_mul_u32_u24 v12, {XS}, v1
        v_lshl_add_u32 v12, v2, 3, v12
        v_lshlrev_b32 v13, 3, v2
        s_waitcnt vmcnt(8)""")
        self.lds_inc(4); self.lds_spin(4, 4)
        for i in range(5): A(f"ds_read_b128 {vr(16+4*i)}, v10 offset:{L_X0 + 256*i}")
        A(f"ds_read_b64 v[36:37], v11 offset:{L_X0}")
        A("v_mov_b32 v40, 0x3f803f80\nv_mov_b32 v41, 0x3f803f80\nv_mov_b32 v42, 0\nv_mov_b32 v43, 0\ns_waitcnt lgkmcnt(0)")
        for i in range(20): A(f"v_dot2_f32_bf16 v42, v{16+i}, v{16+i}, v42\nv_dot2_f32_bf16 v43, v{16+i}, v40, v43")
        self.mix(self.red16([42, 43])); self.mix(self.lnstats(42, 43, 44, 45, 46))
        A("v_lshlrev_b32 v16, 16, v36\nv_and_b32 v17, 0xffff0000, v36\nv_lshlrev_b32 v18, 16, v37\nv_and_b32 v19, 0xffff0000, v37")
        for i in range(4): A(f"v_sub_f32 v{16+i}, v{16+i}, v44")
        for i in range(4): A(f"v_cvt_pk_bf16_f32 v{16+i}, 0, v{16+i}")
        for i in range(4): A(f"v_mul_f32 v{16+i}, v{16+i}, v45")
        A(f"""v_cvt_pk_bf16_f32 v16, v16, v17
        v_cvt_pk_bf16_f32 v17, v18, v19
        ds_write_b64 v12, v[16:17] offset:{L_XA}
        ds_write_b64 v13, v[40:41] offset:{L_XA + 4*XS}""")
        A(f"s_and_b32 s{sA}, s{sV}, 3\ns_lshl_b32 s{sA}, s{sA}, 13\ns_add_u32 s{sA}, s{sA}, {L_WQ}")
        self.tr_addr(52, sA)
        for t in range(1, 4): A(f"v_xor_b32 v{52+t}, {32*t}, v52")
        self.xa_addr(14)
        A(f"""s_and_b32 s{sA}, s{sV}, 3
        s_lshl_b32 s{sB}, s{sA}, 10
        v_and_b32 v2, 15, v0
        v_lshlrev_b32 v72, 8, v2
        v_and_b32 v1, 0x30, v0
        v_add3_u32 v72, v72, v1, s{sB}
        v_lshl_add_u32 v73, v0, 4, s{sB}
        v_lshlrev_b32 v74, 6, v1
        v_lshl_add_u32 v74, v2, 4, v74
        s_lshl_b32 s{sA}, s{sA}, 8
        v_add_u32 v75, s{sA}, v1
        s_lshl_b32 s{sE}, s{sSIG}, 12
        s_add_u32 s{sE}, s{sE}, s{sA}
        s_add_u32 s{sE}, s{sE}, {RQ[0]}
        s_mul_i32 s{sF}, s{sTAG}, 0x01010101
        v_mov_b32 v76, 0xff
        s_waitcnt vmcnt(0) lgkmcnt(0)""")
        self.stamp(12, both=False)
        for t in range(4): self.wfrags(16 + 8 * t, 52 + t, 2)
        self.xfrags(14)
        A("s_waitcnt lgkmcnt(0)")
        for s in range(2):
            for t in range(4):
                A(f"v_mfma_f32_16x16x32_bf16 {vr(48+4*t)}, {vr(16+8*t+4*s)}, {vr(4+4*s)}, {'0' if s == 0 else vr(48+4*t)}")
        for i in range(4):
            for t in range(4): A(f"v_bfi_b32 v{16+4*t+i}, v76, s{sF}, v{48+4*t+i}")
            A(f"s_lshr_b32 s{sF}, s{sF}, 8")
        self.exec_mask(0x000f000f000f000f)
        for t in range(4): A(f"ds_write_b128 v72, {vr(16+4*t)} offset:{L_OC + 64*t}")
        self.exec_mask(0x0010001000100010)
        for t in range(4): A(f"ds_write_b128 v75, {vr(48+4*t)} offset:{L_CS + 64*t}")
        self.exec_full()
        A(f"""s_waitcnt lgkmcnt(0)
        ds_read_b128 v[16:19], v73 offset:{L_OC}
        s_waitcnt lgkmcnt(0)""")
        if not int(self.o['noq0']) & 1: A(f"buffer_store_dwordx4 v[16:19], v74, {srd(SWS)}, s{sE} offen sc1")
        A(f"""s_branch {lq2}
        {lq}:
        s_waitcnt vmcnt(0)""")
        self.lds_inc(4); self.lds_spin(4, 4)
        A(f"{lq2}:")
        self.xres_read()
        A("s_waitcnt lgkmcnt(0)")
        self.lds_inc(4)
        self.stamp(14, both=False)
        sp = True
        late = self.o['clr'] == 'late'
        l = self.role(R_456)
        l2 = self.lab("nocl"); lb = self.lab("clb"); lc = self.lab("clc"); li = self.lab("cli")
        self.clr_begin()
        A(f"s_cmp_ge_u32 s{sT}, 30\ns_cbranch_scc1 {li}\ns_cmp_eq_u32 s{sV}, 5\ns_cbranch_scc1 {lb}\ns_cmp_eq_u32 s{sV}, 6\ns_cbranch_scc1 {lc}")
        self.clr('X', 0); self.clr('Y', 0)
        if not late: self.clr('X', 1); self.clr('Y', 1); self.clr('O', 1)
        self.clr('O', 0)
        A(f"s_branch {l2}\n{lb}:")
        self.clr('G', 0)
        if not late: self.clr('G', 1)
        A(f"s_branch {l2}\n{lc}:")
        self.clr('C', 0)
        if not late: self.clr('Q', 1)
        A(f"s_branch {l2}\n{li}:\ns_cmp_eq_u32 s{sV}, 4\ns_cbranch_scc0 {l2}")
        self.clr('O', 0); self.clr('O', 1)
        A(f"""{l2}:
        s_mov_b64 exec, -1
        s_getreg_b32 s{sXCC}, hwreg(HW_REG_XCC_ID, 0, 4)
        v_mov_b32 v6, s{sTAG}
        v_mov_b32 v7, s{sXCC}
        v_mov_b32 v8, s{sTAG}
        v_mov_b32 v9, s{sXCC}
        v_mov_b32 v4, {L_FL}
        v_mov_b32 v5, 1
        s_lshl_b32 s{sA}, s{sSIG}, 7
        s_add_u32 s{sA}, s{sA}, {RF}
        s_waitcnt vmcnt(0)""")
        l3 = self.lab("nofl")
        if sp: A(f"""s_mov_b64 exec, 1
        ds_add_rtn_u32 v11, v4, v5 offset:8
        s_waitcnt lgkmcnt(0)
        v_cmp_eq_u32 vcc, 2, v11
        s_cbranch_vccz {l3}""")
        A(f"""s_mov_b64 exec, 0xff
        buffer_store_dwordx4 v[6:9], v10, {srd(SWS)}, s{sA} offen sc1
        {l3}:
        s_mov_b64 exec, -1""")
        self.end(l)
        self.stamp(1, both=False)
        A("s_setprio 0")
        self.k_loads(); self.v_loads()
        if self.o['tq']: self.lds_inc(16)
        self.attn_pre(); self.attn_zero(); self.consts()
        self.lds_spin(0, 1)

    def region(self, s, R):
        self.A(f"s_mul_i32 s{s}, s{sP}, {R[1]-R[0]}")
        if R[0]: self.A(f"s_add_u32 s{s}, s{s}, {R[0]}")

    def parked(self):
        for i in range(6): self.A(f"ds_read_b128 {vr(48+4*i)}, v86 offset:{1024*i}")
    def attention(self):
        A = self.A
        if int(self.o['al']): A(f".p2align {self.o['al']}")
        for _ in range(int(self.o['alo'])): A("s_nop 0")
        A("L_attn:")
        if int(self.o['prio']) == 2:
            l = self.role(R_GE4); A("s_setprio 1"); self.end(l)
        order = [(72, 4), (73, 8), (76, 20), (74, 12), (75, 16), (77, 24)]
        for a, d in order: A(f"ds_read_b128 {vr(d)}, v{a} offset:{L_QL}")
        self.region(sE, RO)
        A(f"""s_mul_i32 s{sB}, s{sSIG}, {OSL}
        s_add_u32 s{sE}, s{sE}, s{sB}
        s_and_b32 s{sC}, s{sV}, 3
        s_lshl_b32 s{sC}, s{sC}, 8
        s_add_u32 s{sD}, s{sC}, s{sE}
        s_mov_b32 s{sA}, 0x{ODD & 0xffffffff:x}
        s_mov_b32 s{sB}, 0x{ODD & 0xffffffff:x}
        s_waitcnt vmcnt(24)""")
        self.stamp(3)
        for n, (a, d) in enumerate(order):
            A(f"s_waitcnt lgkmcnt({5-n})")
            for h in range(2):
                if a < 76: g = 4 * h + (a - 72); b = 12 * (g & ~1) + 8 * (g & 1)
                else: g = 4 * h + 2 * (a - 76); b = 12 * g + 16
                A(f"v_smfmac_f32_16x16x64_bf16 {vr(28+4*h)}, {vr(d)}, {ar(b,8)}, v78")
        A("s_waitcnt vmcnt(18)")
        self.parked()
        fill = [f"v_lshrrev_b32 v1, 4, v0", f"v_and_b32 v2, 15, v0", f"v_mul_u32_u24 v12, 3072, v1", f"v_lshlrev_b32 v13, 3, v1",
                f"v_lshl_add_u32 v12, v2, 4, v12", f"v_lshlrev_b32 v15, 4, v2", f"v_add_u32 v12, s{sC}, v12", f"v_lshl_add_u32 v15, v1, 2, v15",
                f"v_mov_b32 v14, 0", f"v_add_u32 v15, s{sD}, v15", f"v_lshl_add_u32 v16, v0, 4, s{sE}", f"v_and_b32 v17, 7, v0",
                f"v_lshlrev_b32 v17, 2, v17", f"s_lshl_b32 s{sF}, s{sV}, 2", f"v_mov_b32 v35, s{sF}"]
        A(fill.pop(0))
        fin = lambda d: [f"v_add_f32 v{d}, v{d}, v{d+1}", f"v_add_f32 v{d+2}, v{d+2}, v{d+3}",
                         f"v_cndmask_b32 v{d}, v{d}, v{d+2}, s[{sA}:{sB}]",
                         f"v_add_f32_dpp v{d}, v{d}, v{d} quad_perm:[1,0,3,2] {DPP}",
                         f"v_cvt_pk_bf16_f32 v{d}, 0, v{d}", f"v_mul_f32 v{d}, s{sSCALE}, v{d}",
                         f"v_cvt_pk_bf16_f32 v{d}, 0, v{d}", f"v_mul_f32 v{d}, s{sLOG2E}, v{d}"]
        f0, f1 = fin(28), fin(32)
        for k in range(8):
            if k == 3: A(fill.pop(0))
            A(f0[k]); A(f1[k])
        if int(self.o['prio']) == 1:
            l = self.role(R_GE4); A("s_setprio 1"); self.end(l)
        A("v_max_f32 v29, v28, v32")
        for p in (f"quad_perm:[2,3,0,1] {DPP}", f"row_half_mirror {DPP}", f"row_mirror {DPP}", "row_bcast:15 row_mask:0xa bank_mask:0xf", "row_bcast:31 row_mask:0xc bank_mask:0xf"):
            A(fill.pop(0)); A(fill.pop(0)); A(f"v_max_f32_dpp v29, v29, v29 {p}")
        A(fill.pop(0)); A(f"v_readlane_b32 s{sM}, v29, 63")
        A(fill.pop(0)); A(fill.pop(0))
        assert not fill
        A(f"""v_subrev_f32 v28, s{sM}, v28
        v_subrev_f32 v32, s{sM}, v32
        v_exp_f32 v28, v28
        v_exp_f32 v32, v32
        v_cvt_pk_bf16_f32 v30, v28, v28
        v_cvt_pk_bf16_f32 v31, v32, v32
        v_mov_b32 v34, s{sM}""")
        lsum = ["v_add_f32 v33, v28, v32"] + \
               [f"v_add_f32_dpp v33, v33, v33 {p}" for p in (f"quad_perm:[2,3,0,1] {DPP}", f"row_half_mirror {DPP}", f"row_mirror {DPP}",
                                                            "row_bcast:15 row_mask:0xa bank_mask:0xf", "row_bcast:31 row_mask:0xc bank_mask:0xf")]
        def abuild(S):
            b = 4 + 4 * (S & 1); P = 30 + (S >> 1); jj = S & 1
            return [f"v_and_b32_dpp v{b+2*x+m}, v{P}, v{84+m} row_newbcast:{8*jj+4*x+2*c} row_mask:0xf bank_mask:{'0x3' if c == 0 else '0xc'}"
                    for c in range(2) for x in range(2) for m in range(2)]
        for x in abuild(0): A(x)
        A("s_waitcnt lgkmcnt(0)")
        for S in range(4):
            nxt = abuild(S + 1) if S < 3 else []
            if S: A(f"s_waitcnt vmcnt({18 - 6*S})")
            for s in range(3):
                vv = vr(48 + 8 * s, 8) if S == 0 else vr(VBASE + (S - 1) * 24 + 8 * s, 8)
                A(f"v_smfmac_f32_16x16x64_bf16 {vr(36+4*s)}, {vr(4+4*(S&1))}, {vv}, v79")
                for _ in range(3):
                    if nxt: A(nxt.pop(0))
                if lsum and s != 1: A(lsum.pop(0))
        assert not lsum
        self.exec_mask(1 << 63)
        A(f"ds_write_b32 v35, v34 offset:{L_ML}\nds_write_b32 v35, v33 offset:{L_ML+32}")
        self.exec_mask(0xFF00FF0000FF00FF)
        for s in range(3): A(f"ds_write_b128 v87, {vr(36+4*s)} offset:{L_OC + 256*s}")
        self.exec_full()
        l = self.role(R_LT4)
        l2 = self.pass0(); l3 = self.lab("nm")
        A(f"s_cbranch_execz {l3}")
        self.first_pass_checks()
        if self.o['tq']:
            l4 = self.lab("ntq"); A(f"s_cmp_ge_u32 s{sT}, 30\ns_cbranch_scc1 {l4}")
            self.lds_spin(16, 4)
            self.w_dma_gud(sV, self.o['tq'])
            self.end(l4)
        self.end(l3); self.end(l2)
        self.end(l)
        A("s_waitcnt lgkmcnt(0)")
        if int(self.o['prio']) & 3: A("s_setprio 0")
        self.stamp(4)
        if self.o['t2']:
            l = self.pass0(); A("s_memrealtime s[66:67]"); self.end(l)
        self.barrier('A')
        l = self.role(R_GE4)
        if int(self.o['prio']) & 4: A("s_setprio 1")
        A(f"ds_read_b32 v47, v14 offset:{L_FL+12}")
        l2 = self.role(R_456)
        A(f"""ds_read_b128 v[20:23], v14 offset:{L_ML}
        ds_read_b128 v[24:27], v14 offset:{L_ML+16}
        ds_read_b64 v[18:19], v13 offset:{L_ML}
        ds_read_b128 v[48:51], v12 offset:{L_OC}
        ds_read_b128 v[52:55], v12 offset:{L_OC+768}
        ds_read_b128 v[56:59], v12 offset:{L_OC+1536}
        ds_read_b128 v[60:63], v12 offset:{L_OC+2304}
        s_waitcnt lgkmcnt(5)
        v_max3_f32 v20, v20, v21, v22
        v_max3_f32 v24, v24, v25, v26
        v_readfirstlane_b32 s{sFAST}, v47
        v_max3_f32 v20, v20, v23, v27
        v_max_f32 v20, v20, v24
        s_waitcnt lgkmcnt(2)
        v_sub_f32 v18, v18, v20
        v_sub_f32 v19, v19, v20
        v_add_f32 v48, v48, v52
        v_exp_f32 v18, v18
        v_add_f32 v49, v49, v53
        v_exp_f32 v19, v19
        v_add_f32 v50, v50, v54
        v_add_f32 v51, v51, v55
        s_waitcnt lgkmcnt(0)""")
        for i in range(4): A(f"v_add_f32 v{56+i}, v{56+i}, v{60+i}\nv_mul_f32 v{48+i}, v18, v{48+i}")
        for i in (0, 2, 1, 3): A(f"v_fmac_f32 v{48+i}, v19, v{56+i}")
        self.treduce(48, 49, 50, 51)
        self.stores(f"buffer_store_dword v48, v15, {srd(SWS)}, 0 offen{{f}}", True, 'A')
        self.end(l2)
        l2 = self.role(R_7)
        A(f"""ds_read_b32 v4, v17 offset:{L_ML}
        ds_read_b32 v5, v17 offset:{L_ML+32}
        s_waitcnt lgkmcnt(1)
        v_max_f32_dpp v6, v4, v4 quad_perm:[1,0,3,2] {DPP}
        v_readfirstlane_b32 s{sFAST}, v47
        v_max_f32_dpp v6, v6, v6 quad_perm:[2,3,0,1] {DPP}
        v_max_f32_dpp v6, v6, v6 row_half_mirror {DPP}
        v_sub_f32 v4, v4, v6
        v_exp_f32 v4, v4
        s_waitcnt lgkmcnt(0)
        v_mul_f32 v7, v4, v5""")
        self.mix(self.red16([7])[:3])
        self.exec_mask(0xff)
        self.stores(f"buffer_store_dwordx4 v[6:9], v16, {srd(SWS)}, 0 offen offset:768{{f}}", True)
        self.exec_full()
        l3 = self.pass0(); l4 = self.lab("ncs")
        A(f"""s_cmp_ge_u32 s{sT}, 30
        s_cbranch_scc1 {l4}
        v_lshlrev_b32 v1, 4, v0
        ds_read_b128 v[12:15], v1 offset:{L_CS}
        s_mul_i32 s{sA}, s{sSIG}, {QSL}
        s_add_u32 s{sA}, s{sA}, {RQ[1] + 4224}
        s_waitcnt lgkmcnt(0)""")
        self.stores(f"buffer_store_dwordx4 v[12:15], v1, {srd(SWS)}, s{sA} offen{{f}}", True)
        self.end(l4); self.end(l3); self.end(l2)
        if int(self.o['prio']) & 4: A("s_setprio 0")
        self.end(l)
        A(f"s_cmp_ge_u32 s{sT}, 30\ns_cbranch_scc1 L_idle")

    def first_pass_checks(self):
        A = self.A
        l = self.lab("nochk"); lp = self.lab("chk"); lr = self.lab("chkr")
        A(f"""s_cmp_eq_u32 s{sV}, 0
        s_cbranch_scc0 {l}
        v_mov_b32 v1, {L_FL}
        v_mov_b32 v2, s{sTAG}
        v_lshlrev_b32 v3, 9, v0
        s_getreg_b32 s{sXCC}, hwreg(HW_REG_XCC_ID, 0, 4)
        s_mov_b32 s{sA}, {RF}
        {lp}:
        buffer_load_dwordx2 v[4:5], v3, {srd(SWS)}, s{sA} offen sc1
        buffer_load_dwordx2 v[6:7], v3, {srd(SWS)}, s{sA} offen offset:128 sc1
        buffer_load_dwordx2 v[8:9], v3, {srd(SWS)}, s{sA} offen offset:256 sc1
        buffer_load_dwordx2 v[10:11], v3, {srd(SWS)}, s{sA} offen offset:384 sc1
        s_waitcnt vmcnt(0)
        v_xor_b32 v4, v4, v2
        v_xor_b32 v6, v6, v2
        v_xor_b32 v8, v8, v2
        v_xor_b32 v10, v10, v2
        v_or3_b32 v4, v4, v6, v8
        v_or_b32 v4, v4, v10
        v_cmp_ne_u32 vcc, 0, v4
        s_cbranch_vccnz {lr}
        v_xor_b32 v5, s{sXCC}, v5
        v_xor_b32 v7, s{sXCC}, v7
        v_xor_b32 v9, s{sXCC}, v9
        v_xor_b32 v11, s{sXCC}, v11
        v_or3_b32 v5, v5, v7, v9
        v_or_b32 v5, v5, v11
        v_cmp_eq_u32 vcc, 0, v5
        s_lshl_b32 s{sB}, s{sX}, 3
        s_lshr_b64 s[{sA}:{sB}], vcc, s{sB}
        s_and_b32 s{sA}, s{sA}, 0xff
        s_cmp_eq_u32 s{sA}, 0xff
        s_cselect_b32 s{sA}, 1, 0
        v_mov_b32 v4, s{sA}
        ds_write_b32 v1, v4 offset:12
        s_cmp_eq_u32 s2, 0
        s_cbranch_scc0 {l}
        v_mov_b32 v3, 0
        s_mov_b32 s{sA}, {RE}
        s_mov_b64 exec, 1
        buffer_store_dword v2, v3, {srd(SWS)}, s{sA} offen sc1
        s_mov_b64 exec, -1
        {l}:""")
        self.tail.append(f"{lr}:\ns_sleep {self.o['bsleep']}\ns_sub_u32 s{sTO}, s{sTO}, 1\ns_cbranch_scc1 L_end\ns_branch {lp}")
        if self.o['prewarm'] and self.o['pwo']:
            l = self.lab("npw")
            A(f"""s_cmp_eq_u32 s{sV}, 1
            s_cbranch_scc0 {l}
            v_lshlrev_b32 v1, 4, v0
            s_mul_i32 s{sA}, s{sSIG}, {QSL}
            s_add_u32 s{sA}, s{sA}, {RQ[1] + 4224}
            buffer_load_dwordx4 v[60:63], v1, {srd(SWS)}, s{sA} offen sc1
            s_mov_b32 exec_hi, 0xffffff
            buffer_load_dwordx4 v[60:63], v1, {srd(SWS)}, s{sE} offen sc1
            s_mov_b64 exec, -1
            {l}:""")

    def afrag_addr(self, d, stride):
        self.A(f"v_and_b32 v1, 3, v0\nv_lshrrev_b32 v2, 4, v0\nv_mul_u32_u24 v1, {stride}, v1\nv_lshl_add_u32 v{d}, v2, 4, v1")
    def pub_addr(self, d, R):
        self.region(sC, R)
        self.A(f"s_lshl_b32 s{sA}, s{sSLOT}, 10\ns_lshl_b32 s{sB}, s{sV}, 8\ns_add_u32 s{sA}, s{sA}, s{sB}\ns_add_u32 s{sA}, s{sA}, s{sC}\nv_lshl_add_u32 v{d}, v0, 4, s{sA}") if not self.o['xbf'] else \
        self.A(f"s_lshl_b32 s{sA}, s{sSLOT}, 9\ns_lshl_b32 s{sB}, s{sV}, 7\ns_add_u32 s{sA}, s{sA}, s{sB}\ns_add_u32 s{sA}, s{sA}, s{sC}\nv_lshl_add_u32 v{d}, v0, 3, s{sA}")
    def pub_store(self, addr, tag):
        if self.o['xbf']:
            self.A("v_cvt_pk_bf16_f32 v68, v68, v69\nv_cvt_pk_bf16_f32 v69, v70, v71")
            self.exec_mask(0xffff)
            self.stores(f"buffer_store_dwordx2 v[68:69], v{addr}, {srd(SWS)}, 0 offen{{f}}", False, tag)
        else:
            self.exec_mask(0xffff)
            self.stores(f"buffer_store_dwordx4 v[68:71], v{addr}, {srd(SWS)}, 0 offen{{f}}", False, tag)
        self.exec_full()
    def unpack_sum(self, dst, srcs):
        out = []
        for k, r in enumerate(srcs):
            for i in range(4):
                out.append(f"v_dot2_f32_bf16 v{dst+i}, v{r + (i >> 1)}, s{sLO if i % 2 == 0 else sHI}, {'0' if k == 0 else 'v%d' % (dst+i)}")
        return out

    def wo_pre1(self):
        A = self.A
        self.region(sD, RO)
        A(f"""s_lshl_b32 s{sA}, s{sRI}, 2
        s_add_u32 s{sA}, s{sA}, s{sV}
        s_mul_i32 s{sB}, s{sA}, 86
        s_lshr_b32 s{sB}, s{sB}, 8
        s_mul_i32 s{sC}, s{sB}, 3
        s_sub_u32 s{sC}, s{sA}, s{sC}
        s_lshl_b32 s{sB}, s{sB}, 3
        s_lshl_b32 s{sA}, s{sX}, 5
        s_add_u32 s{sB}, s{sB}, s{sA}
        s_mul_i32 s{sB}, s{sB}, {OSL}
        s_add_u32 s{sB}, s{sB}, s{sD}
        v_lshrrev_b32 v1, 4, v0
        v_and_b32 v2, 15, v0
        v_mul_u32_u24 v72, {2*OSL}, v1
        v_add_u32 v72, s{sB}, v72
        s_lshl_b32 s{sC}, s{sC}, 8
        v_lshl_add_u32 v73, v2, 4, v72
        v_add_u32 v73, s{sC}, v73
        s_lshl_b32 s{sA}, s{sV}, 7
        v_mul_u32_u24 v74, {OS}, v1
        v_lshl_add_u32 v74, v2, 3, v74
        v_add_u32 v74, s{sA}, v74""")
    def wo_pre2(self):
        A = self.A
        A(f"v_mov_b32 v1, 0\nds_read_b32 v47, v1 offset:{L_FL+12}\ns_mov_b32 s{sA}, {L_WO}")
        self.tr_addr(75, sA)
        A(f"s_lshl_b32 s{sA}, s{sV}, 5\nv_xor_b32 v75, s{sA}, v75")
        self.wfrags(4, 75, 8)
        self.afrag_addr(75, OS); self.pub_addr(76, RX)
        A(f"s_waitcnt lgkmcnt(15)\nv_readfirstlane_b32 s{sFAST}, v47")

    def wo_stage(self):
        A = self.A
        l = self.role(R_LT4)
        self.wo_pre1()
        self.sync(self.o['sync_o'])
        def loadsA(): A(f"""buffer_load_dwordx2 v[52:53], v72, {srd(SWS)}, 0 offen offset:768 sc1
        buffer_load_dwordx2 v[54:55], v72, {srd(SWS)}, 0 offen offset:{768+OSL} sc1""")
        def loads(): A(f"""buffer_load_dwordx4 v[56:59], v73, {srd(SWS)}, 0 offen sc1
        buffer_load_dwordx4 v[60:63], v73, {srd(SWS)}, 0 offen offset:{OSL} sc1""")
        shadow = self.wo_pre2
        chain = """v_sub_f32 v66, v54, v52
            v_exp_f32 v67, v66
            v_exp_f32 v66, -v66
            v_fma_f32 v67, v67, v55, v53
            v_fma_f32 v66, v66, v53, v55
            v_rcp_f32 v67, v67
            v_rcp_f32 v66, v66""".split('\n')
        def red(ch):
            self.mix(ch)
            for i in range(4): A(f"v_mul_f32 v{56+i}, v67, v{56+i}")
            for i in range(4): A(f"v_fmac_f32 v{56+i}, v66, v{60+i}")
            A("v_add_f32 v64, v56, v57\nv_add_f32 v65, v58, v59\nv_cvt_pk_bf16_f32 v56, v56, v57\nv_cvt_pk_bf16_f32 v57, v58, v59")
        self.poll(loads, range(52, 64), red, (64, 65), tag='o', shadow=shadow, pre=(loadsA, (53, 55), chain))
        A(f"ds_write_b64 v74, v[56:57] offset:{L_OA}\ns_waitcnt lgkmcnt(0)")
        self.stamp(5)
        self.end(l)
        l = self.pass0(); self.cq_gather(False); self.end(l)
        self.barrier('O')
        l = self.role(R_LT4)
        for s in range(8): A(f"ds_read_b128 {vr(36+4*s)}, v75 offset:{L_OA + 64*s}")
        self.exec_mask(0xffff) if False else None
        for s in range(8):
            A(f"s_waitcnt lgkmcnt({7-s})\nv_mfma_f32_16x16x32_bf16 v[68:71], {vr(36+4*s)}, {vr(4+4*s)}, {'0' if s == 0 else 'v[68:71]'}")
        self.pub_store(76, 'O')
        self.end(l)
        l = self.role(R_GE4); l2 = self.pass0()
        nlate = 6 if self.o['defer'] else 0
        def late_clr():
            l3 = self.lab("nm"); l5, l6, l7_ = self.lab("lc"), self.lab("lc"), self.lab("lc")
            A(f"s_cbranch_execz {l3}"); self.clr_begin()
            A(f"s_cmp_eq_u32 s{sV}, 5\ns_cbranch_scc1 {l5}\ns_cmp_eq_u32 s{sV}, 6\ns_cbranch_scc1 {l6}\ns_cmp_eq_u32 s{sV}, 7\ns_cbranch_scc1 {l3}")
            self.clr('X', 1); self.clr('Y', 1); self.clr('O', 1)
            A(f"s_branch {l3}\n{l5}:"); self.clr('G', 1)
            A(f"s_branch {l3}\n{l6}:"); self.clr('Q', 1)
            self.end(l3)
        def late():
            if self.o['dwo']:
                l3 = self.lab("nm"); A(f"s_cbranch_execz {l3}\ns_and_b32 s{sD}, s{sV}, 3"); self.w_dma_gud(sD, self.o['dwo']); self.end(l3)
        l7 = self.role(R_7)
        if self.o['prewarm']:
            self.mem(f"""v_lshlrev_b32 v1, 4, v0
            s_mul_i32 s{sA}, s{sSIG}, {GSL}
            s_add_u32 s{sA}, s{sA}, {RG[0]}
            buffer_load_dwordx4 v[60:63], v1, {srd(SWS)}, s{sA} offen sc1
            buffer_load_dwordx4 v[60:63], v1, {srd(SWS)}, s{sA} offen offset:1024 sc1
            s_mov_b32 exec_hi, 0xff
            buffer_load_dwordx4 v[60:63], v1, {srd(SWS)}, s{sA} offen offset:2048 sc1
            s_mov_b32 exec_hi, -1""")
        self.end(l7)
        late()
        if self.o['clr'] == 'late': late_clr()
        self.end(l2); self.end(l)
        self.stamp(6)

    def x_gather_pre(self, R):
        self.region(sC, R)
        h = 1 if self.o['xbf'] else 0
        self.A(f"""s_lshl_b32 s{sA}, s{sAI}, {10-h}
        s_lshl_b32 s{sB}, s{sV}, {7-h}
        s_add_u32 s{sA}, s{sA}, s{sB}
        s_add_u32 s{sA}, s{sA}, s{sC}
        v_lshrrev_b32 v1, 3, v0
        v_and_b32 v2, 7, v0
        v_mul_u32_u24 v28, {10240 >> h}, v1
        v_lshl_add_u32 v28, v2, {4-h}, v28
        v_add_u32 v28, s{sA}, v28
        v_lshrrev_b32 v1, 4, v0
        v_mul_u32_u24 v29, {XS}, v1
        v_lshl_add_u32 v29, v2, 1, v29
        s_lshl_b32 s{sA}, s{sV}, 4
        v_add_u32 v29, s{sA}, v29""")
    def x_gather(self, tag, shadow):
        A = self.A
        bf = self.o['xbf']
        def loads():
            for i, r in enumerate(("0", f"s{sK1}", f"s{sK2}")):
                A(f"buffer_load_dwordx2 {vr(52+2*i,2)}, v28, {srd(SWS)}, {r} offen sc1" if bf else f"buffer_load_dwordx4 {vr(48+4*i)}, v28, {srd(SWS)}, {r} offen sc1")
        def red():
            if bf: self.mix(self.unpack_sum(48, [52, 54, 56]))
            else:
                for i in range(4): A(f"v_add_f32 v{48+i}, v{48+i}, v{52+i}")
                for i in (0, 2, 1, 3): A(f"v_add_f32 v{48+i}, v{48+i}, v{56+i}")
            self.treduce(48, 49, 50, 51)
            A(f"v_add_f32_dpp v48, v48, v48 row_ror:8 {DPP}\nv_cvt_pk_bf16_f32 v49, 0, v48")
        self.poll(loads, range(52, 58) if bf else range(48, 60), red, (48, 48), tag=tag, shadow=shadow)

    def gu_stage(self):
        A = self.A
        A(f"s_lshr_b32 s{sA}, s{sV}, 2\ns_lshl_b32 s{sA}, s{sA}, 13\ns_add_u32 s{sA}, s{sA}, {L_WG}")
        self.tr_addr(35, sA)
        A(f"s_and_b32 s{sA}, s{sV}, 3\ns_lshl_b32 s{sA}, s{sA}, 5\nv_xor_b32 v35, s{sA}, v35")
        if self.o['defer']:
            l = self.lab("gw"); A(f"s_cmp_eq_u32 s{sP}, 0\ns_cbranch_scc1 {l}"); self.wfrags(12, 35, 2); self.end(l)
        else: self.wfrags(12, 35, 2)
        self.x_gather_pre(RX)
        self.xa_addr()
        self.region(sC, RG)
        A(f"""s_mul_i32 s{sA}, s{sSIG}, {GSL}
        s_add_u32 s{sA}, s{sA}, s{sC}
        s_lshl_b32 s{sB}, s{sV}, {7 if self.o['gbf'] else 8}
        s_add_u32 s{sB}, s{sB}, s{sA}
        v_lshl_add_u32 v32, v0, {3 if self.o['gbf'] else 4}, s{sB}
        s_lshl_b32 s{sB}, s{sV}, 6
        s_add_u32 s{sB}, s{sB}, s{sA}
        v_lshl_add_u32 v34, v0, 2, s{sB}
        v_lshrrev_b32 v1, 4, v0
        s_add_u32 s{sA}, s{sA}, 2560
        v_lshl_add_u32 v33, v1, 4, s{sA}""")
        self.sync(self.o['sync_x'], RX)
        def xsh():
            if self.o['dx']:
                l = self.pass0(); l3 = self.lab("nm"); le = self.lab("dxe")
                A(f"s_cbranch_execz {l3}")
                self.dma_addr(20, 1280)
                wf = self.o['wflag'].replace('plain', '')
                A(f"""s_and_b32 s{sA}, s{sV}, 1
                s_lshl_b32 s{sA}, s{sA}, 6
                v_xor_b32 v20, s{sA}, v20
                s_lshl_b32 s{sB}, s{sV}, 10
                s_add_u32 m0, s{sB}, {L_WD}
                s_mul_i32 s{sA}, s{sV}, {8*1280}
                buffer_load_dwordx4 v20, {srd(SWD)}, s{sA} offen {wf} lds""")
                self.end(l3)
                self.down_pre()
                A(f"s_waitcnt vmcnt(1)\ns_cbranch_execnz {self.lskip}")
                self.end(l)
            self.down_pre()
        self.x_gather('x', xsh)
        A(f"""v_add_f32 v{vXR}, v{vXR}, v49
        v_cvt_pk_bf16_f32 v{vXR}, 0, v{vXR}
        ds_write_b16_d16_hi v29, v{vXR} offset:{L_XA}
        s_waitcnt lgkmcnt(0)""")
        self.stamp(7)
        self.barrier('X')
        if self.o['defer']:
            l = self.pass0(); self.wfrags(12, 35, 2); self.end(l)
        def store():
            if self.o['gbf']:
                A("v_cvt_pk_bf16_f32 v52, v48, v49\nv_cvt_pk_bf16_f32 v53, v50, v51")
                self.exec_mask(0xffff)
                self.stores(f"buffer_store_dwordx2 v[52:53], v32, {srd(SWS)}, 0 offen{{f}}", True, 'X')
            else:
                self.exec_mask(0xffff)
                self.stores(f"buffer_store_dwordx4 v[48:51], v32, {srd(SWS)}, 0 offen{{f}}", True, 'X')
        self.mm_with_gram("v_mfma_f32_16x16x32_bf16 v[48:51], v[4:7], v[12:15], 0", "v_mfma_f32_16x16x32_bf16 v[48:51], v[8:11], v[16:19], v[48:51]", store)
        l = self.pass0()
        self.exec_mask(0xffff0000)
        self.stores(f"buffer_store_dword v48, v34, {srd(SWS)}, 0 offen offset:{2048-64}{{f}}", True)
        self.end(l)
        self.exec_full()
        self.stamp(8)

    def down_wpre(self):
        l = self.role(R_LT4)
        if self.o['dx']: self.A(f"s_cmp_eq_u32 s{sP}, 0\ns_cbranch_scc1 {l}")
        self.wfrags(20, 47, 2); self.end(l)
    def down_pre(self):
        A = self.A
        A(f"s_mov_b32 s{sA}, {L_WD}")
        self.tr_addr(47, sA)
        A(f"s_lshl_b32 s{sA}, s{sV}, 5\nv_xor_b32 v47, s{sA}, v47")
        self.afrag_addr(78, HS); self.pub_addr(79, RY)
        self.region(sD, RG)
        A(f"""s_mul_i32 s{sC}, s{sRI}, 10
        s_lshl_b32 s{sA}, s{sX}, 5
        s_add_u32 s{sC}, s{sC}, s{sA}
        s_mul_i32 s{sC}, s{sC}, {GSL}
        s_add_u32 s{sC}, s{sC}, s{sD}
        v_lshrrev_b32 v1, 4, v0
        v_mul_u32_u24 v3, {GSL}, v1
        v_add_u32 v3, s{sC}, v3
        v_bfe_u32 v2, v0, 3, 1
        v_lshlrev_b32 v2, 6, v2
        v_and_or_b32 v2, v0, 7, v2
        s_lshl_b32 s{sA}, s{sV}, 3
        v_add_u32 v2, s{sA}, v2
        v_lshl_add_u32 v72, v2, {3 if self.o['gbf'] else 4}, v3
        v_lshl_add_u32 v74, v2, 2, v3
        v_add_u32 v73, {8*GSL}, v72
        v_add_u32 v75, {8*GSL}, v74
        v_mov_b32 v3, {OOB}
        v_cmp_gt_u32 vcc, 32, v0
        v_cndmask_b32 v73, v3, v73, vcc
        v_cndmask_b32 v75, v3, v75, vcc
        v_and_b32 v2, 15, v0
        v_mul_u32_u24 v76, {GSL}, v2
        v_lshl_add_u32 v76, v1, 4, v76
        v_add_u32 v76, s{sC}, v76
        v_cmp_gt_u32 vcc, 10, v2
        v_cndmask_b32 v76, v3, v76, vcc
        v_mul_u32_u24 v77, {HS}, v1
        v_and_b32 v2, 7, v0
        v_lshl_add_u32 v77, v2, 1, v77
        s_lshl_b32 s{sA}, s{sV}, 4
        v_add_u32 v77, s{sA}, v77
        v_mov_b32 v44, 0
        v_mov_b32 v45, 0
        v_mov_b32 v46, 0""")

    def down_stage(self):
        A = self.A
        self.sync(self.o['sync_g'])
        gb = self.o['gbf']
        def loadsA(): A(f"buffer_load_dwordx4 v[40:43], v76, {srd(SWS)}, 0 offen offset:2560 sc1")
        def loads():
            if gb: A(f"""buffer_load_dwordx2 v[56:57], v72, {srd(SWS)}, 0 offen sc1
            buffer_load_dwordx2 v[58:59], v72, {srd(SWS)}, s{sKG} offen sc1
            buffer_load_dwordx2 v[60:61], v73, {srd(SWS)}, 0 offen sc1""")
            else: A(f"""buffer_load_dwordx4 v[52:55], v72, {srd(SWS)}, 0 offen sc1
            buffer_load_dwordx4 v[56:59], v72, {srd(SWS)}, s{sKG} offen sc1
            buffer_load_dwordx4 v[60:63], v73, {srd(SWS)}, 0 offen sc1""")
            l = self.pass0()
            A(f"""buffer_load_dword v44, v74, {srd(SWS)}, 0 offen offset:2048 sc1
            buffer_load_dword v45, v74, {srd(SWS)}, s{sKG} offen offset:2048 sc1
            buffer_load_dword v46, v75, {srd(SWS)}, 0 offen offset:2048 sc1""")
            self.end(l)
        def red(s1):
            s0 = f"""v_add_f32 v35, v44, v45
            v_add_f32 v35, v35, v46
            v_mov_b32 v36, v35
            v_permlane32_swap_b32 v35, v36
            v_add_f32 v35, v35, v36
            v_mov_b32 v36, v35
            v_permlane16_swap_b32 v35, v36
            v_add_f32 v{vC}, v35, v36""".split('\n')
            s2 = (self.unpack_sum(52, [56, 58, 60]) if gb else [f"v_add_f32 v{52+i}, v{52+i}, v{56+i}" for i in range(4)] + [f"v_add_f32 v{52+i}, v{52+i}, v{60+i}" for i in (0, 2, 1, 3)]) + \
                 self.capture(lambda: self.treduce(52, 53, 54, 55))
            l = self.pass0(); le = self.lab("rv")
            self.mix(s1, s2, s0)
            A(f"s_cbranch_execnz {le}")
            self.end(l)
            self.mix(s1, s2)
            self.end(le)
            A(f"v_fma_f32 v52, -v37, v{vC}, v52\nv_mul_f32 v52, v52, v38\nv_cvt_pk_bf16_f32 v53, 0, v52")
        self.poll(loads, list(range(56, 62) if gb else range(52, 64)) + list(range(40, 47)), red, (52, 64), tag='g', shadow=self.down_wpre,
                  pre=(loadsA, (40, 43), self.red16([40, 41]) + self.lnstats(40, 41, 37, 38, 39) + ["v_add_f32 v64, v42, v43", "v_add_f32 v64, v64, v40"]))
        A(f"""v_mul_f32 v54, s{sLOG2E}, v53
        v_exp_f32 v54, -v54
        v_add_f32 v54, 1.0, v54
        v_rcp_f32 v54, v54
        v_mul_f32 v54, v53, v54
        v_cvt_pk_bf16_f32 v54, 0, v54
        v_mul_f32_dpp v54, v53, v54 row_ror:8 {DPP}""")
        self.exec_mask(0x00ff00ff00ff00ff)
        A(f"v_cvt_pk_bf16_f32 v54, 0, v54\nds_write_b16_d16_hi v77, v54 offset:{L_HA}")
        self.exec_full()
        A("s_waitcnt lgkmcnt(0)")
        self.stamp(9)
        self.barrier('G')
        l = self.role(R_LT4)
        if self.o['dx']:
            l2 = self.pass0(); self.wfrags(20, 47, 2); self.end(l2)
        A(f"""ds_read_b128 v[4:7], v78 offset:{L_HA}
        ds_read_b128 v[8:11], v78 offset:{L_HA+64}
        s_waitcnt lgkmcnt(1)
        v_mfma_f32_16x16x32_bf16 v[68:71], v[4:7], v[20:23], 0
        s_waitcnt lgkmcnt(0)
        v_mfma_f32_16x16x32_bf16 v[68:71], v[8:11], v[24:27], v[68:71]""")
        self.pub_store(79, 'G')
        self.end(l)
        self.stamp(10)
        self.mix(self.red16([42, 43]))
        A(f"""v_fma_f32 v42, -v37, v43, v42
        v_mul_f32 v42, v42, v38
        v_cvt_pk_bf16_f32 v42, 0, v42
        v_mul_f32 v42, s{sLOG2E}, v42
        v_exp_f32 v42, -v42
        v_sub_f32 v{vXN}, v{vXR}, v37
        v_add_f32 v42, 1.0, v42
        v_rcp_f32 v42, v42
        v_cvt_pk_bf16_f32 v{vXN}, 0, v{vXN}
        v_cvt_pk_bf16_f32 v{vSG}, 0, v42
        v_mul_f32 v{vXN}, v{vXN}, v38
        v_cvt_pk_bf16_f32 v{vXN}, 0, v{vXN}""")

    def y_finish(self):
        self.A(f"""v_mul_f32 v49, v49, v{vSG}
        v_cvt_pk_bf16_f32 v49, 0, v49
        v_add_f32 v49, v{vXN}, v49
        v_cvt_pk_bf16_f32 v49, 0, v49
        v_add_f32 v{vXR}, v{vXR}, v49
        v_cvt_pk_bf16_f32 v{vXR}, 0, v{vXR}""")

    def qg_addr(self, extra):
        self.A(f"""s_lshr_b32 s{sA}, s{sT}, 3
        s_mul_i32 s{sA}, s{sA}, 3
        s_and_b32 s{sB}, s{sV}, 3
        s_add_u32 s{sA}, s{sA}, s{sB}
        s_lshr_b32 s{sB}, s{sA}, 2
        s_mul_i32 s{sB}, s{sB}, 10
        s_lshl_b32 s{sC}, s{sX}, 5
        s_add_u32 s{sB}, s{sB}, s{sC}
        s_mul_i32 s{sB}, s{sB}, {QSL}
        s_add_u32 s{sB}, s{sB}, {RQ[1]}
        s_and_b32 s{sA}, s{sA}, 3
        s_lshl_b32 s{sA}, s{sA}, 8
        s_add_u32 s{sA}, s{sA}, s{sB}
        s_add_u32 s{sA}, s{sA}, {extra}
        v_lshrrev_b32 v1, 4, v0
        v_and_b32 v2, 15, v0
        v_mul_u32_u24 v36, {QSL}, v1
        v_lshl_add_u32 v36, v2, 4, v36
        v_add_u32 v36, s{sA}, v36
        v_add_u32 v37, {8*QSL}, v36
        v_mov_b32 v3, {OOB}
        v_cmp_gt_u32 vcc, 32, v0
        v_cndmask_b32 v37, v3, v37, vcc
        v_lshlrev_b32 v40, 4, v2
        v_lshl_add_u32 v40, v1, 2, v40
        s_and_b32 s{sA}, s{sV}, 3
        s_lshl_b32 s{sA}, s{sA}, 8
        v_add_u32 v40, s{sA}, v40""")
    def cq_gather(self, idle, shadow=None, wait0=0):
        A = self.A
        l = self.role(R_456)
        self.qg_addr("4224")
        def loads(): A(f"""buffer_load_dwordx4 v[12:15], v36, {srd(SWS)}, 0 offen sc1
        buffer_load_dwordx4 v[16:19], v36, {srd(SWS)}, s{sKQ} offen sc1
        buffer_load_dwordx4 v[20:23], v37, {srd(SWS)}, 0 offen sc1""")
        def red():
            for i in range(4): A(f"v_add_f32 v{12+i}, v{12+i}, v{16+i}")
            for i in range(4): A(f"v_add_f32 v{12+i}, v{12+i}, v{20+i}")
            self.treduce(12, 13, 14, 15)
        self.poll(loads, range(12, 24), red, (12, 12), idle=idle, shadow=shadow, wait0=wait0)
        A(f"ds_write_b32 v40, v12 offset:{L_CQ}")
        self.end(l)
    def qg_pre(self):
        A = self.A
        l = self.role(R_456)
        A(f"s_bfe_u32 s{sD}, s{sT}, 0x20001\ns_lshl_b32 s{sF}, s{sD}, 10")
        self.qg_addr(f"s{sF}")
        A(f"""v_mul_u32_u24 v38, {QSL}, v2
        s_lshl_b32 s{sD}, s{sD}, 4
        s_add_u32 s{sD}, s{sD}, s{sB}
        s_add_u32 s{sD}, s{sD}, 4096
        v_add_u32 v38, s{sD}, v38
        v_cmp_gt_u32 vcc, 10, v2
        v_cndmask_b32 v38, v3, v38, vcc
        ds_read_b32 v40, v40 offset:{L_CQ}""")
        self.q_lds_addr(39)
        A(f"s_lshr_b32 s{sA}, s{sA}, 1\nv_add_u32 v39, s{sA}, v39")
        self.end(l)
    def prewarm_o1(self):
        self.mem(f"""v_lshlrev_b32 v1, 4, v0
        s_mul_i32 s{sA}, s{sSIG}, {OSL}
        s_add_u32 s{sA}, s{sA}, {RO[1]}
        s_mov_b32 exec_hi, 0xffffff
        buffer_load_dwordx4 v[60:63], v1, {srd(SWS)}, s{sA} offen sc1
        s_mov_b32 exec_hi, -1""")

    def q_stage_and_final(self):
        A = self.A
        A(f"s_cmp_eq_u32 s{sP}, 1\ns_cbranch_scc1 L_final")
        if self.o['prewarm']:
            l = self.role(R_GE4); la = self.lab("pw"); lb = self.lab("pw"); l3 = self.lab("nm")
            A(f"""s_cbranch_execz {l3}
            v_lshlrev_b32 v1, 4, v0
            s_cmp_ge_u32 s{sV}, 6
            s_cbranch_scc1 {la}
            s_and_b32 s{sB}, s{sV}, 1
            s_lshl_b32 s{sB}, s{sB}, 11
            s_mul_i32 s{sA}, s{sSIG}, {QSL}
            s_add_u32 s{sA}, s{sA}, {RQ[1]}
            s_add_u32 s{sB}, s{sA}, s{sB}
            buffer_load_dwordx4 v[60:63], v1, {srd(SWS)}, s{sB} offen sc1
            buffer_load_dwordx4 v[60:63], v1, {srd(SWS)}, s{sB} offen offset:1024 sc1
            s_add_u32 s{sA}, s{sA}, 4096
            s_mov_b64 exec, 0xff
            buffer_load_dwordx4 v[60:63], v1, {srd(SWS)}, s{sA} offen sc1
            s_branch {lb}
            {la}:
            s_mul_i32 s{sA}, s{sSIG}, {GSL}
            s_add_u32 s{sA}, s{sA}, {RG[1]}
            s_cmp_eq_u32 s{sV}, 6
            s_cselect_b32 s{sB}, 0, 0x400
            s_add_u32 s{sB}, s{sB}, s{sA}
            buffer_load_dwordx4 v[60:63], v1, {srd(SWS)}, s{sB} offen sc1
            s_add_u32 s{sA}, s{sA}, 2560
            s_mul_i32 s{sB}, s{sSIG}, {OSL}
            s_add_u32 s{sB}, s{sB}, {RO[1]}
            s_cmp_eq_u32 s{sV}, 6
            s_cselect_b32 s{sA}, s{sA}, s{sB}
            s_cselect_b32 exec_lo, 0xff, -1
            s_cselect_b32 exec_hi, 0, 0xffffff
            buffer_load_dwordx4 v[60:63], v1, {srd(SWS)}, s{sA} offen sc1
            {lb}:
            s_mov_b64 exec, -1""")
            self.end(l3); self.end(l)
        A(f"s_lshr_b32 s{sA}, s{sV}, 1\ns_lshl_b32 s{sA}, s{sA}, 13\ns_add_u32 s{sA}, s{sA}, {L_WQ}")
        self.tr_addr(34, sA)
        A(f"s_and_b32 s{sA}, s{sV}, 1\ns_lshl_b32 s{sA}, s{sA}, 6\nv_xor_b32 v34, s{sA}, v34\nv_xor_b32 v35, 32, v34")
        self.wfrags(12, 34, 2); self.wfrags(20, 35, 2)
        self.x_gather_pre(RY)
        self.xa_addr()
        A(f"""v_and_b32 v1, 15, v0
        v_lshlrev_b32 v32, 10, v1
        v_lshrrev_b32 v1, 4, v0
        v_lshl_add_u32 v32, v1, 4, v32
        s_mul_i32 s{sB}, s{sSIG}, {QSL}
        s_add_u32 s{sB}, s{sB}, {RQ[1]}
        s_lshl_b32 s{sA}, s{sV}, 7
        s_add_u32 s{sA}, s{sA}, s{sB}
        v_add_u32 v32, s{sA}, v32
        s_add_u32 s{sB}, s{sB}, 4096
        v_lshl_add_u32 v33, v1, 4, s{sB}""")
        self.sync(self.o['sync_y'], RY)
        self.x_gather('y', lambda: (self.attn_pre(), self.qg_pre()))
        self.y_finish()
        A(f"ds_write_b16_d16_hi v29, v{vXR} offset:{L_XA}\ns_waitcnt lgkmcnt(0)")
        self.stamp(11)
        self.barrier('Y')
        def store():
            self.exec_mask(0x000f000f000f000f)
            self.stores(f"buffer_store_dwordx4 v[48:51], v32, {srd(SWS)}, 0 offen{{f}}\nbuffer_store_dwordx4 v[52:55], v32, {srd(SWS)}, 0 offen offset:64{{f}}", True, 'Y')
            self.exec_full()
        self.mm_with_gram("v_mfma_f32_16x16x32_bf16 v[48:51], v[12:15], v[4:7], 0\nv_mfma_f32_16x16x32_bf16 v[52:55], v[20:23], v[4:7], 0",
                          "v_mfma_f32_16x16x32_bf16 v[48:51], v[16:19], v[8:11], v[48:51]\nv_mfma_f32_16x16x32_bf16 v[52:55], v[24:27], v[8:11], v[52:55]", store)
        A("L_qwait:")
        l = self.role(R_456)
        self.sync(self.o['sync_q'])
        def loadsA(): A(f"buffer_load_dwordx2 v[16:17], v38, {srd(SWS)}, 0 offen sc1")
        def loads(): A(f"""buffer_load_dwordx4 v[4:7], v36, {srd(SWS)}, 0 offen sc1
        buffer_load_dwordx4 v[8:11], v36, {srd(SWS)}, s{sKQ} offen sc1
        buffer_load_dwordx4 v[12:15], v37, {srd(SWS)}, 0 offen sc1""")
        def red(s1):
            s2 = [f"v_add_f32 v{4+i}, v{4+i}, v{8+i}" for i in range(4)] + [f"v_add_f32 v{4+i}, v{4+i}, v{12+i}" for i in (0, 2, 1, 3)] + self.capture(lambda: self.treduce(4, 5, 6, 7))
            self.mix(s1, s2)
            A("v_fma_f32 v4, -v18, v40, v4\nv_mul_f32 v4, v4, v19\nv_cvt_pk_bf16_f32 v5, 0, v4")
        self.poll(loads, range(4, 18), red, (4, 16), idle=True, tag='q', shadow=lambda: self.attn_zero(skip=range(36, 41)), pre=(loadsA, (16, 17), self.red16([16, 17]) + self.lnstats(16, 17, 18, 19, 21)))
        le = self.lab("qz")
        A(f"ds_write_b16_d16_hi v39, v5 offset:{L_QL}")
        for r in range(36, 41): A(f"v_mov_b32 v{r}, 0")
        A(f"s_cbranch_execnz {le}")
        self.end(l)
        self.attn_zero()
        self.end(le)
        A("s_waitcnt vmcnt(0) lgkmcnt(0)")
        A(f"s_mov_b32 s{sP}, 1")
        if self.o['dry']: A(f"s_cmp_eq_u32 s{sDRY}, 1\ns_cbranch_scc1 L_final_body")
        self.barrier('Q')
        if int(self.o['wb']):
            l = self.lab("wb")
            A(f"s_cmp_eq_u32 s{sT}, 30\ns_cbranch_scc0 L_attn\ns_cmp_eq_u32 s{sV}, 3\ns_cbranch_scc0 L_attn\nbuffer_wbl2 sc1")
        A("s_branch L_attn")
        A(f"L_idle:\ns_cmp_eq_u32 s{sP}, 0\ns_cbranch_scc0 L_done")
        if self.o['prewarm']:
            l = self.role(R_7); self.prewarm_o1(); A("s_waitcnt vmcnt(0)"); self.end(l)
        self.cq_gather(True)
        A("s_waitcnt lgkmcnt(0)")
        if self.o['clr'] == 'late':
            l = self.role(R_456); lp = self.lab("ig"); lr = self.lab("igr")
            A(f"""s_lshl_b32 s{sA}, s{sX}, 5
            s_mul_i32 s{sA}, s{sA}, {GSL}
            s_add_u32 s{sA}, s{sA}, {RG[0] + 2560}
            v_min_u32 v1, 29, v0
            v_mul_u32_u24 v1, {GSL}, v1
            {lp}:
            buffer_load_dword v4, v1, {srd(SWS)}, s{sA} offen sc1
            s_waitcnt vmcnt(0)
            v_cmp_eq_u32 vcc, -1, v4
            s_cbranch_vccnz {lr}""")
            self.tail.append(f"{lr}:\ns_sleep 4\ns_sub_u32 s{sTO}, s{sTO}, 1\ns_cbranch_scc1 L_end\ns_branch {lp}")
            self.end(l)
        self.attn_pre(); self.qg_pre()
        A("s_waitcnt lgkmcnt(0)\ns_branch L_qwait")
        A(f"""L_final:
        s_and_b32 s{sA}, s{sT}, 7
        s_cmp_eq_u32 s{sA}, s{sX}
        s_cbranch_scc0 L_done
        s_cmp_lt_u32 s{sT}, 10
        s_cbranch_scc0 L_done
        L_final_body:""")
        self.x_gather_pre(RY); self.xcol_addr(29)
        self.sync(self.o['sync_f'], RY)
        self.x_gather('f', None)
        self.y_finish()
        self.exec_mask(0x00ff00ff00ff00ff)
        self.mem(f"buffer_store_short_d16_hi v{vXR}, v29, {srd(SOUT)}, 0 offen")
        self.exec_full()
        if self.o['dry']: A(f"s_cmp_eq_u32 s{sDRY}, 1\ns_cbranch_scc1 L_stubs")
        A("L_done:")
        if int(self.o['pad']):
            A(f"""L_pad:
            s_memrealtime s[90:91]
            s_waitcnt lgkmcnt(0)
            s_sub_u32 s90, s90, s96
            s_cmp_lt_u32 s90, {int(self.o['pad'])*100}
            s_cbranch_scc1 L_pad""")
        if self.prof: self.stamp(11)
        A("L_end:")
        if self.o['t2']: A("s_waitcnt vmcnt(0)\ns_memrealtime s[68:69]\ns_mov_b32 s64, s96")
        if self.o['fine'] or self.o['t2']: A("s_waitcnt lgkmcnt(0)")
        if self.prof or self.o['fine'] or self.o['t2']:
            A(f"""s_mov_b64 exec, -1
            s_lshl_b32 s{sA}, s2, 3
            s_add_u32 s{sA}, s{sA}, s{sV}
            s_lshl_b32 s{sA}, s{sA}, 7
            s_add_u32 s{sA}, s{sA}, {STAMP}
            v_mov_b32 v1, 0""")
            for i in range(24): A(f"v_mov_b32 v{4+i}, s{sST+i}")
            A(f"v_mov_b32 v28, s{sFAST}\nv_mov_b32 v29, s{sTO}\nv_mov_b32 v30, 0\nv_mov_b32 v31, 0\ns_mov_b64 exec, 1")
            for i in range(7): A(f"buffer_store_dwordx4 {vr(4+4*i)}, v1, {srd(SWS)}, s{sA} offen offset:{16*i}")
        A("L_exit:\ns_endpgm\nL_stubs:")
        for st in self.stubs: A(st)
        A("s_branch L_dry_ret" if self.o['dry'] else "s_endpgm")

    def build(self):
        self.prologue(); self.startup(); self.attention(); self.wo_stage(); self.gu_stage(); self.down_stage(); self.q_stage_and_final()
        i = 0
        while i < len(self.tail): self.A(self.tail[i]); i += 1
        body, nn = resolve(self.L)
        hdr = open('interleave_layers__sliding_block_cached__moe_arch_mod__decode.s.ref').read().split('\n')
        hl = [l for l in hdr if l.startswith(';') and '@launch' not in l]
        hl = hl[:hl.index([l for l in hl if 'Override launch' in l][0])]
        out = hl + [f"; @launch grid=(256,1,1) block=(512,1,1) lds={LDS_SIZE}",
                    '.amdgcn_target "amdgcn-amd-amdhsa--gfx950"', ".text", f".globl {NAME}", ".p2align 8", f".type {NAME},@function", f"{NAME}:"]
        out += [("" if l.endswith(':') else "    ") + l for l in body]
        out += ['.section .rodata,"a"', ".p2align 6", f".amdhsa_kernel {NAME}",
                "  .amdhsa_next_free_vgpr 256", "  .amdhsa_next_free_sgpr 102", "  .amdhsa_accum_offset 160",
                "  .amdhsa_group_segment_fixed_size 0", "  .amdhsa_kernarg_size 104", "  .amdhsa_user_sgpr_count 2",
                "  .amdhsa_user_sgpr_kernarg_segment_ptr 1", "  .amdhsa_system_sgpr_workgroup_id_x 1",
                "  .amdhsa_float_denorm_mode_32 3", ".end_amdhsa_kernel"]
        return "\n".join(out) + "\n", nn

if __name__ == "__main__":
    path = sys.argv[1]
    opts = {}; prof = False
    for a in sys.argv[2:]:
        if a == 'prof': prof = True
        else:
            k, v = a.split('=')
            opts[k] = {'True': True, 'False': False}.get(v, v)
    s, nn = G(prof, opts).build()
    open(path, 'w').write(s)
    print("wrote", path, len(s.split('\n')), "lines, nops inserted:", nn)
```

```python
import re

REG_RE = re.compile(r'(?<![\w.])(-|abs\()?([vas])(\d+|\[(\d+):(\d+)\])(?![\w])')
TRANS = ('v_exp_f32', 'v_log_f32', 'v_rcp_f32', 'v_rsq_f32', 'v_sqrt_f32', 'v_sin_f32', 'v_cos_f32')

def regs_of(tok):
    tok = tok.strip()
    out = []
    if tok in ('vcc',): return [('s', 'vcc')]
    if tok in ('exec',): return [('s', 'exec')]
    if tok in ('m0',): return [('s', 'm0')]
    for m in REG_RE.finditer(tok):
        k = m.group(2)
        if m.group(4) is not None:
            out += [(k, i) for i in range(int(m.group(4)), int(m.group(5)) + 1)]
        else:
            out.append((k, int(m.group(3))))
    return out

class Ins:
    def __init__(self, text):
        self.text = text
        t = text.split(';')[0].strip()
        self.label = None
        self.op = None
        self.w = []; self.r = []
        if t.endswith(':'):
            self.label = t[:-1]; return
        if not t or t.startswith('.'):
            self.op = '.'; return
        p = t.split(None, 1)
        op = self.op = p[0]
        rest = p[1] if len(p) > 1 else ''
        ops = []; depth = 0; cur = ''
        for ch in rest:
            if ch in '[(': depth += 1
            if ch in '])': depth -= 1
            if ch == ',' and depth == 0: ops.append(cur.strip()); cur = ''
            else: cur += ch
        if cur.strip(): ops.append(cur.strip())
        if ops:
            first = ops[-1].split(None, 1)
            self.mods = first[1] if len(first) > 1 else ''
            ops[-1] = first[0]
        else: self.mods = ''
        self.ops = ops
        self.is_mfma = op.startswith('v_mfma') or op.startswith('v_smfmac')
        self.is_valu = op.startswith('v_') and not self.is_mfma
        self.is_dpp = op.endswith('_dpp')
        self.is_perm = op.startswith('v_permlane')
        self.is_sdwa_w = op.endswith('_sdwa') and 'dst_sel:BYTE' in text
        self.is_dot = op.startswith('v_dot')
        self.is_trans = op.replace('_e32', '').replace('_e64', '') in TRANS
        self.is_vmem = op.startswith('buffer_') or op.startswith('global_')
        self.is_ds = op.startswith('ds_')
        self.is_salu = op.startswith('s_')
        self.is_lanerd = op.startswith('v_readlane') or op.startswith('v_readfirstlane')
        self.is_ldsdma = self.is_vmem and ' lds' in (' ' + self.mods)
        self.srcC = []; self.srcAB = []; self.stdata = []
        R = [regs_of(o) for o in ops]
        flat = lambda l: [x for y in l for x in y]
        if self.is_mfma:
            self.w = R[0]; self.srcAB = R[1] + R[2]
            if op.startswith('v_smfmac'): self.srcC = R[0]; self.srcAB += R[3]
            else: self.srcC = R[3]
            self.r = self.srcAB + self.srcC
        elif self.is_valu:
            if self.is_perm: self.w = R[0] + R[1]; self.r = R[0] + R[1]
            else:
                self.w = R[0]; self.r = flat(R[1:])
                if op.startswith(('v_fmac', 'v_dot2c', 'v_writelane')) or self.is_dpp or self.is_sdwa_w: self.r += R[0]
                if op.startswith('v_cmpx'): self.w += [('s', 'exec')]
                if op.startswith(('v_add_co', 'v_sub_co', 'v_addc_co')): self.w += R[1]; self.r = flat(R[2:])
        elif self.is_vmem:
            if self.is_ldsdma: self.r = flat(R) + [('s', 'm0')]
            elif '_load' in op:
                self.w = R[0]; self.r = flat(R[1:])
                if 'd16' in op: self.r += R[0]
            else:
                self.r = flat(R); self.stdata = R[0] if op.startswith('buffer_') else R[1]
        elif self.is_ds:
            if op.startswith('ds_read') or '_rtn_' in op or op.startswith('ds_bperm') or op.startswith('ds_swizzle'):
                self.w = R[0]; self.r = flat(R[1:]) + (R[0] if 'd16' in op else [])
            else: self.r = flat(R)
        elif self.is_salu:
            if op.startswith(('s_cmp', 's_bitcmp', 's_cbranch', 's_branch', 's_waitcnt', 's_barrier', 's_nop', 's_endpgm', 's_sleep', 's_setprio', 's_setpc')):
                self.r = flat(R)
            else:
                self.w = R[0] if R else []; self.r = flat(R[1:])
                if 'saveexec' in op: self.w += [('s', 'exec')]
        self.wide_store = self.is_vmem and ('store_dwordx4' in op or 'store_dwordx3' in op)
        self.states = 1
        if op == 's_nop': self.states = int(ops[0], 0) + 1
        self.passes = 0
        if self.is_mfma:
            if '32x32' in op: self.passes = 8
            elif '4x4' in op: self.passes = 2
            else: self.passes = 4

def need(p, c):
    n = 0
    pw = set(p.w); cr = set(c.r); cw = set(c.w)
    vw = {x for x in pw if x[0] in 'va'}; sw = {x for x in pw if x[0] == 's'}
    if p.is_valu:
        if p.is_sdwa_w and ((vw & cr) or (vw & cw)): n = max(n, 1)
        if p.is_dot and ((vw & cr) or (vw & cw)):
            same_c = c.op == p.op and len(c.ops) == 4 and not (vw & set(regs_of(c.ops[1]) + regs_of(c.ops[2])))
            if not same_c: n = max(n, 3)
        if vw & cr:
            if c.is_mfma: n = max(n, 2)
            if c.is_dpp: n = max(n, 2)
            if c.is_perm: n = max(n, 2)
            if c.is_lanerd: n = max(n, 1)
            if p.is_trans and (c.is_valu or c.is_mfma): n = max(n, 1)
        if sw & cr:
            if c.is_valu: n = max(n, 4 if c.is_lanerd or c.op.startswith('v_writelane') else 2)
            if c.is_vmem: n = max(n, 5)
            if c.is_salu and not c.op.startswith('s_cbranch'): n = max(n, 1)
        if ('s', 'exec') in pw:
            if c.is_dpp: n = max(n, 5)
            if c.is_mfma or c.is_lanerd or c.is_perm: n = max(n, 4)
    if p.is_mfma:
        big = {2: 5, 4: 8, 8: 12}[p.passes]
        if c.is_mfma:
            if vw & set(c.srcAB): n = max(n, big)
            if vw & set(c.srcC):
                if set(c.srcC) == vw and c.op == p.op: n = max(n, 2 if p.passes == 2 else 0)
                else: n = max(n, {2: 4, 4: 6, 8: 10}[p.passes])
            elif vw & cw: n = max(n, big)
        elif (vw & cr) or (vw & cw): n = max(n, big)
        if c.is_valu and (set(p.srcC) & cw): n = max(n, {2: 1, 4: 3, 8: 7}[p.passes])
    if p.op != '.' and p.label is None:
        if p.is_salu and ('s', 'm0') in pw and c.is_ldsdma: n = max(n, 1)
        if p.wide_store and (set(p.stdata) & cw): n = max(n, 2)
    return n

def resolve(lines):
    ins = [Ins(l) for l in lines]
    def maps():
        labels = {x.label: i for i, x in enumerate(ins) if x.label}
        preds = {}
        for i, x in enumerate(ins):
            if x.op and (x.op.startswith('s_cbranch') or x.op == 's_branch'):
                preds.setdefault(labels[x.ops[0]], []).append(i)
        return preds
    def worst_at(i, preds):
        c = ins[i]; worst = 0
        stack = [(i - 1, 0)]; seen = set()
        while stack:
            j, d = stack.pop()
            if j < 0 or d >= 12 or (j, d) in seen: continue
            seen.add((j, d))
            p = ins[j]
            if p.label is not None:
                for b in preds.get(j, []): stack.append((b, d))
                k = j - 1
                while k >= 0 and (ins[k].label is None and ins[k].op == '.'): k -= 1
                if k >= 0 and ins[k].op in ('s_branch', 's_endpgm', 's_setpc_b64'): continue
                stack.append((j - 1, d)); continue
            if p.op == '.': stack.append((j - 1, d)); continue
            worst = max(worst, need(p, c) - d)
            stack.append((j - 1, d + p.states))
        return worst
    nins = 0
    for sweep in range(10):
        changed = False
        preds = maps()
        i = 0
        while i < len(ins):
            c = ins[i]
            if c.label is None and c.op != '.':
                w = worst_at(i, preds)
                if w > 0:
                    ins.insert(i, Ins(f"s_nop {w - 1}")); changed = True; nins += 1
                    preds = maps(); i += 1
            i += 1
        if not changed: break
    return [x.text for x in ins], nins

import subprocess
def sizes(lines):
    src = '.amdgcn_target "amdgcn-amd-amdhsa--gfx950"\n.text\n' + "\n".join(l for l in lines) + "\n"
    r = subprocess.run(["llvm-mc", "-triple=amdgcn-amd-amdhsa", "-mcpu=gfx950", "-show-encoding"], input=src, capture_output=True, text=True)
    assert r.returncode == 0, r.stderr[:2000]
    enc = [l for l in r.stdout.split('\n') if '; encoding:' in l]
    out = []; k = 0
    for l in lines:
        t = l.split(';')[0].strip()
        if not t or t.endswith(':') or t.startswith('.'): out.append(0)
        else:
            out.append(enc[k].split('encoding:')[1].count(',') + 1); k += 1
    assert k == len(enc)
    return out

PROMO = ('v_add_f32', 'v_sub_f32', 'v_subrev_f32', 'v_mul_f32', 'v_max_f32', 'v_min_f32', 'v_fmac_f32', 'v_mov_b32', 'v_and_b32', 'v_or_b32', 'v_xor_b32',
         'v_lshlrev_b32', 'v_lshrrev_b32', 'v_add_u32', 'v_sub_u32', 'v_exp_f32', 'v_rcp_f32', 'v_sqrt_f32', 'v_mul_u32_u24', 'v_min_u32', 'v_max_u32', 'v_cmp_u_f32')
def align8(lines, start, minrun=2, nopmin=4):
    lines = list(lines); sz = sizes(lines)
    i = lines.index(start); off = 0; cand = None; np_ = nn = 0
    while i < len(lines):
        s = sz[i]
        if s >= 8 and off % 8 == 4:
            run = 0; j = i
            while j < len(lines) and (sz[j] >= 8 or sz[j] == 0):
                run += sz[j] >= 8; j += 1
            if cand is not None and run >= minrun:
                op = lines[cand].split()[0]
                lines[cand] = lines[cand].replace(op, op + '_e64', 1); sz[cand] = 8; off += 4; np_ += 1
            elif run >= nopmin:
                lines.insert(i, 's_nop 0'); sz.insert(i, 4); off += 4; nn += 1; i += 1
        if s >= 8: cand = None
        elif s == 4 and lines[i].split()[0] in PROMO: cand = i
        off += s; i += 1
    return lines, np_, nn
```

```python
import sys
from asmlib import resolve, align8

NAME = "interleave_layers__sliding_block_cached__moe_arch_mod__decode_kernel"

OSL, GSL, QSL, Q0SL, XSZ = 896, 2688, 5248, 4096, 245760
RO = [0, 256 * OSL]
RX = [2 * 256 * OSL, 2 * 256 * OSL + XSZ]
RY = [RX[1] + XSZ, RX[1] + 2 * XSZ]
RG = [RY[1] + XSZ, RY[1] + XSZ + 256 * GSL]
RQ = [RG[1] + 256 * GSL, RG[1] + 256 * GSL + 256 * Q0SL]
RF = RQ[1] + 256 * QSL
RE = RF + 32768
WS_END = RE + 2048
STAMP = WS_END
WS_SIZE = WS_END + 256 * 8 * 128
OOB = 0x7ff00000
L_OC = 0
L_ML = L_OC + 12288
L_XA = L_ML + 64; XS = 144
L_HA = L_XA + 6 * XS; HS = 192
L_OA = L_HA + 4 * HS; OS = 576
L_QL = L_OA + 4 * OS
L_FL = L_QL + 400
L_CQ = L_FL + 32
L_CS = L_CQ + 768
L_X0 = L_CS + 1024
L_WD = (L_X0 + 5120 + 127) // 128 * 128
L_WG = L_WD + 8192
L_WU = L_WG + 8192
L_WO = L_WU + 8192
L_WQ = L_WO + 32768
L_VP = L_WQ + 32768
LDS_SIZE = L_VP + 8 * 6144
assert LDS_SIZE <= 163840
sW, sV, sX, sT, sP, sDRY = 2, 3, 4, 5, 6, 7
SK, SVV, SWS, SWQ, SWO, SWG, SWU, SWD, SX0, SWR, SOUT = range(8, 52, 4)
sAI, sRI, sSIG, sSLOT = 52, 53, 54, 55
sFAST, sROLE, sTO, sEPS = 56, 57, 58, 59
sFULL = 60
sA, sB, sC, sD, sE, sF = 62, 63, 88, 89, 90, 91
sM = 92
sLOG2E, sSCALE, sINVN = 93, 94, 95
sG, sXCC, sSAVE, sTAG = 98, 99, 100, 101
sST = 64
R_LT4, R_GE4, R_456, R_7, R_6, R_GR = range(6)
sLO, sHI = 44, 45
sK1, sK2, sKG, sKQ = 40, 41, 42, 43
vXR, vXN, vSG, vC = 80, 81, 82, 83
VBASE = 88
ODD = 0xAAAAAAAAAAAAAAAA

def srd(b): return f"s[{b}:{b+3}]"
def vr(a, n=4): return f"v[{a}:{a+n-1}]" if n > 1 else f"v{a}"
def ar(a, n=4): return f"a[{a}:{a+n-1}]"
DPP = "row_mask:0xf bank_mask:0xf"

class G:
    def __init__(self, prof=False, opts=None):
        self.L = []; self.tail = []; self.stubs = []; self.n = 0; self.prof = prof
        self.o = dict(dry=False, sync_o='sleep0', sync_x='acklo0', sync_g='sleep0', sync_y='acklo0', sync_q='sleep0', sync_f='acklo', fast=True,
                      clear='sc1', wflag='plain', bsleep=8, pad=0, probe=-1, probep=0, kvflag='nt', defer=True, cwo='10,10,10,2', cgud='4,2,2,0', csplit=True, prewarm=True, two='oqg', prio=4, at2=0, pk=0, mle=0, a8=0, a8n=4, dwo='gud', dx='', noq0=0, al=8, alo=0, clr='all', tq='', asl=0, pwo=True, t2=False, xbf=False, gbf=False, qbf=False, quick=False, gramw=3, fine='', finep=-1, finei='s_memtime', ldi='sc1', ldx='sc1', stx='sc1', sti='plain', wb=2, early='xy', q0st='sc1', q0ld='sc1')
        self.o.update(opts or {})
        for k in ('dwo', 'dx'): self.o[k] = self.o[k].replace('-', '')
        if not self.o['defer']: self.o['dwo'] = self.o['dx'] = ''
        self.o['defer'] = bool(set(self.o['dwo']) & set('gu'))
    def A(self, s):
        for l in s.split('\n'):
            l = l.strip()
            if l: self.L.append(l)
    def lab(self, p):
        self.n += 1; return f"L_{p}_{self.n}"
    def exec_mask(self, m):
        self.A(f"s_and_b32 exec_lo, s{sFULL}, 0x{m & 0xffffffff:x}\ns_and_b32 exec_hi, s{sFULL}, 0x{m >> 32:x}")
    def exec_full(self): self.A(f"s_mov_b64 exec, s[{sFULL}:{sFULL+1}]")
    def barrier(self, tag='z'):
        self.fs(tag + 'a')
        l = self.lab("nb"); self.A(f"s_cbranch_execz {l}\ns_barrier\n{l}:")
        self.fs(tag + 'b')
    def role(self, bit):
        l = self.lab("role"); self.A(f"s_bitcmp1_b32 s{sROLE}, {bit}\ns_cbranch_scc0 {l}"); return l
    def pass0(self):
        l = self.lab("p0"); self.A(f"s_cmp_eq_u32 s{sP}, 0\ns_cbranch_scc0 {l}"); return l
    def end(self, l): self.A(f"{l}:")
    def mem(self, lines):
        l = self.lab("nm"); self.A(f"s_cbranch_execz {l}"); self.A(lines); self.A(f"{l}:")
    def capture(self, fn):
        save = self.L; self.L = []; fn(); out = self.L; self.L = save; return out
    def stores(self, lines, intra, tag='z'):
        self.fs(tag + 's')
        if intra and self.o['fast']:
            l1 = self.lab("st"); l2 = self.lab("st")
            self.A(f"s_cbranch_execz {l2}\ns_cmp_eq_u32 s{sFAST}, 0\ns_cbranch_scc1 {l1}")
            self.A(lines.format(f=' ' + self.o['sti'].replace('plain', '').replace('_', ' '))); self.A(f"{l2}:")
            self.tail.append(f"{l1}:\n" + lines.format(f=" sc1") + f"\ns_branch {l2}")
        else:
            self.mem(lines.format(f=' ' + self.o['stx'].replace('_', ' ')))
    def poll(self, loads0, regs, reduce, chk, idle=False, tag='z', shadow=None, wait0=0, pre=None, post=None):
        A = self.A
        fl = ' ' + self.o['ldx' if tag in 'xyf' else 'ldi'].replace('_', ' ')
        def loads():
            for x in self.capture(loads0): A(x[:-4] + fl if x.endswith(' sc1') else x)
        lw = self.lab("pw"); lr = self.lab("retry"); ls = self.lab("slow"); lo = self.lab("ok"); l2 = self.lab("slow")
        self.fs(tag + '0')
        if pre and tag not in self.o['two']:
            l0, r0, p0 = loads, reduce, pre
            loads = lambda: (p0[0](), l0()); reduce = lambda: r0(p0[2]); pre = None
        elif pre:
            la = self.lab("pa"); lb = self.lab("pb"); l = self.lab("nm")
            A(f"s_cbranch_execz {l}"); pre[0](); A(f"{l}:\ns_movk_i32 s{sG}, 0x100")
            if shadow: shadow()
            shadow = lambda: self.mix(pre[2])
            A(f"s_waitcnt vmcnt(0)\nv_cmp_u_f32 vcc, v{pre[1][0]}, v{pre[1][1]}\ns_cbranch_vccz {lb}\n{la}:")
            if int(self.o['asl']): A(f"s_sleep {self.o['asl']}")
            pre[0]()
            A(f"s_sub_u32 s{sG}, s{sG}, 1\ns_waitcnt vmcnt(0)\ns_cbranch_scc1 {lb}\nv_cmp_u_f32 vcc, v{pre[1][0]}, v{pre[1][1]}\ns_cbranch_vccnz {la}\n{lb}:")
            self.fs(tag + '3')
            r0 = reduce; reduce = lambda: r0([])
        l = self.lab("nm"); A(f"s_cbranch_execz {l}"); loads(); A(f"{l}:\ns_movk_i32 s{sG}, 0x100")
        self.lskip = self.lab("nw")
        lskip = self.lskip
        if shadow: shadow()
        if wait0:
            l = self.lab("w0"); A(f"s_waitcnt vmcnt({wait0})\ns_branch {l}\n{lw}:\ns_waitcnt vmcnt(0)\n{l}:")
        else: A(f"{lw}:\ns_waitcnt vmcnt(0)")
        A(f"{lskip}:")
        self.fs(tag + '1')
        reduce()
        A(f"v_cmp_u_f32 vcc, v{chk[0]}, v{chk[1]}")
        if post: post()
        A(f"s_cbranch_vccnz {lr}\n{lo}:")
        self.fs(tag + '2')
        if self.o['fine'].split(',')[-1] == tag + 'n': A(f"s_sub_u32 s86, 0x101, s{sG}")
        def stub():
            A(f"{lr}:")
            if idle:
                l = self.lab("idl"); A(f"s_cmp_lt_u32 s{sT}, 30\ns_cbranch_scc1 {l}\ns_sleep 4\n{l}:")
            A(f"s_sub_u32 s{sG}, s{sG}, 1\ns_cbranch_scc1 {ls}")
            if self.prof: A(f"s_sub_u32 s{sTO}, s{sTO}, 1")
            l = self.lab("nm"); A(f"s_cbranch_execz {l}"); loads(); A(f"s_branch {lw}\n{l}:")
        self.stubs.append("\n".join(self.capture(stub)))
        def slow():
            A(f"{l2}:\ns_sub_u32 s{sTO}, s{sTO}, 1\ns_cbranch_scc1 L_end\n{ls}:")
            if pre: pre[0]()
            loads(); A("s_waitcnt vmcnt(0)")
            r = list(regs)
            A(f"v_max_u32 v1, v{r[0]}, v{r[1]}"); r = r[2:]
            while r:
                if len(r) >= 2: A(f"v_max3_u32 v1, v1, v{r[0]}, v{r[1]}"); r = r[2:]
                else: A(f"v_max_u32 v1, v1, v{r[0]}"); r = []
            A(f"v_cmp_eq_u32 vcc, -1, v1\ns_cbranch_vccnz {l2}")
            if pre: self.mix(pre[2])
            reduce()
            if post: post()
            A(f"s_branch {lo}")
        self.tail.append("\n".join(self.capture(slow)))
    def stamp(self, i, both=True):
        if int(self.o['probe']) == i:
            l = self.lab("probe")
            self.A(f"s_cmp_eq_u32 s{sP}, {self.o['probep']}\ns_cbranch_scc0 {l}\ns_cbranch_execz {l}\ns_memrealtime s[96:97]\ns_waitcnt lgkmcnt(0)\n{l}:")
        if not self.prof: return
        self.A("s_memrealtime s[96:97]\ns_waitcnt lgkmcnt(0)")
        if both:
            self.A(f"s_cmp_eq_u32 s{sP}, 0\ns_cselect_b32 s{sST+i}, s96, s{sST+i}\ns_cselect_b32 s{sST+12+i}, s{sST+12+i}, s96")
        else:
            self.A(f"s_mov_b32 s{sST+i}, s96")
    def fs(self, name):
        names = self.o['fine'].split(',') if self.o['fine'] else []
        if name in names:
            i = names.index(name)
            if int(self.o['finep']) >= 0:
                l = self.lab("fs"); self.A(f"s_cmp_eq_u32 s{sP}, {self.o['finep']}\ns_cbranch_scc0 {l}\n{self.o['finei']} s[{64+2*i}:{65+2*i}]\n{l}:")
            else: self.A(f"{self.o['finei']} s[{64+2*i}:{65+2*i}]")
    def sync(self, kind, R=None):
        if kind.startswith('sent'):
            A = self.A; w = int(kind[4:5]); off = int(kind[5:] or 1008)
            l = self.lab("sn"); la = self.lab("sna"); lb = self.lab("snb")
            A(f"s_cmp_eq_u32 s{sV}, {w}\ns_cbranch_scc0 {l}")
            self.region(sC, R)
            A(f"""s_lshl_b32 s{sA}, s{sAI}, 10
            s_add_u32 s{sA}, s{sA}, s{sC}
            v_min_u32 v1, 23, v0
            v_mul_u32_u24 v1, 10240, v1
            s_movk_i32 s{sG}, 0x200
            s_mov_b32 exec_hi, 0
            {la}:
            buffer_load_dword v2, v1, {srd(SWS)}, s{sA} offen offset:{off} sc1
            s_sub_u32 s{sG}, s{sG}, 1
            s_waitcnt vmcnt(0)
            s_cbranch_scc1 {lb}
            v_cmp_eq_u32 vcc, -1, v2
            s_cbranch_vccnz {la}
            {lb}:
            s_mov_b32 exec_hi, -1
            {l}:""")
            self.barrier()
            return
        if kind == 'ack': self.A("s_waitcnt vmcnt(0)"); self.barrier()
        elif kind.startswith('acklo'):
            l = self.role(R_LT4); self.A("s_waitcnt vmcnt(0)"); self.end(l); self.barrier()
            if kind[5:] and int(kind[5:]): self.A(f"s_sleep {int(kind[5:])}")
        elif kind.startswith('sleep'):
            if int(kind[5:]): self.A(f"s_sleep {int(kind[5:])}")
        elif kind.startswith('acks'): self.A("s_waitcnt vmcnt(0)"); self.barrier(); self.A(f"s_sleep {int(kind[4:])}")
    def treduce(self, r0, r1, r2, r3):
        self.A(f"""v_permlane32_swap_b32 v{r0}, v{r2}
        v_permlane32_swap_b32 v{r1}, v{r3}
        v_add_f32 v{r0}, v{r0}, v{r2}
        v_add_f32 v{r1}, v{r1}, v{r3}
        v_permlane16_swap_b32 v{r0}, v{r1}
        v_add_f32 v{r0}, v{r0}, v{r1}""")
    def red16(self, regs):
        return [f"v_add_f32_dpp v{r}, v{r}, v{r} {perm} {DPP}" for perm in ("quad_perm:[1,0,3,2]", "quad_perm:[2,3,0,1]", "row_half_mirror", "row_mirror") for r in regs]
    def lnstats(self, sq, sm, m, rs, t):
        return f"""v_mul_f32 v{sm}, s{sINVN}, v{sm}
        v_mul_f32 v{sq}, s{sINVN}, v{sq}
        v_fma_f32 v{t}, -v{sm}, v{sm}, v{sq}
        v_cvt_pk_bf16_f32 v{m}, 0, v{sm}
        v_max_f32 v{t}, 0, v{t}
        v_cvt_pk_bf16_f32 v{t}, 0, v{t}
        v_add_f32 v{t}, s{sEPS}, v{t}
        v_cvt_pk_bf16_f32 v{t}, 0, v{t}
        v_sqrt_f32 v{t}, v{t}
        v_cvt_pk_bf16_f32 v{t}, 0, v{t}
        v_rcp_f32 v{rs}, v{t}""".split('\n')
    def mix(self, *streams):
        streams = [list(s) for s in streams]
        while any(streams):
            for s in streams:
                if s: self.A(s.pop(0))
    def tr_addr(self, d, sbase):
        self.A(f"""v_lshrrev_b32 v1, 4, v0
        v_bfe_u32 v2, v0, 2, 2
        v_lshl_add_u32 v{d}, v1, 3, v2
        v_lshlrev_b32 v{d}, 7, v{d}
        v_and_b32 v2, 3, v0
        v_lshl_add_u32 v{d}, v2, 3, v{d}
        v_bfe_u32 v2, v0, 3, 2
        v_lshl_add_u32 v{d}, v2, 5, v{d}
        v_add_u32 v{d}, s{sbase}, v{d}""")
    def wfrags(self, dst, addr, steps, off=0):
        for s in range(steps):
            self.A(f"ds_read_b64_tr_b16 {vr(dst+4*s,2)}, v{addr} offset:{off+s*4096}\nds_read_b64_tr_b16 {vr(dst+4*s+2,2)}, v{addr} offset:{off+s*4096+512}")
    def dma_addr(self, d, rstride):
        self.A(f"""v_lshrrev_b32 v1, 3, v0
        v_mul_u32_u24 v{d}, {rstride}, v1
        v_bfe_u32 v1, v0, 4, 1
        v_bfe_u32 v2, v0, 1, 2
        v_xor_b32 v1, v1, v2
        v_lshl_add_u32 v{d}, v1, 5, v{d}
        v_and_b32 v1, 1, v0
        v_lshl_add_u32 v{d}, v1, 4, v{d}
        v_xor_b32 v{d+1}, 64, v{d}""")
    def dma(self, srdb, vaddr, n, rstride, lds0, ssrc, slds):
        wf = self.o['wflag'].replace('plain', '')
        for i in range(n):
            self.A(f"s_add_u32 m0, s{slds}, {lds0 + i*1024}\ns_add_u32 s{sA}, s{ssrc}, {i*8*rstride}\nbuffer_load_dwordx4 v{vaddr + (i&1)}, {srd(srdb)}, s{sA} offen {wf} lds")

    def mk(self, b, p, off, size):
        A = self.A
        if off is None: A(f"s_mov_b32 s{b}, s{p}\ns_mov_b32 s{b+1}, s{p+1}\ns_mov_b32 s{b+2}, {size}")
        else:
            A(f"s_add_u32 s{b}, s{p}, s{off}\ns_addc_u32 s{b+1}, s{p+1}, 0")
            if isinstance(size, int): A(f"s_mov_b32 s{b+2}, {size}")
            else: A(f"s_sub_u32 s{b+2}, {size[0]}, s{off}")
        A(f"s_mov_b32 s{b+3}, 0x20000")
    def prologue(self):
        A = self.A
        A("s_cmp_ge_u32 s2, 256\ns_cbranch_scc1 L_exit")
        if int(self.o['pad']) or self.prof or self.o['t2']: A("s_memrealtime s[96:97]")
        A(f"""s_load_dwordx16 s[64:79], s[0:1], 0
        s_load_dwordx8 s[80:87], s[0:1], 64
        s_load_dwordx2 s[88:89], s[0:1], 96
        v_lshrrev_b32 v1, 6, v0
        v_and_b32 v0, 63, v0
        v_readfirstlane_b32 s{sV}, v1
        v_mov_b32 v4, 0
        v_mov_b32 v5, 0
        v_mov_b32 v6, 0
        v_mov_b32 v7, 0
        v_lshlrev_b32 v1, 4, v0
        s_mov_b64 exec, 7
        ds_write_b128 v1, v[4:7] offset:{L_QL+384}
        s_mov_b64 exec, -1
        s_and_b32 s{sX}, s2, 7
        s_lshr_b32 s{sT}, s2, 3
        s_lshr_b32 s{sA}, s{sT}, 3
        s_lshl_b32 s{sB}, s{sX}, 2
        s_add_u32 s92, s{sA}, s{sB}            ; head
        s_bfe_u32 s{sA}, s{sT}, 0x20001        ; batch
        s_lshl_b32 s{sA}, s{sA}, 5
        s_add_u32 s{sA}, s{sA}, s92
        s_lshl_b32 s{sA}, s{sA}, 12
        s_and_b32 s{sB}, s{sT}, 1
        s_lshl_b32 s{sB}, s{sB}, 9
        s_add_u32 s{sA}, s{sA}, s{sB}
        s_lshl_b32 s{sB}, s{sV}, 6
        s_add_u32 s{sA}, s{sA}, s{sB}
        s_add_u32 s{sA}, s{sA}, 3072
        s_mul_i32 s90, s{sA}, 384
        s_mov_b32 s{sP}, 0
        s_mov_b32 s{sDRY}, 0
        s_mov_b64 s[{sFULL}:{sFULL+1}], -1
        s_mov_b32 s{sTO}, 0x100000
        s_mov_b32 s{sFAST}, 0
        s_mov_b32 s{sLOG2E}, 0x3fb8aa3b
        s_mov_b32 s{sSCALE}, 0x3d93cd3a
        s_mov_b32 s{sINVN}, 0x3acccccd
        s_mov_b32 s{sEPS}, 0x3727c5ac
        s_lshl_b32 s{sSIG}, s{sX}, 5
        s_add_u32 s{sSIG}, s{sSIG}, s{sT}
        s_mul_i32 s{sSLOT}, s{sX}, 30
        s_add_u32 s{sSLOT}, s{sSLOT}, s{sT}
        s_mul_i32 s{sRI}, s{sT}, 26
        s_lshr_b32 s{sRI}, s{sRI}, 8
        s_mul_i32 s{sA}, s{sRI}, 10
        s_sub_u32 s{sAI}, s{sT}, s{sA}
        s_min_u32 s{sRI}, s{sRI}, 2""")
        tab = 0
        for v in range(8):
            tab |= ((v < 4) << R_LT4 | (v >= 4) << R_GE4 | (4 <= v <= 6) << R_456 | (v == 7) << R_7 | (v == 6) << R_6 | (v == int(self.o['gramw'])) << R_GR) << (8 * v)
        A(f"""s_mov_b32 s{sA}, 0x{tab & 0xffffffff:x}
        s_mov_b32 s{sB}, 0x{tab >> 32:x}
        s_lshl_b32 s91, s{sV}, 3
        s_lshr_b64 s[{sA}:{sB}], s[{sA}:{sB}], s91
        s_and_b32 s{sROLE}, s{sA}, 0xff""")
        self.kv_addr()
        A("s_waitcnt lgkmcnt(0)\ns_barrier")
        A(f"s_add_u32 s{sA}, s88, {RE}\ns_addc_u32 s{sB}, s89, 0\ns_load_dword s{sTAG}, s[{sA}:{sB}], 0")
        self.mk(SK, 66, 90, 24576); self.mk(SVV, 68, 90, 24576)
    def other_srds(self):
        A = self.A; mk = self.mk
        mk(SWS, 88, None, WS_SIZE)
        A(f"""s_mul_i32 s{sA}, s{sAI}, {64*12288}
        s_mul_i32 s{sB}, s{sX}, 3
        s_add_u32 s91, s{sB}, s{sRI}            ; P = 3x + r
        s_lshl_b32 s{sB}, s91, 9
        s_add_u32 s{sA}, s{sA}, s{sB}""")
        mk(SWQ, 70, sA, (640 * 6144 * 2,))
        A(f"s_mul_i32 s{sA}, s91, {256*1280}\ns_lshl_b32 s90, s{sAI}, 7\ns_add_u32 s{sA}, s{sA}, s90")
        mk(SWO, 72, sA, (6144 * 640 * 2,))
        A(f"s_mul_i32 s{sA}, s91, {64*1280}\ns_add_u32 s{sA}, s{sA}, s90")
        mk(SWD, 82, sA, (1536 * 640 * 2,))
        A(f"s_mul_i32 s{sA}, s{sAI}, {64*3072}\ns_lshl_b32 s{sB}, s91, 7\ns_add_u32 s{sA}, s{sA}, s{sB}")
        mk(SWG, 78, sA, (640 * 1536 * 2,)); mk(SWU, 80, sA, (640 * 1536 * 2,))
        mk(SX0, 64, None, 5120); mk(SWR, 76, 90, (1280,)); mk(SOUT, 84, None, 5120)
        A(f"s_waitcnt lgkmcnt(0)\ns_add_u32 s{sTAG}, s{sTAG}, 1")
        if self.o['fine']:
            for i in range(24): A(f"s_mov_b32 s{sST+i}, 0")
        if self.prof:
            A(f"s_mov_b32 s{sST}, s96")
            for i in range(1, 24): A(f"s_mov_b32 s{sST+i}, 0")

    def kv_addr(self):
        self.A(f"""v_bfe_u32 v84, v0, 1, 3
        v_mul_u32_u24 v84, 384, v84
        v_lshrrev_b32 v3, 4, v0
        v_lshl_add_u32 v84, v3, 5, v84
        v_and_b32 v3, 1, v0
        v_lshl_add_u32 v84, v3, 4, v84
        v_lshrrev_b32 v85, 5, v0
        v_lshlrev_b32 v85, 3, v85
        v_bfe_u32 v3, v0, 3, 2
        v_add_u32 v85, v85, v3
        v_mul_u32_u24 v85, 384, v85
        v_and_b32 v3, 7, v0
        v_lshl_add_u32 v85, v3, 4, v85""")
    def k_loads(self):
        A = self.A; KF = self.o['kvflag'].replace('plain', '').replace('_', ' ')
        for g in range(8):
            A(f"s_mov_b32 s{sA}, {g*3072}")
            b = 12 * (g & ~1)
            for s, r in enumerate((b + 8 * (g & 1), b + 8 * (g & 1) + 4, b + 16 + 4 * (g & 1))):
                A(f"buffer_load_dwordx4 {ar(r)}, v84, {srd(SK)}, s{sA} offen offset:{s*128} {KF}")
    def v_loads(self):
        A = self.A; KF = self.o['kvflag'].replace('plain', '').replace('_', ' ')
        A(f"s_mul_i32 s{sB}, s{sV}, 6144")
        for S in range(4):
            for f in range(2):
                row = 32 * (S >> 1) + 16 * f + 4 * (S & 1)
                for s in range(3):
                    if S == 0:
                        A(f"s_add_u32 m0, s{sB}, {L_VP + (s*2+f)*1024}\ns_mov_b32 s{sA}, {row*384+s*128}\nbuffer_load_dwordx4 v85, {srd(SVV)}, s{sA} offen {KF} lds")
                    else:
                        if s == 0: A(f"s_mov_b32 s{sA}, {row*384}")
                        A(f"buffer_load_dwordx4 {vr(VBASE+(S-1)*24+s*8+4*f)}, v85, {srd(SVV)}, s{sA} offen offset:{s*128} {KF}")
    def xcol_addr(self, d):
        self.A(f"""v_lshrrev_b32 v1, 4, v0
        v_mul_u32_u24 v{d}, 1280, v1
        v_and_b32 v2, 7, v0
        v_lshl_add_u32 v{d}, v2, 1, v{d}
        s_lshl_b32 s{sA}, s{sAI}, 7
        s_lshl_b32 s{sB}, s{sV}, 4
        s_add_u32 s{sA}, s{sA}, s{sB}
        v_add_u32 v{d}, s{sA}, v{d}""")
    def xres_read(self):
        self.xcol_addr(3)
        self.A(f"v_mov_b32 v{vXR}, 0\nds_read_u16_d16_hi v{vXR}, v3 offset:{L_X0}")
    def lds_spin(self, off, val):
        lw = self.lab("sp"); lr = self.lab("spr")
        self.A(f"""v_mov_b32 v5, {L_FL}
        {lw}:
        ds_read_b32 v4, v5 offset:{off}
        s_waitcnt lgkmcnt(0)
        v_cmp_gt_u32 vcc, {val}, v4
        s_cbranch_vccnz {lr}""")
        self.tail.append(f"{lr}:\ns_sleep 2\ns_sub_u32 s{sTO}, s{sTO}, 1\ns_cbranch_scc1 L_end\ns_branch {lw}")
    def lds_inc(self, off):
        self.A(f"v_mov_b32 v4, {L_FL}\nv_mov_b32 v5, 1\ns_mov_b64 exec, 1\nds_add_u32 v4, v5 offset:{off}\ns_mov_b64 exec, -1")
    def dma_dist(self, cnts, mats):
        A = self.A
        cnts = [int(c) for c in cnts.split(',')]
        pre = [sum(cnts[:i]) for i in range(4)]
        A(f"""s_lshl_b32 s{sA}, s{sV}, 3
        s_mov_b32 s{sB}, 0x{sum(c << (8*i) for i, c in enumerate(cnts)):x}
        s_lshr_b32 s{sD}, s{sB}, s{sA}
        s_and_b32 s{sD}, s{sD}, 0xff
        s_mov_b32 s{sB}, 0x{sum(c << (8*i) for i, c in enumerate(pre)):x}
        s_lshr_b32 s{sF}, s{sB}, s{sA}
        s_and_b32 s{sF}, s{sF}, 0xff
        s_lshl_b32 s{sB}, s{sF}, 10""")
        le = self.lab("dd")
        for i in range(0, max(cnts), 2):
            A(f"s_cmp_gt_u32 s{sD}, {i}\ns_cbranch_scc0 {le}")
            for (sr, va, rs, l0) in mats:
                A(f"s_mul_i32 s{sC}, s{sF}, {8*rs}\ns_add_u32 s{sC}, s{sC}, {i*8*rs}")
                self.dma(sr, va, 2, rs, l0 + i * 1024, sC, sB)
        self.end(le)
    def w_dma_gud(self, u, which='gud'):
        A = self.A
        self.dma_addr(6, 3072); self.dma_addr(8, 1280)
        A(f"s_mul_i32 s{sC}, s{u}, {16*3072}\ns_lshl_b32 s{sB}, s{u}, 11")
        if 'g' in which: self.dma(SWG, 6, 2, 3072, L_WG, sC, sB)
        if 'u' in which: self.dma(SWU, 6, 2, 3072, L_WU, sC, sB)
        A(f"s_mul_i32 s{sC}, s{u}, {16*1280}")
        if 'd' in which: self.dma(SWD, 8, 2, 1280, L_WD, sC, sB)

    def attn_pre(self):
        A = self.A
        A(f"""v_lshrrev_b32 v1, 4, v0
        v_and_b32 v2, 3, v0
        v_lshlrev_b32 v2, 4, v2
        v_lshl_add_u32 v76, v1, 6, v2            ; base1
        v_and_b32 v3, 0x40, v76
        v_add3_u32 v77, v3, v2, 64
        v_add_u32 v77, 192, v77                  ; base2
        v_bfe_u32 v2, v0, 2, 2
        v_mov_b32 v3, 384""")
        for k in range(4): A(f"v_cmp_eq_u32 vcc, {k}, v2\nv_cndmask_b32 v{72+k}, v3, v76, vcc")
        A(f"""v_lshrrev_b32 v1, 5, v0
        v_cmp_eq_u32 vcc, v1, v2
        v_cndmask_b32 v76, v3, v77, vcc
        v_add_u32 v1, 2, v1
        v_cmp_eq_u32 vcc, v1, v2
        v_cndmask_b32 v77, v3, v77, vcc
        v_and_b32 v1, 1, v0
        v_mul_u32_u24 v78, 0xaaaa, v1
        v_add_u32 v78, 0x4444, v78
        v_and_b32 v1, 3, v0
        v_xor_b32 v2, 1, v1
        v_lshl_add_u32 v79, v2, 2, v1
        v_mul_u32_u24 v79, 0x1111, v79
        v_bfe_u32 v1, v0, 2, 1
        v_mul_u32_u24 v85, 0xffff, v1
        v_sub_u32 v84, 0xffff, v85
        s_mul_i32 s{sA}, s{sV}, 6144
        s_add_u32 s{sA}, s{sA}, {L_VP}
        v_lshl_add_u32 v86, v0, 4, s{sA}
        v_and_b32 v1, 7, v0
        v_lshlrev_b32 v1, 5, v1
        v_bfe_u32 v2, v0, 4, 1
        v_lshl_add_u32 v1, v2, 4, v1
        v_lshrrev_b32 v2, 5, v0
        v_mul_u32_u24 v2, 768, v2
        s_mul_i32 s{sA}, s{sV}, 1536
        v_add3_u32 v87, v1, v2, s{sA}""")
    def attn_zero(self, skip=()):
        for r in range(28, 48):
            if r not in skip: self.A(f"v_mov_b32 v{r}, 0")
    def consts(self):
        h = 2 if self.o['xbf'] else 1
        self.A(f"s_mov_b32 s{sLO}, 0x3f80\ns_mov_b32 s{sHI}, 0x3f800000")
        self.A(f"s_mov_b32 s{sK1}, {81920//h}\ns_mov_b32 s{sK2}, {163840//h}\ns_mov_b32 s{sKG}, {4*GSL}\ns_mov_b32 s{sKQ}, {4*QSL}")

    def xa_addr(self, d=30):
        self.A(f"""v_and_b32 v1, 15, v0
        v_lshrrev_b32 v2, 4, v0
        v_min_u32 v{d}, 5, v1
        v_mul_u32_u24 v{d}, {XS}, v{d}
        v_lshl_add_u32 v{d}, v2, 4, v{d}
        v_and_b32 v3, 3, v0
        v_bfe_u32 v1, v0, 2, 2
        v_add_u32 v{d+1}, 3, v3
        v_min_u32 v{d+1}, 5, v{d+1}
        v_cmp_eq_u32 vcc, 0, v3
        v_cndmask_b32 v{d+1}, v{d+1}, v1, vcc
        v_mul_u32_u24 v{d+1}, {XS}, v{d+1}
        v_lshl_add_u32 v{d+1}, v2, 4, v{d+1}""")
    def xfrags(self, d=30): self.A(f"ds_read_b128 v[4:7], v{d} offset:{L_XA}\nds_read_b128 v[8:11], v{d} offset:{L_XA+64}")
    def mm_with_gram(self, mf0, mf1, store, tag, late=None):
        A = self.A
        le = self.lab("gr")
        def variant(gram, first):
            A("s_waitcnt lgkmcnt(0)"); self.barrier(tag)
            if gram: A(f"ds_read_b128 v[60:63], v31 offset:{L_XA}")
            if first: late()
            self.xfrags()
            if gram:
                A(f"""ds_read_b128 v[64:67], v31 offset:{L_XA+64}
                s_waitcnt lgkmcnt(2)""")
                A(mf0)
                A("v_mfma_f32_16x16x32_bf16 v[68:71], v[60:63], v[4:7], 0\ns_waitcnt lgkmcnt(1)")
                A(mf1)
                A("s_waitcnt lgkmcnt(0)\nv_mfma_f32_16x16x32_bf16 v[68:71], v[64:67], v[8:11], v[68:71]")
                store(first)
                A(f"v_mov_b32_dpp v71, v70 row_newbcast:4 {DPP}")
                self.exec_mask(1 | 1 << 17 | 1 << 34 | 1 << 51)
                self.stores(f"buffer_store_dwordx4 v[68:71], v33, {srd(SWS)}, 0 offen{{f}}", True)
                self.exec_full()
            else:
                A("s_waitcnt lgkmcnt(1)"); A(mf0); A("s_waitcnt lgkmcnt(0)"); A(mf1)
                store(first)
        firsts = (True, False) if late else (False,)
        for fi, first in enumerate(firsts):
            if first: lp = self.pass0()
            l = self.role(R_GR); variant(True, first); A(f"s_branch {le}"); self.end(l)
            variant(False, first)
            if first: A(f"s_branch {le}"); self.end(lp)
        self.end(le)
    def q_lds_addr(self, d):
        self.A(f"""v_bfe_u32 v1, v0, 3, 1
        v_lshlrev_b32 v{d}, 6, v1
        v_bfe_u32 v1, v0, 1, 1
        v_lshl_add_u32 v{d}, v1, 5, v{d}
        v_lshrrev_b32 v1, 5, v0
        v_lshl_add_u32 v{d}, v1, 4, v{d}
        v_bfe_u32 v1, v0, 2, 1
        v_lshl_add_u32 v{d}, v1, 3, v{d}
        v_and_b32 v1, 1, v0
        v_lshl_add_u32 v{d}, v1, 2, v{d}
        v_bfe_u32 v1, v0, 4, 1
        v_lshl_add_u32 v{d}, v1, 1, v{d}""")

    def clr_begin(self):
        self.A("v_mov_b32 v64, -1\nv_mov_b32 v65, -1\nv_mov_b32 v66, -1\nv_mov_b32 v67, -1\nv_lshlrev_b32 v10, 4, v0")
    def clr(self, what, p):
        A = self.A
        st = lambda off=0: A(f"buffer_store_dwordx4 v[64:67], v10, {srd(SWS)}, s{sA} offen offset:{off} sc1")
        if what in 'XY':
            A(f"s_lshl_b32 s{sA}, s{sSLOT}, 10\ns_add_u32 s{sA}, s{sA}, {(RX if what == 'X' else RY)[p]}"); st()
        elif what == 'O':
            A(f"s_mul_i32 s{sA}, s{sSIG}, {OSL}\ns_add_u32 s{sA}, s{sA}, {RO[p]}\ns_mov_b32 exec_hi, 0xffffff"); st(); A("s_mov_b32 exec_hi, -1")
        elif what == 'G':
            A(f"s_mul_i32 s{sA}, s{sSIG}, {GSL}\ns_add_u32 s{sA}, s{sA}, {RG[p]}"); st(); st(1024)
            if p == 0: A("s_mov_b32 exec_hi, 0xff"); st(2048)
            else: A("s_mov_b64 exec, 0xff"); st(2560)
            A("s_mov_b64 exec, -1")
        elif what == 'C':
            A(f"s_mul_i32 s{sA}, s{sSIG}, {QSL}\ns_add_u32 s{sA}, s{sA}, {RQ[1] + 4224}"); st()
        elif what == 'Q':
            A(f"s_mul_i32 s{sA}, s{sSIG}, {QSL}\ns_add_u32 s{sA}, s{sA}, {RQ[1]}")
            for i in range(4): st(1024 * i)
            A(f"s_add_u32 s{sA}, s{sA}, 4096\ns_mov_b64 exec, 0xff"); st(); A("s_mov_b64 exec, -1")

    def startup(self):
        A = self.A
        A(f"s_bitcmp1_b32 s{sROLE}, {R_GE4}\ns_cbranch_scc1 L_start_hi")
        self.k_loads()
        self.other_srds()
        l = self.lab("now"); A(f"s_cmp_ge_u32 s{sT}, 30\ns_cbranch_scc1 {l}")
        self.dma_addr(4, 1280)
        if not int(self.o['noq0']) & 4: self.dma_dist(self.o['cwo'], [(SWO, 4, 1280, L_WO)])
        if True:
            mats = [m for k, m in (('g', (SWG, 6, 3072, L_WG)), ('u', (SWU, 6, 3072, L_WU)), ('d', (SWD, 4, 1280, L_WD))) if k not in self.o['tq'] + self.o['dwo'] + self.o['dx']]
            if mats:
                self.dma_addr(6, 3072)
                self.dma_dist(self.o['cgud'], mats)
        self.end(l)
        self.v_loads()
        self.stamp(1, both=False)
        if self.o['dry']:
            l = self.lab("nodry")
            A(f"""s_cmp_eq_u32 s{sV}, 2
            s_cbranch_scc0 {l}
            s_mov_b32 s{sDRY}, 1
            v_mov_b32 v15, 0
            v_mov_b32 v16, 0
            v_mov_b32 v28, 0
            v_mov_b32 v32, 0
            v_mov_b32 v33, 0
            v_mov_b32 v34, 0
            v_mov_b32 v36, 0
            v_mov_b32 v37, 0
            v_mov_b32 v38, 0
            s_mov_b32 s{sSAVE}, s{sT}
            s_mov_b32 s{sT}, 0
            s_mov_b32 s{sROLE}, 0xff
            s_mov_b64 s[{sFULL}:{sFULL+1}], 0
            s_mov_b64 exec, 0
            s_branch L_attn
            L_dry_ret:
            s_mov_b32 s{sDRY}, 0
            s_mov_b32 s{sP}, 0
            s_mov_b32 s{sT}, s{sSAVE}
            s_mov_b32 s{sROLE}, {(1 << R_LT4) | ((int(self.o['gramw']) == 2) << R_GR)}
            s_mov_b64 s[{sFULL}:{sFULL+1}], -1
            s_mov_b64 exec, -1
            {l}:""")
        l3 = self.lab("nog")
        A(f"s_cmp_eq_u32 s{sV}, 3\ns_cbranch_scc0 {l3}\ns_setprio 3")
        lp = self.lab("tq"); lr = self.lab("tqr")
        self.stamp(13, both=False)
        if self.prof: A(f"s_mov_b32 s{sST+5}, s{sST+13}")
        A(f"""s_bfe_u32 s{sB}, s{sT}, 0x20001          ; b
        s_lshl_b32 s{sC}, s{sB}, 10
        v_lshrrev_b32 v1, 4, v0
        v_lshlrev_b32 v78, 12, v1
        v_and_b32 v3, 15, v0
        v_lshl_add_u32 v78, v3, 4, v78
        v_add_u32 v78, s{sC}, v78
        s_mul_i32 s{sD}, s{sTAG}, 0x01010101
        v_mov_b32 v72, s{sD}
        v_lshrrev_b32 v73, 8, v72
        v_lshrrev_b32 v74, 16, v72
        v_lshrrev_b32 v75, 24, v72""")
        self.q_lds_addr(79)
        if int(self.o['noq0']) & 2: A("s_branch L_noq0")
        A(f"{lp}:\nv_mov_b32 v1, 0")
        for sg in range(3):
            A(f"""s_lshr_b32 s{sA}, s{sT}, 3
            s_mul_i32 s{sA}, s{sA}, 3
            s_add_u32 s{sA}, s{sA}, {sg}
            s_lshr_b32 s{sB}, s{sA}, 2
            s_mul_i32 s{sB}, s{sB}, 10
            s_lshl_b32 s{sC}, s{sX}, 5
            s_add_u32 s{sB}, s{sB}, s{sC}
            s_lshl_b32 s{sB}, s{sB}, 12
            s_and_b32 s{sA}, s{sA}, 3
            s_lshl_b32 s{sA}, s{sA}, 8
            s_add_u32 s{sB}, s{sB}, s{sA}
            s_add_u32 s{sB}, s{sB}, {RQ[0]}""")
            for i in range(3):
                if i == 2: A("s_mov_b32 exec_hi, 0")
                A(f"buffer_load_dwordx4 {vr(4 + 12*sg + 4*i)}, v78, {srd(SWS)}, s{sB} offen sc1")
                A(f"s_add_u32 s{sB}, s{sB}, {4*Q0SL}" if i < 2 else "s_mov_b64 exec, -1")
        A("s_waitcnt vmcnt(0)")
        for third in (0, 1):
            if third: A("s_mov_b32 exec_hi, 0")
            for sg in range(3):
                for i in ((2,) if third else (0, 1)):
                    r = 4 + 12 * sg + 4 * i
                    for h in (0, 2): A(f"v_xor_b32 v2, v{72+h}, v{r+h}\nv_xor_b32 v3, v{73+h}, v{r+h+1}\nv_or3_b32 v1, v1, v2, v3")
                    for k in range(4): A(f"v_and_b32 v{r+k}, 0xffffff00, v{r+k}")
        for k in range(3):
            for i in range(4): A(f"v_add_f32 v{4+12*k+i}, v{4+12*k+i}, v{12+12*k+i}")
        A(f"s_mov_b64 exec, -1\nv_and_b32 v1, 0xff, v1\nv_cmp_ne_u32 vcc, 0, v1\ns_cbranch_vccnz {lr}")
        self.tail.append(f"{lr}:\ns_sub_u32 s{sTO}, s{sTO}, 1\ns_cbranch_scc1 L_end\ns_branch {lp}")
        for k in range(3):
            r = 4 + 12 * k
            for i in range(4): A(f"v_add_f32 v{r+i}, v{r+i}, v{r+4+i}")
            self.treduce(r, r + 1, r + 2, r + 3)
            A(f"v_cvt_pk_bf16_f32 v{r}, 0, v{r}\nds_write_b16_d16_hi v79, v{r} offset:{L_QL + 128*k}")
        A("L_noq0:")
        self.lds_spin(4, 8)
        A(f"v_mov_b32 v4, 1\nds_write_b32 v5, v4\ns_setprio 0")
        self.end(l3)
        self.stamp(2, both=False)
        self.attn_pre(); self.attn_zero(); self.consts()
        self.lds_spin(0, 1)
        self.xres_read()
        A("s_branch L_attn")
        A("L_start_hi:\ns_setprio 3")
        self.other_srds()
        l = self.lab("x0"); l2 = self.lab("x0")
        A(f"""v_lshlrev_b32 v10, 4, v0
        s_and_b32 s{sB}, s{sV}, 3
        s_lshl_b32 s{sA}, s{sB}, 10
        s_add_u32 m0, s{sA}, {L_X0}
        s_cmp_eq_u32 s{sV}, 4
        buffer_load_dwordx4 v10, {srd(SX0)}, s{sA} offen lds
        s_cbranch_scc0 {l}
        s_mov_b32 m0, {L_X0 + 4096}
        s_movk_i32 s{sA}, 0x1000
        buffer_load_dwordx4 v10, {srd(SX0)}, s{sA} offen lds
        {l}:
        s_cmp_eq_u32 s{sV}, 5
        s_cbranch_scc0 {l2}
        s_mov_b32 m0, {L_XA + 5*XS}
        s_mov_b64 exec, 0xff
        buffer_load_dwordx4 v10, {srd(SWR)}, 0 offen lds
        s_mov_b64 exec, -1
        {l2}:""")
        lq = self.lab("noq"); lq2 = self.lab("noq")
        A(f"s_cmp_ge_u32 s{sT}, 30\ns_cbranch_scc1 {lq}")
        self.dma_addr(6, 12288)
        A(f"s_and_b32 s{sB}, s{sV}, 3\ns_lshl_b32 s{sC}, s{sB}, 7\ns_lshl_b32 s{sB}, s{sB}, 13")
        self.dma(SWQ, 6, 8, 12288, L_WQ, sC, sB)
        A(f"""v_lshrrev_b32 v1, 4, v0
        v_and_b32 v2, 15, v0
        v_mul_u32_u24 v3, 1280, v1
        v_lshl_add_u32 v10, v2, 4, v3
        v_lshl_add_u32 v11, v2, 3, v3
        s_lshl_b32 s{sA}, s{sAI}, 7
        v_add_u32 v11, s{sA}, v11
        v_mul_u32_u24 v12, {XS}, v1
        v_lshl_add_u32 v12, v2, 3, v12
        v_lshlrev_b32 v13, 3, v2
        s_waitcnt vmcnt(8)""")
        self.lds_inc(4); self.lds_spin(4, 4)
        for i in range(5): A(f"ds_read_b128 {vr(16+4*i)}, v10 offset:{L_X0 + 256*i}")
        A(f"ds_read_b64 v[36:37], v11 offset:{L_X0}")
        A("v_mov_b32 v40, 0x3f803f80\nv_mov_b32 v41, 0x3f803f80\nv_mov_b32 v42, 0\nv_mov_b32 v43, 0\ns_waitcnt lgkmcnt(0)")
        for i in range(20): A(f"v_dot2_f32_bf16 v42, v{16+i}, v{16+i}, v42\nv_dot2_f32_bf16 v43, v{16+i}, v40, v43")
        self.mix(self.red16([42, 43])); self.mix(self.lnstats(42, 43, 44, 45, 46))
        A("v_lshlrev_b32 v16, 16, v36\nv_and_b32 v17, 0xffff0000, v36\nv_lshlrev_b32 v18, 16, v37\nv_and_b32 v19, 0xffff0000, v37")
        for i in range(4): A(f"v_sub_f32 v{16+i}, v{16+i}, v44")
        for i in range(4): A(f"v_cvt_pk_bf16_f32 v{16+i}, 0, v{16+i}")
        for i in range(4): A(f"v_mul_f32 v{16+i}, v{16+i}, v45")
        A(f"""v_cvt_pk_bf16_f32 v16, v16, v17
        v_cvt_pk_bf16_f32 v17, v18, v19
        ds_write_b64 v12, v[16:17] offset:{L_XA}
        ds_write_b64 v13, v[40:41] offset:{L_XA + 4*XS}""")
        A(f"s_and_b32 s{sA}, s{sV}, 3\ns_lshl_b32 s{sA}, s{sA}, 13\ns_add_u32 s{sA}, s{sA}, {L_WQ}")
        self.tr_addr(52, sA)
        for t in range(1, 4): A(f"v_xor_b32 v{52+t}, {32*t}, v52")
        self.xa_addr(14)
        A(f"""s_and_b32 s{sA}, s{sV}, 3
        s_lshl_b32 s{sB}, s{sA}, 10
        v_and_b32 v2, 15, v0
        v_lshlrev_b32 v72, 8, v2
        v_and_b32 v1, 0x30, v0
        v_add3_u32 v72, v72, v1, s{sB}
        v_lshl_add_u32 v73, v0, 4, s{sB}
        v_lshlrev_b32 v74, 6, v1
        v_lshl_add_u32 v74, v2, 4, v74
        s_lshl_b32 s{sA}, s{sA}, 8
        v_add_u32 v75, s{sA}, v1
        s_lshl_b32 s{sE}, s{sSIG}, 12
        s_add_u32 s{sE}, s{sE}, s{sA}
        s_add_u32 s{sE}, s{sE}, {RQ[0]}
        s_mul_i32 s{sF}, s{sTAG}, 0x01010101
        v_mov_b32 v76, 0xff
        s_waitcnt vmcnt(0) lgkmcnt(0)""")
        self.stamp(12, both=False)
        for t in range(4): self.wfrags(16 + 8 * t, 52 + t, 2)
        self.xfrags(14)
        A("s_waitcnt lgkmcnt(0)")
        for s in range(2):
            for t in range(4):
                A(f"v_mfma_f32_16x16x32_bf16 {vr(48+4*t)}, {vr(16+8*t+4*s)}, {vr(4+4*s)}, {'0' if s == 0 else vr(48+4*t)}")
        for i in range(4):
            for t in range(4): A(f"v_bfi_b32 v{16+4*t+i}, v76, s{sF}, v{48+4*t+i}")
            A(f"s_lshr_b32 s{sF}, s{sF}, 8")
        self.exec_mask(0x000f000f000f000f)
        for t in range(4): A(f"ds_write_b128 v72, {vr(16+4*t)} offset:{L_OC + 64*t}")
        self.exec_mask(0x0010001000100010)
        for t in range(4): A(f"ds_write_b128 v75, {vr(48+4*t)} offset:{L_CS + 64*t}")
        self.exec_full()
        A(f"""s_waitcnt lgkmcnt(0)
        ds_read_b128 v[16:19], v73 offset:{L_OC}
        s_waitcnt lgkmcnt(0)""")
        if not int(self.o['noq0']) & 1: A(f"buffer_store_dwordx4 v[16:19], v74, {srd(SWS)}, s{sE} offen sc1")
        A(f"""s_branch {lq2}
        {lq}:
        s_waitcnt vmcnt(0)""")
        self.lds_inc(4); self.lds_spin(4, 4)
        A(f"{lq2}:")
        self.xres_read()
        A("s_waitcnt lgkmcnt(0)")
        self.lds_inc(4)
        self.stamp(14, both=False)
        sp = True
        late = self.o['clr'] == 'late'
        l = self.role(R_456)
        l2 = self.lab("nocl"); lb = self.lab("clb"); lc = self.lab("clc"); li = self.lab("cli")
        self.clr_begin()
        A(f"s_cmp_ge_u32 s{sT}, 30\ns_cbranch_scc1 {li}\ns_cmp_eq_u32 s{sV}, 5\ns_cbranch_scc1 {lb}\ns_cmp_eq_u32 s{sV}, 6\ns_cbranch_scc1 {lc}")
        self.clr('X', 0); self.clr('Y', 0)
        if not late: self.clr('X', 1); self.clr('Y', 1); self.clr('O', 1)
        self.clr('O', 0)
        A(f"s_branch {l2}\n{lb}:")
        self.clr('G', 0)
        if not late: self.clr('G', 1)
        A(f"s_branch {l2}\n{lc}:")
        self.clr('C', 0)
        if not late: self.clr('Q', 1)
        A(f"s_branch {l2}\n{li}:\ns_cmp_eq_u32 s{sV}, 4\ns_cbranch_scc0 {l2}")
        self.clr('O', 0); self.clr('O', 1)
        A(f"""{l2}:
        s_mov_b64 exec, -1
        s_getreg_b32 s{sXCC}, hwreg(HW_REG_XCC_ID, 0, 4)
        v_mov_b32 v6, s{sTAG}
        v_mov_b32 v7, s{sXCC}
        v_mov_b32 v8, s{sTAG}
        v_mov_b32 v9, s{sXCC}
        v_mov_b32 v4, {L_FL}
        v_mov_b32 v5, 1
        s_lshl_b32 s{sA}, s{sSIG}, 7
        s_add_u32 s{sA}, s{sA}, {RF}
        s_waitcnt vmcnt(0)""")
        l3 = self.lab("nofl")
        if sp: A(f"""s_mov_b64 exec, 1
        ds_add_rtn_u32 v11, v4, v5 offset:8
        s_waitcnt lgkmcnt(0)
        v_cmp_eq_u32 vcc, 2, v11
        s_cbranch_vccz {l3}""")
        A(f"""s_mov_b64 exec, 0xff
        buffer_store_dwordx4 v[6:9], v10, {srd(SWS)}, s{sA} offen sc1
        {l3}:
        s_mov_b64 exec, -1""")
        self.end(l)
        self.stamp(1, both=False)
        A("s_setprio 0")
        self.k_loads(); self.v_loads()
        if self.o['tq']: self.lds_inc(16)
        self.attn_pre(); self.attn_zero(); self.consts()
        self.lds_spin(0, 1)

    def region(self, s, R):
        self.A(f"s_mul_i32 s{s}, s{sP}, {R[1]-R[0]}")
        if R[0]: self.A(f"s_add_u32 s{s}, s{s}, {R[0]}")

    def parked(self):
        for i in range(6): self.A(f"ds_read_b128 {vr(48+4*i)}, v86 offset:{1024*i}")
    def attention(self):
        A = self.A
        A("s_branch L_attn")
        if int(self.o['al']): A(f".p2align {self.o['al']}")
        for _ in range(int(self.o['alo'])): A("s_nop 0")
        A("L_attn_bar:\ns_waitcnt vmcnt(0) lgkmcnt(0)")
        self.barrier('Q')
        A("L_attn:")
        if int(self.o['prio']) == 2:
            l = self.role(R_GE4); A("s_setprio 1"); self.end(l)
        pk = int(self.o['pk']); mle = int(self.o['mle'])
        order = [(72, 4), (73, 8), (76, 20), (74, 12), (75, 16), (77, 24)]
        for a, d in order: A(f"ds_read_b128 {vr(d)}, v{a} offset:{L_QL}")
        self.region(sE, RO)
        A(f"""s_mul_i32 s{sB}, s{sSIG}, {OSL}
        s_add_u32 s{sE}, s{sE}, s{sB}
        s_and_b32 s{sC}, s{sV}, 3
        s_lshl_b32 s{sC}, s{sC}, 8
        s_add_u32 s{sD}, s{sC}, s{sE}
        s_mov_b32 s{sA}, 0x{ODD & 0xffffffff:x}
        s_mov_b32 s{sB}, 0x{ODD & 0xffffffff:x}
        s_waitcnt vmcnt({18 if pk else 24})""")
        if pk: self.parked()
        self.stamp(3)
        for n, (a, d) in enumerate(order):
            A(f"s_waitcnt lgkmcnt({(11 if pk else 5)-n})")
            for h in range(2):
                if a < 76: g = 4 * h + (a - 72); b = 12 * (g & ~1) + 8 * (g & 1)
                else: g = 4 * h + 2 * (a - 76); b = 12 * g + 16
                A(f"v_smfmac_f32_16x16x64_bf16 {vr(28+4*h)}, {vr(d)}, {ar(b,8)}, v78")
        self.fs('k1')
        if int(self.o['prio']) & 8: A(f"s_lshr_b32 s{sF}, s{sV}, 2\ns_cmp_eq_u32 s{sF}, 0\ns_cbranch_scc1 L_noprio\ns_setprio 1\nL_noprio:")
        fill = [f"v_lshrrev_b32 v1, 4, v0", f"v_and_b32 v2, 15, v0", f"v_mul_u32_u24 v12, 3072, v1", f"v_lshlrev_b32 v13, 3, v1",
                f"v_lshl_add_u32 v12, v2, 4, v12", f"v_lshlrev_b32 v15, 4, v2", f"v_add_u32 v12, s{sC}, v12", f"v_lshl_add_u32 v15, v1, 2, v15",
                f"v_mov_b32 v14, 0", f"v_add_u32 v15, s{sD}, v15", f"v_lshl_add_u32 v16, v0, 4, s{sE}", f"v_and_b32 v17, 7, v0",
                f"v_lshlrev_b32 v17, 2, v17", f"s_lshl_b32 s{sF}, s{sV}, 2", f"v_mov_b32 v35, s{sF}"]
        if pk:
            fill += ["v_bfe_u32 v18, v0, 3, 1", "v_and_b32 v19, 0x30, v0", "v_lshlrev_b32 v18, 3, v18", "v_lshl_add_u32 v18, v19, 2, v18"]
            for _ in range(6): A(fill.pop(0))
        else:
            A("s_waitcnt vmcnt(18)"); self.parked(); A(fill.pop(0))
        fin = lambda d: [f"v_add_f32 v{d}, v{d}, v{d+1}", f"v_add_f32 v{d+2}, v{d+2}, v{d+3}",
                         f"v_cndmask_b32 v{d}, v{d}, v{d+2}, s[{sA}:{sB}]",
                         f"v_add_f32_dpp v{d}, v{d}, v{d} quad_perm:[1,0,3,2] {DPP}",
                         f"v_cvt_pk_bf16_f32 v{d}, 0, v{d}", f"v_mul_f32 v{d}, s{sSCALE}, v{d}",
                         f"v_cvt_pk_bf16_f32 v{d}, 0, v{d}", f"v_mul_f32 v{d}, s{sLOG2E}, v{d}"]
        f0, f1 = fin(28), fin(32)
        for k in range(8):
            if k == 3: A(fill.pop(0))
            A(f0[k]); A(f1[k])
        A("v_max_f32 v29, v28, v32")
        for p in (f"quad_perm:[2,3,0,1] {DPP}", f"row_half_mirror {DPP}", f"row_mirror {DPP}", "row_bcast:15 row_mask:0xa bank_mask:0xf", "row_bcast:31 row_mask:0xc bank_mask:0xf"):
            A(fill.pop(0)); A(fill.pop(0)); A(f"v_max_f32_dpp v29, v29, v29 {p}")
        A(fill.pop(0)); A(f"v_readlane_b32 s{sM}, v29, 63")
        self.fs('k2')
        while fill: A(fill.pop(0))
        A(f"""v_subrev_f32 v28, s{sM}, v28
        v_subrev_f32 v32, s{sM}, v32
        v_exp_f32 v28, v28
        v_exp_f32 v32, v32
        v_cvt_pk_bf16_f32 v30, v28, v28
        v_cvt_pk_bf16_f32 v31, v32, v32
        v_mov_b32 v34, s{sM}""")
        lsum = ["v_add_f32 v33, v28, v32"] + \
               [f"v_add_f32_dpp v33, v33, v33 {p}" for p in (f"quad_perm:[2,3,0,1] {DPP}", f"row_half_mirror {DPP}", f"row_mirror {DPP}",
                                                            "row_bcast:15 row_mask:0xa bank_mask:0xf", "row_bcast:31 row_mask:0xc bank_mask:0xf")]
        bp = int(self.o['at2'])
        def abuild(S):
            b = 4 + 4 * (S & 1); P = 30 + (S >> 1); jj = S & 1
            if bp and S: return [f"v_and_b32 v{b+2*x+m}, v{20+2*(S-1)+x}, v{84+m}" for x in range(2) for m in range(2)]
            return [f"v_and_b32_dpp v{b+2*x+m}, v{P}, v{84+m} row_newbcast:{8*jj+4*x+2*c} row_mask:0xf bank_mask:{'0x3' if c == 0 else '0xc'}"
                    for c in range(2) for x in range(2) for m in range(2)]
        bperm = lambda S: [f"ds_bpermute_b32 v{20+2*(S-1)+x}, v18, v{30+(S>>1)} offset:{32*(S&1)+16*x}" for x in range(2)]
        if bp: self.mix(bperm(1))
        for x in abuild(0): A(x)
        if bp: self.mix(bperm(2) + bperm(3))
        if int(self.o['prio']) & 8: A("s_setprio 0")
        self.fs('k3')
        for S in range(4):
            nxt = abuild(S + 1) if S < 3 else []
            if S: A(f"s_waitcnt vmcnt({18 - 6*S})")
            if S == 3 and mle:
                assert not lsum
                self.exec_mask(1 << 63)
                A(f"ds_write_b32 v35, v34 offset:{L_ML}\nds_write_b32 v35, v33 offset:{L_ML+32}")
                self.exec_full()
            for s in range(3):
                vv = vr(48 + 8 * s, 8) if S == 0 else vr(VBASE + (S - 1) * 24 + 8 * s, 8)
                if S == 0 and s == 0: A(f"s_waitcnt lgkmcnt({6 if bp else 0})")
                A(f"v_smfmac_f32_16x16x64_bf16 {vr(36+4*s)}, {vr(4+4*(S&1))}, {vv}, v79")
                if bp:
                    if lsum and s != 1: A(lsum.pop(0))
                    if s == 1 and S < 2: A(f"s_waitcnt lgkmcnt({4 if S == 0 else 0})")
                    if s == 1: self.mix(nxt)
                else:
                    for _ in range(3):
                        if nxt: A(nxt.pop(0))
                    if lsum and s != 1: A(lsum.pop(0))
        self.fs('k4')
        if not mle:
            self.exec_mask(1 << 63)
            A(f"ds_write_b32 v35, v34 offset:{L_ML}\nds_write_b32 v35, v33 offset:{L_ML+32}")
        self.exec_mask(0xFF00FF0000FF00FF)
        for s in range(3): A(f"ds_write_b128 v87, {vr(36+4*s)} offset:{L_OC + 256*s}")
        self.exec_full()
        l = self.role(R_LT4)
        l2 = self.pass0(); l3 = self.lab("nm")
        A(f"s_cbranch_execz {l3}")
        self.first_pass_checks()
        if self.o['tq']:
            l4 = self.lab("ntq"); A(f"s_cmp_ge_u32 s{sT}, 30\ns_cbranch_scc1 {l4}")
            self.lds_spin(16, 4)
            self.w_dma_gud(sV, self.o['tq'])
            self.end(l4)
        self.end(l3); self.end(l2)
        if int(self.o['wb']) == 2:
            l2 = self.lab("wb"); A(f"s_cmp_eq_u32 s{sT}, 30\ns_cbranch_scc0 {l2}\ns_lshl_b32 s{sA}, s{sV}, 1\ns_or_b32 s{sA}, s{sA}, s{sP}\ns_cmp_eq_u32 s{sA}, 1\ns_cbranch_scc0 {l2}\nbuffer_wbl2 sc1\n{l2}:")
        self.end(l)
        A("s_waitcnt lgkmcnt(0)")
        if int(self.o['prio']) & 3: A("s_setprio 0")
        self.stamp(4)
        if self.o['t2']:
            l = self.pass0(); A("s_memrealtime s[66:67]"); self.end(l)
        self.barrier('A')
        l = self.role(R_GE4)
        if int(self.o['prio']) & 4: A("s_setprio 1")
        A(f"ds_read_b32 v47, v14 offset:{L_FL+12}")
        l2 = self.role(R_456)
        A(f"""ds_read_b128 v[20:23], v14 offset:{L_ML}
        ds_read_b128 v[24:27], v14 offset:{L_ML+16}
        ds_read_b64 v[18:19], v13 offset:{L_ML}
        ds_read_b128 v[48:51], v12 offset:{L_OC}
        ds_read_b128 v[52:55], v12 offset:{L_OC+768}
        ds_read_b128 v[56:59], v12 offset:{L_OC+1536}
        ds_read_b128 v[60:63], v12 offset:{L_OC+2304}
        s_waitcnt lgkmcnt(5)
        v_max3_f32 v20, v20, v21, v22
        v_max3_f32 v24, v24, v25, v26
        v_readfirstlane_b32 s{sFAST}, v47
        v_max3_f32 v20, v20, v23, v27
        v_max_f32 v20, v20, v24
        s_waitcnt lgkmcnt(2)
        v_sub_f32 v18, v18, v20
        v_sub_f32 v19, v19, v20
        v_add_f32 v48, v48, v52
        v_exp_f32 v18, v18
        v_add_f32 v49, v49, v53
        v_exp_f32 v19, v19
        v_add_f32 v50, v50, v54
        v_add_f32 v51, v51, v55
        s_waitcnt lgkmcnt(0)""")
        for i in range(4): A(f"v_add_f32 v{56+i}, v{56+i}, v{60+i}\nv_mul_f32 v{48+i}, v18, v{48+i}")
        for i in (0, 2, 1, 3): A(f"v_fmac_f32 v{48+i}, v19, v{56+i}")
        self.treduce(48, 49, 50, 51)
        self.stores(f"buffer_store_dword v48, v15, {srd(SWS)}, 0 offen{{f}}", True, 'A')
        self.end(l2)
        l2 = self.role(R_7)
        A(f"""ds_read_b32 v4, v17 offset:{L_ML}
        ds_read_b32 v5, v17 offset:{L_ML+32}
        s_waitcnt lgkmcnt(1)
        v_max_f32_dpp v6, v4, v4 quad_perm:[1,0,3,2] {DPP}
        v_readfirstlane_b32 s{sFAST}, v47
        v_max_f32_dpp v6, v6, v6 quad_perm:[2,3,0,1] {DPP}
        v_max_f32_dpp v6, v6, v6 row_half_mirror {DPP}
        v_sub_f32 v4, v4, v6
        v_exp_f32 v4, v4
        s_waitcnt lgkmcnt(0)
        v_mul_f32 v7, v4, v5""")
        self.mix(self.red16([7])[:3])
        self.exec_mask(0xff)
        self.stores(f"buffer_store_dwordx4 v[6:9], v16, {srd(SWS)}, 0 offen offset:768{{f}}", True)
        self.exec_full()
        l3 = self.pass0(); l4 = self.lab("ncs")
        A(f"""s_cmp_ge_u32 s{sT}, 30
        s_cbranch_scc1 {l4}
        v_lshlrev_b32 v1, 4, v0
        ds_read_b128 v[12:15], v1 offset:{L_CS}
        s_mul_i32 s{sA}, s{sSIG}, {QSL}
        s_add_u32 s{sA}, s{sA}, {RQ[1] + 4224}
        s_waitcnt lgkmcnt(0)""")
        self.stores(f"buffer_store_dwordx4 v[12:15], v1, {srd(SWS)}, s{sA} offen{{f}}", True)
        self.end(l4); self.end(l3); self.end(l2)
        if int(self.o['prio']) & 4: A("s_setprio 0")
        self.end(l)
        A(f"s_cmp_ge_u32 s{sT}, 30\ns_cbranch_scc1 L_idle")

    def first_pass_checks(self):
        A = self.A
        l = self.lab("nochk"); lp = self.lab("chk"); lr = self.lab("chkr")
        A(f"""s_cmp_eq_u32 s{sV}, 0
        s_cbranch_scc0 {l}
        v_mov_b32 v1, {L_FL}
        v_mov_b32 v2, s{sTAG}
        v_lshlrev_b32 v3, 9, v0
        s_getreg_b32 s{sXCC}, hwreg(HW_REG_XCC_ID, 0, 4)
        s_mov_b32 s{sA}, {RF}
        {lp}:
        buffer_load_dwordx2 v[4:5], v3, {srd(SWS)}, s{sA} offen sc1
        buffer_load_dwordx2 v[6:7], v3, {srd(SWS)}, s{sA} offen offset:128 sc1
        buffer_load_dwordx2 v[8:9], v3, {srd(SWS)}, s{sA} offen offset:256 sc1
        buffer_load_dwordx2 v[10:11], v3, {srd(SWS)}, s{sA} offen offset:384 sc1
        s_waitcnt vmcnt(0)
        v_xor_b32 v4, v4, v2
        v_xor_b32 v6, v6, v2
        v_xor_b32 v8, v8, v2
        v_xor_b32 v10, v10, v2
        v_or3_b32 v4, v4, v6, v8
        v_or_b32 v4, v4, v10
        v_cmp_ne_u32 vcc, 0, v4
        s_cbranch_vccnz {lr}
        v_xor_b32 v5, s{sXCC}, v5
        v_xor_b32 v7, s{sXCC}, v7
        v_xor_b32 v9, s{sXCC}, v9
        v_xor_b32 v11, s{sXCC}, v11
        v_or3_b32 v5, v5, v7, v9
        v_or_b32 v5, v5, v11
        v_cmp_eq_u32 vcc, 0, v5
        s_lshl_b32 s{sB}, s{sX}, 3
        s_lshr_b64 s[{sA}:{sB}], vcc, s{sB}
        s_and_b32 s{sA}, s{sA}, 0xff
        s_cmp_eq_u32 s{sA}, 0xff
        s_cselect_b32 s{sA}, 1, 0
        v_mov_b32 v4, s{sA}
        ds_write_b32 v1, v4 offset:12
        s_cmp_eq_u32 s2, 0
        s_cbranch_scc0 {l}
        v_mov_b32 v3, 0
        s_mov_b32 s{sA}, {RE}
        s_mov_b64 exec, 1
        buffer_store_dword v2, v3, {srd(SWS)}, s{sA} offen sc1
        s_mov_b64 exec, -1
        {l}:""")
        self.tail.append(f"{lr}:\ns_sleep {self.o['bsleep']}\ns_sub_u32 s{sTO}, s{sTO}, 1\ns_cbranch_scc1 L_end\ns_branch {lp}")
        if self.o['prewarm'] and self.o['pwo']:
            l = self.lab("npw")
            A(f"""s_cmp_eq_u32 s{sV}, 1
            s_cbranch_scc0 {l}
            v_lshlrev_b32 v1, 4, v0
            s_mul_i32 s{sA}, s{sSIG}, {QSL}
            s_add_u32 s{sA}, s{sA}, {RQ[1] + 4224}
            buffer_load_dwordx4 v[60:63], v1, {srd(SWS)}, s{sA} offen sc1
            s_mov_b32 exec_hi, 0xffffff
            buffer_load_dwordx4 v[60:63], v1, {srd(SWS)}, s{sE} offen sc1
            s_mov_b64 exec, -1
            {l}:""")

    def afrag_addr(self, d, stride):
        self.A(f"v_and_b32 v1, 3, v0\nv_lshrrev_b32 v2, 4, v0\nv_mul_u32_u24 v1, {stride}, v1\nv_lshl_add_u32 v{d}, v2, 4, v1")
    def pub_addr(self, d, R):
        self.region(sC, R)
        self.A(f"s_lshl_b32 s{sA}, s{sSLOT}, 10\ns_lshl_b32 s{sB}, s{sV}, 8\ns_add_u32 s{sA}, s{sA}, s{sB}\ns_add_u32 s{sA}, s{sA}, s{sC}\nv_lshl_add_u32 v{d}, v0, 4, s{sA}") if not self.o['xbf'] else \
        self.A(f"s_lshl_b32 s{sA}, s{sSLOT}, 9\ns_lshl_b32 s{sB}, s{sV}, 7\ns_add_u32 s{sA}, s{sA}, s{sB}\ns_add_u32 s{sA}, s{sA}, s{sC}\nv_lshl_add_u32 v{d}, v0, 3, s{sA}")
    def pub_store(self, addr, tag):
        if self.o['xbf']:
            self.A("v_cvt_pk_bf16_f32 v68, v68, v69\nv_cvt_pk_bf16_f32 v69, v70, v71")
            self.exec_mask(0xffff)
            self.stores(f"buffer_store_dwordx2 v[68:69], v{addr}, {srd(SWS)}, 0 offen{{f}}", False, tag)
        else:
            self.exec_mask(0xffff)
            self.stores(f"buffer_store_dwordx4 v[68:71], v{addr}, {srd(SWS)}, 0 offen{{f}}", False, tag)
        self.exec_full()
    def unpack_sum(self, dst, srcs):
        out = []
        for k, r in enumerate(srcs):
            for i in range(4):
                out.append(f"v_dot2_f32_bf16 v{dst+i}, v{r + (i >> 1)}, s{sLO if i % 2 == 0 else sHI}, {'0' if k == 0 else 'v%d' % (dst+i)}")
        return out

    def wo_pre1(self):
        A = self.A
        self.region(sD, RO)
        A(f"""s_lshl_b32 s{sA}, s{sRI}, 2
        s_add_u32 s{sA}, s{sA}, s{sV}
        s_mul_i32 s{sB}, s{sA}, 86
        s_lshr_b32 s{sB}, s{sB}, 8
        s_mul_i32 s{sC}, s{sB}, 3
        s_sub_u32 s{sC}, s{sA}, s{sC}
        s_lshl_b32 s{sB}, s{sB}, 3
        s_lshl_b32 s{sA}, s{sX}, 5
        s_add_u32 s{sB}, s{sB}, s{sA}
        s_mul_i32 s{sB}, s{sB}, {OSL}
        s_add_u32 s{sB}, s{sB}, s{sD}
        v_lshrrev_b32 v1, 4, v0
        v_and_b32 v2, 15, v0
        v_mul_u32_u24 v72, {2*OSL}, v1
        v_add_u32 v72, s{sB}, v72
        s_lshl_b32 s{sC}, s{sC}, 8
        v_lshl_add_u32 v73, v2, 4, v72
        v_add_u32 v73, s{sC}, v73
        s_lshl_b32 s{sA}, s{sV}, 7
        v_mul_u32_u24 v74, {OS}, v1
        v_lshl_add_u32 v74, v2, 3, v74
        v_add_u32 v74, s{sA}, v74""")
    def wo_pre2(self):
        A = self.A
        A(f"v_mov_b32 v1, 0\nds_read_b32 v47, v1 offset:{L_FL+12}\ns_mov_b32 s{sA}, {L_WO}")
        self.tr_addr(75, sA)
        A(f"s_lshl_b32 s{sA}, s{sV}, 5\nv_xor_b32 v75, s{sA}, v75")
        self.wfrags(4, 75, 8)
        self.afrag_addr(75, OS); self.pub_addr(76, RX)
        A(f"s_waitcnt lgkmcnt(15)\nv_readfirstlane_b32 s{sFAST}, v47")

    def wo_stage(self):
        A = self.A
        l = self.role(R_LT4)
        self.wo_pre1()
        self.sync(self.o['sync_o'])
        def loadsA(): A(f"""buffer_load_dwordx2 v[52:53], v72, {srd(SWS)}, 0 offen offset:768 sc1
        buffer_load_dwordx2 v[54:55], v72, {srd(SWS)}, 0 offen offset:{768+OSL} sc1""")
        def loads(): A(f"""buffer_load_dwordx4 v[56:59], v73, {srd(SWS)}, 0 offen sc1
        buffer_load_dwordx4 v[60:63], v73, {srd(SWS)}, 0 offen offset:{OSL} sc1""")
        shadow = self.wo_pre2
        chain = """v_sub_f32 v66, v54, v52
            v_exp_f32 v67, v66
            v_exp_f32 v66, -v66
            v_fma_f32 v67, v67, v55, v53
            v_fma_f32 v66, v66, v53, v55
            v_rcp_f32 v67, v67
            v_rcp_f32 v66, v66""".split('\n')
        def red(ch):
            self.mix(ch)
            for i in range(4): A(f"v_mul_f32 v{56+i}, v67, v{56+i}")
            for i in range(4): A(f"v_fmac_f32 v{56+i}, v66, v{60+i}")
            A("v_add_f32 v64, v56, v57\nv_add_f32 v65, v58, v59\nv_cvt_pk_bf16_f32 v56, v56, v57\nv_cvt_pk_bf16_f32 v57, v58, v59")
        self.poll(loads, range(52, 64), red, (64, 65), tag='o', shadow=shadow, pre=(loadsA, (53, 55), chain), post=lambda: A(f"ds_write_b64 v74, v[56:57] offset:{L_OA}"))
        lgo = self.lab("wogo")
        A("s_waitcnt lgkmcnt(0)")
        self.stamp(5)
        self.barrier('O')
        for s in range(8): A(f"ds_read_b128 {vr(36+4*s)}, v75 offset:{L_OA + 64*s}")
        for s in range(8):
            A(f"s_waitcnt lgkmcnt({7-s})\nv_mfma_f32_16x16x32_bf16 v[68:71], {vr(36+4*s)}, {vr(4+4*s)}, {'0' if s == 0 else 'v[68:71]'}")
        self.pub_store(76, 'O')
        A(f"s_branch {lgo}")
        self.end(l)
        l = self.pass0(); self.cq_gather(False); self.end(l)
        self.barrier('O')
        l = lgo; l2 = self.pass0()
        nlate = 6 if self.o['defer'] else 0
        def late_clr():
            l3 = self.lab("nm"); l5, l6, l7_ = self.lab("lc"), self.lab("lc"), self.lab("lc")
            A(f"s_cbranch_execz {l3}"); self.clr_begin()
            A(f"s_cmp_eq_u32 s{sV}, 5\ns_cbranch_scc1 {l5}\ns_cmp_eq_u32 s{sV}, 6\ns_cbranch_scc1 {l6}\ns_cmp_eq_u32 s{sV}, 7\ns_cbranch_scc1 {l3}")
            self.clr('X', 1); self.clr('Y', 1); self.clr('O', 1)
            A(f"s_branch {l3}\n{l5}:"); self.clr('G', 1)
            A(f"s_branch {l3}\n{l6}:"); self.clr('Q', 1)
            self.end(l3)
        def late():
            if self.o['dwo']:
                l3 = self.lab("nm"); A(f"s_cbranch_execz {l3}\ns_and_b32 s{sD}, s{sV}, 3"); self.w_dma_gud(sD, self.o['dwo']); self.end(l3)
        l7 = self.role(R_7)
        if self.o['prewarm']:
            self.mem(f"""v_lshlrev_b32 v1, 4, v0
            s_mul_i32 s{sA}, s{sSIG}, {GSL}
            s_add_u32 s{sA}, s{sA}, {RG[0]}
            buffer_load_dwordx4 v[60:63], v1, {srd(SWS)}, s{sA} offen sc1
            buffer_load_dwordx4 v[60:63], v1, {srd(SWS)}, s{sA} offen offset:1024 sc1
            s_mov_b32 exec_hi, 0xff
            buffer_load_dwordx4 v[60:63], v1, {srd(SWS)}, s{sA} offen offset:2048 sc1
            s_mov_b32 exec_hi, -1""")
        self.end(l7)
        late()
        if self.o['clr'] == 'late': late_clr()
        self.end(l2); self.end(l)
        self.stamp(6)

    def x_gather_pre(self, R):
        self.region(sC, R)
        h = 1 if self.o['xbf'] else 0
        self.A(f"""s_lshl_b32 s{sA}, s{sAI}, {10-h}
        s_lshl_b32 s{sB}, s{sV}, {7-h}
        s_add_u32 s{sA}, s{sA}, s{sB}
        s_add_u32 s{sA}, s{sA}, s{sC}
        v_lshrrev_b32 v1, 3, v0
        v_and_b32 v2, 7, v0
        v_mul_u32_u24 v28, {10240 >> h}, v1
        v_lshl_add_u32 v28, v2, {4-h}, v28
        v_add_u32 v28, s{sA}, v28
        v_lshrrev_b32 v1, 4, v0
        v_mul_u32_u24 v29, {XS}, v1
        v_lshl_add_u32 v29, v2, 1, v29
        s_lshl_b32 s{sA}, s{sV}, 4
        v_add_u32 v29, s{sA}, v29""")
    def x_gather(self, tag, shadow):
        A = self.A
        bf = self.o['xbf']
        def loads():
            for i, r in enumerate(("0", f"s{sK1}", f"s{sK2}")):
                A(f"buffer_load_dwordx2 {vr(52+2*i,2)}, v28, {srd(SWS)}, {r} offen sc1" if bf else f"buffer_load_dwordx4 {vr(48+4*i)}, v28, {srd(SWS)}, {r} offen sc1")
        def red():
            if bf: self.mix(self.unpack_sum(48, [52, 54, 56]))
            else:
                for i in range(4): A(f"v_add_f32 v{48+i}, v{48+i}, v{52+i}")
                for i in (0, 2, 1, 3): A(f"v_add_f32 v{48+i}, v{48+i}, v{56+i}")
            self.treduce(48, 49, 50, 51)
            A(f"v_add_f32_dpp v48, v48, v48 row_ror:8 {DPP}\nv_cvt_pk_bf16_f32 v49, 0, v48")
        self.poll(loads, range(52, 58) if bf else range(48, 60), red, (48, 48), tag=tag, shadow=shadow)

    def gu_stage(self):
        A = self.A
        A(f"s_lshr_b32 s{sA}, s{sV}, 2\ns_lshl_b32 s{sA}, s{sA}, 13\ns_add_u32 s{sA}, s{sA}, {L_WG}")
        self.tr_addr(35, sA)
        A(f"s_and_b32 s{sA}, s{sV}, 3\ns_lshl_b32 s{sA}, s{sA}, 5\nv_xor_b32 v35, s{sA}, v35")
        if self.o['defer']:
            l = self.lab("gw"); A(f"s_cmp_eq_u32 s{sP}, 0\ns_cbranch_scc1 {l}"); self.wfrags(12, 35, 2); self.end(l)
        else: self.wfrags(12, 35, 2)
        self.x_gather_pre(RX)
        self.xa_addr()
        self.region(sC, RG)
        A(f"""s_mul_i32 s{sA}, s{sSIG}, {GSL}
        s_add_u32 s{sA}, s{sA}, s{sC}
        s_lshl_b32 s{sB}, s{sV}, {7 if self.o['gbf'] else 8}
        s_add_u32 s{sB}, s{sB}, s{sA}
        v_lshl_add_u32 v32, v0, {3 if self.o['gbf'] else 4}, s{sB}
        s_lshl_b32 s{sB}, s{sV}, 6
        s_add_u32 s{sB}, s{sB}, s{sA}
        v_lshl_add_u32 v34, v0, 2, s{sB}
        v_lshrrev_b32 v1, 4, v0
        s_add_u32 s{sA}, s{sA}, 2560
        v_lshl_add_u32 v33, v1, 4, s{sA}""")
        self.sync(self.o['sync_x'], RX)
        def xsh():
            if self.o['dx']:
                l = self.pass0(); l3 = self.lab("nm"); le = self.lab("dxe")
                A(f"s_cbranch_execz {l3}")
                self.dma_addr(20, 1280)
                wf = self.o['wflag'].replace('plain', '')
                A(f"""s_and_b32 s{sA}, s{sV}, 1
                s_lshl_b32 s{sA}, s{sA}, 6
                v_xor_b32 v20, s{sA}, v20
                s_lshl_b32 s{sB}, s{sV}, 10
                s_add_u32 m0, s{sB}, {L_WD}
                s_mul_i32 s{sA}, s{sV}, {8*1280}
                buffer_load_dwordx4 v20, {srd(SWD)}, s{sA} offen {wf} lds""")
                self.end(l3)
                self.down_pre()
                A(f"s_waitcnt vmcnt(1)\ns_cbranch_execnz {self.lskip}")
                self.end(l)
            self.down_pre()
        if 'x' in self.o['early']: self.down_pre(); self.x_gather('x', None)
        else: self.x_gather('x', xsh)
        A(f"""v_add_f32 v{vXR}, v{vXR}, v49
        v_cvt_pk_bf16_f32 v{vXR}, 0, v{vXR}
        ds_write_b16_d16_hi v29, v{vXR} offset:{L_XA}""")
        self.stamp(7)
        def store(first):
            self.exec_mask(0xffff)
            self.stores(f"buffer_store_dwordx4 v[48:51], v32, {srd(SWS)}, 0 offen{{f}}", True, 'X')
            if first:
                self.exec_mask(0xffff0000)
                self.stores(f"buffer_store_dword v48, v34, {srd(SWS)}, 0 offen offset:{2048-64}{{f}}", True)
            self.exec_full()
        self.mm_with_gram("v_mfma_f32_16x16x32_bf16 v[48:51], v[4:7], v[12:15], 0", "v_mfma_f32_16x16x32_bf16 v[48:51], v[8:11], v[16:19], v[48:51]", store, 'X',
                          late=(lambda: self.wfrags(12, 35, 2)) if self.o['defer'] else (lambda: None))
        self.stamp(8)

    def down_wpre(self):
        l = self.role(R_LT4)
        if self.o['dx']: self.A(f"s_cmp_eq_u32 s{sP}, 0\ns_cbranch_scc1 {l}")
        self.wfrags(20, 47, 2); self.end(l)
    def down_pre(self):
        A = self.A
        A(f"s_mov_b32 s{sA}, {L_WD}")
        self.tr_addr(47, sA)
        A(f"s_lshl_b32 s{sA}, s{sV}, 5\nv_xor_b32 v47, s{sA}, v47")
        self.afrag_addr(78, HS); self.pub_addr(79, RY)
        self.region(sD, RG)
        A(f"""s_mul_i32 s{sC}, s{sRI}, 10
        s_lshl_b32 s{sA}, s{sX}, 5
        s_add_u32 s{sC}, s{sC}, s{sA}
        s_mul_i32 s{sC}, s{sC}, {GSL}
        s_add_u32 s{sC}, s{sC}, s{sD}
        v_lshrrev_b32 v1, 4, v0
        v_mul_u32_u24 v3, {GSL}, v1
        v_add_u32 v3, s{sC}, v3
        v_bfe_u32 v2, v0, 3, 1
        v_lshlrev_b32 v2, 6, v2
        v_and_or_b32 v2, v0, 7, v2
        s_lshl_b32 s{sA}, s{sV}, 3
        v_add_u32 v2, s{sA}, v2
        v_lshl_add_u32 v72, v2, {3 if self.o['gbf'] else 4}, v3
        v_lshl_add_u32 v74, v2, 2, v3
        v_add_u32 v73, {8*GSL}, v72
        v_add_u32 v75, {8*GSL}, v74
        v_mov_b32 v3, {OOB}
        v_cmp_gt_u32 vcc, 32, v0
        v_cndmask_b32 v73, v3, v73, vcc
        v_cndmask_b32 v75, v3, v75, vcc
        v_and_b32 v2, 15, v0
        v_mul_u32_u24 v76, {GSL}, v2
        v_lshl_add_u32 v76, v1, 4, v76
        v_add_u32 v76, s{sC}, v76
        v_cmp_gt_u32 vcc, 10, v2
        v_cndmask_b32 v76, v3, v76, vcc
        v_mul_u32_u24 v77, {HS}, v1
        v_and_b32 v2, 7, v0
        v_lshl_add_u32 v77, v2, 1, v77
        s_lshl_b32 s{sA}, s{sV}, 4
        v_add_u32 v77, s{sA}, v77
        v_mov_b32 v44, 0
        v_mov_b32 v45, 0
        v_mov_b32 v46, 0""")

    def down_stage(self):
        A = self.A
        self.sync(self.o['sync_g'])
        gb = self.o['gbf']
        def loadsA(): A(f"buffer_load_dwordx4 v[40:43], v76, {srd(SWS)}, 0 offen offset:2560 sc1")
        def loads():
            if gb: A(f"""buffer_load_dwordx2 v[56:57], v72, {srd(SWS)}, 0 offen sc1
            buffer_load_dwordx2 v[58:59], v72, {srd(SWS)}, s{sKG} offen sc1
            buffer_load_dwordx2 v[60:61], v73, {srd(SWS)}, 0 offen sc1""")
            else: A(f"""buffer_load_dwordx4 v[52:55], v72, {srd(SWS)}, 0 offen sc1
            buffer_load_dwordx4 v[56:59], v72, {srd(SWS)}, s{sKG} offen sc1
            buffer_load_dwordx4 v[60:63], v73, {srd(SWS)}, 0 offen sc1""")
            l = self.pass0()
            A(f"""buffer_load_dword v44, v74, {srd(SWS)}, 0 offen offset:2048 sc1
            buffer_load_dword v45, v74, {srd(SWS)}, s{sKG} offen offset:2048 sc1
            buffer_load_dword v46, v75, {srd(SWS)}, 0 offen offset:2048 sc1""")
            self.end(l)
        def red(s1):
            s0 = f"""v_add_f32 v35, v44, v45
            v_add_f32 v35, v35, v46
            v_mov_b32 v36, v35
            v_permlane32_swap_b32 v35, v36
            v_add_f32 v35, v35, v36
            v_mov_b32 v36, v35
            v_permlane16_swap_b32 v35, v36
            v_add_f32 v{vC}, v35, v36""".split('\n')
            s2 = (self.unpack_sum(52, [56, 58, 60]) if gb else [f"v_add_f32 v{52+i}, v{52+i}, v{56+i}" for i in range(4)] + [f"v_add_f32 v{52+i}, v{52+i}, v{60+i}" for i in (0, 2, 1, 3)]) + \
                 self.capture(lambda: self.treduce(52, 53, 54, 55))
            l = self.pass0(); le = self.lab("rv")
            self.mix(s1, s2, s0)
            A(f"s_cbranch_execnz {le}")
            self.end(l)
            self.mix(s1, s2)
            self.end(le)
            A(f"v_fma_f32 v52, -v37, v{vC}, v52\nv_mul_f32 v52, v52, v38\nv_cvt_pk_bf16_f32 v53, 0, v52")
        def post():
            A(f"""v_mul_f32 v54, s{sLOG2E}, v53
            v_exp_f32 v54, -v54
            v_add_f32 v54, 1.0, v54
            v_rcp_f32 v54, v54
            v_mul_f32 v54, v53, v54
            v_cvt_pk_bf16_f32 v54, 0, v54
            v_mul_f32_dpp v54, v53, v54 row_ror:8 {DPP}""")
            self.exec_mask(0x00ff00ff00ff00ff)
            A(f"v_cvt_pk_bf16_f32 v54, 0, v54\nds_write_b16_d16_hi v77, v54 offset:{L_HA}")
            self.exec_full()
        self.poll(loads, list(range(56, 62) if gb else range(52, 64)) + list(range(40, 47)), red, (52, 64), tag='g', shadow=self.down_wpre, post=post,
                  pre=(loadsA, (40, 43), self.red16([40, 41]) + self.lnstats(40, 41, 37, 38, 39) + ["v_add_f32 v64, v42, v43", "v_add_f32 v64, v64, v40"]))
        self.stamp(9)
        l = self.role(R_LT4); le = self.lab("dn")
        A("s_waitcnt lgkmcnt(0)"); self.barrier('G')
        if self.o['dx']:
            l2 = self.pass0(); self.wfrags(20, 47, 2); self.end(l2)
        A(f"""ds_read_b128 v[4:7], v78 offset:{L_HA}
        ds_read_b128 v[8:11], v78 offset:{L_HA+64}
        s_waitcnt lgkmcnt(1)
        v_mfma_f32_16x16x32_bf16 v[68:71], v[4:7], v[20:23], 0
        s_waitcnt lgkmcnt(0)
        v_mfma_f32_16x16x32_bf16 v[68:71], v[8:11], v[24:27], v[68:71]""")
        self.pub_store(79, 'G')
        A(f"s_branch {le}")
        self.end(l)
        A("s_waitcnt lgkmcnt(0)"); self.barrier('G')
        self.end(le)
        self.stamp(10)
        self.mix(self.red16([42, 43]))
        A(f"""v_fma_f32 v42, -v37, v43, v42
        v_mul_f32 v42, v42, v38
        v_cvt_pk_bf16_f32 v42, 0, v42
        v_mul_f32 v42, s{sLOG2E}, v42
        v_exp_f32 v42, -v42
        v_sub_f32 v{vXN}, v{vXR}, v37
        v_add_f32 v42, 1.0, v42
        v_rcp_f32 v42, v42
        v_cvt_pk_bf16_f32 v{vXN}, 0, v{vXN}
        v_cvt_pk_bf16_f32 v{vSG}, 0, v42
        v_mul_f32 v{vXN}, v{vXN}, v38
        v_cvt_pk_bf16_f32 v{vXN}, 0, v{vXN}""")

    def y_finish(self):
        self.A(f"""v_mul_f32 v49, v49, v{vSG}
        v_cvt_pk_bf16_f32 v49, 0, v49
        v_add_f32 v49, v{vXN}, v49
        v_cvt_pk_bf16_f32 v49, 0, v49
        v_add_f32 v{vXR}, v{vXR}, v49
        v_cvt_pk_bf16_f32 v{vXR}, 0, v{vXR}""")

    def qg_addr(self, extra):
        self.A(f"""s_lshr_b32 s{sA}, s{sT}, 3
        s_mul_i32 s{sA}, s{sA}, 3
        s_and_b32 s{sB}, s{sV}, 3
        s_add_u32 s{sA}, s{sA}, s{sB}
        s_lshr_b32 s{sB}, s{sA}, 2
        s_mul_i32 s{sB}, s{sB}, 10
        s_lshl_b32 s{sC}, s{sX}, 5
        s_add_u32 s{sB}, s{sB}, s{sC}
        s_mul_i32 s{sB}, s{sB}, {QSL}
        s_add_u32 s{sB}, s{sB}, {RQ[1]}
        s_and_b32 s{sA}, s{sA}, 3
        s_lshl_b32 s{sA}, s{sA}, 8
        s_add_u32 s{sA}, s{sA}, s{sB}
        s_add_u32 s{sA}, s{sA}, {extra}
        v_lshrrev_b32 v1, 4, v0
        v_and_b32 v2, 15, v0
        v_mul_u32_u24 v36, {QSL}, v1
        v_lshl_add_u32 v36, v2, 4, v36
        v_add_u32 v36, s{sA}, v36
        v_add_u32 v37, {8*QSL}, v36
        v_mov_b32 v3, {OOB}
        v_cmp_gt_u32 vcc, 32, v0
        v_cndmask_b32 v37, v3, v37, vcc
        v_lshlrev_b32 v40, 4, v2
        v_lshl_add_u32 v40, v1, 2, v40
        s_and_b32 s{sA}, s{sV}, 3
        s_lshl_b32 s{sA}, s{sA}, 8
        v_add_u32 v40, s{sA}, v40""")
    def cq_gather(self, idle, shadow=None, wait0=0):
        A = self.A
        l = self.role(R_456)
        self.qg_addr("4224")
        def loads(): A(f"""buffer_load_dwordx4 v[12:15], v36, {srd(SWS)}, 0 offen sc1
        buffer_load_dwordx4 v[16:19], v36, {srd(SWS)}, s{sKQ} offen sc1
        buffer_load_dwordx4 v[20:23], v37, {srd(SWS)}, 0 offen sc1""")
        def red():
            for i in range(4): A(f"v_add_f32 v{12+i}, v{12+i}, v{16+i}")
            for i in range(4): A(f"v_add_f32 v{12+i}, v{12+i}, v{20+i}")
            self.treduce(12, 13, 14, 15)
        self.poll(loads, range(12, 24), red, (12, 12), idle=idle, shadow=shadow, wait0=wait0)
        A(f"ds_write_b32 v40, v12 offset:{L_CQ}")
        self.end(l)
    def qg_pre(self):
        A = self.A
        l = self.role(R_456)
        A(f"s_bfe_u32 s{sD}, s{sT}, 0x20001\ns_lshl_b32 s{sF}, s{sD}, 10")
        self.qg_addr(f"s{sF}")
        A(f"""v_mul_u32_u24 v38, {QSL}, v2
        s_lshl_b32 s{sD}, s{sD}, 4
        s_add_u32 s{sD}, s{sD}, s{sB}
        s_add_u32 s{sD}, s{sD}, 4096
        v_add_u32 v38, s{sD}, v38
        v_cmp_gt_u32 vcc, 10, v2
        v_cndmask_b32 v38, v3, v38, vcc
        ds_read_b32 v40, v40 offset:{L_CQ}""")
        self.q_lds_addr(39)
        A(f"s_lshr_b32 s{sA}, s{sA}, 1\nv_add_u32 v39, s{sA}, v39")
        self.end(l)
    def prewarm_o1(self):
        self.mem(f"""v_lshlrev_b32 v1, 4, v0
        s_mul_i32 s{sA}, s{sSIG}, {OSL}
        s_add_u32 s{sA}, s{sA}, {RO[1]}
        s_mov_b32 exec_hi, 0xffffff
        buffer_load_dwordx4 v[60:63], v1, {srd(SWS)}, s{sA} offen sc1
        s_mov_b32 exec_hi, -1""")

    def q_stage_and_final(self):
        A = self.A
        A(f"s_cmp_eq_u32 s{sP}, 1\ns_cbranch_scc1 L_final")
        if self.o['prewarm']:
            l = self.role(R_GE4); la = self.lab("pw"); lb = self.lab("pw"); l3 = self.lab("nm")
            A(f"""s_cbranch_execz {l3}
            v_lshlrev_b32 v1, 4, v0
            s_cmp_ge_u32 s{sV}, 6
            s_cbranch_scc1 {la}
            s_and_b32 s{sB}, s{sV}, 1
            s_lshl_b32 s{sB}, s{sB}, 11
            s_mul_i32 s{sA}, s{sSIG}, {QSL}
            s_add_u32 s{sA}, s{sA}, {RQ[1]}
            s_add_u32 s{sB}, s{sA}, s{sB}
            buffer_load_dwordx4 v[60:63], v1, {srd(SWS)}, s{sB} offen sc1
            buffer_load_dwordx4 v[60:63], v1, {srd(SWS)}, s{sB} offen offset:1024 sc1
            s_add_u32 s{sA}, s{sA}, 4096
            s_mov_b64 exec, 0xff
            buffer_load_dwordx4 v[60:63], v1, {srd(SWS)}, s{sA} offen sc1
            s_branch {lb}
            {la}:
            s_mul_i32 s{sA}, s{sSIG}, {GSL}
            s_add_u32 s{sA}, s{sA}, {RG[1]}
            s_cmp_eq_u32 s{sV}, 6
            s_cselect_b32 s{sB}, 0, 0x400
            s_add_u32 s{sB}, s{sB}, s{sA}
            buffer_load_dwordx4 v[60:63], v1, {srd(SWS)}, s{sB} offen sc1
            s_add_u32 s{sA}, s{sA}, 2560
            s_mul_i32 s{sB}, s{sSIG}, {OSL}
            s_add_u32 s{sB}, s{sB}, {RO[1]}
            s_cmp_eq_u32 s{sV}, 6
            s_cselect_b32 s{sA}, s{sA}, s{sB}
            s_cselect_b32 exec_lo, 0xff, -1
            s_cselect_b32 exec_hi, 0, 0xffffff
            buffer_load_dwordx4 v[60:63], v1, {srd(SWS)}, s{sA} offen sc1
            {lb}:
            s_mov_b64 exec, -1""")
            self.end(l3); self.end(l)
        A(f"s_lshr_b32 s{sA}, s{sV}, 1\ns_lshl_b32 s{sA}, s{sA}, 13\ns_add_u32 s{sA}, s{sA}, {L_WQ}")
        self.tr_addr(34, sA)
        A(f"s_and_b32 s{sA}, s{sV}, 1\ns_lshl_b32 s{sA}, s{sA}, 6\nv_xor_b32 v34, s{sA}, v34\nv_xor_b32 v35, 32, v34")
        self.wfrags(12, 34, 2); self.wfrags(20, 35, 2)
        self.x_gather_pre(RY)
        self.xa_addr()
        A(f"""v_and_b32 v1, 15, v0
        v_lshlrev_b32 v32, 10, v1
        v_lshrrev_b32 v1, 4, v0
        v_lshl_add_u32 v32, v1, 4, v32
        s_mul_i32 s{sB}, s{sSIG}, {QSL}
        s_add_u32 s{sB}, s{sB}, {RQ[1]}
        s_lshl_b32 s{sA}, s{sV}, 7
        s_add_u32 s{sA}, s{sA}, s{sB}
        v_add_u32 v32, s{sA}, v32
        s_add_u32 s{sB}, s{sB}, 4096
        v_lshl_add_u32 v33, v1, 4, s{sB}""")
        self.sync(self.o['sync_y'], RY)
        if 'y' in self.o['early']: self.attn_pre(); self.x_gather('y', self.qg_pre)
        else: self.x_gather('y', lambda: (self.attn_pre(), self.qg_pre()))
        self.y_finish()
        A(f"ds_write_b16_d16_hi v29, v{vXR} offset:{L_XA}")
        self.stamp(11)
        def store(first):
            self.exec_mask(0x000f000f000f000f)
            self.stores(f"buffer_store_dwordx4 v[48:51], v32, {srd(SWS)}, 0 offen{{f}}\nbuffer_store_dwordx4 v[52:55], v32, {srd(SWS)}, 0 offen offset:64{{f}}", True, 'Y')
            self.exec_full()
        self.mm_with_gram("v_mfma_f32_16x16x32_bf16 v[48:51], v[12:15], v[4:7], 0\nv_mfma_f32_16x16x32_bf16 v[52:55], v[20:23], v[4:7], 0",
                          "v_mfma_f32_16x16x32_bf16 v[48:51], v[16:19], v[8:11], v[48:51]\nv_mfma_f32_16x16x32_bf16 v[52:55], v[24:27], v[8:11], v[52:55]", store, 'Y')
        A("L_qwait:")
        l = self.role(R_456)
        self.sync(self.o['sync_q'])
        def loadsA(): A(f"buffer_load_dwordx2 v[16:17], v38, {srd(SWS)}, 0 offen sc1")
        def loads(): A(f"""buffer_load_dwordx4 v[4:7], v36, {srd(SWS)}, 0 offen sc1
        buffer_load_dwordx4 v[8:11], v36, {srd(SWS)}, s{sKQ} offen sc1
        buffer_load_dwordx4 v[12:15], v37, {srd(SWS)}, 0 offen sc1""")
        def red(s1):
            s2 = [f"v_add_f32 v{4+i}, v{4+i}, v{8+i}" for i in range(4)] + [f"v_add_f32 v{4+i}, v{4+i}, v{12+i}" for i in (0, 2, 1, 3)] + self.capture(lambda: self.treduce(4, 5, 6, 7))
            self.mix(s1, s2)
            A("v_fma_f32 v4, -v18, v40, v4\nv_mul_f32 v4, v4, v19\nv_cvt_pk_bf16_f32 v5, 0, v4")
        self.poll(loads, range(4, 18), red, (4, 16), idle=True, tag='q', shadow=lambda: self.attn_zero(skip=range(36, 41)), pre=(loadsA, (16, 17), self.red16([16, 17]) + self.lnstats(16, 17, 18, 19, 21)),
                  post=lambda: A(f"ds_write_b16_d16_hi v39, v5 offset:{L_QL}"))
        le = self.lab("qz")
        for r in range(36, 41): A(f"v_mov_b32 v{r}, 0")
        A(f"s_mov_b32 s{sP}, 1\ns_branch L_attn_bar")
        self.end(l)
        self.attn_zero()
        A(f"s_mov_b32 s{sP}, 1")
        if int(self.o['wb']) == 1:
            A(f"s_cmp_eq_u32 s{sT}, 30\ns_cbranch_scc0 L_attn_bar\ns_cmp_eq_u32 s{sV}, 3\ns_cbranch_scc0 L_attn_bar\ns_barrier\nbuffer_wbl2 sc1\ns_branch L_attn")
        else: A("s_branch L_attn_bar")
        A(f"L_idle:\ns_cmp_eq_u32 s{sP}, 0\ns_cbranch_scc0 L_done")
        if self.o['prewarm']:
            l = self.role(R_7); self.prewarm_o1(); A("s_waitcnt vmcnt(0)"); self.end(l)
        self.cq_gather(True)
        A("s_waitcnt lgkmcnt(0)")
        if self.o['clr'] == 'late':
            l = self.role(R_456); lp = self.lab("ig"); lr = self.lab("igr")
            A(f"""s_lshl_b32 s{sA}, s{sX}, 5
            s_mul_i32 s{sA}, s{sA}, {GSL}
            s_add_u32 s{sA}, s{sA}, {RG[0] + 2560}
            v_min_u32 v1, 29, v0
            v_mul_u32_u24 v1, {GSL}, v1
            {lp}:
            buffer_load_dword v4, v1, {srd(SWS)}, s{sA} offen sc1
            s_waitcnt vmcnt(0)
            v_cmp_eq_u32 vcc, -1, v4
            s_cbranch_vccnz {lr}""")
            self.tail.append(f"{lr}:\ns_sleep 4\ns_sub_u32 s{sTO}, s{sTO}, 1\ns_cbranch_scc1 L_end\ns_branch {lp}")
            self.end(l)
        self.attn_pre(); self.qg_pre()
        A("s_waitcnt lgkmcnt(0)\ns_branch L_qwait")
        A(f"""L_final:
        s_and_b32 s{sA}, s{sT}, 7
        s_cmp_eq_u32 s{sA}, s{sX}
        s_cbranch_scc0 L_done
        s_cmp_lt_u32 s{sT}, 10
        s_cbranch_scc0 L_done
        L_final_body:""")
        self.x_gather_pre(RY); self.xcol_addr(29)
        self.sync(self.o['sync_f'], RY)
        self.x_gather('f', None)
        self.y_finish()
        self.exec_mask(0x00ff00ff00ff00ff)
        self.mem(f"buffer_store_short_d16_hi v{vXR}, v29, {srd(SOUT)}, 0 offen")
        self.exec_full()
        if self.o['dry']: A(f"s_cmp_eq_u32 s{sDRY}, 1\ns_cbranch_scc1 L_stubs")
        A("L_done:")
        if int(self.o['pad']):
            A(f"""L_pad:
            s_memrealtime s[90:91]
            s_waitcnt lgkmcnt(0)
            s_sub_u32 s90, s90, s96
            s_cmp_lt_u32 s90, {int(self.o['pad'])*100}
            s_cbranch_scc1 L_pad""")
        if self.prof: self.stamp(11)
        A("L_end:")
        if self.o['t2']: A("s_waitcnt vmcnt(0)\ns_memrealtime s[68:69]\ns_mov_b32 s64, s96")
        if self.o['fine'] or self.o['t2']: A("s_waitcnt lgkmcnt(0)")
        if self.prof or self.o['fine'] or self.o['t2']:
            A(f"""s_mov_b64 exec, -1
            s_lshl_b32 s{sA}, s2, 3
            s_add_u32 s{sA}, s{sA}, s{sV}
            s_lshl_b32 s{sA}, s{sA}, 7
            s_add_u32 s{sA}, s{sA}, {STAMP}
            v_mov_b32 v1, 0""")
            for i in range(24): A(f"v_mov_b32 v{4+i}, s{sST+i}")
            A(f"v_mov_b32 v28, s{sFAST}\nv_mov_b32 v29, s{sTO}\nv_mov_b32 v30, 0\nv_mov_b32 v31, 0\ns_mov_b64 exec, 1")
            for i in range(7): A(f"buffer_store_dwordx4 {vr(4+4*i)}, v1, {srd(SWS)}, s{sA} offen offset:{16*i}")
        A("L_exit:\ns_endpgm\nL_stubs:")
        for st in self.stubs: A(st)
        A("s_branch L_dry_ret" if self.o['dry'] else "s_endpgm")

    def build(self):
        self.prologue(); self.startup(); self.attention(); self.wo_stage(); self.gu_stage(); self.down_stage(); self.q_stage_and_final()
        i = 0
        while i < len(self.tail): self.A(self.tail[i]); i += 1
        if not self.o['dry']:
            self.L = [l.replace('s_cbranch_execnz', 's_branch') for l in self.L if not l.startswith('s_cbranch_execz')]
        body, nn = resolve(self.L)
        if int(self.o['a8']):
            body, a, b = align8(body, "L_attn:", int(self.o['a8']), int(self.o['a8n'])); print("align8 widened", a, "nops", b)
        hdr = open('interleave_layers__sliding_block_cached__moe_arch_mod__decode.s.ref').read().split('\n')
        hl = [l for l in hdr if l.startswith(';') and '@launch' not in l]
        hl = hl[:hl.index([l for l in hl if 'Override launch' in l][0])]
        out = hl + [f"; @launch grid=(256,1,1) block=(512,1,1) lds={LDS_SIZE}",
                    '.amdgcn_target "amdgcn-amd-amdhsa--gfx950"', ".text", f".globl {NAME}", ".p2align 8", f".type {NAME},@function", f"{NAME}:"]
        out += [("" if l.endswith(':') else "    ") + l for l in body]
        out += ['.section .rodata,"a"', ".p2align 6", f".amdhsa_kernel {NAME}",
                "  .amdhsa_next_free_vgpr 256", "  .amdhsa_next_free_sgpr 102", "  .amdhsa_accum_offset 160",
                "  .amdhsa_group_segment_fixed_size 0", "  .amdhsa_kernarg_size 104", "  .amdhsa_user_sgpr_count 2",
                "  .amdhsa_user_sgpr_kernarg_segment_ptr 1", "  .amdhsa_system_sgpr_workgroup_id_x 1",
                "  .amdhsa_float_denorm_mode_32 3", ".end_amdhsa_kernel"]
        return "\n".join(out) + "\n", nn

if __name__ == "__main__":
    path = sys.argv[1]
    opts = {}; prof = False
    for a in sys.argv[2:]:
        if a == 'prof': prof = True
        else:
            k, v = a.split('=')
            opts[k] = {'True': True, 'False': False}.get(v, v)
    s, nn = G(prof, opts).build()
    open(path, 'w').write(s)
    print("wrote", path, len(s.split('\n')), "lines, nops inserted:", nn)
```

```python
import sys
from asmlib import resolve, align8

NAME = "interleave_layers__sliding_block_cached__moe_arch_mod__decode_kernel"

OSL, GSL, QSL, Q0SL, XSZ = 896, 2688, 5248, 4096, 245760
RO = [0, 256 * OSL]
RX = [2 * 256 * OSL, 2 * 256 * OSL + XSZ]
RY = [RX[1] + XSZ, RX[1] + 2 * XSZ]
RG = [RY[1] + XSZ, RY[1] + XSZ + 256 * GSL]
RQ = [RG[1] + 256 * GSL, RG[1] + 256 * GSL + 256 * Q0SL]
RF = RQ[1] + 256 * QSL
RE = RF + 32768
WS_END = RE + 2048
STAMP = WS_END
WS_SIZE = WS_END + 256 * 8 * 128
OOB = 0x7ff00000
L_OC = 0
L_ML = L_OC + 12288
L_XA = L_ML + 64; XS = 144
L_HA = L_XA + 6 * XS; HS = 192
L_OA = L_HA + 4 * HS; OS = 576
L_QL = L_OA + 4 * OS
L_FL = L_QL + 400
L_CQ = L_FL + 32
L_CS = L_CQ + 768
L_X0 = L_CS + 1024
L_WD = (L_X0 + 5120 + 127) // 128 * 128
L_WG = L_WD + 8192
L_WU = L_WG + 8192
L_WO = L_WU + 8192
L_WQ = L_WO + 32768
L_VP = L_WQ + 32768
LDS_SIZE = L_VP + 8 * 6144
assert LDS_SIZE <= 163840
sW, sV, sX, sT, sP, sDRY = 2, 3, 4, 5, 6, 7
SK, SVV, SWS, SWQ, SWO, SWG, SWU, SWD, SX0, SWR, SOUT = range(8, 52, 4)
sAI, sRI, sSIG, sSLOT = 52, 53, 54, 55
sFAST, sROLE, sTO, sEPS = 56, 57, 58, 59
sFULL = 60
sA, sB, sC, sD, sE, sF = 62, 63, 88, 89, 90, 91
sM = 92
sLOG2E, sSCALE, sINVN = 93, 94, 95
sG, sXCC, sSAVE, sTAG = 98, 99, 100, 101
sST = 64
R_LT4, R_GE4, R_456, R_7, R_6, R_GR = range(6)
sLO, sHI = 44, 45
sK1, sK2, sKG, sKQ = 40, 41, 42, 43
vXR, vXN, vSG, vC = 80, 81, 82, 83
VBASE = 88
ODD = 0xAAAAAAAAAAAAAAAA

def srd(b): return f"s[{b}:{b+3}]"
def vr(a, n=4): return f"v[{a}:{a+n-1}]" if n > 1 else f"v{a}"
def ar(a, n=4): return f"a[{a}:{a+n-1}]"
DPP = "row_mask:0xf bank_mask:0xf"

class G:
    def __init__(self, prof=False, opts=None):
        self.L = []; self.tail = []; self.stubs = []; self.n = 0; self.prof = prof
        self.o = dict(dry=False, sync_o='sleep0', sync_x='acklo0', sync_g='sleep0', sync_y='acklo0', sync_q='sleep0', sync_f='acklo', fast=True,
                      clear='sc1', wflag='plain', bsleep=8, pad=0, probe=-1, probep=0, kvflag='nt', defer=True, cwo='2,2,2,2', cgud='4,2,2,0', csplit=True, prewarm=True, two='oqg', prio=4, at2=0, pk=0, mle=0, a8=0, a8n=4, dwo='gud', dx='', noq0=0, al=8, alo=0, clr='all', tq='', asl=0, pwo=True, t2=False, xbf=False, gbf=False, qbf=False, quick=False, gramw=3, fine='', finep=-1, finei='s_memtime', ldi='sc1', ldx='sc1', stx='sc1', sti='plain', wb=2, tqwo=24, tqat=4, tqlim=0, one='', few='z', lite=0, onew=4, vlin=0, early='xy', q0st='sc1', q0ld='sc1')
        self.o.update(opts or {})
        for k in ('dwo', 'dx'): self.o[k] = self.o[k].replace('-', '')
        if not self.o['defer']: self.o['dwo'] = self.o['dx'] = ''
        self.o['defer'] = bool(set(self.o['dwo']) & set('gu'))
    def A(self, s):
        for l in s.split('\n'):
            l = l.strip()
            if l: self.L.append(l)
    def lab(self, p):
        self.n += 1; return f"L_{p}_{self.n}"
    def exec_mask(self, m):
        self.A(f"s_and_b32 exec_lo, s{sFULL}, 0x{m & 0xffffffff:x}\ns_and_b32 exec_hi, s{sFULL}, 0x{m >> 32:x}")
    def exec_full(self): self.A(f"s_mov_b64 exec, s[{sFULL}:{sFULL+1}]")
    def barrier(self, tag='z'):
        self.fs(tag + 'a')
        l = self.lab("nb"); self.A(f"s_cbranch_execz {l}\ns_barrier\n{l}:")
        self.fs(tag + 'b')
    def role(self, bit):
        l = self.lab("role"); self.A(f"s_bitcmp1_b32 s{sROLE}, {bit}\ns_cbranch_scc0 {l}"); return l
    def pass0(self):
        l = self.lab("p0"); self.A(f"s_cmp_eq_u32 s{sP}, 0\ns_cbranch_scc0 {l}"); return l
    def end(self, l): self.A(f"{l}:")
    def mem(self, lines):
        l = self.lab("nm"); self.A(f"s_cbranch_execz {l}"); self.A(lines); self.A(f"{l}:")
    def capture(self, fn):
        save = self.L; self.L = []; fn(); out = self.L; self.L = save; return out
    def stores(self, lines, intra, tag='z'):
        self.fs(tag + 's')
        if intra and self.o['fast']:
            l1 = self.lab("st"); l2 = self.lab("st")
            self.A(f"s_cbranch_execz {l2}\ns_cmp_eq_u32 s{sFAST}, 0\ns_cbranch_scc1 {l1}")
            self.A(lines.format(f=' ' + self.o['sti'].replace('plain', '').replace('_', ' '))); self.A(f"{l2}:")
            self.tail.append(f"{l1}:\n" + lines.format(f=" sc1") + f"\ns_branch {l2}")
        else:
            self.mem(lines.format(f=' ' + self.o['stx'].replace('_', ' ')))
    def poll(self, loads0, regs, reduce, chk, idle=False, tag='z', shadow=None, wait0=0, pre=None, post=None, sent=None):
        A = self.A
        fl = ' ' + self.o['ldx' if tag in 'xyf' else 'ldi'].replace('_', ' ')
        def loads():
            for x in self.capture(loads0): A(x[:-4] + fl if x.endswith(' sc1') else x)
        lw = self.lab("pw"); lr = self.lab("retry"); ls = self.lab("slow"); lo = self.lab("ok"); l2 = self.lab("slow")
        self.fs(tag + '0')
        exact_pre = None
        if pre and tag in self.o['one']:
            l = self.lab("sn"); la = self.lab("sna"); lb = self.lab("snb")
            if shadow: shadow()
            shadow = None
            A(f"s_cmp_eq_u32 s{sV}, {self.o['onew']}\ns_cbranch_scc0 {l}\ns_movk_i32 s{sG}, 0x100\ns_mov_b64 exec, 0xffff\n{la}:")
            sent[0]()
            A(f"s_sub_u32 s{sG}, s{sG}, 1\ns_waitcnt vmcnt(0)\ns_cbranch_scc1 {lb}\nv_cmp_eq_u32 vcc, -1, v{sent[1]}\ns_cbranch_vccnz {la}\n{lb}:\ns_mov_b64 exec, -1\n{l}:\ns_barrier")
            self.fs(tag + '3')
            l0, r0, p0 = loads, reduce, pre
            def loads():
                ls_ = self.capture(l0)
                k = [i for i, x in enumerate(ls_) if not x.startswith('buffer_load')]
                k = k[0] if k else len(ls_)
                self.mix(ls_[k:]); p0[0](); self.mix(ls_[:k])
                A(f"s_waitcnt vmcnt({k})"); self.mix(p0[2])
            def reduce(): r0([])
            exact_pre = p0
            pre = None
        elif pre and tag not in self.o['two']:
            l0, r0, p0 = loads, reduce, pre
            loads = lambda: (p0[0](), l0()); reduce = lambda: r0(p0[2]); pre = None
        elif pre:
            la = self.lab("pa"); lb = self.lab("pb"); l = self.lab("nm")
            A(f"s_cbranch_execz {l}"); pre[0](); A(f"{l}:\ns_movk_i32 s{sG}, 0x100")
            if shadow: shadow()
            shadow = lambda: self.mix(pre[2])
            A(f"s_waitcnt vmcnt(0)\nv_cmp_u_f32 vcc, v{pre[1][0]}, v{pre[1][1]}\ns_cbranch_vccz {lb}\n{la}:")
            if int(self.o['asl']): A(f"s_sleep {self.o['asl']}")
            pre[0]()
            A(f"s_sub_u32 s{sG}, s{sG}, 1\ns_waitcnt vmcnt(0)\ns_cbranch_scc1 {lb}\nv_cmp_u_f32 vcc, v{pre[1][0]}, v{pre[1][1]}\ns_cbranch_vccnz {la}\n{lb}:")
            self.fs(tag + '3')
            r0 = reduce; reduce = lambda: r0([])
        l = self.lab("nm"); A(f"s_cbranch_execz {l}"); loads(); A(f"{l}:\ns_movk_i32 s{sG}, 0x100")
        self.lskip = self.lab("nw")
        lskip = self.lskip
        if shadow: shadow()
        if wait0:
            l = self.lab("w0"); A(f"s_waitcnt vmcnt({wait0})\ns_branch {l}\n{lw}:\ns_waitcnt vmcnt(0)\n{l}:")
        else: A(f"{lw}:\ns_waitcnt vmcnt(0)")
        A(f"{lskip}:")
        self.fs(tag + '1')
        reduce()
        A(f"v_cmp_u_f32 vcc, v{chk[0]}, v{chk[1]}")
        if post: post()
        A(f"s_cbranch_vccnz {lr}\n{lo}:")
        self.fs(tag + '2')
        if self.o['fine'].split(',')[-1] == tag + 'n': A(f"s_sub_u32 s86, 0x101, s{sG}")
        def stub():
            A(f"{lr}:")
            if idle:
                l = self.lab("idl"); A(f"s_cmp_lt_u32 s{sT}, 30\ns_cbranch_scc1 {l}\ns_sleep 4\n{l}:")
            A(f"s_sub_u32 s{sG}, s{sG}, 1\ns_cbranch_scc1 {ls}")
            if self.prof: A(f"s_sub_u32 s{sTO}, s{sTO}, 1")
            l = self.lab("nm"); A(f"s_cbranch_execz {l}"); loads(); A(f"s_branch {lw}\n{l}:")
        self.stubs.append("\n".join(self.capture(stub)))
        def slow():
            nonlocal pre
            A(f"{l2}:\ns_sub_u32 s{sTO}, s{sTO}, 1\ns_cbranch_scc1 L_end\n{ls}:")
            if exact_pre: pre = exact_pre
            if pre: pre[0]()
            (l0 if exact_pre else loads)(); A("s_waitcnt vmcnt(0)")
            r = list(regs)
            A(f"v_max_u32 v1, v{r[0]}, v{r[1]}"); r = r[2:]
            while r:
                if len(r) >= 2: A(f"v_max3_u32 v1, v1, v{r[0]}, v{r[1]}"); r = r[2:]
                else: A(f"v_max_u32 v1, v1, v{r[0]}"); r = []
            A(f"v_cmp_eq_u32 vcc, -1, v1\ns_cbranch_vccnz {l2}")
            if pre: self.mix(pre[2])
            reduce()
            if post: post()
            A(f"s_branch {lo}")
        self.tail.append("\n".join(self.capture(slow)))
    def stamp(self, i, both=True):
        if int(self.o['probe']) == i:
            l = self.lab("probe")
            self.A(f"s_cmp_eq_u32 s{sP}, {self.o['probep']}\ns_cbranch_scc0 {l}\ns_cbranch_execz {l}\ns_memrealtime s[96:97]\ns_waitcnt lgkmcnt(0)\n{l}:")
        if not self.prof: return
        self.A("s_memrealtime s[96:97]\ns_waitcnt lgkmcnt(0)")
        if both:
            self.A(f"s_cmp_eq_u32 s{sP}, 0\ns_cselect_b32 s{sST+i}, s96, s{sST+i}\ns_cselect_b32 s{sST+12+i}, s{sST+12+i}, s96")
        else:
            self.A(f"s_mov_b32 s{sST+i}, s96")
    def fs(self, name):
        names = self.o['fine'].split(',') if self.o['fine'] else []
        if name in names:
            i = names.index(name)
            if int(self.o['finep']) >= 0:
                l = self.lab("fs"); self.A(f"s_cmp_eq_u32 s{sP}, {self.o['finep']}\ns_cbranch_scc0 {l}\n{self.o['finei']} s[{64+2*i}:{65+2*i}]\n{l}:")
            else: self.A(f"{self.o['finei']} s[{64+2*i}:{65+2*i}]")
    def sync(self, kind, R=None):
        if kind.startswith('sent'):
            A = self.A; w = int(kind[4:5]); off = int(kind[5:] or 1008)
            l = self.lab("sn"); la = self.lab("sna"); lb = self.lab("snb")
            A(f"s_cmp_eq_u32 s{sV}, {w}\ns_cbranch_scc0 {l}")
            self.region(sC, R)
            A(f"""s_lshl_b32 s{sA}, s{sAI}, 10
            s_add_u32 s{sA}, s{sA}, s{sC}
            v_min_u32 v1, 23, v0
            v_mul_u32_u24 v1, 10240, v1
            s_movk_i32 s{sG}, 0x200
            s_mov_b32 exec_hi, 0
            {la}:
            buffer_load_dword v2, v1, {srd(SWS)}, s{sA} offen offset:{off} sc1
            s_sub_u32 s{sG}, s{sG}, 1
            s_waitcnt vmcnt(0)
            s_cbranch_scc1 {lb}
            v_cmp_eq_u32 vcc, -1, v2
            s_cbranch_vccnz {la}
            {lb}:
            s_mov_b32 exec_hi, -1
            {l}:""")
            self.barrier()
            return
        if kind == 'ack': self.A("s_waitcnt vmcnt(0)"); self.barrier()
        elif kind.startswith('acklo'):
            l = self.role(R_LT4); self.A("s_waitcnt vmcnt(0)"); self.end(l); self.barrier()
            if kind[5:] and int(kind[5:]): self.A(f"s_sleep {int(kind[5:])}")
        elif kind.startswith('sleep'):
            if int(kind[5:]): self.A(f"s_sleep {int(kind[5:])}")
        elif kind.startswith('acks'): self.A("s_waitcnt vmcnt(0)"); self.barrier(); self.A(f"s_sleep {int(kind[4:])}")
    def treduce(self, r0, r1, r2, r3):
        self.A(f"""v_permlane32_swap_b32 v{r0}, v{r2}
        v_permlane32_swap_b32 v{r1}, v{r3}
        v_add_f32 v{r0}, v{r0}, v{r2}
        v_add_f32 v{r1}, v{r1}, v{r3}
        v_permlane16_swap_b32 v{r0}, v{r1}
        v_add_f32 v{r0}, v{r0}, v{r1}""")
    def red16(self, regs):
        return [f"v_add_f32_dpp v{r}, v{r}, v{r} {perm} {DPP}" for perm in ("quad_perm:[1,0,3,2]", "quad_perm:[2,3,0,1]", "row_half_mirror", "row_mirror") for r in regs]
    def red_kb(self, ra, rb, ta, tb):
        def one(r, t):
            return [f"v_add_f32_dpp v{r}, v{r}, v{r} row_ror:4 {DPP}", f"v_add_f32_dpp v{r}, v{r}, v{r} row_ror:8 {DPP}"] + \
                   [f"v_mov_b32_dpp v{t+b}, v{r} quad_perm:[{b},{b},{b},{b}] {DPP}" for b in (0, 2, 1, 3)] + \
                   self.capture(lambda: self.treduce(t, t + 1, t + 2, t + 3))[:-1] + [f"v_add_f32 v{r}, v{t}, v{t+1}"]
        return self.capture(lambda: self.mix(one(ra, ta), one(rb, tb)))
    def lnstats(self, sq, sm, m, rs, t):
        return f"""v_mul_f32 v{sm}, s{sINVN}, v{sm}
        v_mul_f32 v{sq}, s{sINVN}, v{sq}
        v_fma_f32 v{t}, -v{sm}, v{sm}, v{sq}
        v_cvt_pk_bf16_f32 v{m}, 0, v{sm}
        v_max_f32 v{t}, 0, v{t}
        v_cvt_pk_bf16_f32 v{t}, 0, v{t}
        v_add_f32 v{t}, s{sEPS}, v{t}
        v_cvt_pk_bf16_f32 v{t}, 0, v{t}
        v_sqrt_f32 v{t}, v{t}
        v_cvt_pk_bf16_f32 v{t}, 0, v{t}
        v_rcp_f32 v{rs}, v{t}""".split('\n')
    def mix(self, *streams):
        streams = [list(s) for s in streams]
        while any(streams):
            for s in streams:
                if s: self.A(s.pop(0))
    def tr_addr(self, d, sbase):
        self.A(f"""v_lshrrev_b32 v1, 4, v0
        v_bfe_u32 v2, v0, 2, 2
        v_lshl_add_u32 v{d}, v1, 3, v2
        v_lshlrev_b32 v{d}, 7, v{d}
        v_and_b32 v2, 3, v0
        v_lshl_add_u32 v{d}, v2, 3, v{d}
        v_bfe_u32 v2, v0, 3, 2
        v_lshl_add_u32 v{d}, v2, 5, v{d}
        v_add_u32 v{d}, s{sbase}, v{d}""")
    def wfrags(self, dst, addr, steps, off=0):
        for s in range(steps):
            self.A(f"ds_read_b64_tr_b16 {vr(dst+4*s,2)}, v{addr} offset:{off+s*4096}\nds_read_b64_tr_b16 {vr(dst+4*s+2,2)}, v{addr} offset:{off+s*4096+512}")
    def dma_addr(self, d, rstride):
        self.A(f"""v_lshrrev_b32 v1, 3, v0
        v_mul_u32_u24 v{d}, {rstride}, v1
        v_bfe_u32 v1, v0, 4, 1
        v_bfe_u32 v2, v0, 1, 2
        v_xor_b32 v1, v1, v2
        v_lshl_add_u32 v{d}, v1, 5, v{d}
        v_and_b32 v1, 1, v0
        v_lshl_add_u32 v{d}, v1, 4, v{d}
        v_xor_b32 v{d+1}, 64, v{d}""")
    def dma(self, srdb, vaddr, n, rstride, lds0, ssrc, slds, lim=0):
        wf = self.o['wflag'].replace('plain', '')
        for i in range(n):
            if lim and i >= lim: self.A(f"s_waitcnt vmcnt({lim-1})")
            self.A(f"s_add_u32 m0, s{slds}, {lds0 + i*1024}\ns_add_u32 s{sA}, s{ssrc}, {i*8*rstride}\nbuffer_load_dwordx4 v{vaddr + (i&1)}, {srd(srdb)}, s{sA} offen {wf} lds")

    def mk(self, b, p, off, size):
        A = self.A
        if off is None: A(f"s_mov_b32 s{b}, s{p}\ns_mov_b32 s{b+1}, s{p+1}\ns_mov_b32 s{b+2}, {size}")
        else:
            A(f"s_add_u32 s{b}, s{p}, s{off}\ns_addc_u32 s{b+1}, s{p+1}, 0")
            if isinstance(size, int): A(f"s_mov_b32 s{b+2}, {size}")
            else: A(f"s_sub_u32 s{b+2}, {size[0]}, s{off}")
        A(f"s_mov_b32 s{b+3}, 0x20000")
    def prologue(self):
        A = self.A
        A("s_cmp_ge_u32 s2, 256\ns_cbranch_scc1 L_exit")
        if int(self.o['pad']) or self.prof or self.o['t2']: A("s_memrealtime s[96:97]")
        A(f"""s_load_dwordx16 s[64:79], s[0:1], 0
        s_load_dwordx8 s[80:87], s[0:1], 64
        s_load_dwordx2 s[88:89], s[0:1], 96
        v_lshrrev_b32 v1, 6, v0
        v_and_b32 v0, 63, v0
        v_readfirstlane_b32 s{sV}, v1
        v_mov_b32 v4, 0
        v_mov_b32 v5, 0
        v_mov_b32 v6, 0
        v_mov_b32 v7, 0
        v_lshlrev_b32 v1, 4, v0
        s_mov_b64 exec, 7
        ds_write_b128 v1, v[4:7] offset:{L_QL+384}
        s_mov_b64 exec, -1
        s_and_b32 s{sX}, s2, 7
        s_lshr_b32 s{sT}, s2, 3
        s_lshr_b32 s{sA}, s{sT}, 3
        s_lshl_b32 s{sB}, s{sX}, 2
        s_add_u32 s92, s{sA}, s{sB}            ; head
        s_bfe_u32 s{sA}, s{sT}, 0x20001        ; batch
        s_lshl_b32 s{sA}, s{sA}, 5
        s_add_u32 s{sA}, s{sA}, s92
        s_lshl_b32 s{sA}, s{sA}, 12
        s_and_b32 s{sB}, s{sT}, 1
        s_lshl_b32 s{sB}, s{sB}, 9
        s_add_u32 s{sA}, s{sA}, s{sB}
        s_lshl_b32 s{sB}, s{sV}, 6
        s_add_u32 s{sA}, s{sA}, s{sB}
        s_add_u32 s{sA}, s{sA}, 3072
        s_mul_i32 s90, s{sA}, 384
        s_mov_b32 s{sP}, 0
        s_mov_b32 s{sDRY}, 0
        s_mov_b64 s[{sFULL}:{sFULL+1}], -1
        s_mov_b32 s{sTO}, 0x100000
        s_mov_b32 s{sFAST}, 0
        s_mov_b32 s{sLOG2E}, 0x3fb8aa3b
        s_mov_b32 s{sSCALE}, 0x3d93cd3a
        s_mov_b32 s{sINVN}, 0x3acccccd
        s_mov_b32 s{sEPS}, 0x3727c5ac
        s_lshl_b32 s{sSIG}, s{sX}, 5
        s_add_u32 s{sSIG}, s{sSIG}, s{sT}
        s_mul_i32 s{sSLOT}, s{sX}, 30
        s_add_u32 s{sSLOT}, s{sSLOT}, s{sT}
        s_mul_i32 s{sRI}, s{sT}, 26
        s_lshr_b32 s{sRI}, s{sRI}, 8
        s_mul_i32 s{sA}, s{sRI}, 10
        s_sub_u32 s{sAI}, s{sT}, s{sA}
        s_min_u32 s{sRI}, s{sRI}, 2""")
        tab = 0
        for v in range(8):
            tab |= ((v < 4) << R_LT4 | (v >= 4) << R_GE4 | (4 <= v <= 6) << R_456 | (v == 7) << R_7 | (v == 6) << R_6 | (v == int(self.o['gramw'])) << R_GR) << (8 * v)
        A(f"""s_mov_b32 s{sA}, 0x{tab & 0xffffffff:x}
        s_mov_b32 s{sB}, 0x{tab >> 32:x}
        s_lshl_b32 s91, s{sV}, 3
        s_lshr_b64 s[{sA}:{sB}], s[{sA}:{sB}], s91
        s_and_b32 s{sROLE}, s{sA}, 0xff""")
        self.kv_addr()
        A("s_waitcnt lgkmcnt(0)\ns_barrier")
        A(f"s_add_u32 s{sA}, s88, {RE}\ns_addc_u32 s{sB}, s89, 0\ns_load_dword s{sTAG}, s[{sA}:{sB}], 0")
        self.mk(SK, 66, 90, 24576); self.mk(SVV, 68, 90, 24576)
    def other_srds(self):
        A = self.A; mk = self.mk
        mk(SWS, 88, None, WS_SIZE)
        A(f"""s_mul_i32 s{sA}, s{sAI}, {64*12288}
        s_mul_i32 s{sB}, s{sX}, 3
        s_add_u32 s91, s{sB}, s{sRI}            ; P = 3x + r
        s_lshl_b32 s{sB}, s91, 9
        s_add_u32 s{sA}, s{sA}, s{sB}""")
        mk(SWQ, 70, sA, (640 * 6144 * 2,))
        A(f"s_mul_i32 s{sA}, s91, {256*1280}\ns_lshl_b32 s90, s{sAI}, 7\ns_add_u32 s{sA}, s{sA}, s90")
        mk(SWO, 72, sA, (6144 * 640 * 2,))
        A(f"s_mul_i32 s{sA}, s91, {64*1280}\ns_add_u32 s{sA}, s{sA}, s90")
        mk(SWD, 82, sA, (1536 * 640 * 2,))
        A(f"s_mul_i32 s{sA}, s{sAI}, {64*3072}\ns_lshl_b32 s{sB}, s91, 7\ns_add_u32 s{sA}, s{sA}, s{sB}")
        mk(SWG, 78, sA, (640 * 1536 * 2,)); mk(SWU, 80, sA, (640 * 1536 * 2,))
        mk(SX0, 64, None, 5120); mk(SWR, 76, 90, (1280,)); mk(SOUT, 84, None, 5120)
        A(f"s_waitcnt lgkmcnt(0)\ns_add_u32 s{sTAG}, s{sTAG}, 1")
        if self.o['fine']:
            for i in range(24): A(f"s_mov_b32 s{sST+i}, 0")
        if self.prof:
            A(f"s_mov_b32 s{sST}, s96")
            for i in range(1, 24): A(f"s_mov_b32 s{sST+i}, 0")

    def kv_addr(self):
        self.A(f"""v_bfe_u32 v84, v0, 1, 3
        v_mul_u32_u24 v84, 384, v84
        v_lshrrev_b32 v3, 4, v0
        v_lshl_add_u32 v84, v3, 5, v84
        v_and_b32 v3, 1, v0
        v_lshl_add_u32 v84, v3, 4, v84
        v_lshrrev_b32 v85, 5, v0
        v_lshlrev_b32 v85, 3, v85
        v_bfe_u32 v3, v0, 3, 2
        v_add_u32 v85, v85, v3
        v_mul_u32_u24 v85, 384, v85
        v_and_b32 v3, 7, v0
        v_lshl_add_u32 v85, v3, 4, v85""")
        if int(self.o['vlin']) & 1: self.A("v_lshlrev_b32 v85, 4, v0")
        if int(self.o['vlin']) & 2: self.A("v_lshlrev_b32 v84, 4, v0")
    def k_loads(self):
        A = self.A; KF = self.o['kvflag'].replace('plain', '').replace('_', ' ')
        for g in range(8):
            A(f"s_mov_b32 s{sA}, {g*3072}")
            b = 12 * (g & ~1)
            for s, r in enumerate((b + 8 * (g & 1), b + 8 * (g & 1) + 4, b + 16 + 4 * (g & 1))):
                A(f"buffer_load_dwordx4 {ar(r)}, v84, {srd(SK)}, s{sA} offen offset:{s*(1024 if int(self.o['vlin']) & 2 else 128)} {KF}")
    def v_loads(self, sig=None):
        A = self.A; KF = self.o['kvflag'].replace('plain', '').replace('_', ' ')
        A(f"s_mul_i32 s{sB}, s{sV}, 6144")
        for S in range(5):
            if S == sig: self.lds_inc(16)
            for f in range(2 if S < 4 else 0):
                row = 32 * (S >> 1) + 16 * f + 4 * (S & 1)
                for s in range(3):
                    if int(self.o['vlin']) & 1:
                        o = ((S * 2 + f) * 3 + s) * 1024
                        if S == 0: A(f"s_add_u32 m0, s{sB}, {L_VP + (s*2+f)*1024}\ns_mov_b32 s{sA}, {o}\nbuffer_load_dwordx4 v85, {srd(SVV)}, s{sA} offen {KF} lds")
                        else: A(f"s_mov_b32 s{sA}, {o}\nbuffer_load_dwordx4 {vr(VBASE+(S-1)*24+s*8+4*f)}, v85, {srd(SVV)}, s{sA} offen {KF}")
                        continue
                    if S == 0:
                        A(f"s_add_u32 m0, s{sB}, {L_VP + (s*2+f)*1024}\ns_mov_b32 s{sA}, {row*384+s*128}\nbuffer_load_dwordx4 v85, {srd(SVV)}, s{sA} offen {KF} lds")
                    else:
                        if s == 0: A(f"s_mov_b32 s{sA}, {row*384}")
                        A(f"buffer_load_dwordx4 {vr(VBASE+(S-1)*24+s*8+4*f)}, v85, {srd(SVV)}, s{sA} offen offset:{s*128} {KF}")
    def xcol_addr(self, d):
        self.A(f"""v_lshrrev_b32 v1, 4, v0
        v_mul_u32_u24 v{d}, 1280, v1
        v_and_b32 v2, 7, v0
        v_lshl_add_u32 v{d}, v2, 1, v{d}
        s_lshl_b32 s{sA}, s{sAI}, 7
        s_lshl_b32 s{sB}, s{sV}, 4
        s_add_u32 s{sA}, s{sA}, s{sB}
        v_add_u32 v{d}, s{sA}, v{d}""")
    def xres_read(self):
        self.xcol_addr(3)
        self.A(f"v_mov_b32 v{vXR}, 0\nds_read_u16_d16_hi v{vXR}, v3 offset:{L_X0}")
    def lds_spin(self, off, val):
        lw = self.lab("sp"); lr = self.lab("spr")
        self.A(f"""v_mov_b32 v5, {L_FL}
        {lw}:
        ds_read_b32 v4, v5 offset:{off}
        s_waitcnt lgkmcnt(0)
        v_cmp_gt_u32 vcc, {val}, v4
        s_cbranch_vccnz {lr}""")
        self.tail.append(f"{lr}:\ns_sleep 2\ns_sub_u32 s{sTO}, s{sTO}, 1\ns_cbranch_scc1 L_end\ns_branch {lw}")
    def lds_inc(self, off):
        self.A(f"v_mov_b32 v4, {L_FL}\nv_mov_b32 v5, 1\ns_mov_b64 exec, 1\nds_add_u32 v4, v5 offset:{off}\ns_mov_b64 exec, -1")
    def dma_dist(self, cnts, mats):
        A = self.A
        cnts = [int(c) for c in cnts.split(',')]
        pre = [sum(cnts[:i]) for i in range(4)]
        A(f"""s_lshl_b32 s{sA}, s{sV}, 3
        s_mov_b32 s{sB}, 0x{sum(c << (8*i) for i, c in enumerate(cnts)):x}
        s_lshr_b32 s{sD}, s{sB}, s{sA}
        s_and_b32 s{sD}, s{sD}, 0xff
        s_mov_b32 s{sB}, 0x{sum(c << (8*i) for i, c in enumerate(pre)):x}
        s_lshr_b32 s{sF}, s{sB}, s{sA}
        s_and_b32 s{sF}, s{sF}, 0xff
        s_lshl_b32 s{sB}, s{sF}, 10""")
        le = self.lab("dd")
        for i in range(0, max(cnts), 2):
            A(f"s_cmp_gt_u32 s{sD}, {i}\ns_cbranch_scc0 {le}")
            for (sr, va, rs, l0) in mats:
                A(f"s_mul_i32 s{sC}, s{sF}, {8*rs}\ns_add_u32 s{sC}, s{sC}, {i*8*rs}")
                self.dma(sr, va, 2, rs, l0 + i * 1024, sC, sB)
        self.end(le)
    def w_dma_gud(self, u, which='gud'):
        A = self.A
        self.dma_addr(6, 3072); self.dma_addr(8, 1280)
        A(f"s_mul_i32 s{sC}, s{u}, {16*3072}\ns_lshl_b32 s{sB}, s{u}, 11")
        if 'g' in which: self.dma(SWG, 6, 2, 3072, L_WG, sC, sB)
        if 'u' in which: self.dma(SWU, 6, 2, 3072, L_WU, sC, sB)
        A(f"s_mul_i32 s{sC}, s{u}, {16*1280}")
        if 'd' in which: self.dma(SWD, 8, 2, 1280, L_WD, sC, sB)

    def attn_pre(self):
        A = self.A
        A(f"""v_lshrrev_b32 v1, 4, v0
        v_and_b32 v2, 3, v0
        v_lshlrev_b32 v2, 4, v2
        v_lshl_add_u32 v76, v1, 6, v2            ; base1
        v_and_b32 v3, 0x40, v76
        v_add3_u32 v77, v3, v2, 64
        v_add_u32 v77, 192, v77                  ; base2
        v_bfe_u32 v2, v0, 2, 2
        v_mov_b32 v3, 384""")
        for k in range(4): A(f"v_cmp_eq_u32 vcc, {k}, v2\nv_cndmask_b32 v{72+k}, v3, v76, vcc")
        A(f"""v_lshrrev_b32 v1, 5, v0
        v_cmp_eq_u32 vcc, v1, v2
        v_cndmask_b32 v76, v3, v77, vcc
        v_add_u32 v1, 2, v1
        v_cmp_eq_u32 vcc, v1, v2
        v_cndmask_b32 v77, v3, v77, vcc
        v_and_b32 v1, 1, v0
        v_mul_u32_u24 v78, 0xaaaa, v1
        v_add_u32 v78, 0x4444, v78
        v_and_b32 v1, 3, v0
        v_xor_b32 v2, 1, v1
        v_lshl_add_u32 v79, v2, 2, v1
        v_mul_u32_u24 v79, 0x1111, v79
        v_bfe_u32 v1, v0, 2, 1
        v_mul_u32_u24 v85, 0xffff, v1
        v_sub_u32 v84, 0xffff, v85
        s_mul_i32 s{sA}, s{sV}, 6144
        s_add_u32 s{sA}, s{sA}, {L_VP}
        v_lshl_add_u32 v86, v0, 4, s{sA}
        v_and_b32 v1, 7, v0
        v_lshlrev_b32 v1, 5, v1
        v_bfe_u32 v2, v0, 4, 1
        v_lshl_add_u32 v1, v2, 4, v1
        v_lshrrev_b32 v2, 5, v0
        v_mul_u32_u24 v2, 768, v2
        s_mul_i32 s{sA}, s{sV}, 1536
        v_add3_u32 v87, v1, v2, s{sA}""")
    def attn_zero(self, skip=()):
        for r in range(28, 48):
            if r not in skip: self.A(f"v_mov_b32 v{r}, 0")
    def consts(self):
        h = 2 if self.o['xbf'] else 1
        self.A(f"s_mov_b32 s{sLO}, 0x3f80\ns_mov_b32 s{sHI}, 0x3f800000")
        self.A(f"s_mov_b32 s{sK1}, {81920//h}\ns_mov_b32 s{sK2}, {163840//h}\ns_mov_b32 s{sKG}, {4*GSL}\ns_mov_b32 s{sKQ}, {4*QSL}")

    def xa_addr(self, d=30):
        self.A(f"""v_and_b32 v1, 15, v0
        v_lshrrev_b32 v2, 4, v0
        v_min_u32 v{d}, 5, v1
        v_mul_u32_u24 v{d}, {XS}, v{d}
        v_lshl_add_u32 v{d}, v2, 4, v{d}
        v_and_b32 v3, 3, v0
        v_bfe_u32 v1, v0, 2, 2
        v_add_u32 v{d+1}, 3, v3
        v_min_u32 v{d+1}, 5, v{d+1}
        v_cmp_eq_u32 vcc, 0, v3
        v_cndmask_b32 v{d+1}, v{d+1}, v1, vcc
        v_mul_u32_u24 v{d+1}, {XS}, v{d+1}
        v_lshl_add_u32 v{d+1}, v2, 4, v{d+1}""")
    def xfrags(self, d=30): self.A(f"ds_read_b128 v[4:7], v{d} offset:{L_XA}\nds_read_b128 v[8:11], v{d} offset:{L_XA+64}")
    def mm_with_gram(self, mf0, mf1, store, tag, late=None):
        A = self.A
        le = self.lab("gr")
        def variant(gram, first):
            A("s_waitcnt lgkmcnt(0)"); self.barrier(tag)
            if gram: A(f"ds_read_b128 v[60:63], v31 offset:{L_XA}")
            if first: late()
            self.xfrags()
            if gram:
                A(f"""ds_read_b128 v[64:67], v31 offset:{L_XA+64}
                s_waitcnt lgkmcnt(2)""")
                A(mf0)
                A("v_mfma_f32_16x16x32_bf16 v[68:71], v[60:63], v[4:7], 0\ns_waitcnt lgkmcnt(1)")
                A(mf1)
                A("s_waitcnt lgkmcnt(0)\nv_mfma_f32_16x16x32_bf16 v[68:71], v[64:67], v[8:11], v[68:71]")
                store(first)
                A(f"v_mov_b32_dpp v71, v70 row_newbcast:4 {DPP}")
                self.exec_mask(1 | 1 << 17 | 1 << 34 | 1 << 51)
                self.stores(f"buffer_store_dwordx4 v[68:71], v33, {srd(SWS)}, 0 offen{{f}}", True)
                self.exec_full()
            else:
                A("s_waitcnt lgkmcnt(1)"); A(mf0); A("s_waitcnt lgkmcnt(0)"); A(mf1)
                store(first)
        firsts = (True, False) if late else (False,)
        for fi, first in enumerate(firsts):
            if first: lp = self.pass0()
            l = self.role(R_GR); variant(True, first); A(f"s_branch {le}"); self.end(l)
            variant(False, first)
            if first: A(f"s_branch {le}"); self.end(lp)
        self.end(le)
    def q_lds_addr(self, d):
        self.A(f"""v_bfe_u32 v1, v0, 3, 1
        v_lshlrev_b32 v{d}, 6, v1
        v_bfe_u32 v1, v0, 1, 1
        v_lshl_add_u32 v{d}, v1, 5, v{d}
        v_lshrrev_b32 v1, 5, v0
        v_lshl_add_u32 v{d}, v1, 4, v{d}
        v_bfe_u32 v1, v0, 2, 1
        v_lshl_add_u32 v{d}, v1, 3, v{d}
        v_and_b32 v1, 1, v0
        v_lshl_add_u32 v{d}, v1, 2, v{d}
        v_bfe_u32 v1, v0, 4, 1
        v_lshl_add_u32 v{d}, v1, 1, v{d}""")

    def clr_begin(self):
        self.A("v_mov_b32 v64, -1\nv_mov_b32 v65, -1\nv_mov_b32 v66, -1\nv_mov_b32 v67, -1\nv_lshlrev_b32 v10, 4, v0")
    def clr(self, what, p):
        A = self.A
        st = lambda off=0: A(f"buffer_store_dwordx4 v[64:67], v10, {srd(SWS)}, s{sA} offen offset:{off} sc1")
        if what in 'XY':
            A(f"s_lshl_b32 s{sA}, s{sSLOT}, 10\ns_add_u32 s{sA}, s{sA}, {(RX if what == 'X' else RY)[p]}"); st()
        elif what == 'O':
            A(f"s_mul_i32 s{sA}, s{sSIG}, {OSL}\ns_add_u32 s{sA}, s{sA}, {RO[p]}\ns_mov_b32 exec_hi, 0xffffff"); st(); A("s_mov_b32 exec_hi, -1")
        elif what == 'G':
            A(f"s_mul_i32 s{sA}, s{sSIG}, {GSL}\ns_add_u32 s{sA}, s{sA}, {RG[p]}"); st(); st(1024)
            if p == 0: A("s_mov_b32 exec_hi, 0xff"); st(2048)
            else: A("s_mov_b64 exec, 0xff"); st(2560)
            A("s_mov_b64 exec, -1")
        elif what == 'C':
            A(f"s_mul_i32 s{sA}, s{sSIG}, {QSL}\ns_add_u32 s{sA}, s{sA}, {RQ[1] + 4224}"); st()
        elif what == 'Q':
            A(f"s_mul_i32 s{sA}, s{sSIG}, {QSL}\ns_add_u32 s{sA}, s{sA}, {RQ[1]}")
            for i in range(4): st(1024 * i)
            A(f"s_add_u32 s{sA}, s{sA}, 4096\ns_mov_b64 exec, 0xff"); st(); A("s_mov_b64 exec, -1")

    def startup(self):
        A = self.A
        A(f"s_bitcmp1_b32 s{sROLE}, {R_GE4}\ns_cbranch_scc1 L_start_hi")
        self.k_loads()
        self.other_srds()
        l = self.lab("now"); A(f"s_cmp_ge_u32 s{sT}, 30\ns_cbranch_scc1 {l}")
        self.dma_addr(4, 1280)
        if not int(self.o['noq0']) & 4: self.dma_dist(self.o['cwo'], [(SWO, 4, 1280, L_WO)])
        if True:
            mats = [m for k, m in (('g', (SWG, 6, 3072, L_WG)), ('u', (SWU, 6, 3072, L_WU)), ('d', (SWD, 4, 1280, L_WD))) if k not in self.o['tq'] + self.o['dwo'] + self.o['dx']]
            if mats:
                self.dma_addr(6, 3072)
                self.dma_dist(self.o['cgud'], mats)
        self.end(l)
        self.v_loads()
        self.stamp(1, both=False)
        if self.o['dry']:
            l = self.lab("nodry")
            A(f"""s_cmp_eq_u32 s{sV}, 2
            s_cbranch_scc0 {l}
            s_mov_b32 s{sDRY}, 1
            v_mov_b32 v15, 0
            v_mov_b32 v16, 0
            v_mov_b32 v28, 0
            v_mov_b32 v32, 0
            v_mov_b32 v33, 0
            v_mov_b32 v34, 0
            v_mov_b32 v36, 0
            v_mov_b32 v37, 0
            v_mov_b32 v38, 0
            s_mov_b32 s{sSAVE}, s{sT}
            s_mov_b32 s{sT}, 0
            s_mov_b32 s{sROLE}, 0xff
            s_mov_b64 s[{sFULL}:{sFULL+1}], 0
            s_mov_b64 exec, 0
            s_branch L_attn
            L_dry_ret:
            s_mov_b32 s{sDRY}, 0
            s_mov_b32 s{sP}, 0
            s_mov_b32 s{sT}, s{sSAVE}
            s_mov_b32 s{sROLE}, {(1 << R_LT4) | ((int(self.o['gramw']) == 2) << R_GR)}
            s_mov_b64 s[{sFULL}:{sFULL+1}], -1
            s_mov_b64 exec, -1
            {l}:""")
        l3 = self.lab("nog")
        A(f"s_cmp_eq_u32 s{sV}, 3\ns_cbranch_scc0 {l3}\ns_setprio 3")
        lp = self.lab("tq"); lr = self.lab("tqr")
        self.stamp(13, both=False)
        if self.prof: A(f"s_mov_b32 s{sST+5}, s{sST+13}")
        A(f"""s_bfe_u32 s{sB}, s{sT}, 0x20001          ; b
        s_lshl_b32 s{sC}, s{sB}, 10
        v_lshrrev_b32 v1, 4, v0
        v_lshlrev_b32 v78, 12, v1
        v_and_b32 v3, 15, v0
        v_lshl_add_u32 v78, v3, 4, v78
        v_add_u32 v78, s{sC}, v78
        s_mul_i32 s{sD}, s{sTAG}, 0x01010101
        v_mov_b32 v72, s{sD}
        v_lshrrev_b32 v73, 8, v72
        v_lshrrev_b32 v74, 16, v72
        v_lshrrev_b32 v75, 24, v72""")
        self.q_lds_addr(79)
        if int(self.o['noq0']) & 2: A("s_branch L_noq0")
        A(f"{lp}:\nv_mov_b32 v1, 0")
        for sg in range(3):
            A(f"""s_lshr_b32 s{sA}, s{sT}, 3
            s_mul_i32 s{sA}, s{sA}, 3
            s_add_u32 s{sA}, s{sA}, {sg}
            s_lshr_b32 s{sB}, s{sA}, 2
            s_mul_i32 s{sB}, s{sB}, 10
            s_lshl_b32 s{sC}, s{sX}, 5
            s_add_u32 s{sB}, s{sB}, s{sC}
            s_lshl_b32 s{sB}, s{sB}, 12
            s_and_b32 s{sA}, s{sA}, 3
            s_lshl_b32 s{sA}, s{sA}, 8
            s_add_u32 s{sB}, s{sB}, s{sA}
            s_add_u32 s{sB}, s{sB}, {RQ[0]}""")
            for i in range(3):
                if i == 2: A("s_mov_b32 exec_hi, 0")
                A(f"buffer_load_dwordx4 {vr(4 + 12*sg + 4*i)}, v78, {srd(SWS)}, s{sB} offen sc1")
                A(f"s_add_u32 s{sB}, s{sB}, {4*Q0SL}" if i < 2 else "s_mov_b64 exec, -1")
        A("s_waitcnt vmcnt(0)")
        for third in (0, 1):
            if third: A("s_mov_b32 exec_hi, 0")
            for sg in range(3):
                for i in ((2,) if third else (0, 1)):
                    r = 4 + 12 * sg + 4 * i
                    for h in (0, 2): A(f"v_xor_b32 v2, v{72+h}, v{r+h}\nv_xor_b32 v3, v{73+h}, v{r+h+1}\nv_or3_b32 v1, v1, v2, v3")
                    for k in range(4): A(f"v_and_b32 v{r+k}, 0xffffff00, v{r+k}")
        for k in range(3):
            for i in range(4): A(f"v_add_f32 v{4+12*k+i}, v{4+12*k+i}, v{12+12*k+i}")
        A(f"s_mov_b64 exec, -1\nv_and_b32 v1, 0xff, v1\nv_cmp_ne_u32 vcc, 0, v1\ns_cbranch_vccnz {lr}")
        self.tail.append(f"{lr}:\ns_sub_u32 s{sTO}, s{sTO}, 1\ns_cbranch_scc1 L_end\ns_branch {lp}")
        for k in range(3):
            r = 4 + 12 * k
            for i in range(4): A(f"v_add_f32 v{r+i}, v{r+i}, v{r+4+i}")
            self.treduce(r, r + 1, r + 2, r + 3)
            A(f"v_cvt_pk_bf16_f32 v{r}, 0, v{r}\nds_write_b16_d16_hi v79, v{r} offset:{L_QL + 128*k}")
        A("L_noq0:")
        self.lds_spin(4, 8)
        A(f"v_mov_b32 v4, 1\nds_write_b32 v5, v4\ns_setprio 0")
        self.end(l3)
        self.stamp(2, both=False)
        self.attn_pre(); self.attn_zero(); self.consts()
        self.lds_spin(0, 1)
        self.xres_read()
        A("s_branch L_attn")
        A("L_start_hi:\ns_setprio 3")
        self.other_srds()
        l = self.lab("x0"); l2 = self.lab("x0")
        A(f"""v_lshlrev_b32 v10, 4, v0
        s_and_b32 s{sB}, s{sV}, 3
        s_lshl_b32 s{sA}, s{sB}, 10
        s_add_u32 m0, s{sA}, {L_X0}
        s_cmp_eq_u32 s{sV}, 4
        buffer_load_dwordx4 v10, {srd(SX0)}, s{sA} offen lds
        s_cbranch_scc0 {l}
        s_mov_b32 m0, {L_X0 + 4096}
        s_movk_i32 s{sA}, 0x1000
        buffer_load_dwordx4 v10, {srd(SX0)}, s{sA} offen lds
        {l}:
        s_cmp_eq_u32 s{sV}, 5
        s_cbranch_scc0 {l2}
        s_mov_b32 m0, {L_XA + 5*XS}
        s_mov_b64 exec, 0xff
        buffer_load_dwordx4 v10, {srd(SWR)}, 0 offen lds
        s_mov_b64 exec, -1
        {l2}:""")
        lq = self.lab("noq"); lq2 = self.lab("noq")
        A(f"s_cmp_ge_u32 s{sT}, 30\ns_cbranch_scc1 {lq}")
        self.dma_addr(6, 12288)
        A(f"s_and_b32 s{sB}, s{sV}, 3\ns_lshl_b32 s{sC}, s{sB}, 7\ns_lshl_b32 s{sB}, s{sB}, 13")
        self.dma(SWQ, 6, 8, 12288, L_WQ, sC, sB)
        A(f"""v_lshrrev_b32 v1, 4, v0
        v_and_b32 v2, 15, v0
        v_mul_u32_u24 v3, 1280, v1
        v_lshl_add_u32 v10, v2, 4, v3
        v_lshl_add_u32 v11, v2, 3, v3
        s_lshl_b32 s{sA}, s{sAI}, 7
        v_add_u32 v11, s{sA}, v11
        v_mul_u32_u24 v12, {XS}, v1
        v_lshl_add_u32 v12, v2, 3, v12
        v_lshlrev_b32 v13, 3, v2
        s_waitcnt vmcnt(8)""")
        self.lds_inc(4); self.lds_spin(4, 4)
        for i in range(5): A(f"ds_read_b128 {vr(16+4*i)}, v10 offset:{L_X0 + 256*i}")
        A(f"ds_read_b64 v[36:37], v11 offset:{L_X0}")
        A("v_mov_b32 v40, 0x3f803f80\nv_mov_b32 v41, 0x3f803f80\nv_mov_b32 v42, 0\nv_mov_b32 v43, 0\ns_waitcnt lgkmcnt(0)")
        for i in range(20): A(f"v_dot2_f32_bf16 v42, v{16+i}, v{16+i}, v42\nv_dot2_f32_bf16 v43, v{16+i}, v40, v43")
        self.mix(self.red_kb(42, 43, 12, 16) if 'g' in self.o['few'] else self.red16([42, 43])); self.mix(self.lnstats(42, 43, 44, 45, 46))
        A("v_lshlrev_b32 v16, 16, v36\nv_and_b32 v17, 0xffff0000, v36\nv_lshlrev_b32 v18, 16, v37\nv_and_b32 v19, 0xffff0000, v37")
        for i in range(4): A(f"v_sub_f32 v{16+i}, v{16+i}, v44")
        for i in range(4): A(f"v_cvt_pk_bf16_f32 v{16+i}, 0, v{16+i}")
        for i in range(4): A(f"v_mul_f32 v{16+i}, v{16+i}, v45")
        A(f"""v_cvt_pk_bf16_f32 v16, v16, v17
        v_cvt_pk_bf16_f32 v17, v18, v19
        ds_write_b64 v12, v[16:17] offset:{L_XA}
        ds_write_b64 v13, v[40:41] offset:{L_XA + 4*XS}""")
        A(f"s_and_b32 s{sA}, s{sV}, 3\ns_lshl_b32 s{sA}, s{sA}, 13\ns_add_u32 s{sA}, s{sA}, {L_WQ}")
        self.tr_addr(52, sA)
        for t in range(1, 4): A(f"v_xor_b32 v{52+t}, {32*t}, v52")
        self.xa_addr(14)
        A(f"""s_and_b32 s{sA}, s{sV}, 3
        s_lshl_b32 s{sB}, s{sA}, 10
        v_and_b32 v2, 15, v0
        v_lshlrev_b32 v72, 8, v2
        v_and_b32 v1, 0x30, v0
        v_add3_u32 v72, v72, v1, s{sB}
        v_lshl_add_u32 v73, v0, 4, s{sB}
        v_lshlrev_b32 v74, 6, v1
        v_lshl_add_u32 v74, v2, 4, v74
        s_lshl_b32 s{sA}, s{sA}, 8
        v_add_u32 v75, s{sA}, v1
        s_lshl_b32 s{sE}, s{sSIG}, 12
        s_add_u32 s{sE}, s{sE}, s{sA}
        s_add_u32 s{sE}, s{sE}, {RQ[0]}
        s_mul_i32 s{sF}, s{sTAG}, 0x01010101
        v_mov_b32 v76, 0xff
        s_waitcnt vmcnt(0) lgkmcnt(0)""")
        self.stamp(12, both=False)
        for t in range(4): self.wfrags(16 + 8 * t, 52 + t, 2)
        self.xfrags(14)
        A("s_waitcnt lgkmcnt(0)")
        for s in range(2):
            for t in range(4):
                A(f"v_mfma_f32_16x16x32_bf16 {vr(48+4*t)}, {vr(16+8*t+4*s)}, {vr(4+4*s)}, {'0' if s == 0 else vr(48+4*t)}")
        for i in range(4):
            for t in range(4): A(f"v_bfi_b32 v{16+4*t+i}, v76, s{sF}, v{48+4*t+i}")
            A(f"s_lshr_b32 s{sF}, s{sF}, 8")
        self.exec_mask(0x000f000f000f000f)
        for t in range(4): A(f"ds_write_b128 v72, {vr(16+4*t)} offset:{L_OC + 64*t}")
        self.exec_mask(0x0010001000100010)
        for t in range(4): A(f"ds_write_b128 v75, {vr(48+4*t)} offset:{L_CS + 64*t}")
        self.exec_full()
        A(f"""s_waitcnt lgkmcnt(0)
        ds_read_b128 v[16:19], v73 offset:{L_OC}
        s_waitcnt lgkmcnt(0)""")
        if not int(self.o['noq0']) & 1: A(f"buffer_store_dwordx4 v[16:19], v74, {srd(SWS)}, s{sE} offen sc1")
        A(f"""s_branch {lq2}
        {lq}:
        s_waitcnt vmcnt(0)""")
        self.lds_inc(4); self.lds_spin(4, 4)
        A(f"{lq2}:")
        self.xres_read()
        A("s_waitcnt lgkmcnt(0)")
        self.lds_inc(4)
        self.stamp(14, both=False)
        sp = True
        late = self.o['clr'] == 'late'
        l = self.role(R_456)
        l2 = self.lab("nocl"); lb = self.lab("clb"); lc = self.lab("clc"); li = self.lab("cli")
        self.clr_begin()
        A(f"s_cmp_ge_u32 s{sT}, 30\ns_cbranch_scc1 {li}\ns_cmp_eq_u32 s{sV}, 5\ns_cbranch_scc1 {lb}\ns_cmp_eq_u32 s{sV}, 6\ns_cbranch_scc1 {lc}")
        self.clr('X', 0); self.clr('Y', 0)
        if not late: self.clr('X', 1); self.clr('Y', 1); self.clr('O', 1)
        self.clr('O', 0)
        A(f"s_branch {l2}\n{lb}:")
        self.clr('G', 0)
        if not late: self.clr('G', 1)
        A(f"s_branch {l2}\n{lc}:")
        self.clr('C', 0)
        if not late: self.clr('Q', 1)
        A(f"s_branch {l2}\n{li}:\ns_cmp_eq_u32 s{sV}, 4\ns_cbranch_scc0 {l2}")
        self.clr('O', 0); self.clr('O', 1)
        A(f"""{l2}:
        s_mov_b64 exec, -1
        s_getreg_b32 s{sXCC}, hwreg(HW_REG_XCC_ID, 0, 4)
        v_mov_b32 v6, s{sTAG}
        v_mov_b32 v7, s{sXCC}
        v_mov_b32 v8, s{sTAG}
        v_mov_b32 v9, s{sXCC}
        v_mov_b32 v4, {L_FL}
        v_mov_b32 v5, 1
        s_lshl_b32 s{sA}, s{sSIG}, 7
        s_add_u32 s{sA}, s{sA}, {RF}
        s_waitcnt vmcnt(0)""")
        l3 = self.lab("nofl")
        if sp: A(f"""s_mov_b64 exec, 1
        ds_add_rtn_u32 v11, v4, v5 offset:8
        s_waitcnt lgkmcnt(0)
        v_cmp_eq_u32 vcc, 2, v11
        s_cbranch_vccz {l3}""")
        A(f"""s_mov_b64 exec, 0xff
        buffer_store_dwordx4 v[6:9], v10, {srd(SWS)}, s{sA} offen sc1
        {l3}:
        s_mov_b64 exec, -1""")
        self.end(l)
        self.stamp(1, both=False)
        A("s_setprio 0")
        self.k_loads(); self.v_loads(int(self.o['tqat']) if self.o['tq'] or int(self.o['tqwo']) else None)
        self.attn_pre(); self.attn_zero(); self.consts()
        self.lds_spin(0, 1)

    def region(self, s, R):
        self.A(f"s_mul_i32 s{s}, s{sP}, {R[1]-R[0]}")
        if R[0]: self.A(f"s_add_u32 s{s}, s{s}, {R[0]}")

    def parked(self):
        for i in range(6): self.A(f"ds_read_b128 {vr(48+4*i)}, v86 offset:{1024*i}")
    def attention(self):
        A = self.A
        A("s_branch L_attn")
        if int(self.o['al']): A(f".p2align {self.o['al']}")
        for _ in range(int(self.o['alo'])): A("s_nop 0")
        A("L_attn_bar:\ns_waitcnt vmcnt(0) lgkmcnt(0)")
        self.barrier('Q')
        A("L_attn:")
        if int(self.o['prio']) == 2:
            l = self.role(R_GE4); A("s_setprio 1"); self.end(l)
        pk = int(self.o['pk']); mle = int(self.o['mle'])
        order = [(72, 4), (73, 8), (76, 20), (74, 12), (75, 16), (77, 24)]
        for a, d in order: A(f"ds_read_b128 {vr(d)}, v{a} offset:{L_QL}")
        self.region(sE, RO)
        A(f"""s_mul_i32 s{sB}, s{sSIG}, {OSL}
        s_add_u32 s{sE}, s{sE}, s{sB}
        s_and_b32 s{sC}, s{sV}, 3
        s_lshl_b32 s{sC}, s{sC}, 8
        s_add_u32 s{sD}, s{sC}, s{sE}
        s_mov_b32 s{sA}, 0x{ODD & 0xffffffff:x}
        s_mov_b32 s{sB}, 0x{ODD & 0xffffffff:x}
        s_waitcnt vmcnt({18 if pk else 24})""")
        if pk: self.parked()
        self.stamp(3)
        for n, (a, d) in enumerate(order):
            A(f"s_waitcnt lgkmcnt({(11 if pk else 5)-n})")
            for h in range(2):
                if a < 76: g = 4 * h + (a - 72); b = 12 * (g & ~1) + 8 * (g & 1)
                else: g = 4 * h + 2 * (a - 76); b = 12 * g + 16
                A(f"v_smfmac_f32_16x16x64_bf16 {vr(28+4*h)}, {vr(d)}, {ar(b,8)}, v78")
        self.fs('k1')
        if int(self.o['prio']) & 8: A(f"s_lshr_b32 s{sF}, s{sV}, 2\ns_cmp_eq_u32 s{sF}, 0\ns_cbranch_scc1 L_noprio\ns_setprio 1\nL_noprio:")
        fill = [f"v_lshrrev_b32 v1, 4, v0", f"v_and_b32 v2, 15, v0", f"v_mul_u32_u24 v12, 3072, v1", f"v_lshlrev_b32 v13, 3, v1",
                f"v_lshl_add_u32 v12, v2, 4, v12", f"v_lshlrev_b32 v15, 4, v2", f"v_add_u32 v12, s{sC}, v12", f"v_lshl_add_u32 v15, v1, 2, v15",
                f"v_mov_b32 v14, 0", f"v_add_u32 v15, s{sD}, v15", f"v_lshl_add_u32 v16, v0, 4, s{sE}", f"v_and_b32 v17, 7, v0",
                f"v_lshlrev_b32 v17, 2, v17", f"s_lshl_b32 s{sF}, s{sV}, 2", f"v_mov_b32 v35, s{sF}"]
        if pk:
            fill += ["v_bfe_u32 v18, v0, 3, 1", "v_and_b32 v19, 0x30, v0", "v_lshlrev_b32 v18, 3, v18", "v_lshl_add_u32 v18, v19, 2, v18"]
            for _ in range(6): A(fill.pop(0))
        else:
            A("s_waitcnt vmcnt(18)"); self.parked(); A(fill.pop(0))
        fin = lambda d: [f"v_add_f32 v{d}, v{d}, v{d+1}", f"v_add_f32 v{d+2}, v{d+2}, v{d+3}",
                         f"v_cndmask_b32 v{d}, v{d}, v{d+2}, s[{sA}:{sB}]",
                         f"v_add_f32_dpp v{d}, v{d}, v{d} quad_perm:[1,0,3,2] {DPP}",
                         f"v_cvt_pk_bf16_f32 v{d}, 0, v{d}", f"v_mul_f32 v{d}, s{sSCALE}, v{d}",
                         f"v_cvt_pk_bf16_f32 v{d}, 0, v{d}", f"v_mul_f32 v{d}, s{sLOG2E}, v{d}"]
        f0, f1 = fin(28), fin(32)
        for k in range(8):
            if k == 3: A(fill.pop(0))
            A(f0[k]); A(f1[k])
        A("v_max_f32 v29, v28, v32")
        for p in (f"quad_perm:[2,3,0,1] {DPP}", f"row_half_mirror {DPP}", f"row_mirror {DPP}", "row_bcast:15 row_mask:0xa bank_mask:0xf", "row_bcast:31 row_mask:0xc bank_mask:0xf"):
            A(fill.pop(0)); A(fill.pop(0)); A(f"v_max_f32_dpp v29, v29, v29 {p}")
        A(fill.pop(0)); A(f"v_readlane_b32 s{sM}, v29, 63")
        self.fs('k2')
        while fill: A(fill.pop(0))
        A(f"""v_subrev_f32 v28, s{sM}, v28
        v_subrev_f32 v32, s{sM}, v32
        v_exp_f32 v28, v28
        v_exp_f32 v32, v32
        v_cvt_pk_bf16_f32 v30, v28, v28
        v_cvt_pk_bf16_f32 v31, v32, v32
        v_mov_b32 v34, s{sM}""")
        lsum = ["v_add_f32 v33, v28, v32"] + \
               [f"v_add_f32_dpp v33, v33, v33 {p}" for p in (f"quad_perm:[2,3,0,1] {DPP}", f"row_half_mirror {DPP}", f"row_mirror {DPP}",
                                                            "row_bcast:15 row_mask:0xa bank_mask:0xf", "row_bcast:31 row_mask:0xc bank_mask:0xf")]
        bp = int(self.o['at2'])
        def abuild(S):
            b = 4 + 4 * (S & 1); P = 30 + (S >> 1); jj = S & 1
            if bp and S: return [f"v_and_b32 v{b+2*x+m}, v{20+2*(S-1)+x}, v{84+m}" for x in range(2) for m in range(2)]
            return [f"v_and_b32_dpp v{b+2*x+m}, v{P}, v{84+m} row_newbcast:{8*jj+4*x+2*c} row_mask:0xf bank_mask:{'0x3' if c == 0 else '0xc'}"
                    for c in range(2) for x in range(2) for m in range(2)]
        bperm = lambda S: [f"ds_bpermute_b32 v{20+2*(S-1)+x}, v18, v{30+(S>>1)} offset:{32*(S&1)+16*x}" for x in range(2)]
        if bp: self.mix(bperm(1))
        for x in abuild(0): A(x)
        if bp: self.mix(bperm(2) + bperm(3))
        if int(self.o['prio']) & 8: A("s_setprio 0")
        self.fs('k3')
        for S in range(4):
            nxt = abuild(S + 1) if S < 3 else []
            if S: A(f"s_waitcnt vmcnt({18 - 6*S})")
            if S == 3 and mle:
                assert not lsum
                self.exec_mask(1 << 63)
                A(f"ds_write_b32 v35, v34 offset:{L_ML}\nds_write_b32 v35, v33 offset:{L_ML+32}")
                self.exec_full()
            for s in range(3):
                vv = vr(48 + 8 * s, 8) if S == 0 else vr(VBASE + (S - 1) * 24 + 8 * s, 8)
                if S == 0 and s == 0: A(f"s_waitcnt lgkmcnt({6 if bp else 0})")
                A(f"v_smfmac_f32_16x16x64_bf16 {vr(36+4*s)}, {vr(4+4*(S&1))}, {vv}, v79")
                if bp:
                    if lsum and s != 1: A(lsum.pop(0))
                    if s == 1 and S < 2: A(f"s_waitcnt lgkmcnt({4 if S == 0 else 0})")
                    if s == 1: self.mix(nxt)
                else:
                    for _ in range(3):
                        if nxt: A(nxt.pop(0))
                    if lsum and s != 1: A(lsum.pop(0))
        self.fs('k4')
        if not mle:
            self.exec_mask(1 << 63)
            A(f"ds_write_b32 v35, v34 offset:{L_ML}\nds_write_b32 v35, v33 offset:{L_ML+32}")
        self.exec_mask(0xFF00FF0000FF00FF)
        for s in range(3): A(f"ds_write_b128 v87, {vr(36+4*s)} offset:{L_OC + 256*s}")
        self.exec_full()
        l = self.role(R_LT4)
        l2 = self.pass0(); l3 = self.lab("nm")
        A(f"s_cbranch_execz {l3}")
        self.first_pass_checks()
        if self.o['tq']:
            l4 = self.lab("ntq"); A(f"s_cmp_ge_u32 s{sT}, 30\ns_cbranch_scc1 {l4}")
            self.lds_spin(16, 4)
            self.w_dma_gud(sV, self.o['tq'])
            self.end(l4)
        if int(self.o['tqwo']):
            n = int(self.o['tqwo']) // 4
            l4 = self.lab("ntq"); A(f"s_cmp_ge_u32 s{sT}, 30\ns_cbranch_scc1 {l4}")
            self.dma_addr(6, 1280)
            A(f"s_mul_i32 s{sB}, s{sV}, {n}\ns_add_u32 s{sB}, s{sB}, {32 - 4*n}\ns_mul_i32 s{sC}, s{sB}, {8*1280}\ns_lshl_b32 s{sB}, s{sB}, 10")
            self.lds_spin(16, 4)
            self.dma(SWO, 6, n, 1280, L_WO, sC, sB, int(self.o['tqlim']))
            self.end(l4)
        self.end(l3); self.end(l2)
        if int(self.o['wb']) == 2:
            l2 = self.lab("wb"); A(f"s_cmp_eq_u32 s{sT}, 30\ns_cbranch_scc0 {l2}\ns_lshl_b32 s{sA}, s{sV}, 1\ns_or_b32 s{sA}, s{sA}, s{sP}\ns_cmp_eq_u32 s{sA}, 1\ns_cbranch_scc0 {l2}\nbuffer_wbl2 sc1\n{l2}:")
        self.end(l)
        A("s_waitcnt lgkmcnt(0)")
        if int(self.o['prio']) & 3: A("s_setprio 0")
        self.stamp(4)
        if self.o['t2']:
            l = self.pass0(); A("s_memrealtime s[66:67]"); self.end(l)
        self.barrier('A')
        l = self.role(R_GE4)
        if int(self.o['prio']) & 4: A("s_setprio 1")
        A(f"ds_read_b32 v47, v14 offset:{L_FL+12}")
        l2 = self.role(R_456)
        A(f"""ds_read_b128 v[20:23], v14 offset:{L_ML}
        ds_read_b128 v[24:27], v14 offset:{L_ML+16}
        ds_read_b64 v[18:19], v13 offset:{L_ML}
        ds_read_b128 v[48:51], v12 offset:{L_OC}
        ds_read_b128 v[52:55], v12 offset:{L_OC+768}
        ds_read_b128 v[56:59], v12 offset:{L_OC+1536}
        ds_read_b128 v[60:63], v12 offset:{L_OC+2304}
        s_waitcnt lgkmcnt(5)
        v_max3_f32 v20, v20, v21, v22
        v_max3_f32 v24, v24, v25, v26
        v_readfirstlane_b32 s{sFAST}, v47
        v_max3_f32 v20, v20, v23, v27
        v_max_f32 v20, v20, v24
        s_waitcnt lgkmcnt(2)
        v_sub_f32 v18, v18, v20
        v_sub_f32 v19, v19, v20
        v_add_f32 v48, v48, v52
        v_exp_f32 v18, v18
        v_add_f32 v49, v49, v53
        v_exp_f32 v19, v19
        v_add_f32 v50, v50, v54
        v_add_f32 v51, v51, v55
        s_waitcnt lgkmcnt(0)""")
        for i in range(4): A(f"v_add_f32 v{56+i}, v{56+i}, v{60+i}\nv_mul_f32 v{48+i}, v18, v{48+i}")
        for i in (0, 2, 1, 3): A(f"v_fmac_f32 v{48+i}, v19, v{56+i}")
        self.treduce(48, 49, 50, 51)
        self.stores(f"buffer_store_dword v48, v15, {srd(SWS)}, 0 offen{{f}}", True, 'A')
        self.end(l2)
        l2 = self.role(R_7)
        A(f"""ds_read_b32 v4, v17 offset:{L_ML}
        ds_read_b32 v5, v17 offset:{L_ML+32}
        s_waitcnt lgkmcnt(1)
        v_max_f32_dpp v6, v4, v4 quad_perm:[1,0,3,2] {DPP}
        v_readfirstlane_b32 s{sFAST}, v47
        v_max_f32_dpp v6, v6, v6 quad_perm:[2,3,0,1] {DPP}
        v_max_f32_dpp v6, v6, v6 row_half_mirror {DPP}
        v_sub_f32 v4, v4, v6
        v_exp_f32 v4, v4
        s_waitcnt lgkmcnt(0)
        v_mul_f32 v7, v4, v5""")
        self.mix(self.red16([7])[:3])
        self.exec_mask(0xff)
        self.stores(f"buffer_store_dwordx4 v[6:9], v16, {srd(SWS)}, 0 offen offset:768{{f}}", True)
        self.exec_full()
        l3 = self.pass0(); l4 = self.lab("ncs")
        A(f"""s_cmp_ge_u32 s{sT}, 30
        s_cbranch_scc1 {l4}
        v_lshlrev_b32 v1, 4, v0
        ds_read_b128 v[12:15], v1 offset:{L_CS}
        s_mul_i32 s{sA}, s{sSIG}, {QSL}
        s_add_u32 s{sA}, s{sA}, {RQ[1] + 4224}
        s_waitcnt lgkmcnt(0)""")
        self.stores(f"buffer_store_dwordx4 v[12:15], v1, {srd(SWS)}, s{sA} offen{{f}}", True)
        self.end(l4); self.end(l3); self.end(l2)
        if int(self.o['prio']) & 4: A("s_setprio 0")
        self.end(l)
        A(f"s_cmp_ge_u32 s{sT}, 30\ns_cbranch_scc1 L_idle")

    def first_pass_checks(self):
        A = self.A
        l = self.lab("nochk"); lp = self.lab("chk"); lr = self.lab("chkr")
        A(f"""s_cmp_eq_u32 s{sV}, 0
        s_cbranch_scc0 {l}
        v_mov_b32 v1, {L_FL}
        v_mov_b32 v2, s{sTAG}
        v_lshlrev_b32 v3, 9, v0
        s_getreg_b32 s{sXCC}, hwreg(HW_REG_XCC_ID, 0, 4)
        s_mov_b32 s{sA}, {RF}
        {lp}:
        buffer_load_dwordx2 v[4:5], v3, {srd(SWS)}, s{sA} offen sc1
        buffer_load_dwordx2 v[6:7], v3, {srd(SWS)}, s{sA} offen offset:128 sc1
        buffer_load_dwordx2 v[8:9], v3, {srd(SWS)}, s{sA} offen offset:256 sc1
        buffer_load_dwordx2 v[10:11], v3, {srd(SWS)}, s{sA} offen offset:384 sc1
        s_waitcnt vmcnt(0)
        v_xor_b32 v4, v4, v2
        v_xor_b32 v6, v6, v2
        v_xor_b32 v8, v8, v2
        v_xor_b32 v10, v10, v2
        v_or3_b32 v4, v4, v6, v8
        v_or_b32 v4, v4, v10
        v_cmp_ne_u32 vcc, 0, v4
        s_cbranch_vccnz {lr}
        v_xor_b32 v5, s{sXCC}, v5
        v_xor_b32 v7, s{sXCC}, v7
        v_xor_b32 v9, s{sXCC}, v9
        v_xor_b32 v11, s{sXCC}, v11
        v_or3_b32 v5, v5, v7, v9
        v_or_b32 v5, v5, v11
        v_cmp_eq_u32 vcc, 0, v5
        s_lshl_b32 s{sB}, s{sX}, 3
        s_lshr_b64 s[{sA}:{sB}], vcc, s{sB}
        s_and_b32 s{sA}, s{sA}, 0xff
        s_cmp_eq_u32 s{sA}, 0xff
        s_cselect_b32 s{sA}, 1, 0
        v_mov_b32 v4, s{sA}
        ds_write_b32 v1, v4 offset:12
        s_cmp_eq_u32 s2, 0
        s_cbranch_scc0 {l}
        v_mov_b32 v3, 0
        s_mov_b32 s{sA}, {RE}
        s_mov_b64 exec, 1
        buffer_store_dword v2, v3, {srd(SWS)}, s{sA} offen sc1
        s_mov_b64 exec, -1
        {l}:""")
        self.tail.append(f"{lr}:\ns_sleep {self.o['bsleep']}\ns_sub_u32 s{sTO}, s{sTO}, 1\ns_cbranch_scc1 L_end\ns_branch {lp}")
        if self.o['prewarm'] and self.o['pwo']:
            l = self.lab("npw")
            A(f"""s_cmp_eq_u32 s{sV}, 1
            s_cbranch_scc0 {l}
            v_lshlrev_b32 v1, 4, v0
            s_mul_i32 s{sA}, s{sSIG}, {QSL}
            s_add_u32 s{sA}, s{sA}, {RQ[1] + 4224}
            buffer_load_dwordx4 v[60:63], v1, {srd(SWS)}, s{sA} offen sc1
            s_mov_b32 exec_hi, 0xffffff
            buffer_load_dwordx4 v[60:63], v1, {srd(SWS)}, s{sE} offen sc1
            s_mov_b64 exec, -1
            {l}:""")

    def afrag_addr(self, d, stride):
        self.A(f"v_and_b32 v1, 3, v0\nv_lshrrev_b32 v2, 4, v0\nv_mul_u32_u24 v1, {stride}, v1\nv_lshl_add_u32 v{d}, v2, 4, v1")
    def pub_addr(self, d, R):
        self.region(sC, R)
        self.A(f"s_lshl_b32 s{sA}, s{sSLOT}, 10\ns_lshl_b32 s{sB}, s{sV}, 8\ns_add_u32 s{sA}, s{sA}, s{sB}\ns_add_u32 s{sA}, s{sA}, s{sC}\nv_lshl_add_u32 v{d}, v0, 4, s{sA}") if not self.o['xbf'] else \
        self.A(f"s_lshl_b32 s{sA}, s{sSLOT}, 9\ns_lshl_b32 s{sB}, s{sV}, 7\ns_add_u32 s{sA}, s{sA}, s{sB}\ns_add_u32 s{sA}, s{sA}, s{sC}\nv_lshl_add_u32 v{d}, v0, 3, s{sA}")
    def pub_store(self, addr, tag):
        if self.o['xbf']:
            self.A("v_cvt_pk_bf16_f32 v68, v68, v69\nv_cvt_pk_bf16_f32 v69, v70, v71")
            self.exec_mask(0xffff)
            self.stores(f"buffer_store_dwordx2 v[68:69], v{addr}, {srd(SWS)}, 0 offen{{f}}", False, tag)
        else:
            self.exec_mask(0xffff)
            self.stores(f"buffer_store_dwordx4 v[68:71], v{addr}, {srd(SWS)}, 0 offen{{f}}", False, tag)
        self.exec_full()
    def unpack_sum(self, dst, srcs):
        out = []
        for k, r in enumerate(srcs):
            for i in range(4):
                out.append(f"v_dot2_f32_bf16 v{dst+i}, v{r + (i >> 1)}, s{sLO if i % 2 == 0 else sHI}, {'0' if k == 0 else 'v%d' % (dst+i)}")
        return out

    def wo_pre1(self):
        A = self.A
        self.region(sD, RO)
        A(f"""s_lshl_b32 s{sA}, s{sRI}, 2
        s_add_u32 s{sA}, s{sA}, s{sV}
        s_mul_i32 s{sB}, s{sA}, 86
        s_lshr_b32 s{sB}, s{sB}, 8
        s_mul_i32 s{sC}, s{sB}, 3
        s_sub_u32 s{sC}, s{sA}, s{sC}
        s_lshl_b32 s{sB}, s{sB}, 3
        s_lshl_b32 s{sA}, s{sX}, 5
        s_add_u32 s{sB}, s{sB}, s{sA}
        s_mul_i32 s{sB}, s{sB}, {OSL}
        s_add_u32 s{sB}, s{sB}, s{sD}
        v_lshrrev_b32 v1, 4, v0
        v_and_b32 v2, 15, v0
        v_mul_u32_u24 v72, {2*OSL}, v1
        v_add_u32 v72, s{sB}, v72
        s_lshl_b32 s{sC}, s{sC}, 8
        v_lshl_add_u32 v73, v2, 4, v72
        v_add_u32 v73, s{sC}, v73""")
        if 'o' in self.o['few']: A(f"v_mov_b32 v3, {OOB}\nv_cmp_eq_u32 vcc, 0, v2\nv_cndmask_b32 v72, v3, v72, vcc")
        A(f"""s_lshl_b32 s{sA}, s{sV}, 7
        v_mul_u32_u24 v74, {OS}, v1
        v_lshl_add_u32 v74, v2, 3, v74
        v_add_u32 v74, s{sA}, v74""")
    def wo_pre2(self):
        A = self.A
        A(f"v_mov_b32 v1, 0\nds_read_b32 v47, v1 offset:{L_FL+12}\ns_mov_b32 s{sA}, {L_WO}")
        self.tr_addr(75, sA)
        A(f"s_lshl_b32 s{sA}, s{sV}, 5\nv_xor_b32 v75, s{sA}, v75")
        k = 8 - int(self.o['tqwo']) // 4
        self.wfrags(4, 75, k)
        if k < 8:
            A("v_mov_b32 v77, v75")
            l = self.lab("wl"); A(f"s_cmp_eq_u32 s{sP}, 0\ns_cbranch_scc1 {l}"); self.wfrags(4 + 4 * k, 75, 8 - k, k * 4096); self.end(l)
        self.afrag_addr(75, OS); self.pub_addr(76, RX)
        A(f"s_waitcnt lgkmcnt({min(15, 2*k)})\nv_readfirstlane_b32 s{sFAST}, v47")

    def wo_stage(self):
        A = self.A
        l = self.role(R_LT4)
        self.wo_pre1()
        self.sync(self.o['sync_o'])
        def loadsA(): A(f"""buffer_load_dwordx2 v[52:53], v72, {srd(SWS)}, 0 offen offset:768 sc1
        buffer_load_dwordx2 v[54:55], v72, {srd(SWS)}, 0 offen offset:{768+OSL} sc1""")
        def loads(): A(f"""buffer_load_dwordx4 v[56:59], v73, {srd(SWS)}, 0 offen sc1
        buffer_load_dwordx4 v[60:63], v73, {srd(SWS)}, 0 offen offset:{OSL} sc1""")
        shadow = self.wo_pre2
        chain = """v_sub_f32 v66, v54, v52
            v_exp_f32 v67, v66
            v_exp_f32 v66, -v66
            v_fma_f32 v67, v67, v55, v53
            v_fma_f32 v66, v66, v53, v55
            v_rcp_f32 v67, v67
            v_rcp_f32 v66, v66""".split('\n')
        if 'o' in self.o['few']: chain += [f"v_mov_b32_dpp v67, v67 row_newbcast:0 {DPP}", f"v_mov_b32_dpp v66, v66 row_newbcast:0 {DPP}"]
        def red(ch):
            self.mix(ch)
            for i in range(4): A(f"v_mul_f32 v{56+i}, v67, v{56+i}")
            for i in range(4): A(f"v_fmac_f32 v{56+i}, v66, v{60+i}")
            A("v_add_f32 v64, v56, v57\nv_add_f32 v65, v58, v59\nv_cvt_pk_bf16_f32 v56, v56, v57\nv_cvt_pk_bf16_f32 v57, v58, v59")
        self.poll(loads, range(52, 64), red, (64, 65), tag='o', shadow=shadow, pre=(loadsA, (53, 55), chain), post=lambda: A(f"ds_write_b64 v74, v[56:57] offset:{L_OA}"))
        lgo = self.lab("wogo")
        k = 8 - int(self.o['tqwo']) // 4
        def variant(first):
            A("s_waitcnt lgkmcnt(0)")
            self.stamp(5)
            self.barrier('O')
            seq = []
            for s in range(8):
                if first and s >= k: self.wfrags(4 + 4 * s, 77, 1, s * 4096); seq += [s, s]
                A(f"ds_read_b128 {vr(36+4*s)}, v75 offset:{L_OA + 64*s}"); seq.append(s)
            for s in range(8):
                A(f"s_waitcnt lgkmcnt({min(15, sum(x > s for x in seq))})\nv_mfma_f32_16x16x32_bf16 v[68:71], {vr(36+4*s)}, {vr(4+4*s)}, {'0' if s == 0 else 'v[68:71]'}")
            self.pub_store(76, 'O')
            A(f"s_branch {lgo}")
        if k < 8:
            lp = self.pass0(); variant(True); self.end(lp)
        variant(False)
        self.end(l)
        l = self.pass0(); self.cq_gather(False); self.end(l)
        self.barrier('O')
        l = lgo; l2 = self.pass0()
        nlate = 6 if self.o['defer'] else 0
        def late_clr():
            l3 = self.lab("nm"); l5, l6, l7_ = self.lab("lc"), self.lab("lc"), self.lab("lc")
            A(f"s_cbranch_execz {l3}"); self.clr_begin()
            A(f"s_cmp_eq_u32 s{sV}, 5\ns_cbranch_scc1 {l5}\ns_cmp_eq_u32 s{sV}, 6\ns_cbranch_scc1 {l6}\ns_cmp_eq_u32 s{sV}, 7\ns_cbranch_scc1 {l3}")
            self.clr('X', 1); self.clr('Y', 1); self.clr('O', 1)
            A(f"s_branch {l3}\n{l5}:"); self.clr('G', 1)
            A(f"s_branch {l3}\n{l6}:"); self.clr('Q', 1)
            self.end(l3)
        def late():
            if self.o['dwo']:
                l3 = self.lab("nm"); A(f"s_cbranch_execz {l3}\ns_and_b32 s{sD}, s{sV}, 3"); self.w_dma_gud(sD, self.o['dwo']); self.end(l3)
        l7 = self.role(R_7)
        if self.o['prewarm']:
            self.mem(f"""v_lshlrev_b32 v1, 4, v0
            s_mul_i32 s{sA}, s{sSIG}, {GSL}
            s_add_u32 s{sA}, s{sA}, {RG[0]}
            buffer_load_dwordx4 v[60:63], v1, {srd(SWS)}, s{sA} offen sc1
            buffer_load_dwordx4 v[60:63], v1, {srd(SWS)}, s{sA} offen offset:1024 sc1
            s_mov_b32 exec_hi, 0xff
            buffer_load_dwordx4 v[60:63], v1, {srd(SWS)}, s{sA} offen offset:2048 sc1
            s_mov_b32 exec_hi, -1""")
        self.end(l7)
        late()
        if self.o['clr'] == 'late': late_clr()
        self.end(l2); self.end(l)
        self.stamp(6)

    def x_gather_pre(self, R):
        self.region(sC, R)
        h = 1 if self.o['xbf'] else 0
        self.A(f"""s_lshl_b32 s{sA}, s{sAI}, {10-h}
        s_lshl_b32 s{sB}, s{sV}, {7-h}
        s_add_u32 s{sA}, s{sA}, s{sB}
        s_add_u32 s{sA}, s{sA}, s{sC}
        v_lshrrev_b32 v1, 3, v0
        v_and_b32 v2, 7, v0
        v_mul_u32_u24 v28, {10240 >> h}, v1
        v_lshl_add_u32 v28, v2, {4-h}, v28
        v_add_u32 v28, s{sA}, v28
        v_lshrrev_b32 v1, 4, v0
        v_mul_u32_u24 v29, {XS}, v1
        v_lshl_add_u32 v29, v2, 1, v29
        s_lshl_b32 s{sA}, s{sV}, 4
        v_add_u32 v29, s{sA}, v29""")
    def x_gather(self, tag, shadow):
        A = self.A
        bf = self.o['xbf']
        def loads():
            for i, r in enumerate(("0", f"s{sK1}", f"s{sK2}")):
                A(f"buffer_load_dwordx2 {vr(52+2*i,2)}, v28, {srd(SWS)}, {r} offen sc1" if bf else f"buffer_load_dwordx4 {vr(48+4*i)}, v28, {srd(SWS)}, {r} offen sc1")
        def red():
            if bf: self.mix(self.unpack_sum(48, [52, 54, 56]))
            else:
                for i in range(4): A(f"v_add_f32 v{48+i}, v{48+i}, v{52+i}")
                for i in (0, 2, 1, 3): A(f"v_add_f32 v{48+i}, v{48+i}, v{56+i}")
            self.treduce(48, 49, 50, 51)
            A(f"v_add_f32_dpp v48, v48, v48 row_ror:8 {DPP}\nv_cvt_pk_bf16_f32 v49, 0, v48")
        self.poll(loads, range(52, 58) if bf else range(48, 60), red, (48, 48), tag=tag, shadow=shadow)

    def gu_stage(self):
        A = self.A
        A(f"s_lshr_b32 s{sA}, s{sV}, 2\ns_lshl_b32 s{sA}, s{sA}, 13\ns_add_u32 s{sA}, s{sA}, {L_WG}")
        self.tr_addr(35, sA)
        A(f"s_and_b32 s{sA}, s{sV}, 3\ns_lshl_b32 s{sA}, s{sA}, 5\nv_xor_b32 v35, s{sA}, v35")
        if self.o['defer']:
            l = self.lab("gw"); A(f"s_cmp_eq_u32 s{sP}, 0\ns_cbranch_scc1 {l}"); self.wfrags(12, 35, 2); self.end(l)
        else: self.wfrags(12, 35, 2)
        self.x_gather_pre(RX)
        self.xa_addr()
        self.region(sC, RG)
        A(f"""s_mul_i32 s{sA}, s{sSIG}, {GSL}
        s_add_u32 s{sA}, s{sA}, s{sC}
        s_lshl_b32 s{sB}, s{sV}, {7 if self.o['gbf'] else 8}
        s_add_u32 s{sB}, s{sB}, s{sA}
        v_lshl_add_u32 v32, v0, {3 if self.o['gbf'] else 4}, s{sB}
        s_lshl_b32 s{sB}, s{sV}, 6
        s_add_u32 s{sB}, s{sB}, s{sA}
        v_lshl_add_u32 v34, v0, 2, s{sB}
        v_lshrrev_b32 v1, 4, v0
        s_add_u32 s{sA}, s{sA}, 2560
        v_lshl_add_u32 v33, v1, 4, s{sA}""")
        self.sync(self.o['sync_x'], RX)
        def xsh():
            if self.o['dx']:
                l = self.pass0(); l3 = self.lab("nm"); le = self.lab("dxe")
                A(f"s_cbranch_execz {l3}")
                self.dma_addr(20, 1280)
                wf = self.o['wflag'].replace('plain', '')
                A(f"""s_and_b32 s{sA}, s{sV}, 1
                s_lshl_b32 s{sA}, s{sA}, 6
                v_xor_b32 v20, s{sA}, v20
                s_lshl_b32 s{sB}, s{sV}, 10
                s_add_u32 m0, s{sB}, {L_WD}
                s_mul_i32 s{sA}, s{sV}, {8*1280}
                buffer_load_dwordx4 v20, {srd(SWD)}, s{sA} offen {wf} lds""")
                self.end(l3)
                self.down_pre()
                A(f"s_waitcnt vmcnt(1)\ns_cbranch_execnz {self.lskip}")
                self.end(l)
            self.down_pre()
        if 'x' in self.o['early']: self.down_pre(); self.x_gather('x', None)
        else: self.x_gather('x', xsh)
        A(f"""v_add_f32 v{vXR}, v{vXR}, v49
        v_cvt_pk_bf16_f32 v{vXR}, 0, v{vXR}
        ds_write_b16_d16_hi v29, v{vXR} offset:{L_XA}""")
        self.stamp(7)
        def store(first):
            self.exec_mask(0xffff)
            self.stores(f"buffer_store_dwordx4 v[48:51], v32, {srd(SWS)}, 0 offen{{f}}", True, 'X')
            if first:
                self.exec_mask(0xffff0000)
                self.stores(f"buffer_store_dword v48, v34, {srd(SWS)}, 0 offen offset:{2048-64}{{f}}", True)
            self.exec_full()
        self.mm_with_gram("v_mfma_f32_16x16x32_bf16 v[48:51], v[4:7], v[12:15], 0", "v_mfma_f32_16x16x32_bf16 v[48:51], v[8:11], v[16:19], v[48:51]", store, 'X',
                          late=(lambda: self.wfrags(12, 35, 2)) if self.o['defer'] else (lambda: None))
        self.stamp(8)

    def down_wpre(self):
        l = self.role(R_LT4)
        if self.o['dx']: self.A(f"s_cmp_eq_u32 s{sP}, 0\ns_cbranch_scc1 {l}")
        self.wfrags(20, 47, 2); self.end(l)
    def down_pre(self):
        A = self.A
        A(f"s_mov_b32 s{sA}, {L_WD}")
        self.tr_addr(47, sA)
        A(f"s_lshl_b32 s{sA}, s{sV}, 5\nv_xor_b32 v47, s{sA}, v47")
        self.afrag_addr(78, HS); self.pub_addr(79, RY)
        self.region(sD, RG)
        A(f"""s_mul_i32 s{sC}, s{sRI}, 10
        s_lshl_b32 s{sA}, s{sX}, 5
        s_add_u32 s{sC}, s{sC}, s{sA}
        s_mul_i32 s{sC}, s{sC}, {GSL}
        s_add_u32 s{sC}, s{sC}, s{sD}
        v_lshrrev_b32 v1, 4, v0
        v_mul_u32_u24 v3, {GSL}, v1
        v_add_u32 v3, s{sC}, v3
        v_bfe_u32 v2, v0, 3, 1
        v_lshlrev_b32 v2, 6, v2
        v_and_or_b32 v2, v0, 7, v2
        s_lshl_b32 s{sA}, s{sV}, 3
        v_add_u32 v2, s{sA}, v2
        v_lshl_add_u32 v72, v2, {3 if self.o['gbf'] else 4}, v3
        v_lshl_add_u32 v74, v2, 2, v3
        v_add_u32 v73, {8*GSL}, v72
        v_add_u32 v75, {8*GSL}, v74
        v_mov_b32 v3, {OOB}
        v_cmp_gt_u32 vcc, 32, v0
        v_cndmask_b32 v73, v3, v73, vcc
        v_cndmask_b32 v75, v3, v75, vcc
""")
        if 'g' in self.o['few']: A(f"""v_lshrrev_b32 v2, 2, v0
        v_mul_u32_u24 v76, {GSL}, v2
        v_and_b32 v2, 3, v0
        v_lshl_add_u32 v76, v2, 4, v76
        v_add_u32 v76, s{sC}, v76
        v_cmp_gt_u32 vcc, 40, v0
        v_cndmask_b32 v76, v3, v76, vcc""")
        else: A(f"""v_and_b32 v2, 15, v0
        v_mul_u32_u24 v76, {GSL}, v2
        v_lshl_add_u32 v76, v1, 4, v76
        v_add_u32 v76, s{sC}, v76
        v_cmp_gt_u32 vcc, 10, v2
        v_cndmask_b32 v76, v3, v76, vcc""")
        A(f"""        v_mul_u32_u24 v77, {HS}, v1
        v_and_b32 v2, 7, v0
        v_lshl_add_u32 v77, v2, 1, v77
        s_lshl_b32 s{sA}, s{sV}, 4
        v_add_u32 v77, s{sA}, v77
        v_mov_b32 v44, 0
        v_mov_b32 v45, 0
        v_mov_b32 v46, 0""")

    def down_stage(self):
        A = self.A
        self.sync(self.o['sync_g'])
        gb = self.o['gbf']
        lite = int(self.o['lite'])
        def loadsA():
            if lite: A(f"buffer_load_dwordx2 v[40:41], v76, {srd(SWS)}, 0 offen offset:2560 sc1")
            else: A(f"buffer_load_dwordx4 v[40:43], v76, {srd(SWS)}, 0 offen offset:2560 sc1")
        def loads():
            if gb: A(f"""buffer_load_dwordx2 v[56:57], v72, {srd(SWS)}, 0 offen sc1
            buffer_load_dwordx2 v[58:59], v72, {srd(SWS)}, s{sKG} offen sc1
            buffer_load_dwordx2 v[60:61], v73, {srd(SWS)}, 0 offen sc1""")
            else: A(f"""buffer_load_dwordx4 v[52:55], v72, {srd(SWS)}, 0 offen sc1
            buffer_load_dwordx4 v[56:59], v72, {srd(SWS)}, s{sKG} offen sc1
            buffer_load_dwordx4 v[60:63], v73, {srd(SWS)}, 0 offen sc1""")
            if lite: A(f"buffer_load_dwordx2 v[42:43], v76, {srd(SWS)}, 0 offen offset:2568 sc1")
            l = self.pass0()
            A(f"""buffer_load_dword v44, v74, {srd(SWS)}, 0 offen offset:2048 sc1
            buffer_load_dword v45, v74, {srd(SWS)}, s{sKG} offen offset:2048 sc1
            buffer_load_dword v46, v75, {srd(SWS)}, 0 offen offset:2048 sc1""")
            self.end(l)
        def red(s1):
            s0 = f"""v_add_f32 v35, v44, v45
            v_add_f32 v35, v35, v46
            v_mov_b32 v36, v35
            v_permlane32_swap_b32 v35, v36
            v_add_f32 v35, v35, v36
            v_mov_b32 v36, v35
            v_permlane16_swap_b32 v35, v36
            v_add_f32 v{vC}, v35, v36""".split('\n')
            s2 = (self.unpack_sum(52, [56, 58, 60]) if gb else [f"v_add_f32 v{52+i}, v{52+i}, v{56+i}" for i in range(4)] + [f"v_add_f32 v{52+i}, v{52+i}, v{60+i}" for i in (0, 2, 1, 3)]) + \
                 self.capture(lambda: self.treduce(52, 53, 54, 55))
            if lite: s2 = s2[:8] + ["v_add_f32 v64, v42, v43", "v_add_f32 v64, v64, v40"] + s2[8:]
            l = self.pass0(); le = self.lab("rv")
            self.mix(s1, s2, s0)
            A(f"s_cbranch_execnz {le}")
            self.end(l)
            self.mix(s1, s2)
            self.end(le)
            A(f"v_fma_f32 v52, -v37, v{vC}, v52\nv_mul_f32 v52, v52, v38\nv_cvt_pk_bf16_f32 v53, 0, v52")
        def post():
            A(f"""v_mul_f32 v54, s{sLOG2E}, v53
            v_exp_f32 v54, -v54
            v_add_f32 v54, 1.0, v54
            v_rcp_f32 v54, v54
            v_mul_f32 v54, v53, v54
            v_cvt_pk_bf16_f32 v54, 0, v54
            v_mul_f32_dpp v54, v53, v54 row_ror:8 {DPP}""")
            self.exec_mask(0x00ff00ff00ff00ff)
            A(f"v_cvt_pk_bf16_f32 v54, 0, v54\nds_write_b16_d16_hi v77, v54 offset:{L_HA}")
            self.exec_full()
        self.poll(loads, list(range(56, 62) if gb else range(52, 64)) + list(range(40, 47)), red, (52, 64), tag='g', shadow=self.down_wpre, post=post,
                  sent=(lambda: A(f"buffer_load_dword v2, v76, {srd(SWS)}, 0 offen offset:{2560+60} sc1"), 2),
                  pre=(loadsA, (40, 41) if lite else (40, 43), (["v_add_f32 v64, v42, v43"] + self.red_kb(40, 41, 4, 8) + self.lnstats(40, 41, 37, 38, 39) + ["v_add_f32 v64, v64, v40"]) if 'g' in self.o['few'] else self.red16([40, 41]) + self.lnstats(40, 41, 37, 38, 39) + ([] if lite else ["v_add_f32 v64, v42, v43", "v_add_f32 v64, v64, v40"])))
        self.stamp(9)
        l = self.role(R_LT4); le = self.lab("dn")
        A("s_waitcnt lgkmcnt(0)"); self.barrier('G')
        if self.o['dx']:
            l2 = self.pass0(); self.wfrags(20, 47, 2); self.end(l2)
        A(f"""ds_read_b128 v[4:7], v78 offset:{L_HA}
        ds_read_b128 v[8:11], v78 offset:{L_HA+64}
        s_waitcnt lgkmcnt(1)
        v_mfma_f32_16x16x32_bf16 v[68:71], v[4:7], v[20:23], 0
        s_waitcnt lgkmcnt(0)
        v_mfma_f32_16x16x32_bf16 v[68:71], v[8:11], v[24:27], v[68:71]""")
        self.pub_store(79, 'G')
        A(f"s_branch {le}")
        self.end(l)
        A("s_waitcnt lgkmcnt(0)"); self.barrier('G')
        self.end(le)
        self.stamp(10)
        self.mix(self.red_kb(42, 43, 12, 16) if 'g' in self.o['few'] else self.red16([42, 43]))
        A(f"""v_fma_f32 v42, -v37, v43, v42
        v_mul_f32 v42, v42, v38
        v_cvt_pk_bf16_f32 v42, 0, v42
        v_mul_f32 v42, s{sLOG2E}, v42
        v_exp_f32 v42, -v42
        v_sub_f32 v{vXN}, v{vXR}, v37
        v_add_f32 v42, 1.0, v42
        v_rcp_f32 v42, v42
        v_cvt_pk_bf16_f32 v{vXN}, 0, v{vXN}
        v_cvt_pk_bf16_f32 v{vSG}, 0, v42
        v_mul_f32 v{vXN}, v{vXN}, v38
        v_cvt_pk_bf16_f32 v{vXN}, 0, v{vXN}""")

    def y_finish(self):
        self.A(f"""v_mul_f32 v49, v49, v{vSG}
        v_cvt_pk_bf16_f32 v49, 0, v49
        v_add_f32 v49, v{vXN}, v49
        v_cvt_pk_bf16_f32 v49, 0, v49
        v_add_f32 v{vXR}, v{vXR}, v49
        v_cvt_pk_bf16_f32 v{vXR}, 0, v{vXR}""")

    def qg_addr(self, extra):
        self.A(f"""s_lshr_b32 s{sA}, s{sT}, 3
        s_mul_i32 s{sA}, s{sA}, 3
        s_and_b32 s{sB}, s{sV}, 3
        s_add_u32 s{sA}, s{sA}, s{sB}
        s_lshr_b32 s{sB}, s{sA}, 2
        s_mul_i32 s{sB}, s{sB}, 10
        s_lshl_b32 s{sC}, s{sX}, 5
        s_add_u32 s{sB}, s{sB}, s{sC}
        s_mul_i32 s{sB}, s{sB}, {QSL}
        s_add_u32 s{sB}, s{sB}, {RQ[1]}
        s_and_b32 s{sA}, s{sA}, 3
        s_lshl_b32 s{sA}, s{sA}, 8
        s_add_u32 s{sA}, s{sA}, s{sB}
        s_add_u32 s{sA}, s{sA}, {extra}
        v_lshrrev_b32 v1, 4, v0
        v_and_b32 v2, 15, v0
        v_mul_u32_u24 v36, {QSL}, v1
        v_lshl_add_u32 v36, v2, 4, v36
        v_add_u32 v36, s{sA}, v36
        v_add_u32 v37, {8*QSL}, v36
        v_mov_b32 v3, {OOB}
        v_cmp_gt_u32 vcc, 32, v0
        v_cndmask_b32 v37, v3, v37, vcc
        v_lshlrev_b32 v40, 4, v2
        v_lshl_add_u32 v40, v1, 2, v40
        s_and_b32 s{sA}, s{sV}, 3
        s_lshl_b32 s{sA}, s{sA}, 8
        v_add_u32 v40, s{sA}, v40""")
    def cq_gather(self, idle, shadow=None, wait0=0):
        A = self.A
        l = self.role(R_456)
        self.qg_addr("4224")
        def loads(): A(f"""buffer_load_dwordx4 v[12:15], v36, {srd(SWS)}, 0 offen sc1
        buffer_load_dwordx4 v[16:19], v36, {srd(SWS)}, s{sKQ} offen sc1
        buffer_load_dwordx4 v[20:23], v37, {srd(SWS)}, 0 offen sc1""")
        def red():
            for i in range(4): A(f"v_add_f32 v{12+i}, v{12+i}, v{16+i}")
            for i in range(4): A(f"v_add_f32 v{12+i}, v{12+i}, v{20+i}")
            self.treduce(12, 13, 14, 15)
        self.poll(loads, range(12, 24), red, (12, 12), idle=idle, shadow=shadow, wait0=wait0)
        A(f"ds_write_b32 v40, v12 offset:{L_CQ}")
        self.end(l)
    def qg_pre(self):
        A = self.A
        l = self.role(R_456)
        A(f"s_bfe_u32 s{sD}, s{sT}, 0x20001\ns_lshl_b32 s{sF}, s{sD}, 10")
        self.qg_addr(f"s{sF}")
        A(f"""v_mul_u32_u24 v38, {QSL}, v2
        s_lshl_b32 s{sD}, s{sD}, 4
        s_add_u32 s{sD}, s{sD}, s{sB}
        s_add_u32 s{sD}, s{sD}, 4096
        v_add_u32 v38, s{sD}, v38
        v_cmp_gt_u32 vcc, 10, v{0 if 'q' in self.o['few'] else 2}
        v_cndmask_b32 v38, v3, v38, vcc
        ds_read_b32 v40, v40 offset:{L_CQ}""")
        self.q_lds_addr(39)
        A(f"s_lshr_b32 s{sA}, s{sA}, 1\nv_add_u32 v39, s{sA}, v39")
        self.end(l)
    def prewarm_o1(self):
        self.mem(f"""v_lshlrev_b32 v1, 4, v0
        s_mul_i32 s{sA}, s{sSIG}, {OSL}
        s_add_u32 s{sA}, s{sA}, {RO[1]}
        s_mov_b32 exec_hi, 0xffffff
        buffer_load_dwordx4 v[60:63], v1, {srd(SWS)}, s{sA} offen sc1
        s_mov_b32 exec_hi, -1""")

    def q_stage_and_final(self):
        A = self.A
        A(f"s_cmp_eq_u32 s{sP}, 1\ns_cbranch_scc1 L_final")
        if self.o['prewarm']:
            l = self.role(R_GE4); la = self.lab("pw"); lb = self.lab("pw"); l3 = self.lab("nm")
            A(f"""s_cbranch_execz {l3}
            v_lshlrev_b32 v1, 4, v0
            s_cmp_ge_u32 s{sV}, 6
            s_cbranch_scc1 {la}
            s_and_b32 s{sB}, s{sV}, 1
            s_lshl_b32 s{sB}, s{sB}, 11
            s_mul_i32 s{sA}, s{sSIG}, {QSL}
            s_add_u32 s{sA}, s{sA}, {RQ[1]}
            s_add_u32 s{sB}, s{sA}, s{sB}
            buffer_load_dwordx4 v[60:63], v1, {srd(SWS)}, s{sB} offen sc1
            buffer_load_dwordx4 v[60:63], v1, {srd(SWS)}, s{sB} offen offset:1024 sc1
            s_add_u32 s{sA}, s{sA}, 4096
            s_mov_b64 exec, 0xff
            buffer_load_dwordx4 v[60:63], v1, {srd(SWS)}, s{sA} offen sc1
            s_branch {lb}
            {la}:
            s_mul_i32 s{sA}, s{sSIG}, {GSL}
            s_add_u32 s{sA}, s{sA}, {RG[1]}
            s_cmp_eq_u32 s{sV}, 6
            s_cselect_b32 s{sB}, 0, 0x400
            s_add_u32 s{sB}, s{sB}, s{sA}
            buffer_load_dwordx4 v[60:63], v1, {srd(SWS)}, s{sB} offen sc1
            s_add_u32 s{sA}, s{sA}, 2560
            s_mul_i32 s{sB}, s{sSIG}, {OSL}
            s_add_u32 s{sB}, s{sB}, {RO[1]}
            s_cmp_eq_u32 s{sV}, 6
            s_cselect_b32 s{sA}, s{sA}, s{sB}
            s_cselect_b32 exec_lo, 0xff, -1
            s_cselect_b32 exec_hi, 0, 0xffffff
            buffer_load_dwordx4 v[60:63], v1, {srd(SWS)}, s{sA} offen sc1
            {lb}:
            s_mov_b64 exec, -1""")
            self.end(l3); self.end(l)
        A(f"s_lshr_b32 s{sA}, s{sV}, 1\ns_lshl_b32 s{sA}, s{sA}, 13\ns_add_u32 s{sA}, s{sA}, {L_WQ}")
        self.tr_addr(34, sA)
        A(f"s_and_b32 s{sA}, s{sV}, 1\ns_lshl_b32 s{sA}, s{sA}, 6\nv_xor_b32 v34, s{sA}, v34\nv_xor_b32 v35, 32, v34")
        self.wfrags(12, 34, 2); self.wfrags(20, 35, 2)
        self.x_gather_pre(RY)
        self.xa_addr()
        A(f"""v_and_b32 v1, 15, v0
        v_lshlrev_b32 v32, 10, v1
        v_lshrrev_b32 v1, 4, v0
        v_lshl_add_u32 v32, v1, 4, v32
        s_mul_i32 s{sB}, s{sSIG}, {QSL}
        s_add_u32 s{sB}, s{sB}, {RQ[1]}
        s_lshl_b32 s{sA}, s{sV}, 7
        s_add_u32 s{sA}, s{sA}, s{sB}
        v_add_u32 v32, s{sA}, v32
        s_add_u32 s{sB}, s{sB}, 4096
        v_lshl_add_u32 v33, v1, 4, s{sB}""")
        self.sync(self.o['sync_y'], RY)
        if 'y' in self.o['early']: self.attn_pre(); self.x_gather('y', self.qg_pre)
        else: self.x_gather('y', lambda: (self.attn_pre(), self.qg_pre()))
        self.y_finish()
        A(f"ds_write_b16_d16_hi v29, v{vXR} offset:{L_XA}")
        self.stamp(11)
        def store(first):
            self.exec_mask(0x000f000f000f000f)
            self.stores(f"buffer_store_dwordx4 v[48:51], v32, {srd(SWS)}, 0 offen{{f}}\nbuffer_store_dwordx4 v[52:55], v32, {srd(SWS)}, 0 offen offset:64{{f}}", True, 'Y')
            self.exec_full()
        self.mm_with_gram("v_mfma_f32_16x16x32_bf16 v[48:51], v[12:15], v[4:7], 0\nv_mfma_f32_16x16x32_bf16 v[52:55], v[20:23], v[4:7], 0",
                          "v_mfma_f32_16x16x32_bf16 v[48:51], v[16:19], v[8:11], v[48:51]\nv_mfma_f32_16x16x32_bf16 v[52:55], v[24:27], v[8:11], v[52:55]", store, 'Y')
        A("L_qwait:")
        l = self.role(R_456)
        self.sync(self.o['sync_q'])
        def loadsA(): A(f"buffer_load_dwordx2 v[16:17], v38, {srd(SWS)}, 0 offen sc1")
        def loads(): A(f"""buffer_load_dwordx4 v[4:7], v36, {srd(SWS)}, 0 offen sc1
        buffer_load_dwordx4 v[8:11], v36, {srd(SWS)}, s{sKQ} offen sc1
        buffer_load_dwordx4 v[12:15], v37, {srd(SWS)}, 0 offen sc1""")
        def red(s1):
            s2 = [f"v_add_f32 v{4+i}, v{4+i}, v{8+i}" for i in range(4)] + [f"v_add_f32 v{4+i}, v{4+i}, v{12+i}" for i in (0, 2, 1, 3)] + self.capture(lambda: self.treduce(4, 5, 6, 7))
            self.mix(s1, s2)
            if 'q' in self.o['few']: A(f"v_fma_f32 v4, -s{sA}, v40, v4\nv_mul_f32 v4, s{sB}, v4\nv_cvt_pk_bf16_f32 v5, 0, v4")
            else: A("v_fma_f32 v4, -v18, v40, v4\nv_mul_f32 v4, v4, v19\nv_cvt_pk_bf16_f32 v5, 0, v4")
        self.poll(loads, range(4, 18), red, (4, 16), idle=True, tag='q', shadow=lambda: self.attn_zero(skip=range(36, 41)), pre=(loadsA, (16, 17), self.red16([16, 17]) + self.lnstats(16, 17, 18, 19, 21) + ([f"v_readfirstlane_b32 s{sA}, v18", f"v_readfirstlane_b32 s{sB}, v19"] if 'q' in self.o['few'] else [])),
                  post=lambda: A(f"ds_write_b16_d16_hi v39, v5 offset:{L_QL}"))
        le = self.lab("qz")
        for r in range(36, 41): A(f"v_mov_b32 v{r}, 0")
        A(f"s_mov_b32 s{sP}, 1\ns_branch L_attn_bar")
        self.end(l)
        self.attn_zero()
        A(f"s_mov_b32 s{sP}, 1")
        if int(self.o['wb']) == 1:
            A(f"s_cmp_eq_u32 s{sT}, 30\ns_cbranch_scc0 L_attn_bar\ns_cmp_eq_u32 s{sV}, 3\ns_cbranch_scc0 L_attn_bar\ns_barrier\nbuffer_wbl2 sc1\ns_branch L_attn")
        else: A("s_branch L_attn_bar")
        A(f"L_idle:\ns_cmp_eq_u32 s{sP}, 0\ns_cbranch_scc0 L_done")
        if self.o['prewarm']:
            l = self.role(R_7); self.prewarm_o1(); A("s_waitcnt vmcnt(0)"); self.end(l)
        self.cq_gather(True)
        A("s_waitcnt lgkmcnt(0)")
        if self.o['clr'] == 'late':
            l = self.role(R_456); lp = self.lab("ig"); lr = self.lab("igr")
            A(f"""s_lshl_b32 s{sA}, s{sX}, 5
            s_mul_i32 s{sA}, s{sA}, {GSL}
            s_add_u32 s{sA}, s{sA}, {RG[0] + 2560}
            v_min_u32 v1, 29, v0
            v_mul_u32_u24 v1, {GSL}, v1
            {lp}:
            buffer_load_dword v4, v1, {srd(SWS)}, s{sA} offen sc1
            s_waitcnt vmcnt(0)
            v_cmp_eq_u32 vcc, -1, v4
            s_cbranch_vccnz {lr}""")
            self.tail.append(f"{lr}:\ns_sleep 4\ns_sub_u32 s{sTO}, s{sTO}, 1\ns_cbranch_scc1 L_end\ns_branch {lp}")
            self.end(l)
        self.attn_pre(); self.qg_pre()
        A("s_waitcnt lgkmcnt(0)\ns_branch L_qwait")
        A(f"""L_final:
        s_and_b32 s{sA}, s{sT}, 7
        s_cmp_eq_u32 s{sA}, s{sX}
        s_cbranch_scc0 L_done
        s_cmp_lt_u32 s{sT}, 10
        s_cbranch_scc0 L_done
        L_final_body:""")
        self.x_gather_pre(RY); self.xcol_addr(29)
        self.sync(self.o['sync_f'], RY)
        self.x_gather('f', None)
        self.y_finish()
        self.exec_mask(0x00ff00ff00ff00ff)
        self.mem(f"buffer_store_short_d16_hi v{vXR}, v29, {srd(SOUT)}, 0 offen")
        self.exec_full()
        if self.o['dry']: A(f"s_cmp_eq_u32 s{sDRY}, 1\ns_cbranch_scc1 L_stubs")
        A("L_done:")
        if int(self.o['pad']):
            A(f"""L_pad:
            s_memrealtime s[90:91]
            s_waitcnt lgkmcnt(0)
            s_sub_u32 s90, s90, s96
            s_cmp_lt_u32 s90, {int(self.o['pad'])*100}
            s_cbranch_scc1 L_pad""")
        if self.prof: self.stamp(11)
        A("L_end:")
        if self.o['t2']: A("s_waitcnt vmcnt(0)\ns_memrealtime s[68:69]\ns_mov_b32 s64, s96")
        if self.o['fine'] or self.o['t2']: A("s_waitcnt lgkmcnt(0)")
        if self.prof or self.o['fine'] or self.o['t2']:
            A(f"""s_mov_b64 exec, -1
            s_lshl_b32 s{sA}, s2, 3
            s_add_u32 s{sA}, s{sA}, s{sV}
            s_lshl_b32 s{sA}, s{sA}, 7
            s_add_u32 s{sA}, s{sA}, {STAMP}
            v_mov_b32 v1, 0""")
            for i in range(24): A(f"v_mov_b32 v{4+i}, s{sST+i}")
            A(f"v_mov_b32 v28, s{sFAST}\nv_mov_b32 v29, s{sTO}\nv_mov_b32 v30, 0\nv_mov_b32 v31, 0\ns_mov_b64 exec, 1")
            for i in range(7): A(f"buffer_store_dwordx4 {vr(4+4*i)}, v1, {srd(SWS)}, s{sA} offen offset:{16*i}")
        A("L_exit:\ns_endpgm\nL_stubs:")
        for st in self.stubs: A(st)
        A("s_branch L_dry_ret" if self.o['dry'] else "s_endpgm")

    def build(self):
        self.prologue(); self.startup(); self.attention(); self.wo_stage(); self.gu_stage(); self.down_stage(); self.q_stage_and_final()
        i = 0
        while i < len(self.tail): self.A(self.tail[i]); i += 1
        if not self.o['dry']:
            self.L = [l.replace('s_cbranch_execnz', 's_branch') for l in self.L if not l.startswith('s_cbranch_execz')]
        body, nn = resolve(self.L)
        if int(self.o['a8']):
            body, a, b = align8(body, "L_attn:", int(self.o['a8']), int(self.o['a8n'])); print("align8 widened", a, "nops", b)
        hdr = open('interleave_layers__sliding_block_cached__moe_arch_mod__decode.s.ref').read().split('\n')
        hl = [l for l in hdr if l.startswith(';') and '@launch' not in l]
        hl = hl[:hl.index([l for l in hl if 'Override launch' in l][0])]
        out = hl + [f"; @launch grid=(256,1,1) block=(512,1,1) lds={LDS_SIZE}",
                    '.amdgcn_target "amdgcn-amd-amdhsa--gfx950"', ".text", f".globl {NAME}", ".p2align 8", f".type {NAME},@function", f"{NAME}:"]
        out += [("" if l.endswith(':') else "    ") + l for l in body]
        out += ['.section .rodata,"a"', ".p2align 6", f".amdhsa_kernel {NAME}",
                "  .amdhsa_next_free_vgpr 256", "  .amdhsa_next_free_sgpr 102", "  .amdhsa_accum_offset 160",
                "  .amdhsa_group_segment_fixed_size 0", "  .amdhsa_kernarg_size 104", "  .amdhsa_user_sgpr_count 2",
                "  .amdhsa_user_sgpr_kernarg_segment_ptr 1", "  .amdhsa_system_sgpr_workgroup_id_x 1",
                "  .amdhsa_float_denorm_mode_32 3", ".end_amdhsa_kernel"]
        return "\n".join(out) + "\n", nn

if __name__ == "__main__":
    path = sys.argv[1]
    opts = {}; prof = False
    for a in sys.argv[2:]:
        if a == 'prof': prof = True
        else:
            k, v = a.split('=')
            opts[k] = {'True': True, 'False': False}.get(v, v)
    s, nn = G(prof, opts).build()
    open(path, 'w').write(s)
    print("wrote", path, len(s.split('\n')), "lines, nops inserted:", nn)
```

```python
import sys
from asmlib import resolve, align8

NAME = "interleave_layers__sliding_block_cached__moe_arch_mod__decode_kernel"

OSL, GSL, QSL, Q0SL, XSZ = 896, 2688, 5248, 4096, 245760
RO = [0, 256 * OSL]
RX = [2 * 256 * OSL, 2 * 256 * OSL + XSZ]
RY = [RX[1] + XSZ, RX[1] + 2 * XSZ]
RG = [RY[1] + XSZ, RY[1] + XSZ + 256 * GSL]
RQ = [RG[1] + 256 * GSL, RG[1] + 256 * GSL + 256 * Q0SL]
RF = RQ[1] + 256 * QSL
RE = RF + 32768
WS_END = RE + 2048
STAMP = WS_END
WS_SIZE = WS_END + 256 * 8 * 128
OOB = 0x7ff00000
L_OC = 0
L_ML = L_OC + 12288
L_XA = L_ML + 64; XS = 144
L_HA = L_XA + 6 * XS; HS = 192
L_OA = L_HA + 4 * HS; OS = 576
L_QL = L_OA + 4 * OS
L_FL = L_QL + 400
L_CQ = L_FL + 32
L_CS = L_CQ + 768
L_X0 = L_CS + 1024
L_WD = (L_X0 + 5120 + 127) // 128 * 128
L_WG = L_WD + 8192
L_WU = L_WG + 8192
L_WO = L_WU + 8192
L_WQ = L_WO + 32768
L_VP = L_WQ + 32768
LDS_SIZE = L_VP + 8 * 6144
assert LDS_SIZE <= 163840
sW, sV, sX, sT, sP, sDRY = 2, 3, 4, 5, 6, 7
SK, SVV, SWS, SWQ, SWO, SWG, SWU, SWD, SX0, SWR, SOUT = range(8, 52, 4)
sAI, sRI, sSIG, sSLOT = 52, 53, 54, 55
sFAST, sROLE, sTO, sEPS = 56, 57, 58, 59
sFULL = 60
sA, sB, sC, sD, sE, sF = 62, 63, 88, 89, 90, 91
sM = 92
sLOG2E, sSCALE, sINVN = 93, 94, 95
sG, sXCC, sSAVE, sTAG = 98, 99, 100, 101
sST = 64
R_LT4, R_GE4, R_456, R_7, R_6, R_GR = range(6)
sLO, sHI, sSW = 44, 45, 46
sK1, sK2, sKG, sKQ = 40, 41, 42, 43
vXR, vXN, vSG, vC = 80, 81, 82, 83
VBASE = 88
ODD = 0xAAAAAAAAAAAAAAAA

def srd(b): return f"s[{b}:{b+3}]"
def vr(a, n=4): return f"v[{a}:{a+n-1}]" if n > 1 else f"v{a}"
def ar(a, n=4): return f"a[{a}:{a+n-1}]"
DPP = "row_mask:0xf bank_mask:0xf"

class G:
    def __init__(self, prof=False, opts=None):
        self.L = []; self.tail = []; self.stubs = []; self.n = 0; self.prof = prof
        self.o = dict(dry=False, sync_o='sleep0', sync_x='acklo0', sync_g='sleep0', sync_y='acklo0', sync_q='sleep0', sync_f='acklo', fast=True,
                      clear='sc1', wflag='plain', bsleep=8, pad=0, probe=-1, probep=0, kvflag='nt', defer=True, cwo='0,0,0,0', cgud='4,2,2,0', csplit=True, prewarm=True, two='oqg', prio=4, at2=0, pk=0, mle=0, a8=0, a8n=4, dwo='gud', dx='', noq0=0, al=8, alo=0, clr='all', tq='', asl=0, pwo=True, t2=False, xbf=False, gbf=False, qbf=False, quick=False, gramw=3, fine='', finep=-1, finei='s_memtime', ldi='sc1', ldx='sc1', stx='sc1', sti='plain', wb=2, fl=0, w2=1, bar='oqg', tqwo=32, tqat=4, tqlim=0, one='', few='z', lite=0, onew=4, vlin=0, early='xy', q0st='sc1', q0ld='sc1')
        self.o.update(opts or {})
        for k in ('dwo', 'dx'): self.o[k] = self.o[k].replace('-', '')
        if not self.o['defer']: self.o['dwo'] = self.o['dx'] = ''
        self.o['defer'] = bool(set(self.o['dwo']) & set('gu'))
    def A(self, s):
        for l in s.split('\n'):
            l = l.strip()
            if l: self.L.append(l)
    def lab(self, p):
        self.n += 1; return f"L_{p}_{self.n}"
    def exec_mask(self, m):
        self.A(f"s_and_b32 exec_lo, s{sFULL}, 0x{m & 0xffffffff:x}\ns_and_b32 exec_hi, s{sFULL}, 0x{m >> 32:x}")
    def exec_full(self): self.A(f"s_mov_b64 exec, s[{sFULL}:{sFULL+1}]")
    def barrier(self, tag='z'):
        self.fs(tag + 'a')
        l = self.lab("nb"); self.A(f"s_cbranch_execz {l}\ns_barrier\n{l}:")
        self.fs(tag + 'b')
    def role(self, bit):
        l = self.lab("role"); self.A(f"s_bitcmp1_b32 s{sROLE}, {bit}\ns_cbranch_scc0 {l}"); return l
    def pass0(self):
        l = self.lab("p0"); self.A(f"s_cmp_eq_u32 s{sP}, 0\ns_cbranch_scc0 {l}"); return l
    def end(self, l): self.A(f"{l}:")
    def mem(self, lines):
        l = self.lab("nm"); self.A(f"s_cbranch_execz {l}"); self.A(lines); self.A(f"{l}:")
    def capture(self, fn):
        save = self.L; self.L = []; fn(); out = self.L; self.L = save; return out
    def stores(self, lines, intra, tag='z'):
        self.fs(tag + 's')
        if intra and self.o['fast']:
            l1 = self.lab("st"); l2 = self.lab("st")
            self.A(f"s_cbranch_execz {l2}\ns_cmp_eq_u32 s{sFAST}, 0\ns_cbranch_scc1 {l1}")
            self.A(lines.format(f=' ' + self.o['sti'].replace('plain', '').replace('_', ' '))); self.A(f"{l2}:")
            self.tail.append(f"{l1}:\n" + lines.format(f=" sc1") + f"\ns_branch {l2}")
        else:
            self.mem(lines.format(f=' ' + self.o['stx'].replace('_', ' ')))
    def poll(self, loads0, regs, reduce, chk, idle=False, tag='z', shadow=None, wait0=0, pre=None, post=None, sent=None):
        A = self.A
        fl = ' ' + self.o['ldx' if tag in 'xyf' else 'ldi'].replace('_', ' ')
        def loads():
            for x in self.capture(loads0): A(x[:-4] + fl if x.endswith(' sc1') else x)
        lw = self.lab("pw"); lr = self.lab("retry"); ls = self.lab("slow"); lo = self.lab("ok"); l2 = self.lab("slow")
        self.fs(tag + '0')
        exact_pre = None
        if pre and tag in self.o['one']:
            l = self.lab("sn"); la = self.lab("sna"); lb = self.lab("snb")
            if shadow: shadow()
            shadow = None
            A(f"s_cmp_eq_u32 s{sV}, {self.o['onew']}\ns_cbranch_scc0 {l}\ns_movk_i32 s{sG}, 0x100\ns_mov_b64 exec, 0xffff\n{la}:")
            sent[0]()
            A(f"s_sub_u32 s{sG}, s{sG}, 1\ns_waitcnt vmcnt(0)\ns_cbranch_scc1 {lb}\nv_cmp_eq_u32 vcc, -1, v{sent[1]}\ns_cbranch_vccnz {la}\n{lb}:\ns_mov_b64 exec, -1\n{l}:\ns_barrier")
            self.fs(tag + '3')
            l0, r0, p0 = loads, reduce, pre
            def loads():
                ls_ = self.capture(l0)
                k = [i for i, x in enumerate(ls_) if not x.startswith('buffer_load')]
                k = k[0] if k else len(ls_)
                self.mix(ls_[k:]); p0[0](); self.mix(ls_[:k])
                A(f"s_waitcnt vmcnt({k})"); self.mix(p0[2])
            def reduce(): r0([])
            exact_pre = p0
            pre = None
        elif pre and tag not in self.o['two']:
            l0, r0, p0 = loads, reduce, pre
            loads = lambda: (p0[0](), l0()); reduce = lambda: r0(p0[2]); pre = None
        elif pre:
            la = self.lab("pa"); lb = self.lab("pb"); l = self.lab("nm")
            A(f"s_cbranch_execz {l}"); pre[0](); A(f"{l}:\ns_movk_i32 s{sG}, 0x100")
            if shadow: shadow()
            shadow = lambda: self.mix(pre[2])
            A(f"s_waitcnt vmcnt(0)\nv_cmp_u_f32 vcc, v{pre[1][0]}, v{pre[1][1]}\ns_cbranch_vccz {lb}\n{la}:")
            if int(self.o['asl']): A(f"s_sleep {self.o['asl']}")
            pre[0]()
            A(f"s_sub_u32 s{sG}, s{sG}, 1\ns_waitcnt vmcnt(0)\ns_cbranch_scc1 {lb}\nv_cmp_u_f32 vcc, v{pre[1][0]}, v{pre[1][1]}\ns_cbranch_vccnz {la}\n{lb}:")
            self.fs(tag + '3')
            r0 = reduce; reduce = lambda: r0([])
        l = self.lab("nm"); A(f"s_cbranch_execz {l}"); loads(); A(f"{l}:\ns_movk_i32 s{sG}, 0x100")
        self.lskip = self.lab("nw")
        lskip = self.lskip
        if shadow: shadow()
        if wait0:
            l = self.lab("w0"); A(f"s_waitcnt vmcnt({wait0})\ns_branch {l}\n{lw}:\ns_waitcnt vmcnt(0)\n{l}:")
        else: A(f"{lw}:\ns_waitcnt vmcnt(0)")
        A(f"{lskip}:")
        self.fs(tag + '1')
        reduce()
        A(f"v_cmp_u_f32 vcc, v{chk[0]}, v{chk[1]}")
        if post: post()
        A(f"s_cbranch_vccnz {lr}\n{lo}:")
        self.fs(tag + '2')
        if self.o['fine'].split(',')[-1] == tag + 'n': A(f"s_sub_u32 s86, 0x101, s{sG}")
        def stub():
            A(f"{lr}:")
            if idle:
                l = self.lab("idl"); A(f"s_cmp_lt_u32 s{sT}, 30\ns_cbranch_scc1 {l}\ns_sleep 4\n{l}:")
            A(f"s_sub_u32 s{sG}, s{sG}, 1\ns_cbranch_scc1 {ls}")
            if self.prof: A(f"s_sub_u32 s{sTO}, s{sTO}, 1")
            l = self.lab("nm"); A(f"s_cbranch_execz {l}"); loads(); A(f"s_branch {lw}\n{l}:")
        self.stubs.append("\n".join(self.capture(stub)))
        def slow():
            nonlocal pre
            A(f"{l2}:\ns_sub_u32 s{sTO}, s{sTO}, 1\ns_cbranch_scc1 L_end\n{ls}:")
            if exact_pre: pre = exact_pre
            if pre: pre[0]()
            (l0 if exact_pre else loads)(); A("s_waitcnt vmcnt(0)")
            r = list(regs)
            A(f"v_max_u32 v1, v{r[0]}, v{r[1]}"); r = r[2:]
            while r:
                if len(r) >= 2: A(f"v_max3_u32 v1, v1, v{r[0]}, v{r[1]}"); r = r[2:]
                else: A(f"v_max_u32 v1, v1, v{r[0]}"); r = []
            A(f"v_cmp_eq_u32 vcc, -1, v1\ns_cbranch_vccnz {l2}")
            if pre: self.mix(pre[2])
            reduce()
            if post: post()
            A(f"s_branch {lo}")
        self.tail.append("\n".join(self.capture(slow)))
    def stamp(self, i, both=True):
        if int(self.o['probe']) == i:
            l = self.lab("probe")
            self.A(f"s_cmp_eq_u32 s{sP}, {self.o['probep']}\ns_cbranch_scc0 {l}\ns_cbranch_execz {l}\ns_memrealtime s[96:97]\ns_waitcnt lgkmcnt(0)\n{l}:")
        if not self.prof: return
        self.A("s_memrealtime s[96:97]\ns_waitcnt lgkmcnt(0)")
        if both:
            self.A(f"s_cmp_eq_u32 s{sP}, 0\ns_cselect_b32 s{sST+i}, s96, s{sST+i}\ns_cselect_b32 s{sST+12+i}, s{sST+12+i}, s96")
        else:
            self.A(f"s_mov_b32 s{sST+i}, s96")
    def fs(self, name):
        names = self.o['fine'].split(',') if self.o['fine'] else []
        if name in names:
            i = names.index(name)
            if int(self.o['finep']) >= 0:
                l = self.lab("fs"); self.A(f"s_cmp_eq_u32 s{sP}, {self.o['finep']}\ns_cbranch_scc0 {l}\n{self.o['finei']} s[{64+2*i}:{65+2*i}]\n{l}:")
            else: self.A(f"{self.o['finei']} s[{64+2*i}:{65+2*i}]")
    def sync(self, kind, R=None):
        if kind.startswith('sent'):
            A = self.A; w = int(kind[4:5]); off = int(kind[5:] or 1008)
            l = self.lab("sn"); la = self.lab("sna"); lb = self.lab("snb")
            A(f"s_cmp_eq_u32 s{sV}, {w}\ns_cbranch_scc0 {l}")
            self.region(sC, R)
            A(f"""s_lshl_b32 s{sA}, s{sAI}, 10
            s_add_u32 s{sA}, s{sA}, s{sC}
            v_min_u32 v1, 23, v0
            v_mul_u32_u24 v1, 10240, v1
            s_movk_i32 s{sG}, 0x200
            s_mov_b32 exec_hi, 0
            {la}:
            buffer_load_dword v2, v1, {srd(SWS)}, s{sA} offen offset:{off} sc1
            s_sub_u32 s{sG}, s{sG}, 1
            s_waitcnt vmcnt(0)
            s_cbranch_scc1 {lb}
            v_cmp_eq_u32 vcc, -1, v2
            s_cbranch_vccnz {la}
            {lb}:
            s_mov_b32 exec_hi, -1
            {l}:""")
            self.barrier()
            return
        if kind == 'ack': self.A("s_waitcnt vmcnt(0)"); self.barrier()
        elif kind.startswith('acklo'):
            l = self.role(R_LT4); self.A("s_waitcnt vmcnt(0)"); self.end(l); self.barrier()
            if kind[5:] and int(kind[5:]): self.A(f"s_sleep {int(kind[5:])}")
        elif kind.startswith('sleep'):
            if int(kind[5:]): self.A(f"s_sleep {int(kind[5:])}")
        elif kind.startswith('acks'): self.A("s_waitcnt vmcnt(0)"); self.barrier(); self.A(f"s_sleep {int(kind[4:])}")
    def treduce(self, r0, r1, r2, r3):
        self.A(f"""v_permlane32_swap_b32 v{r0}, v{r2}
        v_permlane32_swap_b32 v{r1}, v{r3}
        v_add_f32 v{r0}, v{r0}, v{r2}
        v_add_f32 v{r1}, v{r1}, v{r3}
        v_permlane16_swap_b32 v{r0}, v{r1}
        v_add_f32 v{r0}, v{r0}, v{r1}""")
    def red16(self, regs):
        return [f"v_add_f32_dpp v{r}, v{r}, v{r} {perm} {DPP}" for perm in ("quad_perm:[1,0,3,2]", "quad_perm:[2,3,0,1]", "row_half_mirror", "row_mirror") for r in regs]
    def red_kb(self, ra, rb, ta, tb):
        def one(r, t):
            return [f"v_add_f32_dpp v{r}, v{r}, v{r} row_ror:4 {DPP}", f"v_add_f32_dpp v{r}, v{r}, v{r} row_ror:8 {DPP}"] + \
                   [f"v_mov_b32_dpp v{t+b}, v{r} quad_perm:[{b},{b},{b},{b}] {DPP}" for b in (0, 2, 1, 3)] + \
                   self.capture(lambda: self.treduce(t, t + 1, t + 2, t + 3))[:-1] + [f"v_add_f32 v{r}, v{t}, v{t+1}"]
        return self.capture(lambda: self.mix(one(ra, ta), one(rb, tb)))
    def lnstats(self, sq, sm, m, rs, t):
        return f"""v_mul_f32 v{sm}, s{sINVN}, v{sm}
        v_mul_f32 v{sq}, s{sINVN}, v{sq}
        v_fma_f32 v{t}, -v{sm}, v{sm}, v{sq}
        v_cvt_pk_bf16_f32 v{m}, 0, v{sm}
        v_max_f32 v{t}, 0, v{t}
        v_cvt_pk_bf16_f32 v{t}, 0, v{t}
        v_add_f32 v{t}, s{sEPS}, v{t}
        v_cvt_pk_bf16_f32 v{t}, 0, v{t}
        v_sqrt_f32 v{t}, v{t}
        v_cvt_pk_bf16_f32 v{t}, 0, v{t}
        v_rcp_f32 v{rs}, v{t}""".split('\n')
    def mix(self, *streams):
        streams = [list(s) for s in streams]
        while any(streams):
            for s in streams:
                if s: self.A(s.pop(0))
    def tr_addr(self, d, sbase):
        self.A(f"""v_lshrrev_b32 v1, 4, v0
        v_bfe_u32 v2, v0, 2, 2
        v_lshl_add_u32 v{d}, v1, 3, v2
        v_lshlrev_b32 v{d}, 7, v{d}
        v_and_b32 v2, 3, v0
        v_lshl_add_u32 v{d}, v2, 3, v{d}
        v_bfe_u32 v2, v0, 3, 2
        v_lshl_add_u32 v{d}, v2, 5, v{d}
        v_add_u32 v{d}, s{sbase}, v{d}""")
    def wfrags(self, dst, addr, steps, off=0):
        for s in range(steps):
            self.A(f"ds_read_b64_tr_b16 {vr(dst+4*s,2)}, v{addr} offset:{off+s*4096}\nds_read_b64_tr_b16 {vr(dst+4*s+2,2)}, v{addr} offset:{off+s*4096+512}")
    def dma_addr(self, d, rstride):
        self.A(f"""v_lshrrev_b32 v1, 3, v0
        v_mul_u32_u24 v{d}, {rstride}, v1
        v_bfe_u32 v1, v0, 4, 1
        v_bfe_u32 v2, v0, 1, 2
        v_xor_b32 v1, v1, v2
        v_lshl_add_u32 v{d}, v1, 5, v{d}
        v_and_b32 v1, 1, v0
        v_lshl_add_u32 v{d}, v1, 4, v{d}
        v_xor_b32 v{d+1}, 64, v{d}""")
    def dma(self, srdb, vaddr, n, rstride, lds0, ssrc, slds, lim=0):
        wf = self.o['wflag'].replace('plain', '')
        for i in range(n):
            if lim and i >= lim: self.A(f"s_waitcnt vmcnt({lim-1})")
            self.A(f"s_add_u32 m0, s{slds}, {lds0 + i*1024}\ns_add_u32 s{sA}, s{ssrc}, {i*8*rstride}\nbuffer_load_dwordx4 v{vaddr + (i&1)}, {srd(srdb)}, s{sA} offen {wf} lds")

    def mk(self, b, p, off, size):
        A = self.A
        if off is None: A(f"s_mov_b32 s{b}, s{p}\ns_mov_b32 s{b+1}, s{p+1}\ns_mov_b32 s{b+2}, {size}")
        else:
            A(f"s_add_u32 s{b}, s{p}, s{off}\ns_addc_u32 s{b+1}, s{p+1}, 0")
            if isinstance(size, int): A(f"s_mov_b32 s{b+2}, {size}")
            else: A(f"s_sub_u32 s{b+2}, {size[0]}, s{off}")
        A(f"s_mov_b32 s{b+3}, 0x20000")
    def prologue(self):
        A = self.A
        A("s_cmp_ge_u32 s2, 256\ns_cbranch_scc1 L_exit")
        if int(self.o['pad']) or self.prof or self.o['t2']: A("s_memrealtime s[96:97]")
        A(f"""s_load_dwordx16 s[64:79], s[0:1], 0
        s_load_dwordx8 s[80:87], s[0:1], 64
        s_load_dwordx2 s[88:89], s[0:1], 96
        v_lshrrev_b32 v1, 6, v0
        v_and_b32 v0, 63, v0
        v_readfirstlane_b32 s{sV}, v1
        v_mov_b32 v4, 0
        v_mov_b32 v5, 0
        v_mov_b32 v6, 0
        v_mov_b32 v7, 0
        v_lshlrev_b32 v1, 4, v0
        s_mov_b64 exec, 7
        ds_write_b128 v1, v[4:7] offset:{L_QL+384}
        s_mov_b64 exec, -1
        s_and_b32 s{sX}, s2, 7
        s_lshr_b32 s{sT}, s2, 3
        s_lshr_b32 s{sA}, s{sT}, 3
        s_lshl_b32 s{sB}, s{sX}, 2
        s_add_u32 s92, s{sA}, s{sB}            ; head
        s_bfe_u32 s{sA}, s{sT}, 0x20001        ; batch
        s_lshl_b32 s{sA}, s{sA}, 5
        s_add_u32 s{sA}, s{sA}, s92
        s_lshl_b32 s{sA}, s{sA}, 12
        s_and_b32 s{sB}, s{sT}, 1
        s_lshl_b32 s{sB}, s{sB}, 9
        s_add_u32 s{sA}, s{sA}, s{sB}
        s_lshl_b32 s{sB}, s{sV}, 6
        s_add_u32 s{sA}, s{sA}, s{sB}
        s_add_u32 s{sA}, s{sA}, 3072
        s_mul_i32 s90, s{sA}, 384
        s_mov_b32 s{sP}, 0
        s_mov_b32 s{sDRY}, 0
        s_mov_b64 s[{sFULL}:{sFULL+1}], -1
        s_mov_b32 s{sTO}, 0x100000
        s_mov_b32 s{sFAST}, 0
        s_mov_b32 s{sLOG2E}, 0x3fb8aa3b
        s_mov_b32 s{sSCALE}, 0x3d93cd3a
        s_mov_b32 s{sINVN}, 0x3acccccd
        s_mov_b32 s{sEPS}, 0x3727c5ac
        s_lshl_b32 s{sSIG}, s{sX}, 5
        s_add_u32 s{sSIG}, s{sSIG}, s{sT}
        s_mul_i32 s{sSLOT}, s{sX}, 30
        s_add_u32 s{sSLOT}, s{sSLOT}, s{sT}
        s_mul_i32 s{sRI}, s{sT}, 26
        s_lshr_b32 s{sRI}, s{sRI}, 8
        s_mul_i32 s{sA}, s{sRI}, 10
        s_sub_u32 s{sAI}, s{sT}, s{sA}
        s_min_u32 s{sRI}, s{sRI}, 2""")
        tab = 0
        for v in range(8):
            tab |= ((v < 4) << R_LT4 | (v >= 4) << R_GE4 | (4 <= v <= 6) << R_456 | (v == 7) << R_7 | (v == 6) << R_6 | (v == int(self.o['gramw'])) << R_GR) << (8 * v)
        A(f"""s_mov_b32 s{sA}, 0x{tab & 0xffffffff:x}
        s_mov_b32 s{sB}, 0x{tab >> 32:x}
        s_lshl_b32 s91, s{sV}, 3
        s_lshr_b64 s[{sA}:{sB}], s[{sA}:{sB}], s91
        s_and_b32 s{sROLE}, s{sA}, 0xff""")
        self.kv_addr()
        A("s_waitcnt lgkmcnt(0)\ns_barrier")
        A(f"s_add_u32 s{sA}, s88, {RE}\ns_addc_u32 s{sB}, s89, 0\ns_load_dword s{sTAG}, s[{sA}:{sB}], 0")
        self.mk(SK, 66, 90, 24576); self.mk(SVV, 68, 90, 24576)
    def other_srds(self):
        A = self.A; mk = self.mk
        mk(SWS, 88, None, WS_SIZE)
        A(f"""s_mul_i32 s{sA}, s{sAI}, {64*12288}
        s_mul_i32 s{sB}, s{sX}, 3
        s_add_u32 s91, s{sB}, s{sRI}            ; P = 3x + r
        s_lshl_b32 s{sB}, s91, 9
        s_add_u32 s{sA}, s{sA}, s{sB}""")
        mk(SWQ, 70, sA, (640 * 6144 * 2,))
        A(f"s_mul_i32 s{sA}, s91, {256*1280}\ns_lshl_b32 s90, s{sAI}, 7\ns_add_u32 s{sA}, s{sA}, s90")
        mk(SWO, 72, sA, (6144 * 640 * 2,))
        A(f"s_mul_i32 s{sA}, s91, {64*1280}\ns_add_u32 s{sA}, s{sA}, s90")
        mk(SWD, 82, sA, (1536 * 640 * 2,))
        A(f"s_mul_i32 s{sA}, s{sAI}, {64*3072}\ns_lshl_b32 s{sB}, s91, 7\ns_add_u32 s{sA}, s{sA}, s{sB}")
        mk(SWG, 78, sA, (640 * 1536 * 2,)); mk(SWU, 80, sA, (640 * 1536 * 2,))
        mk(SX0, 64, None, 5120); mk(SWR, 76, 90, (1280,)); mk(SOUT, 84, None, 5120)
        A(f"s_waitcnt lgkmcnt(0)\ns_add_u32 s{sTAG}, s{sTAG}, 1")
        if self.o['fine']:
            for i in range(24): A(f"s_mov_b32 s{sST+i}, 0")
        if self.prof:
            A(f"s_mov_b32 s{sST}, s96")
            for i in range(1, 24): A(f"s_mov_b32 s{sST+i}, 0")

    def kv_addr(self):
        self.A(f"""v_bfe_u32 v84, v0, 1, 3
        v_mul_u32_u24 v84, 384, v84
        v_lshrrev_b32 v3, 4, v0
        v_lshl_add_u32 v84, v3, 5, v84
        v_and_b32 v3, 1, v0
        v_lshl_add_u32 v84, v3, 4, v84
        v_lshrrev_b32 v85, 5, v0
        v_lshlrev_b32 v85, 3, v85
        v_bfe_u32 v3, v0, 3, 2
        v_add_u32 v85, v85, v3
        v_mul_u32_u24 v85, 384, v85
        v_and_b32 v3, 7, v0
        v_lshl_add_u32 v85, v3, 4, v85""")
        if int(self.o['vlin']) & 1: self.A("v_lshlrev_b32 v85, 4, v0")
        if int(self.o['vlin']) & 2: self.A("v_lshlrev_b32 v84, 4, v0")
    def k_loads(self):
        A = self.A; KF = self.o['kvflag'].replace('plain', '').replace('_', ' ')
        for g in range(8):
            A(f"s_mov_b32 s{sA}, {g*3072}")
            b = 12 * (g & ~1)
            for s, r in enumerate((b + 8 * (g & 1), b + 8 * (g & 1) + 4, b + 16 + 4 * (g & 1))):
                A(f"buffer_load_dwordx4 {ar(r)}, v84, {srd(SK)}, s{sA} offen offset:{s*(1024 if int(self.o['vlin']) & 2 else 128)} {KF}")
    def v_loads(self, sig=None):
        A = self.A; KF = self.o['kvflag'].replace('plain', '').replace('_', ' ')
        A(f"s_mul_i32 s{sB}, s{sV}, 6144")
        for S in range(5):
            if S == sig: self.lds_inc(16)
            for f in range(2 if S < 4 else 0):
                row = 32 * (S >> 1) + 16 * f + 4 * (S & 1)
                for s in range(3):
                    if int(self.o['vlin']) & 1:
                        o = ((S * 2 + f) * 3 + s) * 1024
                        if S == 0: A(f"s_add_u32 m0, s{sB}, {L_VP + (s*2+f)*1024}\ns_mov_b32 s{sA}, {o}\nbuffer_load_dwordx4 v85, {srd(SVV)}, s{sA} offen {KF} lds")
                        else: A(f"s_mov_b32 s{sA}, {o}\nbuffer_load_dwordx4 {vr(VBASE+(S-1)*24+s*8+4*f)}, v85, {srd(SVV)}, s{sA} offen {KF}")
                        continue
                    if S == 0:
                        A(f"s_add_u32 m0, s{sB}, {L_VP + (s*2+f)*1024}\ns_mov_b32 s{sA}, {row*384+s*128}\nbuffer_load_dwordx4 v85, {srd(SVV)}, s{sA} offen {KF} lds")
                    else:
                        if s == 0: A(f"s_mov_b32 s{sA}, {row*384}")
                        A(f"buffer_load_dwordx4 {vr(VBASE+(S-1)*24+s*8+4*f)}, v85, {srd(SVV)}, s{sA} offen offset:{s*128} {KF}")
    def xcol_addr(self, d):
        self.A(f"""v_lshrrev_b32 v1, 4, v0
        v_mul_u32_u24 v{d}, 1280, v1
        v_and_b32 v2, 7, v0
        v_lshl_add_u32 v{d}, v2, 1, v{d}
        s_lshl_b32 s{sA}, s{sAI}, 7
        s_lshl_b32 s{sB}, s{sV}, 4
        s_add_u32 s{sA}, s{sA}, s{sB}
        v_add_u32 v{d}, s{sA}, v{d}""")
    def xres_read(self):
        self.xcol_addr(3)
        self.A(f"v_mov_b32 v{vXR}, 0\nds_read_u16_d16_hi v{vXR}, v3 offset:{L_X0}")
    def lds_spin(self, off, val):
        lw = self.lab("sp"); lr = self.lab("spr")
        self.A(f"""v_mov_b32 v5, {L_FL}
        {lw}:
        ds_read_b32 v4, v5 offset:{off}
        s_waitcnt lgkmcnt(0)
        v_cmp_gt_u32 vcc, {val}, v4
        s_cbranch_vccnz {lr}""")
        self.tail.append(f"{lr}:\ns_sleep 2\ns_sub_u32 s{sTO}, s{sTO}, 1\ns_cbranch_scc1 L_end\ns_branch {lw}")
    def lds_inc(self, off):
        self.A(f"v_mov_b32 v4, {L_FL}\nv_mov_b32 v5, 1\ns_mov_b64 exec, 1\nds_add_u32 v4, v5 offset:{off}\ns_mov_b64 exec, -1")
    def dma_dist(self, cnts, mats):
        A = self.A
        cnts = [int(c) for c in cnts.split(',')]
        pre = [sum(cnts[:i]) for i in range(4)]
        A(f"""s_lshl_b32 s{sA}, s{sV}, 3
        s_mov_b32 s{sB}, 0x{sum(c << (8*i) for i, c in enumerate(cnts)):x}
        s_lshr_b32 s{sD}, s{sB}, s{sA}
        s_and_b32 s{sD}, s{sD}, 0xff
        s_mov_b32 s{sB}, 0x{sum(c << (8*i) for i, c in enumerate(pre)):x}
        s_lshr_b32 s{sF}, s{sB}, s{sA}
        s_and_b32 s{sF}, s{sF}, 0xff
        s_lshl_b32 s{sB}, s{sF}, 10""")
        le = self.lab("dd")
        for i in range(0, max(cnts), 2):
            A(f"s_cmp_gt_u32 s{sD}, {i}\ns_cbranch_scc0 {le}")
            for (sr, va, rs, l0) in mats:
                A(f"s_mul_i32 s{sC}, s{sF}, {8*rs}\ns_add_u32 s{sC}, s{sC}, {i*8*rs}")
                self.dma(sr, va, 2, rs, l0 + i * 1024, sC, sB)
        self.end(le)
    def w_dma_gud(self, u, which='gud'):
        A = self.A
        self.dma_addr(6, 3072); self.dma_addr(8, 1280)
        A(f"s_mul_i32 s{sC}, s{u}, {16*3072}\ns_lshl_b32 s{sB}, s{u}, 11")
        if 'g' in which: self.dma(SWG, 6, 2, 3072, L_WG, sC, sB)
        if 'u' in which: self.dma(SWU, 6, 2, 3072, L_WU, sC, sB)
        A(f"s_mul_i32 s{sC}, s{u}, {16*1280}")
        if 'd' in which: self.dma(SWD, 8, 2, 1280, L_WD, sC, sB)

    def attn_pre(self):
        A = self.A
        A(f"""v_lshrrev_b32 v1, 4, v0
        v_and_b32 v2, 3, v0
        v_lshlrev_b32 v2, 4, v2
        v_lshl_add_u32 v76, v1, 6, v2            ; base1
        v_and_b32 v3, 0x40, v76
        v_add3_u32 v77, v3, v2, 64
        v_add_u32 v77, 192, v77                  ; base2
        v_bfe_u32 v2, v0, 2, 2
        v_mov_b32 v3, 384""")
        for k in range(4): A(f"v_cmp_eq_u32 vcc, {k}, v2\nv_cndmask_b32 v{72+k}, v3, v76, vcc")
        A(f"""v_lshrrev_b32 v1, 5, v0
        v_cmp_eq_u32 vcc, v1, v2
        v_cndmask_b32 v76, v3, v77, vcc
        v_add_u32 v1, 2, v1
        v_cmp_eq_u32 vcc, v1, v2
        v_cndmask_b32 v77, v3, v77, vcc
        v_and_b32 v1, 1, v0
        v_mul_u32_u24 v78, 0xaaaa, v1
        v_add_u32 v78, 0x4444, v78
        v_and_b32 v1, 3, v0
        v_xor_b32 v2, 1, v1
        v_lshl_add_u32 v79, v2, 2, v1
        v_mul_u32_u24 v79, 0x1111, v79
        v_bfe_u32 v1, v0, 2, 1
        v_mul_u32_u24 v85, 0xffff, v1
        v_sub_u32 v84, 0xffff, v85
        s_mul_i32 s{sA}, s{sV}, 6144
        s_add_u32 s{sA}, s{sA}, {L_VP}
        v_lshl_add_u32 v86, v0, 4, s{sA}
        v_and_b32 v1, 7, v0
        v_lshlrev_b32 v1, 5, v1
        v_bfe_u32 v2, v0, 4, 1
        v_lshl_add_u32 v1, v2, 4, v1
        v_lshrrev_b32 v2, 5, v0
        v_mul_u32_u24 v2, 768, v2
        s_mul_i32 s{sA}, s{sV}, 1536
        v_add3_u32 v87, v1, v2, s{sA}""")
    def attn_zero(self, skip=()):
        for r in range(28, 48):
            if r not in skip: self.A(f"v_mov_b32 v{r}, 0")
    def consts(self):
        h = 2 if self.o['xbf'] else 1
        self.A(f"s_mov_b32 s{sLO}, 0x3f80\ns_mov_b32 s{sHI}, 0x3f800000")
        self.A(f"s_mov_b32 s{sK1}, {81920//h}\ns_mov_b32 s{sK2}, {163840//h}\ns_mov_b32 s{sKG}, {4*GSL}\ns_mov_b32 s{sKQ}, {4*QSL}")

    def xa_addr(self, d=30):
        self.A(f"""v_and_b32 v1, 15, v0
        v_lshrrev_b32 v2, 4, v0
        v_min_u32 v{d}, 5, v1
        v_mul_u32_u24 v{d}, {XS}, v{d}
        v_lshl_add_u32 v{d}, v2, 4, v{d}
        v_and_b32 v3, 3, v0
        v_bfe_u32 v1, v0, 2, 2
        v_add_u32 v{d+1}, 3, v3
        v_min_u32 v{d+1}, 5, v{d+1}
        v_cmp_eq_u32 vcc, 0, v3
        v_cndmask_b32 v{d+1}, v{d+1}, v1, vcc
        v_mul_u32_u24 v{d+1}, {XS}, v{d+1}
        v_lshl_add_u32 v{d+1}, v2, 4, v{d+1}""")
    def xfrags(self, d=30): self.A(f"ds_read_b128 v[4:7], v{d} offset:{L_XA}\nds_read_b128 v[8:11], v{d} offset:{L_XA+64}")
    def mm_with_gram(self, mf0, mf1, store, tag, late=None):
        A = self.A
        le = self.lab("gr")
        def variant(gram, first):
            A("s_waitcnt lgkmcnt(0)"); self.barrier(tag)
            if gram: A(f"ds_read_b128 v[60:63], v31 offset:{L_XA}")
            if first: late()
            self.xfrags()
            if gram:
                A(f"""ds_read_b128 v[64:67], v31 offset:{L_XA+64}
                s_waitcnt lgkmcnt(2)""")
                A(mf0)
                A("v_mfma_f32_16x16x32_bf16 v[68:71], v[60:63], v[4:7], 0\ns_waitcnt lgkmcnt(1)")
                A(mf1)
                A("s_waitcnt lgkmcnt(0)\nv_mfma_f32_16x16x32_bf16 v[68:71], v[64:67], v[8:11], v[68:71]")
                m = 1 | 1 << 17 | 1 << 34 | 1 << 51
                st = f"s_mov_b32 exec_lo, 0x{m & 0xffffffff:x}\ns_mov_b32 exec_hi, 0x{m >> 32:x}\nbuffer_store_dwordx4 v[68:71], v33, {srd(SWS)}, 0 offen{{f}}"
                if first: st = f"s_mov_b64 exec, -1\nv_mov_b32_dpp v71, v70 row_newbcast:4 {DPP}\n" + st
                store(first, st)
            else:
                A("s_waitcnt lgkmcnt(1)"); A(mf0); A("s_waitcnt lgkmcnt(0)"); A(mf1)
                store(first)
        firsts = (True, False) if late else (False,)
        for fi, first in enumerate(firsts):
            if first: lp = self.pass0()
            l = self.role(R_GR); variant(True, first); A(f"s_branch {le}"); self.end(l)
            variant(False, first)
            if first: A(f"s_branch {le}"); self.end(lp)
        self.end(le)
    def q_lds_addr(self, d):
        self.A(f"""v_bfe_u32 v1, v0, 3, 1
        v_lshlrev_b32 v{d}, 6, v1
        v_bfe_u32 v1, v0, 1, 1
        v_lshl_add_u32 v{d}, v1, 5, v{d}
        v_lshrrev_b32 v1, 5, v0
        v_lshl_add_u32 v{d}, v1, 4, v{d}
        v_bfe_u32 v1, v0, 2, 1
        v_lshl_add_u32 v{d}, v1, 3, v{d}
        v_and_b32 v1, 1, v0
        v_lshl_add_u32 v{d}, v1, 2, v{d}
        v_bfe_u32 v1, v0, 4, 1
        v_lshl_add_u32 v{d}, v1, 1, v{d}""")

    def clr_begin(self):
        self.A("v_mov_b32 v64, -1\nv_mov_b32 v65, -1\nv_mov_b32 v66, -1\nv_mov_b32 v67, -1\nv_lshlrev_b32 v10, 4, v0")
    def clr(self, what, p):
        A = self.A
        st = lambda off=0: A(f"buffer_store_dwordx4 v[64:67], v10, {srd(SWS)}, s{sA} offen offset:{off} sc1")
        if what in 'XY':
            A(f"s_lshl_b32 s{sA}, s{sSLOT}, 10\ns_add_u32 s{sA}, s{sA}, {(RX if what == 'X' else RY)[p]}"); st()
        elif what == 'O':
            A(f"s_mul_i32 s{sA}, s{sSIG}, {OSL}\ns_add_u32 s{sA}, s{sA}, {RO[p]}\ns_mov_b32 exec_hi, 0xffffff"); st(); A("s_mov_b32 exec_hi, -1")
        elif what == 'G':
            A(f"s_mul_i32 s{sA}, s{sSIG}, {GSL}\ns_add_u32 s{sA}, s{sA}, {RG[p]}"); st(); st(1024)
            if p == 0: A("s_mov_b32 exec_hi, 0xff"); st(2048)
            else: A("s_mov_b64 exec, 0xff"); st(2560)
            A("s_mov_b64 exec, -1")
        elif what == 'C':
            A(f"s_mul_i32 s{sA}, s{sSIG}, {QSL}\ns_add_u32 s{sA}, s{sA}, {RQ[1] + 4224}"); st()
        elif what == 'Q':
            A(f"s_mul_i32 s{sA}, s{sSIG}, {QSL}\ns_add_u32 s{sA}, s{sA}, {RQ[1]}")
            for i in range(4): st(1024 * i)
            A(f"s_add_u32 s{sA}, s{sA}, 4096\ns_mov_b64 exec, 0xff"); st(); A("s_mov_b64 exec, -1")

    def startup(self):
        A = self.A
        A(f"s_bitcmp1_b32 s{sROLE}, {R_GE4}\ns_cbranch_scc1 L_start_hi")
        self.k_loads()
        self.other_srds()
        l = self.lab("now"); A(f"s_cmp_ge_u32 s{sT}, 30\ns_cbranch_scc1 {l}")
        self.dma_addr(4, 1280)
        if not int(self.o['noq0']) & 4: self.dma_dist(self.o['cwo'], [(SWO, 4, 1280, L_WO)])
        if True:
            mats = [m for k, m in (('g', (SWG, 6, 3072, L_WG)), ('u', (SWU, 6, 3072, L_WU)), ('d', (SWD, 4, 1280, L_WD))) if k not in self.o['tq'] + self.o['dwo'] + self.o['dx']]
            if mats:
                self.dma_addr(6, 3072)
                self.dma_dist(self.o['cgud'], mats)
        self.end(l)
        self.v_loads()
        self.stamp(1, both=False)
        if self.o['dry']:
            l = self.lab("nodry")
            A(f"""s_cmp_eq_u32 s{sV}, 2
            s_cbranch_scc0 {l}
            s_mov_b32 s{sDRY}, 1
            v_mov_b32 v15, 0
            v_mov_b32 v16, 0
            v_mov_b32 v28, 0
            v_mov_b32 v32, 0
            v_mov_b32 v33, 0
            v_mov_b32 v34, 0
            v_mov_b32 v36, 0
            v_mov_b32 v37, 0
            v_mov_b32 v38, 0
            s_mov_b32 s{sSAVE}, s{sT}
            s_mov_b32 s{sT}, 0
            s_mov_b32 s{sROLE}, 0xff
            s_mov_b64 s[{sFULL}:{sFULL+1}], 0
            s_mov_b64 exec, 0
            s_branch L_attn
            L_dry_ret:
            s_mov_b32 s{sDRY}, 0
            s_mov_b32 s{sP}, 0
            s_mov_b32 s{sT}, s{sSAVE}
            s_mov_b32 s{sROLE}, {(1 << R_LT4) | ((int(self.o['gramw']) == 2) << R_GR)}
            s_mov_b64 s[{sFULL}:{sFULL+1}], -1
            s_mov_b64 exec, -1
            {l}:""")
        l3 = self.lab("nog")
        A(f"s_cmp_eq_u32 s{sV}, 3\ns_cbranch_scc0 {l3}\ns_setprio 3")
        lp = self.lab("tq"); lr = self.lab("tqr")
        self.stamp(13, both=False)
        if self.prof: A(f"s_mov_b32 s{sST+5}, s{sST+13}")
        A(f"""s_bfe_u32 s{sB}, s{sT}, 0x20001          ; b
        s_lshl_b32 s{sC}, s{sB}, 10
        v_lshrrev_b32 v1, 4, v0
        v_lshlrev_b32 v78, 12, v1
        v_and_b32 v3, 15, v0
        v_lshl_add_u32 v78, v3, 4, v78
        v_add_u32 v78, s{sC}, v78
        s_mul_i32 s{sD}, s{sTAG}, 0x01010101
        v_mov_b32 v72, s{sD}
        v_lshrrev_b32 v73, 8, v72
        v_lshrrev_b32 v74, 16, v72
        v_lshrrev_b32 v75, 24, v72""")
        self.q_lds_addr(79)
        if int(self.o['noq0']) & 2: A("s_branch L_noq0")
        A(f"{lp}:\nv_mov_b32 v1, 0")
        for sg in range(3):
            A(f"""s_lshr_b32 s{sA}, s{sT}, 3
            s_mul_i32 s{sA}, s{sA}, 3
            s_add_u32 s{sA}, s{sA}, {sg}
            s_lshr_b32 s{sB}, s{sA}, 2
            s_mul_i32 s{sB}, s{sB}, 10
            s_lshl_b32 s{sC}, s{sX}, 5
            s_add_u32 s{sB}, s{sB}, s{sC}
            s_lshl_b32 s{sB}, s{sB}, 12
            s_and_b32 s{sA}, s{sA}, 3
            s_lshl_b32 s{sA}, s{sA}, 8
            s_add_u32 s{sB}, s{sB}, s{sA}
            s_add_u32 s{sB}, s{sB}, {RQ[0]}""")
            for i in range(3):
                if i == 2: A("s_mov_b32 exec_hi, 0")
                A(f"buffer_load_dwordx4 {vr(4 + 12*sg + 4*i)}, v78, {srd(SWS)}, s{sB} offen sc1")
                A(f"s_add_u32 s{sB}, s{sB}, {4*Q0SL}" if i < 2 else "s_mov_b64 exec, -1")
        A("s_waitcnt vmcnt(0)")
        for third in (0, 1):
            if third: A("s_mov_b32 exec_hi, 0")
            for sg in range(3):
                for i in ((2,) if third else (0, 1)):
                    r = 4 + 12 * sg + 4 * i
                    for h in (0, 2): A(f"v_xor_b32 v2, v{72+h}, v{r+h}\nv_xor_b32 v3, v{73+h}, v{r+h+1}\nv_or3_b32 v1, v1, v2, v3")
                    for k in range(4): A(f"v_and_b32 v{r+k}, 0xffffff00, v{r+k}")
        for k in range(3):
            for i in range(4): A(f"v_add_f32 v{4+12*k+i}, v{4+12*k+i}, v{12+12*k+i}")
        A(f"s_mov_b64 exec, -1\nv_and_b32 v1, 0xff, v1\nv_cmp_ne_u32 vcc, 0, v1\ns_cbranch_vccnz {lr}")
        self.tail.append(f"{lr}:\ns_sub_u32 s{sTO}, s{sTO}, 1\ns_cbranch_scc1 L_end\ns_branch {lp}")
        for k in range(3):
            r = 4 + 12 * k
            for i in range(4): A(f"v_add_f32 v{r+i}, v{r+i}, v{r+4+i}")
            self.treduce(r, r + 1, r + 2, r + 3)
            A(f"v_cvt_pk_bf16_f32 v{r}, 0, v{r}\nds_write_b16_d16_hi v79, v{r} offset:{L_QL + 128*k}")
        A("L_noq0:")
        self.lds_spin(4, 8)
        A(f"v_mov_b32 v4, 1\nds_write_b32 v5, v4\ns_setprio 0")
        self.end(l3)
        self.stamp(2, both=False)
        self.attn_pre(); self.attn_zero(); self.consts()
        self.lds_spin(0, 1)
        self.xres_read()
        A("s_branch L_attn")
        A("L_start_hi:\ns_setprio 3")
        self.other_srds()
        l = self.lab("x0"); l2 = self.lab("x0")
        A(f"""v_lshlrev_b32 v10, 4, v0
        s_and_b32 s{sB}, s{sV}, 3
        s_lshl_b32 s{sA}, s{sB}, 10
        s_add_u32 m0, s{sA}, {L_X0}
        s_cmp_eq_u32 s{sV}, 4
        buffer_load_dwordx4 v10, {srd(SX0)}, s{sA} offen lds
        s_cbranch_scc0 {l}
        s_mov_b32 m0, {L_X0 + 4096}
        s_movk_i32 s{sA}, 0x1000
        buffer_load_dwordx4 v10, {srd(SX0)}, s{sA} offen lds
        {l}:
        s_cmp_eq_u32 s{sV}, 5
        s_cbranch_scc0 {l2}
        s_mov_b32 m0, {L_XA + 5*XS}
        s_mov_b64 exec, 0xff
        buffer_load_dwordx4 v10, {srd(SWR)}, 0 offen lds
        s_mov_b64 exec, -1
        {l2}:""")
        lq = self.lab("noq"); lq2 = self.lab("noq")
        A(f"s_cmp_ge_u32 s{sT}, 30\ns_cbranch_scc1 {lq}")
        self.dma_addr(6, 12288)
        A(f"s_and_b32 s{sB}, s{sV}, 3\ns_lshl_b32 s{sC}, s{sB}, 7\ns_lshl_b32 s{sB}, s{sB}, 13")
        self.dma(SWQ, 6, 8, 12288, L_WQ, sC, sB)
        A(f"""v_lshrrev_b32 v1, 4, v0
        v_and_b32 v2, 15, v0
        v_mul_u32_u24 v3, 1280, v1
        v_lshl_add_u32 v10, v2, 4, v3
        v_lshl_add_u32 v11, v2, 3, v3
        s_lshl_b32 s{sA}, s{sAI}, 7
        v_add_u32 v11, s{sA}, v11
        v_mul_u32_u24 v12, {XS}, v1
        v_lshl_add_u32 v12, v2, 3, v12
        v_lshlrev_b32 v13, 3, v2
        s_waitcnt vmcnt(8)""")
        self.lds_inc(4); self.lds_spin(4, 4)
        for i in range(5): A(f"ds_read_b128 {vr(16+4*i)}, v10 offset:{L_X0 + 256*i}")
        A(f"ds_read_b64 v[36:37], v11 offset:{L_X0}")
        A("v_mov_b32 v40, 0x3f803f80\nv_mov_b32 v41, 0x3f803f80\nv_mov_b32 v42, 0\nv_mov_b32 v43, 0\ns_waitcnt lgkmcnt(0)")
        for i in range(20): A(f"v_dot2_f32_bf16 v42, v{16+i}, v{16+i}, v42\nv_dot2_f32_bf16 v43, v{16+i}, v40, v43")
        self.mix(self.red_kb(42, 43, 12, 16) if 'g' in self.o['few'] else self.red16([42, 43])); self.mix(self.lnstats(42, 43, 44, 45, 46))
        A("v_lshlrev_b32 v16, 16, v36\nv_and_b32 v17, 0xffff0000, v36\nv_lshlrev_b32 v18, 16, v37\nv_and_b32 v19, 0xffff0000, v37")
        for i in range(4): A(f"v_sub_f32 v{16+i}, v{16+i}, v44")
        for i in range(4): A(f"v_cvt_pk_bf16_f32 v{16+i}, 0, v{16+i}")
        for i in range(4): A(f"v_mul_f32 v{16+i}, v{16+i}, v45")
        A(f"""v_cvt_pk_bf16_f32 v16, v16, v17
        v_cvt_pk_bf16_f32 v17, v18, v19
        ds_write_b64 v12, v[16:17] offset:{L_XA}
        ds_write_b64 v13, v[40:41] offset:{L_XA + 4*XS}""")
        A(f"s_and_b32 s{sA}, s{sV}, 3\ns_lshl_b32 s{sA}, s{sA}, 13\ns_add_u32 s{sA}, s{sA}, {L_WQ}")
        self.tr_addr(52, sA)
        for t in range(1, 4): A(f"v_xor_b32 v{52+t}, {32*t}, v52")
        self.xa_addr(14)
        A(f"""s_and_b32 s{sA}, s{sV}, 3
        s_lshl_b32 s{sB}, s{sA}, 10
        v_and_b32 v2, 15, v0
        v_lshlrev_b32 v72, 8, v2
        v_and_b32 v1, 0x30, v0
        v_add3_u32 v72, v72, v1, s{sB}
        v_lshl_add_u32 v73, v0, 4, s{sB}
        v_lshlrev_b32 v74, 6, v1
        v_lshl_add_u32 v74, v2, 4, v74
        s_lshl_b32 s{sA}, s{sA}, 8
        v_add_u32 v75, s{sA}, v1
        s_lshl_b32 s{sE}, s{sSIG}, 12
        s_add_u32 s{sE}, s{sE}, s{sA}
        s_add_u32 s{sE}, s{sE}, {RQ[0]}
        s_mul_i32 s{sF}, s{sTAG}, 0x01010101
        v_mov_b32 v76, 0xff
        s_waitcnt vmcnt(0) lgkmcnt(0)""")
        self.stamp(12, both=False)
        for t in range(4): self.wfrags(16 + 8 * t, 52 + t, 2)
        self.xfrags(14)
        A("s_waitcnt lgkmcnt(0)")
        for s in range(2):
            for t in range(4):
                A(f"v_mfma_f32_16x16x32_bf16 {vr(48+4*t)}, {vr(16+8*t+4*s)}, {vr(4+4*s)}, {'0' if s == 0 else vr(48+4*t)}")
        for i in range(4):
            for t in range(4): A(f"v_bfi_b32 v{16+4*t+i}, v76, s{sF}, v{48+4*t+i}")
            A(f"s_lshr_b32 s{sF}, s{sF}, 8")
        self.exec_mask(0x000f000f000f000f)
        for t in range(4): A(f"ds_write_b128 v72, {vr(16+4*t)} offset:{L_OC + 64*t}")
        self.exec_mask(0x0010001000100010)
        for t in range(4): A(f"ds_write_b128 v75, {vr(48+4*t)} offset:{L_CS + 64*t}")
        self.exec_full()
        A(f"""s_waitcnt lgkmcnt(0)
        ds_read_b128 v[16:19], v73 offset:{L_OC}
        s_waitcnt lgkmcnt(0)""")
        if not int(self.o['noq0']) & 1: A(f"buffer_store_dwordx4 v[16:19], v74, {srd(SWS)}, s{sE} offen sc1")
        A(f"""s_branch {lq2}
        {lq}:
        s_waitcnt vmcnt(0)""")
        self.lds_inc(4); self.lds_spin(4, 4)
        A(f"{lq2}:")
        self.xres_read()
        A("s_waitcnt lgkmcnt(0)")
        self.lds_inc(4)
        self.stamp(14, both=False)
        sp = True
        late = self.o['clr'] == 'late'
        l = self.role(R_456)
        l2 = self.lab("nocl"); lb = self.lab("clb"); lc = self.lab("clc"); li = self.lab("cli")
        self.clr_begin()
        A(f"s_cmp_ge_u32 s{sT}, 30\ns_cbranch_scc1 {li}\ns_cmp_eq_u32 s{sV}, 5\ns_cbranch_scc1 {lb}\ns_cmp_eq_u32 s{sV}, 6\ns_cbranch_scc1 {lc}")
        self.clr('X', 0); self.clr('Y', 0)
        if not late: self.clr('X', 1); self.clr('Y', 1); self.clr('O', 1)
        self.clr('O', 0)
        A(f"s_branch {l2}\n{lb}:")
        self.clr('G', 0)
        if not late: self.clr('G', 1)
        A(f"s_branch {l2}\n{lc}:")
        self.clr('C', 0)
        if not late: self.clr('Q', 1)
        A(f"s_branch {l2}\n{li}:\ns_cmp_eq_u32 s{sV}, 4\ns_cbranch_scc0 {l2}")
        self.clr('O', 0); self.clr('O', 1)
        A(f"""{l2}:
        s_mov_b64 exec, -1
        s_getreg_b32 s{sXCC}, hwreg(HW_REG_XCC_ID, 0, 4)
        v_mov_b32 v6, s{sTAG}
        v_mov_b32 v7, s{sXCC}
        v_mov_b32 v8, s{sTAG}
        v_mov_b32 v9, s{sXCC}
        v_mov_b32 v4, {L_FL}
        v_mov_b32 v5, 1
        s_lshl_b32 s{sA}, s{sSIG}, 7
        s_add_u32 s{sA}, s{sA}, {RF}
        s_waitcnt vmcnt(0)""")
        l3 = self.lab("nofl")
        if sp: A(f"""s_mov_b64 exec, 1
        ds_add_rtn_u32 v11, v4, v5 offset:8
        s_waitcnt lgkmcnt(0)
        v_cmp_eq_u32 vcc, 2, v11
        s_cbranch_vccz {l3}""")
        A(f"""s_mov_b64 exec, 0xff
        buffer_store_dwordx4 v[6:9], v10, {srd(SWS)}, s{sA} offen sc1
        {l3}:
        s_mov_b64 exec, -1""")
        self.end(l)
        self.stamp(1, both=False)
        A("s_setprio 0")
        self.k_loads(); self.v_loads(int(self.o['tqat']) if self.o['tq'] or int(self.o['tqwo']) else None)
        self.attn_pre(); self.attn_zero(); self.consts()
        self.lds_spin(0, 1)

    def region(self, s, R):
        self.A(f"s_mul_i32 s{s}, s{sP}, {R[1]-R[0]}")
        if R[0]: self.A(f"s_add_u32 s{s}, s{s}, {R[0]}")

    def parked(self):
        for i in range(6): self.A(f"ds_read_b128 {vr(48+4*i)}, v86 offset:{1024*i}")
    def attention(self):
        A = self.A
        A("s_branch L_attn")
        if int(self.o['al']): A(f".p2align {self.o['al']}")
        for _ in range(int(self.o['alo'])): A("s_nop 0")
        A("L_attn_bar:\ns_waitcnt vmcnt(0) lgkmcnt(0)")
        self.barrier('Q')
        A("L_attn:")
        if int(self.o['prio']) == 2:
            l = self.role(R_GE4); A("s_setprio 1"); self.end(l)
        pk = int(self.o['pk']); mle = int(self.o['mle'])
        order = [(72, 4), (73, 8), (76, 20), (74, 12), (75, 16), (77, 24)]
        for a, d in order: A(f"ds_read_b128 {vr(d)}, v{a} offset:{L_QL}")
        self.region(sE, RO)
        A(f"""s_mul_i32 s{sB}, s{sSIG}, {OSL}
        s_add_u32 s{sE}, s{sE}, s{sB}
        s_and_b32 s{sC}, s{sV}, 3
        s_lshl_b32 s{sC}, s{sC}, 8
        s_add_u32 s{sD}, s{sC}, s{sE}
        s_mov_b32 s{sA}, 0x{ODD & 0xffffffff:x}
        s_mov_b32 s{sB}, 0x{ODD & 0xffffffff:x}
        s_waitcnt vmcnt({18 if pk else 24})""")
        if pk: self.parked()
        self.stamp(3)
        for n, (a, d) in enumerate(order):
            A(f"s_waitcnt lgkmcnt({(11 if pk else 5)-n})")
            for h in range(2):
                if a < 76: g = 4 * h + (a - 72); b = 12 * (g & ~1) + 8 * (g & 1)
                else: g = 4 * h + 2 * (a - 76); b = 12 * g + 16
                A(f"v_smfmac_f32_16x16x64_bf16 {vr(28+4*h)}, {vr(d)}, {ar(b,8)}, v78")
        self.fs('k1')
        if int(self.o['prio']) & 8: A(f"s_lshr_b32 s{sF}, s{sV}, 2\ns_cmp_eq_u32 s{sF}, 0\ns_cbranch_scc1 L_noprio\ns_setprio 1\nL_noprio:")
        fill = [f"v_lshrrev_b32 v1, 4, v0", f"v_and_b32 v2, 15, v0", f"v_mul_u32_u24 v12, 3072, v1", f"v_lshlrev_b32 v13, 3, v1",
                f"v_lshl_add_u32 v12, v2, 4, v12", f"v_lshlrev_b32 v15, 4, v2", f"v_add_u32 v12, s{sC}, v12", f"v_lshl_add_u32 v15, v1, 2, v15",
                f"v_mov_b32 v14, 0", f"v_add_u32 v15, s{sD}, v15", f"v_lshl_add_u32 v16, v0, 4, s{sE}", f"v_and_b32 v17, 7, v0",
                f"v_lshlrev_b32 v17, 2, v17", f"s_lshl_b32 s{sF}, s{sV}, 2", (f"v_add_u32 v35, s{sF}, v19" if int(self.o['w2']) else f"v_mov_b32 v35, s{sF}")]
        if int(self.o['w2']): fill.insert(1, f"v_mov_b32 v19, {L_ML}")
        late_fill = []
        if int(self.o['fl']): late_fill = fill[:13]; fill = fill[13:] + [""] * 13
        if pk:
            fill += ["v_bfe_u32 v18, v0, 3, 1", "v_and_b32 v19, 0x30, v0", "v_lshlrev_b32 v18, 3, v18", "v_lshl_add_u32 v18, v19, 2, v18"]
            for _ in range(6): A(fill.pop(0))
        else:
            A("s_waitcnt vmcnt(18)"); self.parked(); A(fill.pop(0))
        fin = lambda d: [f"v_add_f32 v{d}, v{d}, v{d+1}", f"v_add_f32 v{d+2}, v{d+2}, v{d+3}",
                         f"v_cndmask_b32 v{d}, v{d}, v{d+2}, s[{sA}:{sB}]",
                         f"v_add_f32_dpp v{d}, v{d}, v{d} quad_perm:[1,0,3,2] {DPP}",
                         f"v_cvt_pk_bf16_f32 v{d}, 0, v{d}", f"v_mul_f32 v{d}, s{sSCALE}, v{d}",
                         f"v_cvt_pk_bf16_f32 v{d}, 0, v{d}", f"v_mul_f32 v{d}, s{sLOG2E}, v{d}"]
        f0, f1 = fin(28), fin(32)
        for k in range(8):
            if k == 3: A(fill.pop(0))
            A(f0[k]); A(f1[k])
        A("v_max_f32 v29, v28, v32")
        for p in (f"quad_perm:[2,3,0,1] {DPP}", f"row_half_mirror {DPP}", f"row_mirror {DPP}", "row_bcast:15 row_mask:0xa bank_mask:0xf", "row_bcast:31 row_mask:0xc bank_mask:0xf"):
            A(fill.pop(0)); A(fill.pop(0)); A(f"v_max_f32_dpp v29, v29, v29 {p}")
        A(fill.pop(0)); A(f"v_readlane_b32 s{sM}, v29, 63")
        self.fs('k2')
        while fill: A(fill.pop(0))
        A(f"""v_subrev_f32 v28, s{sM}, v28
        v_subrev_f32 v32, s{sM}, v32
        v_exp_f32 v28, v28
        v_exp_f32 v32, v32
        v_cvt_pk_bf16_f32 v30, v28, v28
        v_cvt_pk_bf16_f32 v31, v32, v32
        v_mov_b32 v34, s{sM}""")
        lsum = ["v_add_f32 v33, v28, v32"] + \
               [f"v_add_f32_dpp v33, v33, v33 {p}" for p in (f"quad_perm:[2,3,0,1] {DPP}", f"row_half_mirror {DPP}", f"row_mirror {DPP}",
                                                            "row_bcast:15 row_mask:0xa bank_mask:0xf", "row_bcast:31 row_mask:0xc bank_mask:0xf")]
        bp = int(self.o['at2'])
        def abuild(S):
            b = 4 + 4 * (S & 1); P = 30 + (S >> 1); jj = S & 1
            if bp and S: return [f"v_and_b32 v{b+2*x+m}, v{20+2*(S-1)+x}, v{84+m}" for x in range(2) for m in range(2)]
            return [f"v_and_b32_dpp v{b+2*x+m}, v{P}, v{84+m} row_newbcast:{8*jj+4*x+2*c} row_mask:0xf bank_mask:{'0x3' if c == 0 else '0xc'}"
                    for c in range(2) for x in range(2) for m in range(2)]
        bperm = lambda S: [f"ds_bpermute_b32 v{20+2*(S-1)+x}, v18, v{30+(S>>1)} offset:{32*(S&1)+16*x}" for x in range(2)]
        if bp: self.mix(bperm(1))
        for x in abuild(0): A(x)
        if bp: self.mix(bperm(2) + bperm(3))
        if int(self.o['prio']) & 8: A("s_setprio 0")
        self.fs('k3')
        for S in range(4):
            nxt = abuild(S + 1) if S < 3 else []
            if S: A(f"s_waitcnt vmcnt({18 - 6*S})")
            if S == 3 and mle:
                assert not lsum
                self.exec_mask(1 << 63)
                A(f"ds_write_b32 v35, v34 offset:{L_ML}\nds_write_b32 v35, v33 offset:{L_ML+32}")
                self.exec_full()
            for s in range(3):
                vv = vr(48 + 8 * s, 8) if S == 0 else vr(VBASE + (S - 1) * 24 + 8 * s, 8)
                if S == 0 and s == 0: A(f"s_waitcnt lgkmcnt({6 if bp else 0})")
                A(f"v_smfmac_f32_16x16x64_bf16 {vr(36+4*s)}, {vr(4+4*(S&1))}, {vv}, v79")
                if bp:
                    if lsum and s != 1: A(lsum.pop(0))
                    if s == 1 and S < 2: A(f"s_waitcnt lgkmcnt({4 if S == 0 else 0})")
                    if s == 1: self.mix(nxt)
                else:
                    for _ in range(3):
                        if nxt: A(nxt.pop(0))
                    if lsum and s != 1: A(lsum.pop(0))
        self.fs('k4')
        if not mle:
            self.exec_mask(1 << 63)
            if int(self.o['w2']): A(f"ds_write2_b32 v35, v34, v33 offset0:0 offset1:8")
            else: A(f"ds_write_b32 v35, v34 offset:{L_ML}\nds_write_b32 v35, v33 offset:{L_ML+32}")
        self.exec_mask(0xFF00FF0000FF00FF)
        for s in range(3): A(f"ds_write_b128 v87, {vr(36+4*s)} offset:{L_OC + 256*s}")
        self.exec_full()
        self.mix(late_fill)
        l = self.role(R_LT4)
        l2 = self.pass0(); l3 = self.lab("nm")
        A(f"s_cbranch_execz {l3}")
        self.first_pass_checks()
        if self.o['tq']:
            l4 = self.lab("ntq"); A(f"s_cmp_ge_u32 s{sT}, 30\ns_cbranch_scc1 {l4}")
            self.lds_spin(16, 4)
            self.w_dma_gud(sV, self.o['tq'])
            self.end(l4)
        if int(self.o['tqwo']):
            n = int(self.o['tqwo']) // 4
            l4 = self.lab("ntq"); A(f"s_cmp_ge_u32 s{sT}, 30\ns_cbranch_scc1 {l4}")
            self.dma_addr(6, 1280)
            A(f"s_mul_i32 s{sB}, s{sV}, {n}\ns_add_u32 s{sB}, s{sB}, {32 - 4*n}\ns_mul_i32 s{sC}, s{sB}, {8*1280}\ns_lshl_b32 s{sB}, s{sB}, 10")
            self.lds_spin(16, 4)
            self.dma(SWO, 6, n, 1280, L_WO, sC, sB, int(self.o['tqlim']))
            self.end(l4)
        self.end(l3); self.end(l2)
        if int(self.o['wb']) == 2:
            l2 = self.lab("wb"); A(f"s_cmp_eq_u32 s{sT}, 30\ns_cbranch_scc0 {l2}\ns_lshl_b32 s{sA}, s{sV}, 1\ns_or_b32 s{sA}, s{sA}, s{sP}\ns_cmp_eq_u32 s{sA}, 1\ns_cbranch_scc0 {l2}\nbuffer_wbl2 sc1\n{l2}:")
        self.end(l)
        A("s_waitcnt lgkmcnt(0)")
        if int(self.o['prio']) & 3: A("s_setprio 0")
        self.stamp(4)
        if self.o['t2']:
            l = self.pass0(); A("s_memrealtime s[66:67]"); self.end(l)
        self.barrier('A')
        l = self.role(R_GE4)
        if int(self.o['prio']) & 4: A("s_setprio 1")
        A(f"ds_read_b32 v47, v14 offset:{L_FL+12}")
        l2 = self.role(R_456)
        A(f"""ds_read_b128 v[20:23], v14 offset:{L_ML}
        ds_read_b128 v[24:27], v14 offset:{L_ML+16}
        ds_read_b64 v[18:19], v13 offset:{L_ML}
        ds_read_b128 v[48:51], v12 offset:{L_OC}
        ds_read_b128 v[52:55], v12 offset:{L_OC+768}
        ds_read_b128 v[56:59], v12 offset:{L_OC+1536}
        ds_read_b128 v[60:63], v12 offset:{L_OC+2304}
        s_waitcnt lgkmcnt(5)
        v_max3_f32 v20, v20, v21, v22
        v_max3_f32 v24, v24, v25, v26
        v_readfirstlane_b32 s{sFAST}, v47
        v_max3_f32 v20, v20, v23, v27
        v_max_f32 v20, v20, v24
        s_waitcnt lgkmcnt(2)
        v_sub_f32 v18, v18, v20
        v_sub_f32 v19, v19, v20
        v_add_f32 v48, v48, v52
        v_exp_f32 v18, v18
        v_add_f32 v49, v49, v53
        v_exp_f32 v19, v19
        v_add_f32 v50, v50, v54
        v_add_f32 v51, v51, v55
        s_waitcnt lgkmcnt(0)""")
        for i in range(4): A(f"v_add_f32 v{56+i}, v{56+i}, v{60+i}\nv_mul_f32 v{48+i}, v18, v{48+i}")
        for i in (0, 2, 1, 3): A(f"v_fmac_f32 v{48+i}, v19, v{56+i}")
        self.treduce(48, 49, 50, 51)
        self.stores(f"buffer_store_dword v48, v15, {srd(SWS)}, 0 offen{{f}}", True, 'A')
        self.end(l2)
        l2 = self.role(R_7)
        A(f"""ds_read_b32 v4, v17 offset:{L_ML}
        ds_read_b32 v5, v17 offset:{L_ML+32}
        s_waitcnt lgkmcnt(1)
        v_max_f32_dpp v6, v4, v4 quad_perm:[1,0,3,2] {DPP}
        v_readfirstlane_b32 s{sFAST}, v47
        v_max_f32_dpp v6, v6, v6 quad_perm:[2,3,0,1] {DPP}
        v_max_f32_dpp v6, v6, v6 row_half_mirror {DPP}
        v_sub_f32 v4, v4, v6
        v_exp_f32 v4, v4
        s_waitcnt lgkmcnt(0)
        v_mul_f32 v7, v4, v5""")
        self.mix(self.red16([7])[:3])
        self.exec_mask(0xff)
        self.stores(f"buffer_store_dwordx4 v[6:9], v16, {srd(SWS)}, 0 offen offset:768{{f}}", True, 'M')
        self.exec_full()
        l3 = self.pass0(); l4 = self.lab("ncs")
        A(f"""s_cmp_ge_u32 s{sT}, 30
        s_cbranch_scc1 {l4}
        v_lshlrev_b32 v1, 4, v0
        ds_read_b128 v[12:15], v1 offset:{L_CS}
        s_mul_i32 s{sA}, s{sSIG}, {QSL}
        s_add_u32 s{sA}, s{sA}, {RQ[1] + 4224}
        s_waitcnt lgkmcnt(0)""")
        self.stores(f"buffer_store_dwordx4 v[12:15], v1, {srd(SWS)}, s{sA} offen{{f}}", True)
        self.end(l4); self.end(l3); self.end(l2)
        if int(self.o['prio']) & 4: A("s_setprio 0")
        self.end(l)
        A(f"s_cmp_ge_u32 s{sT}, 30\ns_cbranch_scc1 L_idle")

    def first_pass_checks(self):
        A = self.A
        l = self.lab("nochk"); lp = self.lab("chk"); lr = self.lab("chkr")
        A(f"""s_cmp_eq_u32 s{sV}, 0
        s_cbranch_scc0 {l}
        v_mov_b32 v1, {L_FL}
        v_mov_b32 v2, s{sTAG}
        v_lshlrev_b32 v3, 9, v0
        s_getreg_b32 s{sXCC}, hwreg(HW_REG_XCC_ID, 0, 4)
        s_mov_b32 s{sA}, {RF}
        {lp}:
        buffer_load_dwordx2 v[4:5], v3, {srd(SWS)}, s{sA} offen sc1
        buffer_load_dwordx2 v[6:7], v3, {srd(SWS)}, s{sA} offen offset:128 sc1
        buffer_load_dwordx2 v[8:9], v3, {srd(SWS)}, s{sA} offen offset:256 sc1
        buffer_load_dwordx2 v[10:11], v3, {srd(SWS)}, s{sA} offen offset:384 sc1
        s_waitcnt vmcnt(0)
        v_xor_b32 v4, v4, v2
        v_xor_b32 v6, v6, v2
        v_xor_b32 v8, v8, v2
        v_xor_b32 v10, v10, v2
        v_or3_b32 v4, v4, v6, v8
        v_or_b32 v4, v4, v10
        v_cmp_ne_u32 vcc, 0, v4
        s_cbranch_vccnz {lr}
        v_xor_b32 v5, s{sXCC}, v5
        v_xor_b32 v7, s{sXCC}, v7
        v_xor_b32 v9, s{sXCC}, v9
        v_xor_b32 v11, s{sXCC}, v11
        v_or3_b32 v5, v5, v7, v9
        v_or_b32 v5, v5, v11
        v_cmp_eq_u32 vcc, 0, v5
        s_lshl_b32 s{sB}, s{sX}, 3
        s_lshr_b64 s[{sA}:{sB}], vcc, s{sB}
        s_and_b32 s{sA}, s{sA}, 0xff
        s_cmp_eq_u32 s{sA}, 0xff
        s_cselect_b32 s{sA}, 1, 0
        v_mov_b32 v4, s{sA}
        ds_write_b32 v1, v4 offset:12
        s_cmp_eq_u32 s2, 0
        s_cbranch_scc0 {l}
        v_mov_b32 v3, 0
        s_mov_b32 s{sA}, {RE}
        s_mov_b64 exec, 1
        buffer_store_dword v2, v3, {srd(SWS)}, s{sA} offen sc1
        s_mov_b64 exec, -1
        {l}:""")
        self.tail.append(f"{lr}:\ns_sleep {self.o['bsleep']}\ns_sub_u32 s{sTO}, s{sTO}, 1\ns_cbranch_scc1 L_end\ns_branch {lp}")
        if self.o['prewarm'] and self.o['pwo']:
            l = self.lab("npw")
            A(f"""s_cmp_eq_u32 s{sV}, 1
            s_cbranch_scc0 {l}
            v_lshlrev_b32 v1, 4, v0
            s_mul_i32 s{sA}, s{sSIG}, {QSL}
            s_add_u32 s{sA}, s{sA}, {RQ[1] + 4224}
            buffer_load_dwordx4 v[60:63], v1, {srd(SWS)}, s{sA} offen sc1
            s_mov_b32 exec_hi, 0xffffff
            buffer_load_dwordx4 v[60:63], v1, {srd(SWS)}, s{sE} offen sc1
            s_mov_b64 exec, -1
            {l}:""")

    def afrag_addr(self, d, stride):
        self.A(f"v_and_b32 v1, 3, v0\nv_lshrrev_b32 v2, 4, v0\nv_mul_u32_u24 v1, {stride}, v1\nv_lshl_add_u32 v{d}, v2, 4, v1")
    def pub_addr(self, d, R):
        self.region(sC, R)
        self.A(f"s_lshl_b32 s{sA}, s{sSLOT}, 10\ns_lshl_b32 s{sB}, s{sV}, 8\ns_add_u32 s{sA}, s{sA}, s{sB}\ns_add_u32 s{sA}, s{sA}, s{sC}\nv_lshl_add_u32 v{d}, v0, 4, s{sA}") if not self.o['xbf'] else \
        self.A(f"s_lshl_b32 s{sA}, s{sSLOT}, 9\ns_lshl_b32 s{sB}, s{sV}, 7\ns_add_u32 s{sA}, s{sA}, s{sB}\ns_add_u32 s{sA}, s{sA}, s{sC}\nv_lshl_add_u32 v{d}, v0, 3, s{sA}")
    def pub_store(self, addr, tag):
        if self.o['xbf']:
            self.A("v_cvt_pk_bf16_f32 v68, v68, v69\nv_cvt_pk_bf16_f32 v69, v70, v71")
            self.exec_mask(0xffff)
            self.stores(f"buffer_store_dwordx2 v[68:69], v{addr}, {srd(SWS)}, 0 offen{{f}}", False, tag)
        else:
            self.exec_mask(0xffff)
            self.stores(f"buffer_store_dwordx4 v[68:71], v{addr}, {srd(SWS)}, 0 offen{{f}}", False, tag)
        self.exec_full()
    def unpack_sum(self, dst, srcs):
        out = []
        for k, r in enumerate(srcs):
            for i in range(4):
                out.append(f"v_dot2_f32_bf16 v{dst+i}, v{r + (i >> 1)}, s{sLO if i % 2 == 0 else sHI}, {'0' if k == 0 else 'v%d' % (dst+i)}")
        return out

    def wo_pre1(self):
        A = self.A
        self.region(sD, RO)
        A(f"""s_lshl_b32 s{sA}, s{sRI}, 2
        s_add_u32 s{sA}, s{sA}, s{sV}
        s_mul_i32 s{sB}, s{sA}, 86
        s_lshr_b32 s{sB}, s{sB}, 8
        s_mul_i32 s{sC}, s{sB}, 3
        s_sub_u32 s{sC}, s{sA}, s{sC}
        s_lshl_b32 s{sB}, s{sB}, 3
        s_lshl_b32 s{sA}, s{sX}, 5
        s_add_u32 s{sB}, s{sB}, s{sA}
        s_mul_i32 s{sB}, s{sB}, {OSL}
        s_add_u32 s{sB}, s{sB}, s{sD}
        v_lshrrev_b32 v1, 4, v0
        v_and_b32 v2, 15, v0
        v_mul_u32_u24 v72, {2*OSL}, v1
        v_add_u32 v72, s{sB}, v72
        s_lshl_b32 s{sC}, s{sC}, 8
        v_lshl_add_u32 v73, v2, 4, v72
        v_add_u32 v73, s{sC}, v73""")
        if 'o' in self.o['few']: A(f"v_mov_b32 v3, {OOB}\nv_cmp_eq_u32 vcc, 0, v2\nv_cndmask_b32 v72, v3, v72, vcc")
        A(f"""s_lshl_b32 s{sA}, s{sV}, 7
        v_mul_u32_u24 v74, {OS}, v1
        v_lshl_add_u32 v74, v2, 3, v74
        v_add_u32 v74, s{sA}, v74""")
    def wo_pre2(self):
        A = self.A
        A(f"v_mov_b32 v1, 0\nds_read_b32 v47, v1 offset:{L_FL+12}\ns_mov_b32 s{sA}, {L_WO}")
        self.tr_addr(75, sA)
        A(f"s_lshl_b32 s{sA}, s{sV}, 5\nv_xor_b32 v75, s{sA}, v75")
        k = 8 - int(self.o['tqwo']) // 4
        self.wfrags(4, 75, k)
        if k < 8:
            A("v_mov_b32 v77, v75")
            l = self.lab("wl"); A(f"s_cmp_eq_u32 s{sP}, 0\ns_cbranch_scc1 {l}"); self.wfrags(4 + 4 * k, 75, 8 - k, k * 4096); self.end(l)
        self.afrag_addr(75, OS); self.pub_addr(76, RX)
        A(f"s_waitcnt lgkmcnt({min(15, 2*k)})\nv_readfirstlane_b32 s{sFAST}, v47")

    def wo_stage(self):
        A = self.A
        l = self.role(R_LT4)
        self.wo_pre1()
        if 'o' in self.o['bar']: self.wo_pre2(); A("s_barrier")
        self.sync(self.o['sync_o'])
        def loadsA(): A(f"""buffer_load_dwordx2 v[52:53], v72, {srd(SWS)}, 0 offen offset:768 sc1
        buffer_load_dwordx2 v[54:55], v72, {srd(SWS)}, 0 offen offset:{768+OSL} sc1""")
        def loads(): A(f"""buffer_load_dwordx4 v[56:59], v73, {srd(SWS)}, 0 offen sc1
        buffer_load_dwordx4 v[60:63], v73, {srd(SWS)}, 0 offen offset:{OSL} sc1""")
        shadow = None if 'o' in self.o['bar'] else self.wo_pre2
        chain = """v_sub_f32 v66, v54, v52
            v_exp_f32 v67, v66
            v_exp_f32 v66, -v66
            v_fma_f32 v67, v67, v55, v53
            v_fma_f32 v66, v66, v53, v55
            v_rcp_f32 v67, v67
            v_rcp_f32 v66, v66""".split('\n')
        if 'o' in self.o['few']: chain += [f"v_mov_b32_dpp v67, v67 row_newbcast:0 {DPP}", f"v_mov_b32_dpp v66, v66 row_newbcast:0 {DPP}"]
        def red(ch):
            self.mix(ch)
            for i in range(4): A(f"v_mul_f32 v{56+i}, v67, v{56+i}")
            for i in range(4): A(f"v_fmac_f32 v{56+i}, v66, v{60+i}")
            A("v_add_f32 v64, v56, v57\nv_add_f32 v65, v58, v59\nv_cvt_pk_bf16_f32 v56, v56, v57\nv_cvt_pk_bf16_f32 v57, v58, v59")
        self.poll(loads, range(52, 64), red, (64, 65), tag='o', shadow=shadow, pre=(loadsA, (53, 55), chain), post=lambda: A(f"ds_write_b64 v74, v[56:57] offset:{L_OA}"))
        lgo = self.lab("wogo")
        k = 8 - int(self.o['tqwo']) // 4
        def variant(first):
            A("s_waitcnt lgkmcnt(0)")
            self.stamp(5)
            self.barrier('O')
            seq = []
            for s in range(8):
                if first and s >= k: self.wfrags(4 + 4 * s, 77, 1, s * 4096); seq += [s, s]
                A(f"ds_read_b128 {vr(36+4*s)}, v75 offset:{L_OA + 64*s}"); seq.append(s)
            for s in range(8):
                A(f"s_waitcnt lgkmcnt({min(15, sum(x > s for x in seq))})\nv_mfma_f32_16x16x32_bf16 v[68:71], {vr(36+4*s)}, {vr(4+4*s)}, {'0' if s == 0 else 'v[68:71]'}")
            self.pub_store(76, 'O')
            if first and 'w' in self.o['bar']: A("s_barrier")
            A(f"s_branch {lgo}")
        if k < 8:
            lp = self.pass0(); variant(True); self.end(lp)
        variant(False)
        self.end(l)
        if 'o' in self.o['bar']: A("s_barrier")
        l = self.pass0(); self.cq_gather(False); self.end(l)
        self.barrier('O')
        l = lgo; l2 = self.pass0()
        if 'w' in self.o['bar']: A("s_barrier")
        nlate = 6 if self.o['defer'] else 0
        def late_clr():
            l3 = self.lab("nm"); l5, l6, l7_ = self.lab("lc"), self.lab("lc"), self.lab("lc")
            A(f"s_cbranch_execz {l3}"); self.clr_begin()
            A(f"s_cmp_eq_u32 s{sV}, 5\ns_cbranch_scc1 {l5}\ns_cmp_eq_u32 s{sV}, 6\ns_cbranch_scc1 {l6}\ns_cmp_eq_u32 s{sV}, 7\ns_cbranch_scc1 {l3}")
            self.clr('X', 1); self.clr('Y', 1); self.clr('O', 1)
            A(f"s_branch {l3}\n{l5}:"); self.clr('G', 1)
            A(f"s_branch {l3}\n{l6}:"); self.clr('Q', 1)
            self.end(l3)
        def late():
            if self.o['dwo']:
                l3 = self.lab("nm"); A(f"s_cbranch_execz {l3}\ns_and_b32 s{sD}, s{sV}, 3"); self.w_dma_gud(sD, self.o['dwo']); self.end(l3)
        l7 = self.role(R_7)
        if self.o['prewarm']:
            self.mem(f"""v_lshlrev_b32 v1, 4, v0
            s_mul_i32 s{sA}, s{sSIG}, {GSL}
            s_add_u32 s{sA}, s{sA}, {RG[0]}
            buffer_load_dwordx4 v[60:63], v1, {srd(SWS)}, s{sA} offen sc1
            buffer_load_dwordx4 v[60:63], v1, {srd(SWS)}, s{sA} offen offset:1024 sc1
            s_mov_b32 exec_hi, 0xff
            buffer_load_dwordx4 v[60:63], v1, {srd(SWS)}, s{sA} offen offset:2048 sc1
            s_mov_b32 exec_hi, -1""")
        self.end(l7)
        late()
        if self.o['clr'] == 'late': late_clr()
        self.end(l2); self.end(l)
        self.stamp(6)

    def x_gather_pre(self, R):
        self.region(sC, R)
        h = 1 if self.o['xbf'] else 0
        self.A(f"""s_lshl_b32 s{sA}, s{sAI}, {10-h}
        s_lshl_b32 s{sB}, s{sV}, {7-h}
        s_add_u32 s{sA}, s{sA}, s{sB}
        s_add_u32 s{sA}, s{sA}, s{sC}
        v_lshrrev_b32 v1, 3, v0
        v_and_b32 v2, 7, v0
        v_mul_u32_u24 v28, {10240 >> h}, v1
        v_lshl_add_u32 v28, v2, {4-h}, v28
        v_add_u32 v28, s{sA}, v28
        v_lshrrev_b32 v1, 4, v0
        v_mul_u32_u24 v29, {XS}, v1
        v_lshl_add_u32 v29, v2, 1, v29
        s_lshl_b32 s{sA}, s{sV}, 4
        v_add_u32 v29, s{sA}, v29""")
    def x_gather(self, tag, shadow):
        A = self.A
        bf = self.o['xbf']
        def loads():
            for i, r in enumerate(("0", f"s{sK1}", f"s{sK2}")):
                A(f"buffer_load_dwordx2 {vr(52+2*i,2)}, v28, {srd(SWS)}, {r} offen sc1" if bf else f"buffer_load_dwordx4 {vr(48+4*i)}, v28, {srd(SWS)}, {r} offen sc1")
        def red():
            if bf: self.mix(self.unpack_sum(48, [52, 54, 56]))
            else:
                for i in range(4): A(f"v_add_f32 v{48+i}, v{48+i}, v{52+i}")
                for i in (0, 2, 1, 3): A(f"v_add_f32 v{48+i}, v{48+i}, v{56+i}")
            self.treduce(48, 49, 50, 51)
            A(f"v_add_f32_dpp v48, v48, v48 row_ror:8 {DPP}\nv_cvt_pk_bf16_f32 v49, 0, v48")
        self.poll(loads, range(52, 58) if bf else range(48, 60), red, (48, 48), tag=tag, shadow=shadow)

    def gu_stage(self):
        A = self.A
        A(f"s_lshr_b32 s{sA}, s{sV}, 2\ns_lshl_b32 s{sA}, s{sA}, 13\ns_add_u32 s{sA}, s{sA}, {L_WG}")
        self.tr_addr(35, sA)
        A(f"s_and_b32 s{sA}, s{sV}, 3\ns_lshl_b32 s{sA}, s{sA}, 5\nv_xor_b32 v35, s{sA}, v35")
        if self.o['defer']:
            l = self.lab("gw"); A(f"s_cmp_eq_u32 s{sP}, 0\ns_cbranch_scc1 {l}"); self.wfrags(12, 35, 2); self.end(l)
        else: self.wfrags(12, 35, 2)
        self.x_gather_pre(RX)
        self.xa_addr()
        self.region(sC, RG)
        A(f"""s_mul_i32 s{sA}, s{sSIG}, {GSL}
        s_add_u32 s{sA}, s{sA}, s{sC}
        s_lshl_b32 s{sB}, s{sV}, {7 if self.o['gbf'] else 8}
        s_add_u32 s{sB}, s{sB}, s{sA}
        v_lshl_add_u32 v32, v0, {3 if self.o['gbf'] else 4}, s{sB}
        s_lshl_b32 s{sB}, s{sV}, 6
        s_add_u32 s{sB}, s{sB}, s{sA}
        v_lshl_add_u32 v34, v0, 2, s{sB}
        v_lshrrev_b32 v1, 4, v0
        s_add_u32 s{sA}, s{sA}, 2560
        v_lshl_add_u32 v33, v1, 4, s{sA}""")
        self.sync(self.o['sync_x'], RX)
        def xsh():
            if self.o['dx']:
                l = self.pass0(); l3 = self.lab("nm"); le = self.lab("dxe")
                A(f"s_cbranch_execz {l3}")
                self.dma_addr(20, 1280)
                wf = self.o['wflag'].replace('plain', '')
                A(f"""s_and_b32 s{sA}, s{sV}, 1
                s_lshl_b32 s{sA}, s{sA}, 6
                v_xor_b32 v20, s{sA}, v20
                s_lshl_b32 s{sB}, s{sV}, 10
                s_add_u32 m0, s{sB}, {L_WD}
                s_mul_i32 s{sA}, s{sV}, {8*1280}
                buffer_load_dwordx4 v20, {srd(SWD)}, s{sA} offen {wf} lds""")
                self.end(l3)
                self.down_pre()
                A(f"s_waitcnt vmcnt(1)\ns_cbranch_execnz {self.lskip}")
                self.end(l)
            self.down_pre()
        if 'x' in self.o['early']: self.down_pre(); self.x_gather('x', None)
        else: self.x_gather('x', xsh)
        A(f"""v_add_f32 v{vXR}, v{vXR}, v49
        v_cvt_pk_bf16_f32 v{vXR}, 0, v{vXR}
        ds_write_b16_d16_hi v29, v{vXR} offset:{L_XA}""")
        self.stamp(7)
        def store(first, more=""):
            self.exec_mask(0xffff)
            st = f"buffer_store_dwordx4 v[48:51], v32, {srd(SWS)}, 0 offen{{f}}"
            if first: st += f"\ns_mov_b32 exec_lo, 0xffff0000\nbuffer_store_dword v48, v34, {srd(SWS)}, 0 offen offset:{2048-64}{{f}}"
            self.stores(st + "\n" + more, True, 'X')
            self.exec_full()
        self.mm_with_gram("v_mfma_f32_16x16x32_bf16 v[48:51], v[4:7], v[12:15], 0", "v_mfma_f32_16x16x32_bf16 v[48:51], v[8:11], v[16:19], v[48:51]", store, 'X',
                          late=(lambda: self.wfrags(12, 35, 2)) if self.o['defer'] else (lambda: None))
        self.stamp(8)

    def down_wpre(self):
        l = self.role(R_LT4)
        if self.o['dx']: self.A(f"s_cmp_eq_u32 s{sP}, 0\ns_cbranch_scc1 {l}")
        self.wfrags(20, 47, 2); self.end(l)
    def down_pre(self):
        A = self.A
        A(f"s_mov_b32 s{sA}, {L_WD}")
        self.tr_addr(47, sA)
        A(f"s_lshl_b32 s{sA}, s{sV}, 5\nv_xor_b32 v47, s{sA}, v47")
        self.afrag_addr(78, HS); self.pub_addr(79, RY)
        self.region(sD, RG)
        A(f"""s_mul_i32 s{sC}, s{sRI}, 10
        s_lshl_b32 s{sA}, s{sX}, 5
        s_add_u32 s{sC}, s{sC}, s{sA}
        s_mul_i32 s{sC}, s{sC}, {GSL}
        s_add_u32 s{sC}, s{sC}, s{sD}
        v_lshrrev_b32 v1, 4, v0
        v_mul_u32_u24 v3, {GSL}, v1
        v_add_u32 v3, s{sC}, v3
        v_bfe_u32 v2, v0, 3, 1
        v_lshlrev_b32 v2, 6, v2
        v_and_or_b32 v2, v0, 7, v2
        s_lshl_b32 s{sA}, s{sV}, 3
        v_add_u32 v2, s{sA}, v2
        v_lshl_add_u32 v72, v2, {3 if self.o['gbf'] else 4}, v3
        v_lshl_add_u32 v74, v2, 2, v3
        v_add_u32 v73, {8*GSL}, v72
        v_add_u32 v75, {8*GSL}, v74
        v_mov_b32 v3, {OOB}
        v_cmp_gt_u32 vcc, 32, v0
        v_cndmask_b32 v73, v3, v73, vcc
        v_cndmask_b32 v75, v3, v75, vcc
""")
        if 'g' in self.o['few']: A(f"""v_lshrrev_b32 v2, 2, v0
        v_mul_u32_u24 v76, {GSL}, v2
        v_and_b32 v2, 3, v0
        v_lshl_add_u32 v76, v2, 4, v76
        v_add_u32 v76, s{sC}, v76
        v_cmp_gt_u32 vcc, 40, v0
        v_cndmask_b32 v76, v3, v76, vcc""")
        else: A(f"""v_and_b32 v2, 15, v0
        v_mul_u32_u24 v76, {GSL}, v2
        v_lshl_add_u32 v76, v1, 4, v76
        v_add_u32 v76, s{sC}, v76
        v_cmp_gt_u32 vcc, 10, v2
        v_cndmask_b32 v76, v3, v76, vcc""")
        A(f"""        v_mul_u32_u24 v77, {HS}, v1
        v_and_b32 v2, 7, v0
        v_lshl_add_u32 v77, v2, 1, v77
        s_lshl_b32 s{sA}, s{sV}, 4
        v_add_u32 v77, s{sA}, v77
        v_mov_b32 v44, 0
        v_mov_b32 v45, 0
        v_mov_b32 v46, 0""")

    def down_stage(self):
        A = self.A
        if 'g' in self.o['bar']: A("s_barrier")
        self.sync(self.o['sync_g'])
        gb = self.o['gbf']
        lite = int(self.o['lite'])
        def loadsA():
            if lite: A(f"buffer_load_dwordx2 v[40:41], v76, {srd(SWS)}, 0 offen offset:2560 sc1")
            else: A(f"buffer_load_dwordx4 v[40:43], v76, {srd(SWS)}, 0 offen offset:2560 sc1")
        def loads():
            if gb: A(f"""buffer_load_dwordx2 v[56:57], v72, {srd(SWS)}, 0 offen sc1
            buffer_load_dwordx2 v[58:59], v72, {srd(SWS)}, s{sKG} offen sc1
            buffer_load_dwordx2 v[60:61], v73, {srd(SWS)}, 0 offen sc1""")
            else: A(f"""buffer_load_dwordx4 v[52:55], v72, {srd(SWS)}, 0 offen sc1
            buffer_load_dwordx4 v[56:59], v72, {srd(SWS)}, s{sKG} offen sc1
            buffer_load_dwordx4 v[60:63], v73, {srd(SWS)}, 0 offen sc1""")
            if lite: A(f"buffer_load_dwordx2 v[42:43], v76, {srd(SWS)}, 0 offen offset:2568 sc1")
            l = self.pass0()
            A(f"""buffer_load_dword v44, v74, {srd(SWS)}, 0 offen offset:2048 sc1
            buffer_load_dword v45, v74, {srd(SWS)}, s{sKG} offen offset:2048 sc1
            buffer_load_dword v46, v75, {srd(SWS)}, 0 offen offset:2048 sc1""")
            self.end(l)
        def red(s1):
            s0 = f"""v_add_f32 v35, v44, v45
            v_add_f32 v35, v35, v46
            v_mov_b32 v36, v35
            v_permlane32_swap_b32 v35, v36
            v_add_f32 v35, v35, v36
            v_mov_b32 v36, v35
            v_permlane16_swap_b32 v35, v36
            v_add_f32 v{vC}, v35, v36""".split('\n')
            s2 = (self.unpack_sum(52, [56, 58, 60]) if gb else [f"v_add_f32 v{52+i}, v{52+i}, v{56+i}" for i in range(4)] + [f"v_add_f32 v{52+i}, v{52+i}, v{60+i}" for i in (0, 2, 1, 3)]) + \
                 self.capture(lambda: self.treduce(52, 53, 54, 55))
            if lite: s2 = s2[:8] + ["v_add_f32 v64, v42, v43", "v_add_f32 v64, v64, v40"] + s2[8:]
            l = self.pass0(); le = self.lab("rv")
            self.mix(s1, s2, s0)
            A(f"s_cbranch_execnz {le}")
            self.end(l)
            self.mix(s1, s2)
            self.end(le)
            A(f"v_fma_f32 v52, -v37, v{vC}, v52\nv_mul_f32 v52, v52, v38\nv_cvt_pk_bf16_f32 v53, 0, v52")
        def post():
            A(f"""v_mul_f32 v54, s{sLOG2E}, v53
            v_exp_f32 v54, -v54
            v_add_f32 v54, 1.0, v54
            v_rcp_f32 v54, v54
            v_mul_f32 v54, v53, v54
            v_cvt_pk_bf16_f32 v54, 0, v54
            v_mul_f32_dpp v54, v53, v54 row_ror:8 {DPP}""")
            self.exec_mask(0x00ff00ff00ff00ff)
            A(f"v_cvt_pk_bf16_f32 v54, 0, v54\nds_write_b16_d16_hi v77, v54 offset:{L_HA}")
            self.exec_full()
        self.poll(loads, list(range(56, 62) if gb else range(52, 64)) + list(range(40, 47)), red, (52, 64), tag='g', shadow=self.down_wpre, post=post,
                  sent=(lambda: A(f"buffer_load_dword v2, v76, {srd(SWS)}, 0 offen offset:{2560+60} sc1"), 2),
                  pre=(loadsA, (40, 41) if lite else (40, 43), (["v_add_f32 v64, v42, v43"] + self.red_kb(40, 41, 4, 8) + self.lnstats(40, 41, 37, 38, 39) + ["v_add_f32 v64, v64, v40"]) if 'g' in self.o['few'] else self.red16([40, 41]) + self.lnstats(40, 41, 37, 38, 39) + ([] if lite else ["v_add_f32 v64, v42, v43", "v_add_f32 v64, v64, v40"])))
        self.stamp(9)
        l = self.role(R_LT4); le = self.lab("dn")
        A("s_waitcnt lgkmcnt(0)"); self.barrier('G')
        if self.o['dx']:
            l2 = self.pass0(); self.wfrags(20, 47, 2); self.end(l2)
        A(f"""ds_read_b128 v[4:7], v78 offset:{L_HA}
        ds_read_b128 v[8:11], v78 offset:{L_HA+64}
        s_waitcnt lgkmcnt(1)
        v_mfma_f32_16x16x32_bf16 v[68:71], v[4:7], v[20:23], 0
        s_waitcnt lgkmcnt(0)
        v_mfma_f32_16x16x32_bf16 v[68:71], v[8:11], v[24:27], v[68:71]""")
        self.pub_store(79, 'G')
        A(f"s_branch {le}")
        self.end(l)
        A("s_waitcnt lgkmcnt(0)"); self.barrier('G')
        self.end(le)
        if 'y' in self.o['bar']: A("s_barrier")
        self.stamp(10)
        self.mix(self.red_kb(42, 43, 12, 16) if 'g' in self.o['few'] else self.red16([42, 43]))
        l = self.pass0(); A(f"v_readfirstlane_b32 s{sSW}, v43"); self.end(l)
        A(f"""v_mov_b32 v43, s{sSW}
        v_fma_f32 v42, -v37, v43, v42
        v_mul_f32 v42, v42, v38
        v_cvt_pk_bf16_f32 v42, 0, v42
        v_mul_f32 v42, s{sLOG2E}, v42
        v_exp_f32 v42, -v42
        v_sub_f32 v{vXN}, v{vXR}, v37
        v_add_f32 v42, 1.0, v42
        v_rcp_f32 v42, v42
        v_cvt_pk_bf16_f32 v{vXN}, 0, v{vXN}
        v_cvt_pk_bf16_f32 v{vSG}, 0, v42
        v_mul_f32 v{vXN}, v{vXN}, v38
        v_cvt_pk_bf16_f32 v{vXN}, 0, v{vXN}""")

    def y_finish(self):
        self.A(f"""v_mul_f32 v49, v49, v{vSG}
        v_cvt_pk_bf16_f32 v49, 0, v49
        v_add_f32 v49, v{vXN}, v49
        v_cvt_pk_bf16_f32 v49, 0, v49
        v_add_f32 v{vXR}, v{vXR}, v49
        v_cvt_pk_bf16_f32 v{vXR}, 0, v{vXR}""")

    def qg_addr(self, extra):
        self.A(f"""s_lshr_b32 s{sA}, s{sT}, 3
        s_mul_i32 s{sA}, s{sA}, 3
        s_and_b32 s{sB}, s{sV}, 3
        s_add_u32 s{sA}, s{sA}, s{sB}
        s_lshr_b32 s{sB}, s{sA}, 2
        s_mul_i32 s{sB}, s{sB}, 10
        s_lshl_b32 s{sC}, s{sX}, 5
        s_add_u32 s{sB}, s{sB}, s{sC}
        s_mul_i32 s{sB}, s{sB}, {QSL}
        s_add_u32 s{sB}, s{sB}, {RQ[1]}
        s_and_b32 s{sA}, s{sA}, 3
        s_lshl_b32 s{sA}, s{sA}, 8
        s_add_u32 s{sA}, s{sA}, s{sB}
        s_add_u32 s{sA}, s{sA}, {extra}
        v_lshrrev_b32 v1, 4, v0
        v_and_b32 v2, 15, v0
        v_mul_u32_u24 v36, {QSL}, v1
        v_lshl_add_u32 v36, v2, 4, v36
        v_add_u32 v36, s{sA}, v36
        v_add_u32 v37, {8*QSL}, v36
        v_mov_b32 v3, {OOB}
        v_cmp_gt_u32 vcc, 32, v0
        v_cndmask_b32 v37, v3, v37, vcc
        v_lshlrev_b32 v40, 4, v2
        v_lshl_add_u32 v40, v1, 2, v40
        s_and_b32 s{sA}, s{sV}, 3
        s_lshl_b32 s{sA}, s{sA}, 8
        v_add_u32 v40, s{sA}, v40""")
    def cq_gather(self, idle, shadow=None, wait0=0):
        A = self.A
        l = self.role(R_456)
        self.qg_addr("4224")
        def loads(): A(f"""buffer_load_dwordx4 v[12:15], v36, {srd(SWS)}, 0 offen sc1
        buffer_load_dwordx4 v[16:19], v36, {srd(SWS)}, s{sKQ} offen sc1
        buffer_load_dwordx4 v[20:23], v37, {srd(SWS)}, 0 offen sc1""")
        def red():
            for i in range(4): A(f"v_add_f32 v{12+i}, v{12+i}, v{16+i}")
            for i in range(4): A(f"v_add_f32 v{12+i}, v{12+i}, v{20+i}")
            self.treduce(12, 13, 14, 15)
        self.poll(loads, range(12, 24), red, (12, 12), idle=idle, shadow=shadow, wait0=wait0)
        A(f"ds_write_b32 v40, v12 offset:{L_CQ}")
        self.end(l)
    def qg_pre(self):
        A = self.A
        l = self.role(R_456)
        A(f"s_bfe_u32 s{sD}, s{sT}, 0x20001\ns_lshl_b32 s{sF}, s{sD}, 10")
        self.qg_addr(f"s{sF}")
        A(f"""v_mul_u32_u24 v38, {QSL}, v2
        s_lshl_b32 s{sD}, s{sD}, 4
        s_add_u32 s{sD}, s{sD}, s{sB}
        s_add_u32 s{sD}, s{sD}, 4096
        v_add_u32 v38, s{sD}, v38
        v_cmp_gt_u32 vcc, 10, v{0 if 'q' in self.o['few'] else 2}
        v_cndmask_b32 v38, v3, v38, vcc
        ds_read_b32 v40, v40 offset:{L_CQ}""")
        self.q_lds_addr(39)
        A(f"s_lshr_b32 s{sA}, s{sA}, 1\nv_add_u32 v39, s{sA}, v39")
        self.end(l)
    def prewarm_o1(self):
        self.mem(f"""v_lshlrev_b32 v1, 4, v0
        s_mul_i32 s{sA}, s{sSIG}, {OSL}
        s_add_u32 s{sA}, s{sA}, {RO[1]}
        s_mov_b32 exec_hi, 0xffffff
        buffer_load_dwordx4 v[60:63], v1, {srd(SWS)}, s{sA} offen sc1
        s_mov_b32 exec_hi, -1""")

    def q_stage_and_final(self):
        A = self.A
        A(f"s_cmp_eq_u32 s{sP}, 1\ns_cbranch_scc1 L_final")
        if self.o['prewarm']:
            l = self.role(R_GE4); la = self.lab("pw"); lb = self.lab("pw"); l3 = self.lab("nm")
            A(f"""s_cbranch_execz {l3}
            v_lshlrev_b32 v1, 4, v0
            s_cmp_ge_u32 s{sV}, 6
            s_cbranch_scc1 {la}
            s_and_b32 s{sB}, s{sV}, 1
            s_lshl_b32 s{sB}, s{sB}, 11
            s_mul_i32 s{sA}, s{sSIG}, {QSL}
            s_add_u32 s{sA}, s{sA}, {RQ[1]}
            s_add_u32 s{sB}, s{sA}, s{sB}
            buffer_load_dwordx4 v[60:63], v1, {srd(SWS)}, s{sB} offen sc1
            buffer_load_dwordx4 v[60:63], v1, {srd(SWS)}, s{sB} offen offset:1024 sc1
            s_add_u32 s{sA}, s{sA}, 4096
            s_mov_b64 exec, 0xff
            buffer_load_dwordx4 v[60:63], v1, {srd(SWS)}, s{sA} offen sc1
            s_branch {lb}
            {la}:
            s_mul_i32 s{sA}, s{sSIG}, {GSL}
            s_add_u32 s{sA}, s{sA}, {RG[1]}
            s_cmp_eq_u32 s{sV}, 6
            s_cselect_b32 s{sB}, 0, 0x400
            s_add_u32 s{sB}, s{sB}, s{sA}
            buffer_load_dwordx4 v[60:63], v1, {srd(SWS)}, s{sB} offen sc1
            s_add_u32 s{sA}, s{sA}, 2560
            s_mul_i32 s{sB}, s{sSIG}, {OSL}
            s_add_u32 s{sB}, s{sB}, {RO[1]}
            s_cmp_eq_u32 s{sV}, 6
            s_cselect_b32 s{sA}, s{sA}, s{sB}
            s_cselect_b32 exec_lo, 0xff, -1
            s_cselect_b32 exec_hi, 0, 0xffffff
            buffer_load_dwordx4 v[60:63], v1, {srd(SWS)}, s{sA} offen sc1
            {lb}:
            s_mov_b64 exec, -1""")
            self.end(l3); self.end(l)
        A(f"s_lshr_b32 s{sA}, s{sV}, 1\ns_lshl_b32 s{sA}, s{sA}, 13\ns_add_u32 s{sA}, s{sA}, {L_WQ}")
        self.tr_addr(34, sA)
        A(f"s_and_b32 s{sA}, s{sV}, 1\ns_lshl_b32 s{sA}, s{sA}, 6\nv_xor_b32 v34, s{sA}, v34\nv_xor_b32 v35, 32, v34")
        self.wfrags(12, 34, 2); self.wfrags(20, 35, 2)
        self.x_gather_pre(RY)
        self.xa_addr()
        A(f"""v_and_b32 v1, 15, v0
        v_lshlrev_b32 v32, 10, v1
        v_lshrrev_b32 v1, 4, v0
        v_lshl_add_u32 v32, v1, 4, v32
        s_mul_i32 s{sB}, s{sSIG}, {QSL}
        s_add_u32 s{sB}, s{sB}, {RQ[1]}
        s_lshl_b32 s{sA}, s{sV}, 7
        s_add_u32 s{sA}, s{sA}, s{sB}
        v_add_u32 v32, s{sA}, v32
        s_add_u32 s{sB}, s{sB}, 4096
        v_lshl_add_u32 v33, v1, 4, s{sB}""")
        self.sync(self.o['sync_y'], RY)
        if 'y' in self.o['early']: self.attn_pre(); self.x_gather('y', self.qg_pre)
        else: self.x_gather('y', lambda: (self.attn_pre(), self.qg_pre()))
        self.y_finish()
        A(f"ds_write_b16_d16_hi v29, v{vXR} offset:{L_XA}")
        self.stamp(11)
        def store(first, more=""):
            self.exec_mask(0x000f000f000f000f)
            self.stores(f"buffer_store_dwordx4 v[48:51], v32, {srd(SWS)}, 0 offen{{f}}\nbuffer_store_dwordx4 v[52:55], v32, {srd(SWS)}, 0 offen offset:64{{f}}\n" + more, True, 'Y')
            self.exec_full()
        self.mm_with_gram("v_mfma_f32_16x16x32_bf16 v[48:51], v[12:15], v[4:7], 0\nv_mfma_f32_16x16x32_bf16 v[52:55], v[20:23], v[4:7], 0",
                          "v_mfma_f32_16x16x32_bf16 v[48:51], v[16:19], v[8:11], v[48:51]\nv_mfma_f32_16x16x32_bf16 v[52:55], v[24:27], v[8:11], v[52:55]", store, 'Y')
        if 'q' in self.o['bar']: A("s_barrier")
        A("L_qwait:")
        l = self.role(R_456)
        self.sync(self.o['sync_q'])
        def loadsA(): A(f"buffer_load_dwordx2 v[16:17], v38, {srd(SWS)}, 0 offen sc1")
        def loads(): A(f"""buffer_load_dwordx4 v[4:7], v36, {srd(SWS)}, 0 offen sc1
        buffer_load_dwordx4 v[8:11], v36, {srd(SWS)}, s{sKQ} offen sc1
        buffer_load_dwordx4 v[12:15], v37, {srd(SWS)}, 0 offen sc1""")
        def red(s1):
            s2 = [f"v_add_f32 v{4+i}, v{4+i}, v{8+i}" for i in range(4)] + [f"v_add_f32 v{4+i}, v{4+i}, v{12+i}" for i in (0, 2, 1, 3)] + self.capture(lambda: self.treduce(4, 5, 6, 7))
            self.mix(s1, s2)
            if 'q' in self.o['few']: A(f"v_fma_f32 v4, -s{sA}, v40, v4\nv_mul_f32 v4, s{sB}, v4\nv_cvt_pk_bf16_f32 v5, 0, v4")
            else: A("v_fma_f32 v4, -v18, v40, v4\nv_mul_f32 v4, v4, v19\nv_cvt_pk_bf16_f32 v5, 0, v4")
        self.poll(loads, range(4, 18), red, (4, 16), idle=True, tag='q', shadow=lambda: self.attn_zero(skip=range(36, 41)), pre=(loadsA, (16, 17), self.red16([16, 17]) + self.lnstats(16, 17, 18, 19, 21) + ([f"v_readfirstlane_b32 s{sA}, v18", f"v_readfirstlane_b32 s{sB}, v19"] if 'q' in self.o['few'] else [])),
                  post=lambda: A(f"ds_write_b16_d16_hi v39, v5 offset:{L_QL}"))
        le = self.lab("qz")
        for r in range(36, 41): A(f"v_mov_b32 v{r}, 0")
        A(f"s_mov_b32 s{sP}, 1\ns_branch L_attn_bar")
        self.end(l)
        self.attn_zero()
        A(f"s_mov_b32 s{sP}, 1")
        if int(self.o['wb']) == 1:
            A(f"s_cmp_eq_u32 s{sT}, 30\ns_cbranch_scc0 L_attn_bar\ns_cmp_eq_u32 s{sV}, 3\ns_cbranch_scc0 L_attn_bar\ns_barrier\nbuffer_wbl2 sc1\ns_branch L_attn")
        else: A("s_branch L_attn_bar")
        A(f"L_idle:\ns_cmp_eq_u32 s{sP}, 0\ns_cbranch_scc0 L_done")
        if self.o['prewarm']:
            l = self.role(R_7); self.prewarm_o1(); A("s_waitcnt vmcnt(0)"); self.end(l)
        self.cq_gather(True)
        A("s_waitcnt lgkmcnt(0)")
        if self.o['clr'] == 'late':
            l = self.role(R_456); lp = self.lab("ig"); lr = self.lab("igr")
            A(f"""s_lshl_b32 s{sA}, s{sX}, 5
            s_mul_i32 s{sA}, s{sA}, {GSL}
            s_add_u32 s{sA}, s{sA}, {RG[0] + 2560}
            v_min_u32 v1, 29, v0
            v_mul_u32_u24 v1, {GSL}, v1
            {lp}:
            buffer_load_dword v4, v1, {srd(SWS)}, s{sA} offen sc1
            s_waitcnt vmcnt(0)
            v_cmp_eq_u32 vcc, -1, v4
            s_cbranch_vccnz {lr}""")
            self.tail.append(f"{lr}:\ns_sleep 4\ns_sub_u32 s{sTO}, s{sTO}, 1\ns_cbranch_scc1 L_end\ns_branch {lp}")
            self.end(l)
        self.attn_pre(); self.qg_pre()
        A("s_waitcnt lgkmcnt(0)\ns_branch L_qwait")
        A(f"""L_final:
        s_and_b32 s{sA}, s{sT}, 7
        s_cmp_eq_u32 s{sA}, s{sX}
        s_cbranch_scc0 L_done
        s_cmp_lt_u32 s{sT}, 10
        s_cbranch_scc0 L_done
        L_final_body:""")
        self.x_gather_pre(RY); self.xcol_addr(29)
        self.sync(self.o['sync_f'], RY)
        self.x_gather('f', None)
        self.y_finish()
        self.exec_mask(0x00ff00ff00ff00ff)
        self.mem(f"buffer_store_short_d16_hi v{vXR}, v29, {srd(SOUT)}, 0 offen")
        self.exec_full()
        if self.o['dry']: A(f"s_cmp_eq_u32 s{sDRY}, 1\ns_cbranch_scc1 L_stubs")
        A("L_done:")
        if int(self.o['pad']):
            A(f"""L_pad:
            s_memrealtime s[90:91]
            s_waitcnt lgkmcnt(0)
            s_sub_u32 s90, s90, s96
            s_cmp_lt_u32 s90, {int(self.o['pad'])*100}
            s_cbranch_scc1 L_pad""")
        if self.prof: self.stamp(11)
        A("L_end:")
        if self.o['t2']: A("s_waitcnt vmcnt(0)\ns_memrealtime s[68:69]\ns_mov_b32 s64, s96")
        if self.o['fine'] or self.o['t2']: A("s_waitcnt lgkmcnt(0)")
        if self.prof or self.o['fine'] or self.o['t2']:
            A(f"""s_mov_b64 exec, -1
            s_lshl_b32 s{sA}, s2, 3
            s_add_u32 s{sA}, s{sA}, s{sV}
            s_lshl_b32 s{sA}, s{sA}, 7
            s_add_u32 s{sA}, s{sA}, {STAMP}
            v_mov_b32 v1, 0""")
            for i in range(24): A(f"v_mov_b32 v{4+i}, s{sST+i}")
            A(f"v_mov_b32 v28, s{sFAST}\nv_mov_b32 v29, s{sTO}\nv_mov_b32 v30, 0\nv_mov_b32 v31, 0\ns_mov_b64 exec, 1")
            for i in range(7): A(f"buffer_store_dwordx4 {vr(4+4*i)}, v1, {srd(SWS)}, s{sA} offen offset:{16*i}")
        A("L_exit:\ns_endpgm\nL_stubs:")
        for st in self.stubs: A(st)
        A("s_branch L_dry_ret" if self.o['dry'] else "s_endpgm")

    def build(self):
        self.prologue(); self.startup(); self.attention(); self.wo_stage(); self.gu_stage(); self.down_stage(); self.q_stage_and_final()
        i = 0
        while i < len(self.tail): self.A(self.tail[i]); i += 1
        if not self.o['dry']:
            self.L = [l.replace('s_cbranch_execnz', 's_branch') for l in self.L if not l.startswith('s_cbranch_execz')]
        used = set(l.split()[1] for l in self.L if l.startswith(('s_cbranch', 's_branch')))
        self.L = [l for l in self.L if not (l.endswith(':') and l[:-1] not in used and l[:-1] not in ('L_attn',))]
        body, nn = resolve(self.L)
        if int(self.o['a8']):
            body, a, b = align8(body, "L_attn:", int(self.o['a8']), int(self.o['a8n'])); print("align8 widened", a, "nops", b)
        hdr = open('interleave_layers__sliding_block_cached__moe_arch_mod__decode.s.ref').read().split('\n')
        hl = [l for l in hdr if l.startswith(';') and '@launch' not in l]
        hl = hl[:hl.index([l for l in hl if 'Override launch' in l][0])]
        doc = """;
; One persistent workgroup per CU (8 waves, 256 registers each).  Workgroup w = 8t + x keeps half of one
; (batch, head) K/V window resident for both attention layers: K in a0-a95, V in v88-v159 and LDS.
; The weight slices live in LDS.  The small matrix-vector stages run on a 10 x 3 grid of workgroups per
; group x and hand partial results over through d_ws:
;   q partials -> attention -> o partials -> wo -> x partials -> gate/up -> down -> y partials -> wq -> ...
; Hand-off words are set to 0xffffffff (a NaN) at start-up, so a consumer sees from the data itself whether it
; has arrived; a per-launch tag (d_ws epoch word + 1) marks the start-up flags and the first q partials.
; Stores to consumers of the same group skip the write-through only when the flags show that the whole
; group runs on one XCD; otherwise they are sc1 like the cross-group stores.
; LayerNorm is applied after the K-split products: (x@W - mean*colsum(W)) / std.""".split('\n')
        out = hl + doc + [f"; @launch grid=(256,1,1) block=(512,1,1) lds={LDS_SIZE}",
                    '.amdgcn_target "amdgcn-amd-amdhsa--gfx950"', ".text", f".globl {NAME}", ".p2align 8", f".type {NAME},@function", f"{NAME}:"]
        out += [("" if l.endswith(':') else "    ") + l for l in body]
        out += ['.section .rodata,"a"', ".p2align 6", f".amdhsa_kernel {NAME}",
                "  .amdhsa_next_free_vgpr 256", "  .amdhsa_next_free_sgpr 102", "  .amdhsa_accum_offset 160",
                "  .amdhsa_group_segment_fixed_size 0", "  .amdhsa_kernarg_size 104", "  .amdhsa_user_sgpr_count 2",
                "  .amdhsa_user_sgpr_kernarg_segment_ptr 1", "  .amdhsa_system_sgpr_workgroup_id_x 1",
                "  .amdhsa_float_denorm_mode_32 3", ".end_amdhsa_kernel"]
        return "\n".join(out) + "\n", nn

if __name__ == "__main__":
    path = sys.argv[1]
    opts = {}; prof = False
    for a in sys.argv[2:]:
        if a == 'prof': prof = True
        else:
            k, v = a.split('=')
            opts[k] = {'True': True, 'False': False}.get(v, v)
    s, nn = G(prof, opts).build()
    open(path, 'w').write(s)
    print("wrote", path, len(s.split('\n')), "lines, nops inserted:", nn)
```

```python
import sys
from asmlib import resolve, align8

NAME = "interleave_layers__sliding_block_cached__moe_arch_mod__decode_kernel"

OSL, GSL, QSL, Q0SL, XSZ = 896, 2688, 5248, 4096, 245760
RO = [0, 256 * OSL]
RX = [2 * 256 * OSL, 2 * 256 * OSL + XSZ]
RY = [RX[1] + XSZ, RX[1] + 2 * XSZ]
RG = [RY[1] + XSZ, RY[1] + XSZ + 256 * GSL]
RQ = [RG[1] + 256 * GSL, RG[1] + 256 * GSL + 256 * Q0SL]
RF = RQ[1] + 256 * QSL
RE = RF + 32768
RF2 = RE + 128
WS_END = RE + 2048
STAMP = WS_END
WS_SIZE = WS_END + 256 * 8 * 128
OOB = 0x7ff00000
L_OC = 0
L_ML = L_OC + 12288
L_XA = L_ML + 64; XS = 144
L_HA = L_XA + 6 * XS; HS = 192
L_OA = L_HA + 4 * HS; OS = 576
L_QL = L_OA + 4 * OS
L_FL = L_QL + 400
L_CQ = L_FL + 32
L_CS = L_CQ + 768
L_X0 = L_CS + 1024
L_WD = (L_X0 + 5120 + 127) // 128 * 128
L_WG = L_WD + 8192
L_WU = L_WG + 8192
L_WO = L_WU + 8192
L_WQ = L_WO + 32768
L_VP = L_WQ + 32768
LDS_SIZE = L_VP + 8 * 6144
assert LDS_SIZE <= 163840
sW, sV, sX, sT, sP, sDRY = 2, 3, 4, 5, 6, 7
SK, SVV, SWS, SWQ, SWO, SWG, SWU, SWD, SX0, SWR, SOUT = range(8, 52, 4)
sAI, sRI, sSIG, sSLOT = 52, 53, 54, 55
sFAST, sROLE, sTO, sEPS = 56, 57, 58, 59
sFULL = 60
sA, sB, sC, sD, sE, sF = 62, 63, 88, 89, 90, 91
sM = 92
sLOG2E, sSCALE, sINVN = 93, 94, 95
sG, sXCC, sSAVE, sTAG = 98, 99, 100, 101
sST = 64
R_LT4, R_GE4, R_456, R_7, R_6, R_GR = range(6)
sLO, sHI, sSW = 44, 45, 46
sK1, sK2, sKG, sKQ = 40, 41, 42, 43
vXR, vXN, vSG, vC = 80, 81, 82, 83
VBASE = 88
ODD = 0xAAAAAAAAAAAAAAAA

def srd(b): return f"s[{b}:{b+3}]"
def vr(a, n=4): return f"v[{a}:{a+n-1}]" if n > 1 else f"v{a}"
def ar(a, n=4): return f"a[{a}:{a+n-1}]"
DPP = "row_mask:0xf bank_mask:0xf"

class G:
    def __init__(self, prof=False, opts=None):
        self.L = []; self.tail = []; self.stubs = []; self.n = 0; self.prof = prof
        self.o = dict(dry=False, sync_o='sleep0', sync_x='acklo0', sync_g='sleep0', sync_y='acklo0', sync_q='sleep0', sync_f='acklo', fast=True,
                      clear='sc1', wflag='plain', bsleep=8, pad=0, probe=-1, probep=0, kvflag='nt', defer=True, cwo='0,0,0,0', cgud='4,2,2,0', csplit=True, prewarm=True, two='oqg', prio=4, at2=0, pk=0, mle=0, a8=0, a8n=4, dwo='gud', dx='', noq0=0, al=8, alo=0, clr='all', tq='', asl=0, pwo=True, t2=False, xbf=False, gbf=False, qbf=False, quick=False, gramw=3, fine='', finep=-1, finei='s_memtime', ldi='sc1', ldx='sc1', stx='sc1', sti='plain', wb=2, outf='plain', wb3=0, chkw=0, agg=0, flk=0, fl=0, w2=1, bar='oqg', tqwo=32, tqat=4, tqlim=0, one='', few='z', lite=0, onew=4, vlin=0, early='xy', q0st='sc1', q0ld='sc1')
        self.o.update(opts or {})
        for k in ('dwo', 'dx'): self.o[k] = self.o[k].replace('-', '')
        if not self.o['defer']: self.o['dwo'] = self.o['dx'] = ''
        self.o['defer'] = bool(set(self.o['dwo']) & set('gu'))
    def A(self, s):
        for l in s.split('\n'):
            l = l.strip()
            if l: self.L.append(l)
    def lab(self, p):
        self.n += 1; return f"L_{p}_{self.n}"
    def exec_mask(self, m):
        self.A(f"s_and_b32 exec_lo, s{sFULL}, 0x{m & 0xffffffff:x}\ns_and_b32 exec_hi, s{sFULL}, 0x{m >> 32:x}")
    def exec_full(self): self.A(f"s_mov_b64 exec, s[{sFULL}:{sFULL+1}]")
    def barrier(self, tag='z'):
        self.fs(tag + 'a')
        l = self.lab("nb"); self.A(f"s_cbranch_execz {l}\ns_barrier\n{l}:")
        self.fs(tag + 'b')
    def role(self, bit):
        l = self.lab("role"); self.A(f"s_bitcmp1_b32 s{sROLE}, {bit}\ns_cbranch_scc0 {l}"); return l
    def pass0(self):
        l = self.lab("p0"); self.A(f"s_cmp_eq_u32 s{sP}, 0\ns_cbranch_scc0 {l}"); return l
    def end(self, l): self.A(f"{l}:")
    def mem(self, lines):
        l = self.lab("nm"); self.A(f"s_cbranch_execz {l}"); self.A(lines); self.A(f"{l}:")
    def capture(self, fn):
        save = self.L; self.L = []; fn(); out = self.L; self.L = save; return out
    def stores(self, lines, intra, tag='z'):
        self.fs(tag + 's')
        if intra and self.o['fast']:
            l1 = self.lab("st"); l2 = self.lab("st")
            self.A(f"s_cbranch_execz {l2}\ns_cmp_eq_u32 s{sFAST}, 0\ns_cbranch_scc1 {l1}")
            self.A(lines.format(f=' ' + self.o['sti'].replace('plain', '').replace('_', ' '))); self.A(f"{l2}:")
            self.tail.append(f"{l1}:\n" + lines.format(f=" sc1") + f"\ns_branch {l2}")
        else:
            self.mem(lines.format(f=' ' + self.o['stx'].replace('_', ' ')))
    def poll(self, loads0, regs, reduce, chk, idle=False, tag='z', shadow=None, wait0=0, pre=None, post=None, sent=None):
        A = self.A
        fl = ' ' + self.o['ldx' if tag in 'xyf' else 'ldi'].replace('_', ' ')
        def loads():
            for x in self.capture(loads0): A(x[:-4] + fl if x.endswith(' sc1') else x)
        lw = self.lab("pw"); lr = self.lab("retry"); ls = self.lab("slow"); lo = self.lab("ok"); l2 = self.lab("slow")
        self.fs(tag + '0')
        exact_pre = None
        if pre and tag in self.o['one']:
            l = self.lab("sn"); la = self.lab("sna"); lb = self.lab("snb")
            if shadow: shadow()
            shadow = None
            A(f"s_cmp_eq_u32 s{sV}, {self.o['onew']}\ns_cbranch_scc0 {l}\ns_movk_i32 s{sG}, 0x100\ns_mov_b64 exec, 0xffff\n{la}:")
            sent[0]()
            A(f"s_sub_u32 s{sG}, s{sG}, 1\ns_waitcnt vmcnt(0)\ns_cbranch_scc1 {lb}\nv_cmp_eq_u32 vcc, -1, v{sent[1]}\ns_cbranch_vccnz {la}\n{lb}:\ns_mov_b64 exec, -1\n{l}:\ns_barrier")
            self.fs(tag + '3')
            l0, r0, p0 = loads, reduce, pre
            def loads():
                ls_ = self.capture(l0)
                k = [i for i, x in enumerate(ls_) if not x.startswith('buffer_load')]
                k = k[0] if k else len(ls_)
                self.mix(ls_[k:]); p0[0](); self.mix(ls_[:k])
                A(f"s_waitcnt vmcnt({k})"); self.mix(p0[2])
            def reduce(): r0([])
            exact_pre = p0
            pre = None
        elif pre and tag not in self.o['two']:
            l0, r0, p0 = loads, reduce, pre
            loads = lambda: (p0[0](), l0()); reduce = lambda: r0(p0[2]); pre = None
        elif pre:
            la = self.lab("pa"); lb = self.lab("pb"); l = self.lab("nm")
            A(f"s_cbranch_execz {l}"); pre[0](); A(f"{l}:\ns_movk_i32 s{sG}, 0x100")
            if shadow: shadow()
            shadow = lambda: self.mix(pre[2])
            A(f"s_waitcnt vmcnt(0)\nv_cmp_u_f32 vcc, v{pre[1][0]}, v{pre[1][1]}\ns_cbranch_vccz {lb}\n{la}:")
            if int(self.o['asl']): A(f"s_sleep {self.o['asl']}")
            pre[0]()
            A(f"s_sub_u32 s{sG}, s{sG}, 1\ns_waitcnt vmcnt(0)\ns_cbranch_scc1 {lb}\nv_cmp_u_f32 vcc, v{pre[1][0]}, v{pre[1][1]}\ns_cbranch_vccnz {la}\n{lb}:")
            self.fs(tag + '3')
            r0 = reduce; reduce = lambda: r0([])
        l = self.lab("nm"); A(f"s_cbranch_execz {l}"); loads(); A(f"{l}:\ns_movk_i32 s{sG}, 0x100")
        self.lskip = self.lab("nw")
        lskip = self.lskip
        if shadow: shadow()
        if wait0:
            l = self.lab("w0"); A(f"s_waitcnt vmcnt({wait0})\ns_branch {l}\n{lw}:\ns_waitcnt vmcnt(0)\n{l}:")
        else: A(f"{lw}:\ns_waitcnt vmcnt(0)")
        A(f"{lskip}:")
        self.fs(tag + '1')
        reduce()
        A(f"v_cmp_u_f32 vcc, v{chk[0]}, v{chk[1]}")
        if post: post()
        A(f"s_cbranch_vccnz {lr}\n{lo}:")
        self.fs(tag + '2')
        if self.o['fine'].split(',')[-1] == tag + 'n': A(f"s_sub_u32 s86, 0x101, s{sG}")
        def stub():
            A(f"{lr}:")
            if idle:
                l = self.lab("idl"); A(f"s_cmp_lt_u32 s{sT}, 30\ns_cbranch_scc1 {l}\ns_sleep 4\n{l}:")
            A(f"s_sub_u32 s{sG}, s{sG}, 1\ns_cbranch_scc1 {ls}")
            if self.prof: A(f"s_sub_u32 s{sTO}, s{sTO}, 1")
            l = self.lab("nm"); A(f"s_cbranch_execz {l}"); loads(); A(f"s_branch {lw}\n{l}:")
        self.stubs.append("\n".join(self.capture(stub)))
        def slow():
            nonlocal pre
            A(f"{l2}:\ns_sub_u32 s{sTO}, s{sTO}, 1\ns_cbranch_scc1 L_end\n{ls}:")
            if exact_pre: pre = exact_pre
            if pre: pre[0]()
            (l0 if exact_pre else loads)(); A("s_waitcnt vmcnt(0)")
            r = list(regs)
            A(f"v_max_u32 v1, v{r[0]}, v{r[1]}"); r = r[2:]
            while r:
                if len(r) >= 2: A(f"v_max3_u32 v1, v1, v{r[0]}, v{r[1]}"); r = r[2:]
                else: A(f"v_max_u32 v1, v1, v{r[0]}"); r = []
            A(f"v_cmp_eq_u32 vcc, -1, v1\ns_cbranch_vccnz {l2}")
            if pre: self.mix(pre[2])
            reduce()
            if post: post()
            A(f"s_branch {lo}")
        self.tail.append("\n".join(self.capture(slow)))
    def stamp(self, i, both=True):
        if int(self.o['probe']) == i:
            l = self.lab("probe")
            self.A(f"s_cmp_eq_u32 s{sP}, {self.o['probep']}\ns_cbranch_scc0 {l}\ns_cbranch_execz {l}\ns_memrealtime s[96:97]\ns_waitcnt lgkmcnt(0)\n{l}:")
        if not self.prof: return
        self.A("s_memrealtime s[96:97]\ns_waitcnt lgkmcnt(0)")
        if both:
            self.A(f"s_cmp_eq_u32 s{sP}, 0\ns_cselect_b32 s{sST+i}, s96, s{sST+i}\ns_cselect_b32 s{sST+12+i}, s{sST+12+i}, s96")
        else:
            self.A(f"s_mov_b32 s{sST+i}, s96")
    def fs(self, name):
        names = self.o['fine'].split(',') if self.o['fine'] else []
        if name in names:
            i = names.index(name)
            if int(self.o['finep']) >= 0:
                l = self.lab("fs"); self.A(f"s_cmp_eq_u32 s{sP}, {self.o['finep']}\ns_cbranch_scc0 {l}\n{self.o['finei']} s[{64+2*i}:{65+2*i}]\n{l}:")
            else: self.A(f"{self.o['finei']} s[{64+2*i}:{65+2*i}]")
    def sync(self, kind, R=None):
        if kind.startswith('sent'):
            A = self.A; w = int(kind[4:5]); off = int(kind[5:] or 1008)
            l = self.lab("sn"); la = self.lab("sna"); lb = self.lab("snb")
            A(f"s_cmp_eq_u32 s{sV}, {w}\ns_cbranch_scc0 {l}")
            self.region(sC, R)
            A(f"""s_lshl_b32 s{sA}, s{sAI}, 10
            s_add_u32 s{sA}, s{sA}, s{sC}
            v_min_u32 v1, 23, v0
            v_mul_u32_u24 v1, 10240, v1
            s_movk_i32 s{sG}, 0x200
            s_mov_b32 exec_hi, 0
            {la}:
            buffer_load_dword v2, v1, {srd(SWS)}, s{sA} offen offset:{off} sc1
            s_sub_u32 s{sG}, s{sG}, 1
            s_waitcnt vmcnt(0)
            s_cbranch_scc1 {lb}
            v_cmp_eq_u32 vcc, -1, v2
            s_cbranch_vccnz {la}
            {lb}:
            s_mov_b32 exec_hi, -1
            {l}:""")
            self.barrier()
            return
        if kind == 'ack': self.A("s_waitcnt vmcnt(0)"); self.barrier()
        elif kind.startswith('acklo'):
            l = self.role(R_LT4); self.A("s_waitcnt vmcnt(0)"); self.end(l); self.barrier()
            if kind[5:] and int(kind[5:]): self.A(f"s_sleep {int(kind[5:])}")
        elif kind.startswith('sleep'):
            if int(kind[5:]): self.A(f"s_sleep {int(kind[5:])}")
        elif kind.startswith('acks'): self.A("s_waitcnt vmcnt(0)"); self.barrier(); self.A(f"s_sleep {int(kind[4:])}")
    def treduce(self, r0, r1, r2, r3):
        self.A(f"""v_permlane32_swap_b32 v{r0}, v{r2}
        v_permlane32_swap_b32 v{r1}, v{r3}
        v_add_f32 v{r0}, v{r0}, v{r2}
        v_add_f32 v{r1}, v{r1}, v{r3}
        v_permlane16_swap_b32 v{r0}, v{r1}
        v_add_f32 v{r0}, v{r0}, v{r1}""")
    def red16(self, regs):
        return [f"v_add_f32_dpp v{r}, v{r}, v{r} {perm} {DPP}" for perm in ("quad_perm:[1,0,3,2]", "quad_perm:[2,3,0,1]", "row_half_mirror", "row_mirror") for r in regs]
    def red_kb(self, ra, rb, ta, tb):
        def one(r, t):
            return [f"v_add_f32_dpp v{r}, v{r}, v{r} row_ror:4 {DPP}", f"v_add_f32_dpp v{r}, v{r}, v{r} row_ror:8 {DPP}"] + \
                   [f"v_mov_b32_dpp v{t+b}, v{r} quad_perm:[{b},{b},{b},{b}] {DPP}" for b in (0, 2, 1, 3)] + \
                   self.capture(lambda: self.treduce(t, t + 1, t + 2, t + 3))[:-1] + [f"v_add_f32 v{r}, v{t}, v{t+1}"]
        return self.capture(lambda: self.mix(one(ra, ta), one(rb, tb)))
    def lnstats(self, sq, sm, m, rs, t):
        return f"""v_mul_f32 v{sm}, s{sINVN}, v{sm}
        v_mul_f32 v{sq}, s{sINVN}, v{sq}
        v_fma_f32 v{t}, -v{sm}, v{sm}, v{sq}
        v_cvt_pk_bf16_f32 v{m}, 0, v{sm}
        v_max_f32 v{t}, 0, v{t}
        v_cvt_pk_bf16_f32 v{t}, 0, v{t}
        v_add_f32 v{t}, s{sEPS}, v{t}
        v_cvt_pk_bf16_f32 v{t}, 0, v{t}
        v_sqrt_f32 v{t}, v{t}
        v_cvt_pk_bf16_f32 v{t}, 0, v{t}
        v_rcp_f32 v{rs}, v{t}""".split('\n')
    def mix(self, *streams):
        streams = [list(s) for s in streams]
        while any(streams):
            for s in streams:
                if s: self.A(s.pop(0))
    def tr_addr(self, d, sbase):
        self.A(f"""v_lshrrev_b32 v1, 4, v0
        v_bfe_u32 v2, v0, 2, 2
        v_lshl_add_u32 v{d}, v1, 3, v2
        v_lshlrev_b32 v{d}, 7, v{d}
        v_and_b32 v2, 3, v0
        v_lshl_add_u32 v{d}, v2, 3, v{d}
        v_bfe_u32 v2, v0, 3, 2
        v_lshl_add_u32 v{d}, v2, 5, v{d}
        v_add_u32 v{d}, s{sbase}, v{d}""")
    def wfrags(self, dst, addr, steps, off=0):
        for s in range(steps):
            self.A(f"ds_read_b64_tr_b16 {vr(dst+4*s,2)}, v{addr} offset:{off+s*4096}\nds_read_b64_tr_b16 {vr(dst+4*s+2,2)}, v{addr} offset:{off+s*4096+512}")
    def dma_addr(self, d, rstride):
        self.A(f"""v_lshrrev_b32 v1, 3, v0
        v_mul_u32_u24 v{d}, {rstride}, v1
        v_bfe_u32 v1, v0, 4, 1
        v_bfe_u32 v2, v0, 1, 2
        v_xor_b32 v1, v1, v2
        v_lshl_add_u32 v{d}, v1, 5, v{d}
        v_and_b32 v1, 1, v0
        v_lshl_add_u32 v{d}, v1, 4, v{d}
        v_xor_b32 v{d+1}, 64, v{d}""")
    def dma(self, srdb, vaddr, n, rstride, lds0, ssrc, slds, lim=0):
        wf = self.o['wflag'].replace('plain', '')
        for i in range(n):
            if lim and i >= lim: self.A(f"s_waitcnt vmcnt({lim-1})")
            self.A(f"s_add_u32 m0, s{slds}, {lds0 + i*1024}\ns_add_u32 s{sA}, s{ssrc}, {i*8*rstride}\nbuffer_load_dwordx4 v{vaddr + (i&1)}, {srd(srdb)}, s{sA} offen {wf} lds")

    def mk(self, b, p, off, size):
        A = self.A
        if off is None: A(f"s_mov_b32 s{b}, s{p}\ns_mov_b32 s{b+1}, s{p+1}\ns_mov_b32 s{b+2}, {size}")
        else:
            A(f"s_add_u32 s{b}, s{p}, s{off}\ns_addc_u32 s{b+1}, s{p+1}, 0")
            if isinstance(size, int): A(f"s_mov_b32 s{b+2}, {size}")
            else: A(f"s_sub_u32 s{b+2}, {size[0]}, s{off}")
        A(f"s_mov_b32 s{b+3}, 0x20000")
    def prologue(self):
        A = self.A
        A("s_cmp_ge_u32 s2, 256\ns_cbranch_scc1 L_exit")
        if int(self.o['pad']) or self.prof or self.o['t2']: A("s_memrealtime s[96:97]")
        A(f"""s_load_dwordx16 s[64:79], s[0:1], 0
        s_load_dwordx8 s[80:87], s[0:1], 64
        s_load_dwordx2 s[88:89], s[0:1], 96
        v_lshrrev_b32 v1, 6, v0
        v_and_b32 v0, 63, v0
        v_readfirstlane_b32 s{sV}, v1
        v_mov_b32 v4, 0
        v_mov_b32 v5, 0
        v_mov_b32 v6, 0
        v_mov_b32 v7, 0
        v_lshlrev_b32 v1, 4, v0
        s_mov_b64 exec, 7
        ds_write_b128 v1, v[4:7] offset:{L_QL+384}
        s_mov_b64 exec, -1
        s_and_b32 s{sX}, s2, 7
        s_lshr_b32 s{sT}, s2, 3
        s_lshr_b32 s{sA}, s{sT}, 3
        s_lshl_b32 s{sB}, s{sX}, 2
        s_add_u32 s92, s{sA}, s{sB}            ; head
        s_bfe_u32 s{sA}, s{sT}, 0x20001        ; batch
        s_lshl_b32 s{sA}, s{sA}, 5
        s_add_u32 s{sA}, s{sA}, s92
        s_lshl_b32 s{sA}, s{sA}, 12
        s_and_b32 s{sB}, s{sT}, 1
        s_lshl_b32 s{sB}, s{sB}, 9
        s_add_u32 s{sA}, s{sA}, s{sB}
        s_lshl_b32 s{sB}, s{sV}, 6
        s_add_u32 s{sA}, s{sA}, s{sB}
        s_add_u32 s{sA}, s{sA}, 3072
        s_mul_i32 s90, s{sA}, 384
        s_mov_b32 s{sP}, 0
        s_mov_b32 s{sDRY}, 0
        s_mov_b64 s[{sFULL}:{sFULL+1}], -1
        s_mov_b32 s{sTO}, 0x100000
        s_mov_b32 s{sFAST}, 0
        s_mov_b32 s{sLOG2E}, 0x3fb8aa3b
        s_mov_b32 s{sSCALE}, 0x3d93cd3a
        s_mov_b32 s{sINVN}, 0x3acccccd
        s_mov_b32 s{sEPS}, 0x3727c5ac
        s_lshl_b32 s{sSIG}, s{sX}, 5
        s_add_u32 s{sSIG}, s{sSIG}, s{sT}
        s_mul_i32 s{sSLOT}, s{sX}, 30
        s_add_u32 s{sSLOT}, s{sSLOT}, s{sT}
        s_mul_i32 s{sRI}, s{sT}, 26
        s_lshr_b32 s{sRI}, s{sRI}, 8
        s_mul_i32 s{sA}, s{sRI}, 10
        s_sub_u32 s{sAI}, s{sT}, s{sA}
        s_min_u32 s{sRI}, s{sRI}, 2""")
        tab = 0
        for v in range(8):
            tab |= ((v < 4) << R_LT4 | (v >= 4) << R_GE4 | (4 <= v <= 6) << R_456 | (v == 7) << R_7 | (v == 6) << R_6 | (v == int(self.o['gramw'])) << R_GR) << (8 * v)
        A(f"""s_mov_b32 s{sA}, 0x{tab & 0xffffffff:x}
        s_mov_b32 s{sB}, 0x{tab >> 32:x}
        s_lshl_b32 s91, s{sV}, 3
        s_lshr_b64 s[{sA}:{sB}], s[{sA}:{sB}], s91
        s_and_b32 s{sROLE}, s{sA}, 0xff""")
        self.kv_addr()
        A("s_waitcnt lgkmcnt(0)\ns_barrier")
        A(f"s_add_u32 s{sA}, s88, {RE}\ns_addc_u32 s{sB}, s89, 0\ns_load_dword s{sTAG}, s[{sA}:{sB}], 0")
        self.mk(SK, 66, 90, 24576); self.mk(SVV, 68, 90, 24576)
    def other_srds(self):
        A = self.A; mk = self.mk
        mk(SWS, 88, None, WS_SIZE)
        A(f"""s_mul_i32 s{sA}, s{sAI}, {64*12288}
        s_mul_i32 s{sB}, s{sX}, 3
        s_add_u32 s91, s{sB}, s{sRI}            ; P = 3x + r
        s_lshl_b32 s{sB}, s91, 9
        s_add_u32 s{sA}, s{sA}, s{sB}""")
        mk(SWQ, 70, sA, (640 * 6144 * 2,))
        A(f"s_mul_i32 s{sA}, s91, {256*1280}\ns_lshl_b32 s90, s{sAI}, 7\ns_add_u32 s{sA}, s{sA}, s90")
        mk(SWO, 72, sA, (6144 * 640 * 2,))
        A(f"s_mul_i32 s{sA}, s91, {64*1280}\ns_add_u32 s{sA}, s{sA}, s90")
        mk(SWD, 82, sA, (1536 * 640 * 2,))
        A(f"s_mul_i32 s{sA}, s{sAI}, {64*3072}\ns_lshl_b32 s{sB}, s91, 7\ns_add_u32 s{sA}, s{sA}, s{sB}")
        mk(SWG, 78, sA, (640 * 1536 * 2,)); mk(SWU, 80, sA, (640 * 1536 * 2,))
        mk(SX0, 64, None, 5120); mk(SWR, 76, 90, (1280,)); mk(SOUT, 84, None, 5120)
        A(f"s_waitcnt lgkmcnt(0)\ns_add_u32 s{sTAG}, s{sTAG}, 1")
        if self.o['fine']:
            for i in range(24): A(f"s_mov_b32 s{sST+i}, 0")
        if self.prof:
            A(f"s_mov_b32 s{sST}, s96")
            for i in range(1, 24): A(f"s_mov_b32 s{sST+i}, 0")

    def kv_addr(self):
        self.A(f"""v_bfe_u32 v84, v0, 1, 3
        v_mul_u32_u24 v84, 384, v84
        v_lshrrev_b32 v3, 4, v0
        v_lshl_add_u32 v84, v3, 5, v84
        v_and_b32 v3, 1, v0
        v_lshl_add_u32 v84, v3, 4, v84
        v_lshrrev_b32 v85, 5, v0
        v_lshlrev_b32 v85, 3, v85
        v_bfe_u32 v3, v0, 3, 2
        v_add_u32 v85, v85, v3
        v_mul_u32_u24 v85, 384, v85
        v_and_b32 v3, 7, v0
        v_lshl_add_u32 v85, v3, 4, v85""")
        if int(self.o['vlin']) & 1: self.A("v_lshlrev_b32 v85, 4, v0")
        if int(self.o['vlin']) & 2: self.A("v_lshlrev_b32 v84, 4, v0")
    def k_loads(self, mid=None):
        A = self.A; KF = self.o['kvflag'].replace('plain', '').replace('_', ' ')
        for g in range(8):
            if mid and g == mid[0]: mid[1]()
            A(f"s_mov_b32 s{sA}, {g*3072}")
            b = 12 * (g & ~1)
            for s, r in enumerate((b + 8 * (g & 1), b + 8 * (g & 1) + 4, b + 16 + 4 * (g & 1))):
                A(f"buffer_load_dwordx4 {ar(r)}, v84, {srd(SK)}, s{sA} offen offset:{s*(1024 if int(self.o['vlin']) & 2 else 128)} {KF}")
    def v_loads(self, sig=None):
        A = self.A; KF = self.o['kvflag'].replace('plain', '').replace('_', ' ')
        A(f"s_mul_i32 s{sB}, s{sV}, 6144")
        for S in range(5):
            if S == sig: self.lds_inc(16)
            for f in range(2 if S < 4 else 0):
                row = 32 * (S >> 1) + 16 * f + 4 * (S & 1)
                for s in range(3):
                    if int(self.o['vlin']) & 1:
                        o = ((S * 2 + f) * 3 + s) * 1024
                        if S == 0: A(f"s_add_u32 m0, s{sB}, {L_VP + (s*2+f)*1024}\ns_mov_b32 s{sA}, {o}\nbuffer_load_dwordx4 v85, {srd(SVV)}, s{sA} offen {KF} lds")
                        else: A(f"s_mov_b32 s{sA}, {o}\nbuffer_load_dwordx4 {vr(VBASE+(S-1)*24+s*8+4*f)}, v85, {srd(SVV)}, s{sA} offen {KF}")
                        continue
                    if S == 0:
                        A(f"s_add_u32 m0, s{sB}, {L_VP + (s*2+f)*1024}\ns_mov_b32 s{sA}, {row*384+s*128}\nbuffer_load_dwordx4 v85, {srd(SVV)}, s{sA} offen {KF} lds")
                    else:
                        if s == 0: A(f"s_mov_b32 s{sA}, {row*384}")
                        A(f"buffer_load_dwordx4 {vr(VBASE+(S-1)*24+s*8+4*f)}, v85, {srd(SVV)}, s{sA} offen offset:{s*128} {KF}")
    def xcol_addr(self, d):
        self.A(f"""v_lshrrev_b32 v1, 4, v0
        v_mul_u32_u24 v{d}, 1280, v1
        v_and_b32 v2, 7, v0
        v_lshl_add_u32 v{d}, v2, 1, v{d}
        s_lshl_b32 s{sA}, s{sAI}, 7
        s_lshl_b32 s{sB}, s{sV}, 4
        s_add_u32 s{sA}, s{sA}, s{sB}
        v_add_u32 v{d}, s{sA}, v{d}""")
    def xres_read(self):
        self.xcol_addr(3)
        self.A(f"v_mov_b32 v{vXR}, 0\nds_read_u16_d16_hi v{vXR}, v3 offset:{L_X0}")
    def lds_spin(self, off, val):
        lw = self.lab("sp"); lr = self.lab("spr")
        self.A(f"""v_mov_b32 v5, {L_FL}
        {lw}:
        ds_read_b32 v4, v5 offset:{off}
        s_waitcnt lgkmcnt(0)
        v_cmp_gt_u32 vcc, {val}, v4
        s_cbranch_vccnz {lr}""")
        self.tail.append(f"{lr}:\ns_sleep 2\ns_sub_u32 s{sTO}, s{sTO}, 1\ns_cbranch_scc1 L_end\ns_branch {lw}")
    def lds_inc(self, off):
        self.A(f"v_mov_b32 v4, {L_FL}\nv_mov_b32 v5, 1\ns_mov_b64 exec, 1\nds_add_u32 v4, v5 offset:{off}\ns_mov_b64 exec, -1")
    def dma_dist(self, cnts, mats):
        A = self.A
        cnts = [int(c) for c in cnts.split(',')]
        pre = [sum(cnts[:i]) for i in range(4)]
        A(f"""s_lshl_b32 s{sA}, s{sV}, 3
        s_mov_b32 s{sB}, 0x{sum(c << (8*i) for i, c in enumerate(cnts)):x}
        s_lshr_b32 s{sD}, s{sB}, s{sA}
        s_and_b32 s{sD}, s{sD}, 0xff
        s_mov_b32 s{sB}, 0x{sum(c << (8*i) for i, c in enumerate(pre)):x}
        s_lshr_b32 s{sF}, s{sB}, s{sA}
        s_and_b32 s{sF}, s{sF}, 0xff
        s_lshl_b32 s{sB}, s{sF}, 10""")
        le = self.lab("dd")
        for i in range(0, max(cnts), 2):
            A(f"s_cmp_gt_u32 s{sD}, {i}\ns_cbranch_scc0 {le}")
            for (sr, va, rs, l0) in mats:
                A(f"s_mul_i32 s{sC}, s{sF}, {8*rs}\ns_add_u32 s{sC}, s{sC}, {i*8*rs}")
                self.dma(sr, va, 2, rs, l0 + i * 1024, sC, sB)
        self.end(le)
    def w_dma_gud(self, u, which='gud'):
        A = self.A
        self.dma_addr(6, 3072); self.dma_addr(8, 1280)
        A(f"s_mul_i32 s{sC}, s{u}, {16*3072}\ns_lshl_b32 s{sB}, s{u}, 11")
        if 'g' in which: self.dma(SWG, 6, 2, 3072, L_WG, sC, sB)
        if 'u' in which: self.dma(SWU, 6, 2, 3072, L_WU, sC, sB)
        A(f"s_mul_i32 s{sC}, s{u}, {16*1280}")
        if 'd' in which: self.dma(SWD, 8, 2, 1280, L_WD, sC, sB)

    def attn_pre(self):
        A = self.A
        A(f"""v_lshrrev_b32 v1, 4, v0
        v_and_b32 v2, 3, v0
        v_lshlrev_b32 v2, 4, v2
        v_lshl_add_u32 v76, v1, 6, v2            ; base1
        v_and_b32 v3, 0x40, v76
        v_add3_u32 v77, v3, v2, 64
        v_add_u32 v77, 192, v77                  ; base2
        v_bfe_u32 v2, v0, 2, 2
        v_mov_b32 v3, 384""")
        for k in range(4): A(f"v_cmp_eq_u32 vcc, {k}, v2\nv_cndmask_b32 v{72+k}, v3, v76, vcc")
        A(f"""v_lshrrev_b32 v1, 5, v0
        v_cmp_eq_u32 vcc, v1, v2
        v_cndmask_b32 v76, v3, v77, vcc
        v_add_u32 v1, 2, v1
        v_cmp_eq_u32 vcc, v1, v2
        v_cndmask_b32 v77, v3, v77, vcc
        v_and_b32 v1, 1, v0
        v_mul_u32_u24 v78, 0xaaaa, v1
        v_add_u32 v78, 0x4444, v78
        v_and_b32 v1, 3, v0
        v_xor_b32 v2, 1, v1
        v_lshl_add_u32 v79, v2, 2, v1
        v_mul_u32_u24 v79, 0x1111, v79
        v_bfe_u32 v1, v0, 2, 1
        v_mul_u32_u24 v85, 0xffff, v1
        v_sub_u32 v84, 0xffff, v85
        s_mul_i32 s{sA}, s{sV}, 6144
        s_add_u32 s{sA}, s{sA}, {L_VP}
        v_lshl_add_u32 v86, v0, 4, s{sA}
        v_and_b32 v1, 7, v0
        v_lshlrev_b32 v1, 5, v1
        v_bfe_u32 v2, v0, 4, 1
        v_lshl_add_u32 v1, v2, 4, v1
        v_lshrrev_b32 v2, 5, v0
        v_mul_u32_u24 v2, 768, v2
        s_mul_i32 s{sA}, s{sV}, 1536
        v_add3_u32 v87, v1, v2, s{sA}""")
    def attn_zero(self, skip=()):
        for r in range(28, 48):
            if r not in skip: self.A(f"v_mov_b32 v{r}, 0")
    def consts(self):
        h = 2 if self.o['xbf'] else 1
        self.A(f"s_mov_b32 s{sLO}, 0x3f80\ns_mov_b32 s{sHI}, 0x3f800000")
        self.A(f"s_mov_b32 s{sK1}, {81920//h}\ns_mov_b32 s{sK2}, {163840//h}\ns_mov_b32 s{sKG}, {4*GSL}\ns_mov_b32 s{sKQ}, {4*QSL}")

    def xa_addr(self, d=30):
        self.A(f"""v_and_b32 v1, 15, v0
        v_lshrrev_b32 v2, 4, v0
        v_min_u32 v{d}, 5, v1
        v_mul_u32_u24 v{d}, {XS}, v{d}
        v_lshl_add_u32 v{d}, v2, 4, v{d}
        v_and_b32 v3, 3, v0
        v_bfe_u32 v1, v0, 2, 2
        v_add_u32 v{d+1}, 3, v3
        v_min_u32 v{d+1}, 5, v{d+1}
        v_cmp_eq_u32 vcc, 0, v3
        v_cndmask_b32 v{d+1}, v{d+1}, v1, vcc
        v_mul_u32_u24 v{d+1}, {XS}, v{d+1}
        v_lshl_add_u32 v{d+1}, v2, 4, v{d+1}""")
    def xfrags(self, d=30): self.A(f"ds_read_b128 v[4:7], v{d} offset:{L_XA}\nds_read_b128 v[8:11], v{d} offset:{L_XA+64}")
    def mm_with_gram(self, mf0, mf1, store, tag, late=None):
        A = self.A
        le = self.lab("gr")
        def variant(gram, first):
            A("s_waitcnt lgkmcnt(0)"); self.barrier(tag)
            if gram: A(f"ds_read_b128 v[60:63], v31 offset:{L_XA}")
            if first: late()
            self.xfrags()
            if gram:
                A(f"""ds_read_b128 v[64:67], v31 offset:{L_XA+64}
                s_waitcnt lgkmcnt(2)""")
                A(mf0)
                A("v_mfma_f32_16x16x32_bf16 v[68:71], v[60:63], v[4:7], 0\ns_waitcnt lgkmcnt(1)")
                A(mf1)
                A("s_waitcnt lgkmcnt(0)\nv_mfma_f32_16x16x32_bf16 v[68:71], v[64:67], v[8:11], v[68:71]")
                m = 1 | 1 << 17 | 1 << 34 | 1 << 51
                st = f"s_mov_b32 exec_lo, 0x{m & 0xffffffff:x}\ns_mov_b32 exec_hi, 0x{m >> 32:x}\nbuffer_store_dwordx4 v[68:71], v33, {srd(SWS)}, 0 offen{{f}}"
                if first: st = f"s_mov_b64 exec, -1\nv_mov_b32_dpp v71, v70 row_newbcast:4 {DPP}\n" + st
                store(first, st)
            else:
                A("s_waitcnt lgkmcnt(1)"); A(mf0); A("s_waitcnt lgkmcnt(0)"); A(mf1)
                store(first)
        firsts = (True, False) if late else (False,)
        for fi, first in enumerate(firsts):
            if first: lp = self.pass0()
            l = self.role(R_GR); variant(True, first); A(f"s_branch {le}"); self.end(l)
            variant(False, first)
            if first: A(f"s_branch {le}"); self.end(lp)
        self.end(le)
    def q_lds_addr(self, d):
        self.A(f"""v_bfe_u32 v1, v0, 3, 1
        v_lshlrev_b32 v{d}, 6, v1
        v_bfe_u32 v1, v0, 1, 1
        v_lshl_add_u32 v{d}, v1, 5, v{d}
        v_lshrrev_b32 v1, 5, v0
        v_lshl_add_u32 v{d}, v1, 4, v{d}
        v_bfe_u32 v1, v0, 2, 1
        v_lshl_add_u32 v{d}, v1, 3, v{d}
        v_and_b32 v1, 1, v0
        v_lshl_add_u32 v{d}, v1, 2, v{d}
        v_bfe_u32 v1, v0, 4, 1
        v_lshl_add_u32 v{d}, v1, 1, v{d}""")

    def clr_begin(self):
        self.A("v_mov_b32 v64, -1\nv_mov_b32 v65, -1\nv_mov_b32 v66, -1\nv_mov_b32 v67, -1\nv_lshlrev_b32 v10, 4, v0")
    def clr(self, what, p):
        A = self.A
        st = lambda off=0: A(f"buffer_store_dwordx4 v[64:67], v10, {srd(SWS)}, s{sA} offen offset:{off} sc1")
        if what in 'XY':
            A(f"s_lshl_b32 s{sA}, s{sSLOT}, 10\ns_add_u32 s{sA}, s{sA}, {(RX if what == 'X' else RY)[p]}"); st()
        elif what == 'O':
            A(f"s_mul_i32 s{sA}, s{sSIG}, {OSL}\ns_add_u32 s{sA}, s{sA}, {RO[p]}\ns_mov_b32 exec_hi, 0xffffff"); st(); A("s_mov_b32 exec_hi, -1")
        elif what == 'G':
            A(f"s_mul_i32 s{sA}, s{sSIG}, {GSL}\ns_add_u32 s{sA}, s{sA}, {RG[p]}"); st(); st(1024)
            if p == 0: A("s_mov_b32 exec_hi, 0xff"); st(2048)
            else: A("s_mov_b64 exec, 0xff"); st(2560)
            A("s_mov_b64 exec, -1")
        elif what == 'C':
            A(f"s_mul_i32 s{sA}, s{sSIG}, {QSL}\ns_add_u32 s{sA}, s{sA}, {RQ[1] + 4224}"); st()
        elif what == 'Q':
            A(f"s_mul_i32 s{sA}, s{sSIG}, {QSL}\ns_add_u32 s{sA}, s{sA}, {RQ[1]}")
            for i in range(4): st(1024 * i)
            A(f"s_add_u32 s{sA}, s{sA}, 4096\ns_mov_b64 exec, 0xff"); st(); A("s_mov_b64 exec, -1")

    def startup(self):
        A = self.A
        A(f"s_bitcmp1_b32 s{sROLE}, {R_GE4}\ns_cbranch_scc1 L_start_hi")
        self.k_loads()
        self.other_srds()
        l = self.lab("now"); A(f"s_cmp_ge_u32 s{sT}, 30\ns_cbranch_scc1 {l}")
        self.dma_addr(4, 1280)
        if not int(self.o['noq0']) & 4: self.dma_dist(self.o['cwo'], [(SWO, 4, 1280, L_WO)])
        if True:
            mats = [m for k, m in (('g', (SWG, 6, 3072, L_WG)), ('u', (SWU, 6, 3072, L_WU)), ('d', (SWD, 4, 1280, L_WD))) if k not in self.o['tq'] + self.o['dwo'] + self.o['dx']]
            if mats:
                self.dma_addr(6, 3072)
                self.dma_dist(self.o['cgud'], mats)
        self.end(l)
        self.v_loads()
        self.stamp(1, both=False)
        if self.o['dry']:
            l = self.lab("nodry")
            A(f"""s_cmp_eq_u32 s{sV}, 2
            s_cbranch_scc0 {l}
            s_mov_b32 s{sDRY}, 1
            v_mov_b32 v15, 0
            v_mov_b32 v16, 0
            v_mov_b32 v28, 0
            v_mov_b32 v32, 0
            v_mov_b32 v33, 0
            v_mov_b32 v34, 0
            v_mov_b32 v36, 0
            v_mov_b32 v37, 0
            v_mov_b32 v38, 0
            s_mov_b32 s{sSAVE}, s{sT}
            s_mov_b32 s{sT}, 0
            s_mov_b32 s{sROLE}, 0xff
            s_mov_b64 s[{sFULL}:{sFULL+1}], 0
            s_mov_b64 exec, 0
            s_branch L_attn
            L_dry_ret:
            s_mov_b32 s{sDRY}, 0
            s_mov_b32 s{sP}, 0
            s_mov_b32 s{sT}, s{sSAVE}
            s_mov_b32 s{sROLE}, {(1 << R_LT4) | ((int(self.o['gramw']) == 2) << R_GR)}
            s_mov_b64 s[{sFULL}:{sFULL+1}], -1
            s_mov_b64 exec, -1
            {l}:""")
        if int(self.o['agg']): self.group_flag()
        if int(self.o['chkw']): self.flag_check()
        l3 = self.lab("nog")
        A(f"s_cmp_eq_u32 s{sV}, 3\ns_cbranch_scc0 {l3}\ns_setprio 3")
        lp = self.lab("tq"); lr = self.lab("tqr")
        self.stamp(13, both=False)
        if self.prof: A(f"s_mov_b32 s{sST+5}, s{sST+13}")
        A(f"""s_bfe_u32 s{sB}, s{sT}, 0x20001          ; b
        s_lshl_b32 s{sC}, s{sB}, 10
        v_lshrrev_b32 v1, 4, v0
        v_lshlrev_b32 v78, 12, v1
        v_and_b32 v3, 15, v0
        v_lshl_add_u32 v78, v3, 4, v78
        v_add_u32 v78, s{sC}, v78
        s_mul_i32 s{sD}, s{sTAG}, 0x01010101
        v_mov_b32 v72, s{sD}
        v_lshrrev_b32 v73, 8, v72
        v_lshrrev_b32 v74, 16, v72
        v_lshrrev_b32 v75, 24, v72""")
        self.q_lds_addr(79)
        if int(self.o['noq0']) & 2: A("s_branch L_noq0")
        A(f"{lp}:\nv_mov_b32 v1, 0")
        for sg in range(3):
            A(f"""s_lshr_b32 s{sA}, s{sT}, 3
            s_mul_i32 s{sA}, s{sA}, 3
            s_add_u32 s{sA}, s{sA}, {sg}
            s_lshr_b32 s{sB}, s{sA}, 2
            s_mul_i32 s{sB}, s{sB}, 10
            s_lshl_b32 s{sC}, s{sX}, 5
            s_add_u32 s{sB}, s{sB}, s{sC}
            s_lshl_b32 s{sB}, s{sB}, 12
            s_and_b32 s{sA}, s{sA}, 3
            s_lshl_b32 s{sA}, s{sA}, 8
            s_add_u32 s{sB}, s{sB}, s{sA}
            s_add_u32 s{sB}, s{sB}, {RQ[0]}""")
            for i in range(3):
                if i == 2: A("s_mov_b32 exec_hi, 0")
                A(f"buffer_load_dwordx4 {vr(4 + 12*sg + 4*i)}, v78, {srd(SWS)}, s{sB} offen sc1")
                A(f"s_add_u32 s{sB}, s{sB}, {4*Q0SL}" if i < 2 else "s_mov_b64 exec, -1")
        A("s_waitcnt vmcnt(0)")
        for third in (0, 1):
            if third: A("s_mov_b32 exec_hi, 0")
            for sg in range(3):
                for i in ((2,) if third else (0, 1)):
                    r = 4 + 12 * sg + 4 * i
                    for h in (0, 2): A(f"v_xor_b32 v2, v{72+h}, v{r+h}\nv_xor_b32 v3, v{73+h}, v{r+h+1}\nv_or3_b32 v1, v1, v2, v3")
                    for k in range(4): A(f"v_and_b32 v{r+k}, 0xffffff00, v{r+k}")
        for k in range(3):
            for i in range(4): A(f"v_add_f32 v{4+12*k+i}, v{4+12*k+i}, v{12+12*k+i}")
        A(f"s_mov_b64 exec, -1\nv_and_b32 v1, 0xff, v1\nv_cmp_ne_u32 vcc, 0, v1\ns_cbranch_vccnz {lr}")
        self.tail.append(f"{lr}:\ns_sub_u32 s{sTO}, s{sTO}, 1\ns_cbranch_scc1 L_end\ns_branch {lp}")
        for k in range(3):
            r = 4 + 12 * k
            for i in range(4): A(f"v_add_f32 v{r+i}, v{r+i}, v{r+4+i}")
            self.treduce(r, r + 1, r + 2, r + 3)
            A(f"v_cvt_pk_bf16_f32 v{r}, 0, v{r}\nds_write_b16_d16_hi v79, v{r} offset:{L_QL + 128*k}")
        A("L_noq0:")
        self.lds_spin(4, 8)
        A(f"v_mov_b32 v4, 1\nds_write_b32 v5, v4\ns_setprio 0")
        self.end(l3)
        self.stamp(2, both=False)
        self.attn_pre(); self.attn_zero(); self.consts()
        self.lds_spin(0, 1)
        self.xres_read()
        A("s_branch L_attn")
        A("L_start_hi:\ns_setprio 3")
        self.other_srds()
        l = self.lab("x0"); l2 = self.lab("x0")
        A(f"""v_lshlrev_b32 v10, 4, v0
        s_and_b32 s{sB}, s{sV}, 3
        s_lshl_b32 s{sA}, s{sB}, 10
        s_add_u32 m0, s{sA}, {L_X0}
        s_cmp_eq_u32 s{sV}, 4
        buffer_load_dwordx4 v10, {srd(SX0)}, s{sA} offen lds
        s_cbranch_scc0 {l}
        s_mov_b32 m0, {L_X0 + 4096}
        s_movk_i32 s{sA}, 0x1000
        buffer_load_dwordx4 v10, {srd(SX0)}, s{sA} offen lds
        {l}:
        s_cmp_eq_u32 s{sV}, 5
        s_cbranch_scc0 {l2}
        s_mov_b32 m0, {L_XA + 5*XS}
        s_mov_b64 exec, 0xff
        buffer_load_dwordx4 v10, {srd(SWR)}, 0 offen lds
        s_mov_b64 exec, -1
        {l2}:""")
        lq = self.lab("noq"); lq2 = self.lab("noq")
        A(f"s_cmp_ge_u32 s{sT}, 30\ns_cbranch_scc1 {lq}")
        self.dma_addr(6, 12288)
        A(f"s_and_b32 s{sB}, s{sV}, 3\ns_lshl_b32 s{sC}, s{sB}, 7\ns_lshl_b32 s{sB}, s{sB}, 13")
        self.dma(SWQ, 6, 8, 12288, L_WQ, sC, sB)
        A(f"""v_lshrrev_b32 v1, 4, v0
        v_and_b32 v2, 15, v0
        v_mul_u32_u24 v3, 1280, v1
        v_lshl_add_u32 v10, v2, 4, v3
        v_lshl_add_u32 v11, v2, 3, v3
        s_lshl_b32 s{sA}, s{sAI}, 7
        v_add_u32 v11, s{sA}, v11
        v_mul_u32_u24 v12, {XS}, v1
        v_lshl_add_u32 v12, v2, 3, v12
        v_lshlrev_b32 v13, 3, v2
        s_waitcnt vmcnt(8)""")
        self.lds_inc(4); self.lds_spin(4, 4)
        for i in range(5): A(f"ds_read_b128 {vr(16+4*i)}, v10 offset:{L_X0 + 256*i}")
        A(f"ds_read_b64 v[36:37], v11 offset:{L_X0}")
        A("v_mov_b32 v40, 0x3f803f80\nv_mov_b32 v41, 0x3f803f80\nv_mov_b32 v42, 0\nv_mov_b32 v43, 0\ns_waitcnt lgkmcnt(0)")
        for i in range(20): A(f"v_dot2_f32_bf16 v42, v{16+i}, v{16+i}, v42\nv_dot2_f32_bf16 v43, v{16+i}, v40, v43")
        self.mix(self.red_kb(42, 43, 12, 16) if 'g' in self.o['few'] else self.red16([42, 43])); self.mix(self.lnstats(42, 43, 44, 45, 46))
        A("v_lshlrev_b32 v16, 16, v36\nv_and_b32 v17, 0xffff0000, v36\nv_lshlrev_b32 v18, 16, v37\nv_and_b32 v19, 0xffff0000, v37")
        for i in range(4): A(f"v_sub_f32 v{16+i}, v{16+i}, v44")
        for i in range(4): A(f"v_cvt_pk_bf16_f32 v{16+i}, 0, v{16+i}")
        for i in range(4): A(f"v_mul_f32 v{16+i}, v{16+i}, v45")
        A(f"""v_cvt_pk_bf16_f32 v16, v16, v17
        v_cvt_pk_bf16_f32 v17, v18, v19
        ds_write_b64 v12, v[16:17] offset:{L_XA}
        ds_write_b64 v13, v[40:41] offset:{L_XA + 4*XS}""")
        A(f"s_and_b32 s{sA}, s{sV}, 3\ns_lshl_b32 s{sA}, s{sA}, 13\ns_add_u32 s{sA}, s{sA}, {L_WQ}")
        self.tr_addr(52, sA)
        for t in range(1, 4): A(f"v_xor_b32 v{52+t}, {32*t}, v52")
        self.xa_addr(14)
        A(f"""s_and_b32 s{sA}, s{sV}, 3
        s_lshl_b32 s{sB}, s{sA}, 10
        v_and_b32 v2, 15, v0
        v_lshlrev_b32 v72, 8, v2
        v_and_b32 v1, 0x30, v0
        v_add3_u32 v72, v72, v1, s{sB}
        v_lshl_add_u32 v73, v0, 4, s{sB}
        v_lshlrev_b32 v74, 6, v1
        v_lshl_add_u32 v74, v2, 4, v74
        s_lshl_b32 s{sA}, s{sA}, 8
        v_add_u32 v75, s{sA}, v1
        s_lshl_b32 s{sE}, s{sSIG}, 12
        s_add_u32 s{sE}, s{sE}, s{sA}
        s_add_u32 s{sE}, s{sE}, {RQ[0]}
        s_mul_i32 s{sF}, s{sTAG}, 0x01010101
        v_mov_b32 v76, 0xff
        s_waitcnt vmcnt(0) lgkmcnt(0)""")
        self.stamp(12, both=False)
        for t in range(4): self.wfrags(16 + 8 * t, 52 + t, 2)
        self.xfrags(14)
        A("s_waitcnt lgkmcnt(0)")
        for s in range(2):
            for t in range(4):
                A(f"v_mfma_f32_16x16x32_bf16 {vr(48+4*t)}, {vr(16+8*t+4*s)}, {vr(4+4*s)}, {'0' if s == 0 else vr(48+4*t)}")
        for i in range(4):
            for t in range(4): A(f"v_bfi_b32 v{16+4*t+i}, v76, s{sF}, v{48+4*t+i}")
            A(f"s_lshr_b32 s{sF}, s{sF}, 8")
        self.exec_mask(0x000f000f000f000f)
        for t in range(4): A(f"ds_write_b128 v72, {vr(16+4*t)} offset:{L_OC + 64*t}")
        self.exec_mask(0x0010001000100010)
        for t in range(4): A(f"ds_write_b128 v75, {vr(48+4*t)} offset:{L_CS + 64*t}")
        self.exec_full()
        A(f"""s_waitcnt lgkmcnt(0)
        ds_read_b128 v[16:19], v73 offset:{L_OC}
        s_waitcnt lgkmcnt(0)""")
        if not int(self.o['noq0']) & 1: A(f"buffer_store_dwordx4 v[16:19], v74, {srd(SWS)}, s{sE} offen sc1")
        A(f"""s_branch {lq2}
        {lq}:
        s_waitcnt vmcnt(0)""")
        self.lds_inc(4); self.lds_spin(4, 4)
        A(f"{lq2}:")
        self.xres_read()
        A("s_waitcnt lgkmcnt(0)")
        self.lds_inc(4)
        self.stamp(14, both=False)
        sp = True
        late = self.o['clr'] == 'late'
        l = self.role(R_456)
        l2 = self.lab("nocl"); lb = self.lab("clb"); lc = self.lab("clc"); li = self.lab("cli")
        self.clr_begin()
        A(f"s_cmp_ge_u32 s{sT}, 30\ns_cbranch_scc1 {li}\ns_cmp_eq_u32 s{sV}, 5\ns_cbranch_scc1 {lb}\ns_cmp_eq_u32 s{sV}, 6\ns_cbranch_scc1 {lc}")
        self.clr('X', 0); self.clr('Y', 0)
        if not late: self.clr('X', 1); self.clr('Y', 1); self.clr('O', 1)
        self.clr('O', 0)
        A(f"s_branch {l2}\n{lb}:")
        self.clr('G', 0)
        if not late: self.clr('G', 1)
        A(f"s_branch {l2}\n{lc}:")
        self.clr('C', 0)
        if not late: self.clr('Q', 1)
        A(f"s_branch {l2}\n{li}:\ns_cmp_eq_u32 s{sV}, 4\ns_cbranch_scc0 {l2}")
        self.clr('O', 0); self.clr('O', 1)
        A(f"{l2}:\ns_mov_b64 exec, -1")
        flk = int(self.o['flk'])
        def flag(n):
            l3 = self.lab("nofl")
            A(f"""s_getreg_b32 s{sXCC}, hwreg(HW_REG_XCC_ID, 0, 4)
            v_mov_b32 v6, s{sTAG}
            v_mov_b32 v7, s{sXCC}
            v_mov_b32 v8, s{sTAG}
            v_mov_b32 v9, s{sXCC}
            v_mov_b32 v4, {L_FL}
            v_mov_b32 v5, 1
            s_lshl_b32 s{sC}, s{sSIG}, 7
            s_add_u32 s{sC}, s{sC}, {RF}
            s_waitcnt vmcnt({n})
            s_mov_b64 exec, 1
            ds_add_rtn_u32 v11, v4, v5 offset:8
            s_waitcnt lgkmcnt(0)
            v_cmp_eq_u32 vcc, 2, v11
            s_cbranch_vccz {l3}
            s_mov_b64 exec, 0xff
            buffer_store_dwordx4 v[6:9], v10, {srd(SWS)}, s{sC} offen sc1
            {l3}:
            s_mov_b64 exec, -1""")
        if not flk: flag(0)
        self.end(l)
        def midflag():
            l = self.role(R_456); flag(3 * flk); self.end(l)
        self.stamp(1, both=False)
        A("s_setprio 0")
        self.k_loads((flk, midflag) if flk else None); self.v_loads(int(self.o['tqat']) if self.o['tq'] or int(self.o['tqwo']) else None)
        self.attn_pre(); self.attn_zero(); self.consts()
        self.lds_spin(0, 1)

    def region(self, s, R):
        self.A(f"s_mul_i32 s{s}, s{sP}, {R[1]-R[0]}")
        if R[0]: self.A(f"s_add_u32 s{s}, s{s}, {R[0]}")

    def parked(self):
        for i in range(6): self.A(f"ds_read_b128 {vr(48+4*i)}, v86 offset:{1024*i}")
    def attention(self):
        A = self.A
        A("s_branch L_attn")
        if int(self.o['al']): A(f".p2align {self.o['al']}")
        for _ in range(int(self.o['alo'])): A("s_nop 0")
        A("L_attn_bar:\ns_waitcnt vmcnt(0) lgkmcnt(0)")
        self.barrier('Q')
        A("L_attn:")
        if int(self.o['prio']) == 2:
            l = self.role(R_GE4); A("s_setprio 1"); self.end(l)
        pk = int(self.o['pk']); mle = int(self.o['mle'])
        order = [(72, 4), (73, 8), (76, 20), (74, 12), (75, 16), (77, 24)]
        for a, d in order: A(f"ds_read_b128 {vr(d)}, v{a} offset:{L_QL}")
        self.region(sE, RO)
        A(f"""s_mul_i32 s{sB}, s{sSIG}, {OSL}
        s_add_u32 s{sE}, s{sE}, s{sB}
        s_and_b32 s{sC}, s{sV}, 3
        s_lshl_b32 s{sC}, s{sC}, 8
        s_add_u32 s{sD}, s{sC}, s{sE}
        s_mov_b32 s{sA}, 0x{ODD & 0xffffffff:x}
        s_mov_b32 s{sB}, 0x{ODD & 0xffffffff:x}
        s_waitcnt vmcnt({18 if pk else 24})""")
        if pk: self.parked()
        self.stamp(3)
        for n, (a, d) in enumerate(order):
            A(f"s_waitcnt lgkmcnt({(11 if pk else 5)-n})")
            for h in range(2):
                if a < 76: g = 4 * h + (a - 72); b = 12 * (g & ~1) + 8 * (g & 1)
                else: g = 4 * h + 2 * (a - 76); b = 12 * g + 16
                A(f"v_smfmac_f32_16x16x64_bf16 {vr(28+4*h)}, {vr(d)}, {ar(b,8)}, v78")
        self.fs('k1')
        if int(self.o['prio']) & 8: A(f"s_lshr_b32 s{sF}, s{sV}, 2\ns_cmp_eq_u32 s{sF}, 0\ns_cbranch_scc1 L_noprio\ns_setprio 1\nL_noprio:")
        fill = [f"v_lshrrev_b32 v1, 4, v0", f"v_and_b32 v2, 15, v0", f"v_mul_u32_u24 v12, 3072, v1", f"v_lshlrev_b32 v13, 3, v1",
                f"v_lshl_add_u32 v12, v2, 4, v12", f"v_lshlrev_b32 v15, 4, v2", f"v_add_u32 v12, s{sC}, v12", f"v_lshl_add_u32 v15, v1, 2, v15",
                f"v_mov_b32 v14, 0", f"v_add_u32 v15, s{sD}, v15", f"v_lshl_add_u32 v16, v0, 4, s{sE}", f"v_and_b32 v17, 7, v0",
                f"v_lshlrev_b32 v17, 2, v17", f"s_lshl_b32 s{sF}, s{sV}, 2", (f"v_add_u32 v35, s{sF}, v19" if int(self.o['w2']) else f"v_mov_b32 v35, s{sF}")]
        if int(self.o['w2']): fill.insert(1, f"v_mov_b32 v19, {L_ML}")
        late_fill = []
        if int(self.o['fl']): late_fill = fill[:13]; fill = fill[13:] + [""] * 13
        if pk:
            fill += ["v_bfe_u32 v18, v0, 3, 1", "v_and_b32 v19, 0x30, v0", "v_lshlrev_b32 v18, 3, v18", "v_lshl_add_u32 v18, v19, 2, v18"]
            for _ in range(6): A(fill.pop(0))
        else:
            A("s_waitcnt vmcnt(18)"); self.parked(); A(fill.pop(0))
        fin = lambda d: [f"v_add_f32 v{d}, v{d}, v{d+1}", f"v_add_f32 v{d+2}, v{d+2}, v{d+3}",
                         f"v_cndmask_b32 v{d}, v{d}, v{d+2}, s[{sA}:{sB}]",
                         f"v_add_f32_dpp v{d}, v{d}, v{d} quad_perm:[1,0,3,2] {DPP}",
                         f"v_cvt_pk_bf16_f32 v{d}, 0, v{d}", f"v_mul_f32 v{d}, s{sSCALE}, v{d}",
                         f"v_cvt_pk_bf16_f32 v{d}, 0, v{d}", f"v_mul_f32 v{d}, s{sLOG2E}, v{d}"]
        f0, f1 = fin(28), fin(32)
        for k in range(8):
            if k == 3: A(fill.pop(0))
            A(f0[k]); A(f1[k])
        A("v_max_f32 v29, v28, v32")
        for p in (f"quad_perm:[2,3,0,1] {DPP}", f"row_half_mirror {DPP}", f"row_mirror {DPP}", "row_bcast:15 row_mask:0xa bank_mask:0xf", "row_bcast:31 row_mask:0xc bank_mask:0xf"):
            A(fill.pop(0)); A(fill.pop(0)); A(f"v_max_f32_dpp v29, v29, v29 {p}")
        A(fill.pop(0)); A(f"v_readlane_b32 s{sM}, v29, 63")
        self.fs('k2')
        while fill: A(fill.pop(0))
        A(f"""v_subrev_f32 v28, s{sM}, v28
        v_subrev_f32 v32, s{sM}, v32
        v_exp_f32 v28, v28
        v_exp_f32 v32, v32
        v_cvt_pk_bf16_f32 v30, v28, v28
        v_cvt_pk_bf16_f32 v31, v32, v32
        v_mov_b32 v34, s{sM}""")
        lsum = ["v_add_f32 v33, v28, v32"] + \
               [f"v_add_f32_dpp v33, v33, v33 {p}" for p in (f"quad_perm:[2,3,0,1] {DPP}", f"row_half_mirror {DPP}", f"row_mirror {DPP}",
                                                            "row_bcast:15 row_mask:0xa bank_mask:0xf", "row_bcast:31 row_mask:0xc bank_mask:0xf")]
        bp = int(self.o['at2'])
        def abuild(S):
            b = 4 + 4 * (S & 1); P = 30 + (S >> 1); jj = S & 1
            if bp and S: return [f"v_and_b32 v{b+2*x+m}, v{20+2*(S-1)+x}, v{84+m}" for x in range(2) for m in range(2)]
            return [f"v_and_b32_dpp v{b+2*x+m}, v{P}, v{84+m} row_newbcast:{8*jj+4*x+2*c} row_mask:0xf bank_mask:{'0x3' if c == 0 else '0xc'}"
                    for c in range(2) for x in range(2) for m in range(2)]
        bperm = lambda S: [f"ds_bpermute_b32 v{20+2*(S-1)+x}, v18, v{30+(S>>1)} offset:{32*(S&1)+16*x}" for x in range(2)]
        if bp: self.mix(bperm(1))
        for x in abuild(0): A(x)
        if bp: self.mix(bperm(2) + bperm(3))
        if int(self.o['prio']) & 8: A("s_setprio 0")
        self.fs('k3')
        for S in range(4):
            nxt = abuild(S + 1) if S < 3 else []
            if S: A(f"s_waitcnt vmcnt({18 - 6*S})")
            if S == 3 and mle:
                assert not lsum
                self.exec_mask(1 << 63)
                A(f"ds_write_b32 v35, v34 offset:{L_ML}\nds_write_b32 v35, v33 offset:{L_ML+32}")
                self.exec_full()
            for s in range(3):
                vv = vr(48 + 8 * s, 8) if S == 0 else vr(VBASE + (S - 1) * 24 + 8 * s, 8)
                if S == 0 and s == 0: A(f"s_waitcnt lgkmcnt({6 if bp else 0})")
                A(f"v_smfmac_f32_16x16x64_bf16 {vr(36+4*s)}, {vr(4+4*(S&1))}, {vv}, v79")
                if bp:
                    if lsum and s != 1: A(lsum.pop(0))
                    if s == 1 and S < 2: A(f"s_waitcnt lgkmcnt({4 if S == 0 else 0})")
                    if s == 1: self.mix(nxt)
                else:
                    for _ in range(3):
                        if nxt: A(nxt.pop(0))
                    if lsum and s != 1: A(lsum.pop(0))
        self.fs('k4')
        if not mle:
            self.exec_mask(1 << 63)
            if int(self.o['w2']): A(f"ds_write2_b32 v35, v34, v33 offset0:0 offset1:8")
            else: A(f"ds_write_b32 v35, v34 offset:{L_ML}\nds_write_b32 v35, v33 offset:{L_ML+32}")
        self.exec_mask(0xFF00FF0000FF00FF)
        for s in range(3): A(f"ds_write_b128 v87, {vr(36+4*s)} offset:{L_OC + 256*s}")
        self.exec_full()
        self.mix(late_fill)
        l = self.role(R_LT4)
        l2 = self.pass0(); l3 = self.lab("nm")
        A(f"s_cbranch_execz {l3}")
        self.first_pass_checks()
        if self.o['tq']:
            l4 = self.lab("ntq"); A(f"s_cmp_ge_u32 s{sT}, 30\ns_cbranch_scc1 {l4}")
            self.lds_spin(16, 4)
            self.w_dma_gud(sV, self.o['tq'])
            self.end(l4)
        if int(self.o['tqwo']):
            n = int(self.o['tqwo']) // 4
            l4 = self.lab("ntq"); A(f"s_cmp_ge_u32 s{sT}, 30\ns_cbranch_scc1 {l4}")
            self.dma_addr(6, 1280)
            A(f"s_mul_i32 s{sB}, s{sV}, {n}\ns_add_u32 s{sB}, s{sB}, {32 - 4*n}\ns_mul_i32 s{sC}, s{sB}, {8*1280}\ns_lshl_b32 s{sB}, s{sB}, 10")
            self.lds_spin(16, 4)
            self.dma(SWO, 6, n, 1280, L_WO, sC, sB, int(self.o['tqlim']))
            self.end(l4)
        self.end(l3); self.end(l2)
        if int(self.o['wb']) == 2:
            l2 = self.lab("wb"); A(f"s_cmp_eq_u32 s{sT}, 30\ns_cbranch_scc0 {l2}\ns_lshl_b32 s{sA}, s{sV}, 1\ns_or_b32 s{sA}, s{sA}, s{sP}\ns_cmp_eq_u32 s{sA}, 1\ns_cbranch_scc0 {l2}\nbuffer_wbl2 sc1\n{l2}:")
        self.end(l)
        A("s_waitcnt lgkmcnt(0)")
        if int(self.o['prio']) & 3: A("s_setprio 0")
        self.stamp(4)
        if self.o['t2']:
            l = self.pass0(); A("s_memrealtime s[66:67]"); self.end(l)
        self.barrier('A')
        l = self.role(R_GE4)
        if int(self.o['prio']) & 4: A("s_setprio 1")
        A(f"ds_read_b32 v47, v14 offset:{L_FL+12}")
        l2 = self.role(R_456)
        A(f"""ds_read_b128 v[20:23], v14 offset:{L_ML}
        ds_read_b128 v[24:27], v14 offset:{L_ML+16}
        ds_read_b64 v[18:19], v13 offset:{L_ML}
        ds_read_b128 v[48:51], v12 offset:{L_OC}
        ds_read_b128 v[52:55], v12 offset:{L_OC+768}
        ds_read_b128 v[56:59], v12 offset:{L_OC+1536}
        ds_read_b128 v[60:63], v12 offset:{L_OC+2304}
        s_waitcnt lgkmcnt(5)
        v_max3_f32 v20, v20, v21, v22
        v_max3_f32 v24, v24, v25, v26
        v_readfirstlane_b32 s{sFAST}, v47
        v_max3_f32 v20, v20, v23, v27
        v_max_f32 v20, v20, v24
        s_waitcnt lgkmcnt(2)
        v_sub_f32 v18, v18, v20
        v_sub_f32 v19, v19, v20
        v_add_f32 v48, v48, v52
        v_exp_f32 v18, v18
        v_add_f32 v49, v49, v53
        v_exp_f32 v19, v19
        v_add_f32 v50, v50, v54
        v_add_f32 v51, v51, v55
        s_waitcnt lgkmcnt(0)""")
        for i in range(4): A(f"v_add_f32 v{56+i}, v{56+i}, v{60+i}\nv_mul_f32 v{48+i}, v18, v{48+i}")
        for i in (0, 2, 1, 3): A(f"v_fmac_f32 v{48+i}, v19, v{56+i}")
        self.treduce(48, 49, 50, 51)
        self.stores(f"buffer_store_dword v48, v15, {srd(SWS)}, 0 offen{{f}}", True, 'A')
        self.end(l2)
        l2 = self.role(R_7)
        A(f"""ds_read_b32 v4, v17 offset:{L_ML}
        ds_read_b32 v5, v17 offset:{L_ML+32}
        s_waitcnt lgkmcnt(1)
        v_max_f32_dpp v6, v4, v4 quad_perm:[1,0,3,2] {DPP}
        v_readfirstlane_b32 s{sFAST}, v47
        v_max_f32_dpp v6, v6, v6 quad_perm:[2,3,0,1] {DPP}
        v_max_f32_dpp v6, v6, v6 row_half_mirror {DPP}
        v_sub_f32 v4, v4, v6
        v_exp_f32 v4, v4
        s_waitcnt lgkmcnt(0)
        v_mul_f32 v7, v4, v5""")
        self.mix(self.red16([7])[:3])
        self.exec_mask(0xff)
        self.stores(f"buffer_store_dwordx4 v[6:9], v16, {srd(SWS)}, 0 offen offset:768{{f}}", True, 'M')
        self.exec_full()
        l3 = self.pass0(); l4 = self.lab("ncs")
        A(f"""s_cmp_ge_u32 s{sT}, 30
        s_cbranch_scc1 {l4}
        v_lshlrev_b32 v1, 4, v0
        ds_read_b128 v[12:15], v1 offset:{L_CS}
        s_mul_i32 s{sA}, s{sSIG}, {QSL}
        s_add_u32 s{sA}, s{sA}, {RQ[1] + 4224}
        s_waitcnt lgkmcnt(0)""")
        self.stores(f"buffer_store_dwordx4 v[12:15], v1, {srd(SWS)}, s{sA} offen{{f}}", True)
        self.end(l4); self.end(l3); self.end(l2)
        if int(self.o['prio']) & 4: A("s_setprio 0")
        self.end(l)
        A(f"s_cmp_ge_u32 s{sT}, 30\ns_cbranch_scc1 L_idle")

    def group_flag(self):
        A = self.A
        l = self.lab("noag"); lp = self.lab("ag"); lr = self.lab("agr")
        A(f"""s_cmp_eq_u32 s{sT}, 30
        s_cbranch_scc0 {l}
        s_cmp_eq_u32 s{sV}, 2
        s_cbranch_scc0 {l}
        v_lshlrev_b32 v3, 7, v0
        s_getreg_b32 s{sXCC}, hwreg(HW_REG_XCC_ID, 0, 4)
        s_lshl_b32 s{sA}, s{sX}, 12
        s_add_u32 s{sA}, s{sA}, {RF}
        s_mov_b32 exec_hi, 0
        {lp}:
        buffer_load_dwordx2 v[4:5], v3, {srd(SWS)}, s{sA} offen sc1
        s_waitcnt vmcnt(0)
        v_cmp_ne_u32 vcc, s{sTAG}, v4
        s_cbranch_vccnz {lr}
        v_cmp_ne_u32 vcc, s{sXCC}, v5
        s_cmp_eq_u64 vcc, 0
        s_cselect_b32 s{sB}, 1, 0
        v_mov_b32 v4, s{sTAG}
        v_mov_b32 v5, s{sB}
        v_mov_b32 v6, s{sTAG}
        v_mov_b32 v7, s{sB}
        v_lshlrev_b32 v3, 4, v0
        s_lshl_b32 s{sA}, s{sX}, 7
        s_add_u32 s{sA}, s{sA}, {RF2}
        s_mov_b64 exec, 0xff
        buffer_store_dwordx4 v[4:7], v3, {srd(SWS)}, s{sA} offen sc1
        s_mov_b64 exec, -1
        s_waitcnt vmcnt(0)
        {l}:""")
        self.tail.append(f"{lr}:\ns_sleep 16\ns_sub_u32 s{sTO}, s{sTO}, 1\ns_cbranch_scc1 L_end\ns_branch {lp}")
    def flag_check_agg(self):
        A = self.A
        l = self.lab("nochk"); lp = self.lab("chk"); lr = self.lab("chkr")
        A(f"""s_cmp_eq_u32 s{sV}, 0
        s_cbranch_scc0 {l}
        v_mov_b32 v1, {L_FL}
        v_lshlrev_b32 v3, 7, v0
        s_mov_b32 s{sA}, {RF2}
        s_mov_b64 exec, 0xff
        {lp}:
        buffer_load_dwordx2 v[4:5], v3, {srd(SWS)}, s{sA} offen sc1
        s_waitcnt vmcnt(0)
        v_cmp_ne_u32 vcc, s{sTAG}, v4
        s_cbranch_vccnz {lr}
        v_readlane_b32 s{sA}, v5, s{sX}
        s_mov_b64 exec, 1
        v_mov_b32 v5, s{sA}
        ds_write_b32 v1, v5 offset:12
        s_cmp_eq_u32 s2, 0
        s_cbranch_scc0 {l}
        s_mov_b32 s{sA}, {RE}
        buffer_store_dword v4, v3, {srd(SWS)}, s{sA} offen sc1
        {l}:
        s_mov_b64 exec, -1""")
        self.tail.append(f"{lr}:\ns_sleep {self.o['bsleep']}\ns_sub_u32 s{sTO}, s{sTO}, 1\ns_cbranch_scc1 L_end\ns_branch {lp}")
    def flag_check(self):
        A = self.A
        if int(self.o['agg']): return self.flag_check_agg()
        l = self.lab("nochk"); lp = self.lab("chk"); lr = self.lab("chkr")
        A(f"""s_cmp_eq_u32 s{sV}, {self.o['chkw']}
        s_cbranch_scc0 {l}
        v_mov_b32 v1, {L_FL}
        v_mov_b32 v2, s{sTAG}
        v_lshlrev_b32 v3, 9, v0
        s_getreg_b32 s{sXCC}, hwreg(HW_REG_XCC_ID, 0, 4)
        s_mov_b32 s{sA}, {RF}
        {lp}:
        buffer_load_dwordx2 v[4:5], v3, {srd(SWS)}, s{sA} offen sc1
        buffer_load_dwordx2 v[6:7], v3, {srd(SWS)}, s{sA} offen offset:128 sc1
        buffer_load_dwordx2 v[8:9], v3, {srd(SWS)}, s{sA} offen offset:256 sc1
        buffer_load_dwordx2 v[10:11], v3, {srd(SWS)}, s{sA} offen offset:384 sc1
        s_waitcnt vmcnt(0)
        v_xor_b32 v4, v4, v2
        v_xor_b32 v6, v6, v2
        v_xor_b32 v8, v8, v2
        v_xor_b32 v10, v10, v2
        v_or3_b32 v4, v4, v6, v8
        v_or_b32 v4, v4, v10
        v_cmp_ne_u32 vcc, 0, v4
        s_cbranch_vccnz {lr}
        v_xor_b32 v5, s{sXCC}, v5
        v_xor_b32 v7, s{sXCC}, v7
        v_xor_b32 v9, s{sXCC}, v9
        v_xor_b32 v11, s{sXCC}, v11
        v_or3_b32 v5, v5, v7, v9
        v_or_b32 v5, v5, v11
        v_cmp_eq_u32 vcc, 0, v5
        s_lshl_b32 s{sB}, s{sX}, 3
        s_lshr_b64 s[{sA}:{sB}], vcc, s{sB}
        s_and_b32 s{sA}, s{sA}, 0xff
        s_cmp_eq_u32 s{sA}, 0xff
        s_cselect_b32 s{sA}, 1, 0
        v_mov_b32 v4, s{sA}
        ds_write_b32 v1, v4 offset:12
        s_cmp_eq_u32 s2, 0
        s_cbranch_scc0 {l}
        v_mov_b32 v3, 0
        s_mov_b32 s{sA}, {RE}
        s_mov_b64 exec, 1
        buffer_store_dword v2, v3, {srd(SWS)}, s{sA} offen sc1
        s_mov_b64 exec, -1
        {l}:""")
        self.tail.append(f"{lr}:\ns_sleep {self.o['bsleep']}\ns_sub_u32 s{sTO}, s{sTO}, 1\ns_cbranch_scc1 L_end\ns_branch {lp}")
    def first_pass_checks(self):
        A = self.A
        if int(self.o['chkw']) == 0: self.flag_check()
        if self.o['prewarm'] and self.o['pwo']:
            l = self.lab("npw")
            A(f"""s_cmp_eq_u32 s{sV}, 1
            s_cbranch_scc0 {l}
            v_lshlrev_b32 v1, 4, v0
            s_mul_i32 s{sA}, s{sSIG}, {QSL}
            s_add_u32 s{sA}, s{sA}, {RQ[1] + 4224}
            buffer_load_dwordx4 v[60:63], v1, {srd(SWS)}, s{sA} offen sc1
            s_mov_b32 exec_hi, 0xffffff
            buffer_load_dwordx4 v[60:63], v1, {srd(SWS)}, s{sE} offen sc1
            s_mov_b64 exec, -1
            {l}:""")

    def afrag_addr(self, d, stride):
        self.A(f"v_and_b32 v1, 3, v0\nv_lshrrev_b32 v2, 4, v0\nv_mul_u32_u24 v1, {stride}, v1\nv_lshl_add_u32 v{d}, v2, 4, v1")
    def pub_addr(self, d, R):
        self.region(sC, R)
        self.A(f"s_lshl_b32 s{sA}, s{sSLOT}, 10\ns_lshl_b32 s{sB}, s{sV}, 8\ns_add_u32 s{sA}, s{sA}, s{sB}\ns_add_u32 s{sA}, s{sA}, s{sC}\nv_lshl_add_u32 v{d}, v0, 4, s{sA}") if not self.o['xbf'] else \
        self.A(f"s_lshl_b32 s{sA}, s{sSLOT}, 9\ns_lshl_b32 s{sB}, s{sV}, 7\ns_add_u32 s{sA}, s{sA}, s{sB}\ns_add_u32 s{sA}, s{sA}, s{sC}\nv_lshl_add_u32 v{d}, v0, 3, s{sA}")
    def pub_store(self, addr, tag):
        if self.o['xbf']:
            self.A("v_cvt_pk_bf16_f32 v68, v68, v69\nv_cvt_pk_bf16_f32 v69, v70, v71")
            self.exec_mask(0xffff)
            self.stores(f"buffer_store_dwordx2 v[68:69], v{addr}, {srd(SWS)}, 0 offen{{f}}", False, tag)
        else:
            self.exec_mask(0xffff)
            self.stores(f"buffer_store_dwordx4 v[68:71], v{addr}, {srd(SWS)}, 0 offen{{f}}", False, tag)
        self.exec_full()
    def unpack_sum(self, dst, srcs):
        out = []
        for k, r in enumerate(srcs):
            for i in range(4):
                out.append(f"v_dot2_f32_bf16 v{dst+i}, v{r + (i >> 1)}, s{sLO if i % 2 == 0 else sHI}, {'0' if k == 0 else 'v%d' % (dst+i)}")
        return out

    def wo_pre1(self):
        A = self.A
        self.region(sD, RO)
        A(f"""s_lshl_b32 s{sA}, s{sRI}, 2
        s_add_u32 s{sA}, s{sA}, s{sV}
        s_mul_i32 s{sB}, s{sA}, 86
        s_lshr_b32 s{sB}, s{sB}, 8
        s_mul_i32 s{sC}, s{sB}, 3
        s_sub_u32 s{sC}, s{sA}, s{sC}
        s_lshl_b32 s{sB}, s{sB}, 3
        s_lshl_b32 s{sA}, s{sX}, 5
        s_add_u32 s{sB}, s{sB}, s{sA}
        s_mul_i32 s{sB}, s{sB}, {OSL}
        s_add_u32 s{sB}, s{sB}, s{sD}
        v_lshrrev_b32 v1, 4, v0
        v_and_b32 v2, 15, v0
        v_mul_u32_u24 v72, {2*OSL}, v1
        v_add_u32 v72, s{sB}, v72
        s_lshl_b32 s{sC}, s{sC}, 8
        v_lshl_add_u32 v73, v2, 4, v72
        v_add_u32 v73, s{sC}, v73""")
        if 'o' in self.o['few']: A(f"v_mov_b32 v3, {OOB}\nv_cmp_eq_u32 vcc, 0, v2\nv_cndmask_b32 v72, v3, v72, vcc")
        A(f"""s_lshl_b32 s{sA}, s{sV}, 7
        v_mul_u32_u24 v74, {OS}, v1
        v_lshl_add_u32 v74, v2, 3, v74
        v_add_u32 v74, s{sA}, v74""")
    def wo_pre2(self):
        A = self.A
        A(f"v_mov_b32 v1, 0\nds_read_b32 v47, v1 offset:{L_FL+12}\ns_mov_b32 s{sA}, {L_WO}")
        self.tr_addr(75, sA)
        A(f"s_lshl_b32 s{sA}, s{sV}, 5\nv_xor_b32 v75, s{sA}, v75")
        k = 8 - int(self.o['tqwo']) // 4
        self.wfrags(4, 75, k)
        if k < 8:
            A("v_mov_b32 v77, v75")
            l = self.lab("wl"); A(f"s_cmp_eq_u32 s{sP}, 0\ns_cbranch_scc1 {l}"); self.wfrags(4 + 4 * k, 75, 8 - k, k * 4096); self.end(l)
        self.afrag_addr(75, OS); self.pub_addr(76, RX)
        A(f"s_waitcnt lgkmcnt({min(15, 2*k)})\nv_readfirstlane_b32 s{sFAST}, v47")

    def wo_stage(self):
        A = self.A
        l = self.role(R_LT4)
        self.wo_pre1()
        if 'o' in self.o['bar']: self.wo_pre2(); A("s_barrier")
        self.sync(self.o['sync_o'])
        def loadsA(): A(f"""buffer_load_dwordx2 v[52:53], v72, {srd(SWS)}, 0 offen offset:768 sc1
        buffer_load_dwordx2 v[54:55], v72, {srd(SWS)}, 0 offen offset:{768+OSL} sc1""")
        def loads(): A(f"""buffer_load_dwordx4 v[56:59], v73, {srd(SWS)}, 0 offen sc1
        buffer_load_dwordx4 v[60:63], v73, {srd(SWS)}, 0 offen offset:{OSL} sc1""")
        shadow = None if 'o' in self.o['bar'] else self.wo_pre2
        chain = """v_sub_f32 v66, v54, v52
            v_exp_f32 v67, v66
            v_exp_f32 v66, -v66
            v_fma_f32 v67, v67, v55, v53
            v_fma_f32 v66, v66, v53, v55
            v_rcp_f32 v67, v67
            v_rcp_f32 v66, v66""".split('\n')
        if 'o' in self.o['few']: chain += [f"v_mov_b32_dpp v67, v67 row_newbcast:0 {DPP}", f"v_mov_b32_dpp v66, v66 row_newbcast:0 {DPP}"]
        def red(ch):
            self.mix(ch)
            for i in range(4): A(f"v_mul_f32 v{56+i}, v67, v{56+i}")
            for i in range(4): A(f"v_fmac_f32 v{56+i}, v66, v{60+i}")
            A("v_add_f32 v64, v56, v57\nv_add_f32 v65, v58, v59\nv_cvt_pk_bf16_f32 v56, v56, v57\nv_cvt_pk_bf16_f32 v57, v58, v59")
        self.poll(loads, range(52, 64), red, (64, 65), tag='o', shadow=shadow, pre=(loadsA, (53, 55), chain), post=lambda: A(f"ds_write_b64 v74, v[56:57] offset:{L_OA}"))
        lgo = self.lab("wogo")
        k = 8 - int(self.o['tqwo']) // 4
        def variant(first):
            A("s_waitcnt lgkmcnt(0)")
            self.stamp(5)
            self.barrier('O')
            seq = []
            for s in range(8):
                if first and s >= k: self.wfrags(4 + 4 * s, 77, 1, s * 4096); seq += [s, s]
                A(f"ds_read_b128 {vr(36+4*s)}, v75 offset:{L_OA + 64*s}"); seq.append(s)
            for s in range(8):
                A(f"s_waitcnt lgkmcnt({min(15, sum(x > s for x in seq))})\nv_mfma_f32_16x16x32_bf16 v[68:71], {vr(36+4*s)}, {vr(4+4*s)}, {'0' if s == 0 else 'v[68:71]'}")
            self.pub_store(76, 'O')
            if first and 'w' in self.o['bar']: A("s_barrier")
            A(f"s_branch {lgo}")
        if k < 8:
            lp = self.pass0(); variant(True); self.end(lp)
        variant(False)
        self.end(l)
        if 'o' in self.o['bar']: A("s_barrier")
        l = self.pass0(); self.cq_gather(False); self.end(l)
        self.barrier('O')
        l = lgo; l2 = self.pass0()
        if 'w' in self.o['bar']: A("s_barrier")
        nlate = 6 if self.o['defer'] else 0
        def late_clr():
            l3 = self.lab("nm"); l5, l6, l7_ = self.lab("lc"), self.lab("lc"), self.lab("lc")
            A(f"s_cbranch_execz {l3}"); self.clr_begin()
            A(f"s_cmp_eq_u32 s{sV}, 5\ns_cbranch_scc1 {l5}\ns_cmp_eq_u32 s{sV}, 6\ns_cbranch_scc1 {l6}\ns_cmp_eq_u32 s{sV}, 7\ns_cbranch_scc1 {l3}")
            self.clr('X', 1); self.clr('Y', 1); self.clr('O', 1)
            A(f"s_branch {l3}\n{l5}:"); self.clr('G', 1)
            A(f"s_branch {l3}\n{l6}:"); self.clr('Q', 1)
            self.end(l3)
        def late():
            if self.o['dwo']:
                l3 = self.lab("nm"); A(f"s_cbranch_execz {l3}\ns_and_b32 s{sD}, s{sV}, 3"); self.w_dma_gud(sD, self.o['dwo']); self.end(l3)
        l7 = self.role(R_7)
        if self.o['prewarm']:
            self.mem(f"""v_lshlrev_b32 v1, 4, v0
            s_mul_i32 s{sA}, s{sSIG}, {GSL}
            s_add_u32 s{sA}, s{sA}, {RG[0]}
            buffer_load_dwordx4 v[60:63], v1, {srd(SWS)}, s{sA} offen sc1
            buffer_load_dwordx4 v[60:63], v1, {srd(SWS)}, s{sA} offen offset:1024 sc1
            s_mov_b32 exec_hi, 0xff
            buffer_load_dwordx4 v[60:63], v1, {srd(SWS)}, s{sA} offen offset:2048 sc1
            s_mov_b32 exec_hi, -1""")
        self.end(l7)
        late()
        if self.o['clr'] == 'late': late_clr()
        self.end(l2); self.end(l)
        self.stamp(6)

    def x_gather_pre(self, R):
        self.region(sC, R)
        h = 1 if self.o['xbf'] else 0
        self.A(f"""s_lshl_b32 s{sA}, s{sAI}, {10-h}
        s_lshl_b32 s{sB}, s{sV}, {7-h}
        s_add_u32 s{sA}, s{sA}, s{sB}
        s_add_u32 s{sA}, s{sA}, s{sC}
        v_lshrrev_b32 v1, 3, v0
        v_and_b32 v2, 7, v0
        v_mul_u32_u24 v28, {10240 >> h}, v1
        v_lshl_add_u32 v28, v2, {4-h}, v28
        v_add_u32 v28, s{sA}, v28
        v_lshrrev_b32 v1, 4, v0
        v_mul_u32_u24 v29, {XS}, v1
        v_lshl_add_u32 v29, v2, 1, v29
        s_lshl_b32 s{sA}, s{sV}, 4
        v_add_u32 v29, s{sA}, v29""")
    def x_gather(self, tag, shadow):
        A = self.A
        bf = self.o['xbf']
        def loads():
            for i, r in enumerate(("0", f"s{sK1}", f"s{sK2}")):
                A(f"buffer_load_dwordx2 {vr(52+2*i,2)}, v28, {srd(SWS)}, {r} offen sc1" if bf else f"buffer_load_dwordx4 {vr(48+4*i)}, v28, {srd(SWS)}, {r} offen sc1")
        def red():
            if bf: self.mix(self.unpack_sum(48, [52, 54, 56]))
            else:
                for i in range(4): A(f"v_add_f32 v{48+i}, v{48+i}, v{52+i}")
                for i in (0, 2, 1, 3): A(f"v_add_f32 v{48+i}, v{48+i}, v{56+i}")
            self.treduce(48, 49, 50, 51)
            A(f"v_add_f32_dpp v48, v48, v48 row_ror:8 {DPP}\nv_cvt_pk_bf16_f32 v49, 0, v48")
        self.poll(loads, range(52, 58) if bf else range(48, 60), red, (48, 48), tag=tag, shadow=shadow)

    def gu_stage(self):
        A = self.A
        A(f"s_lshr_b32 s{sA}, s{sV}, 2\ns_lshl_b32 s{sA}, s{sA}, 13\ns_add_u32 s{sA}, s{sA}, {L_WG}")
        self.tr_addr(35, sA)
        A(f"s_and_b32 s{sA}, s{sV}, 3\ns_lshl_b32 s{sA}, s{sA}, 5\nv_xor_b32 v35, s{sA}, v35")
        if self.o['defer']:
            l = self.lab("gw"); A(f"s_cmp_eq_u32 s{sP}, 0\ns_cbranch_scc1 {l}"); self.wfrags(12, 35, 2); self.end(l)
        else: self.wfrags(12, 35, 2)
        self.x_gather_pre(RX)
        self.xa_addr()
        self.region(sC, RG)
        A(f"""s_mul_i32 s{sA}, s{sSIG}, {GSL}
        s_add_u32 s{sA}, s{sA}, s{sC}
        s_lshl_b32 s{sB}, s{sV}, {7 if self.o['gbf'] else 8}
        s_add_u32 s{sB}, s{sB}, s{sA}
        v_lshl_add_u32 v32, v0, {3 if self.o['gbf'] else 4}, s{sB}
        s_lshl_b32 s{sB}, s{sV}, 6
        s_add_u32 s{sB}, s{sB}, s{sA}
        v_lshl_add_u32 v34, v0, 2, s{sB}
        v_lshrrev_b32 v1, 4, v0
        s_add_u32 s{sA}, s{sA}, 2560
        v_lshl_add_u32 v33, v1, 4, s{sA}""")
        self.sync(self.o['sync_x'], RX)
        def xsh():
            if self.o['dx']:
                l = self.pass0(); l3 = self.lab("nm"); le = self.lab("dxe")
                A(f"s_cbranch_execz {l3}")
                self.dma_addr(20, 1280)
                wf = self.o['wflag'].replace('plain', '')
                A(f"""s_and_b32 s{sA}, s{sV}, 1
                s_lshl_b32 s{sA}, s{sA}, 6
                v_xor_b32 v20, s{sA}, v20
                s_lshl_b32 s{sB}, s{sV}, 10
                s_add_u32 m0, s{sB}, {L_WD}
                s_mul_i32 s{sA}, s{sV}, {8*1280}
                buffer_load_dwordx4 v20, {srd(SWD)}, s{sA} offen {wf} lds""")
                self.end(l3)
                self.down_pre()
                A(f"s_waitcnt vmcnt(1)\ns_cbranch_execnz {self.lskip}")
                self.end(l)
            self.down_pre()
        if 'x' in self.o['early']: self.down_pre(); self.x_gather('x', None)
        else: self.x_gather('x', xsh)
        A(f"""v_add_f32 v{vXR}, v{vXR}, v49
        v_cvt_pk_bf16_f32 v{vXR}, 0, v{vXR}
        ds_write_b16_d16_hi v29, v{vXR} offset:{L_XA}""")
        self.stamp(7)
        def store(first, more=""):
            self.exec_mask(0xffff)
            st = f"buffer_store_dwordx4 v[48:51], v32, {srd(SWS)}, 0 offen{{f}}"
            if first: st += f"\ns_mov_b32 exec_lo, 0xffff0000\nbuffer_store_dword v48, v34, {srd(SWS)}, 0 offen offset:{2048-64}{{f}}"
            self.stores(st + "\n" + more, True, 'X')
            self.exec_full()
        self.mm_with_gram("v_mfma_f32_16x16x32_bf16 v[48:51], v[4:7], v[12:15], 0", "v_mfma_f32_16x16x32_bf16 v[48:51], v[8:11], v[16:19], v[48:51]", store, 'X',
                          late=(lambda: self.wfrags(12, 35, 2)) if self.o['defer'] else (lambda: None))
        self.stamp(8)

    def down_wpre(self):
        l = self.role(R_LT4)
        if self.o['dx']: self.A(f"s_cmp_eq_u32 s{sP}, 0\ns_cbranch_scc1 {l}")
        self.wfrags(20, 47, 2); self.end(l)
    def down_pre(self):
        A = self.A
        A(f"s_mov_b32 s{sA}, {L_WD}")
        self.tr_addr(47, sA)
        A(f"s_lshl_b32 s{sA}, s{sV}, 5\nv_xor_b32 v47, s{sA}, v47")
        self.afrag_addr(78, HS); self.pub_addr(79, RY)
        self.region(sD, RG)
        A(f"""s_mul_i32 s{sC}, s{sRI}, 10
        s_lshl_b32 s{sA}, s{sX}, 5
        s_add_u32 s{sC}, s{sC}, s{sA}
        s_mul_i32 s{sC}, s{sC}, {GSL}
        s_add_u32 s{sC}, s{sC}, s{sD}
        v_lshrrev_b32 v1, 4, v0
        v_mul_u32_u24 v3, {GSL}, v1
        v_add_u32 v3, s{sC}, v3
        v_bfe_u32 v2, v0, 3, 1
        v_lshlrev_b32 v2, 6, v2
        v_and_or_b32 v2, v0, 7, v2
        s_lshl_b32 s{sA}, s{sV}, 3
        v_add_u32 v2, s{sA}, v2
        v_lshl_add_u32 v72, v2, {3 if self.o['gbf'] else 4}, v3
        v_lshl_add_u32 v74, v2, 2, v3
        v_add_u32 v73, {8*GSL}, v72
        v_add_u32 v75, {8*GSL}, v74
        v_mov_b32 v3, {OOB}
        v_cmp_gt_u32 vcc, 32, v0
        v_cndmask_b32 v73, v3, v73, vcc
        v_cndmask_b32 v75, v3, v75, vcc
""")
        if 'g' in self.o['few']: A(f"""v_lshrrev_b32 v2, 2, v0
        v_mul_u32_u24 v76, {GSL}, v2
        v_and_b32 v2, 3, v0
        v_lshl_add_u32 v76, v2, 4, v76
        v_add_u32 v76, s{sC}, v76
        v_cmp_gt_u32 vcc, 40, v0
        v_cndmask_b32 v76, v3, v76, vcc""")
        else: A(f"""v_and_b32 v2, 15, v0
        v_mul_u32_u24 v76, {GSL}, v2
        v_lshl_add_u32 v76, v1, 4, v76
        v_add_u32 v76, s{sC}, v76
        v_cmp_gt_u32 vcc, 10, v2
        v_cndmask_b32 v76, v3, v76, vcc""")
        A(f"""        v_mul_u32_u24 v77, {HS}, v1
        v_and_b32 v2, 7, v0
        v_lshl_add_u32 v77, v2, 1, v77
        s_lshl_b32 s{sA}, s{sV}, 4
        v_add_u32 v77, s{sA}, v77
        v_mov_b32 v44, 0
        v_mov_b32 v45, 0
        v_mov_b32 v46, 0""")

    def down_stage(self):
        A = self.A
        if 'g' in self.o['bar']: A("s_barrier")
        self.sync(self.o['sync_g'])
        gb = self.o['gbf']
        lite = int(self.o['lite'])
        def loadsA():
            if lite: A(f"buffer_load_dwordx2 v[40:41], v76, {srd(SWS)}, 0 offen offset:2560 sc1")
            else: A(f"buffer_load_dwordx4 v[40:43], v76, {srd(SWS)}, 0 offen offset:2560 sc1")
        def loads():
            if gb: A(f"""buffer_load_dwordx2 v[56:57], v72, {srd(SWS)}, 0 offen sc1
            buffer_load_dwordx2 v[58:59], v72, {srd(SWS)}, s{sKG} offen sc1
            buffer_load_dwordx2 v[60:61], v73, {srd(SWS)}, 0 offen sc1""")
            else: A(f"""buffer_load_dwordx4 v[52:55], v72, {srd(SWS)}, 0 offen sc1
            buffer_load_dwordx4 v[56:59], v72, {srd(SWS)}, s{sKG} offen sc1
            buffer_load_dwordx4 v[60:63], v73, {srd(SWS)}, 0 offen sc1""")
            if lite: A(f"buffer_load_dwordx2 v[42:43], v76, {srd(SWS)}, 0 offen offset:2568 sc1")
            l = self.pass0()
            A(f"""buffer_load_dword v44, v74, {srd(SWS)}, 0 offen offset:2048 sc1
            buffer_load_dword v45, v74, {srd(SWS)}, s{sKG} offen offset:2048 sc1
            buffer_load_dword v46, v75, {srd(SWS)}, 0 offen offset:2048 sc1""")
            self.end(l)
        def red(s1):
            s0 = f"""v_add_f32 v35, v44, v45
            v_add_f32 v35, v35, v46
            v_mov_b32 v36, v35
            v_permlane32_swap_b32 v35, v36
            v_add_f32 v35, v35, v36
            v_mov_b32 v36, v35
            v_permlane16_swap_b32 v35, v36
            v_add_f32 v{vC}, v35, v36""".split('\n')
            s2 = (self.unpack_sum(52, [56, 58, 60]) if gb else [f"v_add_f32 v{52+i}, v{52+i}, v{56+i}" for i in range(4)] + [f"v_add_f32 v{52+i}, v{52+i}, v{60+i}" for i in (0, 2, 1, 3)]) + \
                 self.capture(lambda: self.treduce(52, 53, 54, 55))
            if lite: s2 = s2[:8] + ["v_add_f32 v64, v42, v43", "v_add_f32 v64, v64, v40"] + s2[8:]
            l = self.pass0(); le = self.lab("rv")
            self.mix(s1, s2, s0)
            A(f"s_cbranch_execnz {le}")
            self.end(l)
            self.mix(s1, s2)
            self.end(le)
            A(f"v_fma_f32 v52, -v37, v{vC}, v52\nv_mul_f32 v52, v52, v38\nv_cvt_pk_bf16_f32 v53, 0, v52")
        def post():
            A(f"""v_mul_f32 v54, s{sLOG2E}, v53
            v_exp_f32 v54, -v54
            v_add_f32 v54, 1.0, v54
            v_rcp_f32 v54, v54
            v_mul_f32 v54, v53, v54
            v_cvt_pk_bf16_f32 v54, 0, v54
            v_mul_f32_dpp v54, v53, v54 row_ror:8 {DPP}""")
            self.exec_mask(0x00ff00ff00ff00ff)
            A(f"v_cvt_pk_bf16_f32 v54, 0, v54\nds_write_b16_d16_hi v77, v54 offset:{L_HA}")
            self.exec_full()
        self.poll(loads, list(range(56, 62) if gb else range(52, 64)) + list(range(40, 47)), red, (52, 64), tag='g', shadow=self.down_wpre, post=post,
                  sent=(lambda: A(f"buffer_load_dword v2, v76, {srd(SWS)}, 0 offen offset:{2560+60} sc1"), 2),
                  pre=(loadsA, (40, 41) if lite else (40, 43), (["v_add_f32 v64, v42, v43"] + self.red_kb(40, 41, 4, 8) + self.lnstats(40, 41, 37, 38, 39) + ["v_add_f32 v64, v64, v40"]) if 'g' in self.o['few'] else self.red16([40, 41]) + self.lnstats(40, 41, 37, 38, 39) + ([] if lite else ["v_add_f32 v64, v42, v43", "v_add_f32 v64, v64, v40"])))
        self.stamp(9)
        l = self.role(R_LT4); le = self.lab("dn")
        A("s_waitcnt lgkmcnt(0)"); self.barrier('G')
        if self.o['dx']:
            l2 = self.pass0(); self.wfrags(20, 47, 2); self.end(l2)
        A(f"""ds_read_b128 v[4:7], v78 offset:{L_HA}
        ds_read_b128 v[8:11], v78 offset:{L_HA+64}
        s_waitcnt lgkmcnt(1)
        v_mfma_f32_16x16x32_bf16 v[68:71], v[4:7], v[20:23], 0
        s_waitcnt lgkmcnt(0)
        v_mfma_f32_16x16x32_bf16 v[68:71], v[8:11], v[24:27], v[68:71]""")
        self.pub_store(79, 'G')
        A(f"s_branch {le}")
        self.end(l)
        A("s_waitcnt lgkmcnt(0)"); self.barrier('G')
        self.end(le)
        if 'y' in self.o['bar']: A("s_barrier")
        self.stamp(10)
        self.mix(self.red_kb(42, 43, 12, 16) if 'g' in self.o['few'] else self.red16([42, 43]))
        l = self.pass0(); A(f"v_readfirstlane_b32 s{sSW}, v43"); self.end(l)
        A(f"""v_mov_b32 v43, s{sSW}
        v_fma_f32 v42, -v37, v43, v42
        v_mul_f32 v42, v42, v38
        v_cvt_pk_bf16_f32 v42, 0, v42
        v_mul_f32 v42, s{sLOG2E}, v42
        v_exp_f32 v42, -v42
        v_sub_f32 v{vXN}, v{vXR}, v37
        v_add_f32 v42, 1.0, v42
        v_rcp_f32 v42, v42
        v_cvt_pk_bf16_f32 v{vXN}, 0, v{vXN}
        v_cvt_pk_bf16_f32 v{vSG}, 0, v42
        v_mul_f32 v{vXN}, v{vXN}, v38
        v_cvt_pk_bf16_f32 v{vXN}, 0, v{vXN}""")

    def y_finish(self):
        self.A(f"""v_mul_f32 v49, v49, v{vSG}
        v_cvt_pk_bf16_f32 v49, 0, v49
        v_add_f32 v49, v{vXN}, v49
        v_cvt_pk_bf16_f32 v49, 0, v49
        v_add_f32 v{vXR}, v{vXR}, v49
        v_cvt_pk_bf16_f32 v{vXR}, 0, v{vXR}""")

    def qg_addr(self, extra):
        self.A(f"""s_lshr_b32 s{sA}, s{sT}, 3
        s_mul_i32 s{sA}, s{sA}, 3
        s_and_b32 s{sB}, s{sV}, 3
        s_add_u32 s{sA}, s{sA}, s{sB}
        s_lshr_b32 s{sB}, s{sA}, 2
        s_mul_i32 s{sB}, s{sB}, 10
        s_lshl_b32 s{sC}, s{sX}, 5
        s_add_u32 s{sB}, s{sB}, s{sC}
        s_mul_i32 s{sB}, s{sB}, {QSL}
        s_add_u32 s{sB}, s{sB}, {RQ[1]}
        s_and_b32 s{sA}, s{sA}, 3
        s_lshl_b32 s{sA}, s{sA}, 8
        s_add_u32 s{sA}, s{sA}, s{sB}
        s_add_u32 s{sA}, s{sA}, {extra}
        v_lshrrev_b32 v1, 4, v0
        v_and_b32 v2, 15, v0
        v_mul_u32_u24 v36, {QSL}, v1
        v_lshl_add_u32 v36, v2, 4, v36
        v_add_u32 v36, s{sA}, v36
        v_add_u32 v37, {8*QSL}, v36
        v_mov_b32 v3, {OOB}
        v_cmp_gt_u32 vcc, 32, v0
        v_cndmask_b32 v37, v3, v37, vcc
        v_lshlrev_b32 v40, 4, v2
        v_lshl_add_u32 v40, v1, 2, v40
        s_and_b32 s{sA}, s{sV}, 3
        s_lshl_b32 s{sA}, s{sA}, 8
        v_add_u32 v40, s{sA}, v40""")
    def cq_gather(self, idle, shadow=None, wait0=0):
        A = self.A
        l = self.role(R_456)
        self.qg_addr("4224")
        def loads(): A(f"""buffer_load_dwordx4 v[12:15], v36, {srd(SWS)}, 0 offen sc1
        buffer_load_dwordx4 v[16:19], v36, {srd(SWS)}, s{sKQ} offen sc1
        buffer_load_dwordx4 v[20:23], v37, {srd(SWS)}, 0 offen sc1""")
        def red():
            for i in range(4): A(f"v_add_f32 v{12+i}, v{12+i}, v{16+i}")
            for i in range(4): A(f"v_add_f32 v{12+i}, v{12+i}, v{20+i}")
            self.treduce(12, 13, 14, 15)
        self.poll(loads, range(12, 24), red, (12, 12), idle=idle, shadow=shadow, wait0=wait0)
        A(f"ds_write_b32 v40, v12 offset:{L_CQ}")
        self.end(l)
    def qg_pre(self):
        A = self.A
        l = self.role(R_456)
        A(f"s_bfe_u32 s{sD}, s{sT}, 0x20001\ns_lshl_b32 s{sF}, s{sD}, 10")
        self.qg_addr(f"s{sF}")
        A(f"""v_mul_u32_u24 v38, {QSL}, v2
        s_lshl_b32 s{sD}, s{sD}, 4
        s_add_u32 s{sD}, s{sD}, s{sB}
        s_add_u32 s{sD}, s{sD}, 4096
        v_add_u32 v38, s{sD}, v38
        v_cmp_gt_u32 vcc, 10, v{0 if 'q' in self.o['few'] else 2}
        v_cndmask_b32 v38, v3, v38, vcc
        ds_read_b32 v40, v40 offset:{L_CQ}""")
        self.q_lds_addr(39)
        A(f"s_lshr_b32 s{sA}, s{sA}, 1\nv_add_u32 v39, s{sA}, v39")
        self.end(l)
    def prewarm_o1(self):
        self.mem(f"""v_lshlrev_b32 v1, 4, v0
        s_mul_i32 s{sA}, s{sSIG}, {OSL}
        s_add_u32 s{sA}, s{sA}, {RO[1]}
        s_mov_b32 exec_hi, 0xffffff
        buffer_load_dwordx4 v[60:63], v1, {srd(SWS)}, s{sA} offen sc1
        s_mov_b32 exec_hi, -1""")

    def q_stage_and_final(self):
        A = self.A
        A(f"s_cmp_eq_u32 s{sP}, 1\ns_cbranch_scc1 L_final")
        if self.o['prewarm']:
            l = self.role(R_GE4); la = self.lab("pw"); lb = self.lab("pw"); l3 = self.lab("nm")
            A(f"""s_cbranch_execz {l3}
            v_lshlrev_b32 v1, 4, v0
            s_cmp_ge_u32 s{sV}, 6
            s_cbranch_scc1 {la}
            s_and_b32 s{sB}, s{sV}, 1
            s_lshl_b32 s{sB}, s{sB}, 11
            s_mul_i32 s{sA}, s{sSIG}, {QSL}
            s_add_u32 s{sA}, s{sA}, {RQ[1]}
            s_add_u32 s{sB}, s{sA}, s{sB}
            buffer_load_dwordx4 v[60:63], v1, {srd(SWS)}, s{sB} offen sc1
            buffer_load_dwordx4 v[60:63], v1, {srd(SWS)}, s{sB} offen offset:1024 sc1
            s_add_u32 s{sA}, s{sA}, 4096
            s_mov_b64 exec, 0xff
            buffer_load_dwordx4 v[60:63], v1, {srd(SWS)}, s{sA} offen sc1
            s_branch {lb}
            {la}:
            s_mul_i32 s{sA}, s{sSIG}, {GSL}
            s_add_u32 s{sA}, s{sA}, {RG[1]}
            s_cmp_eq_u32 s{sV}, 6
            s_cselect_b32 s{sB}, 0, 0x400
            s_add_u32 s{sB}, s{sB}, s{sA}
            buffer_load_dwordx4 v[60:63], v1, {srd(SWS)}, s{sB} offen sc1
            s_add_u32 s{sA}, s{sA}, 2560
            s_mul_i32 s{sB}, s{sSIG}, {OSL}
            s_add_u32 s{sB}, s{sB}, {RO[1]}
            s_cmp_eq_u32 s{sV}, 6
            s_cselect_b32 s{sA}, s{sA}, s{sB}
            s_cselect_b32 exec_lo, 0xff, -1
            s_cselect_b32 exec_hi, 0, 0xffffff
            buffer_load_dwordx4 v[60:63], v1, {srd(SWS)}, s{sA} offen sc1
            {lb}:
            s_mov_b64 exec, -1""")
            self.end(l3); self.end(l)
        A(f"s_lshr_b32 s{sA}, s{sV}, 1\ns_lshl_b32 s{sA}, s{sA}, 13\ns_add_u32 s{sA}, s{sA}, {L_WQ}")
        self.tr_addr(34, sA)
        A(f"s_and_b32 s{sA}, s{sV}, 1\ns_lshl_b32 s{sA}, s{sA}, 6\nv_xor_b32 v34, s{sA}, v34\nv_xor_b32 v35, 32, v34")
        self.wfrags(12, 34, 2); self.wfrags(20, 35, 2)
        self.x_gather_pre(RY)
        self.xa_addr()
        A(f"""v_and_b32 v1, 15, v0
        v_lshlrev_b32 v32, 10, v1
        v_lshrrev_b32 v1, 4, v0
        v_lshl_add_u32 v32, v1, 4, v32
        s_mul_i32 s{sB}, s{sSIG}, {QSL}
        s_add_u32 s{sB}, s{sB}, {RQ[1]}
        s_lshl_b32 s{sA}, s{sV}, 7
        s_add_u32 s{sA}, s{sA}, s{sB}
        v_add_u32 v32, s{sA}, v32
        s_add_u32 s{sB}, s{sB}, 4096
        v_lshl_add_u32 v33, v1, 4, s{sB}""")
        self.sync(self.o['sync_y'], RY)
        if 'y' in self.o['early']: self.attn_pre(); self.x_gather('y', self.qg_pre)
        else: self.x_gather('y', lambda: (self.attn_pre(), self.qg_pre()))
        self.y_finish()
        A(f"ds_write_b16_d16_hi v29, v{vXR} offset:{L_XA}")
        self.stamp(11)
        def store(first, more=""):
            self.exec_mask(0x000f000f000f000f)
            self.stores(f"buffer_store_dwordx4 v[48:51], v32, {srd(SWS)}, 0 offen{{f}}\nbuffer_store_dwordx4 v[52:55], v32, {srd(SWS)}, 0 offen offset:64{{f}}\n" + more, True, 'Y')
            self.exec_full()
        self.mm_with_gram("v_mfma_f32_16x16x32_bf16 v[48:51], v[12:15], v[4:7], 0\nv_mfma_f32_16x16x32_bf16 v[52:55], v[20:23], v[4:7], 0",
                          "v_mfma_f32_16x16x32_bf16 v[48:51], v[16:19], v[8:11], v[48:51]\nv_mfma_f32_16x16x32_bf16 v[52:55], v[24:27], v[8:11], v[52:55]", store, 'Y')
        if 'q' in self.o['bar']: A("s_barrier")
        A("L_qwait:")
        l = self.role(R_456)
        self.sync(self.o['sync_q'])
        def loadsA(): A(f"buffer_load_dwordx2 v[16:17], v38, {srd(SWS)}, 0 offen sc1")
        def loads(): A(f"""buffer_load_dwordx4 v[4:7], v36, {srd(SWS)}, 0 offen sc1
        buffer_load_dwordx4 v[8:11], v36, {srd(SWS)}, s{sKQ} offen sc1
        buffer_load_dwordx4 v[12:15], v37, {srd(SWS)}, 0 offen sc1""")
        def red(s1):
            s2 = [f"v_add_f32 v{4+i}, v{4+i}, v{8+i}" for i in range(4)] + [f"v_add_f32 v{4+i}, v{4+i}, v{12+i}" for i in (0, 2, 1, 3)] + self.capture(lambda: self.treduce(4, 5, 6, 7))
            self.mix(s1, s2)
            if 'q' in self.o['few']: A(f"v_fma_f32 v4, -s{sA}, v40, v4\nv_mul_f32 v4, s{sB}, v4\nv_cvt_pk_bf16_f32 v5, 0, v4")
            else: A("v_fma_f32 v4, -v18, v40, v4\nv_mul_f32 v4, v4, v19\nv_cvt_pk_bf16_f32 v5, 0, v4")
        self.poll(loads, range(4, 18), red, (4, 16), idle=True, tag='q', shadow=lambda: self.attn_zero(skip=range(36, 41)), pre=(loadsA, (16, 17), self.red16([16, 17]) + self.lnstats(16, 17, 18, 19, 21) + ([f"v_readfirstlane_b32 s{sA}, v18", f"v_readfirstlane_b32 s{sB}, v19"] if 'q' in self.o['few'] else [])),
                  post=lambda: A(f"ds_write_b16_d16_hi v39, v5 offset:{L_QL}"))
        le = self.lab("qz")
        for r in range(36, 41): A(f"v_mov_b32 v{r}, 0")
        A(f"s_mov_b32 s{sP}, 1\ns_branch L_attn_bar")
        self.end(l)
        self.attn_zero()
        A(f"s_mov_b32 s{sP}, 1")
        if int(self.o['wb']) == 1:
            A(f"s_cmp_eq_u32 s{sT}, 30\ns_cbranch_scc0 L_attn_bar\ns_cmp_eq_u32 s{sV}, 3\ns_cbranch_scc0 L_attn_bar\ns_barrier\nbuffer_wbl2 sc1\ns_branch L_attn")
        else: A("s_branch L_attn_bar")
        A(f"L_idle:\ns_cmp_eq_u32 s{sP}, 0\ns_cbranch_scc0 L_done")
        if self.o['prewarm']:
            l = self.role(R_7); self.prewarm_o1(); A("s_waitcnt vmcnt(0)"); self.end(l)
        self.cq_gather(True)
        A("s_waitcnt lgkmcnt(0)")
        if self.o['clr'] == 'late':
            l = self.role(R_456); lp = self.lab("ig"); lr = self.lab("igr")
            A(f"""s_lshl_b32 s{sA}, s{sX}, 5
            s_mul_i32 s{sA}, s{sA}, {GSL}
            s_add_u32 s{sA}, s{sA}, {RG[0] + 2560}
            v_min_u32 v1, 29, v0
            v_mul_u32_u24 v1, {GSL}, v1
            {lp}:
            buffer_load_dword v4, v1, {srd(SWS)}, s{sA} offen sc1
            s_waitcnt vmcnt(0)
            v_cmp_eq_u32 vcc, -1, v4
            s_cbranch_vccnz {lr}""")
            self.tail.append(f"{lr}:\ns_sleep 4\ns_sub_u32 s{sTO}, s{sTO}, 1\ns_cbranch_scc1 L_end\ns_branch {lp}")
            self.end(l)
        self.attn_pre(); self.qg_pre()
        A("s_waitcnt lgkmcnt(0)\ns_branch L_qwait")
        A("L_final:")
        if int(self.o['wb3']):
            l = self.lab("wb3"); A(f"s_cmp_eq_u32 s{sT}, 29\ns_cbranch_scc0 {l}\ns_cmp_eq_u32 s{sV}, 7\ns_cbranch_scc0 {l}\nbuffer_wbl2 sc1\n{l}:")
        A(f"""s_and_b32 s{sA}, s{sT}, 7
        s_cmp_eq_u32 s{sA}, s{sX}
        s_cbranch_scc0 L_done
        s_cmp_lt_u32 s{sT}, 10
        s_cbranch_scc0 L_done
        L_final_body:""")
        self.x_gather_pre(RY); self.xcol_addr(29)
        self.sync(self.o['sync_f'], RY)
        self.x_gather('f', None)
        self.y_finish()
        self.exec_mask(0x00ff00ff00ff00ff)
        self.mem(f"buffer_store_short_d16_hi v{vXR}, v29, {srd(SOUT)}, 0 offen {self.o['outf'].replace('plain', '').replace('_', ' ')}")
        self.exec_full()
        if self.o['dry']: A(f"s_cmp_eq_u32 s{sDRY}, 1\ns_cbranch_scc1 L_stubs")
        A("L_done:")
        if int(self.o['pad']):
            A(f"""L_pad:
            s_memrealtime s[90:91]
            s_waitcnt lgkmcnt(0)
            s_sub_u32 s90, s90, s96
            s_cmp_lt_u32 s90, {int(self.o['pad'])*100}
            s_cbranch_scc1 L_pad""")
        if self.prof: self.stamp(11)
        A("L_end:")
        if self.o['t2']: A("s_waitcnt vmcnt(0)\ns_memrealtime s[68:69]\ns_mov_b32 s64, s96")
        if self.o['fine'] or self.o['t2']: A("s_waitcnt lgkmcnt(0)")
        if self.prof or self.o['fine'] or self.o['t2']:
            A(f"""s_mov_b64 exec, -1
            s_lshl_b32 s{sA}, s2, 3
            s_add_u32 s{sA}, s{sA}, s{sV}
            s_lshl_b32 s{sA}, s{sA}, 7
            s_add_u32 s{sA}, s{sA}, {STAMP}
            v_mov_b32 v1, 0""")
            for i in range(24): A(f"v_mov_b32 v{4+i}, s{sST+i}")
            A(f"v_mov_b32 v28, s{sFAST}\nv_mov_b32 v29, s{sTO}\nv_mov_b32 v30, 0\nv_mov_b32 v31, 0\ns_mov_b64 exec, 1")
            for i in range(7): A(f"buffer_store_dwordx4 {vr(4+4*i)}, v1, {srd(SWS)}, s{sA} offen offset:{16*i}")
        A("L_exit:\ns_endpgm\nL_stubs:")
        for st in self.stubs: A(st)
        A("s_branch L_dry_ret" if self.o['dry'] else "s_endpgm")

    def build(self):
        self.prologue(); self.startup(); self.attention(); self.wo_stage(); self.gu_stage(); self.down_stage(); self.q_stage_and_final()
        i = 0
        while i < len(self.tail): self.A(self.tail[i]); i += 1
        if not self.o['dry']:
            self.L = [l.replace('s_cbranch_execnz', 's_branch') for l in self.L if not l.startswith('s_cbranch_execz')]
        used = set(l.split()[1] for l in self.L if l.startswith(('s_cbranch', 's_branch')))
        self.L = [l for l in self.L if not (l.endswith(':') and l[:-1] not in used and l[:-1] not in ('L_attn',))]
        body, nn = resolve(self.L)
        if int(self.o['a8']):
            body, a, b = align8(body, "L_attn:", int(self.o['a8']), int(self.o['a8n'])); print("align8 widened", a, "nops", b)
        hdr = open('interleave_layers__sliding_block_cached__moe_arch_mod__decode.s.ref').read().split('\n')
        hl = [l for l in hdr if l.startswith(';') and '@launch' not in l]
        hl = hl[:hl.index([l for l in hl if 'Override launch' in l][0])]
        doc = """;
; One persistent workgroup per CU (8 waves, 256 registers each).  Workgroup w = 8t + x keeps half of one
; (batch, head) K/V window resident for both attention layers: K in a0-a95, V in v88-v159 and LDS.
; The weight slices live in LDS.  The small matrix-vector stages run on a 10 x 3 grid of workgroups per
; group x and hand partial results over through d_ws:
;   q partials -> attention -> o partials -> wo -> x partials -> gate/up -> down -> y partials -> wq -> ...
; Hand-off words are set to 0xffffffff (a NaN) at start-up, so a consumer sees from the data itself whether it
; has arrived; a per-launch tag (d_ws epoch word + 1) marks the start-up flags and the first q partials.
; Stores to consumers of the same group skip the write-through only when the flags show that the whole
; group runs on one XCD; otherwise they are sc1 like the cross-group stores.
; LayerNorm is applied after the K-split products: (x@W - mean*colsum(W)) / std.""".split('\n')
        out = hl + doc + [f"; @launch grid=(256,1,1) block=(512,1,1) lds={LDS_SIZE}",
                    '.amdgcn_target "amdgcn-amd-amdhsa--gfx950"', ".text", f".globl {NAME}", ".p2align 8", f".type {NAME},@function", f"{NAME}:"]
        out += [("" if l.endswith(':') else "    ") + l for l in body]
        out += ['.section .rodata,"a"', ".p2align 6", f".amdhsa_kernel {NAME}",
                "  .amdhsa_next_free_vgpr 256", "  .amdhsa_next_free_sgpr 102", "  .amdhsa_accum_offset 160",
                "  .amdhsa_group_segment_fixed_size 0", "  .amdhsa_kernarg_size 104", "  .amdhsa_user_sgpr_count 2",
                "  .amdhsa_user_sgpr_kernarg_segment_ptr 1", "  .amdhsa_system_sgpr_workgroup_id_x 1",
                "  .amdhsa_float_denorm_mode_32 3", ".end_amdhsa_kernel"]
        return "\n".join(out) + "\n", nn

if __name__ == "__main__":
    path = sys.argv[1]
    opts = {}; prof = False
    for a in sys.argv[2:]:
        if a == 'prof': prof = True
        else:
            k, v = a.split('=')
            opts[k] = {'True': True, 'False': False}.get(v, v)
    s, nn = G(prof, opts).build()
    open(path, 'w').write(s)
    print("wrote", path, len(s.split('\n')), "lines, nops inserted:", nn)
```

```python
import sys
from asmlib import resolve, align8

NAME = "interleave_layers__sliding_block_cached__moe_arch_mod__decode_kernel"

OSL, GSL, QSL, Q0SL, XSZ = 896, 2688, 5248, 5248, 245760
RO = [0, 0]
RX = [256 * OSL, 256 * OSL + XSZ]
RY = [RX[1] + XSZ, RX[1] + 2 * XSZ]
RG = [RY[1] + XSZ] * 2
RQ = [RG[1] + 256 * GSL] * 2
RF = RQ[1] + 256 * QSL
RE = RF + 32768
RF2 = RE + 128
WS_END = RE + 2048
STAMP = WS_END
WS_SIZE = WS_END + 256 * 8 * 128
OOB = 0x7ff00000
L_OC = 0
L_ML = L_OC + 12288
L_XA = L_ML + 64; XS = 144
L_HA = L_XA + 6 * XS; HS = 192
L_OA = L_HA + 4 * HS; OS = 576
L_QL = L_OA + 4 * OS
L_FL = L_QL + 400
L_CQ = L_FL + 32
L_CS = L_CQ + 768
L_X0 = L_CS + 1024
L_WD = (L_X0 + 5120 + 127) // 128 * 128
L_WG = L_WD + 8192
L_WU = L_WG + 8192
L_WO = L_WU + 8192
L_WQ = L_WO + 32768
L_VP = L_WQ + 32768
LDS_SIZE = L_VP + 8 * 6144
assert LDS_SIZE <= 163840
sW, sV, sX, sT, sP, sDRY = 2, 3, 4, 5, 6, 7
SK, SVV, SWS, SWQ, SWO, SWG, SWU, SWD, SX0, SWR, SOUT = range(8, 52, 4)
sAI, sRI, sSIG, sSLOT = 52, 53, 54, 55
sFAST, sROLE, sTO, sEPS = 56, 57, 58, 59
sFULL = 60
sA, sB, sC, sD, sE, sF = 62, 63, 88, 89, 90, 91
sM = 92
sLOG2E, sSCALE, sINVN = 93, 94, 95
sG, sXCC, sSAVE, sTAG = 98, 99, 100, 101
sST = 64
R_LT4, R_GE4, R_456, R_7, R_6, R_GR = range(6)
sLO, sHI, sSW, sTB = 44, 45, 46, 47
sK1, sK2, sKG, sKQ = 40, 41, 42, 43
vXR, vXN, vSG, vC = 80, 81, 82, 83
VBASE = 88
ODD = 0xAAAAAAAAAAAAAAAA

def srd(b): return f"s[{b}:{b+3}]"
def vr(a, n=4): return f"v[{a}:{a+n-1}]" if n > 1 else f"v{a}"
def ar(a, n=4): return f"a[{a}:{a+n-1}]"
DPP = "row_mask:0xf bank_mask:0xf"

class G:
    def __init__(self, prof=False, opts=None):
        self.L = []; self.tail = []; self.stubs = []; self.n = 0; self.prof = prof
        self.o = dict(dry=False, sync_o='sleep0', sync_x='acklo0', sync_g='sleep0', sync_y='acklo0', sync_q='sleep0', sync_f='acklo', fast=True,
                      clear='sc1', wflag='plain', bsleep=8, pad=0, probe=-1, probep=0, kvflag='nt', defer=True, cwo='0,0,0,0', cgud='4,2,2,0', csplit=True, prewarm=True, two='oqg', prio=4, at2=0, pk=0, mle=0, a8=0, a8n=4, dwo='gud', dx='', noq0=0, al=8, alo=0, clr='xy', tq='', asl=0, pwo=True, t2=False, xbf=False, gbf=False, qbf=False, quick=False, gramw=3, fine='', finep=-1, finei='s_memtime', ldi='sc1', ldx='sc1', stx='sc1', sti='plain', wb=2, pto=0, shf=1, mlb=0, mld=0, q0w=-1, q0p=3, g7=0, nos=0, gap=0, cb=1, pl='z', inl=0, t2p='', t2q=0, xt='', outf='plain', wb3=0, chkw=0, agg=0, flk=0, fl=0, w2=1, bar='oqg', tqwo=32, tqat=4, tqlim=0, one='', few='z', lite=0, onew=4, vlin=0, early='xy', q0st='sc1', q0ld='sc1')
        self.o.update(opts or {})
        for k in ('dwo', 'dx'): self.o[k] = self.o[k].replace('-', '')
        if not self.o['defer']: self.o['dwo'] = self.o['dx'] = ''
        self.o['defer'] = bool(set(self.o['dwo']) & set('gu'))
    def A(self, s):
        for l in s.split('\n'):
            l = l.strip()
            if l: self.L.append(l)
    def lab(self, p):
        self.n += 1; return f"L_{p}_{self.n}"
    def exec_mask(self, m):
        self.A(f"s_and_b32 exec_lo, s{sFULL}, 0x{m & 0xffffffff:x}\ns_and_b32 exec_hi, s{sFULL}, 0x{m >> 32:x}")
    def exec_full(self): self.A(f"s_mov_b64 exec, s[{sFULL}:{sFULL+1}]")
    def barrier(self, tag='z'):
        self.fs(tag + 'a')
        l = self.lab("nb"); self.A(f"s_cbranch_execz {l}\ns_barrier\n{l}:")
        self.fs(tag + 'b')
    def role(self, bit):
        l = self.lab("role"); self.A(f"s_bitcmp1_b32 s{sROLE}, {bit}\ns_cbranch_scc0 {l}"); return l
    def pass0(self):
        l = self.lab("p0"); self.A(f"s_cmp_eq_u32 s{sP}, 0\ns_cbranch_scc0 {l}"); return l
    def end(self, l): self.A(f"{l}:")
    def mem(self, lines):
        l = self.lab("nm"); self.A(f"s_cbranch_execz {l}"); self.A(lines); self.A(f"{l}:")
    def capture(self, fn):
        save = self.L; self.L = []; fn(); out = self.L; self.L = save; return out
    def stores(self, lines, intra, tag='z'):
        self.fs(tag + 's')
        if intra and self.o['fast']:
            l1 = self.lab("st"); l2 = self.lab("st")
            self.A(f"s_cbranch_execz {l2}\ns_cmp_eq_u32 s{sFAST}, 0\ns_cbranch_scc1 {l1}")
            self.A(lines.format(f=' ' + self.o['sti'].replace('plain', '').replace('_', ' '))); self.A(f"{l2}:")
            self.tail.append(f"{l1}:\n" + lines.format(f=" sc1") + f"\ns_branch {l2}")
        else:
            self.mem(lines.format(f=' ' + self.o['stx'].replace('_', ' ')))
    def poll(self, loads0, regs, reduce, chk, idle=False, tag='z', shadow=None, wait0=0, pre=None, post=None, sent=None):
        A = self.A
        fl = ' ' + self.o['ldx' if tag in 'xyf' else 'ldi'].replace('_', ' ')
        def loads():
            for x in self.capture(loads0): A(x[:-4] + fl if x.endswith(' sc1') else x)
        lw = self.lab("pw"); lr = self.lab("retry"); ls = self.lab("slow"); lo = self.lab("ok"); l2 = self.lab("slow")
        self.fs(tag + '0')
        exact_pre = None
        if pre and tag in self.o['one']:
            l = self.lab("sn"); la = self.lab("sna"); lb = self.lab("snb")
            if shadow: shadow()
            shadow = None
            A(f"s_cmp_eq_u32 s{sV}, {self.o['onew']}\ns_cbranch_scc0 {l}\ns_movk_i32 s{sG}, 0x100\ns_mov_b64 exec, 0xffff\n{la}:")
            sent[0]()
            A(f"s_sub_u32 s{sG}, s{sG}, 1\ns_waitcnt vmcnt(0)\ns_cbranch_scc1 {lb}\nv_cmp_eq_u32 vcc, -1, v{sent[1]}\ns_cbranch_vccnz {la}\n{lb}:\ns_mov_b64 exec, -1\n{l}:\ns_barrier")
            self.fs(tag + '3')
            l0, r0, p0 = loads, reduce, pre
            def loads():
                ls_ = self.capture(l0)
                k = [i for i, x in enumerate(ls_) if not x.startswith('buffer_load')]
                k = k[0] if k else len(ls_)
                self.mix(ls_[k:]); p0[0](); self.mix(ls_[:k])
                A(f"s_waitcnt vmcnt({k})"); self.mix(p0[2])
            def reduce(): r0([])
            exact_pre = p0
            pre = None
        elif pre and tag not in self.o['two']:
            l0, r0, p0 = loads, reduce, pre
            loads = lambda: (p0[0](), l0()); reduce = lambda: r0(p0[2]); pre = None
        elif pre:
            la = self.lab("pa"); lb = self.lab("pb"); l = self.lab("nm")
            A(f"s_cbranch_execz {l}"); pre[0](); A(f"{l}:\ns_movk_i32 s{sG}, 0x100")
            if shadow: shadow()
            shadow = lambda: self.mix(pre[2])
            A(f"s_waitcnt vmcnt(0)\nv_cmp_u_f32 vcc, v{pre[1][0]}, v{pre[1][1]}\ns_cbranch_vccz {lb}\n{la}:")
            if int(self.o['asl']): A(f"s_sleep {self.o['asl']}")
            pre[0]()
            A(f"s_sub_u32 s{sG}, s{sG}, 1\ns_waitcnt vmcnt(0)\ns_cbranch_scc1 {lb}\nv_cmp_u_f32 vcc, v{pre[1][0]}, v{pre[1][1]}\ns_cbranch_vccnz {la}\n{lb}:")
            self.fs(tag + '3')
            r0 = reduce; reduce = lambda: r0([])
        l = self.lab("nm"); A(f"s_cbranch_execz {l}"); loads(); A(f"{l}:\ns_movk_i32 s{sG}, 0x100")
        self.lskip = self.lab("nw")
        lskip = self.lskip
        if shadow: shadow()
        if wait0:
            l = self.lab("w0"); A(f"s_waitcnt vmcnt({wait0})\ns_branch {l}\n{lw}:\ns_waitcnt vmcnt(0)\n{l}:")
        elif int(self.o['inl']):
            A(f"s_branch {lw}\n{lr}:\ns_sub_u32 s{sG}, s{sG}, 1\ns_cbranch_scc1 {ls}"); loads(); A(f"{lw}:\ns_waitcnt vmcnt(0)")
        else: A(f"{lw}:\ns_waitcnt vmcnt(0)")
        A(f"{lskip}:")
        self.fs(tag + '1')
        reduce()
        A(f"v_cmp_u_f32 vcc, v{chk[0]}, v{chk[1]}")
        if post: post()
        A(f"s_cbranch_vccnz {lr}\n{lo}:")
        self.fs(tag + '2')
        if self.o['fine'].split(',')[-1] == tag + 'n': A(f"s_sub_u32 s86, 0x101, s{sG}")
        def stub():
            A(f"{lr}:")
            if idle:
                l = self.lab("idl"); A(f"s_cmp_lt_u32 s{sT}, 30\ns_cbranch_scc1 {l}\ns_sleep 4\n{l}:")
            A(f"s_sub_u32 s{sG}, s{sG}, 1\ns_cbranch_scc1 {ls}")
            if self.prof: A(f"s_sub_u32 s{sTO}, s{sTO}, 1")
            l = self.lab("nm"); A(f"s_cbranch_execz {l}"); loads(); A(f"s_branch {lw}\n{l}:")
        if wait0 or not int(self.o['inl']): self.stubs.append("\n".join(self.capture(stub)))
        def slow():
            nonlocal pre
            A(f"{l2}:\ns_sub_u32 s{sTO}, s{sTO}, 1\ns_cbranch_scc1 L_end\n{ls}:")
            if exact_pre: pre = exact_pre
            if pre: pre[0]()
            (l0 if exact_pre else loads)(); A("s_waitcnt vmcnt(0)")
            r = list(regs)
            A(f"v_max_u32 v1, v{r[0]}, v{r[1]}"); r = r[2:]
            while r:
                if len(r) >= 2: A(f"v_max3_u32 v1, v1, v{r[0]}, v{r[1]}"); r = r[2:]
                else: A(f"v_max_u32 v1, v1, v{r[0]}"); r = []
            A(f"v_cmp_eq_u32 vcc, -1, v1\ns_cbranch_vccnz {l2}")
            if pre: self.mix(pre[2])
            reduce()
            if post: post()
            A(f"s_branch {lo}")
        self.tail.append("\n".join(self.capture(slow)))
    def lane_tag(self, d, lo):
        self.A(f"s_mul_i32 s{sA}, s{sTB}, 0x01010101\nv_bfe_u32 v{d}, v0, {lo}, 2\nv_lshlrev_b32 v{d}, 3, v{d}\nv_lshrrev_b32 v{d}, v{d}, s{sA}")
    def pre_store(self, m, regs, ref):
        for r in regs: self.A(f"v_mov_b32_sdwa v{r}, v{ref} dst_sel:BYTE_0 dst_unused:UNUSED_PRESERVE src0_sel:BYTE_0")
        self.exec_mask(m)
    def settag(self, r): self.A(f"v_mov_b32_sdwa v{r}, s{sTB} dst_sel:BYTE_0 dst_unused:UNUSED_PRESERVE src0_sel:BYTE_0")
    def tagchk(self, full, half=(), ref=None):
        cm = []; ors = []; prs = [f"s[{sA}:{sB}]", f"s[{sC}:{sD}]", f"s[{sE}:{sF}]", "s[96:97]", "s[98:99]"]
        regs = list(half) + list(full)
        for i, r in enumerate(regs):
            d = "vcc" if i == 0 else prs[i - 1]
            cm.append(f"v_cmp_ne_u32_sdwa {d}, v{r}, {ref or 's%d' % sTB} src0_sel:BYTE_0 src1_sel:BYTE_0")
            cm.append(f"v_and_b32 v{r}, 0xffffff00, v{r}")
            if i: ors.append(f"s_or_b64 vcc, vcc, {d}")
            if half and i == len(half) - 1: ors.append("s_mov_b32 vcc_hi, 0")
        return cm, ors
    def tpoll(self, loadsA, execA, tagsA, shadow, chain, loads, reduce, post, tag):
        A = self.A
        la = self.lab("pa"); lb = self.lab("pb"); lw = self.lab("pw"); lr = self.lab("retry")
        def chkA():
            if tag == 'g': A(f"v_cmp_ne_u32_sdwa vcc, v{tagsA[0]}, v85 src0_sel:BYTE_0 src1_sel:BYTE_0")
            else: A(f"v_cmp_ne_u32 vcc, s{sTB}, v{tagsA[0]}")
            if len(tagsA) > 1: A(f"v_cmp_ne_u32 s[{sA}:{sB}], s{sTB}, v{tagsA[1]}\ns_or_b64 vcc, vcc, s[{sA}:{sB}]")
        ex = lambda: A(f"s_mov_b32 exec_lo, 0x{execA & 0xffffffff:x}\ns_mov_b32 exec_hi, 0x{execA >> 32:x}") if execA else None
        self.fs(tag + '0')
        if loadsA:
            ex(); loadsA()
            if shadow:
                if execA: A("s_mov_b64 exec, -1")
                shadow(); ex()
            A("s_waitcnt vmcnt(0)"); chkA()
            A(f"s_cbranch_vccz {lb}\n{la}:"); loadsA()
            A(f"s_sub_u32 s{sTO}, s{sTO}, 1\ns_waitcnt vmcnt(0)\ns_cbranch_scc1 L_end"); chkA()
            A(f"s_cbranch_vccnz {la}\n{lb}:")
            if execA: A("s_mov_b64 exec, -1")
        self.fs(tag + '3')
        loads(); self.mix(chain)
        if int(self.o['inl']) > 1:
            A(f"s_branch {lw}\n{lr}:\ns_sub_u32 s{sTO}, s{sTO}, 1\ns_cbranch_scc1 L_end"); loads()
        A(f"{lw}:\ns_waitcnt vmcnt(0)")
        self.fs(tag + '1')
        reduce(); post()
        A(f"s_cbranch_vccnz {lr}")
        self.fs(tag + '2')
        if int(self.o['inl']) < 2: self.stubs.append("\n".join(self.capture(lambda: (A(f"{lr}:\n{('s_add_u32 s86, s86, s6' if int(self.o['finep']) == 1 else 's_add_u32 s86, s86, 1') if self.o['fine'].split(',')[-1] == tag + 'n' else ''}\ns_sub_u32 s{sTO}, s{sTO}, 1\ns_cbranch_scc1 L_end"), loads(), A(f"s_branch {lw}")))))
    def stamp(self, i, both=True):
        if int(self.o['probe']) == i:
            l = self.lab("probe")
            self.A(f"s_cmp_eq_u32 s{sP}, {self.o['probep']}\ns_cbranch_scc0 {l}\ns_cbranch_execz {l}\ns_memrealtime s[96:97]\ns_waitcnt lgkmcnt(0)\n{l}:")
        if not self.prof: return
        self.A("s_memrealtime s[96:97]\ns_waitcnt lgkmcnt(0)")
        if both:
            self.A(f"s_cmp_eq_u32 s{sP}, 0\ns_cselect_b32 s{sST+i}, s96, s{sST+i}\ns_cselect_b32 s{sST+12+i}, s{sST+12+i}, s96")
        else:
            self.A(f"s_mov_b32 s{sST+i}, s96")
    def fs(self, name):
        if self.o['t2'] and name == self.o['t2p']:
            l = self.lab("t2"); self.A(f"s_cmp_eq_u32 s{sP}, {self.o['t2q']}\ns_cbranch_scc0 {l}\ns_memrealtime s[66:67]\n{l}:")
        names = self.o['fine'].split(',') if self.o['fine'] else []
        if name in names:
            i = names.index(name)
            if int(self.o['finep']) >= 0:
                l = self.lab("fs"); self.A(f"s_cmp_eq_u32 s{sP}, {self.o['finep']}\ns_cbranch_scc0 {l}\n{self.o['finei']} s[{64+2*i}:{65+2*i}]\n{l}:")
            else: self.A(f"{self.o['finei']} s[{64+2*i}:{65+2*i}]")
    def sync(self, kind, R=None):
        if kind.startswith('sent'):
            A = self.A; w = int(kind[4:5]); off = int(kind[5:] or 1008)
            l = self.lab("sn"); la = self.lab("sna"); lb = self.lab("snb")
            A(f"s_cmp_eq_u32 s{sV}, {w}\ns_cbranch_scc0 {l}")
            self.region(sC, R)
            A(f"""s_lshl_b32 s{sA}, s{sAI}, 10
            s_add_u32 s{sA}, s{sA}, s{sC}
            v_min_u32 v1, 23, v0
            v_mul_u32_u24 v1, 10240, v1
            s_movk_i32 s{sG}, 0x200
            s_mov_b32 exec_hi, 0
            {la}:
            buffer_load_dword v2, v1, {srd(SWS)}, s{sA} offen offset:{off} sc1
            s_sub_u32 s{sG}, s{sG}, 1
            s_waitcnt vmcnt(0)
            s_cbranch_scc1 {lb}
            v_cmp_eq_u32 vcc, -1, v2
            s_cbranch_vccnz {la}
            {lb}:
            s_mov_b32 exec_hi, -1
            {l}:""")
            self.barrier()
            return
        if kind == 'ack': self.A("s_waitcnt vmcnt(0)"); self.barrier()
        elif kind.startswith('acklo'):
            l = self.role(R_LT4); self.A("s_waitcnt vmcnt(0)"); self.end(l); self.barrier()
            if kind[5:] and int(kind[5:]): self.A(f"s_sleep {int(kind[5:])}")
        elif kind.startswith('sleep'):
            if int(kind[5:]): self.A(f"s_sleep {int(kind[5:])}")
        elif kind.startswith('acks'): self.A("s_waitcnt vmcnt(0)"); self.barrier(); self.A(f"s_sleep {int(kind[4:])}")
    def treduce(self, r0, r1, r2, r3):
        self.A(f"""v_permlane32_swap_b32 v{r0}, v{r2}
        v_permlane32_swap_b32 v{r1}, v{r3}
        v_add_f32 v{r0}, v{r0}, v{r2}
        v_add_f32 v{r1}, v{r1}, v{r3}
        v_permlane16_swap_b32 v{r0}, v{r1}
        v_add_f32 v{r0}, v{r0}, v{r1}""")
    def red16(self, regs):
        return [f"v_add_f32_dpp v{r}, v{r}, v{r} {perm} {DPP}" for perm in ("quad_perm:[1,0,3,2]", "quad_perm:[2,3,0,1]", "row_half_mirror", "row_mirror") for r in regs]
    def red_kb(self, ra, rb, ta, tb):
        def one(r, t):
            return [f"v_add_f32_dpp v{r}, v{r}, v{r} row_ror:4 {DPP}", f"v_add_f32_dpp v{r}, v{r}, v{r} row_ror:8 {DPP}"] + \
                   [f"v_mov_b32_dpp v{t+b}, v{r} quad_perm:[{b},{b},{b},{b}] {DPP}" for b in (0, 2, 1, 3)] + \
                   self.capture(lambda: self.treduce(t, t + 1, t + 2, t + 3))[:-1] + [f"v_add_f32 v{r}, v{t}, v{t+1}"]
        return self.capture(lambda: self.mix(one(ra, ta), one(rb, tb)))
    def lnstats(self, sq, sm, m, rs, t):
        return f"""v_mul_f32 v{sm}, s{sINVN}, v{sm}
        v_mul_f32 v{sq}, s{sINVN}, v{sq}
        v_fma_f32 v{t}, -v{sm}, v{sm}, v{sq}
        v_cvt_pk_bf16_f32 v{m}, 0, v{sm}
        v_max_f32 v{t}, 0, v{t}
        v_cvt_pk_bf16_f32 v{t}, 0, v{t}
        v_add_f32 v{t}, s{sEPS}, v{t}
        v_cvt_pk_bf16_f32 v{t}, 0, v{t}
        v_sqrt_f32 v{t}, v{t}
        v_cvt_pk_bf16_f32 v{t}, 0, v{t}
        v_rcp_f32 v{rs}, v{t}""".split('\n')
    def mix(self, *streams):
        streams = [list(s) for s in streams]
        while any(streams):
            for s in streams:
                if s: self.A(s.pop(0))
    def tr_addr(self, d, sbase):
        self.A(f"""v_lshrrev_b32 v1, 4, v0
        v_bfe_u32 v2, v0, 2, 2
        v_lshl_add_u32 v{d}, v1, 3, v2
        v_lshlrev_b32 v{d}, 7, v{d}
        v_and_b32 v2, 3, v0
        v_lshl_add_u32 v{d}, v2, 3, v{d}
        v_bfe_u32 v2, v0, 3, 2
        v_lshl_add_u32 v{d}, v2, 5, v{d}
        v_add_u32 v{d}, s{sbase}, v{d}""")
    def wfrags(self, dst, addr, steps, off=0):
        for s in range(steps):
            self.A(f"ds_read_b64_tr_b16 {vr(dst+4*s,2)}, v{addr} offset:{off+s*4096}\nds_read_b64_tr_b16 {vr(dst+4*s+2,2)}, v{addr} offset:{off+s*4096+512}")
    def dma_addr(self, d, rstride):
        self.A(f"""v_lshrrev_b32 v1, 3, v0
        v_mul_u32_u24 v{d}, {rstride}, v1
        v_bfe_u32 v1, v0, 4, 1
        v_bfe_u32 v2, v0, 1, 2
        v_xor_b32 v1, v1, v2
        v_lshl_add_u32 v{d}, v1, 5, v{d}
        v_and_b32 v1, 1, v0
        v_lshl_add_u32 v{d}, v1, 4, v{d}
        v_xor_b32 v{d+1}, 64, v{d}""")
    def dma(self, srdb, vaddr, n, rstride, lds0, ssrc, slds, lim=0):
        wf = self.o['wflag'].replace('plain', '')
        for i in range(n):
            if lim and i >= lim: self.A(f"s_waitcnt vmcnt({lim-1})")
            self.A(f"s_add_u32 m0, s{slds}, {lds0 + i*1024}\ns_add_u32 s{sA}, s{ssrc}, {i*8*rstride}\nbuffer_load_dwordx4 v{vaddr + (i&1)}, {srd(srdb)}, s{sA} offen {wf} lds")

    def mk(self, b, p, off, size):
        A = self.A
        if off is None: A(f"s_mov_b32 s{b}, s{p}\ns_mov_b32 s{b+1}, s{p+1}\ns_mov_b32 s{b+2}, {size}")
        else:
            A(f"s_add_u32 s{b}, s{p}, s{off}\ns_addc_u32 s{b+1}, s{p+1}, 0")
            if isinstance(size, int): A(f"s_mov_b32 s{b+2}, {size}")
            else: A(f"s_sub_u32 s{b+2}, {size[0]}, s{off}")
        A(f"s_mov_b32 s{b+3}, 0x20000")
    def prologue(self):
        A = self.A
        A("s_cmp_ge_u32 s2, 256\ns_cbranch_scc1 L_exit")
        if int(self.o['pad']) or self.prof or self.o['t2']: A("s_memrealtime s[96:97]")
        A(f"""s_load_dwordx16 s[64:79], s[0:1], 0
        s_load_dwordx8 s[80:87], s[0:1], 64
        s_load_dwordx2 s[88:89], s[0:1], 96
        v_lshrrev_b32 v1, 6, v0
        v_and_b32 v0, 63, v0
        v_readfirstlane_b32 s{sV}, v1
        v_mov_b32 v4, 0
        v_mov_b32 v5, 0
        v_mov_b32 v6, 0
        v_mov_b32 v7, 0
        v_lshlrev_b32 v1, 4, v0
        s_mov_b64 exec, 7
        ds_write_b128 v1, v[4:7] offset:{L_QL+384}
        s_mov_b64 exec, -1
        s_and_b32 s{sX}, s2, 7
        s_lshr_b32 s{sT}, s2, 3
        s_lshr_b32 s{sA}, s{sT}, 3
        s_lshl_b32 s{sB}, s{sX}, 2
        s_add_u32 s92, s{sA}, s{sB}            ; head
        s_bfe_u32 s{sA}, s{sT}, 0x20001        ; batch
        s_lshl_b32 s{sA}, s{sA}, 5
        s_add_u32 s{sA}, s{sA}, s92
        s_lshl_b32 s{sA}, s{sA}, 12
        s_and_b32 s{sB}, s{sT}, 1
        s_lshl_b32 s{sB}, s{sB}, 9
        s_add_u32 s{sA}, s{sA}, s{sB}
        s_lshl_b32 s{sB}, s{sV}, 6
        s_add_u32 s{sA}, s{sA}, s{sB}
        s_add_u32 s{sA}, s{sA}, 3072
        s_mul_i32 s90, s{sA}, 384
        s_mov_b32 s{sP}, 0
        s_mov_b32 s{sDRY}, 0
        s_mov_b64 s[{sFULL}:{sFULL+1}], -1
        s_mov_b32 s{sTO}, 0x100000
        s_mov_b32 s{sFAST}, 0
        s_mov_b32 s{sLOG2E}, 0x3fb8aa3b
        s_mov_b32 s{sSCALE}, 0x3d93cd3a
        s_mov_b32 s{sINVN}, 0x3acccccd
        s_mov_b32 s{sEPS}, 0x3727c5ac
        s_lshl_b32 s{sSIG}, s{sX}, 5
        s_add_u32 s{sSIG}, s{sSIG}, s{sT}
        s_mul_i32 s{sSLOT}, s{sX}, 30
        s_add_u32 s{sSLOT}, s{sSLOT}, s{sT}
        s_mul_i32 s{sRI}, s{sT}, 26
        s_lshr_b32 s{sRI}, s{sRI}, 8
        s_mul_i32 s{sA}, s{sRI}, 10
        s_sub_u32 s{sAI}, s{sT}, s{sA}
        s_min_u32 s{sRI}, s{sRI}, 2""")
        tab = 0
        for v in range(8):
            tab |= ((v < 4) << R_LT4 | (v >= 4) << R_GE4 | (4 <= v <= 6) << R_456 | (v == 7) << R_7 | (v == 6) << R_6 | (v == int(self.o['gramw'])) << R_GR) << (8 * v)
        A(f"""s_mov_b32 s{sA}, 0x{tab & 0xffffffff:x}
        s_mov_b32 s{sB}, 0x{tab >> 32:x}
        s_lshl_b32 s91, s{sV}, 3
        s_lshr_b64 s[{sA}:{sB}], s[{sA}:{sB}], s91
        s_and_b32 s{sROLE}, s{sA}, 0xff""")
        self.kv_addr()
        A("s_waitcnt lgkmcnt(0)\ns_barrier")
        A(f"s_add_u32 s{sA}, s88, {RE}\ns_addc_u32 s{sB}, s89, 0\ns_load_dword s{sTAG}, s[{sA}:{sB}], 0")
        self.mk(SK, 66, 90, 24576); self.mk(SVV, 68, 90, 24576)
    def other_srds(self):
        A = self.A; mk = self.mk
        mk(SWS, 88, None, WS_SIZE)
        A(f"""s_mul_i32 s{sA}, s{sAI}, {64*12288}
        s_mul_i32 s{sB}, s{sX}, 3
        s_add_u32 s91, s{sB}, s{sRI}            ; P = 3x + r
        s_lshl_b32 s{sB}, s91, 9
        s_add_u32 s{sA}, s{sA}, s{sB}""")
        mk(SWQ, 70, sA, (640 * 6144 * 2,))
        A(f"s_mul_i32 s{sA}, s91, {256*1280}\ns_lshl_b32 s90, s{sAI}, 7\ns_add_u32 s{sA}, s{sA}, s90")
        mk(SWO, 72, sA, (6144 * 640 * 2,))
        A(f"s_mul_i32 s{sA}, s91, {64*1280}\ns_add_u32 s{sA}, s{sA}, s90")
        mk(SWD, 82, sA, (1536 * 640 * 2,))
        A(f"s_mul_i32 s{sA}, s{sAI}, {64*3072}\ns_lshl_b32 s{sB}, s91, 7\ns_add_u32 s{sA}, s{sA}, s{sB}")
        mk(SWG, 78, sA, (640 * 1536 * 2,)); mk(SWU, 80, sA, (640 * 1536 * 2,))
        mk(SX0, 64, None, 5120); mk(SWR, 76, 90, (1280,)); mk(SOUT, 84, None, 5120)
        A(f"s_waitcnt lgkmcnt(0)\ns_add_u32 s{sTAG}, s{sTAG}, 1")
        if self.o['t2']: A("s_mov_b32 s66, 0")
        if self.o['t2']: A("s_mov_b32 s64, s96")
        if self.o['fine']:
            for i in range(24): A(f"s_mov_b32 s{sST+i}, 0")
        if self.prof:
            A(f"s_mov_b32 s{sST}, s96")
            for i in range(1, 24): A(f"s_mov_b32 s{sST+i}, 0")

    def kv_addr(self):
        self.A(f"""v_bfe_u32 v84, v0, 1, 3
        v_mul_u32_u24 v84, 384, v84
        v_lshrrev_b32 v3, 4, v0
        v_lshl_add_u32 v84, v3, 5, v84
        v_and_b32 v3, 1, v0
        v_lshl_add_u32 v84, v3, 4, v84
        v_lshrrev_b32 v85, 5, v0
        v_lshlrev_b32 v85, 3, v85
        v_bfe_u32 v3, v0, 3, 2
        v_add_u32 v85, v85, v3
        v_mul_u32_u24 v85, 384, v85
        v_and_b32 v3, 7, v0
        v_lshl_add_u32 v85, v3, 4, v85""")
        if int(self.o['vlin']) & 1: self.A("v_lshlrev_b32 v85, 4, v0")
        if int(self.o['vlin']) & 2: self.A("v_lshlrev_b32 v84, 4, v0")
    def k_loads0(self, mid=None):
        A = self.A; KF = self.o['kvflag'].replace('plain', '').replace('_', ' ')
        for g in range(8):
            if mid and g == mid[0]: mid[1]()
            A(f"s_mov_b32 s{sA}, {g*3072}")
            b = 12 * (g & ~1)
            for s, r in enumerate((b + 8 * (g & 1), b + 8 * (g & 1) + 4, b + 16 + 4 * (g & 1))):
                A(f"buffer_load_dwordx4 {ar(r)}, v84, {srd(SK)}, s{sA} offen offset:{s*(1024 if int(self.o['vlin']) & 2 else 128)} {KF}")
    def v_loads0(self, sig=None):
        A = self.A; KF = self.o['kvflag'].replace('plain', '').replace('_', ' ')
        A(f"s_mul_i32 s{sB}, s{sV}, 6144")
        for S in range(5):
            if S == sig: self.lds_inc(16)
            for f in range(2 if S < 4 else 0):
                row = 32 * (S >> 1) + 16 * f + 4 * (S & 1)
                for s in range(3):
                    if int(self.o['vlin']) & 1:
                        o = ((S * 2 + f) * 3 + s) * 1024
                        if S == 0: A(f"s_add_u32 m0, s{sB}, {L_VP + (s*2+f)*1024}\ns_mov_b32 s{sA}, {o}\nbuffer_load_dwordx4 v85, {srd(SVV)}, s{sA} offen {KF} lds")
                        else: A(f"s_mov_b32 s{sA}, {o}\nbuffer_load_dwordx4 {vr(VBASE+(S-1)*24+s*8+4*f)}, v85, {srd(SVV)}, s{sA} offen {KF}")
                        continue
                    if S == 0:
                        A(f"s_add_u32 m0, s{sB}, {L_VP + (s*2+f)*1024}\ns_mov_b32 s{sA}, {row*384+s*128}\nbuffer_load_dwordx4 v85, {srd(SVV)}, s{sA} offen {KF} lds")
                    else:
                        if s == 0: A(f"s_mov_b32 s{sA}, {row*384}")
                        A(f"buffer_load_dwordx4 {vr(VBASE+(S-1)*24+s*8+4*f)}, v85, {srd(SVV)}, s{sA} offen offset:{s*128} {KF}")
    def k_loads(self, mid=None):
        if not int(self.o['nos']): return self.k_loads0(mid)
        A = self.A; KF = self.o['kvflag'].replace('plain', '').replace('_', ' ')
        for k in range(1, 4): A(f"v_add_u32 v{63+k}, {6144*k}, v84\nv_add_u32 v{67+k}, {6144*k}, v85")
        for g in range(8):
            b = 12 * (g & ~1); va = 84 if g < 2 else 63 + (g >> 1)
            for s, r in enumerate((b + 8 * (g & 1), b + 8 * (g & 1) + 4, b + 16 + 4 * (g & 1))):
                if int(self.o['gap']) and (3 * g + s) % int(self.o['gap']) == 0: A("s_mov_b32 s62, 0")
                A(f"buffer_load_dwordx4 {ar(r)}, v{va}, {srd(SK)}, 0 offen offset:{(g & 1)*3072 + s*128} {KF}")
    def v_loads(self, sig=None):
        if not int(self.o['nos']): return self.v_loads0(sig)
        A = self.A; KF = self.o['kvflag'].replace('plain', '').replace('_', ' ')
        A(f"s_mul_i32 s{sB}, s{sV}, 6144")
        for S in range(5):
            if S == sig: self.lds_inc(16)
            for f in range(2 if S < 4 else 0):
                k = 2 * (S >> 1) + f; va = 85 if k == 0 else 67 + k
                for s in range(3):
                    if S == 0: A(f"s_add_u32 m0, s{sB}, {L_VP + (s*2+f)*1024 - s*128}\nbuffer_load_dwordx4 v{va}, {srd(SVV)}, 0 offen offset:{s*128} {KF} lds")
                    else:
                        if int(self.o['gap']) and (6 * S + 3 * f + s) % int(self.o['gap']) == 0: A("s_mov_b32 s62, 0")
                        A(f"buffer_load_dwordx4 {vr(VBASE+(S-1)*24+s*8+4*f)}, v{va}, {srd(SVV)}, 0 offen offset:{(S & 1)*1536 + s*128} {KF}")
    def xcol_addr(self, d):
        self.A(f"""v_lshrrev_b32 v1, 4, v0
        v_mul_u32_u24 v{d}, 1280, v1
        v_and_b32 v2, 7, v0
        v_lshl_add_u32 v{d}, v2, 1, v{d}
        s_lshl_b32 s{sA}, s{sAI}, 7
        s_lshl_b32 s{sB}, s{sV}, 4
        s_add_u32 s{sA}, s{sA}, s{sB}
        v_add_u32 v{d}, s{sA}, v{d}""")
    def xres_read(self):
        self.xcol_addr(3)
        self.A(f"v_mov_b32 v{vXR}, 0\nds_read_u16_d16_hi v{vXR}, v3 offset:{L_X0}")
    def lds_spin(self, off, val):
        lw = self.lab("sp"); lr = self.lab("spr")
        self.A(f"""v_mov_b32 v5, {L_FL}
        {lw}:
        ds_read_b32 v4, v5 offset:{off}
        s_waitcnt lgkmcnt(0)
        v_cmp_gt_u32 vcc, {val}, v4
        s_cbranch_vccnz {lr}""")
        self.tail.append(f"{lr}:\ns_sleep 2\ns_sub_u32 s{sTO}, s{sTO}, 1\ns_cbranch_scc1 L_end\ns_branch {lw}")
    def lds_inc(self, off):
        self.A(f"v_mov_b32 v4, {L_FL}\nv_mov_b32 v5, 1\ns_mov_b64 exec, 1\nds_add_u32 v4, v5 offset:{off}\ns_mov_b64 exec, -1")
    def dma_dist(self, cnts, mats):
        A = self.A
        cnts = [int(c) for c in cnts.split(',')]
        pre = [sum(cnts[:i]) for i in range(4)]
        A(f"""s_lshl_b32 s{sA}, s{sV}, 3
        s_mov_b32 s{sB}, 0x{sum(c << (8*i) for i, c in enumerate(cnts)):x}
        s_lshr_b32 s{sD}, s{sB}, s{sA}
        s_and_b32 s{sD}, s{sD}, 0xff
        s_mov_b32 s{sB}, 0x{sum(c << (8*i) for i, c in enumerate(pre)):x}
        s_lshr_b32 s{sF}, s{sB}, s{sA}
        s_and_b32 s{sF}, s{sF}, 0xff
        s_lshl_b32 s{sB}, s{sF}, 10""")
        le = self.lab("dd")
        for i in range(0, max(cnts), 2):
            A(f"s_cmp_gt_u32 s{sD}, {i}\ns_cbranch_scc0 {le}")
            for (sr, va, rs, l0) in mats:
                A(f"s_mul_i32 s{sC}, s{sF}, {8*rs}\ns_add_u32 s{sC}, s{sC}, {i*8*rs}")
                self.dma(sr, va, 2, rs, l0 + i * 1024, sC, sB)
        self.end(le)
    def w_dma_gud(self, u, which='gud'):
        A = self.A
        self.dma_addr(6, 3072); self.dma_addr(8, 1280)
        A(f"s_mul_i32 s{sC}, s{u}, {16*3072}\ns_lshl_b32 s{sB}, s{u}, 11")
        if 'g' in which: self.dma(SWG, 6, 2, 3072, L_WG, sC, sB)
        if 'u' in which: self.dma(SWU, 6, 2, 3072, L_WU, sC, sB)
        A(f"s_mul_i32 s{sC}, s{u}, {16*1280}")
        if 'd' in which: self.dma(SWD, 8, 2, 1280, L_WD, sC, sB)

    def attn_pre(self):
        A = self.A
        A(f"""v_lshrrev_b32 v1, 4, v0
        v_and_b32 v2, 3, v0
        v_lshlrev_b32 v2, 4, v2
        v_lshl_add_u32 v76, v1, 6, v2            ; base1
        v_and_b32 v3, 0x40, v76
        v_add3_u32 v77, v3, v2, 64
        v_add_u32 v77, 192, v77                  ; base2
        v_bfe_u32 v2, v0, 2, 2
        v_mov_b32 v3, 384""")
        for k in range(4): A(f"v_cmp_eq_u32 vcc, {k}, v2\nv_cndmask_b32 v{72+k}, v3, v76, vcc")
        A(f"""v_lshrrev_b32 v1, 5, v0
        v_cmp_eq_u32 vcc, v1, v2
        v_cndmask_b32 v76, v3, v77, vcc
        v_add_u32 v1, 2, v1
        v_cmp_eq_u32 vcc, v1, v2
        v_cndmask_b32 v77, v3, v77, vcc
        v_and_b32 v1, 1, v0
        v_mul_u32_u24 v78, 0xaaaa, v1
        v_add_u32 v78, 0x4444, v78
        v_and_b32 v1, 3, v0
        v_xor_b32 v2, 1, v1
        v_lshl_add_u32 v79, v2, 2, v1
        v_mul_u32_u24 v79, 0x1111, v79
        v_bfe_u32 v1, v0, 2, 1
        v_mul_u32_u24 v85, 0xffff, v1
        v_sub_u32 v84, 0xffff, v85
        s_mul_i32 s{sA}, s{sV}, 6144
        s_add_u32 s{sA}, s{sA}, {L_VP}
        v_lshl_add_u32 v86, v0, 4, s{sA}
        v_and_b32 v1, 7, v0
        v_lshlrev_b32 v1, 5, v1
        v_bfe_u32 v2, v0, 4, 1
        v_lshl_add_u32 v1, v2, 4, v1
        v_lshrrev_b32 v2, 5, v0
        v_mul_u32_u24 v2, 768, v2
        s_mul_i32 s{sA}, s{sV}, 1536
        v_add3_u32 v87, v1, v2, s{sA}""")
    def attn_zero(self, skip=()):
        for r in range(28, 48):
            if r not in skip: self.A(f"v_mov_b32 v{r}, 0")
    def consts(self):
        h = 2 if self.o['xbf'] else 1
        self.A(f"s_mov_b32 s{sTB}, s{sTAG}")
        self.A(f"s_mov_b32 s{sK1}, {81920//h}\ns_mov_b32 s{sK2}, {163840//h}\ns_mov_b32 s{sKG}, {4*GSL}\ns_mov_b32 s{sKQ}, {4*QSL}")

    def xa_addr(self, d=30):
        self.A(f"""v_and_b32 v1, 15, v0
        v_lshrrev_b32 v2, 4, v0
        v_min_u32 v{d}, 5, v1
        v_mul_u32_u24 v{d}, {XS}, v{d}
        v_lshl_add_u32 v{d}, v2, 4, v{d}
        v_and_b32 v3, 3, v0
        v_bfe_u32 v1, v0, 2, 2
        v_add_u32 v{d+1}, 3, v3
        v_min_u32 v{d+1}, 5, v{d+1}
        v_cmp_eq_u32 vcc, 0, v3
        v_cndmask_b32 v{d+1}, v{d+1}, v1, vcc
        v_mul_u32_u24 v{d+1}, {XS}, v{d+1}
        v_lshl_add_u32 v{d+1}, v2, 4, v{d+1}""")
    def xfrags(self, d=30): self.A(f"ds_read_b128 v[4:7], v{d} offset:{L_XA}\nds_read_b128 v[8:11], v{d} offset:{L_XA+64}")
    def mm_with_gram(self, mf0, mf1, store, tag, late=None):
        A = self.A
        le = self.lab("gr")
        def variant(gram, first):
            A("s_waitcnt lgkmcnt(0)"); self.barrier(tag)
            if gram: A(f"ds_read_b128 v[60:63], v31 offset:{L_XA}")
            if first: late()
            self.xfrags()
            if gram:
                A(f"""ds_read_b128 v[64:67], v31 offset:{L_XA+64}
                s_waitcnt lgkmcnt(2)""")
                A(mf0)
                A("v_mfma_f32_16x16x32_bf16 v[68:71], v[60:63], v[4:7], 0\ns_waitcnt lgkmcnt(1)")
                A(mf1)
                A("s_waitcnt lgkmcnt(0)\nv_mfma_f32_16x16x32_bf16 v[68:71], v[64:67], v[8:11], v[68:71]")
                m = 1 | 1 << 17 | 1 << 34 | 1 << 51
                st = f"s_mov_b32 exec_lo, 0x{m & 0xffffffff:x}\ns_mov_b32 exec_hi, 0x{m >> 32:x}\nbuffer_store_dwordx4 v[68:71], v33, {srd(SWS)}, 0 offen{{f}}"
                if first: st = f"s_mov_b64 exec, -1\nv_mov_b32_dpp v71, v70 row_newbcast:4 {DPP}\nv_mov_b32_sdwa v71, v85 dst_sel:BYTE_0 dst_unused:UNUSED_PRESERVE src0_sel:BYTE_0\n" + st
                else: st = st.replace("buffer_store", f"v_mov_b32 v71, {'v85' if tag == 'X' else 's%d' % sTB}\nbuffer_store")
                store(first, st)
            else:
                A("s_waitcnt lgkmcnt(1)"); A(mf0); A("s_waitcnt lgkmcnt(0)"); A(mf1)
                store(first)
        firsts = (True, False) if late else (False,)
        for fi, first in enumerate(firsts):
            if first: lp = self.pass0()
            l = self.role(R_GR); variant(True, first); A(f"s_branch {le}"); self.end(l)
            variant(False, first)
            if first: A(f"s_branch {le}"); self.end(lp)
        self.end(le)
    def q_lds_addr(self, d):
        self.A(f"""v_bfe_u32 v1, v0, 3, 1
        v_lshlrev_b32 v{d}, 6, v1
        v_bfe_u32 v1, v0, 1, 1
        v_lshl_add_u32 v{d}, v1, 5, v{d}
        v_lshrrev_b32 v1, 5, v0
        v_lshl_add_u32 v{d}, v1, 4, v{d}
        v_bfe_u32 v1, v0, 2, 1
        v_lshl_add_u32 v{d}, v1, 3, v{d}
        v_and_b32 v1, 1, v0
        v_lshl_add_u32 v{d}, v1, 2, v{d}
        v_bfe_u32 v1, v0, 4, 1
        v_lshl_add_u32 v{d}, v1, 1, v{d}""")

    def clr_begin(self):
        self.A("v_mov_b32 v64, -1\nv_mov_b32 v65, -1\nv_mov_b32 v66, -1\nv_mov_b32 v67, -1\nv_lshlrev_b32 v10, 4, v0")
    def clr(self, what, p):
        A = self.A
        if self.o['clr'] == 'none': return
        st = lambda off=0: A(f"buffer_store_dwordx4 v[64:67], v10, {srd(SWS)}, s{sA} offen offset:{off} sc1")
        if what in 'XY':
            A(f"s_lshl_b32 s{sA}, s{sSLOT}, 10\ns_add_u32 s{sA}, s{sA}, {(RX if what == 'X' else RY)[p]}"); st()
        elif what == 'O':
            A(f"s_mul_i32 s{sA}, s{sSIG}, {OSL}\ns_add_u32 s{sA}, s{sA}, {RO[p]}\ns_mov_b32 exec_hi, 0xffffff"); st(); A("s_mov_b32 exec_hi, -1")
        elif what == 'G':
            A(f"s_mul_i32 s{sA}, s{sSIG}, {GSL}\ns_add_u32 s{sA}, s{sA}, {RG[p]}"); st(); st(1024)
            if p == 0: A("s_mov_b32 exec_hi, 0xff"); st(2048)
            else: A("s_mov_b64 exec, 0xff"); st(2560)
            A("s_mov_b64 exec, -1")
        elif what == 'C':
            A(f"s_mul_i32 s{sA}, s{sSIG}, {QSL}\ns_add_u32 s{sA}, s{sA}, {RQ[1] + 4224}"); st()
        elif what == 'Q':
            A(f"s_mul_i32 s{sA}, s{sSIG}, {QSL}\ns_add_u32 s{sA}, s{sA}, {RQ[1]}")
            for i in range(4): st(1024 * i)
            A(f"s_add_u32 s{sA}, s{sA}, 4096\ns_mov_b64 exec, 0xff"); st(); A("s_mov_b64 exec, -1")

    def q0_gather(self, w):
        A = self.A
        l3 = self.lab("nog")
        A(f"s_cmp_eq_u32 s{sV}, {w}\ns_cbranch_scc0 {l3}\ns_setprio {self.o['q0p']}")
        lp = self.lab("tq"); lr = self.lab("tqr")
        self.stamp(13, both=False)
        if self.prof: A(f"s_mov_b32 s{sST+5}, s{sST+13}")
        A(f"""s_bfe_u32 s{sB}, s{sT}, 0x20001          ; b
        s_lshl_b32 s{sC}, s{sB}, 10
        v_lshrrev_b32 v1, 4, v0
        v_mul_u32_u24 v78, {Q0SL}, v1
        v_and_b32 v3, 15, v0
        v_lshl_add_u32 v78, v3, 4, v78
        v_add_u32 v78, s{sC}, v78
        s_mul_i32 s{sD}, s{sTAG}, 0x01010101
        v_mov_b32 v72, s{sD}
        v_lshrrev_b32 v73, 8, v72
        v_lshrrev_b32 v74, 16, v72
        v_lshrrev_b32 v75, 24, v72""")
        self.q_lds_addr(79)
        if int(self.o['noq0']) & 2: A("s_branch L_noq0")
        if int(self.o['q0w']) >= 0: A(f"s_waitcnt vmcnt({self.o['q0w']})")
        so = (sC, sE, sF)
        for sg in range(3):
            A(f"""s_lshr_b32 s{sA}, s{sT}, 3
            s_mul_i32 s{sA}, s{sA}, 3
            s_add_u32 s{sA}, s{sA}, {sg}
            s_lshr_b32 s{sB}, s{sA}, 2
            s_mul_i32 s{sB}, s{sB}, 10
            s_lshl_b32 s{so[sg]}, s{sX}, 5
            s_add_u32 s{sB}, s{sB}, s{so[sg]}
            s_mul_i32 s{sB}, s{sB}, {Q0SL}
            s_and_b32 s{sA}, s{sA}, 3
            s_lshl_b32 s{sA}, s{sA}, 8
            s_add_u32 s{sB}, s{sB}, s{sA}
            s_add_u32 s{so[sg]}, s{sB}, {RQ[0]}""")
        A(f"""v_add_u32 v77, {4*Q0SL}, v78
        v_add_u32 v76, {8*Q0SL}, v78
        v_mov_b32 v3, {OOB}
        v_cmp_gt_u32 vcc, 32, v0
        v_cndmask_b32 v76, v3, v76, vcc""")
        def q0loads(fl):
            for i in range(3):
                for sg in range(3): A(f"buffer_load_dwordx4 {vr(4 + 12*sg + 4*i)}, v{78-i}, {srd(SWS)}, s{so[sg]} offen {fl}")
        lw = self.lab("tqw")
        if 'q' in self.o['pl']: q0loads(''); A(f"s_branch {lw}")
        self.fs('a0'); A(f"{lp}:"); q0loads('sc1'); A(f"{lw}:\nv_mov_b32 v1, 0"); self.fs('a1')
        A("s_waitcnt vmcnt(0)"); self.fs('a2')
        for third in (0, 1):
            if third: A("s_mov_b32 exec_hi, 0")
            for sg in range(3):
                for i in ((2,) if third else (0, 1)):
                    r = 4 + 12 * sg + 4 * i
                    for h in (0, 2): A(f"v_xor_b32 v2, v{72+h}, v{r+h}\nv_xor_b32 v3, v{73+h}, v{r+h+1}\nv_or3_b32 v1, v1, v2, v3")
                    for k in range(4): A(f"v_and_b32 v{r+k}, 0xffffff00, v{r+k}")
        for k in range(3):
            for i in range(4): A(f"v_add_f32 v{4+12*k+i}, v{4+12*k+i}, v{12+12*k+i}")
        A(f"s_mov_b64 exec, -1\nv_and_b32 v1, 0xff, v1\nv_cmp_ne_u32 vcc, 0, v1\ns_cbranch_vccnz {lr}")
        self.tail.append(f"{lr}:\ns_sub_u32 s{sTO}, s{sTO}, 1\ns_cbranch_scc1 L_end\ns_branch {lp}")
        for k in range(3):
            r = 4 + 12 * k
            for i in range(4): A(f"v_add_f32 v{r+i}, v{r+i}, v{r+4+i}")
            self.treduce(r, r + 1, r + 2, r + 3)
            A(f"v_cvt_pk_bf16_f32 v{r}, 0, v{r}\nds_write_b16_d16_hi v79, v{r} offset:{L_QL + 128*k}")
        A("L_noq0:"); self.fs('a3')
        self.lds_spin(4, 8)
        A(f"v_mov_b32 v4, 1\nds_write_b32 v5, v4\ns_setprio 0")
        self.end(l3)

    def startup(self):
        A = self.A
        A(f"s_bitcmp1_b32 s{sROLE}, {R_GE4}\ns_cbranch_scc1 L_start_hi")
        self.k_loads()
        self.other_srds()
        l = self.lab("now"); A(f"s_cmp_ge_u32 s{sT}, 30\ns_cbranch_scc1 {l}")
        self.dma_addr(4, 1280)
        if not int(self.o['noq0']) & 4: self.dma_dist(self.o['cwo'], [(SWO, 4, 1280, L_WO)])
        if True:
            mats = [m for k, m in (('g', (SWG, 6, 3072, L_WG)), ('u', (SWU, 6, 3072, L_WU)), ('d', (SWD, 4, 1280, L_WD))) if k not in self.o['tq'] + self.o['dwo'] + self.o['dx']]
            if mats:
                self.dma_addr(6, 3072)
                self.dma_dist(self.o['cgud'], mats)
        self.end(l)
        self.v_loads()
        self.stamp(1, both=False)
        if self.o['dry']:
            l = self.lab("nodry")
            A(f"""s_cmp_eq_u32 s{sV}, 2
            s_cbranch_scc0 {l}
            s_mov_b32 s{sDRY}, 1
            v_mov_b32 v15, 0
            v_mov_b32 v16, 0
            v_mov_b32 v28, 0
            v_mov_b32 v32, 0
            v_mov_b32 v33, 0
            v_mov_b32 v34, 0
            v_mov_b32 v36, 0
            v_mov_b32 v37, 0
            v_mov_b32 v38, 0
            s_mov_b32 s{sSAVE}, s{sT}
            s_mov_b32 s{sT}, 0
            s_mov_b32 s{sROLE}, 0xff
            s_mov_b64 s[{sFULL}:{sFULL+1}], 0
            s_mov_b64 exec, 0
            s_branch L_attn
            L_dry_ret:
            s_mov_b32 s{sDRY}, 0
            s_mov_b32 s{sP}, 0
            s_mov_b32 s{sT}, s{sSAVE}
            s_mov_b32 s{sROLE}, {(1 << R_LT4) | ((int(self.o['gramw']) == 2) << R_GR)}
            s_mov_b64 s[{sFULL}:{sFULL+1}], -1
            s_mov_b64 exec, -1
            {l}:""")
        if int(self.o['agg']): self.group_flag()
        if int(self.o['chkw']): A("s_waitcnt vmcnt(0)" if int(self.o['q0w']) == 0 else ""); self.flag_check()
        if not int(self.o['g7']): self.q0_gather(3)
        self.stamp(2, both=False)
        self.attn_pre(); self.attn_zero(); self.consts()
        self.lds_spin(0, 1)
        self.xres_read()
        A("s_branch L_attn")
        A("L_start_hi:\ns_setprio 3")
        self.other_srds()
        l = self.lab("x0"); l2 = self.lab("x0")
        A(f"""v_lshlrev_b32 v10, 4, v0
        s_and_b32 s{sB}, s{sV}, 3
        s_lshl_b32 s{sA}, s{sB}, 10
        s_add_u32 m0, s{sA}, {L_X0}
        s_cmp_eq_u32 s{sV}, 4
        buffer_load_dwordx4 v10, {srd(SX0)}, s{sA} offen lds
        s_cbranch_scc0 {l}
        s_mov_b32 m0, {L_X0 + 4096}
        s_movk_i32 s{sA}, 0x1000
        buffer_load_dwordx4 v10, {srd(SX0)}, s{sA} offen lds
        {l}:
        s_cmp_eq_u32 s{sV}, 5
        s_cbranch_scc0 {l2}
        s_mov_b32 m0, {L_XA + 5*XS}
        s_mov_b64 exec, 0xff
        buffer_load_dwordx4 v10, {srd(SWR)}, 0 offen lds
        s_mov_b64 exec, -1
        {l2}:""")
        lq = self.lab("noq"); lq2 = self.lab("noq")
        A(f"s_cmp_ge_u32 s{sT}, 30\ns_cbranch_scc1 {lq}")
        self.dma_addr(6, 12288)
        A(f"s_and_b32 s{sB}, s{sV}, 3\ns_lshl_b32 s{sC}, s{sB}, 7\ns_lshl_b32 s{sB}, s{sB}, 13")
        self.dma(SWQ, 6, 8, 12288, L_WQ, sC, sB)
        A(f"""v_lshrrev_b32 v1, 4, v0
        v_and_b32 v2, 15, v0
        v_mul_u32_u24 v3, 1280, v1
        v_lshl_add_u32 v10, v2, 4, v3
        v_lshl_add_u32 v11, v2, 3, v3
        s_lshl_b32 s{sA}, s{sAI}, 7
        v_add_u32 v11, s{sA}, v11
        v_mul_u32_u24 v12, {XS}, v1
        v_lshl_add_u32 v12, v2, 3, v12
        v_lshlrev_b32 v13, 3, v2
        s_waitcnt vmcnt(8)""")
        self.lds_inc(4); self.lds_spin(4, 4)
        for i in range(5): A(f"ds_read_b128 {vr(16+4*i)}, v10 offset:{L_X0 + 256*i}")
        A(f"ds_read_b64 v[36:37], v11 offset:{L_X0}")
        A("v_mov_b32 v40, 0x3f803f80\nv_mov_b32 v41, 0x3f803f80\nv_mov_b32 v42, 0\nv_mov_b32 v43, 0\ns_waitcnt lgkmcnt(0)")
        for i in range(20): A(f"v_dot2_f32_bf16 v42, v{16+i}, v{16+i}, v42\nv_dot2_f32_bf16 v43, v{16+i}, v40, v43")
        self.mix(self.red16([42, 43])); self.mix(self.lnstats(42, 43, 44, 45, 46))
        A("v_lshlrev_b32 v16, 16, v36\nv_and_b32 v17, 0xffff0000, v36\nv_lshlrev_b32 v18, 16, v37\nv_and_b32 v19, 0xffff0000, v37")
        for i in range(4): A(f"v_sub_f32 v{16+i}, v{16+i}, v44")
        for i in range(4): A(f"v_cvt_pk_bf16_f32 v{16+i}, 0, v{16+i}")
        for i in range(4): A(f"v_mul_f32 v{16+i}, v{16+i}, v45")
        A(f"""v_cvt_pk_bf16_f32 v16, v16, v17
        v_cvt_pk_bf16_f32 v17, v18, v19
        ds_write_b64 v12, v[16:17] offset:{L_XA}
        ds_write_b64 v13, v[40:41] offset:{L_XA + 4*XS}""")
        A(f"s_and_b32 s{sA}, s{sV}, 3\ns_lshl_b32 s{sA}, s{sA}, 13\ns_add_u32 s{sA}, s{sA}, {L_WQ}")
        self.tr_addr(52, sA)
        for t in range(1, 4): A(f"v_xor_b32 v{52+t}, {32*t}, v52")
        self.xa_addr(14)
        A(f"""s_and_b32 s{sA}, s{sV}, 3
        s_lshl_b32 s{sB}, s{sA}, 10
        v_and_b32 v2, 15, v0
        v_lshlrev_b32 v72, 8, v2
        v_and_b32 v1, 0x30, v0
        v_add3_u32 v72, v72, v1, s{sB}
        v_lshl_add_u32 v73, v0, 4, s{sB}
        v_lshlrev_b32 v74, 6, v1
        v_lshl_add_u32 v74, v2, 4, v74
        s_lshl_b32 s{sA}, s{sA}, 8
        v_add_u32 v75, s{sA}, v1
        s_mul_i32 s{sE}, s{sSIG}, {Q0SL}
        s_add_u32 s{sE}, s{sE}, s{sA}
        s_add_u32 s{sE}, s{sE}, {RQ[0]}
        s_mul_i32 s{sF}, s{sTAG}, 0x01010101
        v_mov_b32 v76, 0xff
        s_waitcnt vmcnt(0) lgkmcnt(0)""")
        self.stamp(12, both=False)
        for t in range(4): self.wfrags(16 + 8 * t, 52 + t, 2)
        self.xfrags(14)
        A("s_waitcnt lgkmcnt(0)")
        for s in range(2):
            for t in range(4):
                A(f"v_mfma_f32_16x16x32_bf16 {vr(48+4*t)}, {vr(16+8*t+4*s)}, {vr(4+4*s)}, {'0' if s == 0 else vr(48+4*t)}")
        for i in range(4):
            for t in range(4): A(f"v_bfi_b32 v{16+4*t+i}, v76, s{sF}, v{48+4*t+i}")
            A(f"s_lshr_b32 s{sF}, s{sF}, 8")
        self.exec_mask(0x000f000f000f000f)
        for t in range(4): A(f"ds_write_b128 v72, {vr(16+4*t)} offset:{L_OC + 64*t}")
        self.exec_mask(0x0010001000100010)
        for t in range(4): A(f"ds_write_b128 v75, {vr(48+4*t)} offset:{L_CS + 64*t}")
        self.exec_full()
        A(f"""s_waitcnt lgkmcnt(0)
        ds_read_b128 v[16:19], v73 offset:{L_OC}
        s_waitcnt lgkmcnt(0)""")
        if not int(self.o['noq0']) & 1: A(f"buffer_store_dwordx4 v[16:19], v74, {srd(SWS)}, s{sE} offen sc1")
        A(f"""s_branch {lq2}
        {lq}:
        s_waitcnt vmcnt(0)""")
        self.lds_inc(4); self.lds_spin(4, 4)
        A(f"{lq2}:")
        self.xres_read()
        A("s_waitcnt lgkmcnt(0)")
        self.lds_inc(4)
        self.stamp(14, both=False); self.fs('am')
        l = self.role(R_7 if int(self.o['g7']) else R_6)
        l2 = self.lab("nocl")
        self.clr_begin()
        A(f"s_cmp_ge_u32 s{sT}, 30\ns_cbranch_scc1 {l2}")
        if int(self.o['cb']):
            A(f"s_lshl_b32 s{sA}, s{sSLOT}, 10")
            for r, R in zip((sC, sD, sE, sF), RX + RY): A(f"s_add_u32 s{r}, s{sA}, {R}")
            for r in (sC, sD, sE, sF): A(f"buffer_store_dwordx4 v[64:67], v10, {srd(SWS)}, s{r} offen sc1")
        else: self.clr('X', 0); self.clr('Y', 0); self.clr('X', 1); self.clr('Y', 1)
        A(f"{l2}:\ns_mov_b64 exec, -1")
        flk = int(self.o['flk'])
        def flag(n):
            l3 = self.lab("nofl")
            A(f"""s_getreg_b32 s{sXCC}, hwreg(HW_REG_XCC_ID, 0, 4)
            v_mov_b32 v6, s{sTAG}
            v_mov_b32 v7, s{sXCC}
            v_mov_b32 v8, s{sTAG}
            v_mov_b32 v9, s{sXCC}
            v_mov_b32 v4, {L_FL}
            v_mov_b32 v5, 1
            s_lshl_b32 s{sC}, s{sSIG}, 7
            s_add_u32 s{sC}, s{sC}, {RF}
            s_waitcnt vmcnt({n})
            s_mov_b64 exec, 0xff
            buffer_store_dwordx4 v[6:9], v10, {srd(SWS)}, s{sC} offen sc1
            {l3}:
            s_mov_b64 exec, -1""")
        if not flk: flag(0)
        self.end(l)
        def midflag():
            l = self.role(R_456); flag(3 * flk); self.end(l)
        self.stamp(1, both=False)
        if int(self.o['g7']): self.q0_gather(7); self.stamp(2, both=False)
        A("s_setprio 0")
        self.k_loads((flk, midflag) if flk else None); self.v_loads(int(self.o['tqat']) if self.o['tq'] or int(self.o['tqwo']) else None)
        self.attn_pre(); self.attn_zero(); self.consts()
        self.lds_spin(0, 1)

    def region(self, s, R):
        if R[0] == R[1]: return self.A(f"s_mov_b32 s{s}, {R[0]}")
        self.A(f"s_mul_i32 s{s}, s{sP}, {R[1]-R[0]}")
        if R[0]: self.A(f"s_add_u32 s{s}, s{s}, {R[0]}")

    def parked(self):
        for i in range(6): self.A(f"ds_read_b128 {vr(48+4*i)}, v86 offset:{1024*i}")
    def attention(self):
        A = self.A
        A("s_branch L_attn")
        if int(self.o['al']): A(f".p2align {self.o['al']}")
        for _ in range(int(self.o['alo'])): A("s_nop 0")
        A("L_attn_bar:\ns_waitcnt vmcnt(0) lgkmcnt(0)")
        self.barrier('Q')
        A("L_attn:")
        if int(self.o['prio']) == 2:
            l = self.role(R_GE4); A("s_setprio 1"); self.end(l)
        pk = int(self.o['pk']); mle = int(self.o['mle'])
        order = [(72, 4), (73, 8), (76, 20), (74, 12), (75, 16), (77, 24)]
        for a, d in order: A(f"ds_read_b128 {vr(d)}, v{a} offset:{L_QL}")
        self.region(sE, RO)
        A(f"""s_mul_i32 s{sB}, s{sSIG}, {OSL}
        s_add_u32 s{sE}, s{sE}, s{sB}
        s_and_b32 s{sC}, s{sV}, 3
        s_lshl_b32 s{sC}, s{sC}, 8
        s_add_u32 s{sD}, s{sC}, s{sE}
        s_mov_b32 s{sA}, 0x{ODD & 0xffffffff:x}
        s_mov_b32 s{sB}, 0x{ODD & 0xffffffff:x}
        s_waitcnt vmcnt({18 if pk else 24})""")
        if pk: self.parked()
        self.stamp(3)
        for n, (a, d) in enumerate(order):
            A(f"s_waitcnt lgkmcnt({(11 if pk else 5)-n})")
            for h in range(2):
                if a < 76: g = 4 * h + (a - 72); b = 12 * (g & ~1) + 8 * (g & 1)
                else: g = 4 * h + 2 * (a - 76); b = 12 * g + 16
                A(f"v_smfmac_f32_16x16x64_bf16 {vr(28+4*h)}, {vr(d)}, {ar(b,8)}, v78")
        self.fs('k1')
        if int(self.o['prio']) & 8: A(f"s_lshr_b32 s{sF}, s{sV}, 2\ns_cmp_eq_u32 s{sF}, 0\ns_cbranch_scc1 L_noprio\ns_setprio 1\nL_noprio:")
        fill = [f"v_lshrrev_b32 v1, 4, v0", f"v_and_b32 v2, 15, v0", f"v_mul_u32_u24 v12, 3072, v1", f"v_lshlrev_b32 v13, 3, v1",
                f"v_lshl_add_u32 v12, v2, 4, v12", f"v_lshlrev_b32 v15, 4, v2", f"v_add_u32 v12, s{sC}, v12", f"v_lshl_add_u32 v15, v1, 2, v15",
                f"v_mov_b32 v14, 0", f"v_add_u32 v15, s{sD}, v15", f"v_lshl_add_u32 v16, v0, 4, s{sE}", f"v_and_b32 v17, 7, v0",
                f"v_lshlrev_b32 v17, 2, v17", f"s_lshl_b32 s{sF}, s{sV}, 2", (f"v_add_u32 v35, s{sF}, v19" if int(self.o['w2']) else f"v_mov_b32 v35, s{sF}")]
        if int(self.o['w2']): fill.insert(1, f"v_mov_b32 v19, {L_ML}")
        late_fill = []
        if int(self.o['fl']): late_fill = fill[:13]; fill = fill[13:] + [""] * 13
        if pk:
            fill += ["v_bfe_u32 v18, v0, 3, 1", "v_and_b32 v19, 0x30, v0", "v_lshlrev_b32 v18, 3, v18", "v_lshl_add_u32 v18, v19, 2, v18"]
            for _ in range(6): A(fill.pop(0))
        else:
            A("s_waitcnt vmcnt(18)"); self.parked(); A(fill.pop(0))
        fin = lambda d: [f"v_add_f32 v{d}, v{d}, v{d+1}", f"v_add_f32 v{d+2}, v{d+2}, v{d+3}",
                         f"v_cndmask_b32 v{d}, v{d}, v{d+2}, s[{sA}:{sB}]",
                         f"v_add_f32_dpp v{d}, v{d}, v{d} quad_perm:[1,0,3,2] {DPP}",
                         f"v_cvt_pk_bf16_f32 v{d}, 0, v{d}", f"v_mul_f32 v{d}, s{sSCALE}, v{d}",
                         f"v_cvt_pk_bf16_f32 v{d}, 0, v{d}", f"v_mul_f32 v{d}, s{sLOG2E}, v{d}"]
        f0, f1 = fin(28), fin(32)
        for k in range(8):
            if k == 3: A(fill.pop(0))
            A(f0[k]); A(f1[k])
        A("v_max_f32 v29, v28, v32")
        for p in (f"quad_perm:[2,3,0,1] {DPP}", f"row_half_mirror {DPP}", f"row_mirror {DPP}", "row_bcast:15 row_mask:0xa bank_mask:0xf", "row_bcast:31 row_mask:0xc bank_mask:0xf"):
            A(fill.pop(0)); A(fill.pop(0)); A(f"v_max_f32_dpp v29, v29, v29 {p}")
        A(fill.pop(0)); A(f"v_readlane_b32 s{sM}, v29, 63")
        self.fs('k2')
        while fill: A(fill.pop(0))
        A(f"""v_subrev_f32 v28, s{sM}, v28
        v_subrev_f32 v32, s{sM}, v32
        v_exp_f32 v28, v28
        v_exp_f32 v32, v32
        v_cvt_pk_bf16_f32 v30, v28, v28
        v_cvt_pk_bf16_f32 v31, v32, v32
        v_mov_b32 v34, s{sM}""")
        lsum = ["v_add_f32 v33, v28, v32"] + \
               [f"v_add_f32_dpp v33, v33, v33 {p}" for p in (f"quad_perm:[2,3,0,1] {DPP}", f"row_half_mirror {DPP}", f"row_mirror {DPP}",
                                                            "row_bcast:15 row_mask:0xa bank_mask:0xf", "row_bcast:31 row_mask:0xc bank_mask:0xf")]
        bp = int(self.o['at2'])
        def abuild(S):
            b = 4 + 4 * (S & 1); P = 30 + (S >> 1); jj = S & 1
            if bp and S: return [f"v_and_b32 v{b+2*x+m}, v{20+2*(S-1)+x}, v{84+m}" for x in range(2) for m in range(2)]
            return [f"v_and_b32_dpp v{b+2*x+m}, v{P}, v{84+m} row_newbcast:{8*jj+4*x+2*c} row_mask:0xf bank_mask:{'0x3' if c == 0 else '0xc'}"
                    for c in range(2) for x in range(2) for m in range(2)]
        bperm = lambda S: [f"ds_bpermute_b32 v{20+2*(S-1)+x}, v18, v{30+(S>>1)} offset:{32*(S&1)+16*x}" for x in range(2)]
        if bp: self.mix(bperm(1))
        for x in abuild(0): A(x)
        if bp: self.mix(bperm(2) + bperm(3))
        if int(self.o['prio']) & 8: A("s_setprio 0")
        self.fs('k3')
        for S in range(4):
            nxt = abuild(S + 1) if S < 3 else []
            if S: A(f"s_waitcnt vmcnt({18 - 6*S})")
            if S == 3 and mle:
                assert not lsum
                self.exec_mask(1 << 63)
                A(f"ds_write_b32 v35, v34 offset:{L_ML}\nds_write_b32 v35, v33 offset:{L_ML+32}")
                self.exec_full()
            for s in range(3):
                vv = vr(48 + 8 * s, 8) if S == 0 else vr(VBASE + (S - 1) * 24 + 8 * s, 8)
                if S == 0 and s == 0: A(f"s_waitcnt lgkmcnt({6 if bp else 0})")
                A(f"v_smfmac_f32_16x16x64_bf16 {vr(36+4*s)}, {vr(4+4*(S&1))}, {vv}, v79")
                if bp:
                    if lsum and s != 1: A(lsum.pop(0))
                    if s == 1 and S < 2: A(f"s_waitcnt lgkmcnt({4 if S == 0 else 0})")
                    if s == 1: self.mix(nxt)
                else:
                    for _ in range(3):
                        if nxt: A(nxt.pop(0))
                    if lsum and s != 1: A(lsum.pop(0))
        self.fs('k4')
        if not mle:
            self.exec_mask(1 << 63)
            if int(self.o['w2']): A(f"ds_write2_b32 v35, v34, v33 offset0:0 offset1:8")
            else: A(f"ds_write_b32 v35, v34 offset:{L_ML}\nds_write_b32 v35, v33 offset:{L_ML+32}")
        self.exec_mask(0xFF00FF0000FF00FF)
        for s in range(3): A(f"ds_write_b128 v87, {vr(36+4*s)} offset:{L_OC + 256*s}")
        self.exec_full()
        self.mix(late_fill)
        l = self.role(R_LT4)
        l2 = self.pass0(); l3 = self.lab("nm")
        A(f"s_cbranch_execz {l3}")
        self.first_pass_checks()
        if self.o['tq']:
            l4 = self.lab("ntq"); A(f"s_cmp_ge_u32 s{sT}, 30\ns_cbranch_scc1 {l4}")
            self.lds_spin(16, 4)
            self.w_dma_gud(sV, self.o['tq'])
            self.end(l4)
        if int(self.o['tqwo']):
            n = int(self.o['tqwo']) // 4
            l4 = self.lab("ntq"); A(f"s_cmp_ge_u32 s{sT}, 30\ns_cbranch_scc1 {l4}")
            self.dma_addr(6, 1280)
            A(f"s_mul_i32 s{sB}, s{sV}, {n}\ns_add_u32 s{sB}, s{sB}, {32 - 4*n}\ns_mul_i32 s{sC}, s{sB}, {8*1280}\ns_lshl_b32 s{sB}, s{sB}, 10")
            self.lds_spin(16, 4)
            self.dma(SWO, 6, n, 1280, L_WO, sC, sB, int(self.o['tqlim']))
            self.end(l4)
        self.end(l3); self.end(l2)
        if int(self.o['wb']) == 2:
            l2 = self.lab("wb"); A(f"s_cmp_eq_u32 s{sT}, 30\ns_cbranch_scc0 {l2}\ns_lshl_b32 s{sA}, s{sV}, 1\ns_or_b32 s{sA}, s{sA}, s{sP}\ns_cmp_eq_u32 s{sA}, 1\ns_cbranch_scc0 {l2}\nbuffer_wbl2 sc1\n{l2}:")
        self.end(l)
        A("s_waitcnt lgkmcnt(0)")
        if int(self.o['prio']) & 3: A("s_setprio 0")
        self.stamp(4)
        if self.o['t2'] and not self.o['t2p']:
            l = self.pass0(); A("s_memrealtime s[66:67]"); self.end(l)
        self.barrier('A')
        l = self.role(R_GE4)
        if int(self.o['prio']) & 4: A("s_setprio 1")
        A(f"ds_read_b32 v47, v14 offset:{L_FL+12}")
        l2 = self.role(R_456)
        A(f"""ds_read_b128 v[20:23], v14 offset:{L_ML}
        ds_read_b128 v[24:27], v14 offset:{L_ML+16}
        ds_read_b64 v[18:19], v13 offset:{L_ML}
        ds_read_b128 v[48:51], v12 offset:{L_OC}
        ds_read_b128 v[52:55], v12 offset:{L_OC+768}
        ds_read_b128 v[56:59], v12 offset:{L_OC+1536}
        ds_read_b128 v[60:63], v12 offset:{L_OC+2304}
        v_subrev_u32 v28, 16, v0
        v_ashrrev_i32 v28, 31, v28
        v_and_b32 v28, 0xff, v28""")
        self.lane_tag(29, 0)
        A(f"""s_waitcnt lgkmcnt(5)
        v_max3_f32 v20, v20, v21, v22
        v_max3_f32 v24, v24, v25, v26
        v_readfirstlane_b32 s{sFAST}, v47
        v_max3_f32 v20, v20, v23, v27
        v_max_f32 v20, v20, v24
        s_waitcnt lgkmcnt(2)
        v_sub_f32 v18, v18, v20
        v_sub_f32 v19, v19, v20
        v_add_f32 v48, v48, v52
        v_exp_f32 v18, v18
        v_add_f32 v49, v49, v53
        v_exp_f32 v19, v19
        v_add_f32 v50, v50, v54
        v_add_f32 v51, v51, v55
        s_waitcnt lgkmcnt(0)""")
        for i in range(4): A(f"v_add_f32 v{56+i}, v{56+i}, v{60+i}\nv_mul_f32 v{48+i}, v18, v{48+i}")
        for i in (0, 2, 1, 3): A(f"v_fmac_f32 v{48+i}, v19, v{56+i}")
        self.treduce(48, 49, 50, 51)
        A(f"v_bfi_b32 v48, v28, v29, v48")
        self.stores(f"buffer_store_dword v48, v15, {srd(SWS)}, 0 offen{{f}}", True, 'A')
        if int(self.o['mlb']): A("s_barrier")
        self.end(l2)
        l2 = self.role(R_7)
        A(f"""ds_read_b32 v4, v17 offset:{L_ML}
        ds_read_b32 v5, v17 offset:{L_ML+32}
        v_mov_b32 v8, s{sTB}
        s_waitcnt lgkmcnt(1)
        v_max_f32_dpp v6, v4, v4 quad_perm:[1,0,3,2] {DPP}
        v_readfirstlane_b32 s{sFAST}, v47
        v_max_f32_dpp v6, v6, v6 quad_perm:[2,3,0,1] {DPP}
        v_max_f32_dpp v6, v6, v6 row_half_mirror {DPP}
        v_sub_f32 v4, v4, v6
        v_exp_f32 v4, v4
        s_waitcnt lgkmcnt(0)
        v_mul_f32 v7, v4, v5""")
        self.mix(self.red16([7])[:3])
        if int(self.o['mlb']): A("s_barrier")
        if int(self.o['mld']): A(f"s_sleep {self.o['mld']}")
        self.exec_mask(0xff)
        self.stores(f"buffer_store_dwordx4 v[6:9], v16, {srd(SWS)}, 0 offen offset:768{{f}}", True, 'M')
        self.exec_full()
        l3 = self.pass0(); l4 = self.lab("ncs")
        A(f"""s_cmp_ge_u32 s{sT}, 30
        s_cbranch_scc1 {l4}
        v_lshlrev_b32 v1, 4, v0
        ds_read_b128 v[12:15], v1 offset:{L_CS}
        s_mul_i32 s{sA}, s{sSIG}, {QSL}
        s_add_u32 s{sA}, s{sA}, {RQ[1] + 4224}
        s_waitcnt lgkmcnt(0)""")
        A(f"s_mov_b32 s{sC}, s{sA}"); self.lane_tag(2, 0)
        A(f"s_mov_b32 s{sA}, s{sC}\nv_mov_b32_sdwa v12, v2 dst_sel:BYTE_0 dst_unused:UNUSED_PRESERVE src0_sel:BYTE_0")
        self.stores(f"buffer_store_dwordx4 v[12:15], v1, {srd(SWS)}, s{sA} offen{{f}}", True)
        self.end(l4); self.end(l3); self.end(l2)
        if int(self.o['prio']) & 4: A("s_setprio 0")
        self.end(l)
        if int(self.o['mlb']):
            l = self.role(R_LT4); self.wo_pre1(); A("s_barrier"); self.end(l)
        A(f"s_cmp_ge_u32 s{sT}, 30\ns_cbranch_scc1 L_idle")

    def group_flag(self):
        A = self.A
        l = self.lab("noag"); lp = self.lab("ag"); lr = self.lab("agr")
        A(f"""s_cmp_eq_u32 s{sT}, 30
        s_cbranch_scc0 {l}
        s_cmp_eq_u32 s{sV}, 2
        s_cbranch_scc0 {l}
        v_lshlrev_b32 v3, 7, v0
        s_getreg_b32 s{sXCC}, hwreg(HW_REG_XCC_ID, 0, 4)
        s_lshl_b32 s{sA}, s{sX}, 12
        s_add_u32 s{sA}, s{sA}, {RF}
        s_mov_b32 exec_hi, 0
        {lp}:
        buffer_load_dwordx2 v[4:5], v3, {srd(SWS)}, s{sA} offen sc1
        s_waitcnt vmcnt(0)
        v_cmp_ne_u32 vcc, s{sTAG}, v4
        s_cbranch_vccnz {lr}
        v_cmp_ne_u32 vcc, s{sXCC}, v5
        s_cmp_eq_u64 vcc, 0
        s_cselect_b32 s{sB}, 1, 0
        v_mov_b32 v4, s{sTAG}
        v_mov_b32 v5, s{sB}
        v_mov_b32 v6, s{sTAG}
        v_mov_b32 v7, s{sB}
        v_lshlrev_b32 v3, 4, v0
        s_lshl_b32 s{sA}, s{sX}, 7
        s_add_u32 s{sA}, s{sA}, {RF2}
        s_mov_b64 exec, 0xff
        buffer_store_dwordx4 v[4:7], v3, {srd(SWS)}, s{sA} offen sc1
        s_mov_b64 exec, -1
        s_waitcnt vmcnt(0)
        {l}:""")
        self.tail.append(f"{lr}:\ns_sleep 16\ns_sub_u32 s{sTO}, s{sTO}, 1\ns_cbranch_scc1 L_end\ns_branch {lp}")
    def flag_check_agg(self):
        A = self.A
        l = self.lab("nochk"); lp = self.lab("chk"); lr = self.lab("chkr")
        A(f"""s_cmp_eq_u32 s{sV}, {self.o['chkw']}
        s_cbranch_scc0 {l}
        v_mov_b32 v1, {L_FL}
        v_lshlrev_b32 v3, 7, v0
        s_mov_b32 s{sA}, {RF2}
        s_mov_b64 exec, 0xff
        {lp}:
        buffer_load_dwordx2 v[4:5], v3, {srd(SWS)}, s{sA} offen sc1
        s_waitcnt vmcnt(0)
        v_cmp_ne_u32 vcc, s{sTAG}, v4
        s_cbranch_vccnz {lr}
        v_readlane_b32 s{sA}, v5, s{sX}
        s_mov_b64 exec, 1
        v_mov_b32 v5, s{sA}
        ds_write_b32 v1, v5 offset:12
        s_cmp_eq_u32 s2, 0
        s_cbranch_scc0 {l}
        s_mov_b32 s{sA}, {RE}
        v_add_u32 v4, 1, v4
        buffer_store_dword v4, v3, {srd(SWS)}, s{sA} offen sc1
        {l}:
        s_mov_b64 exec, -1""")
        self.tail.append(f"{lr}:\ns_sleep {self.o['bsleep']}\ns_sub_u32 s{sTO}, s{sTO}, 1\ns_cbranch_scc1 L_end\ns_branch {lp}")
    def flag_check(self):
        A = self.A
        if int(self.o['agg']): return self.flag_check_agg()
        l = self.lab("nochk"); lp = self.lab("chk"); lr = self.lab("chkr")
        A(f"""s_cmp_eq_u32 s{sV}, {self.o['chkw']}
        s_cbranch_scc0 {l}
        v_mov_b32 v1, {L_FL}
        v_mov_b32 v2, s{sTAG}
        v_lshlrev_b32 v3, 9, v0
        s_getreg_b32 s{sXCC}, hwreg(HW_REG_XCC_ID, 0, 4)
        s_mov_b32 s{sA}, {RF}
""")
        fl = lambda f: [A(f"buffer_load_dwordx2 v[{4+2*k}:{5+2*k}], v3, {srd(SWS)}, s{sA} offen offset:{128*k} {f}") for k in range(4)]
        lw = self.lab("chw")
        if 'f' in self.o['pl']: fl(''); A(f"s_branch {lw}")
        A(f"{lp}:"); fl('sc1')
        A(f"""{lw}:
        s_waitcnt vmcnt(0)
        v_xor_b32 v4, v4, v2
        v_xor_b32 v6, v6, v2
        v_xor_b32 v8, v8, v2
        v_xor_b32 v10, v10, v2
        v_or3_b32 v4, v4, v6, v8
        v_or_b32 v4, v4, v10
        v_cmp_ne_u32 vcc, 0, v4
        s_cbranch_vccnz {lr}
        v_xor_b32 v5, s{sXCC}, v5
        v_xor_b32 v7, s{sXCC}, v7
        v_xor_b32 v9, s{sXCC}, v9
        v_xor_b32 v11, s{sXCC}, v11
        v_or3_b32 v5, v5, v7, v9
        v_or_b32 v5, v5, v11
        v_cmp_eq_u32 vcc, 0, v5
        s_lshl_b32 s{sB}, s{sX}, 3
        s_lshr_b64 s[{sA}:{sB}], vcc, s{sB}
        s_and_b32 s{sA}, s{sA}, 0xff
        s_cmp_eq_u32 s{sA}, 0xff
        s_cselect_b32 s{sA}, 1, 0
        v_mov_b32 v4, s{sA}
        ds_write_b32 v1, v4 offset:12
        s_cmp_eq_u32 s2, 0
        s_cbranch_scc0 {l}
        v_mov_b32 v3, 0
        v_add_u32 v2, 1, v2
        s_mov_b32 s{sA}, {RE}
        s_mov_b64 exec, 1
        buffer_store_dword v2, v3, {srd(SWS)}, s{sA} offen sc1
        s_mov_b64 exec, -1
        {l}:""")
        self.tail.append(f"{lr}:\ns_sleep {self.o['bsleep']}\ns_sub_u32 s{sTO}, s{sTO}, 1\ns_cbranch_scc1 L_end\ns_branch {lp}")
    def first_pass_checks(self):
        A = self.A
        if int(self.o['chkw']) == 0: self.flag_check()
        if self.o['prewarm'] and self.o['pwo']:
            l = self.lab("npw")
            A(f"""s_cmp_eq_u32 s{sV}, 1
            s_cbranch_scc0 {l}
            v_lshlrev_b32 v1, 4, v0
            s_mul_i32 s{sA}, s{sSIG}, {QSL}
            s_add_u32 s{sA}, s{sA}, {RQ[1] + 4224}
            buffer_load_dwordx4 v[60:63], v1, {srd(SWS)}, s{sA} offen {'' if 'p' in self.o['pl'] else 'sc1'}
""")
            for R in (RX + RY if self.o['xt'] else []):
                A(f"s_lshl_b32 s{sA}, s{sSLOT}, 10\ns_add_u32 s{sA}, s{sA}, {R}\nbuffer_load_dwordx4 v[60:63], v1, {srd(SWS)}, s{sA} offen {self.o['xt'].replace('plain', '')}")
            A(f"""s_mov_b32 exec_hi, 0xffffff
            buffer_load_dwordx4 v[60:63], v1, {srd(SWS)}, s{sE} offen {'' if 'p' in self.o['pl'] else 'sc1'}
            s_mov_b64 exec, -1
            {l}:""")

    def afrag_addr(self, d, stride):
        self.A(f"v_and_b32 v1, 3, v0\nv_lshrrev_b32 v2, 4, v0\nv_mul_u32_u24 v1, {stride}, v1\nv_lshl_add_u32 v{d}, v2, 4, v1")
    def pub_addr(self, d, R):
        self.region(sC, R)
        self.A(f"s_lshl_b32 s{sA}, s{sSLOT}, 10\ns_lshl_b32 s{sB}, s{sV}, 8\ns_add_u32 s{sA}, s{sA}, s{sB}\ns_add_u32 s{sA}, s{sA}, s{sC}\nv_lshl_add_u32 v{d}, v0, 4, s{sA}") if not self.o['xbf'] else \
        self.A(f"s_lshl_b32 s{sA}, s{sSLOT}, 9\ns_lshl_b32 s{sB}, s{sV}, 7\ns_add_u32 s{sA}, s{sA}, s{sB}\ns_add_u32 s{sA}, s{sA}, s{sC}\nv_lshl_add_u32 v{d}, v0, 3, s{sA}")
    def pub_store(self, addr, tag):
        if self.o['xbf']:
            self.A("v_cvt_pk_bf16_f32 v68, v68, v69\nv_cvt_pk_bf16_f32 v69, v70, v71")
            self.exec_mask(0xffff)
            self.stores(f"buffer_store_dwordx2 v[68:69], v{addr}, {srd(SWS)}, 0 offen{{f}}", False, tag)
        else:
            self.exec_mask(0xffff)
            self.stores(f"buffer_store_dwordx4 v[68:71], v{addr}, {srd(SWS)}, 0 offen{{f}}", False, tag)
        self.exec_full()
    def unpack_sum(self, dst, srcs):
        out = []
        for k, r in enumerate(srcs):
            for i in range(4):
                out.append(f"v_dot2_f32_bf16 v{dst+i}, v{r + (i >> 1)}, s{sLO if i % 2 == 0 else sHI}, {'0' if k == 0 else 'v%d' % (dst+i)}")
        return out

    def wo_pre1(self):
        A = self.A
        self.region(sD, RO)
        A(f"""s_lshl_b32 s{sA}, s{sRI}, 2
        s_add_u32 s{sA}, s{sA}, s{sV}
        s_mul_i32 s{sB}, s{sA}, 86
        s_lshr_b32 s{sB}, s{sB}, 8
        s_mul_i32 s{sC}, s{sB}, 3
        s_sub_u32 s{sC}, s{sA}, s{sC}
        s_lshl_b32 s{sB}, s{sB}, 3
        s_lshl_b32 s{sA}, s{sX}, 5
        s_add_u32 s{sB}, s{sB}, s{sA}
        s_mul_i32 s{sB}, s{sB}, {OSL}
        s_add_u32 s{sB}, s{sB}, s{sD}
        v_lshrrev_b32 v1, 4, v0
        v_and_b32 v2, 15, v0
        v_mul_u32_u24 v72, {2*OSL}, v1
        v_add_u32 v72, s{sB}, v72
        s_lshl_b32 s{sC}, s{sC}, 8
        v_lshl_add_u32 v73, v2, 4, v72
        v_add_u32 v73, s{sC}, v73""")
        if 'o' in self.o['few']: A(f"v_mov_b32 v3, {OOB}\nv_cmp_eq_u32 vcc, 0, v2\nv_cndmask_b32 v72, v3, v72, vcc")
        A(f"""s_lshl_b32 s{sA}, s{sV}, 7
        v_mul_u32_u24 v74, {OS}, v1
        v_lshl_add_u32 v74, v2, 3, v74
        v_add_u32 v74, s{sA}, v74""")
    def wo_pre2(self):
        A = self.A
        A(f"v_mov_b32 v1, 0\nds_read_b32 v47, v1 offset:{L_FL+12}\ns_mov_b32 s{sA}, {L_WO}")
        self.tr_addr(75, sA)
        A(f"s_lshl_b32 s{sA}, s{sV}, 5\nv_xor_b32 v75, s{sA}, v75")
        k = 8 - int(self.o['tqwo']) // 4
        self.wfrags(4, 75, k)
        if k < 8:
            A("v_mov_b32 v77, v75")
            l = self.lab("wl"); A(f"s_cmp_eq_u32 s{sP}, 0\ns_cbranch_scc1 {l}"); self.wfrags(4 + 4 * k, 75, 8 - k, k * 4096); self.end(l)
        self.afrag_addr(75, OS); self.pub_addr(76, RX); self.lane_tag(78, 0)
        A(f"s_waitcnt lgkmcnt({min(15, 2*k)})\nv_readfirstlane_b32 s{sFAST}, v47")

    def wo_stage(self):
        A = self.A
        l = self.role(R_LT4)
        if int(self.o['mlb']): self.wo_pre2()
        else: self.wo_pre1(); self.wo_pre2(); A("s_barrier")
        self.sync(self.o['sync_o'])
        def loadsA(): A(f"""buffer_load_dwordx3 v[48:50], v72, {srd(SWS)}, 0 offen offset:768 sc1
        buffer_load_dwordx3 v[52:54], v72, {srd(SWS)}, 0 offen offset:{768+OSL} sc1""")
        def loads(): A(f"""buffer_load_dwordx4 v[56:59], v73, {srd(SWS)}, 0 offen sc1
        buffer_load_dwordx4 v[60:63], v73, {srd(SWS)}, 0 offen offset:{OSL} sc1""")
        chain = """v_sub_f32 v66, v52, v48
            v_exp_f32 v67, v66
            v_exp_f32 v66, -v66
            v_fma_f32 v67, v67, v53, v49
            v_fma_f32 v66, v66, v49, v53
            v_rcp_f32 v67, v67
            v_rcp_f32 v66, v66""".split('\n')
        def red():
            cm, ors = self.tagchk([56, 60], (), 'v78')
            self.mix(cm, [f"v_mul_f32 v{56+i}, v67, v{56+i}" for i in (2, 3, 1)])
            A("v_mul_f32 v56, v67, v56")
            for i in (2, 3, 1, 0): A(f"v_fmac_f32 v{56+i}, v66, v{60+i}")
            A("v_cvt_pk_bf16_f32 v65, v58, v59\nv_cvt_pk_bf16_f32 v64, v56, v57\nds_write_b64 v74, v[64:65] offset:%d" % L_OA)
            self.mix(ors)
        self.tpoll(loadsA, 0, (50, 54), None, chain, loads, red, lambda: None, 'o')
        lgo = self.lab("wogo")
        k = 8 - int(self.o['tqwo']) // 4
        def variant(first):
            A("s_waitcnt lgkmcnt(0)")
            self.stamp(5)
            self.barrier('O')
            seq = []
            for s in range(8):
                if first and s >= k: self.wfrags(4 + 4 * s, 77, 1, s * 4096); seq += [s, s]
                A(f"ds_read_b128 {vr(36+4*s)}, v75 offset:{L_OA + 64*s}"); seq.append(s)
            for s in range(8):
                A(f"s_waitcnt lgkmcnt({min(15, sum(x > s for x in seq))})\nv_mfma_f32_16x16x32_bf16 v[68:71], {vr(36+4*s)}, {vr(4+4*s)}, {'0' if s == 0 else 'v[68:71]'}")
            self.pub_store(76, 'O')
            if first and 'w' in self.o['bar']: A("s_barrier")
            A(f"s_branch {lgo}")
        if k < 8:
            lp = self.pass0(); variant(True); self.end(lp)
        variant(False)
        self.end(l)
        if not int(self.o['mlb']): A("s_barrier")
        l = self.pass0(); self.cq_gather(False); self.end(l)
        self.barrier('O')
        l = lgo; l2 = self.pass0()
        if 'w' in self.o['bar']: A("s_barrier")
        nlate = 6 if self.o['defer'] else 0
        def late_clr():
            l3 = self.lab("nm"); l5, l6, l7_ = self.lab("lc"), self.lab("lc"), self.lab("lc")
            A(f"s_cbranch_execz {l3}"); self.clr_begin()
            A(f"s_cmp_eq_u32 s{sV}, 5\ns_cbranch_scc1 {l5}\ns_cmp_eq_u32 s{sV}, 6\ns_cbranch_scc1 {l6}\ns_cmp_eq_u32 s{sV}, 7\ns_cbranch_scc1 {l3}")
            self.clr('X', 1); self.clr('Y', 1); self.clr('O', 1)
            A(f"s_branch {l3}\n{l5}:"); self.clr('G', 1)
            A(f"s_branch {l3}\n{l6}:"); self.clr('Q', 1)
            self.end(l3)
        def late():
            if self.o['dwo']:
                l3 = self.lab("nm"); A(f"s_cbranch_execz {l3}\ns_and_b32 s{sD}, s{sV}, 3"); self.w_dma_gud(sD, self.o['dwo']); self.end(l3)
        l7 = self.role(R_7)
        if self.o['prewarm']:
            self.mem(f"""v_lshlrev_b32 v1, 4, v0
            s_mul_i32 s{sA}, s{sSIG}, {GSL}
            s_add_u32 s{sA}, s{sA}, {RG[0]}
            buffer_load_dwordx4 v[60:63], v1, {srd(SWS)}, s{sA} offen sc1
            buffer_load_dwordx4 v[60:63], v1, {srd(SWS)}, s{sA} offen offset:1024 sc1
            s_mov_b32 exec_hi, 0xff
            buffer_load_dwordx4 v[60:63], v1, {srd(SWS)}, s{sA} offen offset:2048 sc1
            s_mov_b32 exec_hi, -1""")
        self.end(l7)
        late()
        if self.o['clr'] == 'late': late_clr()
        self.end(l2); self.end(l)
        self.stamp(6)

    def x_gather_pre(self, R):
        self.region(sC, R)
        h = 1 if self.o['xbf'] else 0
        self.A(f"""s_lshl_b32 s{sA}, s{sAI}, {10-h}
        s_lshl_b32 s{sB}, s{sV}, {7-h}
        s_add_u32 s{sA}, s{sA}, s{sB}
        s_add_u32 s{sA}, s{sA}, s{sC}
        v_lshrrev_b32 v1, 3, v0
        v_and_b32 v2, 7, v0
        v_mul_u32_u24 v28, {10240 >> h}, v1
        v_lshl_add_u32 v28, v2, {4-h}, v28
        v_add_u32 v28, s{sA}, v28
        v_lshrrev_b32 v1, 4, v0
        v_mul_u32_u24 v29, {XS}, v1
        v_lshl_add_u32 v29, v2, 1, v29
        s_lshl_b32 s{sA}, s{sV}, 4
        v_add_u32 v29, s{sA}, v29""")
    def x_gather(self, tag, shadow):
        A = self.A
        bf = self.o['xbf']
        def loads():
            for i, r in enumerate(("0", f"s{sK1}", f"s{sK2}")):
                A(f"buffer_load_dwordx2 {vr(52+2*i,2)}, v28, {srd(SWS)}, {r} offen sc1" if bf else f"buffer_load_dwordx4 {vr(48+4*i)}, v28, {srd(SWS)}, {r} offen sc1")
        def red():
            if bf: self.mix(self.unpack_sum(48, [52, 54, 56]))
            else:
                for i in range(4): A(f"v_add_f32 v{48+i}, v{48+i}, v{52+i}")
                for i in (0, 2, 1, 3): A(f"v_add_f32 v{48+i}, v{48+i}, v{56+i}")
            self.treduce(48, 49, 50, 51)
            A(f"v_add_f32_dpp v48, v48, v48 row_ror:8 {DPP}\nv_cvt_pk_bf16_f32 v49, 0, v48")
        self.poll(loads, range(52, 58) if bf else range(48, 60), red, (48, 48), tag=tag, shadow=shadow)

    def gu_stage(self):
        A = self.A
        A(f"s_lshr_b32 s{sA}, s{sV}, 2\ns_lshl_b32 s{sA}, s{sA}, 13\ns_add_u32 s{sA}, s{sA}, {L_WG}")
        self.tr_addr(35, sA)
        A(f"s_and_b32 s{sA}, s{sV}, 3\ns_lshl_b32 s{sA}, s{sA}, 5\nv_xor_b32 v35, s{sA}, v35")
        if self.o['defer']:
            l = self.lab("gw"); A(f"s_cmp_eq_u32 s{sP}, 0\ns_cbranch_scc1 {l}"); self.wfrags(12, 35, 2); self.end(l)
        else: self.wfrags(12, 35, 2)
        self.x_gather_pre(RX)
        self.xa_addr()
        self.region(sC, RG)
        A(f"""s_mul_i32 s{sA}, s{sSIG}, {GSL}
        s_add_u32 s{sA}, s{sA}, s{sC}
        s_lshl_b32 s{sB}, s{sV}, {7 if self.o['gbf'] else 8}
        s_add_u32 s{sB}, s{sB}, s{sA}
        v_lshl_add_u32 v32, v0, {3 if self.o['gbf'] else 4}, s{sB}
        s_lshl_b32 s{sB}, s{sV}, 6
        s_add_u32 s{sB}, s{sB}, s{sA}
        v_lshl_add_u32 v34, v0, 2, s{sB}
        v_lshrrev_b32 v1, 4, v0
        s_add_u32 s{sA}, s{sA}, 2560
        v_lshl_add_u32 v33, v1, 4, s{sA}""")
        self.sync(self.o['sync_x'], RX)
        def xsh():
            if self.o['dx']:
                l = self.pass0(); l3 = self.lab("nm"); le = self.lab("dxe")
                A(f"s_cbranch_execz {l3}")
                self.dma_addr(20, 1280)
                wf = self.o['wflag'].replace('plain', '')
                A(f"""s_and_b32 s{sA}, s{sV}, 1
                s_lshl_b32 s{sA}, s{sA}, 6
                v_xor_b32 v20, s{sA}, v20
                s_lshl_b32 s{sB}, s{sV}, 10
                s_add_u32 m0, s{sB}, {L_WD}
                s_mul_i32 s{sA}, s{sV}, {8*1280}
                buffer_load_dwordx4 v20, {srd(SWD)}, s{sA} offen {wf} lds""")
                self.end(l3)
                self.down_pre()
                A(f"s_waitcnt vmcnt(1)\ns_cbranch_execnz {self.lskip}")
                self.end(l)
            self.down_pre()
        if 'x' in self.o['early']: self.down_pre(); self.x_gather('x', None)
        else: self.x_gather('x', xsh)
        A(f"""v_add_f32 v{vXR}, v{vXR}, v49
        v_cvt_pk_bf16_f32 v{vXR}, 0, v{vXR}
        ds_write_b16_d16_hi v29, v{vXR} offset:{L_XA}""")
        self.stamp(7)
        def store(first, more=""):
            self.pre_store(0xffff, [48], 86)
            st = f"buffer_store_dwordx4 v[48:51], v32, {srd(SWS)}, 0 offen{{f}}"
            if first: st += f"\ns_mov_b32 exec_lo, 0xffff0000\nbuffer_store_dword v48, v34, {srd(SWS)}, 0 offen offset:{2048-64}{{f}}"
            self.stores(st + "\n" + more, True, 'X')
            self.exec_full()
        self.mm_with_gram("v_mfma_f32_16x16x32_bf16 v[48:51], v[4:7], v[12:15], 0", "v_mfma_f32_16x16x32_bf16 v[48:51], v[8:11], v[16:19], v[48:51]", store, 'X',
                          late=(lambda: self.wfrags(12, 35, 2)) if self.o['defer'] else (lambda: None))
        self.stamp(8)

    def down_wpre(self):
        l = self.role(R_LT4)
        if self.o['dx']: self.A(f"s_cmp_eq_u32 s{sP}, 0\ns_cbranch_scc1 {l}")
        self.wfrags(20, 47, 2); self.end(l)
    def down_pre(self):
        A = self.A
        A(f"s_mov_b32 s{sA}, {L_WD}")
        self.tr_addr(47, sA)
        A(f"s_lshl_b32 s{sA}, s{sV}, 5\nv_xor_b32 v47, s{sA}, v47")
        self.afrag_addr(78, HS); self.pub_addr(79, RY)
        self.region(sD, RG)
        A(f"""s_mul_i32 s{sC}, s{sRI}, 10
        s_lshl_b32 s{sA}, s{sX}, 5
        s_add_u32 s{sC}, s{sC}, s{sA}
        s_mul_i32 s{sC}, s{sC}, {GSL}
        s_add_u32 s{sC}, s{sC}, s{sD}
        v_lshrrev_b32 v1, 4, v0
        v_mul_u32_u24 v3, {GSL}, v1
        v_add_u32 v3, s{sC}, v3
        v_bfe_u32 v2, v0, 3, 1
        v_lshlrev_b32 v2, 6, v2
        v_and_or_b32 v2, v0, 7, v2
        s_lshl_b32 s{sA}, s{sV}, 3
        v_add_u32 v2, s{sA}, v2
        v_lshl_add_u32 v72, v2, {3 if self.o['gbf'] else 4}, v3
        v_lshl_add_u32 v74, v2, 2, v3
        v_add_u32 v73, {8*GSL}, v72
        v_add_u32 v75, {8*GSL}, v74
        v_mov_b32 v3, {OOB}
        v_cmp_gt_u32 vcc, 32, v0
        v_cndmask_b32 v73, v3, v73, vcc
        v_cndmask_b32 v75, v3, v75, vcc
""")
        if 'g' in self.o['few']: A(f"""v_lshrrev_b32 v2, 2, v0
        v_mul_u32_u24 v76, {GSL}, v2
        v_and_b32 v2, 3, v0
        v_lshl_add_u32 v76, v2, 4, v76
        v_add_u32 v76, s{sC}, v76
        v_cmp_gt_u32 vcc, 40, v0
        v_cndmask_b32 v76, v3, v76, vcc""")
        else: A(f"""v_and_b32 v2, 15, v0
        v_mul_u32_u24 v76, {GSL}, v2
        v_lshl_add_u32 v76, v1, 4, v76
        v_add_u32 v76, s{sC}, v76
        v_cmp_gt_u32 vcc, 10, v2
        v_cndmask_b32 v76, v3, v76, vcc""")
        A(f"""        v_mul_u32_u24 v77, {HS}, v1
        v_and_b32 v2, 7, v0
        v_lshl_add_u32 v77, v2, 1, v77
        s_lshl_b32 s{sA}, s{sV}, 4
        v_add_u32 v77, s{sA}, v77
        v_mov_b32 v40, 0
        v_mov_b32 v41, 0
        v_mov_b32 v42, 0
        v_mov_b32 v43, 0""")
        self.lane_tag(85, 4); self.lane_tag(86, 0)

    def down_stage(self):
        A = self.A
        if 'g' in self.o['bar']: A("s_barrier")
        self.sync(self.o['sync_g'])
        def loadsA(): A(f"buffer_load_dwordx4 v[40:43], v76, {srd(SWS)}, 0 offen offset:2560 sc1")
        def loads():
            A(f"""buffer_load_dwordx4 v[52:55], v72, {srd(SWS)}, 0 offen sc1
            buffer_load_dwordx4 v[56:59], v72, {srd(SWS)}, s{sKG} offen sc1
            buffer_load_dwordx4 v[60:63], v73, {srd(SWS)}, 0 offen sc1""")
            l = self.pass0()
            A(f"""buffer_load_dword v44, v74, {srd(SWS)}, 0 offen offset:2048 sc1
            buffer_load_dword v45, v74, {srd(SWS)}, s{sKG} offen offset:2048 sc1
            buffer_load_dword v46, v75, {srd(SWS)}, 0 offen offset:2048 sc1""")
            self.end(l)
        def red():
            s0 = f"""v_add_f32 v35, v44, v45
            v_add_f32 v35, v35, v46
            v_mov_b32 v36, v35
            v_permlane32_swap_b32 v35, v36
            v_add_f32 v35, v35, v36
            v_mov_b32 v36, v35
            v_permlane16_swap_b32 v35, v36
            v_add_f32 v{vC}, v35, v36""".split('\n')
            pre = [f"v_add_f32 v{52+i}, v{52+i}, v{56+i}" for i in (1, 2, 3)] + [f"v_add_f32 v{52+i}, v{52+i}, v{60+i}" for i in (2, 1, 3)]
            s2 = ["v_add_f32 v52, v52, v56", "v_add_f32 v52, v52, v60"] + self.capture(lambda: self.treduce(52, 53, 54, 55))
            l = self.pass0(); le = self.lab("rv")
            cm, ors = self.tagchk([52, 56, 44, 45], [60, 46], 'v86')
            self.mix(cm, pre); self.mix(s2, s0, ors)
            A(f"s_branch {le}")
            self.end(l)
            cm, ors = self.tagchk([52, 56], [60], 'v86')
            self.mix(cm, pre); self.mix(s2[:4]); self.mix(s2[4:], ors)
            self.end(le)
            A(f"v_fma_f32 v52, -v37, v{vC}, v52\nv_mul_f32 v52, v52, v38\nv_cvt_pk_bf16_f32 v53, 0, v52")
        def post():
            A(f"""v_mul_f32 v54, s{sLOG2E}, v53
            v_exp_f32 v54, -v54
            v_add_f32 v54, 1.0, v54
            v_rcp_f32 v54, v54
            v_mul_f32 v54, v53, v54
            v_cvt_pk_bf16_f32 v54, 0, v54
            v_mul_f32_dpp v54, v53, v54 row_ror:8 {DPP}""")
            self.exec_mask(0x00ff00ff00ff00ff)
            A(f"v_cvt_pk_bf16_f32 v54, 0, v54\nds_write_b16_d16_hi v77, v54 offset:{L_HA}")
            self.exec_full()
        self.tpoll(loadsA, 0x03ff03ff03ff03ff, (43,), self.down_wpre, self.red16([40, 41]) + self.lnstats(40, 41, 37, 38, 39), loads, red, post, 'g')
        self.stamp(9)
        l = self.role(R_LT4); le = self.lab("dn")
        A("s_waitcnt lgkmcnt(0)"); self.barrier('G')
        if self.o['dx']:
            l2 = self.pass0(); self.wfrags(20, 47, 2); self.end(l2)
        A(f"""ds_read_b128 v[4:7], v78 offset:{L_HA}
        ds_read_b128 v[8:11], v78 offset:{L_HA+64}
        s_waitcnt lgkmcnt(1)
        v_mfma_f32_16x16x32_bf16 v[68:71], v[4:7], v[20:23], 0
        s_waitcnt lgkmcnt(0)
        v_mfma_f32_16x16x32_bf16 v[68:71], v[8:11], v[24:27], v[68:71]""")
        self.pub_store(79, 'G')
        A(f"s_branch {le}")
        self.end(l)
        A("s_waitcnt lgkmcnt(0)"); self.barrier('G')
        self.end(le)
        if 'y' in self.o['bar']: A("s_barrier")
        self.stamp(10)
        A("v_and_b32 v43, 0xffffff00, v43")
        self.mix(self.red16([42, 43]))
        l = self.pass0(); A(f"v_readfirstlane_b32 s{sSW}, v43"); self.end(l)
        A(f"""v_mov_b32 v43, s{sSW}
        v_fma_f32 v42, -v37, v43, v42
        v_mul_f32 v42, v42, v38
        v_cvt_pk_bf16_f32 v42, 0, v42
        v_mul_f32 v42, s{sLOG2E}, v42
        v_exp_f32 v42, -v42
        v_sub_f32 v{vXN}, v{vXR}, v37
        v_add_f32 v42, 1.0, v42
        v_rcp_f32 v42, v42
        v_cvt_pk_bf16_f32 v{vXN}, 0, v{vXN}
        v_cvt_pk_bf16_f32 v{vSG}, 0, v42
        v_mul_f32 v{vXN}, v{vXN}, v38
        v_cvt_pk_bf16_f32 v{vXN}, 0, v{vXN}""")

    def y_finish(self):
        self.A(f"""v_mul_f32 v49, v49, v{vSG}
        v_cvt_pk_bf16_f32 v49, 0, v49
        v_add_f32 v49, v{vXN}, v49
        v_cvt_pk_bf16_f32 v49, 0, v49
        v_add_f32 v{vXR}, v{vXR}, v49
        v_cvt_pk_bf16_f32 v{vXR}, 0, v{vXR}""")

    def qg_addr(self, extra):
        self.A(f"""s_lshr_b32 s{sA}, s{sT}, 3
        s_mul_i32 s{sA}, s{sA}, 3
        s_and_b32 s{sB}, s{sV}, 3
        s_add_u32 s{sA}, s{sA}, s{sB}
        s_lshr_b32 s{sB}, s{sA}, 2
        s_mul_i32 s{sB}, s{sB}, 10
        s_lshl_b32 s{sC}, s{sX}, 5
        s_add_u32 s{sB}, s{sB}, s{sC}
        s_mul_i32 s{sB}, s{sB}, {QSL}
        s_add_u32 s{sB}, s{sB}, {RQ[1]}
        s_and_b32 s{sA}, s{sA}, 3
        s_lshl_b32 s{sA}, s{sA}, 8
        s_add_u32 s{sA}, s{sA}, s{sB}
        s_add_u32 s{sA}, s{sA}, {extra}
        v_lshrrev_b32 v1, 4, v0
        v_and_b32 v2, 15, v0
        v_mul_u32_u24 v36, {QSL}, v1
        v_lshl_add_u32 v36, v2, 4, v36
        v_add_u32 v36, s{sA}, v36
        v_add_u32 v37, {8*QSL}, v36
        v_mov_b32 v3, {OOB}
        v_cmp_gt_u32 vcc, 32, v0
        v_cndmask_b32 v37, v3, v37, vcc
        v_lshlrev_b32 v40, 4, v2
        v_lshl_add_u32 v40, v1, 2, v40
        s_and_b32 s{sA}, s{sV}, 3
        s_lshl_b32 s{sA}, s{sA}, 8
        v_add_u32 v40, s{sA}, v40""")
    def cq_gather(self, idle, shadow=None, wait0=0):
        A = self.A
        l = self.role(R_456)
        self.qg_addr("4224"); self.lane_tag(24, 0)
        def loads(): A(f"""buffer_load_dwordx4 v[12:15], v36, {srd(SWS)}, 0 offen sc1
        buffer_load_dwordx4 v[16:19], v36, {srd(SWS)}, s{sKQ} offen sc1
        buffer_load_dwordx4 v[20:23], v37, {srd(SWS)}, 0 offen sc1""")
        def red():
            cm, ors = self.tagchk([12, 16], [20], 'v24'); self.mix(cm)
            for i in range(4): A(f"v_add_f32 v{12+i}, v{12+i}, v{16+i}")
            for i in range(4): A(f"v_add_f32 v{12+i}, v{12+i}, v{20+i}")
            self.mix(ors)
            self.treduce(12, 13, 14, 15)
        self.tpoll(None, 0, (), None, [], loads, red, lambda: A(f"ds_write_b32 v40, v12 offset:{L_CQ}"), 'z')
        self.end(l)
    def qg_pre(self):
        A = self.A
        l = self.role(R_456)
        A(f"s_bfe_u32 s{sD}, s{sT}, 0x20001\ns_lshl_b32 s{sF}, s{sD}, 10")
        self.qg_addr(f"s{sF}")
        A(f"""v_mul_u32_u24 v38, {QSL}, v2
        s_lshl_b32 s{sD}, s{sD}, 4
        s_add_u32 s{sD}, s{sD}, s{sB}
        s_add_u32 s{sD}, s{sD}, 4096
        v_add_u32 v38, s{sD}, v38
        v_cmp_gt_u32 vcc, 10, v{0 if 'q' in self.o['few'] else 2}
        v_cndmask_b32 v38, v3, v38, vcc
        ds_read_b32 v40, v40 offset:{L_CQ}""")
        self.q_lds_addr(39)
        A(f"s_lshr_b32 s{sA}, s{sA}, 1\nv_add_u32 v39, s{sA}, v39")
        self.end(l)
    def prewarm_o1(self):
        self.mem(f"""v_lshlrev_b32 v1, 4, v0
        s_mul_i32 s{sA}, s{sSIG}, {OSL}
        s_add_u32 s{sA}, s{sA}, {RO[1]}
        s_mov_b32 exec_hi, 0xffffff
        buffer_load_dwordx4 v[60:63], v1, {srd(SWS)}, s{sA} offen sc1
        s_mov_b32 exec_hi, -1""")

    def final_body(self):
        A = self.A
        self.xcol_addr(30)
        if int(self.o['pto']):
            l = self.role(R_7 if int(self.o['pto']) == 1 else R_GE4)
            self.exec_mask(0x00ff00ff00ff00ff)
            A(f"buffer_store_short_d16_hi v{vXR}, v30, {srd(SOUT)}, 0 offen")
            self.exec_full(); self.end(l)
        self.x_gather_pre(RY)
        self.sync(self.o['sync_f'], RY)
        self.x_gather('f', None)
        self.y_finish()
        self.exec_mask(0x00ff00ff00ff00ff)
        self.mem(f"buffer_store_short_d16_hi v{vXR}, v30, {srd(SOUT)}, 0 offen {self.o['outf'].replace('plain', '').replace('_', ' ')}")
        self.exec_full()
        if self.o['dry']: A(f"s_cmp_eq_u32 s{sDRY}, 1\ns_cbranch_scc1 L_stubs")

    def q_stage_and_final(self):
        A = self.A
        A(f"s_cmp_eq_u32 s{sP}, 1\ns_cbranch_scc1 L_final\ns_add_u32 s{sTB}, s{sTAG}, 1")
        if self.o['prewarm']:
            l = self.role(R_GE4); la = self.lab("pw"); lb = self.lab("pw"); l3 = self.lab("nm")
            A(f"""s_cbranch_execz {l3}
            v_lshlrev_b32 v1, 4, v0
            s_and_b32 s{sB}, s{sV}, 3
            s_lshl_b32 s{sB}, s{sB}, 10
            s_mul_i32 s{sA}, s{sSIG}, {QSL}
            s_add_u32 s{sA}, s{sA}, {RQ[1]}
            s_add_u32 s{sB}, s{sA}, s{sB}
            buffer_load_dwordx4 v[60:63], v1, {srd(SWS)}, s{sB} offen sc1
            s_cmp_eq_u32 s{sV}, 7
            s_cbranch_scc0 {lb}
            s_add_u32 s{sA}, s{sA}, 4096
            s_mov_b64 exec, 0xff
            buffer_load_dwordx4 v[60:63], v1, {srd(SWS)}, s{sA} offen sc1
            {lb}:
            s_mov_b64 exec, -1""")
            self.end(l3); self.end(l)
        A(f"s_lshr_b32 s{sA}, s{sV}, 1\ns_lshl_b32 s{sA}, s{sA}, 13\ns_add_u32 s{sA}, s{sA}, {L_WQ}")
        self.tr_addr(34, sA)
        A(f"s_and_b32 s{sA}, s{sV}, 1\ns_lshl_b32 s{sA}, s{sA}, 6\nv_xor_b32 v34, s{sA}, v34\nv_xor_b32 v35, 32, v34")
        self.wfrags(12, 34, 2); self.wfrags(20, 35, 2); self.lane_tag(42, 4)
        shf = int(self.o['shf'])
        if shf:
            A("L_ycommon:")
            self.xcol_addr(41)
            A(f"""s_cmp_eq_u32 s{sP}, 1
            s_cselect_b32 s{sA}, 0x00ff00ff, 0
            s_mov_b32 s{sB}, s{sA}
            v_mov_b32 v3, {OOB}
            v_cndmask_b32 v41, v3, v41, s[{sA}:{sB}]""")
        self.x_gather_pre(RY)
        self.xa_addr()
        A(f"""v_and_b32 v1, 15, v0
        v_lshlrev_b32 v32, 10, v1
        v_lshrrev_b32 v1, 4, v0
        v_lshl_add_u32 v32, v1, 4, v32
        s_mul_i32 s{sB}, s{sSIG}, {QSL}
        s_add_u32 s{sB}, s{sB}, {RQ[1]}
        s_lshl_b32 s{sA}, s{sV}, 7
        s_add_u32 s{sA}, s{sA}, s{sB}
        v_add_u32 v32, s{sA}, v32
        s_add_u32 s{sB}, s{sB}, 4096
        v_lshl_add_u32 v33, v1, 4, s{sB}""")
        self.sync(self.o['sync_y'], RY)
        if 'y' in self.o['early']:
            l = self.pass0() if shf == 1 else None
            self.attn_pre()
            if l: self.end(l)
            self.x_gather('y', self.qg_pre)
        else: self.x_gather('y', lambda: (self.attn_pre(), self.qg_pre()))
        self.y_finish()
        A(f"ds_write_b16_d16_hi v29, v{vXR} offset:{L_XA}")
        if shf:
            A(f"buffer_store_short_d16_hi v{vXR}, v41, {srd(SOUT)}, 0 offen")
            l = self.lab("go")
            diag = self.prof or self.o['t2'] or self.o['fine'] or int(self.o['pad'])
            A(f"s_cmp_eq_u32 s{sP}, 1\ns_cbranch_scc0 {l}\n{'s_branch L_done' if diag else 's_endpgm'}\n{l}:")
        self.stamp(11)
        def store(first, more=""):
            self.pre_store(0x000f000f000f000f, [48, 52], 42)
            self.stores(f"buffer_store_dwordx4 v[48:51], v32, {srd(SWS)}, 0 offen{{f}}\nbuffer_store_dwordx4 v[52:55], v32, {srd(SWS)}, 0 offen offset:64{{f}}\n" + more, True, 'Y')
            self.exec_full()
        self.mm_with_gram("v_mfma_f32_16x16x32_bf16 v[48:51], v[12:15], v[4:7], 0\nv_mfma_f32_16x16x32_bf16 v[52:55], v[20:23], v[4:7], 0",
                          "v_mfma_f32_16x16x32_bf16 v[48:51], v[16:19], v[8:11], v[48:51]\nv_mfma_f32_16x16x32_bf16 v[52:55], v[24:27], v[8:11], v[52:55]", store, 'Y')
        if 'q' in self.o['bar']: A("s_barrier")
        A("L_qwait:")
        l = self.role(R_456)
        self.sync(self.o['sync_q'])
        def loadsA(): A(f"buffer_load_dwordx4 v[16:19], v38, {srd(SWS)}, 0 offen sc1")
        def loads(): A(f"""buffer_load_dwordx4 v[4:7], v36, {srd(SWS)}, 0 offen sc1
        buffer_load_dwordx4 v[8:11], v36, {srd(SWS)}, s{sKQ} offen sc1
        buffer_load_dwordx4 v[12:15], v37, {srd(SWS)}, 0 offen sc1""")
        def red():
            cm, ors = self.tagchk([4, 8], [12], 'v23')
            self.mix(cm, [f"v_add_f32 v{4+i}, v{4+i}, v{8+i}" for i in (1, 2, 3)] + [f"v_add_f32 v{4+i}, v{4+i}, v{12+i}" for i in (2, 1, 3)])
            A("v_add_f32 v4, v4, v8\nv_add_f32 v4, v4, v12")
            t = self.capture(lambda: self.treduce(4, 5, 6, 7))
            self.mix(t[:2]); self.mix(t[2:], ors)
            A("v_fma_f32 v4, -v20, v40, v4\nv_mul_f32 v4, v4, v22\nv_cvt_pk_bf16_f32 v5, 0, v4")
        A("v_mov_b32 v16, 0\nv_mov_b32 v17, 0")
        self.tpoll(loadsA, 0x03ff03ff03ff03ff, (19,), lambda: (self.attn_zero(skip=range(36, 41)), self.lane_tag(23, 0)), self.red16([16, 17]) + self.lnstats(16, 17, 20, 22, 21), loads, red,
                   lambda: A(f"ds_write_b16_d16_hi v39, v5 offset:{L_QL}"), 'q')
        le = self.lab("qz")
        for r in range(36, 41): A(f"v_mov_b32 v{r}, 0")
        A(f"s_mov_b32 s{sP}, 1\ns_branch L_attn_bar")
        self.end(l)
        self.attn_zero()
        A(f"s_mov_b32 s{sP}, 1")
        if int(self.o['wb']) == 1:
            A(f"s_cmp_eq_u32 s{sT}, 30\ns_cbranch_scc0 L_attn_bar\ns_cmp_eq_u32 s{sV}, 3\ns_cbranch_scc0 L_attn_bar\ns_barrier\nbuffer_wbl2 sc1\ns_branch L_attn")
        else: A("s_branch L_attn_bar")
        A(f"L_idle:\ns_cmp_eq_u32 s{sP}, 0\ns_cbranch_scc0 L_done")
        self.cq_gather(True)
        A(f"s_add_u32 s{sTB}, s{sTAG}, 1\ns_waitcnt lgkmcnt(0)")
        if self.o['clr'] == 'late':
            l = self.role(R_456); lp = self.lab("ig"); lr = self.lab("igr")
            A(f"""s_lshl_b32 s{sA}, s{sX}, 5
            s_mul_i32 s{sA}, s{sA}, {GSL}
            s_add_u32 s{sA}, s{sA}, {RG[0] + 2560}
            v_min_u32 v1, 29, v0
            v_mul_u32_u24 v1, {GSL}, v1
            {lp}:
            buffer_load_dword v4, v1, {srd(SWS)}, s{sA} offen sc1
            s_waitcnt vmcnt(0)
            v_cmp_eq_u32 vcc, -1, v4
            s_cbranch_vccnz {lr}""")
            self.tail.append(f"{lr}:\ns_sleep 4\ns_sub_u32 s{sTO}, s{sTO}, 1\ns_cbranch_scc1 L_end\ns_branch {lp}")
            self.end(l)
        self.attn_pre(); self.qg_pre()
        A("s_waitcnt lgkmcnt(0)\ns_branch L_qwait")
        A("L_final:")
        if int(self.o['wb3']):
            l = self.lab("wb3"); A(f"s_cmp_eq_u32 s{sT}, 29\ns_cbranch_scc0 {l}\ns_cmp_eq_u32 s{sV}, 7\ns_cbranch_scc0 {l}\nbuffer_wbl2 sc1\n{l}:")
        A(f"""s_and_b32 s{sA}, s{sT}, 7
        s_cmp_eq_u32 s{sA}, s{sX}
        s_cbranch_scc0 L_done
        s_cmp_lt_u32 s{sT}, 10
        s_cbranch_scc0 L_done
""")
        if int(self.o['shf']): A("s_branch L_ycommon")
        else: self.final_body()
        A("L_done:")
        if int(self.o['pad']):
            A(f"""L_pad:
            s_memrealtime s[90:91]
            s_waitcnt lgkmcnt(0)
            s_sub_u32 s90, s90, s96
            s_cmp_lt_u32 s90, {int(self.o['pad'])*100}
            s_cbranch_scc1 L_pad""")
        if self.prof: self.stamp(11)
        A("L_end:")
        if self.o['t2']: A("s_waitcnt vmcnt(0)\ns_memrealtime s[68:69]")
        if self.o['fine'] or self.o['t2']: A("s_waitcnt lgkmcnt(0)")
        if self.prof or self.o['fine'] or self.o['t2']:
            A(f"""s_mov_b64 exec, -1
            s_lshl_b32 s{sA}, s2, 3
            s_add_u32 s{sA}, s{sA}, s{sV}
            s_lshl_b32 s{sA}, s{sA}, 7
            s_add_u32 s{sA}, s{sA}, {STAMP}
            v_mov_b32 v1, 0""")
            for i in range(24): A(f"v_mov_b32 v{4+i}, s{sST+i}")
            A(f"v_mov_b32 v28, s{sFAST}\nv_mov_b32 v29, s{sTO}\nv_mov_b32 v30, 0\nv_mov_b32 v31, 0\ns_mov_b64 exec, 1")
            for i in range(7): A(f"buffer_store_dwordx4 {vr(4+4*i)}, v1, {srd(SWS)}, s{sA} offen offset:{16*i}")
        A("L_exit:\ns_endpgm\nL_stubs:")
        for st in self.stubs: A(st)
        A("s_branch L_dry_ret" if self.o['dry'] else "s_endpgm")

    def build(self):
        self.prologue(); self.startup(); self.attention(); self.wo_stage(); self.gu_stage(); self.down_stage(); self.q_stage_and_final()
        i = 0
        while i < len(self.tail): self.A(self.tail[i]); i += 1
        if not self.o['dry']:
            self.L = [l.replace('s_cbranch_execnz', 's_branch') for l in self.L if not l.startswith('s_cbranch_execz')]
        used = set(l.split()[1] for l in self.L if l.startswith(('s_cbranch', 's_branch')))
        self.L = [l for l in self.L if not (l.endswith(':') and l[:-1] not in used and l[:-1] not in ('L_attn',))]
        body, nn = resolve(self.L)
        if int(self.o['a8']):
            body, a, b = align8(body, "L_attn:", int(self.o['a8']), int(self.o['a8n'])); print("align8 widened", a, "nops", b)
        hdr = open('interleave_layers__sliding_block_cached__moe_arch_mod__decode.s.ref').read().split('\n')
        hl = [l for l in hdr if l.startswith(';') and '@launch' not in l]
        hl = hl[:hl.index([l for l in hl if 'Override launch' in l][0])]
        doc = """;
; One persistent workgroup per CU (8 waves, 256 registers each).  Workgroup w = 8t + x keeps half of one
; (batch, head) K/V window resident for both attention layers: K in a0-a95, V in v88-v159 and LDS.
; The weight slices live in LDS.  The small matrix-vector stages run on a 10 x 3 grid of workgroups per
; group x and hand partial results over through d_ws:
;   q partials -> attention -> o partials -> wo -> x partials -> gate/up -> down -> y partials -> wq -> ...
; A consumer sees from the data itself whether it has arrived: the cross-group words are set to 0xffffffff (a NaN)
; at start-up, the others carry a per-launch, per-round tag (d_ws epoch word + 1 / + 2) in low mantissa bits.
; Stores to consumers of the same group skip the write-through only when the flags show that the whole
; group runs on one XCD; otherwise they are sc1 like the cross-group stores.
; LayerNorm is applied after the K-split products: (x@W - mean*colsum(W)) / std.""".split('\n')
        out = hl + doc + [f"; @launch grid=(256,1,1) block=(512,1,1) lds={LDS_SIZE}",
                    '.amdgcn_target "amdgcn-amd-amdhsa--gfx950"', ".text", f".globl {NAME}", ".p2align 8", f".type {NAME},@function", f"{NAME}:"]
        out += [("" if l.endswith(':') else "    ") + l for l in body]
        out += ['.section .rodata,"a"', ".p2align 6", f".amdhsa_kernel {NAME}",
                "  .amdhsa_next_free_vgpr 256", "  .amdhsa_next_free_sgpr 102", "  .amdhsa_accum_offset 160",
                "  .amdhsa_group_segment_fixed_size 0", "  .amdhsa_kernarg_size 104", "  .amdhsa_user_sgpr_count 2",
                "  .amdhsa_user_sgpr_kernarg_segment_ptr 1", "  .amdhsa_system_sgpr_workgroup_id_x 1",
                "  .amdhsa_float_denorm_mode_32 3", ".end_amdhsa_kernel"]
        return "\n".join(out) + "\n", nn

if __name__ == "__main__":
    path = sys.argv[1]
    opts = {}; prof = False
    for a in sys.argv[2:]:
        if a == 'prof': prof = True
        else:
            k, v = a.split('=')
            opts[k] = {'True': True, 'False': False}.get(v, v)
    s, nn = G(prof, opts).build()
    open(path, 'w').write(s)
    print("wrote", path, len(s.split('\n')), "lines, nops inserted:", nn)
```

```python
import sys
from asmlib import resolve, align8

NAME = "interleave_layers__sliding_block_cached__moe_arch_mod__decode_kernel"

OSL, GSL, QSL, Q0SL, XSZ = 896, 2688, 5248, 5248, 245760
RO = [0, 0]
RX = [256 * OSL, 256 * OSL + XSZ]
RY = [RX[1] + XSZ, RX[1] + 2 * XSZ]
RG = [RY[1] + XSZ] * 2
RQ = [RG[1] + 256 * GSL] * 2
RF = RQ[1] + 256 * QSL
RE = RF + 32768
RF2 = RE + 128
WS_END = RE + 2048
STAMP = WS_END
WS_SIZE = WS_END + 256 * 8 * 128
OOB = 0x7ff00000
L_OC = 0
L_ML = L_OC + 12288
L_XA = L_ML + 64; XS = 144
L_HA = L_XA + 6 * XS; HS = 192
L_OA = L_HA + 4 * HS; OS = 576
L_QL = L_OA + 4 * OS
L_FL = L_QL + 400
L_CQ = L_FL + 32
L_CS = L_CQ + 768
L_X0 = L_CS + 1024
L_WD = (L_X0 + 5120 + 127) // 128 * 128
L_WG = L_WD + 8192
L_WU = L_WG + 8192
L_WO = L_WU + 8192
L_WQ = L_WO + 32768
L_VP = L_WQ + 32768
LDS_SIZE = L_VP + 8 * 6144
assert LDS_SIZE <= 163840
sW, sV, sX, sT, sP, sDRY = 2, 3, 4, 5, 6, 7
SK, SVV, SWS, SWQ, SWO, SWG, SWU, SWD, SX0, SWR, SOUT = range(8, 52, 4)
sAI, sRI, sSIG, sSLOT = 52, 53, 54, 55
sFAST, sROLE, sTO, sEPS = 56, 57, 58, 59
sFULL = 60
sA, sB, sC, sD, sE, sF = 62, 63, 88, 89, 90, 91
sM = 92
sLOG2E, sSCALE, sINVN = 93, 94, 95
sG, sXCC, sSAVE, sTAG = 98, 99, 100, 101
sST = 64
R_LT4, R_GE4, R_456, R_7, R_6, R_GR = range(6)
sLO, sHI, sSW, sTB = 44, 45, 46, 47
sK1, sK2, sKG, sKQ = 40, 41, 42, 43
vXR, vXN, vSG, vC = 80, 81, 82, 83
VBASE = 88
ODD = 0xAAAAAAAAAAAAAAAA

def srd(b): return f"s[{b}:{b+3}]"
def vr(a, n=4): return f"v[{a}:{a+n-1}]" if n > 1 else f"v{a}"
def ar(a, n=4): return f"a[{a}:{a+n-1}]"
DPP = "row_mask:0xf bank_mask:0xf"

class G:
    def __init__(self, prof=False, opts=None):
        self.L = []; self.tail = []; self.stubs = []; self.n = 0; self.prof = prof
        self.o = dict(dry=False, sync_o='sleep0', sync_x='acklo0', sync_g='sleep0', sync_y='acklo0', sync_q='sleep0', sync_f='acklo', fast=True,
                      clear='sc1', wflag='nt', bsleep=8, pad=0, probe=-1, probep=0, kvflag='nt', defer=True, cwo='0,0,0,0', cgud='4,2,2,0', csplit=True, prewarm=True, two='oqg', prio=4, at2=0, pk=0, mle=0, a8=0, a8n=4, dwo='gud', dx='', noq0=0, al=8, alo=0, clr='xy', tq='', asl=0, pwo=True, t2=False, xbf=False, gbf=False, qbf=False, quick=False, gramw=3, fine='', finep=-1, finei='s_memtime', ldi='sc1', ldx='sc1', stx='sc1', sti='plain', wb=2, pto=0, shf=1, tqb=0, mlb=0, mld=0, q0w=-1, q0p=3, g7=0, nos=0, gap=0, cb=1, pl='z', inl=0, t2p='', t2q=0, xt='', outf='plain', wb3=0, chkw=0, agg=0, flk=0, fl=0, w2=1, bar='oqg', tqwo=32, tqat=4, tqlim=0, one='', few='z', lite=0, onew=4, vlin=0, early='xy', q0st='sc1', q0ld='sc1')
        self.o.update(opts or {})
        for k in ('dwo', 'dx'): self.o[k] = self.o[k].replace('-', '')
        if not self.o['defer']: self.o['dwo'] = self.o['dx'] = ''
        self.o['defer'] = bool(set(self.o['dwo']) & set('gu'))
    def A(self, s):
        for l in s.split('\n'):
            l = l.strip()
            if l: self.L.append(l)
    def lab(self, p):
        self.n += 1; return f"L_{p}_{self.n}"
    def exec_mask(self, m):
        self.A(f"s_and_b32 exec_lo, s{sFULL}, 0x{m & 0xffffffff:x}\ns_and_b32 exec_hi, s{sFULL}, 0x{m >> 32:x}")
    def exec_full(self): self.A(f"s_mov_b64 exec, s[{sFULL}:{sFULL+1}]")
    def barrier(self, tag='z'):
        self.fs(tag + 'a')
        l = self.lab("nb"); self.A(f"s_cbranch_execz {l}\ns_barrier\n{l}:")
        self.fs(tag + 'b')
    def role(self, bit):
        l = self.lab("role"); self.A(f"s_bitcmp1_b32 s{sROLE}, {bit}\ns_cbranch_scc0 {l}"); return l
    def pass0(self):
        l = self.lab("p0"); self.A(f"s_cmp_eq_u32 s{sP}, 0\ns_cbranch_scc0 {l}"); return l
    def end(self, l): self.A(f"{l}:")
    def mem(self, lines):
        l = self.lab("nm"); self.A(f"s_cbranch_execz {l}"); self.A(lines); self.A(f"{l}:")
    def capture(self, fn):
        save = self.L; self.L = []; fn(); out = self.L; self.L = save; return out
    def stores(self, lines, intra, tag='z'):
        self.fs(tag + 's')
        if intra and self.o['fast']:
            l1 = self.lab("st"); l2 = self.lab("st")
            self.A(f"s_cbranch_execz {l2}\ns_cmp_eq_u32 s{sFAST}, 0\ns_cbranch_scc1 {l1}")
            self.A(lines.format(f=' ' + self.o['sti'].replace('plain', '').replace('_', ' '))); self.A(f"{l2}:")
            self.tail.append(f"{l1}:\n" + lines.format(f=" sc1") + f"\ns_branch {l2}")
        else:
            self.mem(lines.format(f=' ' + self.o['stx'].replace('_', ' ')))
    def poll(self, loads0, regs, reduce, chk, idle=False, tag='z', shadow=None, wait0=0, pre=None, post=None, sent=None):
        A = self.A
        fl = ' ' + self.o['ldx' if tag in 'xyf' else 'ldi'].replace('_', ' ')
        def loads():
            for x in self.capture(loads0): A(x[:-4] + fl if x.endswith(' sc1') else x)
        lw = self.lab("pw"); lr = self.lab("retry"); ls = self.lab("slow"); lo = self.lab("ok"); l2 = self.lab("slow")
        self.fs(tag + '0')
        exact_pre = None
        if pre and tag in self.o['one']:
            l = self.lab("sn"); la = self.lab("sna"); lb = self.lab("snb")
            if shadow: shadow()
            shadow = None
            A(f"s_cmp_eq_u32 s{sV}, {self.o['onew']}\ns_cbranch_scc0 {l}\ns_movk_i32 s{sG}, 0x100\ns_mov_b64 exec, 0xffff\n{la}:")
            sent[0]()
            A(f"s_sub_u32 s{sG}, s{sG}, 1\ns_waitcnt vmcnt(0)\ns_cbranch_scc1 {lb}\nv_cmp_eq_u32 vcc, -1, v{sent[1]}\ns_cbranch_vccnz {la}\n{lb}:\ns_mov_b64 exec, -1\n{l}:\ns_barrier")
            self.fs(tag + '3')
            l0, r0, p0 = loads, reduce, pre
            def loads():
                ls_ = self.capture(l0)
                k = [i for i, x in enumerate(ls_) if not x.startswith('buffer_load')]
                k = k[0] if k else len(ls_)
                self.mix(ls_[k:]); p0[0](); self.mix(ls_[:k])
                A(f"s_waitcnt vmcnt({k})"); self.mix(p0[2])
            def reduce(): r0([])
            exact_pre = p0
            pre = None
        elif pre and tag not in self.o['two']:
            l0, r0, p0 = loads, reduce, pre
            loads = lambda: (p0[0](), l0()); reduce = lambda: r0(p0[2]); pre = None
        elif pre:
            la = self.lab("pa"); lb = self.lab("pb"); l = self.lab("nm")
            A(f"s_cbranch_execz {l}"); pre[0](); A(f"{l}:\ns_movk_i32 s{sG}, 0x100")
            if shadow: shadow()
            shadow = lambda: self.mix(pre[2])
            A(f"s_waitcnt vmcnt(0)\nv_cmp_u_f32 vcc, v{pre[1][0]}, v{pre[1][1]}\ns_cbranch_vccz {lb}\n{la}:")
            if int(self.o['asl']): A(f"s_sleep {self.o['asl']}")
            pre[0]()
            A(f"s_sub_u32 s{sG}, s{sG}, 1\ns_waitcnt vmcnt(0)\ns_cbranch_scc1 {lb}\nv_cmp_u_f32 vcc, v{pre[1][0]}, v{pre[1][1]}\ns_cbranch_vccnz {la}\n{lb}:")
            self.fs(tag + '3')
            r0 = reduce; reduce = lambda: r0([])
        l = self.lab("nm"); A(f"s_cbranch_execz {l}"); loads(); A(f"{l}:\ns_movk_i32 s{sG}, 0x100")
        self.lskip = self.lab("nw")
        lskip = self.lskip
        if shadow: shadow()
        if wait0:
            l = self.lab("w0"); A(f"s_waitcnt vmcnt({wait0})\ns_branch {l}\n{lw}:\ns_waitcnt vmcnt(0)\n{l}:")
        elif int(self.o['inl']):
            A(f"s_branch {lw}\n{lr}:\ns_sub_u32 s{sG}, s{sG}, 1\ns_cbranch_scc1 {ls}"); loads(); A(f"{lw}:\ns_waitcnt vmcnt(0)")
        else: A(f"{lw}:\ns_waitcnt vmcnt(0)")
        A(f"{lskip}:")
        self.fs(tag + '1')
        reduce()
        A(f"v_cmp_u_f32 vcc, v{chk[0]}, v{chk[1]}")
        if post: post()
        A(f"s_cbranch_vccnz {lr}\n{lo}:")
        self.fs(tag + '2')
        if self.o['fine'].split(',')[-1] == tag + 'n': A(f"s_sub_u32 s86, 0x101, s{sG}")
        def stub():
            A(f"{lr}:")
            if idle:
                l = self.lab("idl"); A(f"s_cmp_lt_u32 s{sT}, 30\ns_cbranch_scc1 {l}\ns_sleep 4\n{l}:")
            A(f"s_sub_u32 s{sG}, s{sG}, 1\ns_cbranch_scc1 {ls}")
            if self.prof: A(f"s_sub_u32 s{sTO}, s{sTO}, 1")
            l = self.lab("nm"); A(f"s_cbranch_execz {l}"); loads(); A(f"s_branch {lw}\n{l}:")
        if wait0 or not int(self.o['inl']): self.stubs.append("\n".join(self.capture(stub)))
        def slow():
            nonlocal pre
            A(f"{l2}:\ns_sub_u32 s{sTO}, s{sTO}, 1\ns_cbranch_scc1 L_end\n{ls}:")
            if exact_pre: pre = exact_pre
            if pre: pre[0]()
            (l0 if exact_pre else loads)(); A("s_waitcnt vmcnt(0)")
            r = list(regs)
            A(f"v_max_u32 v1, v{r[0]}, v{r[1]}"); r = r[2:]
            while r:
                if len(r) >= 2: A(f"v_max3_u32 v1, v1, v{r[0]}, v{r[1]}"); r = r[2:]
                else: A(f"v_max_u32 v1, v1, v{r[0]}"); r = []
            A(f"v_cmp_eq_u32 vcc, -1, v1\ns_cbranch_vccnz {l2}")
            if pre: self.mix(pre[2])
            reduce()
            if post: post()
            A(f"s_branch {lo}")
        self.tail.append("\n".join(self.capture(slow)))
    def lane_tag(self, d, lo):
        self.A(f"s_mul_i32 s{sA}, s{sTB}, 0x01010101\nv_bfe_u32 v{d}, v0, {lo}, 2\nv_lshlrev_b32 v{d}, 3, v{d}\nv_lshrrev_b32 v{d}, v{d}, s{sA}")
    def pre_store(self, m, regs, ref):
        for r in regs: self.A(f"v_mov_b32_sdwa v{r}, v{ref} dst_sel:BYTE_0 dst_unused:UNUSED_PRESERVE src0_sel:BYTE_0")
        self.exec_mask(m)
    def settag(self, r): self.A(f"v_mov_b32_sdwa v{r}, s{sTB} dst_sel:BYTE_0 dst_unused:UNUSED_PRESERVE src0_sel:BYTE_0")
    def tagchk(self, full, half=(), ref=None):
        cm = []; ors = []; prs = [f"s[{sA}:{sB}]", f"s[{sC}:{sD}]", f"s[{sE}:{sF}]", "s[96:97]", "s[98:99]"]
        regs = list(half) + list(full)
        for i, r in enumerate(regs):
            d = "vcc" if i == 0 else prs[i - 1]
            cm.append(f"v_cmp_ne_u32_sdwa {d}, v{r}, {ref or 's%d' % sTB} src0_sel:BYTE_0 src1_sel:BYTE_0")
            cm.append(f"v_and_b32 v{r}, 0xffffff00, v{r}")
            if i: ors.append(f"s_or_b64 vcc, vcc, {d}")
            if half and i == len(half) - 1: ors.append("s_mov_b32 vcc_hi, 0")
        return cm, ors
    def tpoll(self, loadsA, execA, tagsA, shadow, chain, loads, reduce, post, tag):
        A = self.A
        la = self.lab("pa"); lb = self.lab("pb"); lw = self.lab("pw"); lr = self.lab("retry")
        def chkA():
            if tag == 'g': A(f"v_cmp_ne_u32_sdwa vcc, v{tagsA[0]}, v85 src0_sel:BYTE_0 src1_sel:BYTE_0")
            else: A(f"v_cmp_ne_u32 vcc, s{sTB}, v{tagsA[0]}")
            if len(tagsA) > 1: A(f"v_cmp_ne_u32 s[{sA}:{sB}], s{sTB}, v{tagsA[1]}\ns_or_b64 vcc, vcc, s[{sA}:{sB}]")
        ex = lambda: A(f"s_mov_b32 exec_lo, 0x{execA & 0xffffffff:x}\ns_mov_b32 exec_hi, 0x{execA >> 32:x}") if execA else None
        self.fs(tag + '0')
        if loadsA:
            ex(); loadsA()
            if shadow:
                if execA: A("s_mov_b64 exec, -1")
                shadow(); ex()
            A("s_waitcnt vmcnt(0)"); chkA()
            A(f"s_cbranch_vccz {lb}\n{la}:"); loadsA()
            A(f"s_sub_u32 s{sTO}, s{sTO}, 1\ns_waitcnt vmcnt(0)\ns_cbranch_scc1 L_end"); chkA()
            A(f"s_cbranch_vccnz {la}\n{lb}:")
            if execA: A("s_mov_b64 exec, -1")
        self.fs(tag + '3')
        loads(); self.mix(chain)
        if int(self.o['inl']) > 1:
            A(f"s_branch {lw}\n{lr}:\ns_sub_u32 s{sTO}, s{sTO}, 1\ns_cbranch_scc1 L_end"); loads()
        A(f"{lw}:\ns_waitcnt vmcnt(0)")
        self.fs(tag + '1')
        reduce(); post()
        A(f"s_cbranch_vccnz {lr}")
        self.fs(tag + '2')
        if int(self.o['inl']) < 2: self.stubs.append("\n".join(self.capture(lambda: (A(f"{lr}:\n{('s_add_u32 s86, s86, s6' if int(self.o['finep']) == 1 else 's_add_u32 s86, s86, 1') if self.o['fine'].split(',')[-1] == tag + 'n' else ''}\ns_sub_u32 s{sTO}, s{sTO}, 1\ns_cbranch_scc1 L_end"), loads(), A(f"s_branch {lw}")))))
    def stamp(self, i, both=True):
        if int(self.o['probe']) == i:
            l = self.lab("probe")
            self.A(f"s_cmp_eq_u32 s{sP}, {self.o['probep']}\ns_cbranch_scc0 {l}\ns_cbranch_execz {l}\ns_memrealtime s[96:97]\ns_waitcnt lgkmcnt(0)\n{l}:")
        if not self.prof: return
        self.A("s_memrealtime s[96:97]\ns_waitcnt lgkmcnt(0)")
        if both:
            self.A(f"s_cmp_eq_u32 s{sP}, 0\ns_cselect_b32 s{sST+i}, s96, s{sST+i}\ns_cselect_b32 s{sST+12+i}, s{sST+12+i}, s96")
        else:
            self.A(f"s_mov_b32 s{sST+i}, s96")
    def fs(self, name):
        if self.o['t2'] and name == self.o['t2p']:
            l = self.lab("t2"); self.A(f"s_cmp_eq_u32 s{sP}, {self.o['t2q']}\ns_cbranch_scc0 {l}\ns_memrealtime s[66:67]\n{l}:")
        names = self.o['fine'].split(',') if self.o['fine'] else []
        if name in names:
            i = names.index(name)
            if int(self.o['finep']) >= 0:
                l = self.lab("fs"); self.A(f"s_cmp_eq_u32 s{sP}, {self.o['finep']}\ns_cbranch_scc0 {l}\n{self.o['finei']} s[{64+2*i}:{65+2*i}]\n{l}:")
            else: self.A(f"{self.o['finei']} s[{64+2*i}:{65+2*i}]")
    def sync(self, kind, R=None):
        if kind.startswith('sent'):
            A = self.A; w = int(kind[4:5]); off = int(kind[5:] or 1008)
            l = self.lab("sn"); la = self.lab("sna"); lb = self.lab("snb")
            A(f"s_cmp_eq_u32 s{sV}, {w}\ns_cbranch_scc0 {l}")
            self.region(sC, R)
            A(f"""s_lshl_b32 s{sA}, s{sAI}, 10
            s_add_u32 s{sA}, s{sA}, s{sC}
            v_min_u32 v1, 23, v0
            v_mul_u32_u24 v1, 10240, v1
            s_movk_i32 s{sG}, 0x200
            s_mov_b32 exec_hi, 0
            {la}:
            buffer_load_dword v2, v1, {srd(SWS)}, s{sA} offen offset:{off} sc1
            s_sub_u32 s{sG}, s{sG}, 1
            s_waitcnt vmcnt(0)
            s_cbranch_scc1 {lb}
            v_cmp_eq_u32 vcc, -1, v2
            s_cbranch_vccnz {la}
            {lb}:
            s_mov_b32 exec_hi, -1
            {l}:""")
            self.barrier()
            return
        if kind == 'ack': self.A("s_waitcnt vmcnt(0)"); self.barrier()
        elif kind.startswith('acklo'):
            l = self.role(R_LT4); self.A("s_waitcnt vmcnt(0)"); self.end(l); self.barrier()
            if kind[5:] and int(kind[5:]): self.A(f"s_sleep {int(kind[5:])}")
        elif kind.startswith('sleep'):
            if int(kind[5:]): self.A(f"s_sleep {int(kind[5:])}")
        elif kind.startswith('acks'): self.A("s_waitcnt vmcnt(0)"); self.barrier(); self.A(f"s_sleep {int(kind[4:])}")
    def treduce(self, r0, r1, r2, r3):
        self.A(f"""v_permlane32_swap_b32 v{r0}, v{r2}
        v_permlane32_swap_b32 v{r1}, v{r3}
        v_add_f32 v{r0}, v{r0}, v{r2}
        v_add_f32 v{r1}, v{r1}, v{r3}
        v_permlane16_swap_b32 v{r0}, v{r1}
        v_add_f32 v{r0}, v{r0}, v{r1}""")
    def red16(self, regs):
        return [f"v_add_f32_dpp v{r}, v{r}, v{r} {perm} {DPP}" for perm in ("quad_perm:[1,0,3,2]", "quad_perm:[2,3,0,1]", "row_half_mirror", "row_mirror") for r in regs]
    def red_kb(self, ra, rb, ta, tb):
        def one(r, t):
            return [f"v_add_f32_dpp v{r}, v{r}, v{r} row_ror:4 {DPP}", f"v_add_f32_dpp v{r}, v{r}, v{r} row_ror:8 {DPP}"] + \
                   [f"v_mov_b32_dpp v{t+b}, v{r} quad_perm:[{b},{b},{b},{b}] {DPP}" for b in (0, 2, 1, 3)] + \
                   self.capture(lambda: self.treduce(t, t + 1, t + 2, t + 3))[:-1] + [f"v_add_f32 v{r}, v{t}, v{t+1}"]
        return self.capture(lambda: self.mix(one(ra, ta), one(rb, tb)))
    def lnstats(self, sq, sm, m, rs, t):
        return f"""v_mul_f32 v{sm}, s{sINVN}, v{sm}
        v_mul_f32 v{sq}, s{sINVN}, v{sq}
        v_fma_f32 v{t}, -v{sm}, v{sm}, v{sq}
        v_cvt_pk_bf16_f32 v{m}, 0, v{sm}
        v_max_f32 v{t}, 0, v{t}
        v_cvt_pk_bf16_f32 v{t}, 0, v{t}
        v_add_f32 v{t}, s{sEPS}, v{t}
        v_cvt_pk_bf16_f32 v{t}, 0, v{t}
        v_sqrt_f32 v{t}, v{t}
        v_cvt_pk_bf16_f32 v{t}, 0, v{t}
        v_rcp_f32 v{rs}, v{t}""".split('\n')
    def mix(self, *streams):
        streams = [list(s) for s in streams]
        while any(streams):
            for s in streams:
                if s: self.A(s.pop(0))
    def tr_addr(self, d, sbase):
        self.A(f"""v_lshrrev_b32 v1, 4, v0
        v_bfe_u32 v2, v0, 2, 2
        v_lshl_add_u32 v{d}, v1, 3, v2
        v_lshlrev_b32 v{d}, 7, v{d}
        v_and_b32 v2, 3, v0
        v_lshl_add_u32 v{d}, v2, 3, v{d}
        v_bfe_u32 v2, v0, 3, 2
        v_lshl_add_u32 v{d}, v2, 5, v{d}
        v_add_u32 v{d}, s{sbase}, v{d}""")
    def wfrags(self, dst, addr, steps, off=0):
        for s in range(steps):
            self.A(f"ds_read_b64_tr_b16 {vr(dst+4*s,2)}, v{addr} offset:{off+s*4096}\nds_read_b64_tr_b16 {vr(dst+4*s+2,2)}, v{addr} offset:{off+s*4096+512}")
    def dma_addr(self, d, rstride):
        self.A(f"""v_lshrrev_b32 v1, 3, v0
        v_mul_u32_u24 v{d}, {rstride}, v1
        v_bfe_u32 v1, v0, 4, 1
        v_bfe_u32 v2, v0, 1, 2
        v_xor_b32 v1, v1, v2
        v_lshl_add_u32 v{d}, v1, 5, v{d}
        v_and_b32 v1, 1, v0
        v_lshl_add_u32 v{d}, v1, 4, v{d}
        v_xor_b32 v{d+1}, 64, v{d}""")
    def dma(self, srdb, vaddr, n, rstride, lds0, ssrc, slds, lim=0):
        wf = self.o['wflag'].replace('plain', '')
        for i in range(n):
            if lim and i >= lim: self.A(f"s_waitcnt vmcnt({lim-1})")
            self.A(f"s_add_u32 m0, s{slds}, {lds0 + i*1024}\ns_add_u32 s{sA}, s{ssrc}, {i*8*rstride}\nbuffer_load_dwordx4 v{vaddr + (i&1)}, {srd(srdb)}, s{sA} offen {wf} lds")

    def mk(self, b, p, off, size):
        A = self.A
        if off is None: A(f"s_mov_b32 s{b}, s{p}\ns_mov_b32 s{b+1}, s{p+1}\ns_mov_b32 s{b+2}, {size}")
        else:
            A(f"s_add_u32 s{b}, s{p}, s{off}\ns_addc_u32 s{b+1}, s{p+1}, 0")
            if isinstance(size, int): A(f"s_mov_b32 s{b+2}, {size}")
            else: A(f"s_sub_u32 s{b+2}, {size[0]}, s{off}")
        A(f"s_mov_b32 s{b+3}, 0x20000")
    def prologue(self):
        A = self.A
        A("s_cmp_ge_u32 s2, 256\ns_cbranch_scc1 L_exit")
        if int(self.o['pad']) or self.prof or self.o['t2']: A("s_memrealtime s[96:97]")
        A(f"""s_load_dwordx16 s[64:79], s[0:1], 0
        s_load_dwordx8 s[80:87], s[0:1], 64
        s_load_dwordx2 s[88:89], s[0:1], 96
        v_lshrrev_b32 v1, 6, v0
        v_and_b32 v0, 63, v0
        v_readfirstlane_b32 s{sV}, v1
        v_mov_b32 v4, 0
        v_mov_b32 v5, 0
        v_mov_b32 v6, 0
        v_mov_b32 v7, 0
        v_lshlrev_b32 v1, 4, v0
        s_mov_b64 exec, 7
        ds_write_b128 v1, v[4:7] offset:{L_QL+384}
        s_mov_b64 exec, -1
        s_and_b32 s{sX}, s2, 7
        s_lshr_b32 s{sT}, s2, 3
        s_lshr_b32 s{sA}, s{sT}, 3
        s_lshl_b32 s{sB}, s{sX}, 2
        s_add_u32 s92, s{sA}, s{sB}            ; head
        s_bfe_u32 s{sA}, s{sT}, 0x20001        ; batch
        s_lshl_b32 s{sA}, s{sA}, 5
        s_add_u32 s{sA}, s{sA}, s92
        s_lshl_b32 s{sA}, s{sA}, 12
        s_and_b32 s{sB}, s{sT}, 1
        s_lshl_b32 s{sB}, s{sB}, 9
        s_add_u32 s{sA}, s{sA}, s{sB}
        s_lshl_b32 s{sB}, s{sV}, 6
        s_add_u32 s{sA}, s{sA}, s{sB}
        s_add_u32 s{sA}, s{sA}, 3072
        s_mul_i32 s90, s{sA}, 384
        s_mov_b32 s{sP}, 0
        s_mov_b32 s{sDRY}, 0
        s_mov_b64 s[{sFULL}:{sFULL+1}], -1
        s_mov_b32 s{sTO}, 0x100000
        s_mov_b32 s{sFAST}, 0
        s_mov_b32 s{sLOG2E}, 0x3fb8aa3b
        s_mov_b32 s{sSCALE}, 0x3d93cd3a
        s_mov_b32 s{sINVN}, 0x3acccccd
        s_mov_b32 s{sEPS}, 0x3727c5ac
        s_lshl_b32 s{sSIG}, s{sX}, 5
        s_add_u32 s{sSIG}, s{sSIG}, s{sT}
        s_mul_i32 s{sSLOT}, s{sX}, 30
        s_add_u32 s{sSLOT}, s{sSLOT}, s{sT}
        s_mul_i32 s{sRI}, s{sT}, 26
        s_lshr_b32 s{sRI}, s{sRI}, 8
        s_mul_i32 s{sA}, s{sRI}, 10
        s_sub_u32 s{sAI}, s{sT}, s{sA}
        s_min_u32 s{sRI}, s{sRI}, 2""")
        tab = 0
        for v in range(8):
            tab |= ((v < 4) << R_LT4 | (v >= 4) << R_GE4 | (4 <= v <= 6) << R_456 | (v == 7) << R_7 | (v == 6) << R_6 | (v == int(self.o['gramw'])) << R_GR) << (8 * v)
        A(f"""s_mov_b32 s{sA}, 0x{tab & 0xffffffff:x}
        s_mov_b32 s{sB}, 0x{tab >> 32:x}
        s_lshl_b32 s91, s{sV}, 3
        s_lshr_b64 s[{sA}:{sB}], s[{sA}:{sB}], s91
        s_and_b32 s{sROLE}, s{sA}, 0xff""")
        self.kv_addr()
        A("s_waitcnt lgkmcnt(0)\ns_barrier")
        A(f"s_add_u32 s{sA}, s88, {RE}\ns_addc_u32 s{sB}, s89, 0\ns_load_dword s{sTAG}, s[{sA}:{sB}], 0")
        self.mk(SK, 66, 90, 24576); self.mk(SVV, 68, 90, 24576)
    def other_srds(self):
        A = self.A; mk = self.mk
        mk(SWS, 88, None, WS_SIZE)
        A(f"""s_mul_i32 s{sA}, s{sAI}, {64*12288}
        s_mul_i32 s{sB}, s{sX}, 3
        s_add_u32 s91, s{sB}, s{sRI}            ; P = 3x + r
        s_lshl_b32 s{sB}, s91, 9
        s_add_u32 s{sA}, s{sA}, s{sB}""")
        mk(SWQ, 70, sA, (640 * 6144 * 2,))
        A(f"s_mul_i32 s{sA}, s91, {256*1280}\ns_lshl_b32 s90, s{sAI}, 7\ns_add_u32 s{sA}, s{sA}, s90")
        mk(SWO, 72, sA, (6144 * 640 * 2,))
        A(f"s_mul_i32 s{sA}, s91, {64*1280}\ns_add_u32 s{sA}, s{sA}, s90")
        mk(SWD, 82, sA, (1536 * 640 * 2,))
        A(f"s_mul_i32 s{sA}, s{sAI}, {64*3072}\ns_lshl_b32 s{sB}, s91, 7\ns_add_u32 s{sA}, s{sA}, s{sB}")
        mk(SWG, 78, sA, (640 * 1536 * 2,)); mk(SWU, 80, sA, (640 * 1536 * 2,))
        mk(SX0, 64, None, 5120); mk(SWR, 76, 90, (1280,)); mk(SOUT, 84, None, 5120)
        A(f"s_waitcnt lgkmcnt(0)\ns_add_u32 s{sTAG}, s{sTAG}, 1")
        if self.o['t2']: A("s_mov_b32 s66, 0")
        if self.o['t2']: A("s_mov_b32 s64, s96")
        if self.o['fine']:
            for i in range(24): A(f"s_mov_b32 s{sST+i}, 0")
        if self.prof:
            A(f"s_mov_b32 s{sST}, s96")
            for i in range(1, 24): A(f"s_mov_b32 s{sST+i}, 0")

    def kv_addr(self):
        self.A(f"""v_bfe_u32 v84, v0, 1, 3
        v_mul_u32_u24 v84, 384, v84
        v_lshrrev_b32 v3, 4, v0
        v_lshl_add_u32 v84, v3, 5, v84
        v_and_b32 v3, 1, v0
        v_lshl_add_u32 v84, v3, 4, v84
        v_lshrrev_b32 v85, 5, v0
        v_lshlrev_b32 v85, 3, v85
        v_bfe_u32 v3, v0, 3, 2
        v_add_u32 v85, v85, v3
        v_mul_u32_u24 v85, 384, v85
        v_and_b32 v3, 7, v0
        v_lshl_add_u32 v85, v3, 4, v85""")
        if int(self.o['vlin']) & 1: self.A("v_lshlrev_b32 v85, 4, v0")
        if int(self.o['vlin']) & 2: self.A("v_lshlrev_b32 v84, 4, v0")
    def k_loads0(self, mid=None):
        A = self.A; KF = self.o['kvflag'].replace('plain', '').replace('_', ' ')
        for g in range(8):
            if mid and g == mid[0]: mid[1]()
            A(f"s_mov_b32 s{sA}, {g*3072}")
            b = 12 * (g & ~1)
            for s, r in enumerate((b + 8 * (g & 1), b + 8 * (g & 1) + 4, b + 16 + 4 * (g & 1))):
                A(f"buffer_load_dwordx4 {ar(r)}, v84, {srd(SK)}, s{sA} offen offset:{s*(1024 if int(self.o['vlin']) & 2 else 128)} {KF}")
    def v_loads0(self, sig=None):
        A = self.A; KF = self.o['kvflag'].replace('plain', '').replace('_', ' ')
        A(f"s_mul_i32 s{sB}, s{sV}, 6144")
        for S in range(5):
            if S == sig: self.lds_inc(16)
            for f in range(2 if S < 4 else 0):
                row = 32 * (S >> 1) + 16 * f + 4 * (S & 1)
                for s in range(3):
                    if int(self.o['vlin']) & 1:
                        o = ((S * 2 + f) * 3 + s) * 1024
                        if S == 0: A(f"s_add_u32 m0, s{sB}, {L_VP + (s*2+f)*1024}\ns_mov_b32 s{sA}, {o}\nbuffer_load_dwordx4 v85, {srd(SVV)}, s{sA} offen {KF} lds")
                        else: A(f"s_mov_b32 s{sA}, {o}\nbuffer_load_dwordx4 {vr(VBASE+(S-1)*24+s*8+4*f)}, v85, {srd(SVV)}, s{sA} offen {KF}")
                        continue
                    if S == 0:
                        A(f"s_add_u32 m0, s{sB}, {L_VP + (s*2+f)*1024}\ns_mov_b32 s{sA}, {row*384+s*128}\nbuffer_load_dwordx4 v85, {srd(SVV)}, s{sA} offen {KF} lds")
                    else:
                        if s == 0: A(f"s_mov_b32 s{sA}, {row*384}")
                        A(f"buffer_load_dwordx4 {vr(VBASE+(S-1)*24+s*8+4*f)}, v85, {srd(SVV)}, s{sA} offen offset:{s*128} {KF}")
    def k_loads(self, mid=None):
        if not int(self.o['nos']): return self.k_loads0(mid)
        A = self.A; KF = self.o['kvflag'].replace('plain', '').replace('_', ' ')
        for k in range(1, 4): A(f"v_add_u32 v{63+k}, {6144*k}, v84\nv_add_u32 v{67+k}, {6144*k}, v85")
        for g in range(8):
            b = 12 * (g & ~1); va = 84 if g < 2 else 63 + (g >> 1)
            for s, r in enumerate((b + 8 * (g & 1), b + 8 * (g & 1) + 4, b + 16 + 4 * (g & 1))):
                if int(self.o['gap']) and (3 * g + s) % int(self.o['gap']) == 0: A("s_mov_b32 s62, 0")
                A(f"buffer_load_dwordx4 {ar(r)}, v{va}, {srd(SK)}, 0 offen offset:{(g & 1)*3072 + s*128} {KF}")
    def v_loads(self, sig=None):
        if not int(self.o['nos']): return self.v_loads0(sig)
        A = self.A; KF = self.o['kvflag'].replace('plain', '').replace('_', ' ')
        A(f"s_mul_i32 s{sB}, s{sV}, 6144")
        for S in range(5):
            if S == sig: self.lds_inc(16)
            for f in range(2 if S < 4 else 0):
                k = 2 * (S >> 1) + f; va = 85 if k == 0 else 67 + k
                for s in range(3):
                    if S == 0: A(f"s_add_u32 m0, s{sB}, {L_VP + (s*2+f)*1024 - s*128}\nbuffer_load_dwordx4 v{va}, {srd(SVV)}, 0 offen offset:{s*128} {KF} lds")
                    else:
                        if int(self.o['gap']) and (6 * S + 3 * f + s) % int(self.o['gap']) == 0: A("s_mov_b32 s62, 0")
                        A(f"buffer_load_dwordx4 {vr(VBASE+(S-1)*24+s*8+4*f)}, v{va}, {srd(SVV)}, 0 offen offset:{(S & 1)*1536 + s*128} {KF}")
    def xcol_addr(self, d):
        self.A(f"""v_lshrrev_b32 v1, 4, v0
        v_mul_u32_u24 v{d}, 1280, v1
        v_and_b32 v2, 7, v0
        v_lshl_add_u32 v{d}, v2, 1, v{d}
        s_lshl_b32 s{sA}, s{sAI}, 7
        s_lshl_b32 s{sB}, s{sV}, 4
        s_add_u32 s{sA}, s{sA}, s{sB}
        v_add_u32 v{d}, s{sA}, v{d}""")
    def xres_read(self):
        self.xcol_addr(3)
        self.A(f"v_mov_b32 v{vXR}, 0\nds_read_u16_d16_hi v{vXR}, v3 offset:{L_X0}")
    def lds_spin(self, off, val):
        lw = self.lab("sp"); lr = self.lab("spr")
        self.A(f"""v_mov_b32 v5, {L_FL}
        {lw}:
        ds_read_b32 v4, v5 offset:{off}
        s_waitcnt lgkmcnt(0)
        v_cmp_gt_u32 vcc, {val}, v4
        s_cbranch_vccnz {lr}""")
        self.tail.append(f"{lr}:\ns_sleep 2\ns_sub_u32 s{sTO}, s{sTO}, 1\ns_cbranch_scc1 L_end\ns_branch {lw}")
    def lds_inc(self, off):
        self.A(f"v_mov_b32 v4, {L_FL}\nv_mov_b32 v5, 1\ns_mov_b64 exec, 1\nds_add_u32 v4, v5 offset:{off}\ns_mov_b64 exec, -1")
    def dma_dist(self, cnts, mats):
        A = self.A
        cnts = [int(c) for c in cnts.split(',')]
        pre = [sum(cnts[:i]) for i in range(4)]
        A(f"""s_lshl_b32 s{sA}, s{sV}, 3
        s_mov_b32 s{sB}, 0x{sum(c << (8*i) for i, c in enumerate(cnts)):x}
        s_lshr_b32 s{sD}, s{sB}, s{sA}
        s_and_b32 s{sD}, s{sD}, 0xff
        s_mov_b32 s{sB}, 0x{sum(c << (8*i) for i, c in enumerate(pre)):x}
        s_lshr_b32 s{sF}, s{sB}, s{sA}
        s_and_b32 s{sF}, s{sF}, 0xff
        s_lshl_b32 s{sB}, s{sF}, 10""")
        le = self.lab("dd")
        for i in range(0, max(cnts), 2):
            A(f"s_cmp_gt_u32 s{sD}, {i}\ns_cbranch_scc0 {le}")
            for (sr, va, rs, l0) in mats:
                A(f"s_mul_i32 s{sC}, s{sF}, {8*rs}\ns_add_u32 s{sC}, s{sC}, {i*8*rs}")
                self.dma(sr, va, 2, rs, l0 + i * 1024, sC, sB)
        self.end(le)
    def w_dma_gud(self, u, which='gud'):
        A = self.A
        self.dma_addr(6, 3072); self.dma_addr(8, 1280)
        A(f"s_mul_i32 s{sC}, s{u}, {16*3072}\ns_lshl_b32 s{sB}, s{u}, 11")
        if 'g' in which: self.dma(SWG, 6, 2, 3072, L_WG, sC, sB)
        if 'u' in which: self.dma(SWU, 6, 2, 3072, L_WU, sC, sB)
        A(f"s_mul_i32 s{sC}, s{u}, {16*1280}")
        if 'd' in which: self.dma(SWD, 8, 2, 1280, L_WD, sC, sB)

    def attn_pre(self):
        A = self.A
        A(f"""v_lshrrev_b32 v1, 4, v0
        v_and_b32 v2, 3, v0
        v_lshlrev_b32 v2, 4, v2
        v_lshl_add_u32 v76, v1, 6, v2            ; base1
        v_and_b32 v3, 0x40, v76
        v_add3_u32 v77, v3, v2, 64
        v_add_u32 v77, 192, v77                  ; base2
        v_bfe_u32 v2, v0, 2, 2
        v_mov_b32 v3, 384""")
        for k in range(4): A(f"v_cmp_eq_u32 vcc, {k}, v2\nv_cndmask_b32 v{72+k}, v3, v76, vcc")
        A(f"""v_lshrrev_b32 v1, 5, v0
        v_cmp_eq_u32 vcc, v1, v2
        v_cndmask_b32 v76, v3, v77, vcc
        v_add_u32 v1, 2, v1
        v_cmp_eq_u32 vcc, v1, v2
        v_cndmask_b32 v77, v3, v77, vcc
        v_and_b32 v1, 1, v0
        v_mul_u32_u24 v78, 0xaaaa, v1
        v_add_u32 v78, 0x4444, v78
        v_and_b32 v1, 3, v0
        v_xor_b32 v2, 1, v1
        v_lshl_add_u32 v79, v2, 2, v1
        v_mul_u32_u24 v79, 0x1111, v79
        v_bfe_u32 v1, v0, 2, 1
        v_mul_u32_u24 v85, 0xffff, v1
        v_sub_u32 v84, 0xffff, v85
        s_mul_i32 s{sA}, s{sV}, 6144
        s_add_u32 s{sA}, s{sA}, {L_VP}
        v_lshl_add_u32 v86, v0, 4, s{sA}
        v_and_b32 v1, 7, v0
        v_lshlrev_b32 v1, 5, v1
        v_bfe_u32 v2, v0, 4, 1
        v_lshl_add_u32 v1, v2, 4, v1
        v_lshrrev_b32 v2, 5, v0
        v_mul_u32_u24 v2, 768, v2
        s_mul_i32 s{sA}, s{sV}, 1536
        v_add3_u32 v87, v1, v2, s{sA}""")
    def attn_zero(self, skip=()):
        for r in range(28, 48):
            if r not in skip: self.A(f"v_mov_b32 v{r}, 0")
    def consts(self):
        h = 2 if self.o['xbf'] else 1
        self.A(f"s_mov_b32 s{sTB}, s{sTAG}")
        self.A(f"s_mov_b32 s{sK1}, {81920//h}\ns_mov_b32 s{sK2}, {163840//h}\ns_mov_b32 s{sKG}, {4*GSL}\ns_mov_b32 s{sKQ}, {4*QSL}")

    def xa_addr(self, d=30):
        self.A(f"""v_and_b32 v1, 15, v0
        v_lshrrev_b32 v2, 4, v0
        v_min_u32 v{d}, 5, v1
        v_mul_u32_u24 v{d}, {XS}, v{d}
        v_lshl_add_u32 v{d}, v2, 4, v{d}
        v_and_b32 v3, 3, v0
        v_bfe_u32 v1, v0, 2, 2
        v_add_u32 v{d+1}, 3, v3
        v_min_u32 v{d+1}, 5, v{d+1}
        v_cmp_eq_u32 vcc, 0, v3
        v_cndmask_b32 v{d+1}, v{d+1}, v1, vcc
        v_mul_u32_u24 v{d+1}, {XS}, v{d+1}
        v_lshl_add_u32 v{d+1}, v2, 4, v{d+1}""")
    def xfrags(self, d=30): self.A(f"ds_read_b128 v[4:7], v{d} offset:{L_XA}\nds_read_b128 v[8:11], v{d} offset:{L_XA+64}")
    def mm_with_gram(self, mf0, mf1, store, tag, late=None):
        A = self.A
        le = self.lab("gr")
        def variant(gram, first):
            A("s_waitcnt lgkmcnt(0)"); self.barrier(tag)
            if gram: A(f"ds_read_b128 v[60:63], v31 offset:{L_XA}")
            if first: late()
            self.xfrags()
            if gram:
                A(f"""ds_read_b128 v[64:67], v31 offset:{L_XA+64}
                s_waitcnt lgkmcnt(2)""")
                A(mf0)
                A("v_mfma_f32_16x16x32_bf16 v[68:71], v[60:63], v[4:7], 0\ns_waitcnt lgkmcnt(1)")
                A(mf1)
                A("s_waitcnt lgkmcnt(0)\nv_mfma_f32_16x16x32_bf16 v[68:71], v[64:67], v[8:11], v[68:71]")
                m = 1 | 1 << 17 | 1 << 34 | 1 << 51
                st = f"s_mov_b32 exec_lo, 0x{m & 0xffffffff:x}\ns_mov_b32 exec_hi, 0x{m >> 32:x}\nbuffer_store_dwordx4 v[68:71], v33, {srd(SWS)}, 0 offen{{f}}"
                if first: st = f"s_mov_b64 exec, -1\nv_mov_b32_dpp v71, v70 row_newbcast:4 {DPP}\nv_mov_b32_sdwa v71, v85 dst_sel:BYTE_0 dst_unused:UNUSED_PRESERVE src0_sel:BYTE_0\n" + st
                else: st = st.replace("buffer_store", f"v_mov_b32 v71, {'v85' if tag == 'X' else 's%d' % sTB}\nbuffer_store")
                store(first, st)
            else:
                A("s_waitcnt lgkmcnt(1)"); A(mf0); A("s_waitcnt lgkmcnt(0)"); A(mf1)
                store(first)
        firsts = (True, False) if late else (False,)
        for fi, first in enumerate(firsts):
            if first: lp = self.pass0()
            l = self.role(R_GR); variant(True, first); A(f"s_branch {le}"); self.end(l)
            variant(False, first)
            if first: A(f"s_branch {le}"); self.end(lp)
        self.end(le)
    def q_lds_addr(self, d):
        self.A(f"""v_bfe_u32 v1, v0, 3, 1
        v_lshlrev_b32 v{d}, 6, v1
        v_bfe_u32 v1, v0, 1, 1
        v_lshl_add_u32 v{d}, v1, 5, v{d}
        v_lshrrev_b32 v1, 5, v0
        v_lshl_add_u32 v{d}, v1, 4, v{d}
        v_bfe_u32 v1, v0, 2, 1
        v_lshl_add_u32 v{d}, v1, 3, v{d}
        v_and_b32 v1, 1, v0
        v_lshl_add_u32 v{d}, v1, 2, v{d}
        v_bfe_u32 v1, v0, 4, 1
        v_lshl_add_u32 v{d}, v1, 1, v{d}""")

    def clr_begin(self):
        self.A("v_mov_b32 v64, -1\nv_mov_b32 v65, -1\nv_mov_b32 v66, -1\nv_mov_b32 v67, -1\nv_lshlrev_b32 v10, 4, v0")
    def clr(self, what, p):
        A = self.A
        if self.o['clr'] == 'none': return
        st = lambda off=0: A(f"buffer_store_dwordx4 v[64:67], v10, {srd(SWS)}, s{sA} offen offset:{off} sc1")
        if what in 'XY':
            A(f"s_lshl_b32 s{sA}, s{sSLOT}, 10\ns_add_u32 s{sA}, s{sA}, {(RX if what == 'X' else RY)[p]}"); st()
        elif what == 'O':
            A(f"s_mul_i32 s{sA}, s{sSIG}, {OSL}\ns_add_u32 s{sA}, s{sA}, {RO[p]}\ns_mov_b32 exec_hi, 0xffffff"); st(); A("s_mov_b32 exec_hi, -1")
        elif what == 'G':
            A(f"s_mul_i32 s{sA}, s{sSIG}, {GSL}\ns_add_u32 s{sA}, s{sA}, {RG[p]}"); st(); st(1024)
            if p == 0: A("s_mov_b32 exec_hi, 0xff"); st(2048)
            else: A("s_mov_b64 exec, 0xff"); st(2560)
            A("s_mov_b64 exec, -1")
        elif what == 'C':
            A(f"s_mul_i32 s{sA}, s{sSIG}, {QSL}\ns_add_u32 s{sA}, s{sA}, {RQ[1] + 4224}"); st()
        elif what == 'Q':
            A(f"s_mul_i32 s{sA}, s{sSIG}, {QSL}\ns_add_u32 s{sA}, s{sA}, {RQ[1]}")
            for i in range(4): st(1024 * i)
            A(f"s_add_u32 s{sA}, s{sA}, 4096\ns_mov_b64 exec, 0xff"); st(); A("s_mov_b64 exec, -1")

    def q0_gather(self, w):
        A = self.A
        l3 = self.lab("nog")
        A(f"s_cmp_eq_u32 s{sV}, {w}\ns_cbranch_scc0 {l3}\ns_setprio {self.o['q0p']}")
        lp = self.lab("tq"); lr = self.lab("tqr")
        self.stamp(13, both=False)
        if self.prof: A(f"s_mov_b32 s{sST+5}, s{sST+13}")
        A(f"""s_bfe_u32 s{sB}, s{sT}, 0x20001          ; b
        s_lshl_b32 s{sC}, s{sB}, 10
        v_lshrrev_b32 v1, 4, v0
        v_mul_u32_u24 v78, {Q0SL}, v1
        v_and_b32 v3, 15, v0
        v_lshl_add_u32 v78, v3, 4, v78
        v_add_u32 v78, s{sC}, v78
        s_mul_i32 s{sD}, s{sTAG}, 0x01010101
        v_mov_b32 v72, s{sD}
        v_lshrrev_b32 v73, 8, v72
        v_lshrrev_b32 v74, 16, v72
        v_lshrrev_b32 v75, 24, v72""")
        self.q_lds_addr(79)
        if int(self.o['noq0']) & 2: A("s_branch L_noq0")
        if int(self.o['q0w']) >= 0: A(f"s_waitcnt vmcnt({self.o['q0w']})")
        so = (sC, sE, sF)
        for sg in range(3):
            A(f"""s_lshr_b32 s{sA}, s{sT}, 3
            s_mul_i32 s{sA}, s{sA}, 3
            s_add_u32 s{sA}, s{sA}, {sg}
            s_lshr_b32 s{sB}, s{sA}, 2
            s_mul_i32 s{sB}, s{sB}, 10
            s_lshl_b32 s{so[sg]}, s{sX}, 5
            s_add_u32 s{sB}, s{sB}, s{so[sg]}
            s_mul_i32 s{sB}, s{sB}, {Q0SL}
            s_and_b32 s{sA}, s{sA}, 3
            s_lshl_b32 s{sA}, s{sA}, 8
            s_add_u32 s{sB}, s{sB}, s{sA}
            s_add_u32 s{so[sg]}, s{sB}, {RQ[0]}""")
        A(f"""v_add_u32 v77, {4*Q0SL}, v78
        v_add_u32 v76, {8*Q0SL}, v78
        v_mov_b32 v3, {OOB}
        v_cmp_gt_u32 vcc, 32, v0
        v_cndmask_b32 v76, v3, v76, vcc""")
        def q0loads(fl):
            for i in range(3):
                for sg in range(3): A(f"buffer_load_dwordx4 {vr(4 + 12*sg + 4*i)}, v{78-i}, {srd(SWS)}, s{so[sg]} offen {fl}")
        lw = self.lab("tqw")
        if 'q' in self.o['pl']: q0loads(''); A(f"s_branch {lw}")
        self.fs('a0'); A(f"{lp}:"); q0loads('sc1'); A(f"{lw}:\nv_mov_b32 v1, 0"); self.fs('a1')
        A("s_waitcnt vmcnt(0)"); self.fs('a2')
        for third in (0, 1):
            if third: A("s_mov_b32 exec_hi, 0")
            for sg in range(3):
                for i in ((2,) if third else (0, 1)):
                    r = 4 + 12 * sg + 4 * i
                    for h in (0, 2): A(f"v_xor_b32 v2, v{72+h}, v{r+h}\nv_xor_b32 v3, v{73+h}, v{r+h+1}\nv_or3_b32 v1, v1, v2, v3")
                    for k in range(4): A(f"v_and_b32 v{r+k}, 0xffffff00, v{r+k}")
        for k in range(3):
            for i in range(4): A(f"v_add_f32 v{4+12*k+i}, v{4+12*k+i}, v{12+12*k+i}")
        A(f"s_mov_b64 exec, -1\nv_and_b32 v1, 0xff, v1\nv_cmp_ne_u32 vcc, 0, v1\ns_cbranch_vccnz {lr}")
        self.tail.append(f"{lr}:\ns_sub_u32 s{sTO}, s{sTO}, 1\ns_cbranch_scc1 L_end\ns_branch {lp}")
        for k in range(3):
            r = 4 + 12 * k
            for i in range(4): A(f"v_add_f32 v{r+i}, v{r+i}, v{r+4+i}")
            self.treduce(r, r + 1, r + 2, r + 3)
            A(f"v_cvt_pk_bf16_f32 v{r}, 0, v{r}\nds_write_b16_d16_hi v79, v{r} offset:{L_QL + 128*k}")
        A("L_noq0:"); self.fs('a3')
        self.lds_spin(4, 8)
        A(f"v_mov_b32 v4, 1\nds_write_b32 v5, v4\ns_setprio 0")
        self.end(l3)

    def startup(self):
        A = self.A
        A(f"s_bitcmp1_b32 s{sROLE}, {R_GE4}\ns_cbranch_scc1 L_start_hi")
        self.k_loads()
        self.other_srds()
        l = self.lab("now"); A(f"s_cmp_ge_u32 s{sT}, 30\ns_cbranch_scc1 {l}")
        self.dma_addr(4, 1280)
        if not int(self.o['noq0']) & 4: self.dma_dist(self.o['cwo'], [(SWO, 4, 1280, L_WO)])
        if True:
            mats = [m for k, m in (('g', (SWG, 6, 3072, L_WG)), ('u', (SWU, 6, 3072, L_WU)), ('d', (SWD, 4, 1280, L_WD))) if k not in self.o['tq'] + self.o['dwo'] + self.o['dx']]
            if mats:
                self.dma_addr(6, 3072)
                self.dma_dist(self.o['cgud'], mats)
        self.end(l)
        self.v_loads()
        self.stamp(1, both=False)
        if self.o['dry']:
            l = self.lab("nodry")
            A(f"""s_cmp_eq_u32 s{sV}, 2
            s_cbranch_scc0 {l}
            s_mov_b32 s{sDRY}, 1
            v_mov_b32 v15, 0
            v_mov_b32 v16, 0
            v_mov_b32 v28, 0
            v_mov_b32 v32, 0
            v_mov_b32 v33, 0
            v_mov_b32 v34, 0
            v_mov_b32 v36, 0
            v_mov_b32 v37, 0
            v_mov_b32 v38, 0
            s_mov_b32 s{sSAVE}, s{sT}
            s_mov_b32 s{sT}, 0
            s_mov_b32 s{sROLE}, 0xff
            s_mov_b64 s[{sFULL}:{sFULL+1}], 0
            s_mov_b64 exec, 0
            s_branch L_attn
            L_dry_ret:
            s_mov_b32 s{sDRY}, 0
            s_mov_b32 s{sP}, 0
            s_mov_b32 s{sT}, s{sSAVE}
            s_mov_b32 s{sROLE}, {(1 << R_LT4) | ((int(self.o['gramw']) == 2) << R_GR)}
            s_mov_b64 s[{sFULL}:{sFULL+1}], -1
            s_mov_b64 exec, -1
            {l}:""")
        if int(self.o['agg']): self.group_flag()
        if int(self.o['chkw']): A("s_waitcnt vmcnt(0)" if int(self.o['q0w']) == 0 else ""); self.flag_check()
        if not int(self.o['g7']): self.q0_gather(3)
        self.stamp(2, both=False)
        self.attn_pre(); self.attn_zero(); self.consts()
        self.lds_spin(0, 1)
        self.xres_read()
        A("s_branch L_attn")
        A("L_start_hi:\ns_setprio 3")
        self.other_srds()
        l = self.lab("x0"); l2 = self.lab("x0")
        A(f"""v_lshlrev_b32 v10, 4, v0
        s_and_b32 s{sB}, s{sV}, 3
        s_lshl_b32 s{sA}, s{sB}, 10
        s_add_u32 m0, s{sA}, {L_X0}
        s_cmp_eq_u32 s{sV}, 4
        buffer_load_dwordx4 v10, {srd(SX0)}, s{sA} offen lds
        s_cbranch_scc0 {l}
        s_mov_b32 m0, {L_X0 + 4096}
        s_movk_i32 s{sA}, 0x1000
        buffer_load_dwordx4 v10, {srd(SX0)}, s{sA} offen lds
        {l}:
        s_cmp_eq_u32 s{sV}, 5
        s_cbranch_scc0 {l2}
        s_mov_b32 m0, {L_XA + 5*XS}
        s_mov_b64 exec, 0xff
        buffer_load_dwordx4 v10, {srd(SWR)}, 0 offen lds
        s_mov_b64 exec, -1
        {l2}:""")
        lq = self.lab("noq"); lq2 = self.lab("noq")
        A(f"s_cmp_ge_u32 s{sT}, 30\ns_cbranch_scc1 {lq}")
        self.dma_addr(6, 12288)
        A(f"s_and_b32 s{sB}, s{sV}, 3\ns_lshl_b32 s{sC}, s{sB}, 7\ns_lshl_b32 s{sB}, s{sB}, 13")
        self.dma(SWQ, 6, 8, 12288, L_WQ, sC, sB)
        A(f"""v_lshrrev_b32 v1, 4, v0
        v_and_b32 v2, 15, v0
        v_mul_u32_u24 v3, 1280, v1
        v_lshl_add_u32 v10, v2, 4, v3
        v_lshl_add_u32 v11, v2, 3, v3
        s_lshl_b32 s{sA}, s{sAI}, 7
        v_add_u32 v11, s{sA}, v11
        v_mul_u32_u24 v12, {XS}, v1
        v_lshl_add_u32 v12, v2, 3, v12
        v_lshlrev_b32 v13, 3, v2
        s_waitcnt vmcnt(8)""")
        self.lds_inc(4); self.lds_spin(4, 4)
        for i in range(5): A(f"ds_read_b128 {vr(16+4*i)}, v10 offset:{L_X0 + 256*i}")
        A(f"ds_read_b64 v[36:37], v11 offset:{L_X0}")
        A("v_mov_b32 v40, 0x3f803f80\nv_mov_b32 v41, 0x3f803f80\nv_mov_b32 v42, 0\nv_mov_b32 v43, 0\ns_waitcnt lgkmcnt(0)")
        for i in range(20): A(f"v_dot2_f32_bf16 v42, v{16+i}, v{16+i}, v42\nv_dot2_f32_bf16 v43, v{16+i}, v40, v43")
        self.mix(self.red16([42, 43])); self.mix(self.lnstats(42, 43, 44, 45, 46))
        A("v_lshlrev_b32 v16, 16, v36\nv_and_b32 v17, 0xffff0000, v36\nv_lshlrev_b32 v18, 16, v37\nv_and_b32 v19, 0xffff0000, v37")
        for i in range(4): A(f"v_sub_f32 v{16+i}, v{16+i}, v44")
        for i in range(4): A(f"v_cvt_pk_bf16_f32 v{16+i}, 0, v{16+i}")
        for i in range(4): A(f"v_mul_f32 v{16+i}, v{16+i}, v45")
        A(f"""v_cvt_pk_bf16_f32 v16, v16, v17
        v_cvt_pk_bf16_f32 v17, v18, v19
        ds_write_b64 v12, v[16:17] offset:{L_XA}
        ds_write_b64 v13, v[40:41] offset:{L_XA + 4*XS}""")
        A(f"s_and_b32 s{sA}, s{sV}, 3\ns_lshl_b32 s{sA}, s{sA}, 13\ns_add_u32 s{sA}, s{sA}, {L_WQ}")
        self.tr_addr(52, sA)
        for t in range(1, 4): A(f"v_xor_b32 v{52+t}, {32*t}, v52")
        self.xa_addr(14)
        A(f"""s_and_b32 s{sA}, s{sV}, 3
        s_lshl_b32 s{sB}, s{sA}, 10
        v_and_b32 v2, 15, v0
        v_lshlrev_b32 v72, 8, v2
        v_and_b32 v1, 0x30, v0
        v_add3_u32 v72, v72, v1, s{sB}
        v_lshl_add_u32 v73, v0, 4, s{sB}
        v_lshlrev_b32 v74, 6, v1
        v_lshl_add_u32 v74, v2, 4, v74
        s_lshl_b32 s{sA}, s{sA}, 8
        v_add_u32 v75, s{sA}, v1
        s_mul_i32 s{sE}, s{sSIG}, {Q0SL}
        s_add_u32 s{sE}, s{sE}, s{sA}
        s_add_u32 s{sE}, s{sE}, {RQ[0]}
        s_mul_i32 s{sF}, s{sTAG}, 0x01010101
        v_mov_b32 v76, 0xff
        s_waitcnt vmcnt(0) lgkmcnt(0)""")
        self.stamp(12, both=False)
        for t in range(4): self.wfrags(16 + 8 * t, 52 + t, 2)
        self.xfrags(14)
        A("s_waitcnt lgkmcnt(0)")
        for s in range(2):
            for t in range(4):
                A(f"v_mfma_f32_16x16x32_bf16 {vr(48+4*t)}, {vr(16+8*t+4*s)}, {vr(4+4*s)}, {'0' if s == 0 else vr(48+4*t)}")
        for i in range(4):
            for t in range(4): A(f"v_bfi_b32 v{16+4*t+i}, v76, s{sF}, v{48+4*t+i}")
            A(f"s_lshr_b32 s{sF}, s{sF}, 8")
        self.exec_mask(0x000f000f000f000f)
        for t in range(4): A(f"ds_write_b128 v72, {vr(16+4*t)} offset:{L_OC + 64*t}")
        self.exec_mask(0x0010001000100010)
        for t in range(4): A(f"ds_write_b128 v75, {vr(48+4*t)} offset:{L_CS + 64*t}")
        self.exec_full()
        A(f"""s_waitcnt lgkmcnt(0)
        ds_read_b128 v[16:19], v73 offset:{L_OC}
        s_waitcnt lgkmcnt(0)""")
        if not int(self.o['noq0']) & 1: A(f"buffer_store_dwordx4 v[16:19], v74, {srd(SWS)}, s{sE} offen sc1")
        A(f"""s_branch {lq2}
        {lq}:
        s_waitcnt vmcnt(0)""")
        self.lds_inc(4); self.lds_spin(4, 4)
        A(f"{lq2}:")
        self.xres_read()
        A("s_waitcnt lgkmcnt(0)")
        self.lds_inc(4)
        self.stamp(14, both=False); self.fs('am')
        l = self.role(R_7 if int(self.o['g7']) else R_6)
        l2 = self.lab("nocl")
        self.clr_begin()
        A(f"s_cmp_ge_u32 s{sT}, 30\ns_cbranch_scc1 {l2}")
        if int(self.o['cb']):
            A(f"s_lshl_b32 s{sA}, s{sSLOT}, 10")
            for r, R in zip((sC, sD, sE, sF), RX + RY): A(f"s_add_u32 s{r}, s{sA}, {R}")
            for r in (sC, sD, sE, sF): A(f"buffer_store_dwordx4 v[64:67], v10, {srd(SWS)}, s{r} offen sc1")
        else: self.clr('X', 0); self.clr('Y', 0); self.clr('X', 1); self.clr('Y', 1)
        A(f"{l2}:\ns_mov_b64 exec, -1")
        flk = int(self.o['flk'])
        def flag(n):
            l3 = self.lab("nofl")
            A(f"""s_getreg_b32 s{sXCC}, hwreg(HW_REG_XCC_ID, 0, 4)
            v_mov_b32 v6, s{sTAG}
            v_mov_b32 v7, s{sXCC}
            v_mov_b32 v8, s{sTAG}
            v_mov_b32 v9, s{sXCC}
            v_mov_b32 v4, {L_FL}
            v_mov_b32 v5, 1
            s_lshl_b32 s{sC}, s{sSIG}, 7
            s_add_u32 s{sC}, s{sC}, {RF}
            s_waitcnt vmcnt({n})
            s_mov_b64 exec, 0xff
            buffer_store_dwordx4 v[6:9], v10, {srd(SWS)}, s{sC} offen sc1
            {l3}:
            s_mov_b64 exec, -1""")
        if not flk: flag(0)
        self.end(l)
        def midflag():
            l = self.role(R_456); flag(3 * flk); self.end(l)
        self.stamp(1, both=False)
        if int(self.o['g7']): self.q0_gather(7); self.stamp(2, both=False)
        A("s_setprio 0")
        self.k_loads((flk, midflag) if flk else None); self.v_loads(int(self.o['tqat']) if self.o['tq'] or int(self.o['tqwo']) else None)
        self.attn_pre(); self.attn_zero(); self.consts()
        self.lds_spin(0, 1)

    def region(self, s, R):
        if R[0] == R[1]: return self.A(f"s_mov_b32 s{s}, {R[0]}")
        self.A(f"s_mul_i32 s{s}, s{sP}, {R[1]-R[0]}")
        if R[0]: self.A(f"s_add_u32 s{s}, s{s}, {R[0]}")

    def parked(self):
        for i in range(6): self.A(f"ds_read_b128 {vr(48+4*i)}, v86 offset:{1024*i}")
    def attention(self):
        A = self.A
        A("s_branch L_attn")
        if int(self.o['al']): A(f".p2align {self.o['al']}")
        for _ in range(int(self.o['alo'])): A("s_nop 0")
        A("L_attn_bar:\ns_waitcnt vmcnt(0) lgkmcnt(0)")
        self.barrier('Q')
        A("L_attn:")
        if int(self.o['prio']) == 2:
            l = self.role(R_GE4); A("s_setprio 1"); self.end(l)
        pk = int(self.o['pk']); mle = int(self.o['mle'])
        order = [(72, 4), (73, 8), (76, 20), (74, 12), (75, 16), (77, 24)]
        for a, d in order: A(f"ds_read_b128 {vr(d)}, v{a} offset:{L_QL}")
        self.region(sE, RO)
        A(f"""s_mul_i32 s{sB}, s{sSIG}, {OSL}
        s_add_u32 s{sE}, s{sE}, s{sB}
        s_and_b32 s{sC}, s{sV}, 3
        s_lshl_b32 s{sC}, s{sC}, 8
        s_add_u32 s{sD}, s{sC}, s{sE}
        s_mov_b32 s{sA}, 0x{ODD & 0xffffffff:x}
        s_mov_b32 s{sB}, 0x{ODD & 0xffffffff:x}
        s_waitcnt vmcnt({18 if pk else 24})""")
        if pk: self.parked()
        self.stamp(3)
        for n, (a, d) in enumerate(order):
            A(f"s_waitcnt lgkmcnt({(11 if pk else 5)-n})")
            for h in range(2):
                if a < 76: g = 4 * h + (a - 72); b = 12 * (g & ~1) + 8 * (g & 1)
                else: g = 4 * h + 2 * (a - 76); b = 12 * g + 16
                A(f"v_smfmac_f32_16x16x64_bf16 {vr(28+4*h)}, {vr(d)}, {ar(b,8)}, v78")
        self.fs('k1')
        if int(self.o['prio']) & 8: A(f"s_lshr_b32 s{sF}, s{sV}, 2\ns_cmp_eq_u32 s{sF}, 0\ns_cbranch_scc1 L_noprio\ns_setprio 1\nL_noprio:")
        fill = [f"v_lshrrev_b32 v1, 4, v0", f"v_and_b32 v2, 15, v0", f"v_mul_u32_u24 v12, 3072, v1", f"v_lshlrev_b32 v13, 3, v1",
                f"v_lshl_add_u32 v12, v2, 4, v12", f"v_lshlrev_b32 v15, 4, v2", f"v_add_u32 v12, s{sC}, v12", f"v_lshl_add_u32 v15, v1, 2, v15",
                f"v_mov_b32 v14, 0", f"v_add_u32 v15, s{sD}, v15", f"v_lshl_add_u32 v16, v0, 4, s{sE}", f"v_and_b32 v17, 7, v0",
                f"v_lshlrev_b32 v17, 2, v17", f"s_lshl_b32 s{sF}, s{sV}, 2", (f"v_add_u32 v35, s{sF}, v19" if int(self.o['w2']) else f"v_mov_b32 v35, s{sF}")]
        if int(self.o['w2']): fill.insert(1, f"v_mov_b32 v19, {L_ML}")
        late_fill = []
        if int(self.o['fl']): late_fill = fill[:13]; fill = fill[13:] + [""] * 13
        if pk:
            fill += ["v_bfe_u32 v18, v0, 3, 1", "v_and_b32 v19, 0x30, v0", "v_lshlrev_b32 v18, 3, v18", "v_lshl_add_u32 v18, v19, 2, v18"]
            for _ in range(6): A(fill.pop(0))
        else:
            A("s_waitcnt vmcnt(18)"); self.parked(); A(fill.pop(0))
        fin = lambda d: [f"v_add_f32 v{d}, v{d}, v{d+1}", f"v_add_f32 v{d+2}, v{d+2}, v{d+3}",
                         f"v_cndmask_b32 v{d}, v{d}, v{d+2}, s[{sA}:{sB}]",
                         f"v_add_f32_dpp v{d}, v{d}, v{d} quad_perm:[1,0,3,2] {DPP}",
                         f"v_cvt_pk_bf16_f32 v{d}, 0, v{d}", f"v_mul_f32 v{d}, s{sSCALE}, v{d}",
                         f"v_cvt_pk_bf16_f32 v{d}, 0, v{d}", f"v_mul_f32 v{d}, s{sLOG2E}, v{d}"]
        f0, f1 = fin(28), fin(32)
        for k in range(8):
            if k == 3: A(fill.pop(0))
            A(f0[k]); A(f1[k])
        A("v_max_f32 v29, v28, v32")
        for p in (f"quad_perm:[2,3,0,1] {DPP}", f"row_half_mirror {DPP}", f"row_mirror {DPP}", "row_bcast:15 row_mask:0xa bank_mask:0xf", "row_bcast:31 row_mask:0xc bank_mask:0xf"):
            A(fill.pop(0)); A(fill.pop(0)); A(f"v_max_f32_dpp v29, v29, v29 {p}")
        A(fill.pop(0)); A(f"v_readlane_b32 s{sM}, v29, 63")
        self.fs('k2')
        while fill: A(fill.pop(0))
        A(f"""v_subrev_f32 v28, s{sM}, v28
        v_subrev_f32 v32, s{sM}, v32
        v_exp_f32 v28, v28
        v_exp_f32 v32, v32
        v_cvt_pk_bf16_f32 v30, v28, v28
        v_cvt_pk_bf16_f32 v31, v32, v32
        v_mov_b32 v34, s{sM}""")
        lsum = ["v_add_f32 v33, v28, v32"] + \
               [f"v_add_f32_dpp v33, v33, v33 {p}" for p in (f"quad_perm:[2,3,0,1] {DPP}", f"row_half_mirror {DPP}", f"row_mirror {DPP}",
                                                            "row_bcast:15 row_mask:0xa bank_mask:0xf", "row_bcast:31 row_mask:0xc bank_mask:0xf")]
        bp = int(self.o['at2'])
        def abuild(S):
            b = 4 + 4 * (S & 1); P = 30 + (S >> 1); jj = S & 1
            if bp and S: return [f"v_and_b32 v{b+2*x+m}, v{20+2*(S-1)+x}, v{84+m}" for x in range(2) for m in range(2)]
            return [f"v_and_b32_dpp v{b+2*x+m}, v{P}, v{84+m} row_newbcast:{8*jj+4*x+2*c} row_mask:0xf bank_mask:{'0x3' if c == 0 else '0xc'}"
                    for c in range(2) for x in range(2) for m in range(2)]
        bperm = lambda S: [f"ds_bpermute_b32 v{20+2*(S-1)+x}, v18, v{30+(S>>1)} offset:{32*(S&1)+16*x}" for x in range(2)]
        if bp: self.mix(bperm(1))
        for x in abuild(0): A(x)
        if bp: self.mix(bperm(2) + bperm(3))
        if int(self.o['prio']) & 8: A("s_setprio 0")
        self.fs('k3')
        for S in range(4):
            nxt = abuild(S + 1) if S < 3 else []
            if S: A(f"s_waitcnt vmcnt({18 - 6*S})")
            if S == 3 and mle:
                assert not lsum
                self.exec_mask(1 << 63)
                A(f"ds_write_b32 v35, v34 offset:{L_ML}\nds_write_b32 v35, v33 offset:{L_ML+32}")
                self.exec_full()
            for s in range(3):
                vv = vr(48 + 8 * s, 8) if S == 0 else vr(VBASE + (S - 1) * 24 + 8 * s, 8)
                if S == 0 and s == 0: A(f"s_waitcnt lgkmcnt({6 if bp else 0})")
                A(f"v_smfmac_f32_16x16x64_bf16 {vr(36+4*s)}, {vr(4+4*(S&1))}, {vv}, v79")
                if bp:
                    if lsum and s != 1: A(lsum.pop(0))
                    if s == 1 and S < 2: A(f"s_waitcnt lgkmcnt({4 if S == 0 else 0})")
                    if s == 1: self.mix(nxt)
                else:
                    for _ in range(3):
                        if nxt: A(nxt.pop(0))
                    if lsum and s != 1: A(lsum.pop(0))
        self.fs('k4')
        if not mle:
            self.exec_mask(1 << 63)
            if int(self.o['w2']): A(f"ds_write2_b32 v35, v34, v33 offset0:0 offset1:8")
            else: A(f"ds_write_b32 v35, v34 offset:{L_ML}\nds_write_b32 v35, v33 offset:{L_ML+32}")
        self.exec_mask(0xFF00FF0000FF00FF)
        for s in range(3): A(f"ds_write_b128 v87, {vr(36+4*s)} offset:{L_OC + 256*s}")
        self.exec_full()
        self.mix(late_fill)
        l = self.role(R_LT4)
        l2 = self.pass0(); l3 = self.lab("nm")
        A(f"s_cbranch_execz {l3}")
        self.first_pass_checks()
        if self.o['tq']:
            l4 = self.lab("ntq"); A(f"s_cmp_ge_u32 s{sT}, 30\ns_cbranch_scc1 {l4}")
            self.lds_spin(16, 4)
            self.w_dma_gud(sV, self.o['tq'])
            self.end(l4)
        if int(self.o['tqwo']):
            n = int(self.o['tqwo']) // 4
            l4 = self.lab("ntq"); A(f"s_cmp_ge_u32 s{sT}, 30\ns_cbranch_scc1 {l4}")
            self.dma_addr(6, 1280)
            A(f"s_mul_i32 s{sB}, s{sV}, {n}\ns_add_u32 s{sB}, s{sB}, {32 - 4*n}\ns_mul_i32 s{sC}, s{sB}, {8*1280}\ns_lshl_b32 s{sB}, s{sB}, 10")
            nb = int(self.o['tqb'])
            if n > nb:
                self.lds_spin(16, 4)
                self.dma(SWO, 6, n - nb, 1280, L_WO, sC, sB, int(self.o['tqlim']))
            self.end(l4)
        self.end(l3); self.end(l2)
        if int(self.o['wb']) == 2:
            l2 = self.lab("wb"); A(f"s_cmp_eq_u32 s{sT}, 30\ns_cbranch_scc0 {l2}\ns_lshl_b32 s{sA}, s{sV}, 1\ns_or_b32 s{sA}, s{sA}, s{sP}\ns_cmp_eq_u32 s{sA}, 1\ns_cbranch_scc0 {l2}\nbuffer_wbl2 sc1\n{l2}:")
        self.end(l)
        A("s_waitcnt lgkmcnt(0)")
        if int(self.o['prio']) & 3: A("s_setprio 0")
        self.stamp(4)
        if self.o['t2'] and not self.o['t2p']:
            l = self.pass0(); A("s_memrealtime s[66:67]"); self.end(l)
        self.barrier('A')
        l = self.role(R_GE4)
        if int(self.o['prio']) & 4: A("s_setprio 1")
        A(f"ds_read_b32 v47, v14 offset:{L_FL+12}")
        l2 = self.role(R_456)
        A(f"""ds_read_b128 v[20:23], v14 offset:{L_ML}
        ds_read_b128 v[24:27], v14 offset:{L_ML+16}
        ds_read_b64 v[18:19], v13 offset:{L_ML}
        ds_read_b128 v[48:51], v12 offset:{L_OC}
        ds_read_b128 v[52:55], v12 offset:{L_OC+768}
        ds_read_b128 v[56:59], v12 offset:{L_OC+1536}
        ds_read_b128 v[60:63], v12 offset:{L_OC+2304}
        v_subrev_u32 v28, 16, v0
        v_ashrrev_i32 v28, 31, v28
        v_and_b32 v28, 0xff, v28""")
        self.lane_tag(29, 0)
        A(f"""s_waitcnt lgkmcnt(5)
        v_max3_f32 v20, v20, v21, v22
        v_max3_f32 v24, v24, v25, v26
        v_readfirstlane_b32 s{sFAST}, v47
        v_max3_f32 v20, v20, v23, v27
        v_max_f32 v20, v20, v24
        s_waitcnt lgkmcnt(2)
        v_sub_f32 v18, v18, v20
        v_sub_f32 v19, v19, v20
        v_add_f32 v48, v48, v52
        v_exp_f32 v18, v18
        v_add_f32 v49, v49, v53
        v_exp_f32 v19, v19
        v_add_f32 v50, v50, v54
        v_add_f32 v51, v51, v55
        s_waitcnt lgkmcnt(0)""")
        for i in range(4): A(f"v_add_f32 v{56+i}, v{56+i}, v{60+i}\nv_mul_f32 v{48+i}, v18, v{48+i}")
        for i in (0, 2, 1, 3): A(f"v_fmac_f32 v{48+i}, v19, v{56+i}")
        self.treduce(48, 49, 50, 51)
        A(f"v_bfi_b32 v48, v28, v29, v48")
        self.stores(f"buffer_store_dword v48, v15, {srd(SWS)}, 0 offen{{f}}", True, 'A')
        if int(self.o['mlb']): A("s_barrier")
        self.end(l2)
        l2 = self.role(R_7)
        A(f"""ds_read_b32 v4, v17 offset:{L_ML}
        ds_read_b32 v5, v17 offset:{L_ML+32}
        v_mov_b32 v8, s{sTB}
        s_waitcnt lgkmcnt(1)
        v_max_f32_dpp v6, v4, v4 quad_perm:[1,0,3,2] {DPP}
        v_readfirstlane_b32 s{sFAST}, v47
        v_max_f32_dpp v6, v6, v6 quad_perm:[2,3,0,1] {DPP}
        v_max_f32_dpp v6, v6, v6 row_half_mirror {DPP}
        v_sub_f32 v4, v4, v6
        v_exp_f32 v4, v4
        s_waitcnt lgkmcnt(0)
        v_mul_f32 v7, v4, v5""")
        self.mix(self.red16([7])[:3])
        if int(self.o['mlb']): A("s_barrier")
        if int(self.o['mld']): A(f"s_sleep {self.o['mld']}")
        self.exec_mask(0xff)
        self.stores(f"buffer_store_dwordx4 v[6:9], v16, {srd(SWS)}, 0 offen offset:768{{f}}", True, 'M')
        self.exec_full()
        l3 = self.pass0(); l4 = self.lab("ncs")
        A(f"""s_cmp_ge_u32 s{sT}, 30
        s_cbranch_scc1 {l4}
        v_lshlrev_b32 v1, 4, v0
        ds_read_b128 v[12:15], v1 offset:{L_CS}
        s_mul_i32 s{sA}, s{sSIG}, {QSL}
        s_add_u32 s{sA}, s{sA}, {RQ[1] + 4224}
        s_waitcnt lgkmcnt(0)""")
        A(f"s_mov_b32 s{sC}, s{sA}"); self.lane_tag(2, 0)
        A(f"s_mov_b32 s{sA}, s{sC}\nv_mov_b32_sdwa v12, v2 dst_sel:BYTE_0 dst_unused:UNUSED_PRESERVE src0_sel:BYTE_0")
        self.stores(f"buffer_store_dwordx4 v[12:15], v1, {srd(SWS)}, s{sA} offen{{f}}", True)
        self.end(l4); self.end(l3); self.end(l2)
        if int(self.o['prio']) & 4: A("s_setprio 0")
        self.end(l)
        if int(self.o['mlb']):
            l = self.role(R_LT4); self.wo_pre1(); A("s_barrier"); self.end(l)
        A(f"s_cmp_ge_u32 s{sT}, 30\ns_cbranch_scc1 L_idle")

    def group_flag(self):
        A = self.A
        l = self.lab("noag"); lp = self.lab("ag"); lr = self.lab("agr")
        A(f"""s_cmp_eq_u32 s{sT}, 30
        s_cbranch_scc0 {l}
        s_cmp_eq_u32 s{sV}, 2
        s_cbranch_scc0 {l}
        v_lshlrev_b32 v3, 7, v0
        s_getreg_b32 s{sXCC}, hwreg(HW_REG_XCC_ID, 0, 4)
        s_lshl_b32 s{sA}, s{sX}, 12
        s_add_u32 s{sA}, s{sA}, {RF}
        s_mov_b32 exec_hi, 0
        {lp}:
        buffer_load_dwordx2 v[4:5], v3, {srd(SWS)}, s{sA} offen sc1
        s_waitcnt vmcnt(0)
        v_cmp_ne_u32 vcc, s{sTAG}, v4
        s_cbranch_vccnz {lr}
        v_cmp_ne_u32 vcc, s{sXCC}, v5
        s_cmp_eq_u64 vcc, 0
        s_cselect_b32 s{sB}, 1, 0
        v_mov_b32 v4, s{sTAG}
        v_mov_b32 v5, s{sB}
        v_mov_b32 v6, s{sTAG}
        v_mov_b32 v7, s{sB}
        v_lshlrev_b32 v3, 4, v0
        s_lshl_b32 s{sA}, s{sX}, 7
        s_add_u32 s{sA}, s{sA}, {RF2}
        s_mov_b64 exec, 0xff
        buffer_store_dwordx4 v[4:7], v3, {srd(SWS)}, s{sA} offen sc1
        s_mov_b64 exec, -1
        s_waitcnt vmcnt(0)
        {l}:""")
        self.tail.append(f"{lr}:\ns_sleep 16\ns_sub_u32 s{sTO}, s{sTO}, 1\ns_cbranch_scc1 L_end\ns_branch {lp}")
    def flag_check_agg(self):
        A = self.A
        l = self.lab("nochk"); lp = self.lab("chk"); lr = self.lab("chkr")
        A(f"""s_cmp_eq_u32 s{sV}, {self.o['chkw']}
        s_cbranch_scc0 {l}
        v_mov_b32 v1, {L_FL}
        v_lshlrev_b32 v3, 7, v0
        s_mov_b32 s{sA}, {RF2}
        s_mov_b64 exec, 0xff
        {lp}:
        buffer_load_dwordx2 v[4:5], v3, {srd(SWS)}, s{sA} offen sc1
        s_waitcnt vmcnt(0)
        v_cmp_ne_u32 vcc, s{sTAG}, v4
        s_cbranch_vccnz {lr}
        v_readlane_b32 s{sA}, v5, s{sX}
        s_mov_b64 exec, 1
        v_mov_b32 v5, s{sA}
        ds_write_b32 v1, v5 offset:12
        s_cmp_eq_u32 s2, 0
        s_cbranch_scc0 {l}
        s_mov_b32 s{sA}, {RE}
        v_add_u32 v4, 1, v4
        buffer_store_dword v4, v3, {srd(SWS)}, s{sA} offen sc1
        {l}:
        s_mov_b64 exec, -1""")
        self.tail.append(f"{lr}:\ns_sleep {self.o['bsleep']}\ns_sub_u32 s{sTO}, s{sTO}, 1\ns_cbranch_scc1 L_end\ns_branch {lp}")
    def flag_check(self):
        A = self.A
        if int(self.o['agg']): return self.flag_check_agg()
        l = self.lab("nochk"); lp = self.lab("chk"); lr = self.lab("chkr")
        A(f"""s_cmp_eq_u32 s{sV}, {self.o['chkw']}
        s_cbranch_scc0 {l}
        v_mov_b32 v1, {L_FL}
        v_mov_b32 v2, s{sTAG}
        v_lshlrev_b32 v3, 9, v0
        s_getreg_b32 s{sXCC}, hwreg(HW_REG_XCC_ID, 0, 4)
        s_mov_b32 s{sA}, {RF}
""")
        fl = lambda f: [A(f"buffer_load_dwordx2 v[{4+2*k}:{5+2*k}], v3, {srd(SWS)}, s{sA} offen offset:{128*k} {f}") for k in range(4)]
        lw = self.lab("chw")
        if 'f' in self.o['pl']: fl(''); A(f"s_branch {lw}")
        A(f"{lp}:"); fl('sc1')
        A(f"""{lw}:
        s_waitcnt vmcnt(0)
        v_xor_b32 v4, v4, v2
        v_xor_b32 v6, v6, v2
        v_xor_b32 v8, v8, v2
        v_xor_b32 v10, v10, v2
        v_or3_b32 v4, v4, v6, v8
        v_or_b32 v4, v4, v10
        v_cmp_ne_u32 vcc, 0, v4
        s_cbranch_vccnz {lr}
        v_xor_b32 v5, s{sXCC}, v5
        v_xor_b32 v7, s{sXCC}, v7
        v_xor_b32 v9, s{sXCC}, v9
        v_xor_b32 v11, s{sXCC}, v11
        v_or3_b32 v5, v5, v7, v9
        v_or_b32 v5, v5, v11
        v_cmp_eq_u32 vcc, 0, v5
        s_lshl_b32 s{sB}, s{sX}, 3
        s_lshr_b64 s[{sA}:{sB}], vcc, s{sB}
        s_and_b32 s{sA}, s{sA}, 0xff
        s_cmp_eq_u32 s{sA}, 0xff
        s_cselect_b32 s{sA}, 1, 0
        v_mov_b32 v4, s{sA}
        ds_write_b32 v1, v4 offset:12
        s_cmp_eq_u32 s2, 0
        s_cbranch_scc0 {l}
        v_mov_b32 v58, 0
        v_add_u32 v59, 1, v2
        s_mov_b32 s{sA}, {RE}
        s_mov_b64 exec, 1
        buffer_store_dword v59, v58, {srd(SWS)}, s{sA} offen sc1
        s_mov_b64 exec, -1
        {l}:""")
        self.tail.append(f"{lr}:\ns_sleep {self.o['bsleep']}\ns_sub_u32 s{sTO}, s{sTO}, 1\ns_cbranch_scc1 L_end\ns_branch {lp}")
    def first_pass_checks(self):
        A = self.A
        if int(self.o['chkw']) == 0: self.flag_check()
        if self.o['prewarm'] and self.o['pwo']:
            l = self.lab("npw")
            A(f"""s_cmp_eq_u32 s{sV}, 1
            s_cbranch_scc0 {l}
            v_lshlrev_b32 v1, 4, v0
            s_mul_i32 s{sA}, s{sSIG}, {QSL}
            s_add_u32 s{sA}, s{sA}, {RQ[1] + 4224}
            buffer_load_dwordx4 v[60:63], v1, {srd(SWS)}, s{sA} offen {'' if 'p' in self.o['pl'] else 'sc1'}
""")
            for R in (RX + RY if self.o['xt'] else []):
                A(f"s_lshl_b32 s{sA}, s{sSLOT}, 10\ns_add_u32 s{sA}, s{sA}, {R}\nbuffer_load_dwordx4 v[60:63], v1, {srd(SWS)}, s{sA} offen {self.o['xt'].replace('plain', '')}")
            A(f"""s_mov_b32 exec_hi, 0xffffff
            buffer_load_dwordx4 v[60:63], v1, {srd(SWS)}, s{sE} offen {'' if 'p' in self.o['pl'] else 'sc1'}
            s_mov_b64 exec, -1
            {l}:""")

    def afrag_addr(self, d, stride):
        self.A(f"v_and_b32 v1, 3, v0\nv_lshrrev_b32 v2, 4, v0\nv_mul_u32_u24 v1, {stride}, v1\nv_lshl_add_u32 v{d}, v2, 4, v1")
    def pub_addr(self, d, R):
        self.region(sC, R)
        self.A(f"s_lshl_b32 s{sA}, s{sSLOT}, 10\ns_lshl_b32 s{sB}, s{sV}, 8\ns_add_u32 s{sA}, s{sA}, s{sB}\ns_add_u32 s{sA}, s{sA}, s{sC}\nv_lshl_add_u32 v{d}, v0, 4, s{sA}") if not self.o['xbf'] else \
        self.A(f"s_lshl_b32 s{sA}, s{sSLOT}, 9\ns_lshl_b32 s{sB}, s{sV}, 7\ns_add_u32 s{sA}, s{sA}, s{sB}\ns_add_u32 s{sA}, s{sA}, s{sC}\nv_lshl_add_u32 v{d}, v0, 3, s{sA}")
    def pub_store(self, addr, tag):
        if self.o['xbf']:
            self.A("v_cvt_pk_bf16_f32 v68, v68, v69\nv_cvt_pk_bf16_f32 v69, v70, v71")
            self.exec_mask(0xffff)
            self.stores(f"buffer_store_dwordx2 v[68:69], v{addr}, {srd(SWS)}, 0 offen{{f}}", False, tag)
        else:
            self.exec_mask(0xffff)
            self.stores(f"buffer_store_dwordx4 v[68:71], v{addr}, {srd(SWS)}, 0 offen{{f}}", False, tag)
        self.exec_full()
    def unpack_sum(self, dst, srcs):
        out = []
        for k, r in enumerate(srcs):
            for i in range(4):
                out.append(f"v_dot2_f32_bf16 v{dst+i}, v{r + (i >> 1)}, s{sLO if i % 2 == 0 else sHI}, {'0' if k == 0 else 'v%d' % (dst+i)}")
        return out

    def wo_pre1(self):
        A = self.A
        self.region(sD, RO)
        A(f"""s_lshl_b32 s{sA}, s{sRI}, 2
        s_add_u32 s{sA}, s{sA}, s{sV}
        s_mul_i32 s{sB}, s{sA}, 86
        s_lshr_b32 s{sB}, s{sB}, 8
        s_mul_i32 s{sC}, s{sB}, 3
        s_sub_u32 s{sC}, s{sA}, s{sC}
        s_lshl_b32 s{sB}, s{sB}, 3
        s_lshl_b32 s{sA}, s{sX}, 5
        s_add_u32 s{sB}, s{sB}, s{sA}
        s_mul_i32 s{sB}, s{sB}, {OSL}
        s_add_u32 s{sB}, s{sB}, s{sD}
        v_lshrrev_b32 v1, 4, v0
        v_and_b32 v2, 15, v0
        v_mul_u32_u24 v72, {2*OSL}, v1
        v_add_u32 v72, s{sB}, v72
        s_lshl_b32 s{sC}, s{sC}, 8
        v_lshl_add_u32 v73, v2, 4, v72
        v_add_u32 v73, s{sC}, v73""")
        if 'o' in self.o['few']: A(f"v_mov_b32 v3, {OOB}\nv_cmp_eq_u32 vcc, 0, v2\nv_cndmask_b32 v72, v3, v72, vcc")
        A(f"""s_lshl_b32 s{sA}, s{sV}, 7
        v_mul_u32_u24 v74, {OS}, v1
        v_lshl_add_u32 v74, v2, 3, v74
        v_add_u32 v74, s{sA}, v74""")
    def wo_pre2(self):
        A = self.A
        A(f"v_mov_b32 v1, 0\nds_read_b32 v47, v1 offset:{L_FL+12}\ns_mov_b32 s{sA}, {L_WO}")
        self.tr_addr(75, sA)
        A(f"s_lshl_b32 s{sA}, s{sV}, 5\nv_xor_b32 v75, s{sA}, v75")
        k = 8 - int(self.o['tqwo']) // 4
        self.wfrags(4, 75, k)
        if k < 8:
            A("v_mov_b32 v77, v75")
            l = self.lab("wl"); A(f"s_cmp_eq_u32 s{sP}, 0\ns_cbranch_scc1 {l}"); self.wfrags(4 + 4 * k, 75, 8 - k, k * 4096); self.end(l)
        self.afrag_addr(75, OS); self.pub_addr(76, RX); self.lane_tag(78, 0)
        A(f"s_waitcnt lgkmcnt({min(15, 2*k)})\nv_readfirstlane_b32 s{sFAST}, v47")

    def wo_stage(self):
        A = self.A
        l = self.role(R_LT4)
        if int(self.o['tqb']):
            n = int(self.o['tqwo']) // 4; nb = int(self.o['tqb'])
            l2 = self.pass0()
            A(f"s_mul_i32 s{sB}, s{sV}, {n}\ns_add_u32 s{sB}, s{sB}, {32 - 4*n + n - nb}\ns_mul_i32 s{sC}, s{sB}, {8*1280}\ns_lshl_b32 s{sB}, s{sB}, 10")
            self.dma(SWO, 6, nb, 1280, L_WO, sC, sB)
            self.end(l2)
        if int(self.o['mlb']): self.wo_pre2()
        else: self.wo_pre1(); self.wo_pre2(); A("s_barrier")
        self.sync(self.o['sync_o'])
        def loadsA(): A(f"""buffer_load_dwordx3 v[48:50], v72, {srd(SWS)}, 0 offen offset:768 sc1
        buffer_load_dwordx3 v[52:54], v72, {srd(SWS)}, 0 offen offset:{768+OSL} sc1""")
        def loads(): A(f"""buffer_load_dwordx4 v[56:59], v73, {srd(SWS)}, 0 offen sc1
        buffer_load_dwordx4 v[60:63], v73, {srd(SWS)}, 0 offen offset:{OSL} sc1""")
        chain = """v_sub_f32 v66, v52, v48
            v_exp_f32 v67, v66
            v_exp_f32 v66, -v66
            v_fma_f32 v67, v67, v53, v49
            v_fma_f32 v66, v66, v49, v53
            v_rcp_f32 v67, v67
            v_rcp_f32 v66, v66""".split('\n')
        def red():
            cm, ors = self.tagchk([56, 60], (), 'v78')
            self.mix(cm, [f"v_mul_f32 v{56+i}, v67, v{56+i}" for i in (2, 3, 1)])
            A("v_mul_f32 v56, v67, v56")
            for i in (2, 3, 1, 0): A(f"v_fmac_f32 v{56+i}, v66, v{60+i}")
            A("v_cvt_pk_bf16_f32 v65, v58, v59\nv_cvt_pk_bf16_f32 v64, v56, v57\nds_write_b64 v74, v[64:65] offset:%d" % L_OA)
            self.mix(ors)
        self.tpoll(loadsA, 0, (50, 54), None, chain, loads, red, lambda: None, 'o')
        lgo = self.lab("wogo")
        k = 8 - int(self.o['tqwo']) // 4
        def variant(first):
            A("s_waitcnt lgkmcnt(0)")
            self.stamp(5)
            self.barrier('O')
            seq = []
            for s in range(8):
                if first and s >= k: self.wfrags(4 + 4 * s, 77, 1, s * 4096); seq += [s, s]
                A(f"ds_read_b128 {vr(36+4*s)}, v75 offset:{L_OA + 64*s}"); seq.append(s)
            for s in range(8):
                A(f"s_waitcnt lgkmcnt({min(15, sum(x > s for x in seq))})\nv_mfma_f32_16x16x32_bf16 v[68:71], {vr(36+4*s)}, {vr(4+4*s)}, {'0' if s == 0 else 'v[68:71]'}")
            self.pub_store(76, 'O')
            if first and 'w' in self.o['bar']: A("s_barrier")
            A(f"s_branch {lgo}")
        if k < 8:
            lp = self.pass0(); variant(True); self.end(lp)
        variant(False)
        self.end(l)
        if not int(self.o['mlb']): A("s_barrier")
        l = self.pass0(); self.cq_gather(False); self.end(l)
        self.barrier('O')
        l = lgo; l2 = self.pass0()
        if 'w' in self.o['bar']: A("s_barrier")
        nlate = 6 if self.o['defer'] else 0
        def late_clr():
            l3 = self.lab("nm"); l5, l6, l7_ = self.lab("lc"), self.lab("lc"), self.lab("lc")
            A(f"s_cbranch_execz {l3}"); self.clr_begin()
            A(f"s_cmp_eq_u32 s{sV}, 5\ns_cbranch_scc1 {l5}\ns_cmp_eq_u32 s{sV}, 6\ns_cbranch_scc1 {l6}\ns_cmp_eq_u32 s{sV}, 7\ns_cbranch_scc1 {l3}")
            self.clr('X', 1); self.clr('Y', 1); self.clr('O', 1)
            A(f"s_branch {l3}\n{l5}:"); self.clr('G', 1)
            A(f"s_branch {l3}\n{l6}:"); self.clr('Q', 1)
            self.end(l3)
        def late():
            if self.o['dwo']:
                l3 = self.lab("nm"); A(f"s_cbranch_execz {l3}\ns_and_b32 s{sD}, s{sV}, 3"); self.w_dma_gud(sD, self.o['dwo']); self.end(l3)
        l7 = self.role(R_7)
        if self.o['prewarm']:
            self.mem(f"""v_lshlrev_b32 v1, 4, v0
            s_mul_i32 s{sA}, s{sSIG}, {GSL}
            s_add_u32 s{sA}, s{sA}, {RG[0]}
            buffer_load_dwordx4 v[60:63], v1, {srd(SWS)}, s{sA} offen sc1
            buffer_load_dwordx4 v[60:63], v1, {srd(SWS)}, s{sA} offen offset:1024 sc1
            s_mov_b32 exec_hi, 0xff
            buffer_load_dwordx4 v[60:63], v1, {srd(SWS)}, s{sA} offen offset:2048 sc1
            s_mov_b32 exec_hi, -1""")
        self.end(l7)
        late()
        if self.o['clr'] == 'late': late_clr()
        self.end(l2); self.end(l)
        self.stamp(6)

    def x_gather_pre(self, R):
        self.region(sC, R)
        h = 1 if self.o['xbf'] else 0
        self.A(f"""s_lshl_b32 s{sA}, s{sAI}, {10-h}
        s_lshl_b32 s{sB}, s{sV}, {7-h}
        s_add_u32 s{sA}, s{sA}, s{sB}
        s_add_u32 s{sA}, s{sA}, s{sC}
        v_lshrrev_b32 v1, 3, v0
        v_and_b32 v2, 7, v0
        v_mul_u32_u24 v28, {10240 >> h}, v1
        v_lshl_add_u32 v28, v2, {4-h}, v28
        v_add_u32 v28, s{sA}, v28
        v_lshrrev_b32 v1, 4, v0
        v_mul_u32_u24 v29, {XS}, v1
        v_lshl_add_u32 v29, v2, 1, v29
        s_lshl_b32 s{sA}, s{sV}, 4
        v_add_u32 v29, s{sA}, v29""")
    def x_gather(self, tag, shadow):
        A = self.A
        bf = self.o['xbf']
        def loads():
            for i, r in enumerate(("0", f"s{sK1}", f"s{sK2}")):
                A(f"buffer_load_dwordx2 {vr(52+2*i,2)}, v28, {srd(SWS)}, {r} offen sc1" if bf else f"buffer_load_dwordx4 {vr(48+4*i)}, v28, {srd(SWS)}, {r} offen sc1")
        def red():
            if bf: self.mix(self.unpack_sum(48, [52, 54, 56]))
            else:
                for i in range(4): A(f"v_add_f32 v{48+i}, v{48+i}, v{52+i}")
                for i in (0, 2, 1, 3): A(f"v_add_f32 v{48+i}, v{48+i}, v{56+i}")
            self.treduce(48, 49, 50, 51)
            A(f"v_add_f32_dpp v48, v48, v48 row_ror:8 {DPP}\nv_cvt_pk_bf16_f32 v49, 0, v48")
        self.poll(loads, range(52, 58) if bf else range(48, 60), red, (48, 48), tag=tag, shadow=shadow)

    def gu_stage(self):
        A = self.A
        A(f"s_lshr_b32 s{sA}, s{sV}, 2\ns_lshl_b32 s{sA}, s{sA}, 13\ns_add_u32 s{sA}, s{sA}, {L_WG}")
        self.tr_addr(35, sA)
        A(f"s_and_b32 s{sA}, s{sV}, 3\ns_lshl_b32 s{sA}, s{sA}, 5\nv_xor_b32 v35, s{sA}, v35")
        if self.o['defer']:
            l = self.lab("gw"); A(f"s_cmp_eq_u32 s{sP}, 0\ns_cbranch_scc1 {l}"); self.wfrags(12, 35, 2); self.end(l)
        else: self.wfrags(12, 35, 2)
        self.x_gather_pre(RX)
        self.xa_addr()
        self.region(sC, RG)
        A(f"""s_mul_i32 s{sA}, s{sSIG}, {GSL}
        s_add_u32 s{sA}, s{sA}, s{sC}
        s_lshl_b32 s{sB}, s{sV}, {7 if self.o['gbf'] else 8}
        s_add_u32 s{sB}, s{sB}, s{sA}
        v_lshl_add_u32 v32, v0, {3 if self.o['gbf'] else 4}, s{sB}
        s_lshl_b32 s{sB}, s{sV}, 6
        s_add_u32 s{sB}, s{sB}, s{sA}
        v_lshl_add_u32 v34, v0, 2, s{sB}
        v_lshrrev_b32 v1, 4, v0
        s_add_u32 s{sA}, s{sA}, 2560
        v_lshl_add_u32 v33, v1, 4, s{sA}""")
        self.sync(self.o['sync_x'], RX)
        def xsh():
            if self.o['dx']:
                l = self.pass0(); l3 = self.lab("nm"); le = self.lab("dxe")
                A(f"s_cbranch_execz {l3}")
                self.dma_addr(20, 1280)
                wf = self.o['wflag'].replace('plain', '')
                A(f"""s_and_b32 s{sA}, s{sV}, 1
                s_lshl_b32 s{sA}, s{sA}, 6
                v_xor_b32 v20, s{sA}, v20
                s_lshl_b32 s{sB}, s{sV}, 10
                s_add_u32 m0, s{sB}, {L_WD}
                s_mul_i32 s{sA}, s{sV}, {8*1280}
                buffer_load_dwordx4 v20, {srd(SWD)}, s{sA} offen {wf} lds""")
                self.end(l3)
                self.down_pre()
                A(f"s_waitcnt vmcnt(1)\ns_cbranch_execnz {self.lskip}")
                self.end(l)
            self.down_pre()
        if 'x' in self.o['early']: self.down_pre(); self.x_gather('x', None)
        else: self.x_gather('x', xsh)
        A(f"""v_add_f32 v{vXR}, v{vXR}, v49
        v_cvt_pk_bf16_f32 v{vXR}, 0, v{vXR}
        ds_write_b16_d16_hi v29, v{vXR} offset:{L_XA}""")
        self.stamp(7)
        def store(first, more=""):
            self.pre_store(0xffff, [48], 86)
            st = f"buffer_store_dwordx4 v[48:51], v32, {srd(SWS)}, 0 offen{{f}}"
            if first: st += f"\ns_mov_b32 exec_lo, 0xffff0000\nbuffer_store_dword v48, v34, {srd(SWS)}, 0 offen offset:{2048-64}{{f}}"
            self.stores(st + "\n" + more, True, 'X')
            self.exec_full()
        self.mm_with_gram("v_mfma_f32_16x16x32_bf16 v[48:51], v[4:7], v[12:15], 0", "v_mfma_f32_16x16x32_bf16 v[48:51], v[8:11], v[16:19], v[48:51]", store, 'X',
                          late=(lambda: self.wfrags(12, 35, 2)) if self.o['defer'] else (lambda: None))
        self.stamp(8)

    def down_wpre(self):
        l = self.role(R_LT4)
        if self.o['dx']: self.A(f"s_cmp_eq_u32 s{sP}, 0\ns_cbranch_scc1 {l}")
        self.wfrags(20, 47, 2); self.end(l)
    def down_pre(self):
        A = self.A
        A(f"s_mov_b32 s{sA}, {L_WD}")
        self.tr_addr(47, sA)
        A(f"s_lshl_b32 s{sA}, s{sV}, 5\nv_xor_b32 v47, s{sA}, v47")
        self.afrag_addr(78, HS); self.pub_addr(79, RY)
        self.region(sD, RG)
        A(f"""s_mul_i32 s{sC}, s{sRI}, 10
        s_lshl_b32 s{sA}, s{sX}, 5
        s_add_u32 s{sC}, s{sC}, s{sA}
        s_mul_i32 s{sC}, s{sC}, {GSL}
        s_add_u32 s{sC}, s{sC}, s{sD}
        v_lshrrev_b32 v1, 4, v0
        v_mul_u32_u24 v3, {GSL}, v1
        v_add_u32 v3, s{sC}, v3
        v_bfe_u32 v2, v0, 3, 1
        v_lshlrev_b32 v2, 6, v2
        v_and_or_b32 v2, v0, 7, v2
        s_lshl_b32 s{sA}, s{sV}, 3
        v_add_u32 v2, s{sA}, v2
        v_lshl_add_u32 v72, v2, {3 if self.o['gbf'] else 4}, v3
        v_lshl_add_u32 v74, v2, 2, v3
        v_add_u32 v73, {8*GSL}, v72
        v_add_u32 v75, {8*GSL}, v74
        v_mov_b32 v3, {OOB}
        v_cmp_gt_u32 vcc, 32, v0
        v_cndmask_b32 v73, v3, v73, vcc
        v_cndmask_b32 v75, v3, v75, vcc
""")
        if 'g' in self.o['few']: A(f"""v_lshrrev_b32 v2, 2, v0
        v_mul_u32_u24 v76, {GSL}, v2
        v_and_b32 v2, 3, v0
        v_lshl_add_u32 v76, v2, 4, v76
        v_add_u32 v76, s{sC}, v76
        v_cmp_gt_u32 vcc, 40, v0
        v_cndmask_b32 v76, v3, v76, vcc""")
        else: A(f"""v_and_b32 v2, 15, v0
        v_mul_u32_u24 v76, {GSL}, v2
        v_lshl_add_u32 v76, v1, 4, v76
        v_add_u32 v76, s{sC}, v76
        v_cmp_gt_u32 vcc, 10, v2
        v_cndmask_b32 v76, v3, v76, vcc""")
        A(f"""        v_mul_u32_u24 v77, {HS}, v1
        v_and_b32 v2, 7, v0
        v_lshl_add_u32 v77, v2, 1, v77
        s_lshl_b32 s{sA}, s{sV}, 4
        v_add_u32 v77, s{sA}, v77
        v_mov_b32 v40, 0
        v_mov_b32 v41, 0
        v_mov_b32 v42, 0
        v_mov_b32 v43, 0""")
        self.lane_tag(85, 4); self.lane_tag(86, 0)

    def down_stage(self):
        A = self.A
        if 'g' in self.o['bar']: A("s_barrier")
        self.sync(self.o['sync_g'])
        def loadsA(): A(f"buffer_load_dwordx4 v[40:43], v76, {srd(SWS)}, 0 offen offset:2560 sc1")
        def loads():
            A(f"""buffer_load_dwordx4 v[52:55], v72, {srd(SWS)}, 0 offen sc1
            buffer_load_dwordx4 v[56:59], v72, {srd(SWS)}, s{sKG} offen sc1
            buffer_load_dwordx4 v[60:63], v73, {srd(SWS)}, 0 offen sc1""")
            l = self.pass0()
            A(f"""buffer_load_dword v44, v74, {srd(SWS)}, 0 offen offset:2048 sc1
            buffer_load_dword v45, v74, {srd(SWS)}, s{sKG} offen offset:2048 sc1
            buffer_load_dword v46, v75, {srd(SWS)}, 0 offen offset:2048 sc1""")
            self.end(l)
        def red():
            s0 = f"""v_add_f32 v35, v44, v45
            v_add_f32 v35, v35, v46
            v_mov_b32 v36, v35
            v_permlane32_swap_b32 v35, v36
            v_add_f32 v35, v35, v36
            v_mov_b32 v36, v35
            v_permlane16_swap_b32 v35, v36
            v_add_f32 v{vC}, v35, v36""".split('\n')
            pre = [f"v_add_f32 v{52+i}, v{52+i}, v{56+i}" for i in (1, 2, 3)] + [f"v_add_f32 v{52+i}, v{52+i}, v{60+i}" for i in (2, 1, 3)]
            s2 = ["v_add_f32 v52, v52, v56", "v_add_f32 v52, v52, v60"] + self.capture(lambda: self.treduce(52, 53, 54, 55))
            l = self.pass0(); le = self.lab("rv")
            cm, ors = self.tagchk([52, 56, 44, 45], [60, 46], 'v86')
            self.mix(cm, pre); self.mix(s2, s0, ors)
            A(f"s_branch {le}")
            self.end(l)
            cm, ors = self.tagchk([52, 56], [60], 'v86')
            self.mix(cm, pre); self.mix(s2[:4]); self.mix(s2[4:], ors)
            self.end(le)
            A(f"v_fma_f32 v52, -v37, v{vC}, v52\nv_mul_f32 v52, v52, v38\nv_cvt_pk_bf16_f32 v53, 0, v52")
        def post():
            A(f"""v_mul_f32 v54, s{sLOG2E}, v53
            v_exp_f32 v54, -v54
            v_add_f32 v54, 1.0, v54
            v_rcp_f32 v54, v54
            v_mul_f32 v54, v53, v54
            v_cvt_pk_bf16_f32 v54, 0, v54
            v_mul_f32_dpp v54, v53, v54 row_ror:8 {DPP}""")
            self.exec_mask(0x00ff00ff00ff00ff)
            A(f"v_cvt_pk_bf16_f32 v54, 0, v54\nds_write_b16_d16_hi v77, v54 offset:{L_HA}")
            self.exec_full()
        self.tpoll(loadsA, 0x03ff03ff03ff03ff, (43,), self.down_wpre, self.red16([40, 41]) + self.lnstats(40, 41, 37, 38, 39), loads, red, post, 'g')
        self.stamp(9)
        l = self.role(R_LT4); le = self.lab("dn")
        A("s_waitcnt lgkmcnt(0)"); self.barrier('G')
        if self.o['dx']:
            l2 = self.pass0(); self.wfrags(20, 47, 2); self.end(l2)
        A(f"""ds_read_b128 v[4:7], v78 offset:{L_HA}
        ds_read_b128 v[8:11], v78 offset:{L_HA+64}
        s_waitcnt lgkmcnt(1)
        v_mfma_f32_16x16x32_bf16 v[68:71], v[4:7], v[20:23], 0
        s_waitcnt lgkmcnt(0)
        v_mfma_f32_16x16x32_bf16 v[68:71], v[8:11], v[24:27], v[68:71]""")
        self.pub_store(79, 'G')
        A(f"s_branch {le}")
        self.end(l)
        A("s_waitcnt lgkmcnt(0)"); self.barrier('G')
        self.end(le)
        if 'y' in self.o['bar']: A("s_barrier")
        self.stamp(10)
        A("v_and_b32 v43, 0xffffff00, v43")
        self.mix(self.red16([42, 43]))
        l = self.pass0(); A(f"v_readfirstlane_b32 s{sSW}, v43"); self.end(l)
        A(f"""v_mov_b32 v43, s{sSW}
        v_fma_f32 v42, -v37, v43, v42
        v_mul_f32 v42, v42, v38
        v_cvt_pk_bf16_f32 v42, 0, v42
        v_mul_f32 v42, s{sLOG2E}, v42
        v_exp_f32 v42, -v42
        v_sub_f32 v{vXN}, v{vXR}, v37
        v_add_f32 v42, 1.0, v42
        v_rcp_f32 v42, v42
        v_cvt_pk_bf16_f32 v{vXN}, 0, v{vXN}
        v_cvt_pk_bf16_f32 v{vSG}, 0, v42
        v_mul_f32 v{vXN}, v{vXN}, v38
        v_cvt_pk_bf16_f32 v{vXN}, 0, v{vXN}""")

    def y_finish(self):
        self.A(f"""v_mul_f32 v49, v49, v{vSG}
        v_cvt_pk_bf16_f32 v49, 0, v49
        v_add_f32 v49, v{vXN}, v49
        v_cvt_pk_bf16_f32 v49, 0, v49
        v_add_f32 v{vXR}, v{vXR}, v49
        v_cvt_pk_bf16_f32 v{vXR}, 0, v{vXR}""")

    def qg_addr(self, extra):
        self.A(f"""s_lshr_b32 s{sA}, s{sT}, 3
        s_mul_i32 s{sA}, s{sA}, 3
        s_and_b32 s{sB}, s{sV}, 3
        s_add_u32 s{sA}, s{sA}, s{sB}
        s_lshr_b32 s{sB}, s{sA}, 2
        s_mul_i32 s{sB}, s{sB}, 10
        s_lshl_b32 s{sC}, s{sX}, 5
        s_add_u32 s{sB}, s{sB}, s{sC}
        s_mul_i32 s{sB}, s{sB}, {QSL}
        s_add_u32 s{sB}, s{sB}, {RQ[1]}
        s_and_b32 s{sA}, s{sA}, 3
        s_lshl_b32 s{sA}, s{sA}, 8
        s_add_u32 s{sA}, s{sA}, s{sB}
        s_add_u32 s{sA}, s{sA}, {extra}
        v_lshrrev_b32 v1, 4, v0
        v_and_b32 v2, 15, v0
        v_mul_u32_u24 v36, {QSL}, v1
        v_lshl_add_u32 v36, v2, 4, v36
        v_add_u32 v36, s{sA}, v36
        v_add_u32 v37, {8*QSL}, v36
        v_mov_b32 v3, {OOB}
        v_cmp_gt_u32 vcc, 32, v0
        v_cndmask_b32 v37, v3, v37, vcc
        v_lshlrev_b32 v40, 4, v2
        v_lshl_add_u32 v40, v1, 2, v40
        s_and_b32 s{sA}, s{sV}, 3
        s_lshl_b32 s{sA}, s{sA}, 8
        v_add_u32 v40, s{sA}, v40""")
    def cq_gather(self, idle, shadow=None, wait0=0):
        A = self.A
        l = self.role(R_456)
        self.qg_addr("4224"); self.lane_tag(24, 0)
        def loads(): A(f"""buffer_load_dwordx4 v[12:15], v36, {srd(SWS)}, 0 offen sc1
        buffer_load_dwordx4 v[16:19], v36, {srd(SWS)}, s{sKQ} offen sc1
        buffer_load_dwordx4 v[20:23], v37, {srd(SWS)}, 0 offen sc1""")
        def red():
            cm, ors = self.tagchk([12, 16], [20], 'v24'); self.mix(cm)
            for i in range(4): A(f"v_add_f32 v{12+i}, v{12+i}, v{16+i}")
            for i in range(4): A(f"v_add_f32 v{12+i}, v{12+i}, v{20+i}")
            self.mix(ors)
            self.treduce(12, 13, 14, 15)
        self.tpoll(None, 0, (), None, [], loads, red, lambda: A(f"ds_write_b32 v40, v12 offset:{L_CQ}"), 'z')
        self.end(l)
    def qg_pre(self):
        A = self.A
        l = self.role(R_456)
        A(f"s_bfe_u32 s{sD}, s{sT}, 0x20001\ns_lshl_b32 s{sF}, s{sD}, 10")
        self.qg_addr(f"s{sF}")
        A(f"""v_mul_u32_u24 v38, {QSL}, v2
        s_lshl_b32 s{sD}, s{sD}, 4
        s_add_u32 s{sD}, s{sD}, s{sB}
        s_add_u32 s{sD}, s{sD}, 4096
        v_add_u32 v38, s{sD}, v38
        v_cmp_gt_u32 vcc, 10, v{0 if 'q' in self.o['few'] else 2}
        v_cndmask_b32 v38, v3, v38, vcc
        ds_read_b32 v40, v40 offset:{L_CQ}""")
        self.q_lds_addr(39)
        A(f"s_lshr_b32 s{sA}, s{sA}, 1\nv_add_u32 v39, s{sA}, v39")
        self.end(l)
    def prewarm_o1(self):
        self.mem(f"""v_lshlrev_b32 v1, 4, v0
        s_mul_i32 s{sA}, s{sSIG}, {OSL}
        s_add_u32 s{sA}, s{sA}, {RO[1]}
        s_mov_b32 exec_hi, 0xffffff
        buffer_load_dwordx4 v[60:63], v1, {srd(SWS)}, s{sA} offen sc1
        s_mov_b32 exec_hi, -1""")

    def final_body(self):
        A = self.A
        self.xcol_addr(30)
        if int(self.o['pto']):
            l = self.role(R_7 if int(self.o['pto']) == 1 else R_GE4)
            self.exec_mask(0x00ff00ff00ff00ff)
            A(f"buffer_store_short_d16_hi v{vXR}, v30, {srd(SOUT)}, 0 offen")
            self.exec_full(); self.end(l)
        self.x_gather_pre(RY)
        self.sync(self.o['sync_f'], RY)
        self.x_gather('f', None)
        self.y_finish()
        self.exec_mask(0x00ff00ff00ff00ff)
        self.mem(f"buffer_store_short_d16_hi v{vXR}, v30, {srd(SOUT)}, 0 offen {self.o['outf'].replace('plain', '').replace('_', ' ')}")
        self.exec_full()
        if self.o['dry']: A(f"s_cmp_eq_u32 s{sDRY}, 1\ns_cbranch_scc1 L_stubs")

    def q_stage_and_final(self):
        A = self.A
        A(f"s_cmp_eq_u32 s{sP}, 1\ns_cbranch_scc1 L_final\ns_add_u32 s{sTB}, s{sTAG}, 1")
        if self.o['prewarm']:
            l = self.role(R_GE4); la = self.lab("pw"); lb = self.lab("pw"); l3 = self.lab("nm")
            A(f"""s_cbranch_execz {l3}
            v_lshlrev_b32 v1, 4, v0
            s_and_b32 s{sB}, s{sV}, 3
            s_lshl_b32 s{sB}, s{sB}, 10
            s_mul_i32 s{sA}, s{sSIG}, {QSL}
            s_add_u32 s{sA}, s{sA}, {RQ[1]}
            s_add_u32 s{sB}, s{sA}, s{sB}
            buffer_load_dwordx4 v[60:63], v1, {srd(SWS)}, s{sB} offen sc1
            s_cmp_eq_u32 s{sV}, 7
            s_cbranch_scc0 {lb}
            s_add_u32 s{sA}, s{sA}, 4096
            s_mov_b64 exec, 0xff
            buffer_load_dwordx4 v[60:63], v1, {srd(SWS)}, s{sA} offen sc1
            {lb}:
            s_mov_b64 exec, -1""")
            self.end(l3); self.end(l)
        A(f"s_lshr_b32 s{sA}, s{sV}, 1\ns_lshl_b32 s{sA}, s{sA}, 13\ns_add_u32 s{sA}, s{sA}, {L_WQ}")
        self.tr_addr(34, sA)
        A(f"s_and_b32 s{sA}, s{sV}, 1\ns_lshl_b32 s{sA}, s{sA}, 6\nv_xor_b32 v34, s{sA}, v34\nv_xor_b32 v35, 32, v34")
        self.wfrags(12, 34, 2); self.wfrags(20, 35, 2); self.lane_tag(42, 4)
        shf = int(self.o['shf'])
        if shf:
            A("L_ycommon:")
            self.xcol_addr(41)
            A(f"""s_cmp_eq_u32 s{sP}, 1
            s_cselect_b32 s{sA}, 0x00ff00ff, 0
            s_mov_b32 s{sB}, s{sA}
            v_mov_b32 v3, {OOB}
            v_cndmask_b32 v41, v3, v41, s[{sA}:{sB}]""")
        self.x_gather_pre(RY)
        self.xa_addr()
        A(f"""v_and_b32 v1, 15, v0
        v_lshlrev_b32 v32, 10, v1
        v_lshrrev_b32 v1, 4, v0
        v_lshl_add_u32 v32, v1, 4, v32
        s_mul_i32 s{sB}, s{sSIG}, {QSL}
        s_add_u32 s{sB}, s{sB}, {RQ[1]}
        s_lshl_b32 s{sA}, s{sV}, 7
        s_add_u32 s{sA}, s{sA}, s{sB}
        v_add_u32 v32, s{sA}, v32
        s_add_u32 s{sB}, s{sB}, 4096
        v_lshl_add_u32 v33, v1, 4, s{sB}""")
        self.sync(self.o['sync_y'], RY)
        if 'y' in self.o['early']:
            l = self.pass0() if shf == 1 else None
            self.attn_pre()
            if l: self.end(l)
            self.x_gather('y', self.qg_pre)
        else: self.x_gather('y', lambda: (self.attn_pre(), self.qg_pre()))
        self.y_finish()
        A(f"ds_write_b16_d16_hi v29, v{vXR} offset:{L_XA}")
        if shf:
            A(f"buffer_store_short_d16_hi v{vXR}, v41, {srd(SOUT)}, 0 offen")
            l = self.lab("go")
            diag = self.prof or self.o['t2'] or self.o['fine'] or int(self.o['pad'])
            A(f"s_cmp_eq_u32 s{sP}, 1\ns_cbranch_scc0 {l}\n{'s_branch L_done' if diag else 's_endpgm'}\n{l}:")
        self.stamp(11)
        def store(first, more=""):
            self.pre_store(0x000f000f000f000f, [48, 52], 42)
            self.stores(f"buffer_store_dwordx4 v[48:51], v32, {srd(SWS)}, 0 offen{{f}}\nbuffer_store_dwordx4 v[52:55], v32, {srd(SWS)}, 0 offen offset:64{{f}}\n" + more, True, 'Y')
            self.exec_full()
        self.mm_with_gram("v_mfma_f32_16x16x32_bf16 v[48:51], v[12:15], v[4:7], 0\nv_mfma_f32_16x16x32_bf16 v[52:55], v[20:23], v[4:7], 0",
                          "v_mfma_f32_16x16x32_bf16 v[48:51], v[16:19], v[8:11], v[48:51]\nv_mfma_f32_16x16x32_bf16 v[52:55], v[24:27], v[8:11], v[52:55]", store, 'Y')
        if 'q' in self.o['bar']: A("s_barrier")
        A("L_qwait:")
        l = self.role(R_456)
        self.sync(self.o['sync_q'])
        def loadsA(): A(f"buffer_load_dwordx4 v[16:19], v38, {srd(SWS)}, 0 offen sc1")
        def loads(): A(f"""buffer_load_dwordx4 v[4:7], v36, {srd(SWS)}, 0 offen sc1
        buffer_load_dwordx4 v[8:11], v36, {srd(SWS)}, s{sKQ} offen sc1
        buffer_load_dwordx4 v[12:15], v37, {srd(SWS)}, 0 offen sc1""")
        def red():
            cm, ors = self.tagchk([4, 8], [12], 'v23')
            self.mix(cm, [f"v_add_f32 v{4+i}, v{4+i}, v{8+i}" for i in (1, 2, 3)] + [f"v_add_f32 v{4+i}, v{4+i}, v{12+i}" for i in (2, 1, 3)])
            A("v_add_f32 v4, v4, v8\nv_add_f32 v4, v4, v12")
            t = self.capture(lambda: self.treduce(4, 5, 6, 7))
            self.mix(t[:2]); self.mix(t[2:], ors)
            A("v_fma_f32 v4, -v20, v40, v4\nv_mul_f32 v4, v4, v22\nv_cvt_pk_bf16_f32 v5, 0, v4")
        A("v_mov_b32 v16, 0\nv_mov_b32 v17, 0")
        self.tpoll(loadsA, 0x03ff03ff03ff03ff, (19,), lambda: (self.attn_zero(skip=range(36, 41)), self.lane_tag(23, 0)), self.red16([16, 17]) + self.lnstats(16, 17, 20, 22, 21), loads, red,
                   lambda: A(f"ds_write_b16_d16_hi v39, v5 offset:{L_QL}"), 'q')
        le = self.lab("qz")
        for r in range(36, 41): A(f"v_mov_b32 v{r}, 0")
        A(f"s_mov_b32 s{sP}, 1\ns_branch L_attn_bar")
        self.end(l)
        self.attn_zero()
        A(f"s_mov_b32 s{sP}, 1")
        if int(self.o['wb']) == 1:
            A(f"s_cmp_eq_u32 s{sT}, 30\ns_cbranch_scc0 L_attn_bar\ns_cmp_eq_u32 s{sV}, 3\ns_cbranch_scc0 L_attn_bar\ns_barrier\nbuffer_wbl2 sc1\ns_branch L_attn")
        else: A("s_branch L_attn_bar")
        A(f"L_idle:\ns_cmp_eq_u32 s{sP}, 0\ns_cbranch_scc0 L_done")
        self.cq_gather(True)
        A(f"s_add_u32 s{sTB}, s{sTAG}, 1\ns_waitcnt lgkmcnt(0)")
        if self.o['clr'] == 'late':
            l = self.role(R_456); lp = self.lab("ig"); lr = self.lab("igr")
            A(f"""s_lshl_b32 s{sA}, s{sX}, 5
            s_mul_i32 s{sA}, s{sA}, {GSL}
            s_add_u32 s{sA}, s{sA}, {RG[0] + 2560}
            v_min_u32 v1, 29, v0
            v_mul_u32_u24 v1, {GSL}, v1
            {lp}:
            buffer_load_dword v4, v1, {srd(SWS)}, s{sA} offen sc1
            s_waitcnt vmcnt(0)
            v_cmp_eq_u32 vcc, -1, v4
            s_cbranch_vccnz {lr}""")
            self.tail.append(f"{lr}:\ns_sleep 4\ns_sub_u32 s{sTO}, s{sTO}, 1\ns_cbranch_scc1 L_end\ns_branch {lp}")
            self.end(l)
        self.attn_pre(); self.qg_pre()
        A("s_waitcnt lgkmcnt(0)\ns_branch L_qwait")
        A("L_final:")
        if int(self.o['wb3']):
            l = self.lab("wb3"); A(f"s_cmp_eq_u32 s{sT}, 29\ns_cbranch_scc0 {l}\ns_cmp_eq_u32 s{sV}, 7\ns_cbranch_scc0 {l}\nbuffer_wbl2 sc1\n{l}:")
        A(f"""s_and_b32 s{sA}, s{sT}, 7
        s_cmp_eq_u32 s{sA}, s{sX}
        s_cbranch_scc0 L_done
        s_cmp_lt_u32 s{sT}, 10
        s_cbranch_scc0 L_done
""")
        if int(self.o['shf']): A("s_branch L_ycommon")
        else: self.final_body()
        A("L_done:")
        if int(self.o['pad']):
            A(f"""L_pad:
            s_memrealtime s[90:91]
            s_waitcnt lgkmcnt(0)
            s_sub_u32 s90, s90, s96
            s_cmp_lt_u32 s90, {int(self.o['pad'])*100}
            s_cbranch_scc1 L_pad""")
        if self.prof: self.stamp(11)
        A("L_end:")
        if self.o['t2']: A("s_waitcnt vmcnt(0)\ns_memrealtime s[68:69]")
        if self.o['fine'] or self.o['t2']: A("s_waitcnt lgkmcnt(0)")
        if self.prof or self.o['fine'] or self.o['t2']:
            A(f"""s_mov_b64 exec, -1
            s_lshl_b32 s{sA}, s2, 3
            s_add_u32 s{sA}, s{sA}, s{sV}
            s_lshl_b32 s{sA}, s{sA}, 7
            s_add_u32 s{sA}, s{sA}, {STAMP}
            v_mov_b32 v1, 0""")
            for i in range(24): A(f"v_mov_b32 v{4+i}, s{sST+i}")
            A(f"v_mov_b32 v28, s{sFAST}\nv_mov_b32 v29, s{sTO}\nv_mov_b32 v30, 0\nv_mov_b32 v31, 0\ns_mov_b64 exec, 1")
            for i in range(7): A(f"buffer_store_dwordx4 {vr(4+4*i)}, v1, {srd(SWS)}, s{sA} offen offset:{16*i}")
        A("L_exit:\ns_endpgm\nL_stubs:")
        for st in self.stubs: A(st)
        A("s_branch L_dry_ret" if self.o['dry'] else "s_endpgm")

    def build(self):
        self.prologue(); self.startup(); self.attention(); self.wo_stage(); self.gu_stage(); self.down_stage(); self.q_stage_and_final()
        i = 0
        while i < len(self.tail): self.A(self.tail[i]); i += 1
        if not self.o['dry']:
            self.L = [l.replace('s_cbranch_execnz', 's_branch') for l in self.L if not l.startswith('s_cbranch_execz')]
        used = set(l.split()[1] for l in self.L if l.startswith(('s_cbranch', 's_branch')))
        self.L = [l for l in self.L if not (l.endswith(':') and l[:-1] not in used and l[:-1] not in ('L_attn',))]
        body, nn = resolve(self.L)
        if int(self.o['a8']):
            body, a, b = align8(body, "L_attn:", int(self.o['a8']), int(self.o['a8n'])); print("align8 widened", a, "nops", b)
        hdr = open('interleave_layers__sliding_block_cached__moe_arch_mod__decode.s.ref').read().split('\n')
        hl = [l for l in hdr if l.startswith(';') and '@launch' not in l]
        hl = hl[:hl.index([l for l in hl if 'Override launch' in l][0])]
        doc = """;
; One persistent workgroup per CU (8 waves, 256 registers each).  Workgroup w = 8t + x keeps half of one
; (batch, head) K/V window resident for both attention layers: K in a0-a95, V in v88-v159 and LDS.
; The weight slices live in LDS.  The small matrix-vector stages run on a 10 x 3 grid of workgroups per
; group x and hand partial results over through d_ws:
;   q partials -> attention -> o partials -> wo -> x partials -> gate/up -> down -> y partials -> wq -> ...
; A consumer sees from the data itself whether it has arrived: the cross-group words are set to 0xffffffff (a NaN)
; at start-up, the others carry a per-launch, per-round tag (d_ws epoch word + 1 / + 2) in low mantissa bits.
; Stores to consumers of the same group skip the write-through only when the flags show that the whole
; group runs on one XCD; otherwise they are sc1 like the cross-group stores.
; LayerNorm is applied after the K-split products: (x@W - mean*colsum(W)) / std.""".split('\n')
        out = hl + doc + [f"; @launch grid=(256,1,1) block=(512,1,1) lds={LDS_SIZE}",
                    '.amdgcn_target "amdgcn-amd-amdhsa--gfx950"', ".text", f".globl {NAME}", ".p2align 8", f".type {NAME},@function", f"{NAME}:"]
        out += [("" if l.endswith(':') else "    ") + l for l in body]
        out += ['.section .rodata,"a"', ".p2align 6", f".amdhsa_kernel {NAME}",
                "  .amdhsa_next_free_vgpr 256", "  .amdhsa_next_free_sgpr 102", "  .amdhsa_accum_offset 160",
                "  .amdhsa_group_segment_fixed_size 0", "  .amdhsa_kernarg_size 104", "  .amdhsa_user_sgpr_count 2",
                "  .amdhsa_user_sgpr_kernarg_segment_ptr 1", "  .amdhsa_system_sgpr_workgroup_id_x 1",
                "  .amdhsa_float_denorm_mode_32 3", ".end_amdhsa_kernel"]
        return "\n".join(out) + "\n", nn

if __name__ == "__main__":
    path = sys.argv[1]
    opts = {}; prof = False
    for a in sys.argv[2:]:
        if a == 'prof': prof = True
        else:
            k, v = a.split('=')
            opts[k] = {'True': True, 'False': False}.get(v, v)
    s, nn = G(prof, opts).build()
    open(path, 'w').write(s)
    print("wrote", path, len(s.split('\n')), "lines, nops inserted:", nn)
```
